```python
import torch

def _softmax(x, axis=-1):
    return torch.softmax(x, dim=axis)
def _gelu(x):
    return torch.nn.functional.gelu(x, approximate="tanh")
def _silu(x):
    return torch.nn.functional.silu(x)
def _sigmoid(x):
    return torch.sigmoid(x)
def _layernorm(x, axis=-1, eps=1e-5):
    m = x.mean(dim=axis, keepdim=True)
    v = x.var(dim=axis, keepdim=True, unbiased=False)
    return (x - m) / torch.sqrt(v + eps)
def _scatter_add(tgt, idx, src, axis=0):
    return tgt.clone().index_add_(axis, idx, src)
def _segment_sum(src, seg, n):
    out = torch.zeros((n,) + src.shape[1:], dtype=src.dtype)
    return out.index_add_(0, seg, src)
def _pad(x, pw):
    flat = tuple(v for pair in reversed(pw) for v in pair)
    return torch.nn.functional.pad(x, flat)

kernel_name = 'standalone__mpnn_edge_mlp__graph'

def setup_inputs():

    _w = (lambda a: (lambda t: t.to(torch.bfloat16) if t.is_floating_point() else t)(torch.as_tensor(a)))
    N, deg, D, De = 10000, 32, 128, max(16, 1)
    E = N * deg
    return {
        "x": _w((lambda *s: torch.randn(*s, dtype=torch.bfloat16) * 0.05)(N, D)),
        "e_attr": _w((lambda *s: torch.randn(*s, dtype=torch.bfloat16) * 0.4)(E, De)),
        "src": _w((lambda lo, hi, *s: torch.randint(lo, hi, s))(0, N, E).to(torch.int64)),
        "dst": _w((lambda lo, hi, *s: torch.randint(lo, hi, s))(0, N, E).to(torch.int64)),
        "w_msg": _w((lambda *s: torch.randn(*s, dtype=torch.bfloat16) * 0.4)(2 * D + De, D)),
        "w_upd": _w((lambda *s: torch.randn(*s, dtype=torch.bfloat16) * 0.05)(2 * D, D)),
    }

def reference(x, e_attr, src, dst, w_msg, w_upd):
    N, D = x.shape
    m_in = torch.concatenate([x[src], x[dst], e_attr], axis=-1)
    msg = _silu(m_in @ w_msg)
    agg = _segment_sum(msg, dst, N)
    return _silu(torch.concatenate([x, agg], axis=-1) @ w_upd)
```

```python
from gen import *

OHT = 0x0
CNT = 0x100
QN = 0x200
FLAG = 0x3F0
REC = 0x400
TG = 26
GSL = TG * 32
REC_BYTES = (2 * GSL + 160) * 8
EA = REC + REC_BYTES
GEA = (TG // 2) * 3072
RING = EA + 2 * GEA
JUNK = RING + 65536
LDS_TOTAL = JUNK + 1024
XS = RING
assert RING % 256 == 0 and LDS_TOTAL <= 163840

class R: pass
v = R()
_n = 1
def alloc(name, n, align=1):
    global _n
    _n = (_n + align - 1) // align * align
    setattr(v, name, _n)
    _n += n
for nm in ("E_", "R1", "R2", "Re", "P0", "P1", "OHA", "EB", "QC", "OHB", "XA", "t0", "t1", "t2", "t3", "lane"):
    alloc(nm, 1)
for nm in ("IX0", "IX1", "IE", "ONE", "S"):
    alloc(nm, 2, 2)
for nm in ("W3F", "QF", "QS", "SEL0", "SEL1", "eF", "ohF", "pF0", "pF1", "aggF", "MSG"):
    alloc(nm, 4, 4)
for nm in ("T0", "T1", "E", "ACC"):
    alloc(nm, 16, 4)
alloc("XF", 32, 4)
alloc("WU", 64, 4)
NV = _n
v.REC = v.T0
v.RANK = v.T0 + 8
v.AD = v.E
v.PK = v.E + 8
v.TP = v.T1
v.W2F = v.WU
v.JK = v.WU + 60
v.IEa = v.pF0
v.IEb = v.pF0 + 2
v.OH0 = v.pF1

sWS, sP, sE, sX, sOUT, sD, sS = 24, 28, 32, 36, 40, 44, 48
sG, sC, sTg, sTile, sTsw, sNB, sRing, sEdst, sMode, sRound, sQdone, sElim = 52, 53, 54, 55, 56, 57, 58, 59, 60, 61, 62, 63
sM = 64
sN20 = 80
sWoff = 82
sNoBar = 83
sK3F = 84
sT0, sT1 = 85, 86

def pi8(A, dst, src, tmp):
    A(f"""
    v_and_b32 v{dst}, 5, v{src}
    v_lshlrev_b32 v{dst}, 5, v{dst}
    v_and_b32 v{tmp}, 18, v{src}
    v_lshl_or_b32 v{dst}, v{tmp}, 2, v{dst}
    v_and_b32 v{tmp}, 8, v{src}
    v_lshl_or_b32 v{dst}, v{tmp}, 1, v{dst}
    """)

def P(r): return f"v[{r}:{r+1}]"
def mfma(d, a, b, c=None):
    return f"v_mfma_f32_32x32x16_bf16 {vr(d,16)}, {vr(a,4)}, {vr(b,4)}, {vr(d,16) if c is None else c}"

def wu_load(A, i):
    off = (i >> 3) * 32768 + (i & 7) * 1024
    hi = off & ~4095
    if hi:
        A(f"s_add_u32 s22, s{sWoff}, {hi}")
        A(f"buffer_load_dwordx4 {vr(v.WU+4*i,4)}, v{v.t3}, {sr(sWS,4)}, s22 offen offset:{off & 4095}")
    else:
        A(f"buffer_load_dwordx4 {vr(v.WU+4*i,4)}, v{v.t3}, {sr(sWS,4)}, s{sWoff} offen offset:{off & 4095}")

def block(A, k, variant, exit_label):
    A("s_setprio 0")
    A(f"s_cmp_ge_u32 s{sTile}, s{sTg}")
    A(f"s_cbranch_scc1 {exit_label}")
    if variant == "peel": n = (5, 11, 16, 21)[k]
    elif variant == "fast": n = (4, 5, 5, 5)[k]
    else: n = 4
    A(f"s_waitcnt vmcnt({n})")
    if k == 1:
        l = A.label("nb")
        if variant == "safe":
            A(f"s_cmp_lg_u32 s{sNoBar}, 0")
            A(f"s_cbranch_scc1 {l}")
        A(f"s_cmp_eq_u32 s{sG}, 0")
        A(f"s_cbranch_scc1 {l}")
        A("s_barrier")
        A(f"{l}:")
    k1 = k + 1
    A(f"ds_read_b128 {vr(v.eF,4)}, v{v.E_} offset:{3072 + (k1 >> 1) * 3072 + (k1 & 1) * 1024}")
    A(f"ds_read_b128 {vr(v.ohF,4)}, v{v.OHA}")
    A(f"ds_read_b128 {vr(v.pF0,4)}, v{v.P0} offset:{(k1 & 3) * 2048}")
    A(f"ds_read_b128 {vr(v.pF1,4)}, v{v.P1} offset:{(k1 & 3) * 2048}")
    if k % 2 == 0 and not (variant == "peel" and k == 0):
        A(f"ds_read_b128 {vr(v.aggF,4)}, v{v.E_} offset:{(k >> 1) * 3072 + 2048}")
    A(f"s_add_u32 m0, s{sRing}, {k * 2048}")
    A(f"ds_read_u8 v{v.OHA}, v{v.R2} offset:{(k + 2) * 256}")
    A(f"buffer_load_dwordx4 {P(v.IX0)}, {sr(sP,4)}, 0 idxen offen lds")
    A(f"s_add_u32 m0, s{sRing}, {k * 2048 + 1024}")
    A(f"ds_read_u16 v{v.IX0}, v{v.R1} offset:{(k + 5) * 256}")
    A(f"buffer_load_dwordx4 {P(v.IX1)}, {sr(sP,4)}, 0 idxen offen lds")
    A(f"ds_read_u16 v{v.IX1}, v{v.R1} offset:{(k + 5) * 256 + 64}")
    if k == 0:
        l = A.label("ne")
        if variant == "safe":
            A(f"s_cmp_lg_u32 s{sNoBar}, 0")
            A(f"s_cbranch_scc1 {l}")
        A(f"s_cmp_lt_u32 s{sEdst}, s{sElim}")
        A(f"s_cselect_b32 m0, s{sEdst}, {JUNK}")
        A(f"s_add_u32 s{sEdst}, s{sEdst}, 6144")
        A(f"buffer_load_dwordx4 {P(v.IE)}, {sr(sE,4)}, 0 idxen offen lds")
        if variant == "safe":
            A(f"{l}:")
    if k == 1:
        A(f"ds_read_b32 v{v.IE}, v{v.Re} offset:{3 * 1024}")
    if variant == "peel" and k < 3:
        for i in range((0, 6, 11)[k], (6, 11, 16)[k]):
            wu_load(A, i)
    A(f"s_add_u32 s{sTile}, s{sTile}, 1")
    l = A.label("nsw")
    A(f"s_cmp_lg_u32 s{sTile}, s{sTsw}")
    A("s_waitcnt lgkmcnt(0)")
    A(f"s_cbranch_scc1 {l}")
    A(f"v_mov_b32 v{v.QF}, v{v.QS+2}")
    A(f"v_mov_b32 v{v.QF+1}, v{v.QS+3}")
    A(f"{l}:")
    if k == 1:
        l = A.label("nb")
        if variant == "safe":
            A(f"s_cmp_lg_u32 s{sNoBar}, 0")
            A(f"s_cbranch_scc1 {l}")
        A(f"s_cmp_lg_u32 s{sG}, 0")
        A(f"s_cbranch_scc1 {l}")
        A("s_barrier")
        A(f"{l}:")

def stretch(A, k, variant):
    T = v.T0 if k % 2 == 0 else v.T1
    Tn = v.T1 if k % 2 == 0 else v.T0
    E = v.E
    ms = [mfma(Tn, v.eF, v.W3F, "0"), mfma(Tn, v.ohF, v.QF), mfma(Tn, v.pF0, v.SEL0), mfma(Tn, v.pF1, v.SEL1)]
    order = [0, 1, 8, 9, 2, 3, 10, 11, 4, 5, 12, 13, 6, 7, 14, 15]
    mi = 0
    for i, r in enumerate(order):
        if i in (1, 4, 7, 10):
            A(ms[mi]); mi += 1
        A(f"v_exp_f32 v{E+r}, v{T+r}")
        if i == 0:
            A("s_setprio 1")
    do_agg = (k % 2 == 0) and not (variant == "peel" and k == 0)
    def agg():
        if not do_agg: return
        if variant == "safe" and k == 0:
            l = A.label("na")
            A(f"s_cmp_eq_u32 s{sTile}, 1")
            A(f"s_cbranch_scc1 {l}")
            A(mfma(v.ACC, v.MSG, v.aggF))
            A(f"{l}:")
        else:
            A(mfma(v.ACC, v.MSG, v.aggF))
    incs = []
    if k == 3:
        incs = [f"v_add_u32 v{v.E_}, 6144, v{v.E_}", f"v_add_u32 v{v.R1}, 1024, v{v.R1}",
                f"v_add_u32 v{v.R2}, 1024, v{v.R2}", f"v_add_u32 v{v.Re}, 1024, v{v.Re}"]
    if variant != "safe":
        ops = []
        for g in (0, 8):
            t, e = T + g, E + g
            o = [f"v_pk_add_f32 {P(e)}, {P(e)}, {P(v.ONE)}"]
            for u in (1, 2, 3):
                o.append(f"v_pk_fma_f32 {P(t)}, {P(t)}, {P(e+2*u)}, {P(t)}")
                o.append(f"v_pk_fma_f32 {P(t)}, {P(t+2*u)}, {P(e)}, {P(t)}")
                o.append(f"v_pk_fma_f32 {P(e)}, {P(e)}, {P(e+2*u)}, {P(e)}")
            ops.append(o)
        for a, b in zip(*ops):
            A(a); A(b)
        agg()
        A(f"v_rcp_f32 v{E+2}, v{E}")
        A(f"v_rcp_f32 v{E+3}, v{E+1}")
        A(f"v_rcp_f32 v{E+10}, v{E+8}")
        A(f"v_rcp_f32 v{E+11}, v{E+9}")
        for s in incs: A(s)
        A(f"v_pk_fma_f32 {P(v.S)}, {P(E)}, {P(E+8)}, {P(v.S)}")
        A(f"v_pk_mul_f32 {P(T)}, {P(T)}, {P(E+2)}")
        A(f"v_pk_mul_f32 {P(T+8)}, {P(T+8)}, {P(E+10)}")
    else:
        for r in range(0, 16, 2):
            A(f"v_pk_add_f32 {P(E+r)}, {P(E+r)}, {P(v.ONE)}")
        agg()
        for r in range(16):
            A(f"v_rcp_f32 v{E+r}, v{E+r}")
        for s in incs: A(s)
        for u in range(4):
            for g in (0, 8):
                if u == 0:
                    A(f"v_pk_mul_f32 {P(T+g)}, {P(T+g)}, {P(E+g)}")
                else:
                    A(f"v_pk_fma_f32 {P(T+g)}, {P(T+g+2*u)}, {P(E+g+2*u)}, {P(T+g)}")
    mo = v.MSG + 2 * (k % 2)
    A(f"v_cvt_pk_bf16_f32 v{mo}, v{T}, v{T+1}")
    A(f"v_cvt_pk_bf16_f32 v{mo+1}, v{T+8}, v{T+9}")

def gen_k2(A, opt):
    L = v.lane
    A("edge_kernel:")
    A(f"s_cmp_ge_u32 s2, {NBIN}")
    A("s_cbranch_scc1 K2_END")
    load_ptrs(A)
    A(f"""
    v_lshrrev_b32 v{v.t0}, 6, v0
    v_and_b32 v{L}, 63, v0
    v_readfirstlane_b32 s3, v{v.t0}
    v_lshlrev_b32 v{v.t2}, 4, v0
    v_lshlrev_b32 v{v.t3}, 4, v{L}
    s_lshl_b32 s22, s2, 14
    s_add_u32 s22, s22, {WS_CELL}
    s_add_u32 s23, s22, 8192
    s_lshr_b32 s{sG}, s3, 2
    s_and_b32 s{sC}, s3, 3
    v_lshrrev_b32 v{v.t1}, 4, v{L}
    v_lshl_add_u32 v{v.t0}, v{v.t0}, 2, v{v.t1}
    v_xor_b32 v{v.t1}, v{v.t0}, v{L}
    v_and_b32 v{v.t1}, 15, v{v.t1}
    v_lshlrev_b32 v{v.t1}, 4, v{v.t1}
    v_lshl_add_u32 v{v.t0}, v{v.t0}, 8, v{v.t1}
    s_mul_i32 s87, s2, 10240
    s_sub_u32 s88, {N*256}, s87
    s_waitcnt lgkmcnt(0)
    """)
    srd(A, sWS, PWS, WS_END)
    A(f"buffer_load_dwordx4 {vr(v.REC,4)}, v{v.t2}, {sr(sWS,4)}, s22 offen")
    A(f"buffer_load_dwordx4 {vr(v.REC+4,4)}, v{v.t2}, {sr(sWS,4)}, s23 offen")
    srd(A, sX, PX, "s88", add="s87")
    A(f"""
    s_lshl_b32 s22, s3, 10
    s_add_u32 m0, s22, {XS}
    s_movk_i32 s23, 0x2000
    buffer_load_dwordx4 v{v.t0}, {sr(sX,4)}, 0 offen lds
    s_add_u32 m0, s22, {XS + 8192}
    s_lshl_b32 s{sWoff}, s{sC}, 13
    buffer_load_dwordx4 v{v.t0}, {sr(sX,4)}, s23 offen lds
    s_add_u32 s{sWoff}, s{sWoff}, {WS_W}
    s_add_u32 s22, s{sWoff}, 4096
    """)
    for s in range(8):
        A(f"buffer_load_dwordx4 {vr(v.W2F+4*s,4)}, v{v.t3}, {sr(sWS,4)}, s{sWoff if s < 4 else 22} offen offset:{(s%4)*1024}")
    A(f"""
    s_lshl_b32 s22, s{sC}, 10
    s_add_u32 s22, s22, {WS_W + 98304}
    buffer_load_dwordx4 {vr(v.W3F,4)}, v{v.t3}, {sr(sWS,4)}, s22 offen
    s_add_u32 s{sWoff}, s{sWoff}, 32768
    s_lshr_b32 s22, s2, 3
    s_mul_i32 s22, s22, 81920
    """)
    NPF = 10 if opt.get("pf", 1) else 0
    for j in range(NPF):
        A(f"buffer_load_dwordx4 {vr(v.JK,4)}, v{v.t2}, {sr(sWS,4)}, s22 offen")
        if j < NPF - 1: A("s_add_u32 s22, s22, 8192")
    srd(A, sP, PWS, N, stride=256)
    srd(A, sE, PE, E, stride=32)
    srd(A, sOUT, POUT, N * 256)
    srd(A, sD, PDST, E * 4)
    srd(A, sS, PSRC, E * 4)
    A(f"""
    s_mov_b32 s{sMode}, 0
    s_mov_b32 s{sRound}, 0
    s_mov_b32 s{sQdone}, 0
    s_mov_b32 s{sNoBar}, 0
    s_movk_i32 s{sK3F}, 0x3fff
    s_lshl_b32 s{sRing}, s3, 13
    s_add_u32 s{sRing}, s{sRing}, {RING}
    """)
    A(f"""
    v_lshrrev_b32 v{v.t0}, 2, v0
    v_add_u32 v{v.t0}, -1, v{v.t0}
    v_and_b32 v{v.t1}, 1, v{v.t0}
    v_lshlrev_b32 v{v.t1}, 4, v{v.t1}
    v_mov_b32 v{v.OHA}, 0x3f80
    v_lshlrev_b32 v{v.t1}, v{v.t1}, v{v.OHA}
    v_ashrrev_i32 v{v.t0}, 1, v{v.t0}
    v_and_b32 v{v.OHA}, 3, v0
    v_cmp_eq_u32 vcc, v{v.t0}, v{v.OHA}
    v_lshlrev_b32 v{v.t0}, 2, v0
    v_mov_b32 v{v.ONE}, 1.0
    v_cndmask_b32 v{v.t1}, 0, v{v.t1}, vcc
    v_cmp_gt_u32 vcc, 36, v0
    s_and_saveexec_b64 s[22:23], vcc
    ds_write_b32 v{v.t0}, v{v.t1}
    s_mov_b64 exec, s[22:23]
    v_mov_b32 v{v.ONE+1}, 1.0
    """)
    for r in range(16):
        A(f"v_mov_b32 v{v.ACC+r}, 0")
    m, h, t = v.t0, v.t1, v.OHA
    A(f"""
    v_and_b32 v{m}, 31, v{L}
    v_lshrrev_b32 v{h}, 5, v{L}
    v_cmp_gt_u32 {sr(sN20,2)}, 20, v{m}
    """)
    pi8(A, v.R2, m, t)
    A(f"""
    s_mul_i32 s22, s{sG}, {GSL*8}
    s_add_u32 s22, s22, {REC}
    v_add3_u32 v{v.R2}, v{v.R2}, v{h}, s22
    v_add_u32 v{v.R2}, 2, v{v.R2}
    v_lshrrev_b32 v{v.IE}, 2, v{L}
    """)
    pi8(A, v.R1, v.IE, t)
    A(f"v_add_u32 v{v.R1}, s22, v{v.R1}")
    A(f"v_lshrrev_b32 v{v.IE}, 1, v{L}")
    pi8(A, v.Re, v.IE, t)
    A(f"""
    s_lshl_b32 s23, s{sC}, 8
    s_add_u32 s22, s22, s23
    s_add_u32 s22, s22, 4
    v_add_u32 v{v.Re}, s22, v{v.Re}
    v_lshrrev_b32 v{t}, 3, v{m}
    v_xor_b32 v{t}, v{t}, v{h}
    v_and_b32 v{t}, 1, v{t}
    v_lshlrev_b32 v{t}, 4, v{t}
    v_lshl_add_u32 v{v.E_}, v{m}, 5, v{t}
    s_mul_i32 s22, s{sG}, {GEA}
    s_add_u32 s22, s22, {EA - 3072}
    v_add_u32 v{v.E_}, s22, v{v.E_}
    v_lshrrev_b32 v{t}, 2, v{m}
    v_lshlrev_b32 v{v.P0}, 1, v{h}
    v_xor_b32 v{t}, v{t}, v{v.P0}
    v_and_b32 v{t}, 3, v{t}
    v_lshlrev_b32 v{t}, 4, v{t}
    v_lshl_add_u32 v{v.P0}, v{m}, 6, v{t}
    v_add_u32 v{v.P0}, s{sRing}, v{v.P0}
    v_xor_b32 v{v.P1}, 16, v{v.P0}
    v_lshrrev_b32 v{t}, 4, v{L}
    v_xor_b32 v{t}, v{t}, v{L}
    v_and_b32 v{v.IE+1}, 1, v{t}
    v_lshlrev_b32 v{v.IE+1}, 4, v{v.IE+1}
    v_and_b32 v{t}, 3, v{t}
    v_lshlrev_b32 v{t}, 4, v{t}
    s_lshl_b32 s22, s{sC}, 6
    v_add_u32 v{v.IX0+1}, s22, v{t}
    v_mov_b32 v{v.IX1+1}, v{v.IX0+1}
    """)
    A(f"""
    s_mul_i32 s22, s{sG}, 20
    v_add_u32 v{t}, s22, v{m}
    v_xor_b32 v{v.XA}, v{t}, v{h}
    v_and_b32 v{v.XA}, 15, v{v.XA}
    v_lshlrev_b32 v{v.XA}, 4, v{v.XA}
    v_lshl_add_u32 v{v.XA}, v{t}, 8, v{v.XA}
    v_add_u32 v{v.XA}, {XS}, v{v.XA}
    """)
    A(f"""
    v_and_b32 v{t}, 8, v{L}
    v_lshlrev_b32 v{t}, 3, v{t}
    v_and_b32 v{v.OHB}, 3, v{L}
    v_lshl_add_u32 v{t}, v{v.OHB}, 4, v{t}
    v_add_u32 v{t}, 16, v{t}
    v_bfe_u32 v{v.QC}, v{L}, 2, 1
    v_cmp_eq_u32 vcc, v{v.QC}, v{h}
    v_lshlrev_b32 v{v.QC}, 3, v{v.QC}
    v_add_u32 v{v.QC}, 16, v{v.QC}
    v_lshlrev_b32 v{v.OHB}, v{v.QC}, v{t}
    v_cndmask_b32 v{t}, 0, v{t}, vcc
    v_cmp_gt_u32 vcc, 16, v{m}
    s_mul_i32 s22, s{sG}, 0
    v_mul_u32_u24 v{v.QC}, {GSL}, v{h}
    v_cndmask_b32 v{v.SEL0}, 0, v{t}, vcc
    v_cndmask_b32 v{v.SEL1}, v{t}, 0, vcc
    v_add_u32 v{v.OHB}, v{v.OHB}, v{v.QC}
    """.replace(f"v_cndmask_b32 v{v.SEL1}, v{t}, 0, vcc", f"v_sub_u32 v{v.SEL1}, v{t}, v{v.SEL0}"))
    A(f"""
    v_lshrrev_b32 v{v.EB}, 3, v0
    v_mul_u32_u24 v{v.EB}, {CH}, v{v.EB}
    v_lshrrev_b32 v{v.QC}, 4, v0
    v_mul_u32_u24 v{v.QC}, 3072, v{v.QC}
    v_and_b32 v{t}, 4, v0
    v_lshl_add_u32 v{v.QC}, v{t}, 2, v{v.QC}
    v_and_b32 v{t}, 8, v0
    v_add_u32 v{v.QC}, v{v.QC}, v{t}
    v_and_b32 v{t}, 3, v0
    v_lshl_add_u32 v{v.QC}, v{t}, 1, v{v.QC}
    v_add_u32 v{v.QC}, {EA + 2048}, v{v.QC}
    """)
    A("K2_ROUND:")
    Z = v.eF
    A(f"""
    v_mov_b32 v{Z}, 0
    v_mov_b32 v{Z+1}, 0
    v_mov_b32 v{Z+2}, 0
    v_mov_b32 v{Z+3}, 0
    s_mul_i32 s22, s3, 3072
    s_add_u32 s22, s22, {EA + 2048}
    v_add_u32 v{v.t0}, s22, v{v.t3}
    ds_write_b128 v{v.t0}, {vr(Z,4)}
    ds_write_b128 v{v.t0}, {vr(Z,4)} offset:24576
    ds_write_b128 v{v.t0}, {vr(Z,4)} offset:49152
    s_cmp_ge_u32 s3, 2
    s_cbranch_scc1 K2_Z1
    v_add_u32 v{v.t0}, 73728, v{v.t0}
    ds_write_b128 v{v.t0}, {vr(Z,4)}
    K2_Z1:
    v_mov_b32 v{v.ohF}, 0xffff
    v_mov_b32 v{v.ohF+1}, -1
    v_mov_b32 v{v.ohF+2}, 0xffff
    v_mov_b32 v{v.ohF+3}, -1
    ds_write_b128 v{v.t2}, {vr(v.ohF,4)} offset:{REC}
    s_movk_i32 s22, {REC_BYTES // 16 - 512}
    v_cmp_gt_u32 vcc, s22, v0
    s_and_saveexec_b64 s[22:23], vcc
    ds_write_b128 v{v.t2}, {vr(v.ohF,4)} offset:{REC + 8192}
    s_mov_b64 exec, s[22:23]
    s_cmp_ge_u32 s3, 3
    s_cbranch_scc1 K2_Z2
    s_cmp_eq_u32 s3, 0
    s_cselect_b32 s22, 0, -1
    v_mov_b32 v{v.t0}, s22
    v_lshlrev_b32 v{v.t1}, 2, v0
    ds_write_b32 v{v.t1}, v{v.t0} offset:{CNT}
    K2_Z2:
    """)
    for i in range(8):
        A(f"v_mov_b32 v{v.TP+2*i+1}, v{v.IX0+1}")
    A(f"v_mov_b32 v{v.IEa+1}, v{v.IE+1}")
    A(f"v_mov_b32 v{v.IEb+1}, v{v.IE+1}")
    for r in range(4):
        A(f"v_mov_b32 v{v.MSG+r}, 0")
    A(f"v_mov_b32 v{v.S}, 0")
    A(f"v_mov_b32 v{v.S+1}, 0")
    A(f"v_mov_b32 v{v.aggF}, 1")
    A(f"""
    s_cmp_eq_u32 s{sMode}, 0
    s_cbranch_scc1 K2_FASTW
    """)
    A(f"""
    s_lshl_b32 s22, s{sRound}, 9
    v_add_u32 v{v.EB}, s22, v0
    v_lshlrev_b32 v{v.t0}, 2, v{v.EB}
    buffer_load_dword v{v.REC}, v{v.t0}, {sr(sD,4)}, 0 offen
    buffer_load_dword v{v.REC+1}, v{v.t0}, {sr(sS,4)}, 0 offen
    s_mul_i32 s22, s2, 40
    s_waitcnt vmcnt(0)
    v_subrev_u32 v{v.REC}, s22, v{v.REC}
    v_cmp_le_u32 vcc, 20, v{v.REC}
    v_add_u32 v{v.t0}, 12, v{v.REC}
    s_nop 0
    v_cndmask_b32 v{v.t0}, v{v.REC}, v{v.t0}, vcc
    v_cmp_gt_u32 vcc, 40, v{v.REC}
    v_lshl_or_b32 v{v.t0}, v{v.t0}, 14, v{v.REC+1}
    s_nop 0
    v_cndmask_b32 v{v.REC}, -1, v{v.t0}, vcc
    """)
    for j in range(1, 8):
        A(f"v_mov_b32 v{v.REC+j}, -1")
    A(f"""
    K2_FASTW:
    s_waitcnt lgkmcnt(0)
    s_barrier
    s_cmp_lg_u32 s{sQdone}, 0
    s_cbranch_scc1 K2_NOSEL
    s_cmp_lg_u32 s{sMode}, 0
    s_cbranch_scc1 K2_NOSEL
    ds_read_b128 {vr(v.SEL0,4)}, v{v.SEL0}
    ds_read_b128 {vr(v.SEL1,4)}, v{v.SEL1}
    K2_NOSEL:
    s_waitcnt vmcnt({2 + 8 + 1 + NPF + 1})
    """)
    for j in range(8):
        if j == 4:
            A(f"s_waitcnt vmcnt({2 + 8 + 1 + NPF})")
        l = A.label("cs")
        A(f"""
        v_cmp_gt_u32 {sr(sM+2*j,2)}, -2, v{v.REC+j}
        v_lshrrev_b32 v{v.AD+j}, 12, v{v.REC+j}
        v_and_b32 v{v.AD+j}, 0xfc, v{v.AD+j}
        s_mov_b64 exec, {sr(sM+2*j,2)}
        s_cbranch_execz {l}
        ds_add_rtn_u32 v{v.RANK+j}, v{v.AD+j}, v{v.aggF} offset:{CNT}
        {l}:
        s_mov_b64 exec, -1
        """)
    A(f"""
    v_cmp_eq_u32 vcc, -2, v{v.REC+3}
    v_cmp_eq_u32 s[22:23], -2, v{v.REC+7}
    s_nop 1
    s_or_b64 s[22:23], vcc, s[22:23]
    s_cbranch_scc0 K2_NOMARK
    v_mov_b32 v{v.t0}, {FLAG}
    ds_write_b32 v{v.t0}, v{v.aggF}
    K2_NOMARK:
    v_lshlrev_b32 v{v.t0}, 2, v{L}
    v_mov_b32 v{v.t1}, {FLAG}
    s_waitcnt vmcnt({8 + 1 + NPF}) lgkmcnt(0)
    s_barrier
    ds_read_b32 v{v.t0}, v{v.t0} offset:{CNT}
    ds_read_b32 v{v.t1}, v{v.t1}
    s_cmp_lg_u32 s{sQdone}, 0
    s_cbranch_scc1 K2_NOXF
    """)
    for s in range(8):
        if s: A(f"v_xor_b32 v{v.OHA}, {s*32}, v{v.XA}")
        A(f"ds_read_b128 {vr(v.XF+4*s,4)}, v{v.OHA if s else v.XA}")
    A("s_waitcnt lgkmcnt(8)")
    A("s_branch K2_XFD")
    A("K2_NOXF:")
    A("s_waitcnt lgkmcnt(0)")
    A("K2_XFD:")
    c = v.t0; pd = v.OHA
    A(f"""
    v_add_u32 v{c}, 3, v{c}
    v_and_b32 v{c}, -4, v{c}
    v_max_u32 v{c}, 4, v{c}
    v_readfirstlane_b32 s87, v{v.t1}
    v_cndmask_b32 v{pd}, 0, v{c}, {sr(sN20,2)}
    v_mov_b32 v{c}, v{pd}
    s_nop 1
    v_add_u32_dpp v{c}, v{c}, v{c} row_shr:1 row_mask:0xf bank_mask:0xf bound_ctrl:0
    s_nop 1
    v_add_u32_dpp v{c}, v{c}, v{c} row_shr:2 row_mask:0xf bank_mask:0xf bound_ctrl:0
    s_nop 1
    v_add_u32_dpp v{c}, v{c}, v{c} row_shr:4 row_mask:0xf bank_mask:0xf bound_ctrl:0
    s_nop 1
    v_add_u32_dpp v{c}, v{c}, v{c} row_shr:8 row_mask:0xf bank_mask:0xf bound_ctrl:0
    s_nop 1
    v_add_u32_dpp v{c}, v{c}, v{c} row_bcast:15 row_mask:0xa bank_mask:0xf
    s_lshl_b32 s22, s{sG}, 5
    s_add_u32 s22, s22, 8
    v_sub_u32 v{pd}, v{c}, v{pd}
    v_readlane_b32 s{sT0}, v{c}, 31
    v_readlane_b32 s{sT1}, v{c}, 63
    v_readlane_b32 s{sTsw}, v{pd}, s22
    v_add_u32 v{pd}, v{pd}, v{v.OHB}
    """)
    for j in range(8):
        A(f"ds_bpermute_b32 v{v.PK+j}, v{v.AD+j}, v{pd}")
    A(f"""
    s_add_u32 s{sT0}, s{sT0}, 31
    s_lshr_b32 s{sT0}, s{sT0}, 5
    s_add_u32 s{sT1}, s{sT1}, 31
    s_lshr_b32 s{sT1}, s{sT1}, 5
    s_add_u32 s{sTsw}, s{sTsw}, 31
    s_lshr_b32 s{sTsw}, s{sTsw}, 5
    s_max_u32 s22, s{sT0}, s{sT1}
    s_cmp_eq_u32 s{sG}, 0
    s_cselect_b32 s{sTg}, s{sT0}, s{sT1}
    s_cmp_gt_u32 s22, {TG}
    s_cbranch_scc1 K2_OVF
    s_cmp_lg_u32 s87, -1
    s_cbranch_scc1 K2_OVF
    s_add_u32 s22, s22, 2
    s_lshr_b32 s22, s22, 2
    s_add_u32 s23, s{sTg}, 2
    s_lshr_b32 s23, s23, 2
    s_sub_u32 s{sNB}, s22, s23
    v_add_u32 v{v.t1}, {64 * CH}, v{v.EB}
    """)
    W0 = v.aggF + 2
    A("s_waitcnt lgkmcnt(0)")
    for j in range(8):
        l = A.label("ss")
        A(f"""
        s_mov_b64 exec, {sr(sM+2*j,2)}
        s_cbranch_execz {l}
        v_add_u32_sdwa v{v.RANK+j}, v{v.PK+j}, v{v.RANK+j} dst_sel:DWORD dst_unused:UNUSED_PAD src0_sel:WORD_0 src1_sel:DWORD
        v_lshrrev_b32 v{W0+1}, 20, v{v.REC+j}
        v_bfi_b32 v{W0}, s{sK3F}, v{v.REC+j}, v{v.PK+j}
        v_add_u32 v{W0+1}, v{W0+1}, v{v.EB if j < 4 else v.t1}
        v_lshlrev_b32 v{v.PK+j}, 3, v{v.RANK+j}
        v_lshrrev_b32 v{v.RANK+j}, 2, v{v.RANK+j}
        ds_write_b64 v{v.PK+j}, {P(W0)} offset:{REC}
        ds_write_b8 v{v.RANK+j}, v{v.AD+j} offset:{QN}
        {l}:
        """)
    A(f"""
    s_mov_b64 exec, -1
    s_waitcnt lgkmcnt(0)
    s_barrier
    """)
    A("K2_START:")
    for i in range(4):
        A(f"ds_read_u16 v{v.TP+4*i}, v{v.R1} offset:{i*256}")
        A(f"ds_read_u16 v{v.TP+4*i+2}, v{v.R1} offset:{i*256+64}")
        if i == 0: A(f"ds_read_b32 v{v.IEa}, v{v.Re}")
        if i == 1: A(f"ds_read_b32 v{v.IEb}, v{v.Re} offset:1024")
    A(f"""
    ds_read_u8 v{v.t0}, v0 offset:{QN}
    ds_read_u8 v{v.OH0}, v{v.R2}
    ds_read_u8 v{v.OHA}, v{v.R2} offset:256
    ds_read_u16 v{v.IX0}, v{v.R1} offset:1024
    ds_read_u16 v{v.IX1}, v{v.R1} offset:{1024+64}
    ds_read_b32 v{v.IE}, v{v.Re} offset:2048
    s_lshr_b32 s22, s{sC}, 1
    s_mul_i32 s22, s22, 3072
    s_and_b32 s23, s{sC}, 1
    s_lshl_b32 s23, s23, 10
    s_add_u32 s22, s22, s23
    s_mul_i32 s{sElim}, s{sG}, {GEA}
    s_add_u32 s{sElim}, s{sElim}, {EA}
    s_add_u32 s{sEdst}, s{sElim}, s22
    s_add_u32 s{sElim}, s{sElim}, {GEA}
    s_mov_b32 s{sTile}, 0
    s_mov_b32 m0, s{sRing}
    s_waitcnt lgkmcnt(13)
    buffer_load_dwordx4 {P(v.TP)}, {sr(sP,4)}, 0 idxen offen lds
    s_add_u32 m0, s{sRing}, 1024
    s_nop 0
    buffer_load_dwordx4 {P(v.TP+2)}, {sr(sP,4)}, 0 idxen offen lds
    s_cmp_lg_u32 s{sNoBar}, 0
    s_cbranch_scc1 K2_NOE0
    s_mov_b32 m0, s{sEdst}
    s_nop 0
    buffer_load_dwordx4 {P(v.IEa)}, {sr(sE,4)}, 0 idxen offen lds
    K2_NOE0:
    s_add_u32 m0, s{sRing}, 2048
    s_waitcnt lgkmcnt(10)
    buffer_load_dwordx4 {P(v.TP+4)}, {sr(sP,4)}, 0 idxen offen lds
    s_add_u32 m0, s{sRing}, 3072
    s_nop 0
    buffer_load_dwordx4 {P(v.TP+6)}, {sr(sP,4)}, 0 idxen offen lds
    s_cmp_lg_u32 s{sNoBar}, 0
    s_cbranch_scc1 K2_NOE1
    s_add_u32 m0, s{sEdst}, 6144
    s_nop 0
    buffer_load_dwordx4 {P(v.IEb)}, {sr(sE,4)}, 0 idxen offen lds
    K2_NOE1:
    s_add_u32 s{sEdst}, s{sEdst}, 12288
    s_add_u32 m0, s{sRing}, 4096
    s_waitcnt lgkmcnt(6)
    buffer_load_dwordx4 {P(v.TP+8)}, {sr(sP,4)}, 0 idxen offen lds
    s_add_u32 m0, s{sRing}, 5120
    s_nop 0
    buffer_load_dwordx4 {P(v.TP+10)}, {sr(sP,4)}, 0 idxen offen lds
    s_add_u32 m0, s{sRing}, 6144
    s_nop 0
    buffer_load_dwordx4 {P(v.TP+12)}, {sr(sP,4)}, 0 idxen offen lds
    s_add_u32 m0, s{sRing}, 7168
    s_nop 0
    buffer_load_dwordx4 {P(v.TP+14)}, {sr(sP,4)}, 0 idxen offen lds
    s_cmp_lg_u32 s{sNoBar}, 0
    s_cbranch_scc1 K2_REDO2
    """)
    A(f"""
    s_waitcnt lgkmcnt(0)
    v_cmp_ne_u32 vcc, 0xff, v{v.t0}
    v_and_b32 v{v.t1}, 0x7c, v{v.t0}
    v_lshl_add_u32 v{v.t1}, v{v.t1}, 3, v{v.QC}
    v_lshrrev_b32 v{v.t0}, 1, v{v.t0}
    v_and_b32 v{v.t0}, 16, v{v.t0}
    v_xor_b32 v{v.t1}, v{v.t1}, v{v.t0}
    v_mov_b32 v{v.t0}, 0x3f80
    s_and_saveexec_b64 s[22:23], vcc
    ds_write_b16 v{v.t1}, v{v.t0}
    s_mov_b64 exec, s[22:23]
    s_cmp_lg_u32 s{sQdone}, 0
    s_cbranch_scc1 K2_QD
    s_waitcnt vmcnt({NPF + 10})
    """)
    for s in range(8):
        A(mfma(v.E, v.XF + 4*s, v.W2F + 4*s, "0" if s == 0 else None))
    A(f"s_mov_b32 s22, {NEG_LOG2E:#x}")
    A(f"s_mov_b32 s{sQdone}, 1")
    A("s_nop 10")
    for r in range(12):
        A(f"v_mul_f32 v{v.E+r}, s22, v{v.E+r}")
    A(f"""
    v_cvt_pk_bf16_f32 v{v.QS}, v{v.E}, v{v.E+1}
    v_cvt_pk_bf16_f32 v{v.QS+1}, v{v.E+2}, v{v.E+3}
    v_cvt_pk_bf16_f32 v{v.QF+2}, v{v.E+4}, v{v.E+5}
    v_cvt_pk_bf16_f32 v{v.QF+3}, v{v.E+6}, v{v.E+7}
    v_cvt_pk_bf16_f32 v{v.QS+2}, v{v.E+8}, v{v.E+9}
    v_cvt_pk_bf16_f32 v{v.QS+3}, v{v.E+10}, v{v.E+11}
    s_cmp_eq_u32 s{sMode}, 0
    s_cbranch_scc1 K2_QD
    """)
    for i in range(16):
        wu_load(A, i)
    A("s_waitcnt vmcnt(0)")
    A(f"""
    K2_QD:
    s_waitcnt vmcnt(7) lgkmcnt(0)
    s_barrier
    K2_REDO2:
    s_waitcnt vmcnt(6) lgkmcnt(0)
    """.replace("s_waitcnt vmcnt(6) lgkmcnt(0)\n", f"s_cmp_eq_u32 s{sNoBar}, 0\ns_cbranch_scc1 K2_GO\ns_waitcnt vmcnt(0) lgkmcnt(0)\nK2_GO:\n"))
    A(f"""
    ds_read_b128 {vr(v.ohF,4)}, v{v.OH0}
    ds_read_b128 {vr(v.eF,4)}, v{v.E_} offset:3072
    ds_read_b128 {vr(v.pF0,4)}, v{v.P0}
    ds_read_b128 {vr(v.pF1,4)}, v{v.P1}
    v_mov_b32 v{v.QF}, v{v.QS}
    v_mov_b32 v{v.QF+1}, v{v.QS+1}
    s_waitcnt lgkmcnt(2)
    {mfma(v.T0, v.eF, v.W3F, "0")}
    {mfma(v.T0, v.ohF, v.QF)}
    s_waitcnt lgkmcnt(0)
    {mfma(v.T0, v.pF0, v.SEL0)}
    {mfma(v.T0, v.pF1, v.SEL1)}
    s_or_b32 s22, s{sMode}, s{sNoBar}
    s_cmp_lg_u32 s22, 0
    s_cbranch_scc1 K2_SAFE
    """)
    for k in range(4):
        block(A, k, "peel", "K2_EXIT")
        stretch(A, k, "peel")
    A(".p2align 6") if False else None
    A("K2_LOOP:")
    for k in range(4):
        block(A, k, "fast", "K2_EXIT")
        stretch(A, k, "fast")
    A("s_branch K2_LOOP")
    A("K2_SAFE:")
    for k in range(4):
        block(A, k, "safe", "K2_EXIT")
        stretch(A, k, "safe")
    A("s_branch K2_SAFE")
    A(f"""
    K2_OVF:
    s_mov_b32 s{sMode}, 1
    s_waitcnt vmcnt(0) lgkmcnt(0)
    s_barrier
    s_branch K2_ROUND
    """)
    A(f"""
    K2_EXIT:
    s_sub_u32 s22, s{sTg}, 1
    s_lshr_b32 s23, s22, 2
    s_lshr_b32 s22, s22, 1
    s_and_b32 s22, s22, 1
    s_mul_i32 s22, s22, 3072
    s_add_u32 s22, s22, {3072 + 2048}
    s_and_b32 s87, s{sTg}, 3
    s_cmp_eq_u32 s87, 0
    s_cselect_b32 s87, 6144, 0
    s_sub_u32 s22, s22, s87
    v_add_u32 v{v.t0}, s22, v{v.E_}
    ds_read_b128 {vr(v.aggF,4)}, v{v.t0}
    s_lshr_b32 s23, s{sTg}, 2
    s_mul_i32 s22, s23, 6144
    s_lshl_b32 s23, s23, 10
    v_subrev_u32 v{v.E_}, s22, v{v.E_}
    v_subrev_u32 v{v.R1}, s23, v{v.R1}
    v_subrev_u32 v{v.R2}, s23, v{v.R2}
    v_subrev_u32 v{v.Re}, s23, v{v.Re}
    s_waitcnt lgkmcnt(0)
    {mfma(v.ACC, v.MSG, v.aggF)}
    K2_NBL:
    s_cmp_eq_u32 s{sNB}, 0
    s_cbranch_scc1 K2_NBD
    s_barrier
    s_sub_u32 s{sNB}, s{sNB}, 1
    s_branch K2_NBL
    K2_NBD:
    s_waitcnt vmcnt(0)
    s_cmp_eq_u32 s{sMode}, 0
    s_cbranch_scc1 K2_CHK
    s_add_u32 s{sRound}, s{sRound}, 1
    s_cmp_ge_u32 s{sRound}, {E // 512}
    s_cbranch_scc1 K2_FIN
    s_barrier
    s_branch K2_ROUND
    K2_CHK:
    s_cmp_lg_u32 s{sNoBar}, 0
    s_cbranch_scc1 K2_FIN
    s_nop 7
    v_max_f32 v{v.t0}, v{v.S}, v{v.S+1}
    v_mov_b32 v{v.S}, 0
    v_mov_b32 v{v.S+1}, 0
    v_mov_b32 v{v.E}, 0
    v_mov_b32 v{v.E+1}, 0
    """)
    for r in range(0, 16, 2):
        A(f"v_pk_fma_f32 {P(v.S)}, {P(v.ACC+r)}, {P(v.E)}, {P(v.S)}")
    A(f"""
    s_mov_b32 s22, {f2u(2.0**60):#x}
    v_add_f32 v{v.t0}, v{v.t0}, v{v.S}
    v_add_f32 v{v.t0}, v{v.t0}, v{v.S+1}
    v_cmp_nge_f32 vcc, s22, v{v.t0}
    s_cbranch_vccz K2_FIN
    s_mov_b32 s{sNoBar}, 1
    """)
    for r in range(16):
        A(f"v_mov_b32 v{v.ACC+r}, 0")
    for i in range(8):
        A(f"v_mov_b32 v{v.TP+2*i+1}, v{v.IX0+1}")
    for r in range(4):
        A(f"v_mov_b32 v{v.MSG+r}, 0")
    A("s_branch K2_START")
    F = v.T0
    A("K2_FIN:")
    A(f"s_mov_b32 s22, {NEG_LN2:#x}")
    A(f"v_add_u32 v{v.t0}, s{sRing}, v{v.t3}")
    A("s_nop 4")
    ri = 0
    for s in range(8):
        A(mfma(F, v.WU + 4*s, v.XF + 4*s, "0" if s == 0 else None))
        for q in range(2):
            A(f"v_mul_f32 v{v.ACC+ri}, s22, v{v.ACC+ri}"); ri += 1
        A(f"v_cvt_pk_bf16_f32 v{v.E+s}, v{v.ACC+2*s}, v{v.ACC+2*s+1}")
        if s == 3: A(f"ds_write_b128 v{v.t0}, {vr(v.E,4)}")
    A(f"""
    ds_write_b128 v{v.t0}, {vr(v.E+4,4)} offset:1024
    s_lshl_b32 s22, s{sG}, 15
    s_add_u32 s22, s22, {RING}
    v_add_u32 v{v.t0}, s22, v{v.t3}
    s_mul_i32 s22, s2, 40
    s_mul_i32 s23, s{sG}, 20
    s_add_u32 s22, s22, s23
    s_lshl_b32 s22, s22, 8
    s_lshl_b32 s23, s{sC}, 6
    s_add_u32 s22, s22, s23
    v_and_b32 v{v.t1}, 31, v{L}
    v_lshlrev_b32 v{v.t1}, 8, v{v.t1}
    v_lshrrev_b32 v{v.t2}, 5, v{L}
    v_lshl_add_u32 v{v.t1}, v{v.t2}, 4, v{v.t1}
    v_add_u32 v{v.t1}, s22, v{v.t1}
    v_bfrev_b32 v{v.t2}, 1
    v_cndmask_b32 v{v.t1}, v{v.t2}, v{v.t1}, {sr(sN20,2)}
    s_waitcnt lgkmcnt(0)
    s_barrier
    """)
    for s in range(8):
        A(f"ds_read_b128 {vr(v.XF+4*s,4)}, v{v.t0} offset:{(s >> 1) * 8192 + (s & 1) * 1024}")
    for s in range(8):
        A(f"s_waitcnt lgkmcnt({7-s})")
        A(mfma(F, v.WU + 32 + 4*s, v.XF + 4*s))
    A(f"s_mov_b32 s22, {NEG_LOG2E:#x}")
    A("s_nop 10")
    for r in range(16):
        A(f"v_mul_f32 v{v.E+r}, s22, v{F+r}")
    for r in range(16):
        A(f"v_exp_f32 v{v.E+r}, v{v.E+r}")
    for r in range(0, 16, 2):
        A(f"v_pk_add_f32 {P(v.E+r)}, {P(v.E+r)}, {P(v.ONE)}")
    for r in range(16):
        A(f"v_rcp_f32 v{v.E+r}, v{v.E+r}")
    for r in range(0, 16, 2):
        A(f"v_pk_mul_f32 {P(F+r)}, {P(F+r)}, {P(v.E+r)}")
    O = v.T1
    for r in range(8):
        A(f"v_cvt_pk_bf16_f32 v{O+r}, v{F+2*r}, v{F+2*r+1}")
    A(f"""
    s_nop 1
    v_permlane32_swap_b32 v{O}, v{O+2}
    v_permlane32_swap_b32 v{O+1}, v{O+3}
    v_permlane32_swap_b32 v{O+4}, v{O+6}
    v_permlane32_swap_b32 v{O+5}, v{O+7}
    buffer_store_dwordx4 {vr(O,4)}, v{v.t1}, {sr(sOUT,4)}, 0 offen
    buffer_store_dwordx4 {vr(O+4,4)}, v{v.t1}, {sr(sOUT,4)}, 0 offen offset:32
    K2_END:
    s_endpgm
    """)
    return NV
```

```python
import sys, struct

def f2u(x):
    return struct.unpack("<I", struct.pack("<f", x))[0]

LOG2E = 1.4426950408889634
LN2 = 0.6931471805599453
NEG_LOG2E = f2u(-LOG2E)
NEG_LN2 = f2u(-LN2)

N = 10000; E = 320000
NCHUNK = 128; CH = 2500
NBIN = 250
WS_P = 0
WS_CELL = 0x280000
CELL_BYTES = NBIN * NCHUNK * 128
WS_W = 0x680000
WS_END = WS_W + 3 * 32768 + 4096
NGEMM = 157
K1_GRID = NCHUNK + NGEMM + 4
K1_LDS = 49152

class Asm:
    def __init__(self):
        self.L = []
        self.uid = 0
    def __call__(self, s):
        for l in s.strip("\n").split("\n"):
            self.L.append("  " + l.strip() if not l.strip().endswith(":") else l.strip())
    def label(self, base):
        self.uid += 1
        return f"L_{base}_{self.uid}"
    def text(self):
        return "\n".join(self.L) + "\n"

def vr(a, n):
    return f"v[{a}:{a+n-1}]"
def sr(a, n):
    return f"s[{a}:{a+n-1}]"

def srd(A, d, base, nrec, add=None, stride=0):
    if add is None:
        A(f"s_mov_b32 s{d}, s{base}")
        if stride:
            A(f"s_or_b32 s{d+1}, s{base+1}, {stride << 16:#x}")
        else:
            A(f"s_mov_b32 s{d+1}, s{base+1}")
    else:
        A(f"s_add_u32 s{d}, s{base}, {add}")
        A(f"s_addc_u32 s{d+1}, s{base+1}, 0")
        if stride:
            A(f"s_or_b32 s{d+1}, s{d+1}, {stride << 16:#x}")
    A(f"s_mov_b32 s{d+2}, {nrec}")
    A(f"s_mov_b32 s{d+3}, 0x00020000")

PX, PE, PSRC, PDST, PWM, PWU, POUT, PDBG, PWS = 4, 6, 8, 10, 12, 14, 16, 18, 20

def load_ptrs(A):
    A("s_load_dwordx16 s[4:19], s[0:1], 0")
    A("s_load_dwordx2 s[20:21], s[0:1], 64")

def gen_k1(A, opt):
    A("prep_kernel:")
    A(f"s_cmp_ge_u32 s2, {K1_GRID}")
    A("s_cbranch_scc1 K1_END")
    load_ptrs(A)
    A(f"s_cmp_ge_u32 s2, {NCHUNK}")
    A("s_cbranch_scc1 K1_GEMM")
    D, S, RK, AD = 8, 16, 24, 32
    A(f"""
    v_lshlrev_b32 v1, 4, v0
    v_lshlrev_b32 v2, 2, v0
    v_mov_b32 v40, -1
    v_mov_b32 v41, -1
    v_mov_b32 v42, -1
    v_mov_b32 v43, -1
    v_mov_b32 v44, 0
    v_mov_b32 v45, 1
    s_mul_i32 s22, s2, {CH*4}
    s_movk_i32 s23, 0x2000
    s_waitcnt lgkmcnt(0)
    """)
    srd(A, 24, PDST, CH * 4, add="s22")
    srd(A, 28, PSRC, CH * 4, add="s22")
    A(f"""
    buffer_load_dwordx4 {vr(D,4)}, v1, s[24:27], 0 offen
    buffer_load_dword v{D+4}, v2, s[24:27], s23 offen
    buffer_load_dwordx4 {vr(S,4)}, v1, s[28:31], 0 offen
    buffer_load_dword v{S+4}, v2, s[28:31], s23 offen
    ds_write_b128 v1, v[40:43]
    ds_write_b128 v1, v[40:43] offset:8192
    ds_write_b128 v1, v[40:43] offset:16384
    ds_write_b128 v1, v[40:43] offset:24576
    ds_write_b32 v2, v44 offset:32768
    v_lshlrev_b32 v3, 22, v0
    v_add_u32 v4, 0x800, v0
    v_lshlrev_b32 v4, 20, v4
    s_mov_b32 s32, -20
    s_mov_b32 s33, 0x100000
    s_mov_b32 s34, 0x200000
    s_mov_b32 s35, 0x300000
    v_cmp_gt_u32 s[36:37], {CH-2048}, v0
    """.replace(f"v_cmp_gt_u32 s[36:37], {CH-2048}, v0", f"s_movk_i32 s38, {CH-2048}\nv_cmp_gt_u32 s[36:37], s38, v0"))
    srd(A, 40, PWS, CELL_BYTES, add=WS_CELL)
    A("""
    s_waitcnt lgkmcnt(0)
    s_barrier
    """)
    for j in range(5):
        if j == 0: A("s_waitcnt vmcnt(3)")
        if j == 4:
            A("s_waitcnt vmcnt(2)")
            A("s_mov_b64 exec, s[36:37]")
        d = D + j
        A(f"""
        v_mul_u32_u24 v46, 0xcccd, v{d}
        v_lshrrev_b32 v46, 20, v46
        v_mad_i32_i24 v{d}, v46, s32, v{d}
        v_and_b32 v{AD+j}, -2, v46
        v_lshlrev_b32 v{AD+j}, 1, v{AD+j}
        ds_add_rtn_u32 v{RK+j}, v{AD+j}, v45 offset:32768
        v_and_b32 v46, 1, v46
        v_lshl_add_u32 v{d}, v46, 5, v{d}
        """)
    A("s_mov_b64 exec, -1")
    A("s_waitcnt vmcnt(0)")
    for j in range(5):
        d = D + j
        A(f"v_lshl_or_b32 v{d}, v{d}, 14, v{S+j}")
        if j == 0: A(f"v_add_u32 v{d}, v{d}, v3")
        elif j < 4: A(f"v_add3_u32 v{d}, v{d}, v3, s{32+j}")
        else: A(f"v_add_u32 v{d}, v{d}, v4")
    A("v_mov_b32 v47, -2")
    for j in range(5):
        A(f"s_waitcnt lgkmcnt({4-j})") if False else None
    A("s_waitcnt lgkmcnt(0)")
    for j in range(5):
        d = D + j; r = RK + j
        if j == 4: A("s_mov_b64 exec, s[36:37]")
        A(f"""
        v_cmp_le_u32 vcc, 31, v{r}
        v_min_u32 v{r}, 31, v{r}
        v_and_b32 v46, 7, v{r}
        v_cndmask_b32 v{d}, v{d}, v47, vcc
        v_lshl_add_u32 v46, v{AD+j}, 1, v46
        v_lshrrev_b32 v{r}, 3, v{r}
        v_lshl_add_u32 v46, v46, 2, v{r}
        v_lshlrev_b32 v46, 2, v46
        ds_write_b32 v46, v{d}
        """)
    A(f"""
    s_mov_b64 exec, -1
    v_lshrrev_b32 v5, 3, v0
    v_lshlrev_b32 v5, 14, v5
    v_and_b32 v6, 7, v0
    v_lshl_add_u32 v5, v6, 4, v5
    s_lshl_b32 s22, s2, 7
    v_add_u32 v5, s22, v5
    s_waitcnt lgkmcnt(0)
    s_barrier
    ds_read_b128 v[8:11], v1
    ds_read_b128 v[12:15], v1 offset:8192
    ds_read_b128 v[16:19], v1 offset:16384
    ds_read_b128 v[20:23], v1 offset:24576
    s_waitcnt lgkmcnt(3)
    buffer_store_dwordx4 v[8:11], v5, s[40:43], 0 offen {opt['k1st']}
    s_waitcnt lgkmcnt(2)
    buffer_store_dwordx4 v[12:15], v5, s[40:43], s33 offen {opt['k1st']}
    s_waitcnt lgkmcnt(1)
    buffer_store_dwordx4 v[16:19], v5, s[40:43], s34 offen {opt['k1st']}
    s_waitcnt lgkmcnt(0)
    buffer_store_dwordx4 v[20:23], v5, s[40:43], s35 offen {opt['k1st']}
    s_endpgm
    """)
    A("K1_GEMM:")
    A(f"""
    v_lshrrev_b32 v2, 6, v0
    v_and_b32 v1, 63, v0
    v_readfirstlane_b32 s3, v2
    v_lshrrev_b32 v3, 4, v1
    v_lshrrev_b32 v4, 2, v1
    v_xor_b32 v4, v4, v3
    v_and_b32 v4, 3, v4
    v_lshlrev_b32 v4, 6, v4
    v_and_b32 v5, 3, v1
    v_lshl_add_u32 v4, v5, 4, v4
    v_lshl_add_u32 v4, v3, 8, v4
    v_lshl_add_u32 v4, v2, 12, v4
    s_sub_u32 s22, s2, {NCHUNK + NGEMM}
    s_waitcnt lgkmcnt(0)
    """)
    A(f"""
    s_mov_b32 s24, s{PWM}
    s_mov_b32 s25, s{PWM+1}
    s_mov_b32 s26, 32768
    s_mov_b32 s27, 0x00020000
    s_mov_b32 s23, 0
    s_cmp_lt_u32 s2, {NCHUNK + NGEMM}
    s_cbranch_scc1 K1_WSEL
    s_mov_b32 s23, 32768
    s_cmp_eq_u32 s22, 0
    s_cbranch_scc1 K1_WSEL
    s_mov_b32 s23, 65536
    s_mov_b32 s26, 4096
    s_cmp_eq_u32 s22, 3
    s_cbranch_scc1 K1_WSEL
    s_mov_b32 s26, 32768
    s_mov_b32 s24, s{PWU}
    s_mov_b32 s25, s{PWU+1}
    s_sub_u32 s23, s22, 1
    s_lshl_b32 s23, s23, 15
    K1_WSEL:
    s_add_u32 s24, s24, s23
    s_addc_u32 s25, s25, 0
    s_lshl_b32 m0, s3, 12
    s_nop 0
    buffer_load_dwordx4 v4, s[24:27], 0 offen lds
    buffer_load_dwordx4 v4, s[24:27], 0 offen offset:1024 lds
    buffer_load_dwordx4 v4, s[24:27], 0 offen offset:2048 lds
    buffer_load_dwordx4 v4, s[24:27], 0 offen offset:3072 lds
    """)
    A(f"""
    s_and_b32 s28, s3, 3
    v_bfe_u32 v6, v1, 2, 2
    v_xor_b32 v7, s28, v6
    v_lshlrev_b32 v7, 6, v7
    v_lshl_add_u32 v7, v6, 8, v7
    v_and_b32 v6, 1, v3
    v_lshl_add_u32 v7, v6, 5, v7
    v_lshl_add_u32 v7, v5, 3, v7
    v_lshrrev_b32 v8, 5, v1
    s_cmp_ge_u32 s2, {NCHUNK + NGEMM}
    s_cbranch_scc1 K1_TRANS
    """)
    A(f"""
    s_sub_u32 s29, s2, {NCHUNK}
    s_lshl_b32 s30, s29, 14
    s_sub_u32 s31, {N*256}, s30
    """)
    srd(A, 32, PX, "s31", add="s30")
    srd(A, 36, PWS, "s31", add="s30")
    A(f"""
    v_lshl_add_u32 v9, v2, 3, v3
    v_and_b32 v10, 15, v1
    v_xor_b32 v11, v9, v10
    v_and_b32 v11, 15, v11
    v_lshlrev_b32 v11, 4, v11
    v_lshl_add_u32 v11, v9, 8, v11
    v_xor_b32 v12, 64, v11
    s_lshl_b32 s30, s3, 11
    s_add_u32 m0, s30, 32768
    s_nop 0
    buffer_load_dwordx4 v11, s[32:35], 0 offen lds
    buffer_load_dwordx4 v12, s[32:35], 0 offen offset:1024 lds
    v_lshl_add_u32 v7, v8, 11, v7
    """)
    A(f"""
    v_and_b32 v9, 31, v1
    s_lshr_b32 s30, s3, 2
    s_lshl_b32 s30, s30, 5
    v_add_u32 v9, s30, v9
    v_xor_b32 v13, v8, v10
    v_lshlrev_b32 v13, 4, v13
    v_lshl_add_u32 v13, v9, 8, v13
    v_lshlrev_b32 v14, 8, v9
    s_lshl_b32 s30, s28, 6
    v_lshl_add_u32 v14, v8, 5, v14
    v_add_u32 v14, s30, v14
    s_mov_b32 s30, {NEG_LOG2E:#x}
    s_waitcnt vmcnt(0)
    s_barrier
    """)
    WF, XF, ACC = 16, 48, 80
    for s in range(8):
        A(f"ds_read_b64_tr_b16 {vr(WF+4*s,2)}, v7 offset:{s*4096}")
        A(f"ds_read_b64_tr_b16 {vr(WF+4*s+2,2)}, v7 offset:{s*4096+1024}")
        if s: A(f"v_xor_b32 v15, {s*32}, v13")
        A(f"ds_read_b128 {vr(XF+4*s,4)}, v{15 if s else 13} offset:32768")
    for s in range(8):
        A(f"s_waitcnt lgkmcnt({min(15, 3*(7-s))})")
        A(f"v_mfma_f32_32x32x16_bf16 {vr(ACC,16)}, {vr(WF+4*s,4)}, {vr(XF+4*s,4)}, {'0' if s == 0 else vr(ACC,16)}")
    A("s_nop 15")
    for r in range(16):
        A(f"v_mul_f32 v{ACC+r}, s30, v{ACC+r}")
    for r in range(8):
        A(f"v_cvt_pk_bf16_f32 v{WF+r}, v{ACC+2*r}, v{ACC+2*r+1}")
    A(f"""
    buffer_store_dwordx4 {vr(WF,4)}, v14, s[36:39], 0 offen {opt['k1st']}
    buffer_store_dwordx4 {vr(WF+4,4)}, v14, s[36:39], 0 offen offset:16 {opt['k1st']}
    s_endpgm
    """)
    A("K1_TRANS:")
    srd(A, 36, PWS, 3 * 32768 + 4096, add=WS_W)
    A(f"""
    v_lshlrev_b32 v14, 4, v1
    s_lshl_b32 s30, s22, 15
    s_waitcnt vmcnt(0)
    s_barrier
    s_cmp_ge_u32 s3, 4
    s_cbranch_scc1 K1_END
    s_cmp_eq_u32 s22, 2
    s_cbranch_scc1 K1_TPERM
    v_lshl_add_u32 v7, v8, 11, v7
    """)
    for s in range(8):
        A(f"ds_read_b64_tr_b16 {vr(WF+4*s,2)}, v7 offset:{s*4096}")
        A(f"ds_read_b64_tr_b16 {vr(WF+4*s+2,2)}, v7 offset:{s*4096+1024}")
    A("s_cmp_eq_u32 s22, 3")
    A("s_cbranch_scc1 K1_W3")
    A("s_branch K1_TST")
    A("K1_TPERM:")
    A("v_lshl_add_u32 v7, v8, 10, v7")
    for s in range(8):
        A(f"ds_read_b64_tr_b16 {vr(WF+4*s,2)}, v7 offset:{s*4096}")
        A(f"ds_read_b64_tr_b16 {vr(WF+4*s+2,2)}, v7 offset:{s*4096+2048}")
    A("K1_TST:")
    A("s_lshl_b32 s31, s28, 13")
    A("s_add_u32 s30, s30, s31")
    A("s_waitcnt lgkmcnt(0)")
    for s in range(8):
        if s == 4:
            A("s_add_u32 s30, s30, 4096")
        A(f"buffer_store_dwordx4 {vr(WF+4*s,4)}, v14, s[36:39], s30 offen offset:{(s%4)*1024}")
    A("s_endpgm")
    A("K1_W3:")
    A(f"s_mov_b32 s29, {NEG_LOG2E:#x}")
    A("s_lshl_b32 s31, s28, 10")
    A("s_add_u32 s30, s30, s31")
    A("s_waitcnt lgkmcnt(0)")
    for r in range(4):
        A(f"""
        v_lshlrev_b32 v40, 16, v{WF+r}
        v_and_b32 v41, 0xffff0000, v{WF+r}
        v_mul_f32 v40, s29, v40
        v_mul_f32 v41, s29, v41
        v_cvt_pk_bf16_f32 v{WF+r}, v40, v41
        """)
    A(f"buffer_store_dwordx4 {vr(WF,4)}, v14, s[36:39], s30 offen")
    A("K1_END:")
    A("s_endpgm")

def kd(name, nv, ns=96):
    acc = (nv + 3) // 4 * 4
    return f""".p2align 6
.amdhsa_kernel {name}
  .amdhsa_next_free_vgpr {nv}
  .amdhsa_next_free_sgpr {ns}
  .amdhsa_accum_offset {acc}
  .amdhsa_group_segment_fixed_size 0
  .amdhsa_kernarg_size 72
  .amdhsa_user_sgpr_count 2
  .amdhsa_user_sgpr_kernarg_segment_ptr 1
  .amdhsa_system_sgpr_workgroup_id_x 1
.end_amdhsa_kernel
"""

HEADER = """; Kernarg layout for this problem (72 bytes, ptrs only, base s[0:1]):
"""

def build(opt, k2=None):
    out = HEADER
    out += f"; @launch kernel=prep_kernel grid=({K1_GRID},1,1) block=(512,1,1) lds={K1_LDS}\n"
    if k2:
        out += f"; @launch kernel=edge_kernel grid=({NBIN},1,1) block=(512,1,1) lds={k2.LDS_TOTAL}\n"
    out += '.amdgcn_target "amdgcn-amd-amdhsa--gfx950"\n.text\n'
    A = Asm()
    gen_k1(A, opt)
    out += ".globl prep_kernel\n.p2align 8\n.type prep_kernel,@function\n" + A.text()
    if k2:
        B = Asm()
        nv2 = k2.gen_k2(B, opt)
        out += ".globl edge_kernel\n.p2align 8\n.type edge_kernel,@function\n" + B.text()
    out += '.section .rodata,"a"\n' + kd("prep_kernel", 96)
    if k2:
        out += kd("edge_kernel", nv2)
    return out

if __name__ == "__main__":
    opt = {"k1st": ""}
    try:
        import k2
    except ImportError:
        k2 = None
    s = build(opt, k2)
    path = sys.argv[1] if len(sys.argv) > 1 else "standalone__mpnn_edge_mlp__graph.s"
    open(path, "w").write(s)
```

```python
import sys, struct

def f2u(x):
    return struct.unpack("<I", struct.pack("<f", x))[0]

LOG2E = 1.4426950408889634
LN2 = 0.6931471805599453
NEG_LOG2E = f2u(-LOG2E)
NEG_LN2 = f2u(-LN2)

N = 10000; E = 320000
NCHUNK = 128; CH = 2500
NBIN = 250
WS_P = 0
WS_CELL = 0x280000
CELL_BYTES = NBIN * NCHUNK * 128
WS_W = 0x680000
WS_END = WS_W + 3 * 32768 + 4096
NGEMM = 157
K1_GRID = NCHUNK + NGEMM + 4
K1_LDS = 49152

class Asm:
    def __init__(self):
        self.L = []
        self.uid = 0
    def __call__(self, s):
        for l in s.strip("\n").split("\n"):
            self.L.append("  " + l.strip() if not l.strip().endswith(":") else l.strip())
    def label(self, base):
        self.uid += 1
        return f"L_{base}_{self.uid}"
    def text(self):
        return "\n".join(self.L) + "\n"

def vr(a, n):
    return f"v[{a}:{a+n-1}]"
def sr(a, n):
    return f"s[{a}:{a+n-1}]"

def srd(A, d, base, nrec, add=None, stride=0):
    if add is None:
        A(f"s_mov_b32 s{d}, s{base}")
        if stride:
            A(f"s_or_b32 s{d+1}, s{base+1}, {stride << 16:#x}")
        else:
            A(f"s_mov_b32 s{d+1}, s{base+1}")
    else:
        A(f"s_add_u32 s{d}, s{base}, {add}")
        A(f"s_addc_u32 s{d+1}, s{base+1}, 0")
        if stride:
            A(f"s_or_b32 s{d+1}, s{d+1}, {stride << 16:#x}")
    A(f"s_mov_b32 s{d+2}, {nrec}")
    A(f"s_mov_b32 s{d+3}, 0x00020000")

PX, PE, PSRC, PDST, PWM, PWU, POUT, PDBG, PWS = 4, 6, 8, 10, 12, 14, 16, 18, 20

def load_ptrs(A):
    A("s_load_dwordx16 s[4:19], s[0:1], 0")
    A("s_load_dwordx2 s[20:21], s[0:1], 64")

def gen_k1(A, opt):
    A("prep_kernel:")
    ST = opt.get("stamp", 0)
    if ST:
        A("s_memrealtime s[92:93]")
        A("s_memtime s[90:91]")
    def endp():
        if ST:
            A("s_waitcnt vmcnt(0)")
            A("s_memrealtime s[98:99]")
            A("s_memtime s[96:97]")
            srd(A, 80, PWS, 0x1000000)
            A("""
            v_lshrrev_b32 v2, 6, v0
            s_nop 1
            v_readfirstlane_b32 s3, v2
            s_lshl_b32 s22, s2, 3
            s_add_u32 s22, s22, s3
            s_lshl_b32 s22, s22, 6
            s_add_u32 s22, s22, 0x900000
            v_mov_b32 v1, 0
            s_waitcnt lgkmcnt(0)
            """)
            for i, r in enumerate([90, 96, 92, 98, 86, 88]):
                A(f"v_mov_b32 v2, s{r}")
                A(f"buffer_store_dword v2, v1, s[80:83], s22 offen offset:{4*i}")
        A("s_endpgm")
    A(f"s_cmp_ge_u32 s2, {K1_GRID}")
    A("s_cbranch_scc1 K1_END")
    load_ptrs(A)
    A(f"s_cmp_ge_u32 s2, {NCHUNK}")
    A("s_cbranch_scc1 K1_GEMM")
    D, S, RK, AD = 8, 16, 24, 32
    A(f"""
    v_lshlrev_b32 v1, 4, v0
    v_lshlrev_b32 v2, 2, v0
    v_mov_b32 v40, -1
    v_mov_b32 v41, -1
    v_mov_b32 v42, -1
    v_mov_b32 v43, -1
    v_mov_b32 v44, 0
    v_mov_b32 v45, 1
    s_mul_i32 s22, s2, {CH*4}
    s_movk_i32 s23, 0x2000
    s_waitcnt lgkmcnt(0)
    """)
    srd(A, 24, PDST, CH * 4, add="s22")
    srd(A, 28, PSRC, CH * 4, add="s22")
    A(f"""
    buffer_load_dwordx4 {vr(D,4)}, v1, s[24:27], 0 offen
    buffer_load_dword v{D+4}, v2, s[24:27], s23 offen
    buffer_load_dwordx4 {vr(S,4)}, v1, s[28:31], 0 offen
    buffer_load_dword v{S+4}, v2, s[28:31], s23 offen
    ds_write_b128 v1, v[40:43]
    ds_write_b128 v1, v[40:43] offset:8192
    ds_write_b128 v1, v[40:43] offset:16384
    ds_write_b128 v1, v[40:43] offset:24576
    ds_write_b32 v2, v44 offset:32768
    v_lshlrev_b32 v3, 22, v0
    v_add_u32 v4, 0x800, v0
    v_lshlrev_b32 v4, 20, v4
    s_mov_b32 s32, -20
    s_mov_b32 s33, 0x100000
    s_mov_b32 s34, 0x200000
    s_mov_b32 s35, 0x300000
    v_cmp_gt_u32 s[36:37], {CH-2048}, v0
    """.replace(f"v_cmp_gt_u32 s[36:37], {CH-2048}, v0", f"s_movk_i32 s38, {CH-2048}\nv_cmp_gt_u32 s[36:37], s38, v0"))
    srd(A, 40, PWS, CELL_BYTES, add=WS_CELL)
    A("""
    s_waitcnt lgkmcnt(0)
    s_barrier
    """)
    for j in range(5):
        if j == 0:
            A("s_waitcnt vmcnt(3)")
            if ST: A("s_memtime s[86:87]")
        if j == 4:
            A("s_waitcnt vmcnt(2)")
            A("s_mov_b64 exec, s[36:37]")
        d = D + j
        A(f"""
        v_mul_u32_u24 v46, 0xcccd, v{d}
        v_lshrrev_b32 v46, 20, v46
        v_mad_i32_i24 v{d}, v46, s32, v{d}
        v_and_b32 v{AD+j}, -2, v46
        v_lshlrev_b32 v{AD+j}, 1, v{AD+j}
        ds_add_rtn_u32 v{RK+j}, v{AD+j}, v45 offset:32768
        v_and_b32 v46, 1, v46
        v_lshl_add_u32 v{d}, v46, 5, v{d}
        """)
    A("s_mov_b64 exec, -1")
    A("s_waitcnt vmcnt(0)")
    for j in range(5):
        d = D + j
        A(f"v_lshl_or_b32 v{d}, v{d}, 14, v{S+j}")
        if j == 0: A(f"v_add_u32 v{d}, v{d}, v3")
        elif j < 4: A(f"v_add3_u32 v{d}, v{d}, v3, s{32+j}")
        else: A(f"v_add_u32 v{d}, v{d}, v4")
    A("v_mov_b32 v47, -2")
    for j in range(5):
        A(f"s_waitcnt lgkmcnt({4-j})") if False else None
    A("s_waitcnt lgkmcnt(0)")
    for j in range(5):
        d = D + j; r = RK + j
        if j == 4: A("s_mov_b64 exec, s[36:37]")
        A(f"""
        v_cmp_le_u32 vcc, 31, v{r}
        v_min_u32 v{r}, 31, v{r}
        v_and_b32 v46, 7, v{r}
        v_cndmask_b32 v{d}, v{d}, v47, vcc
        v_lshl_add_u32 v46, v{AD+j}, 1, v46
        v_lshrrev_b32 v{r}, 3, v{r}
        v_lshl_add_u32 v46, v46, 2, v{r}
        v_lshlrev_b32 v46, 2, v46
        ds_write_b32 v46, v{d}
        """)
    A(f"""
    s_mov_b64 exec, -1
    v_lshrrev_b32 v5, 3, v0
    v_lshlrev_b32 v5, 14, v5
    v_and_b32 v6, 7, v0
    v_lshl_add_u32 v5, v6, 4, v5
    s_lshl_b32 s22, s2, 7
    v_add_u32 v5, s22, v5
    s_waitcnt lgkmcnt(0)
    s_barrier
    {"s_memtime s[88:89]" if ST else ""}
    ds_read_b128 v[8:11], v1
    ds_read_b128 v[12:15], v1 offset:8192
    ds_read_b128 v[16:19], v1 offset:16384
    ds_read_b128 v[20:23], v1 offset:24576
    s_waitcnt lgkmcnt(3)
    buffer_store_dwordx4 v[8:11], v5, s[40:43], 0 offen {opt['k1st']}
    s_waitcnt lgkmcnt(2)
    buffer_store_dwordx4 v[12:15], v5, s[40:43], s33 offen {opt['k1st']}
    s_waitcnt lgkmcnt(1)
    buffer_store_dwordx4 v[16:19], v5, s[40:43], s34 offen {opt['k1st']}
    s_waitcnt lgkmcnt(0)
    buffer_store_dwordx4 v[20:23], v5, s[40:43], s35 offen {opt['k1st']}
    """)
    endp()
    A("K1_GEMM:")
    A(f"""
    v_lshrrev_b32 v2, 6, v0
    v_and_b32 v1, 63, v0
    v_readfirstlane_b32 s3, v2
    v_lshrrev_b32 v3, 4, v1
    v_lshrrev_b32 v4, 2, v1
    v_xor_b32 v4, v4, v3
    v_and_b32 v4, 3, v4
    v_lshlrev_b32 v4, 6, v4
    v_and_b32 v5, 3, v1
    v_lshl_add_u32 v4, v5, 4, v4
    v_lshl_add_u32 v4, v3, 8, v4
    v_lshl_add_u32 v4, v2, 12, v4
    s_sub_u32 s22, s2, {NCHUNK + NGEMM}
    s_waitcnt lgkmcnt(0)
    """)
    A(f"""
    s_mov_b32 s24, s{PWM}
    s_mov_b32 s25, s{PWM+1}
    s_mov_b32 s26, 32768
    s_mov_b32 s27, 0x00020000
    s_mov_b32 s23, 0
    s_cmp_lt_u32 s2, {NCHUNK + NGEMM}
    s_cbranch_scc1 K1_WSEL
    s_mov_b32 s23, 32768
    s_cmp_eq_u32 s22, 0
    s_cbranch_scc1 K1_WSEL
    s_mov_b32 s23, 65536
    s_mov_b32 s26, 4096
    s_cmp_eq_u32 s22, 3
    s_cbranch_scc1 K1_WSEL
    s_mov_b32 s26, 32768
    s_mov_b32 s24, s{PWU}
    s_mov_b32 s25, s{PWU+1}
    s_sub_u32 s23, s22, 1
    s_lshl_b32 s23, s23, 15
    K1_WSEL:
    s_add_u32 s24, s24, s23
    s_addc_u32 s25, s25, 0
    s_lshl_b32 m0, s3, 12
    s_nop 0
    buffer_load_dwordx4 v4, s[24:27], 0 offen lds
    buffer_load_dwordx4 v4, s[24:27], 0 offen offset:1024 lds
    buffer_load_dwordx4 v4, s[24:27], 0 offen offset:2048 lds
    buffer_load_dwordx4 v4, s[24:27], 0 offen offset:3072 lds
    """)
    A(f"""
    s_and_b32 s28, s3, 3
    v_bfe_u32 v6, v1, 2, 2
    v_xor_b32 v7, s28, v6
    v_lshlrev_b32 v7, 6, v7
    v_lshl_add_u32 v7, v6, 8, v7
    v_and_b32 v6, 1, v3
    v_lshl_add_u32 v7, v6, 5, v7
    v_lshl_add_u32 v7, v5, 3, v7
    v_lshrrev_b32 v8, 5, v1
    s_cmp_ge_u32 s2, {NCHUNK + NGEMM}
    s_cbranch_scc1 K1_TRANS
    """)
    A(f"""
    s_sub_u32 s29, s2, {NCHUNK}
    s_lshl_b32 s30, s29, 14
    s_sub_u32 s31, {N*256}, s30
    """)
    srd(A, 32, PX, "s31", add="s30")
    srd(A, 36, PWS, "s31", add="s30")
    A(f"""
    v_lshl_add_u32 v9, v2, 3, v3
    v_and_b32 v10, 15, v1
    v_xor_b32 v11, v9, v10
    v_and_b32 v11, 15, v11
    v_lshlrev_b32 v11, 4, v11
    v_lshl_add_u32 v11, v9, 8, v11
    v_xor_b32 v12, 64, v11
    s_lshl_b32 s30, s3, 11
    s_add_u32 m0, s30, 32768
    s_nop 0
    buffer_load_dwordx4 v11, s[32:35], 0 offen lds
    buffer_load_dwordx4 v12, s[32:35], 0 offen offset:1024 lds
    v_lshl_add_u32 v7, v8, 11, v7
    """)
    A(f"""
    v_and_b32 v9, 31, v1
    s_lshr_b32 s30, s3, 2
    s_lshl_b32 s30, s30, 5
    v_add_u32 v9, s30, v9
    v_xor_b32 v13, v8, v10
    v_lshlrev_b32 v13, 4, v13
    v_lshl_add_u32 v13, v9, 8, v13
    v_lshlrev_b32 v14, 8, v9
    s_lshl_b32 s30, s28, 6
    v_lshl_add_u32 v14, v8, 5, v14
    v_add_u32 v14, s30, v14
    s_mov_b32 s30, {NEG_LOG2E:#x}
    s_waitcnt vmcnt(0)
    s_barrier
    """)
    WF, XF, ACC = 16, 48, 80
    if ST: A("s_memtime s[86:87]")
    for s in range(8):
        A(f"ds_read_b64_tr_b16 {vr(WF+4*s,2)}, v7 offset:{s*4096}")
        A(f"ds_read_b64_tr_b16 {vr(WF+4*s+2,2)}, v7 offset:{s*4096+1024}")
        if s: A(f"v_xor_b32 v15, {s*32}, v13")
        A(f"ds_read_b128 {vr(XF+4*s,4)}, v{15 if s else 13} offset:32768")
    for s in range(8):
        A(f"s_waitcnt lgkmcnt({min(15, 3*(7-s))})")
        A(f"v_mfma_f32_32x32x16_bf16 {vr(ACC,16)}, {vr(WF+4*s,4)}, {vr(XF+4*s,4)}, {'0' if s == 0 else vr(ACC,16)}")
    A("s_nop 15")
    if ST: A("s_memtime s[88:89]")
    for r in range(16):
        A(f"v_mul_f32 v{ACC+r}, s30, v{ACC+r}")
    for r in range(8):
        A(f"v_cvt_pk_bf16_f32 v{WF+r}, v{ACC+2*r}, v{ACC+2*r+1}")
    A(f"""
    buffer_store_dwordx4 {vr(WF,4)}, v14, s[36:39], 0 offen {opt['k1st']}
    buffer_store_dwordx4 {vr(WF+4,4)}, v14, s[36:39], 0 offen offset:16 {opt['k1st']}
    """)
    endp()
    A("K1_TRANS:")
    srd(A, 36, PWS, 3 * 32768 + 4096, add=WS_W)
    A(f"""
    v_lshlrev_b32 v14, 4, v1
    s_lshl_b32 s30, s22, 15
    s_waitcnt vmcnt(0)
    s_barrier
    s_cmp_ge_u32 s3, 4
    s_cbranch_scc1 K1_END
    s_cmp_eq_u32 s22, 2
    s_cbranch_scc1 K1_TPERM
    v_lshl_add_u32 v7, v8, 11, v7
    """)
    for s in range(8):
        A(f"ds_read_b64_tr_b16 {vr(WF+4*s,2)}, v7 offset:{s*4096}")
        A(f"ds_read_b64_tr_b16 {vr(WF+4*s+2,2)}, v7 offset:{s*4096+1024}")
    A("s_cmp_eq_u32 s22, 3")
    A("s_cbranch_scc1 K1_W3")
    A("s_branch K1_TST")
    A("K1_TPERM:")
    A("v_lshl_add_u32 v7, v8, 10, v7")
    for s in range(8):
        A(f"ds_read_b64_tr_b16 {vr(WF+4*s,2)}, v7 offset:{s*4096}")
        A(f"ds_read_b64_tr_b16 {vr(WF+4*s+2,2)}, v7 offset:{s*4096+2048}")
    A("K1_TST:")
    A("s_lshl_b32 s31, s28, 13")
    A("s_add_u32 s30, s30, s31")
    A("s_waitcnt lgkmcnt(0)")
    for s in range(8):
        if s == 4:
            A("s_add_u32 s30, s30, 4096")
        A(f"buffer_store_dwordx4 {vr(WF+4*s,4)}, v14, s[36:39], s30 offen offset:{(s%4)*1024}")
    A("s_endpgm")
    A("K1_W3:")
    A(f"s_mov_b32 s29, {NEG_LOG2E:#x}")
    A("s_lshl_b32 s31, s28, 10")
    A("s_add_u32 s30, s30, s31")
    A("s_waitcnt lgkmcnt(0)")
    for r in range(4):
        A(f"""
        v_lshlrev_b32 v40, 16, v{WF+r}
        v_and_b32 v41, 0xffff0000, v{WF+r}
        v_mul_f32 v40, s29, v40
        v_mul_f32 v41, s29, v41
        v_cvt_pk_bf16_f32 v{WF+r}, v40, v41
        """)
    A(f"buffer_store_dwordx4 {vr(WF,4)}, v14, s[36:39], s30 offen")
    A("K1_END:")
    A("s_endpgm")

def kd(name, nv, ns=102):
    acc = (nv + 3) // 4 * 4
    return f""".p2align 6
.amdhsa_kernel {name}
  .amdhsa_next_free_vgpr {nv}
  .amdhsa_next_free_sgpr {ns}
  .amdhsa_accum_offset {acc}
  .amdhsa_group_segment_fixed_size 0
  .amdhsa_kernarg_size 72
  .amdhsa_user_sgpr_count 2
  .amdhsa_user_sgpr_kernarg_segment_ptr 1
  .amdhsa_system_sgpr_workgroup_id_x 1
.end_amdhsa_kernel
"""

HEADER = """; Kernarg layout for this problem (72 bytes, ptrs only, base s[0:1]):
"""

def build(opt, k2=None):
    out = HEADER
    out += f"; @launch kernel=prep_kernel grid=({K1_GRID},1,1) block=(512,1,1) lds={K1_LDS}\n"
    if k2:
        out += f"; @launch kernel=edge_kernel grid=({NBIN},1,1) block=(512,1,1) lds={k2.LDS_TOTAL}\n"
    out += '.amdgcn_target "amdgcn-amd-amdhsa--gfx950"\n.text\n'
    A = Asm()
    gen_k1(A, opt)
    out += ".globl prep_kernel\n.p2align 8\n.type prep_kernel,@function\n" + A.text()
    if k2:
        B = Asm()
        nv2 = k2.gen_k2(B, opt)
        out += ".globl edge_kernel\n.p2align 8\n.type edge_kernel,@function\n" + B.text()
    out += '.section .rodata,"a"\n' + kd("prep_kernel", 96)
    if k2:
        out += kd("edge_kernel", nv2)
    return out

if __name__ == "__main__":
    opt = {"k1st": ""}
    for a in sys.argv[2:]:
        k_, v_ = a.split("=")
        opt[k_] = int(v_) if v_.lstrip("-").isdigit() else v_.replace("_", " ")
    try:
        import k2
    except ImportError:
        k2 = None
    s = build(opt, k2)
    path = sys.argv[1] if len(sys.argv) > 1 else "standalone__mpnn_edge_mlp__graph.s"
    open(path, "w").write(s)
```

```python
from gen import *

OHT = 0x0
CNT = 0x100
QN = 0x200
FLAG = 0x3F0
REC = 0x400
TG = 26
GSL = TG * 32
REC_BYTES = (2 * GSL + 160) * 8
EA = REC + REC_BYTES
GEA = (TG // 2) * 3072
RING = EA + 2 * GEA
JUNK = RING + 65536
LDS_TOTAL = JUNK + 1024
XS = RING
assert RING % 256 == 0 and LDS_TOTAL <= 163840

class R: pass
v = R()
_n = 1
def alloc(name, n, align=1):
    global _n
    _n = (_n + align - 1) // align * align
    setattr(v, name, _n)
    _n += n
for nm in ("E_", "R1", "R2", "Re", "P0", "P1", "OHA", "EB", "QC", "OHB", "XA", "t0", "t1", "t2", "t3", "lane", "FW", "FR", "FV", "PROG"):
    alloc(nm, 1)
for nm in ("IX0", "IX1", "IE", "ONE", "S"):
    alloc(nm, 2, 2)
for nm in ("W3F", "QF", "QS", "SEL0", "SEL1", "eF", "ohF", "pF0", "pF1", "aggF", "MSG", "NS", "DS", "RS"):
    alloc(nm, 4, 4)
for nm in ("T0", "T1", "E", "ACC"):
    alloc(nm, 16, 4)
alloc("XF", 32, 4)
alloc("WU", 64, 4)
NV = _n
v.REC = v.T0
v.RANK = v.T0 + 8
v.AD = v.E
v.PK = v.E + 8
v.TP = v.T1
v.W2F = v.WU
v.JK = v.WU + 60
v.IEa = v.pF0
v.IEb = v.pF0 + 2
v.OH0 = v.pF1
v.T = v.T0
FLG = CNT + 24 * 4

sWS, sP, sE, sX, sOUT, sD, sS = 24, 28, 32, 36, 40, 44, 48
sG, sC, sTg, sTile, sTsw, sNB, sRing, sEdst, sMode, sRound, sQdone, sElim = 52, 53, 54, 55, 56, 57, 58, 59, 60, 61, 62, 63
sM = 64
sN20 = 80
sWoff = 82
sNoBar = 83
sK3F = 84
sT0, sT1 = 85, 86

def pi8(A, dst, src, tmp):
    A(f"""
    v_and_b32 v{dst}, 5, v{src}
    v_lshlrev_b32 v{dst}, 5, v{dst}
    v_and_b32 v{tmp}, 18, v{src}
    v_lshl_or_b32 v{dst}, v{tmp}, 2, v{dst}
    v_and_b32 v{tmp}, 8, v{src}
    v_lshl_or_b32 v{dst}, v{tmp}, 1, v{dst}
    """)

def P(r): return f"v[{r}:{r+1}]"
def mfma(d, a, b, c=None):
    return f"v_mfma_f32_32x32x16_bf16 {vr(d,16)}, {vr(a,4)}, {vr(b,4)}, {vr(d,16) if c is None else c}"

def wu_load(A, i):
    off = (i >> 3) * 32768 + (i & 7) * 1024
    hi = off & ~4095
    if hi:
        A(f"s_add_u32 s22, s{sWoff}, {hi}")
        A(f"buffer_load_dwordx4 {vr(v.WU+4*i,4)}, v{v.t3}, {sr(sWS,4)}, s22 offen offset:{off & 4095}")
    else:
        A(f"buffer_load_dwordx4 {vr(v.WU+4*i,4)}, v{v.t3}, {sr(sWS,4)}, s{sWoff} offen offset:{off & 4095}")

LS = 0
LM = 0
OPT = {}
def lst(A, k, variant, r, mode=0):
    if LS and variant == "fast" and k == LS - 1: A(f"s_memtime s[{r}:{r+1}]")

def chain(A, k, variant, exit_label, ool, pre=False):
    kk = k if k < 3 else -1
    safe = variant == "safe"
    if not pre:
        A(f"s_setprio {OPT.get('pc', 2)}")
        A(f"s_add_u32 s{sTile}, s{sTile}, 1")
        A(f"s_cmp_ge_u32 s{sTile}, s{sTg}")
        A(f"s_cbranch_scc1 {exit_label}")
        lsw = A.label("sw"); lswb = A.label("swb")
        A(f"s_cmp_eq_u32 s{sTile}, s{sTsw}")
        A(f"s_cbranch_scc1 {lsw}")
        A(f"{lswb}:")
        ool.append(f"{lsw}:\nv_mov_b32 v{v.QF}, v{v.QS+2}\nv_mov_b32 v{v.QF+1}, v{v.QS+3}\ns_branch {lswb}")
        lst(A, k, variant, 10)
    A("s_waitcnt lgkmcnt(0)")
    if k % 2 == 0 and not pre and not (variant == "peel" and k == 0):
        if safe and k == 0:
            l = A.label("na")
            A(f"s_cmp_eq_u32 s{sTile}, 1")
            A(f"s_cbranch_scc1 {l}")
            A(mfma(v.ACC, v.MSG, v.aggF))
            A(f"{l}:")
        else:
            A(mfma(v.ACC, v.MSG, v.aggF))
    if pre: n = 5
    elif variant == "peel": n = (5, 11, 16, 20)[k]
    elif variant == "fast": n = (5, 5, 5, 4)[k]
    else: n = 4
    k2_ = kk + 2
    A(mfma(v.T, v.eF, v.W3F, "0"))
    A(f"ds_read_b128 {vr(v.eF,4)}, v{v.E_} offset:{3072 + (k2_ >> 1) * 3072 + (k2_ & 1) * 1024}")
    A(mfma(v.T, v.ohF, v.QF))
    A(f"ds_read_b128 {vr(v.ohF,4)}, v{v.OHA}")
    A(f"ds_read_u8 v{v.OHA}, v{v.R2} offset:{(kk + 3) * 256}")
    A(mfma(v.T, v.pF0, v.SEL0))
    A(f"s_add_u32 m0, s{sRing}, {((k + 1) & 3) * 2048}")
    A(mfma(v.T, v.pF1, v.SEL1))
    A(f"s_setprio 0")
    lst(A, k, variant, 14)
    A(f"s_waitcnt vmcnt({n})")
    A(f"ds_read_b128 {vr(v.pF0,4)}, v{v.P0} offset:{((k + 2) & 3) * 2048}")
    A(f"ds_read_b128 {vr(v.pF1,4)}, v{v.P1} offset:{((k + 2) & 3) * 2048}")
    A(f"buffer_load_dwordx4 {P(v.IX0)}, {sr(sP,4)}, 0 idxen offen lds")
    A(f"s_add_u32 m0, s{sRing}, {((k + 1) & 3) * 2048 + 1024}")
    A(f"ds_read_u16 v{v.IX0}, v{v.R1} offset:{(kk + 6) * 256}")
    A(f"buffer_load_dwordx4 {P(v.IX1)}, {sr(sP,4)}, 0 idxen offen lds")
    A(f"ds_read_u16 v{v.IX1}, v{v.R1} offset:{(kk + 6) * 256 + 64}")
    if (k == 3 or (k == 0 and variant == "peel")) and not pre:
        l = A.label("nf")
        if safe:
            A(f"s_cmp_lg_u32 s{sNoBar}, 0")
            A(f"s_cbranch_scc1 {l}")
        A("s_mov_b64 exec, 1")
        A(f"ds_write_b32 v{v.FW}, v{v.PROG}")
        A("s_mov_b64 exec, -1")
        if safe: A(f"{l}:")
    n_after = 9
    if k % 2 == 1 and not pre:
        A(f"ds_read_b128 {vr(v.aggF,4)}, v{v.E_} offset:{(1 if k == 1 else 0) * 3072 + 2048}")
        n_after += 1
    if k == 3:
        l = A.label("ne")
        if safe:
            A(f"s_cmp_lg_u32 s{sNoBar}, 0")
            A(f"s_cbranch_scc1 {l}")
        A(f"s_cmp_lt_u32 s{sEdst}, s{sElim}")
        A(f"s_cselect_b32 m0, s{sEdst}, {JUNK}")
        A(f"s_add_u32 s{sEdst}, s{sEdst}, 6144")
        A(f"buffer_load_dwordx4 {P(v.IE)}, {sr(sE,4)}, 0 idxen offen lds")
        if safe: A(f"{l}:")
        else: n_after += 4
    if k == 0:
        A(f"ds_read_b32 v{v.IE}, v{v.Re} offset:{3 * 1024}")
        n_after += 1
    if k == 1:
        A(f"ds_read_b32 v{v.FV}, v{v.FR}")
        n_after += 1
    if variant == "peel" and k < 3:
        for i in range((0, 6, 11)[k], (6, 11, 16)[k]):
            wu_load(A, i)
        n_after += 5
    if n_after < 12:
        A(f"s_nop {12 - n_after - 1}")
    lst(A, k, variant, 12)

def tail_rcp(A):
    for r in range(4):
        A(f"v_rcp_f32 v{v.RS+r}, v{v.DS+r}")
def tail_fin(A, par):
    A(f"v_pk_fma_f32 {P(v.S)}, {P(v.DS)}, {P(v.DS+2)}, {P(v.S)}")
    if OPT.get("plainmul"):
        for r in range(4):
            A(f"v_mul_f32 v{v.NS+r}, v{v.NS+r}, v{v.RS+r}")
    else:
        A(f"v_pk_mul_f32 {P(v.NS)}, {P(v.NS)}, {P(v.RS)}")
        A(f"v_pk_mul_f32 {P(v.NS+2)}, {P(v.NS+2)}, {P(v.RS+2)}")
    mo = v.MSG + 2 * par
    A(f"v_cvt_pk_bf16_f32 v{mo}, v{v.NS}, v{v.NS+1}")
    A(f"v_cvt_pk_bf16_f32 v{mo+1}, v{v.NS+2}, v{v.NS+3}")

def stretch(A, k, variant, ool):
    T = v.T
    E = v.E
    order = [0, 1, 8, 9, 2, 3, 10, 11, 4, 5, 12, 13, 6, 7, 14, 15]
    lst(A, k, variant, 94)
    for i, r in enumerate(order):
        A(f"v_exp_f32 v{E+r}, v{T+r}")
    if variant != "safe":
        tail_rcp(A)
    incs = []
    if k == 3:
        incs = [f"v_add_u32 v{v.E_}, 6144, v{v.E_}", f"v_add_u32 v{v.R1}, 1024, v{v.R1}",
                f"v_add_u32 v{v.R2}, 1024, v{v.R2}", f"v_add_u32 v{v.Re}, 1024, v{v.Re}",
                f"v_add_u32 v{v.PROG}, 1, v{v.PROG}"]
    if k == 0 and variant == "peel":
        incs = [f"v_add_u32 v{v.PROG}, 1, v{v.PROG}"]
    for s in incs: A(s)
    if k == 2:
        lw = A.label("fw"); lb = A.label("fb")
        if variant == "safe":
            A(f"s_cmp_lg_u32 s{sNoBar}, 0")
            A(f"s_cbranch_scc1 {lb}")
        A("s_waitcnt lgkmcnt(0)")
        A(f"v_cmp_gt_u32 vcc, v{v.PROG}, v{v.FV}")
        ool.append(f"{lw}:\nds_read_b32 v{v.FV}, v{v.FR}\ns_waitcnt lgkmcnt(0)\nv_cmp_gt_u32 vcc, v{v.PROG}, v{v.FV}\ns_cbranch_vccnz {lw}\ns_branch {lb}")
        if variant == "safe":
            A(f"s_cbranch_vccnz {lw}")
            A(f"{lb}:")
    lst(A, k, variant, 4)
    A("s_setprio 1")
    par = (k + 1) % 2
    if variant != "safe":
        tail_fin(A, par)
        lst(A, k, variant, 6)
        ops = []
        for gi, g in enumerate((0, 8)):
            t, e = T + g, E + g
            o = [f"v_pk_add_f32 {P(e)}, {P(e)}, {P(v.ONE)}"]
            for u in (1, 2, 3):
                o.append(f"v_pk_fma_f32 {P(t)}, {P(t)}, {P(e+2*u)}, {P(t)}")
                o.append(f"v_pk_fma_f32 {P(t if u < 3 else v.NS+2*gi)}, {P(t+2*u)}, {P(e)}, {P(t)}")
                o.append(f"v_pk_fma_f32 {P(e if u < 3 else v.DS+2*gi)}, {P(e)}, {P(e+2*u)}, {P(e)}")
            ops.append(o)
        for a, b in zip(*ops):
            A(a); A(b)
    else:
        mo = v.MSG + 2 * par
        A(f"v_cvt_pk_bf16_f32 v{mo}, v{v.NS}, v{v.NS+1}")
        A(f"v_cvt_pk_bf16_f32 v{mo+1}, v{v.NS+2}, v{v.NS+3}")
        for r in range(0, 16, 2):
            A(f"v_pk_add_f32 {P(E+r)}, {P(E+r)}, {P(v.ONE)}")
        for r in range(16):
            A(f"v_rcp_f32 v{E+r}, v{E+r}")
        A("s_nop 0")
        for u in range(4):
            for gi, g in enumerate((0, 8)):
                if u == 0:
                    A(f"v_pk_mul_f32 {P(T+g)}, {P(T+g)}, {P(E+g)}")
                else:
                    A(f"v_pk_fma_f32 {P(T+g if u < 3 else v.NS+2*gi)}, {P(T+g+2*u)}, {P(E+g+2*u)}, {P(T+g)}")
    if k == 2 and variant != "safe":
        A(f"s_cbranch_vccnz {lw}")
        A(f"{lb}:")
    lst(A, k, variant, 8)

def gen_k2(A, opt):
    L = v.lane
    ST = opt.get("stamp", 0)
    global LS, LM
    OPT.update(opt)
    LS = opt.get("ls", 0); LM = opt.get("lm", 0)
    def stamp(r, real=False):
        if LS and r in (94, 4, 6, 8, 10, 12, 14): return
        if ST: A(f"s_mem{'real' if real else ''}time s[{r}:{r+1}]")
    A("edge_kernel:")
    stamp(90); stamp(92, True)
    A(f"s_cmp_ge_u32 s2, {NBIN}")
    A("s_cbranch_scc1 K2_END")
    load_ptrs(A)
    A(f"""
    v_lshrrev_b32 v{v.t0}, 6, v0
    v_and_b32 v{L}, 63, v0
    v_readfirstlane_b32 s3, v{v.t0}
    v_lshlrev_b32 v{v.t2}, 4, v0
    v_lshlrev_b32 v{v.t3}, 4, v{L}
    s_lshl_b32 s22, s2, 14
    s_add_u32 s22, s22, {WS_CELL}
    s_add_u32 s23, s22, 8192
    s_lshr_b32 s{sG}, s3, 2
    s_and_b32 s{sC}, s3, 3
    v_lshrrev_b32 v{v.t1}, 4, v{L}
    v_lshl_add_u32 v{v.t0}, v{v.t0}, 2, v{v.t1}
    v_xor_b32 v{v.t1}, v{v.t0}, v{L}
    v_and_b32 v{v.t1}, 15, v{v.t1}
    v_lshlrev_b32 v{v.t1}, 4, v{v.t1}
    v_lshl_add_u32 v{v.t0}, v{v.t0}, 8, v{v.t1}
    s_mul_i32 s87, s2, 10240
    s_sub_u32 s88, {N*256}, s87
    s_waitcnt lgkmcnt(0)
    """)
    stamp(94)
    srd(A, sWS, PWS, WS_END if not ST else 0x1000000)
    A(f"buffer_load_dwordx4 {vr(v.REC,4)}, v{v.t2}, {sr(sWS,4)}, s22 offen")
    A(f"buffer_load_dwordx4 {vr(v.REC+4,4)}, v{v.t2}, {sr(sWS,4)}, s23 offen")
    srd(A, sX, PX, "s88", add="s87")
    A(f"""
    s_lshl_b32 s22, s3, 10
    s_add_u32 m0, s22, {XS}
    s_movk_i32 s23, 0x2000
    buffer_load_dwordx4 v{v.t0}, {sr(sX,4)}, 0 offen lds
    s_add_u32 m0, s22, {XS + 8192}
    s_lshl_b32 s{sWoff}, s{sC}, 13
    buffer_load_dwordx4 v{v.t0}, {sr(sX,4)}, s23 offen lds
    s_add_u32 s{sWoff}, s{sWoff}, {WS_W}
    s_add_u32 s22, s{sWoff}, 4096
    """)
    for s in range(8):
        A(f"buffer_load_dwordx4 {vr(v.W2F+4*s,4)}, v{v.t3}, {sr(sWS,4)}, s{sWoff if s < 4 else 22} offen offset:{(s%4)*1024}")
    A(f"""
    s_lshl_b32 s22, s{sC}, 10
    s_add_u32 s22, s22, {WS_W + 98304}
    buffer_load_dwordx4 {vr(v.W3F,4)}, v{v.t3}, {sr(sWS,4)}, s22 offen
    s_add_u32 s{sWoff}, s{sWoff}, 32768
    s_lshr_b32 s22, s2, 3
    s_mul_i32 s22, s22, 81920
    """)
    NPF = 10 if opt.get("pf", 1) else 0
    for j in range(NPF):
        A(f"buffer_load_dwordx4 {vr(v.JK,4)}, v{v.t2}, {sr(sWS,4)}, s22 offen")
        if j < NPF - 1: A("s_add_u32 s22, s22, 8192")
    srd(A, sP, PWS, 0 if opt.get('nop') else N, stride=256)
    srd(A, sE, PE, 0 if opt.get('noe') else E, stride=32)
    srd(A, sOUT, POUT, N * 256)
    srd(A, sD, PDST, E * 4)
    srd(A, sS, PSRC, E * 4)
    A(f"""
    s_mov_b32 s{sMode}, 0
    s_mov_b32 s{sRound}, 0
    s_mov_b32 s{sQdone}, 0
    s_mov_b32 s{sNoBar}, 0
    s_movk_i32 s{sK3F}, 0x3fff
    s_lshl_b32 s{sRing}, s3, 13
    s_add_u32 s{sRing}, s{sRing}, {RING}
    """)
    A(f"""
    v_lshrrev_b32 v{v.t0}, 2, v0
    v_add_u32 v{v.t0}, -1, v{v.t0}
    v_and_b32 v{v.t1}, 1, v{v.t0}
    v_lshlrev_b32 v{v.t1}, 4, v{v.t1}
    v_mov_b32 v{v.OHA}, 0x3f80
    v_lshlrev_b32 v{v.t1}, v{v.t1}, v{v.OHA}
    v_ashrrev_i32 v{v.t0}, 1, v{v.t0}
    v_and_b32 v{v.OHA}, 3, v0
    v_cmp_eq_u32 vcc, v{v.t0}, v{v.OHA}
    v_lshlrev_b32 v{v.t0}, 2, v0
    v_mov_b32 v{v.ONE}, 1.0
    v_cndmask_b32 v{v.t1}, 0, v{v.t1}, vcc
    v_cmp_gt_u32 vcc, 36, v0
    s_and_saveexec_b64 s[22:23], vcc
    ds_write_b32 v{v.t0}, v{v.t1}
    s_mov_b64 exec, s[22:23]
    v_mov_b32 v{v.ONE+1}, 1.0
    """)
    for r in range(16):
        A(f"v_mov_b32 v{v.ACC+r}, 0")
    m, h, t = v.t0, v.t1, v.OHA
    A(f"""
    v_and_b32 v{m}, 31, v{L}
    v_lshrrev_b32 v{h}, 5, v{L}
    v_cmp_gt_u32 {sr(sN20,2)}, 20, v{m}
    """)
    pi8(A, v.R2, m, t)
    A(f"""
    s_mul_i32 s22, s{sG}, {GSL*8}
    s_add_u32 s22, s22, {REC}
    v_add3_u32 v{v.R2}, v{v.R2}, v{h}, s22
    v_add_u32 v{v.R2}, 2, v{v.R2}
    v_lshrrev_b32 v{v.IE}, 2, v{L}
    """)
    pi8(A, v.R1, v.IE, t)
    A(f"v_add_u32 v{v.R1}, s22, v{v.R1}")
    A(f"v_lshrrev_b32 v{v.IE}, 1, v{L}")
    pi8(A, v.Re, v.IE, t)
    A(f"""
    s_lshl_b32 s23, s{sC}, 8
    s_add_u32 s22, s22, s23
    s_add_u32 s22, s22, 4
    v_add_u32 v{v.Re}, s22, v{v.Re}
    v_lshrrev_b32 v{t}, 3, v{m}
    v_xor_b32 v{t}, v{t}, v{h}
    v_and_b32 v{t}, 1, v{t}
    v_lshlrev_b32 v{t}, 4, v{t}
    v_lshl_add_u32 v{v.E_}, v{m}, 5, v{t}
    s_mul_i32 s22, s{sG}, {GEA}
    s_add_u32 s22, s22, {EA - 3072}
    v_add_u32 v{v.E_}, s22, v{v.E_}
    v_lshrrev_b32 v{t}, 2, v{m}
    v_lshlrev_b32 v{v.P0}, 1, v{h}
    v_xor_b32 v{t}, v{t}, v{v.P0}
    v_and_b32 v{t}, 3, v{t}
    v_lshlrev_b32 v{t}, 4, v{t}
    v_lshl_add_u32 v{v.P0}, v{m}, 6, v{t}
    v_add_u32 v{v.P0}, s{sRing}, v{v.P0}
    v_xor_b32 v{v.P1}, 16, v{v.P0}
    v_lshrrev_b32 v{t}, 4, v{L}
    v_xor_b32 v{t}, v{t}, v{L}
    v_and_b32 v{v.IE+1}, 1, v{t}
    v_lshlrev_b32 v{v.IE+1}, 4, v{v.IE+1}
    v_and_b32 v{t}, 3, v{t}
    v_lshlrev_b32 v{t}, 4, v{t}
    s_lshl_b32 s22, s{sC}, 6
    v_add_u32 v{v.IX0+1}, s22, v{t}
    v_mov_b32 v{v.IX1+1}, v{v.IX0+1}
    """)
    A(f"""
    s_lshl_b32 s22, s3, 2
    s_add_u32 s22, s22, {FLG}
    v_mov_b32 v{v.FW}, s22
    s_lshl_b32 s22, s{sG}, 4
    s_add_u32 s22, s22, {FLG}
    v_and_b32 v{v.FR}, 3, v{L}
    v_lshl_add_u32 v{v.FR}, v{v.FR}, 2, s22
    """)
    A(f"""
    s_mul_i32 s22, s{sG}, 20
    v_add_u32 v{t}, s22, v{m}
    v_xor_b32 v{v.XA}, v{t}, v{h}
    v_and_b32 v{v.XA}, 15, v{v.XA}
    v_lshlrev_b32 v{v.XA}, 4, v{v.XA}
    v_lshl_add_u32 v{v.XA}, v{t}, 8, v{v.XA}
    v_add_u32 v{v.XA}, {XS}, v{v.XA}
    """)
    A(f"""
    v_and_b32 v{t}, 8, v{L}
    v_lshlrev_b32 v{t}, 3, v{t}
    v_and_b32 v{v.OHB}, 3, v{L}
    v_lshl_add_u32 v{t}, v{v.OHB}, 4, v{t}
    v_add_u32 v{t}, 16, v{t}
    v_bfe_u32 v{v.QC}, v{L}, 2, 1
    v_cmp_eq_u32 vcc, v{v.QC}, v{h}
    v_lshlrev_b32 v{v.QC}, 3, v{v.QC}
    v_add_u32 v{v.QC}, 16, v{v.QC}
    v_lshlrev_b32 v{v.OHB}, v{v.QC}, v{t}
    v_cndmask_b32 v{t}, 0, v{t}, vcc
    v_cmp_gt_u32 vcc, 16, v{m}
    s_mul_i32 s22, s{sG}, 0
    v_mul_u32_u24 v{v.QC}, {GSL}, v{h}
    v_cndmask_b32 v{v.SEL0}, 0, v{t}, vcc
    v_cndmask_b32 v{v.SEL1}, v{t}, 0, vcc
    v_add_u32 v{v.OHB}, v{v.OHB}, v{v.QC}
    """.replace(f"v_cndmask_b32 v{v.SEL1}, v{t}, 0, vcc", f"v_sub_u32 v{v.SEL1}, v{t}, v{v.SEL0}"))
    A(f"""
    v_lshrrev_b32 v{v.EB}, 3, v0
    v_mul_u32_u24 v{v.EB}, {CH}, v{v.EB}
    v_lshrrev_b32 v{v.QC}, 4, v0
    v_mul_u32_u24 v{v.QC}, 3072, v{v.QC}
    v_and_b32 v{t}, 4, v0
    v_lshl_add_u32 v{v.QC}, v{t}, 2, v{v.QC}
    v_and_b32 v{t}, 8, v0
    v_add_u32 v{v.QC}, v{v.QC}, v{t}
    v_and_b32 v{t}, 3, v0
    v_lshl_add_u32 v{v.QC}, v{t}, 1, v{v.QC}
    v_add_u32 v{v.QC}, {EA + 2048}, v{v.QC}
    """)
    A("K2_ROUND:")
    Z = v.eF
    A(f"""
    v_mov_b32 v{Z}, 0
    v_mov_b32 v{Z+1}, 0
    v_mov_b32 v{Z+2}, 0
    v_mov_b32 v{Z+3}, 0
    s_mul_i32 s22, s3, 3072
    s_add_u32 s22, s22, {EA + 2048}
    v_add_u32 v{v.t0}, s22, v{v.t3}
    ds_write_b128 v{v.t0}, {vr(Z,4)}
    ds_write_b128 v{v.t0}, {vr(Z,4)} offset:24576
    ds_write_b128 v{v.t0}, {vr(Z,4)} offset:49152
    s_cmp_ge_u32 s3, 2
    s_cbranch_scc1 K2_Z1
    v_add_u32 v{v.t0}, 73728, v{v.t0}
    ds_write_b128 v{v.t0}, {vr(Z,4)}
    K2_Z1:
    v_mov_b32 v{v.ohF}, 0xffff
    v_mov_b32 v{v.ohF+1}, -1
    v_mov_b32 v{v.ohF+2}, 0xffff
    v_mov_b32 v{v.ohF+3}, -1
    ds_write_b128 v{v.t2}, {vr(v.ohF,4)} offset:{REC}
    s_movk_i32 s22, {REC_BYTES // 16 - 512}
    v_cmp_gt_u32 vcc, s22, v0
    s_and_saveexec_b64 s[22:23], vcc
    ds_write_b128 v{v.t2}, {vr(v.ohF,4)} offset:{REC + 8192}
    s_mov_b64 exec, s[22:23]
    s_cmp_ge_u32 s3, 3
    s_cbranch_scc1 K2_Z2
    s_cmp_eq_u32 s3, 0
    s_cselect_b32 s22, 0, -1
    v_mov_b32 v{v.t0}, s22
    v_lshlrev_b32 v{v.t1}, 2, v0
    ds_write_b32 v{v.t1}, v{v.t0} offset:{CNT}
    K2_Z2:
    """)
    for i in range(8):
        A(f"v_mov_b32 v{v.TP+2*i+1}, v{v.IX0+1}")
    A(f"v_mov_b32 v{v.IEa+1}, v{v.IE+1}")
    A(f"v_mov_b32 v{v.IEb+1}, v{v.IE+1}")
    for r in range(4):
        A(f"v_mov_b32 v{v.MSG+r}, 0")
    A(f"v_mov_b32 v{v.S}, 0")
    A(f"v_mov_b32 v{v.S+1}, 0")
    A(f"v_mov_b32 v{v.aggF}, 1")
    A(f"""
    s_cmp_eq_u32 s{sMode}, 0
    s_cbranch_scc1 K2_FASTW
    """)
    A(f"""
    s_lshl_b32 s22, s{sRound}, 9
    v_add_u32 v{v.EB}, s22, v0
    v_lshlrev_b32 v{v.t0}, 2, v{v.EB}
    buffer_load_dword v{v.REC}, v{v.t0}, {sr(sD,4)}, 0 offen
    buffer_load_dword v{v.REC+1}, v{v.t0}, {sr(sS,4)}, 0 offen
    s_mul_i32 s22, s2, 40
    s_waitcnt vmcnt(0)
    v_subrev_u32 v{v.REC}, s22, v{v.REC}
    v_cmp_le_u32 vcc, 20, v{v.REC}
    v_add_u32 v{v.t0}, 12, v{v.REC}
    s_nop 0
    v_cndmask_b32 v{v.t0}, v{v.REC}, v{v.t0}, vcc
    v_cmp_gt_u32 vcc, 40, v{v.REC}
    v_lshl_or_b32 v{v.t0}, v{v.t0}, 14, v{v.REC+1}
    s_nop 0
    v_cndmask_b32 v{v.REC}, -1, v{v.t0}, vcc
    """)
    for j in range(1, 8):
        A(f"v_mov_b32 v{v.REC+j}, -1")
    A(f"""
    K2_FASTW:
    s_waitcnt lgkmcnt(0)
    s_barrier
    s_cmp_lg_u32 s{sQdone}, 0
    s_cbranch_scc1 K2_NOSEL
    s_cmp_lg_u32 s{sMode}, 0
    s_cbranch_scc1 K2_NOSEL
    ds_read_b128 {vr(v.SEL0,4)}, v{v.SEL0}
    ds_read_b128 {vr(v.SEL1,4)}, v{v.SEL1}
    K2_NOSEL:
    s_waitcnt vmcnt({2 + 8 + 1 + NPF + 1})
    """)
    stamp(4)
    for j in range(8):
        if j == 4:
            A(f"s_waitcnt vmcnt({2 + 8 + 1 + NPF})")
        l = A.label("cs")
        A(f"""
        v_cmp_gt_u32 {sr(sM+2*j,2)}, -2, v{v.REC+j}
        v_lshrrev_b32 v{v.AD+j}, 12, v{v.REC+j}
        v_and_b32 v{v.AD+j}, 0xfc, v{v.AD+j}
        s_mov_b64 exec, {sr(sM+2*j,2)}
        s_cbranch_execz {l}
        ds_add_rtn_u32 v{v.RANK+j}, v{v.AD+j}, v{v.aggF} offset:{CNT}
        {l}:
        s_mov_b64 exec, -1
        """)
    A(f"""
    v_cmp_eq_u32 vcc, -2, v{v.REC+3}
    v_cmp_eq_u32 s[22:23], -2, v{v.REC+7}
    s_nop 1
    s_or_b64 s[22:23], vcc, s[22:23]
    s_cbranch_scc0 K2_NOMARK
    v_mov_b32 v{v.t0}, {FLAG}
    ds_write_b32 v{v.t0}, v{v.aggF}
    K2_NOMARK:
    v_lshlrev_b32 v{v.t0}, 2, v{L}
    v_mov_b32 v{v.t1}, {FLAG}
    s_waitcnt vmcnt({8 + 1 + NPF}) lgkmcnt(0)
    s_barrier
    {"s_memtime s[6:7]" if ST and not LS else ""}
    ds_read_b32 v{v.t0}, v{v.t0} offset:{CNT}
    ds_read_b32 v{v.t1}, v{v.t1}
    s_cmp_lg_u32 s{sQdone}, 0
    s_cbranch_scc1 K2_NOXF
    """)
    for s in range(8):
        if s: A(f"v_xor_b32 v{v.OHA}, {s*32}, v{v.XA}")
        A(f"ds_read_b128 {vr(v.XF+4*s,4)}, v{v.OHA if s else v.XA}")
    A("s_waitcnt lgkmcnt(8)")
    A("s_branch K2_XFD")
    A("K2_NOXF:")
    A("s_waitcnt lgkmcnt(0)")
    A("K2_XFD:")
    c = v.t0; pd = v.OHA
    A(f"""
    v_add_u32 v{c}, 3, v{c}
    v_and_b32 v{c}, -4, v{c}
    v_max_u32 v{c}, 4, v{c}
    v_readfirstlane_b32 s87, v{v.t1}
    v_cndmask_b32 v{pd}, 0, v{c}, {sr(sN20,2)}
    v_mov_b32 v{c}, v{pd}
    s_nop 1
    v_add_u32_dpp v{c}, v{c}, v{c} row_shr:1 row_mask:0xf bank_mask:0xf bound_ctrl:0
    s_nop 1
    v_add_u32_dpp v{c}, v{c}, v{c} row_shr:2 row_mask:0xf bank_mask:0xf bound_ctrl:0
    s_nop 1
    v_add_u32_dpp v{c}, v{c}, v{c} row_shr:4 row_mask:0xf bank_mask:0xf bound_ctrl:0
    s_nop 1
    v_add_u32_dpp v{c}, v{c}, v{c} row_shr:8 row_mask:0xf bank_mask:0xf bound_ctrl:0
    s_nop 1
    v_add_u32_dpp v{c}, v{c}, v{c} row_bcast:15 row_mask:0xa bank_mask:0xf
    s_lshl_b32 s22, s{sG}, 5
    s_add_u32 s22, s22, 8
    v_sub_u32 v{pd}, v{c}, v{pd}
    v_readlane_b32 s{sT0}, v{c}, 31
    v_readlane_b32 s{sT1}, v{c}, 63
    v_readlane_b32 s{sTsw}, v{pd}, s22
    v_add_u32 v{pd}, v{pd}, v{v.OHB}
    """)
    for j in range(8):
        A(f"ds_bpermute_b32 v{v.PK+j}, v{v.AD+j}, v{pd}")
    A(f"""
    s_add_u32 s{sT0}, s{sT0}, 31
    s_lshr_b32 s{sT0}, s{sT0}, 5
    s_add_u32 s{sT1}, s{sT1}, 31
    s_lshr_b32 s{sT1}, s{sT1}, 5
    s_add_u32 s{sTsw}, s{sTsw}, 31
    s_lshr_b32 s{sTsw}, s{sTsw}, 5
    s_max_u32 s22, s{sT0}, s{sT1}
    s_cmp_eq_u32 s{sG}, 0
    s_cselect_b32 s{sTg}, s{sT0}, s{sT1}
    s_cmp_gt_u32 s22, {TG}
    s_cbranch_scc1 K2_OVF
    s_cmp_lg_u32 s87, -1
    s_cbranch_scc1 K2_OVF
    v_add_u32 v{v.t1}, {64 * CH}, v{v.EB}
    """)
    W0 = v.aggF + 2
    A("s_waitcnt lgkmcnt(0)")
    for j in range(8):
        l = A.label("ss")
        A(f"""
        s_mov_b64 exec, {sr(sM+2*j,2)}
        s_cbranch_execz {l}
        v_add_u32_sdwa v{v.RANK+j}, v{v.PK+j}, v{v.RANK+j} dst_sel:DWORD dst_unused:UNUSED_PAD src0_sel:WORD_0 src1_sel:DWORD
        v_lshrrev_b32 v{W0+1}, 20, v{v.REC+j}
        v_bfi_b32 v{W0}, s{sK3F}, v{v.REC+j}, v{v.PK+j}
        v_add_u32 v{W0+1}, v{W0+1}, v{v.EB if j < 4 else v.t1}
        v_lshlrev_b32 v{v.PK+j}, 3, v{v.RANK+j}
        v_lshrrev_b32 v{v.RANK+j}, 2, v{v.RANK+j}
        ds_write_b64 v{v.PK+j}, {P(W0)} offset:{REC}
        ds_write_b8 v{v.RANK+j}, v{v.AD+j} offset:{QN}
        {l}:
        """)
    A(f"""
    s_mov_b64 exec, -1
    s_waitcnt lgkmcnt(0)
    s_barrier
    """)
    A("K2_START:")
    stamp(8)
    for i in range(4):
        A(f"ds_read_u16 v{v.TP+4*i}, v{v.R1} offset:{i*256}")
        A(f"ds_read_u16 v{v.TP+4*i+2}, v{v.R1} offset:{i*256+64}")
        if i == 0: A(f"ds_read_b32 v{v.IEa}, v{v.Re}")
        if i == 1: A(f"ds_read_b32 v{v.IEb}, v{v.Re} offset:1024")
    A(f"""
    ds_read_u8 v{v.t0}, v0 offset:{QN}
    ds_read_u8 v{v.OH0}, v{v.R2}
    ds_read_u8 v{v.OHA}, v{v.R2} offset:256
    ds_read_u16 v{v.IX0}, v{v.R1} offset:1024
    ds_read_u16 v{v.IX1}, v{v.R1} offset:{1024+64}
    ds_read_b32 v{v.IE}, v{v.Re} offset:2048
    s_lshr_b32 s22, s{sC}, 1
    s_mul_i32 s22, s22, 3072
    s_and_b32 s23, s{sC}, 1
    s_lshl_b32 s23, s23, 10
    s_add_u32 s22, s22, s23
    s_mul_i32 s{sElim}, s{sG}, {GEA}
    s_add_u32 s{sElim}, s{sElim}, {EA}
    s_add_u32 s{sEdst}, s{sElim}, s22
    s_add_u32 s{sElim}, s{sElim}, {GEA}
    s_mov_b32 s{sTile}, 0
    s_mov_b32 m0, s{sRing}
    s_waitcnt lgkmcnt(13)
    buffer_load_dwordx4 {P(v.TP)}, {sr(sP,4)}, 0 idxen offen lds
    s_add_u32 m0, s{sRing}, 1024
    s_nop 0
    buffer_load_dwordx4 {P(v.TP+2)}, {sr(sP,4)}, 0 idxen offen lds
    s_cmp_lg_u32 s{sNoBar}, 0
    s_cbranch_scc1 K2_NOE0
    s_mov_b32 m0, s{sEdst}
    s_nop 0
    buffer_load_dwordx4 {P(v.IEa)}, {sr(sE,4)}, 0 idxen offen lds
    K2_NOE0:
    s_add_u32 m0, s{sRing}, 2048
    s_waitcnt lgkmcnt(10)
    buffer_load_dwordx4 {P(v.TP+4)}, {sr(sP,4)}, 0 idxen offen lds
    s_add_u32 m0, s{sRing}, 3072
    s_nop 0
    buffer_load_dwordx4 {P(v.TP+6)}, {sr(sP,4)}, 0 idxen offen lds
    s_cmp_lg_u32 s{sNoBar}, 0
    s_cbranch_scc1 K2_NOE1
    s_add_u32 m0, s{sEdst}, 6144
    s_nop 0
    buffer_load_dwordx4 {P(v.IEb)}, {sr(sE,4)}, 0 idxen offen lds
    K2_NOE1:
    s_add_u32 s{sEdst}, s{sEdst}, 12288
    s_add_u32 m0, s{sRing}, 4096
    s_waitcnt lgkmcnt(6)
    buffer_load_dwordx4 {P(v.TP+8)}, {sr(sP,4)}, 0 idxen offen lds
    s_add_u32 m0, s{sRing}, 5120
    s_nop 0
    buffer_load_dwordx4 {P(v.TP+10)}, {sr(sP,4)}, 0 idxen offen lds
    s_add_u32 m0, s{sRing}, 6144
    s_nop 0
    buffer_load_dwordx4 {P(v.TP+12)}, {sr(sP,4)}, 0 idxen offen lds
    s_add_u32 m0, s{sRing}, 7168
    s_nop 0
    buffer_load_dwordx4 {P(v.TP+14)}, {sr(sP,4)}, 0 idxen offen lds
    s_cmp_lg_u32 s{sNoBar}, 0
    s_cbranch_scc1 K2_REDO2
    """)
    A(f"""
    s_waitcnt lgkmcnt(0)
    v_cmp_ne_u32 vcc, 0xff, v{v.t0}
    v_and_b32 v{v.t1}, 0x7c, v{v.t0}
    v_lshl_add_u32 v{v.t1}, v{v.t1}, 3, v{v.QC}
    v_lshrrev_b32 v{v.t0}, 1, v{v.t0}
    v_and_b32 v{v.t0}, 16, v{v.t0}
    v_xor_b32 v{v.t1}, v{v.t1}, v{v.t0}
    v_mov_b32 v{v.t0}, 0x3f80
    s_and_saveexec_b64 s[22:23], vcc
    ds_write_b16 v{v.t1}, v{v.t0}
    s_mov_b64 exec, s[22:23]
    s_cmp_lg_u32 s{sQdone}, 0
    s_cbranch_scc1 K2_QD
    s_waitcnt vmcnt({NPF + 10})
    """)
    for s in range(8):
        A(mfma(v.E, v.XF + 4*s, v.W2F + 4*s, "0" if s == 0 else None))
    A(f"s_mov_b32 s22, {NEG_LOG2E:#x}")
    A(f"s_mov_b32 s{sQdone}, 1")
    A("s_nop 10")
    for r in range(12):
        A(f"v_mul_f32 v{v.E+r}, s22, v{v.E+r}")
    A(f"""
    v_cvt_pk_bf16_f32 v{v.QS}, v{v.E}, v{v.E+1}
    v_cvt_pk_bf16_f32 v{v.QS+1}, v{v.E+2}, v{v.E+3}
    v_cvt_pk_bf16_f32 v{v.QF+2}, v{v.E+4}, v{v.E+5}
    v_cvt_pk_bf16_f32 v{v.QF+3}, v{v.E+6}, v{v.E+7}
    v_cvt_pk_bf16_f32 v{v.QS+2}, v{v.E+8}, v{v.E+9}
    v_cvt_pk_bf16_f32 v{v.QS+3}, v{v.E+10}, v{v.E+11}
    s_cmp_eq_u32 s{sMode}, 0
    s_cbranch_scc1 K2_QD
    """)
    for i in range(16):
        wu_load(A, i)
    A("s_waitcnt vmcnt(0)")
    A(f"""
    K2_QD:
    v_mov_b32 v{v.PROG}, 1
    s_cmp_eq_u32 s{sMode}, 0
    s_cbranch_scc1 K2_QD2
    v_mov_b32 v{v.PROG}, 2
    s_waitcnt vmcnt(0)
    ds_write_b32 v{v.FW}, v{v.PROG}
    K2_QD2:
    s_waitcnt vmcnt(7) lgkmcnt(0)
    s_barrier
    K2_REDO2:
    s_cmp_eq_u32 s{sNoBar}, 0
    s_cbranch_scc1 K2_GO
    s_waitcnt vmcnt(0) lgkmcnt(0)
    K2_GO:
    """)
    stamp(10)
    A(f"""
    ds_read_b128 {vr(v.ohF,4)}, v{v.OH0}
    ds_read_b128 {vr(v.eF,4)}, v{v.E_} offset:3072
    ds_read_b128 {vr(v.pF0,4)}, v{v.P0}
    ds_read_b128 {vr(v.pF1,4)}, v{v.P1}
    v_mov_b32 v{v.QF}, v{v.QS}
    v_mov_b32 v{v.QF+1}, v{v.QS+1}
    v_mov_b64 {P(v.NS)}, 0
    v_mov_b64 {P(v.NS+2)}, 0
    v_mov_b64 {P(v.DS)}, {P(v.ONE)}
    v_mov_b64 {P(v.DS+2)}, {P(v.ONE)}
    s_or_b32 s22, s{sMode}, s{sNoBar}
    s_cmp_lg_u32 s22, 0
    s_cbranch_scc1 K2_SAFEP
    """)
    ool = []
    chain(A, 3, "fast", None, ool, pre=True)
    for k in range(4):
        stretch(A, k, "peel", ool)
        chain(A, k, "peel", "K2_EXIT", ool)
    if opt.get("al"): A(f".p2align {opt['al']}")
    A("K2_LOOP:")
    for k in range(4):
        stretch(A, k, "fast", ool)
        chain(A, k, "fast", "K2_EXIT", ool)
    A("s_branch K2_LOOP")
    A("K2_SAFEP:")
    chain(A, 3, "safe", None, ool, pre=True)
    A("K2_SAFE:")
    for k in range(4):
        stretch(A, k, "safe", ool)
        chain(A, k, "safe", "K2_EXIT", ool)
    A("s_branch K2_SAFE")
    for o in ool: A(o)
    A(f"""
    K2_OVF:
    s_mov_b32 s{sMode}, 1
    s_waitcnt vmcnt(0) lgkmcnt(0)
    s_barrier
    s_branch K2_ROUND
    """)
    A(f"""
    K2_EXIT:
    {"s_memtime s[12:13]" if ST and not LS else ""}
    s_setprio 0
    s_lshr_b32 s23, s{sTg}, 2
    s_mul_i32 s22, s23, 6144
    s_lshl_b32 s23, s23, 10
    v_subrev_u32 v{v.E_}, s22, v{v.E_}
    s_sub_u32 s22, s{sTg}, 1
    s_lshr_b32 s22, s22, 1
    s_mul_i32 s22, s22, 3072
    s_add_u32 s22, s22, {3072 + 2048}
    v_add_u32 v{v.t0}, s22, v{v.E_}
    v_subrev_u32 v{v.R1}, s23, v{v.R1}
    v_subrev_u32 v{v.R2}, s23, v{v.R2}
    v_subrev_u32 v{v.Re}, s23, v{v.Re}
    s_waitcnt lgkmcnt(0)
    s_bitcmp1_b32 s{sTg}, 0
    s_cbranch_scc0 K2_X1
    {mfma(v.ACC, v.MSG, v.aggF)}
    K2_X1:
    ds_read_b128 {vr(v.aggF,4)}, v{v.t0}
    s_or_b32 s22, s{sMode}, s{sNoBar}
    s_cmp_lg_u32 s22, 0
    s_cbranch_scc1 K2_X2
    v_rcp_f32 v{v.RS}, v{v.DS}
    v_rcp_f32 v{v.RS+1}, v{v.DS+1}
    v_rcp_f32 v{v.RS+2}, v{v.DS+2}
    v_rcp_f32 v{v.RS+3}, v{v.DS+3}
    v_fma_f32 v{v.S}, v{v.DS}, v{v.DS+2}, v{v.S}
    v_fma_f32 v{v.S+1}, v{v.DS+1}, v{v.DS+3}, v{v.S+1}
    v_mul_f32 v{v.NS}, v{v.NS}, v{v.RS}
    v_mul_f32 v{v.NS+1}, v{v.NS+1}, v{v.RS+1}
    v_mul_f32 v{v.NS+2}, v{v.NS+2}, v{v.RS+2}
    v_mul_f32 v{v.NS+3}, v{v.NS+3}, v{v.RS+3}
    K2_X2:
    s_bitcmp1_b32 s{sTg}, 0
    s_cbranch_scc0 K2_X3
    v_cvt_pk_bf16_f32 v{v.MSG}, v{v.NS}, v{v.NS+1}
    v_cvt_pk_bf16_f32 v{v.MSG+1}, v{v.NS+2}, v{v.NS+3}
    s_branch K2_X4
    K2_X3:
    v_cvt_pk_bf16_f32 v{v.MSG+2}, v{v.NS}, v{v.NS+1}
    v_cvt_pk_bf16_f32 v{v.MSG+3}, v{v.NS+2}, v{v.NS+3}
    K2_X4:
    s_nop 0
    s_waitcnt lgkmcnt(0)
    {mfma(v.ACC, v.MSG, v.aggF)}
    s_waitcnt vmcnt(0)
    s_cmp_eq_u32 s{sMode}, 0
    s_cbranch_scc1 K2_CHK
    s_add_u32 s{sRound}, s{sRound}, 1
    s_cmp_ge_u32 s{sRound}, {E // 512}
    s_cbranch_scc1 K2_FIN
    s_barrier
    s_branch K2_ROUND
    K2_CHK:
    s_cmp_lg_u32 s{sNoBar}, 0
    s_cbranch_scc1 K2_FIN
    s_nop 10
    v_max_f32 v{v.t0}, v{v.S}, v{v.S+1}
    v_mov_b32 v{v.S}, 0
    v_mov_b32 v{v.S+1}, 0
    v_mov_b32 v{v.E}, 0
    v_mov_b32 v{v.E+1}, 0
    """)
    for r in range(0, 16, 2):
        A(f"v_pk_fma_f32 {P(v.S)}, {P(v.ACC+r)}, {P(v.E)}, {P(v.S)}")
    A(f"""
    s_mov_b32 s22, {f2u(2.0**60):#x}
    v_add_f32 v{v.t0}, v{v.t0}, v{v.S}
    v_add_f32 v{v.t0}, v{v.t0}, v{v.S+1}
    v_cmp_nge_f32 vcc, s22, v{v.t0}
    s_cbranch_vccz K2_FIN
    s_mov_b32 s{sNoBar}, 1
    """)
    for r in range(16):
        A(f"v_mov_b32 v{v.ACC+r}, 0")
    for i in range(8):
        A(f"v_mov_b32 v{v.TP+2*i+1}, v{v.IX0+1}")
    for r in range(4):
        A(f"v_mov_b32 v{v.MSG+r}, 0")
    A("s_branch K2_START")
    F = v.T0
    A("K2_FIN:")
    A(f"s_mov_b32 s22, {NEG_LN2:#x}")
    A(f"v_add_u32 v{v.t0}, s{sRing}, v{v.t3}")
    A("s_nop 6")
    ri = 0
    for s in range(8):
        A(mfma(F, v.WU + 4*s, v.XF + 4*s, "0" if s == 0 else None))
        for q in range(2):
            A(f"v_mul_f32 v{v.ACC+ri}, s22, v{v.ACC+ri}"); ri += 1
        A(f"v_cvt_pk_bf16_f32 v{v.E+s}, v{v.ACC+2*s}, v{v.ACC+2*s+1}")
        if s == 3: A(f"ds_write_b128 v{v.t0}, {vr(v.E,4)}")
    A(f"""
    ds_write_b128 v{v.t0}, {vr(v.E+4,4)} offset:1024
    s_lshl_b32 s22, s{sG}, 15
    s_add_u32 s22, s22, {RING}
    v_add_u32 v{v.t0}, s22, v{v.t3}
    s_mul_i32 s22, s2, 40
    s_mul_i32 s23, s{sG}, 20
    s_add_u32 s22, s22, s23
    s_lshl_b32 s22, s22, 8
    s_lshl_b32 s23, s{sC}, 6
    s_add_u32 s22, s22, s23
    v_and_b32 v{v.t1}, 31, v{L}
    v_lshlrev_b32 v{v.t1}, 8, v{v.t1}
    v_lshrrev_b32 v{v.t2}, 5, v{L}
    v_lshl_add_u32 v{v.t1}, v{v.t2}, 4, v{v.t1}
    v_add_u32 v{v.t1}, s22, v{v.t1}
    v_bfrev_b32 v{v.t2}, 1
    v_cndmask_b32 v{v.t1}, v{v.t2}, v{v.t1}, {sr(sN20,2)}
    s_waitcnt lgkmcnt(0)
    s_barrier
    """)
    stamp(14)
    for s in range(8):
        A(f"ds_read_b128 {vr(v.XF+4*s,4)}, v{v.t0} offset:{(s >> 1) * 8192 + (s & 1) * 1024}")
    for s in range(8):
        A(f"s_waitcnt lgkmcnt({7-s})")
        A(mfma(F, v.WU + 32 + 4*s, v.XF + 4*s))
    A(f"s_mov_b32 s22, {NEG_LOG2E:#x}")
    A("s_nop 10")
    for r in range(16):
        A(f"v_mul_f32 v{v.E+r}, s22, v{F+r}")
    for r in range(16):
        A(f"v_exp_f32 v{v.E+r}, v{v.E+r}")
    for r in range(0, 16, 2):
        A(f"v_pk_add_f32 {P(v.E+r)}, {P(v.E+r)}, {P(v.ONE)}")
    for r in range(16):
        A(f"v_rcp_f32 v{v.E+r}, v{v.E+r}")
    for r in range(0, 16, 2):
        A(f"v_pk_mul_f32 {P(F+r)}, {P(F+r)}, {P(v.E+r)}")
    O = v.T1
    for r in range(8):
        A(f"v_cvt_pk_bf16_f32 v{O+r}, v{F+2*r}, v{F+2*r+1}")
    A(f"""
    s_nop 1
    v_permlane32_swap_b32 v{O}, v{O+2}
    v_permlane32_swap_b32 v{O+1}, v{O+3}
    v_permlane32_swap_b32 v{O+4}, v{O+6}
    v_permlane32_swap_b32 v{O+5}, v{O+7}
    buffer_store_dwordx4 {vr(O,4)}, v{v.t1}, {sr(sOUT,4)}, 0 offen
    buffer_store_dwordx4 {vr(O+4,4)}, v{v.t1}, {sr(sOUT,4)}, 0 offen offset:32
    """)
    if ST:
        A("s_waitcnt vmcnt(0)")
        stamp(96); stamp(98, True)
        A(f"""
        s_lshl_b32 s22, s2, 3
        s_add_u32 s22, s22, s3
        s_lshl_b32 s22, s22, 6
        s_add_u32 s22, s22, 0x800000
        v_mov_b32 v1, 0
        s_getreg_b32 s100, hwreg(HW_REG_HW_ID)
        s_getreg_b32 s101, hwreg(HW_REG_XCC_ID)
        s_waitcnt lgkmcnt(0)
        """)
        for i, r in enumerate([90, 94, 4, 6, 8, 10, 12, 14, 96, 92, 98, sTg, 100, 101]):
            A(f"v_mov_b32 v2, s{r}")
            A(f"buffer_store_dword v2, v1, {sr(sWS,4)}, s22 offen offset:{4*i}")
    A("""
    K2_END:
    s_endpgm
    """)
    return NV
```

```python
import sys, struct
from gen import Asm, vr, sr, srd, f2u, LOG2E, LN2, NEG_LOG2E, NEG_LN2, PX, PE, PSRC, PDST, PWM, PWU, POUT, PDBG, PWS, load_ptrs

KNAME = "standalone__mpnn_edge_mlp__graph_kernel"
N = 10000; E = 320000
NBIN = 250; NCHUNK = 125; CH = 2560
BINB = NCHUNK * 128
WS_P = 0
WS_CELL = 0x280000
CELL_BYTES = NBIN * BINB
WS_FLAG = 0x700000
WS_END = WS_FLAG + 0x8000

OHT = 0x0; CNT = 0x100; QN = 0x200; FLAG = 0x3F0; REC = 0x400
TG = 26; GSL = TG * 32
REC_BYTES = (2 * GSL + 160) * 8
EA = REC + REC_BYTES
GEA = (TG // 2) * 3072
RING = EA + 2 * GEA
JUNK = RING + 65536
LDS_TOTAL = JUNK + 1024
FLG = CNT + 24 * 4
L_A = 0; L_X = 0x8800; L_W2 = 0xE800; L_U1 = L_W2 + 32768; L_U2 = L_U1 + 32768; L_W3 = L_U2 + 32768
assert RING % 256 == 0 and LDS_TOTAL <= 163840 and L_W3 + 4096 <= LDS_TOTAL

class R: pass
v = R()
_n = 1
def alloc(name, n, align=1):
    global _n
    _n = (_n + align - 1) // align * align
    setattr(v, name, _n)
    _n += n
for nm in ("E_", "R1", "R2", "Re", "P0", "P1", "OHA", "EB", "QC", "OHB", "t0", "t1", "t2", "t3", "lane", "FW", "FR", "FV", "PROG", "JK", "JK2"):
    alloc(nm, 1)
for nm in ("IX0", "IX1", "IE", "ONE", "S"):
    alloc(nm, 2, 2)
for nm in ("W3F", "QF", "QS", "SEL0", "SEL1", "eF", "ohF", "pF0", "pF1", "aggF", "MSG", "NS", "DS", "RS"):
    alloc(nm, 4, 4)
for nm in ("T", "T1", "E", "ACC", "RF"):
    alloc(nm, 16, 4)
alloc("U2", 32, 4)
alloc("XF", 32, 4)
NV = _n
v.WA = v.ohF
assert v.RS == v.ohF + 28
v.WB = v.T
v.REC = v.T; v.RANK = v.T + 8; v.AD = v.E; v.PK = v.E + 8; v.TP = v.T1
v.IEa = v.pF0; v.IEb = v.pF0 + 2; v.OH0 = v.pF1

sWS, sP, sE, sX, sOUT, sD, sS = 24, 28, 32, 36, 40, 44, 48
sG, sC, sTg, sTile, sTsw, sTag, sRing, sEdst, sMode, sRound, sRole, sElim = 52, 53, 54, 55, 56, 57, 58, 59, 60, 61, 62, 63
sM = 64
sN20 = 80
sNoBar = 83; sK3F = 84; sT0, sT1 = 85, 86
sW = 64
sDB = 68
sFL = 72
sS2 = 28

OPT = {}
def P(r): return f"v[{r}:{r+1}]"
def mfma(d, a, b, c=None):
    return f"v_mfma_f32_32x32x16_bf16 {vr(d,16)}, {vr(a,4)}, {vr(b,4)}, {vr(d,16) if c is None else c}"
def pi8(A, dst, src, tmp):
    A(f"""
    v_and_b32 v{dst}, 5, v{src}
    v_lshlrev_b32 v{dst}, 5, v{dst}
    v_and_b32 v{tmp}, 18, v{src}
    v_lshl_or_b32 v{dst}, v{tmp}, 2, v{dst}
    v_and_b32 v{tmp}, 8, v{src}
    v_lshl_or_b32 v{dst}, v{tmp}, 1, v{dst}
    """)

def lst(A, k, variant, r):
    if OPT.get("ls") and variant == "fast" and k == OPT["ls"] - 1: A(f"s_memtime s[{r}:{r+1}]")

def chain(A, k, variant, exit_label, ool, pre=False):
    kk = k if k < 3 else -1
    safe = variant == "safe"
    if not pre:
        A("s_setprio 2")
        A(f"s_add_u32 s{sTile}, s{sTile}, 1")
        A(f"s_cmp_ge_u32 s{sTile}, s{sTg}")
        A(f"s_cbranch_scc1 {exit_label}")
        lsw = A.label("sw"); lswb = A.label("swb")
        A(f"s_cmp_eq_u32 s{sTile}, s{sTsw}")
        A(f"s_cbranch_scc1 {lsw}")
        A(f"{lswb}:")
        ool.append(f"{lsw}:\nv_mov_b32 v{v.QF}, v{v.QS+2}\nv_mov_b32 v{v.QF+1}, v{v.QS+3}\ns_branch {lswb}")
        lst(A, k, variant, 10)
    A("s_waitcnt lgkmcnt(0)")
    if k % 2 == 0:
        A(mfma(v.ACC, v.MSG, v.aggF))
    n = 4 if (safe or k == 3) else 5
    k2_ = kk + 2
    A(mfma(v.T, v.eF, v.W3F, "0"))
    if not pre:
        A(f"ds_read_b128 {vr(v.eF,4)}, v{v.E_} offset:{3072 + (k2_ >> 1) * 3072 + (k2_ & 1) * 1024}")
    A(mfma(v.T, v.ohF, v.QF))
    A(f"ds_read_b128 {vr(v.ohF,4)}, v{v.OHA}")
    A(f"ds_read_u8 v{v.OHA}, v{v.R2} offset:{(kk + 3) * 256}")
    A(mfma(v.T, v.pF0, v.SEL0))
    A(f"s_add_u32 m0, s{sRing}, {((k + 1) & 3) * 2048}")
    A(mfma(v.T, v.pF1, v.SEL1))
    A(f"s_setprio 0")
    lst(A, k, variant, 14)
    if pre:
        A(f"ds_read_b128 {vr(v.eF,4)}, v{v.E_} offset:{3072 + (k2_ >> 1) * 3072 + (k2_ & 1) * 1024}")
    A(f"s_waitcnt vmcnt({n})")
    A(f"ds_read_b128 {vr(v.pF0,4)}, v{v.P0} offset:{((k + 2) & 3) * 2048}")
    A(f"ds_read_b128 {vr(v.pF1,4)}, v{v.P1} offset:{((k + 2) & 3) * 2048}")
    A(f"buffer_load_dwordx4 {P(v.IX0)}, {sr(sP,4)}, 0 idxen offen lds")
    A(f"s_add_u32 m0, s{sRing}, {((k + 1) & 3) * 2048 + 1024}")
    A(f"ds_read_u16 v{v.IX0}, v{v.R1} offset:{(kk + 6) * 256}")
    A(f"buffer_load_dwordx4 {P(v.IX1)}, {sr(sP,4)}, 0 idxen offen lds")
    A(f"ds_read_u16 v{v.IX1}, v{v.R1} offset:{(kk + 6) * 256 + 64}")
    n_after = 9
    if k % 2 == 1 and not pre:
        A(f"ds_read_b128 {vr(v.aggF,4)}, v{v.E_} offset:{(1 if k == 1 else 0) * 3072 + 2048}")
        n_after += 1
    if k == 3:
        l = A.label("ne")
        if safe:
            A(f"s_cmp_lg_u32 s{sNoBar}, 0")
            A(f"s_cbranch_scc1 {l}")
        A("s_mov_b64 exec, 1")
        A(f"ds_write_b32 v{v.FW}, v{v.PROG}")
        A("s_mov_b64 exec, -1")
        A(f"s_cmp_lt_u32 s{sEdst}, s{sElim}")
        A(f"s_cselect_b32 m0, s{sEdst}, {JUNK}")
        A(f"s_add_u32 s{sEdst}, s{sEdst}, 6144")
        A(f"buffer_load_dwordx4 {P(v.IE)}, {sr(sE,4)}, 0 idxen offen lds")
        if safe: A(f"{l}:")
        else: n_after += 7
    if k == 0:
        A(f"ds_read_b32 v{v.IE}, v{v.Re} offset:{3 * 1024}")
        n_after += 1
    if k == 1:
        A(f"ds_read_b32 v{v.FV}, v{v.FR}")
        n_after += 1
    if n_after < 12:
        A(f"s_nop {12 - n_after - 1}")
    lst(A, k, variant, 12)

def stretch(A, k, variant, ool):
    T = v.T; E = v.E
    order = [0, 1, 8, 9, 2, 3, 10, 11, 4, 5, 12, 13, 6, 7, 14, 15]
    lst(A, k, variant, 94)
    for r in order:
        A(f"v_exp_f32 v{E+r}, v{T+r}")
    if variant != "safe":
        for r in range(4):
            A(f"v_rcp_f32 v{v.RS+r}, v{v.DS+r}")
    if k == 3:
        for s in (f"v_add_u32 v{v.E_}, 6144, v{v.E_}", f"v_add_u32 v{v.R1}, 1024, v{v.R1}",
                  f"v_add_u32 v{v.R2}, 1024, v{v.R2}", f"v_add_u32 v{v.Re}, 1024, v{v.Re}",
                  f"v_add_u32 v{v.PROG}, 1, v{v.PROG}"): A(s)
    if k == 2:
        lw = A.label("fw"); lb = A.label("fb")
        if variant == "safe":
            A(f"s_cmp_lg_u32 s{sNoBar}, 0")
            A(f"s_cbranch_scc1 {lb}")
        A("s_waitcnt lgkmcnt(0)")
        A(f"v_cmp_gt_u32 vcc, v{v.PROG}, v{v.FV}")
        ool.append(f"{lw}:\nds_read_b32 v{v.FV}, v{v.FR}\ns_waitcnt lgkmcnt(0)\nv_cmp_gt_u32 vcc, v{v.PROG}, v{v.FV}\ns_cbranch_vccnz {lw}\ns_branch {lb}")
        if variant == "safe":
            A(f"s_cbranch_vccnz {lw}")
            A(f"{lb}:")
    lst(A, k, variant, 4)
    A("s_setprio 1")
    mo = v.MSG + 2 * ((k + 1) % 2)
    if variant != "safe":
        A(f"v_pk_fma_f32 {P(v.S)}, {P(v.DS)}, {P(v.DS+2)}, {P(v.S)}")
        A(f"v_pk_mul_f32 {P(v.NS)}, {P(v.NS)}, {P(v.RS)}")
        A(f"v_pk_mul_f32 {P(v.NS+2)}, {P(v.NS+2)}, {P(v.RS+2)}")
    A(f"v_cvt_pk_bf16_f32 v{mo}, v{v.NS}, v{v.NS+1}")
    A(f"v_cvt_pk_bf16_f32 v{mo+1}, v{v.NS+2}, v{v.NS+3}")
    lst(A, k, variant, 6)
    if variant != "safe":
        ops = []
        for gi, g in enumerate((0, 8)):
            t, e = T + g, E + g
            o = [f"v_pk_add_f32 {P(e)}, {P(e)}, {P(v.ONE)}"]
            for u in (1, 2, 3):
                o.append(f"v_pk_fma_f32 {P(t)}, {P(t)}, {P(e+2*u)}, {P(t)}")
                o.append(f"v_pk_fma_f32 {P(t if u < 3 else v.NS+2*gi)}, {P(t+2*u)}, {P(e)}, {P(t)}")
                o.append(f"v_pk_fma_f32 {P(e if u < 3 else v.DS+2*gi)}, {P(e)}, {P(e+2*u)}, {P(e)}")
            ops.append(o)
        for a, b in zip(*ops):
            A(a); A(b)
    else:
        for r in range(0, 16, 2):
            A(f"v_pk_add_f32 {P(E+r)}, {P(E+r)}, {P(v.ONE)}")
        for r in range(16):
            A(f"v_rcp_f32 v{E+r}, v{E+r}")
        A("s_nop 0")
        for u in range(4):
            for gi, g in enumerate((0, 8)):
                if u == 0:
                    A(f"v_pk_mul_f32 {P(T+g)}, {P(T+g)}, {P(E+g)}")
                else:
                    A(f"v_pk_fma_f32 {P(T+g if u < 3 else v.NS+2*gi)}, {P(T+g+2*u)}, {P(E+g+2*u)}, {P(T+g)}")
    if k == 2 and variant != "safe":
        A(f"s_cbranch_vccnz {lw}")
        A(f"{lb}:")
    lst(A, k, variant, 8)

def wdma(A, ptr, goff, nbytes, ldsbase, voff, sW):
    srd(A, sW, ptr, nbytes, add=goff) if goff else srd(A, sW, ptr, nbytes)
    A(f"s_lshl_b32 s22, s3, 12")
    A(f"s_add_u32 m0, s22, {ldsbase}")
    A("s_nop 0")
    for q in range(4):
        A(f"buffer_load_dwordx4 v{voff}, {sr(sW,4)}, 0 offen offset:{q*1024} lds")

def trreads(A, dst, vaddr, base, perm=False, n=8):
    for s in range(n):
        A(f"ds_read_b64_tr_b16 {vr(dst+4*s,2)}, v{vaddr} offset:{base + s*4096}")
        A(f"ds_read_b64_tr_b16 {vr(dst+4*s+2,2)}, v{vaddr} offset:{base + s*4096 + (2048 if perm else 1024)}")

def gen(opt):
    OPT.clear(); OPT.update(opt)
    A = Asm()
    L = v.lane
    ST = opt.get("stamp", 0)
    STF = opt.get("stf", "sc1").replace("_", " ")
    def stamp(r, real=False):
        if opt.get("ls") and r in (94, 4, 6, 8, 10, 12, 14): return
        if ST: A(f"s_mem{'real' if real else ''}time s[{r}:{r+1}]")
    A(f"{KNAME}:")
    stamp(90); stamp(92, True)
    A(f"s_cmp_gt_u32 s2, {NBIN}")
    A("s_cbranch_scc1 K_END")
    load_ptrs(A)
    A("s_cmp_eq_u32 s2, 0")
    A("s_cbranch_scc1 K_MASTER")
    A("s_sub_u32 s2, s2, 1")
    WV = v.eF; XV = v.eF + 1; TRA = v.eF + 2; H = v.eF + 3
    A(f"""
    v_lshrrev_b32 v{v.t0}, 6, v0
    v_and_b32 v{L}, 63, v0
    v_readfirstlane_b32 s3, v{v.t0}
    v_lshlrev_b32 v{v.t2}, 4, v0
    v_lshlrev_b32 v{v.t3}, 4, v{L}
    v_lshrrev_b32 v{v.t1}, 4, v{L}
    s_and_b32 s{sRole}, s2, 1
    s_lshr_b32 s{sG}, s3, 2
    s_and_b32 s{sC}, s3, 3
    v_lshrrev_b32 v{WV}, 2, v{L}
    v_xor_b32 v{WV}, v{WV}, v{v.t1}
    v_and_b32 v{WV}, 3, v{WV}
    v_lshlrev_b32 v{WV}, 6, v{WV}
    v_and_b32 v{TRA}, 3, v{L}
    v_lshl_add_u32 v{WV}, v{TRA}, 4, v{WV}
    v_lshl_add_u32 v{WV}, v{v.t1}, 8, v{WV}
    v_lshl_add_u32 v{WV}, v{v.t0}, 12, v{WV}
    v_lshl_add_u32 v{XV}, v{v.t0}, 2, v{v.t1}
    v_xor_b32 v{H}, v{XV}, v{L}
    v_and_b32 v{H}, 15, v{H}
    v_lshlrev_b32 v{H}, 4, v{H}
    v_lshl_add_u32 v{XV}, v{XV}, 8, v{H}
    s_lshr_b32 s87, s2, 1
    s_mul_i32 s82, s87, {80*256}
    s_sub_u32 s81, {N*256}, s82
    s_cmp_eq_u32 s{sRole}, 0
    s_waitcnt lgkmcnt(0)
    """)
    srd(A, sX, PX, "s81", add="s82")
    def xdma():
        A(f"""
        s_lshl_b32 s22, s3, 10
        s_add_u32 m0, s22, {L_X}
        s_movk_i32 s23, 0x2000
        buffer_load_dwordx4 v{XV}, {sr(sX,4)}, 0 offen lds
        s_add_u32 m0, s22, {L_X + 8192}
        s_nop 0
        buffer_load_dwordx4 v{XV}, {sr(sX,4)}, s23 offen lds
        s_add_u32 m0, s22, {L_X + 16384}
        s_movk_i32 s23, 0x4000
        buffer_load_dwordx4 v{XV}, {sr(sX,4)}, s23 offen lds
        """)
    def common_early():
        srd(A, sDB, PDBG, 256)
        srd(A, sFL, PWS, 0x8000, add=WS_FLAG)
        A(f"""
        v_bfe_u32 v{H}, v{L}, 2, 2
        v_lshlrev_b32 v{TRA}, 3, v{TRA}
        v_lshl_add_u32 v{TRA}, v{H}, 8, v{TRA}
        v_xor_b32 v{H}, s{sC}, v{H}
        v_lshl_add_u32 v{TRA}, v{H}, 6, v{TRA}
        v_bfe_u32 v{H}, v{L}, 4, 1
        v_lshl_add_u32 v{TRA}, v{H}, 5, v{TRA}
        v_lshrrev_b32 v{H}, 5, v{L}
        """)
    def dma_item(it):
        if it == "x": xdma(); return 3
        if it == "w2": wdma(A, PWM, 32768, 32768, L_W2, WV, sS2); return 4
        if it == "u1": wdma(A, PWU, 0, 32768, L_U1, WV, sS2); return 4
        if it == "u2": wdma(A, PWU, 32768, 32768, L_U2, WV, sS2); return 4
        assert it == "w3"
        srd(A, sS2, PWM, 4096, add=65536)
        A(f"""
        s_lshl_b32 s22, s3, 9
        s_add_u32 m0, s22, {L_W3}
        v_lshrrev_b32 v{v.JK}, 4, v{L}
        s_lshl_b32 s23, s3, 1
        v_add_u32 v{v.JK}, s23, v{v.JK}
        v_lshrrev_b32 v{v.JK2}, 2, v{L}
        v_xor_b32 v{v.JK2}, v{v.JK2}, v{v.JK}
        v_and_b32 v{v.JK2}, 3, v{v.JK2}
        v_lshlrev_b32 v{v.JK2}, 6, v{v.JK2}
        v_lshl_add_u32 v{v.JK2}, v{v.JK}, 8, v{v.JK2}
        v_and_b32 v{v.JK}, 3, v{L}
        v_lshl_add_u32 v{v.JK2}, v{v.JK}, 4, v{v.JK2}
        s_mov_b32 exec_hi, 0
        buffer_load_dwordx4 v{v.JK2}, {sr(sS2,4)}, 0 offen lds
        s_mov_b64 exec, -1
        """)
        return 1
    def batch(spec):
        return sum(dma_item(it) for it in spec.split(",") if it)
    B_BIN = opt.get("bb", "x,w2|u1,w3|u2").split("|")
    B_GEM = opt.get("bg", "w2|u1,w3|u2").split("|")
    A("s_cmp_eq_u32 s62, 0")
    A("s_cbranch_scc0 K_GEMM")
    D, S, RK, AD = v.T, v.T + 8, v.T1, v.T1 + 8
    CW = v.E
    A(f"s_mul_i32 s22, s87, {CH*4}")
    srd(A, sD, PDST, CH * 4, add="s22")
    srd(A, sS, PSRC, CH * 4, add="s22")
    A(f"""
    v_lshlrev_b32 v{v.t1}, 2, v0
    s_movk_i32 s23, 0x2000
    buffer_load_dwordx4 {vr(D,4)}, v{v.t2}, {sr(sD,4)}, 0 offen
    buffer_load_dword v{D+4}, v{v.t1}, {sr(sD,4)}, s23 offen
    buffer_load_dwordx4 {vr(S,4)}, v{v.t2}, {sr(sS,4)}, 0 offen
    buffer_load_dword v{S+4}, v{v.t1}, {sr(sS,4)}, s23 offen
    v_mov_b64 {P(CW)}, -1
    v_mov_b64 {P(CW+2)}, -1
    v_mov_b32 v{CW+4}, 0
    v_mov_b32 v{CW+5}, 1
    ds_write_b128 v{v.t2}, {vr(CW,4)}
    ds_write_b128 v{v.t2}, {vr(CW,4)} offset:8192
    ds_write_b128 v{v.t2}, {vr(CW,4)} offset:16384
    ds_write_b128 v{v.t2}, {vr(CW,4)} offset:24576
    ds_write_b32 v{v.t1}, v{CW+4} offset:32768
    v_lshlrev_b32 v{CW+6}, 22, v0
    v_add_u32 v{CW+7}, 0x800, v0
    v_lshlrev_b32 v{CW+7}, 20, v{CW+7}
    v_mov_b32 v{CW+9}, -2
    """)
    nb0 = batch(B_BIN[0])
    common_early()
    srd(A, sW, PWS, CELL_BYTES, add=WS_CELL)
    A(f"""
    s_mov_b32 s76, -20
    s_mov_b32 s77, 0x100000
    s_mov_b32 s78, 0x200000
    s_mov_b32 s79, 0x300000
    v_lshrrev_b32 v{CW+10}, 3, v0
    v_mul_u32_u24 v{CW+10}, {BINB}, v{CW+10}
    v_and_b32 v{CW+11}, 7, v0
    v_lshl_add_u32 v{CW+10}, v{CW+11}, 4, v{CW+10}
    s_lshl_b32 s22, s87, 7
    v_add_u32 v{CW+10}, s22, v{CW+10}
    s_waitcnt lgkmcnt(0)
    s_barrier
    """)
    t = CW + 8
    nv_extra = 1
    for j in range(5):
        if j == 0:
            A(f"s_waitcnt vmcnt({2 + nb0})")
            stamp(94)
        d = D + j
        A(f"""
        v_mul_u32_u24 v{t}, 0xcccd, v{d}
        v_lshrrev_b32 v{t}, 20, v{t}
        v_and_b32 v{AD+j}, -2, v{t}
        v_lshlrev_b32 v{AD+j}, 1, v{AD+j}
        ds_add_rtn_u32 v{RK+j}, v{AD+j}, v{CW+5} offset:32768
        v_mad_i32_i24 v{d}, v{t}, s76, v{d}
        v_and_b32 v{t}, 1, v{t}
        v_lshl_add_u32 v{d}, v{t}, 5, v{d}
        """)
    A(f"s_waitcnt vmcnt({nb0})")
    for j in range(5):
        d = D + j
        A(f"v_lshl_or_b32 v{d}, v{d}, 14, v{S+j}")
        if j == 0: A(f"v_add_u32 v{d}, v{d}, v{CW+6}")
        elif j < 4: A(f"v_add3_u32 v{d}, v{d}, v{CW+6}, s{76+j}")
        else: A(f"v_add_u32 v{d}, v{d}, v{CW+7}")
    for j in range(5):
        d = D + j; r = RK + j
        A(f"""
        s_waitcnt lgkmcnt({4})
        v_cmp_le_u32 vcc, 31, v{r}
        v_min_u32 v{r}, 31, v{r}
        v_and_b32 v{t}, 7, v{r}
        v_cndmask_b32 v{d}, v{d}, v{CW+9}, vcc
        v_lshl_add_u32 v{t}, v{AD+j}, 1, v{t}
        v_lshrrev_b32 v{r}, 3, v{r}
        v_lshl_add_u32 v{t}, v{t}, 2, v{r}
        v_lshlrev_b32 v{t}, 2, v{t}
        ds_write_b32 v{t}, v{d}
        """)
    A(f"""
    s_mov_b32 s77, {64*BINB}
    s_mov_b32 s78, {128*BINB}
    s_mov_b32 s79, {192*BINB}
    s_waitcnt lgkmcnt(0)
    s_barrier
    ds_read_b128 {vr(v.T,4)}, v{v.t2}
    ds_read_b128 {vr(v.T+4,4)}, v{v.t2} offset:8192
    ds_read_b128 {vr(v.T+8,4)}, v{v.t2} offset:16384
    ds_read_b128 {vr(v.T+12,4)}, v{v.t2} offset:24576
    s_cmp_lg_u32 s3, 0
    s_cbranch_scc1 K_NT1
    buffer_load_dword v{v.FV}, off, {sr(sDB,4)}, 0 sc1
    K_NT1:
    s_waitcnt lgkmcnt(3)
    buffer_store_dwordx4 {vr(v.T,4)}, v{CW+10}, {sr(sW,4)}, 0 offen {STF}
    s_waitcnt lgkmcnt(2)
    buffer_store_dwordx4 {vr(v.T+4,4)}, v{CW+10}, {sr(sW,4)}, s77 offen {STF}
    s_waitcnt lgkmcnt(1)
    buffer_store_dwordx4 {vr(v.T+8,4)}, v{CW+10}, {sr(sW,4)}, s78 offen {STF}
    s_waitcnt lgkmcnt(0)
    buffer_store_dwordx4 {vr(v.T+12,4)}, v{CW+10}, {sr(sW,4)}, s79 offen {STF}
    """)
    n = batch(B_BIN[1])
    A(f"s_waitcnt vmcnt({n})")
    A("s_branch K_POST")
    A("K_GEMM:")
    wdma(A, PWM, 0, 32768, L_A, WV, sW)
    xdma()
    ng0 = batch(B_GEM[0])
    common_early()
    XA = v.E; PA = v.E + 1; GA = v.E + 2; TN = v.E + 3
    A(f"""
    v_lshl_add_u32 v{TN}, v{H}, 11, v{TRA}
    v_and_b32 v{XA}, 31, v{L}
    s_lshl_b32 s22, s{sG}, 5
    v_add_u32 v{XA}, s22, v{XA}
    v_lshlrev_b32 v{PA}, 1, v{H}
    s_lshl_b32 s22, s{sC}, 2
    v_add_u32 v{PA}, s22, v{PA}
    v_xor_b32 v{PA}, v{PA}, v{XA}
    v_and_b32 v{PA}, 15, v{PA}
    v_lshlrev_b32 v{PA}, 4, v{PA}
    v_lshl_add_u32 v{PA}, v{XA}, 8, v{PA}
    v_xor_b32 v{GA}, v{H}, v{XA}
    v_and_b32 v{GA}, 15, v{GA}
    v_lshlrev_b32 v{GA}, 4, v{GA}
    v_lshl_add_u32 v{XA}, v{XA}, 8, v{GA}
    """)
    srd(A, sW, PWS, "s81", add="s82")
    A(f"""
    s_mov_b32 s76, {NEG_LOG2E:#x}
    s_waitcnt vmcnt({ng0})
    s_barrier
    """)
    stamp(94)
    for s in range(8):
        A(f"ds_read_b64_tr_b16 {vr(v.WA+4*s,2)}, v{TN} offset:{s*4096}")
        A(f"ds_read_b64_tr_b16 {vr(v.WA+4*s+2,2)}, v{TN} offset:{s*4096+1024}")
        if s: A(f"v_xor_b32 v{GA}, {s*32}, v{XA}")
        A(f"ds_read_b128 {vr(v.XF+4*s,4)}, v{GA if s else XA} offset:{L_X}")
    A(f"s_cmp_lg_u32 s{sG}, 0")
    A("s_cbranch_scc1 K_G1")
    for s in range(8):
        if s: A(f"v_xor_b32 v{GA}, {s*32}, v{XA}")
        A(f"ds_read_b128 {vr(v.U2+4*s,4)}, v{GA if s else XA} offset:{L_X + 16384}")
    A("K_G1:")
    A("s_waitcnt lgkmcnt(0)")
    A("s_barrier")
    for s in range(8):
        A(mfma(v.T, v.WA + 4*s, v.XF + 4*s, "0" if s == 0 else None))
    A(f"s_cmp_lg_u32 s{sG}, 0")
    A("s_cbranch_scc1 K_G2")
    for s in range(8):
        A(mfma(v.T1, v.WA + 4*s, v.U2 + 4*s, "0" if s == 0 else None))
    A("K_G2:")
    A(f"v_xor_b32 v{GA}, 16, v{PA}")
    A("s_nop 9")
    def pout(acc, off):
        for r in range(0, 16, 2):
            A(f"v_mul_f32 v{acc+r}, s76, v{acc+r}")
            A(f"v_mul_f32 v{acc+r+1}, s76, v{acc+r+1}")
            A(f"v_cvt_pk_bf16_f32 v{v.ACC+r//2}, v{acc+r}, v{acc+r+1}")
        A(f"ds_write_b128 v{PA}, {vr(v.ACC,4)} offset:{off}")
        A(f"ds_write_b128 v{GA}, {vr(v.ACC+4,4)} offset:{off}")
    pout(v.T, 0)
    A(f"s_cmp_lg_u32 s{sG}, 0")
    A("s_cbranch_scc1 K_G3")
    pout(v.T1, 16384)
    A("K_G3:")
    A(f"""
    s_waitcnt lgkmcnt(0)
    s_barrier
    ds_read_b128 {vr(v.T,4)}, v{v.t2}
    ds_read_b128 {vr(v.T+4,4)}, v{v.t2} offset:8192
    ds_read_b128 {vr(v.T+8,4)}, v{v.t2} offset:16384
    s_movk_i32 s77, 0x2000
    s_movk_i32 s78, 0x4000
    s_cmp_ge_u32 s3, 4
    s_cselect_b32 s78, 0x40000000, s78
    s_cmp_lg_u32 s3, 0
    s_cbranch_scc1 K_NT2
    buffer_load_dword v{v.FV}, off, {sr(sDB,4)}, 0 sc1
    K_NT2:
    s_waitcnt lgkmcnt(2)
    buffer_store_dwordx4 {vr(v.T,4)}, v{XV}, {sr(sW,4)}, 0 offen {STF}
    s_waitcnt lgkmcnt(1)
    buffer_store_dwordx4 {vr(v.T+4,4)}, v{XV}, {sr(sW,4)}, s77 offen {STF}
    s_waitcnt lgkmcnt(0)
    buffer_store_dwordx4 {vr(v.T+8,4)}, v{XV}, {sr(sW,4)}, s78 offen {STF}
    """)
    n = batch(B_GEM[1])
    A(f"s_waitcnt vmcnt({n})")
    A("K_POST:")
    A(f"""
    s_barrier
    """)
    stamp(4)
    A(f"""
    s_cmp_lg_u32 s3, 0
    s_cbranch_scc1 K_NOFLAG
    v_readfirstlane_b32 s{sTag}, v{v.FV}
    s_cmp_lg_u32 s{sTag}, 0
    s_cbranch_scc1 K_TAGOK
    K_TAG:
    buffer_load_dword v{v.FV}, off, {sr(sDB,4)}, 0 sc1
    s_waitcnt vmcnt(0)
    v_readfirstlane_b32 s{sTag}, v{v.FV}
    s_cmp_eq_u32 s{sTag}, 0
    s_cbranch_scc1 K_TAG
    K_TAGOK:
    s_lshl_b32 s22, s2, 4
    s_mov_b64 exec, 1
    buffer_store_dword v{v.FV}, off, {sr(sFL,4)}, s22 sc1
    s_mov_b64 exec, -1
    K_NOFLAG:
    """)
    assert B_BIN[2] == B_GEM[2]
    batch(B_BIN[2])
    srd(A, sWS, PWS, WS_END if not ST else 0x1000000)
    srd(A, sP, PWS, 0 if opt.get('nop') else N, stride=256)
    srd(A, sE, PE, 0 if opt.get('noe') else E, stride=32)
    srd(A, sOUT, POUT, N * 256)
    srd(A, sD, PDST, E * 4)
    srd(A, sS, PSRC, E * 4)
    m, h, t = v.t0, v.t1, v.OHA
    XA = v.E; GA = v.E + 1; TN = v.E + 2; TPm = v.E + 3
    A(f"""
    s_mov_b32 s{sMode}, 0
    s_mov_b32 s{sRound}, 0
    s_mov_b32 s{sNoBar}, 0
    s_movk_i32 s{sK3F}, 0x3fff
    s_lshl_b32 s{sRing}, s3, 13
    s_add_u32 s{sRing}, s{sRing}, {RING}
    v_and_b32 v{m}, 31, v{L}
    v_mov_b32 v{h}, v{H}
    v_lshl_add_u32 v{TN}, v{H}, 11, v{TRA}
    v_add_u32 v{TN}, {L_W2}, v{TN}
    v_lshl_add_u32 v{TPm}, v{H}, 10, v{TRA}
    v_add_u32 v{TPm}, {L_U2}, v{TPm}
    s_mul_i32 s22, s{sG}, 20
    s_mul_i32 s23, s{sRole}, 40
    s_add_u32 s22, s22, s23
    v_add_u32 v{XA}, s22, v{m}
    v_xor_b32 v{GA}, v{XA}, v{h}
    v_and_b32 v{GA}, 15, v{GA}
    v_lshlrev_b32 v{GA}, 4, v{GA}
    v_lshl_add_u32 v{XA}, v{XA}, 8, v{GA}
    v_cmp_gt_u32 {sr(sN20,2)}, 20, v{m}
    """)
    pi8(A, v.R2, m, t)
    A(f"""
    s_mul_i32 s22, s{sG}, {GSL*8}
    s_add_u32 s22, s22, {REC}
    s_add_u32 s23, s22, 2
    v_add3_u32 v{v.R2}, v{v.R2}, v{h}, s23
    v_lshrrev_b32 v{v.IE}, 2, v{L}
    """)
    pi8(A, v.R1, v.IE, t)
    A(f"v_add_u32 v{v.R1}, s22, v{v.R1}")
    A(f"v_lshrrev_b32 v{v.IE}, 1, v{L}")
    pi8(A, v.Re, v.IE, t)
    A(f"""
    s_lshl_b32 s23, s{sC}, 8
    s_add_u32 s22, s22, s23
    s_add_u32 s22, s22, 4
    v_add_u32 v{v.Re}, s22, v{v.Re}
    v_lshrrev_b32 v{t}, 3, v{m}
    v_xor_b32 v{t}, v{t}, v{h}
    v_and_b32 v{t}, 1, v{t}
    v_lshlrev_b32 v{t}, 4, v{t}
    v_lshl_add_u32 v{v.E_}, v{m}, 5, v{t}
    s_mul_i32 s22, s{sG}, {GEA}
    s_add_u32 s22, s22, {EA - 3072}
    v_add_u32 v{v.E_}, s22, v{v.E_}
    v_lshrrev_b32 v{t}, 2, v{m}
    v_lshlrev_b32 v{v.P0}, 1, v{h}
    v_xor_b32 v{t}, v{t}, v{v.P0}
    v_and_b32 v{t}, 3, v{t}
    v_lshlrev_b32 v{t}, 4, v{t}
    v_lshl_add_u32 v{v.P0}, v{m}, 6, v{t}
    v_add_u32 v{v.P0}, s{sRing}, v{v.P0}
    v_xor_b32 v{v.P1}, 16, v{v.P0}
    v_lshrrev_b32 v{t}, 4, v{L}
    v_xor_b32 v{t}, v{t}, v{L}
    v_and_b32 v{v.IE+1}, 1, v{t}
    v_lshlrev_b32 v{v.IE+1}, 4, v{v.IE+1}
    v_and_b32 v{t}, 3, v{t}
    v_lshlrev_b32 v{t}, 4, v{t}
    s_lshl_b32 s22, s{sC}, 6
    v_add_u32 v{v.IX0+1}, s22, v{t}
    v_mov_b32 v{v.IX1+1}, v{v.IX0+1}
    s_lshl_b32 s22, s3, 2
    s_add_u32 s22, s22, {FLG}
    v_mov_b32 v{v.FW}, s22
    s_lshl_b32 s22, s{sG}, 4
    s_add_u32 s22, s22, {FLG}
    v_and_b32 v{v.FR}, 3, v{L}
    v_lshl_add_u32 v{v.FR}, v{v.FR}, 2, s22
    v_and_b32 v{t}, 8, v{L}
    v_lshlrev_b32 v{t}, 3, v{t}
    v_and_b32 v{v.OHB}, 3, v{L}
    v_lshl_add_u32 v{t}, v{v.OHB}, 4, v{t}
    v_add_u32 v{t}, 16, v{t}
    v_bfe_u32 v{v.QC}, v{L}, 2, 1
    v_cmp_eq_u32 vcc, v{v.QC}, v{h}
    v_lshlrev_b32 v{v.QC}, 3, v{v.QC}
    v_add_u32 v{v.QC}, 16, v{v.QC}
    v_lshlrev_b32 v{v.OHB}, v{v.QC}, v{t}
    v_cndmask_b32 v{t}, 0, v{t}, vcc
    v_cmp_gt_u32 vcc, 16, v{m}
    v_mov_b32 v{v.ONE}, 1.0
    v_mul_u32_u24 v{v.QC}, {GSL}, v{h}
    v_cndmask_b32 v{v.SEL0}, 0, v{t}, vcc
    v_sub_u32 v{v.SEL1}, v{t}, v{v.SEL0}
    v_add_u32 v{v.OHB}, v{v.OHB}, v{v.QC}
    v_lshrrev_b32 v{v.EB}, 3, v0
    v_mul_u32_u24 v{v.EB}, {CH}, v{v.EB}
    v_lshrrev_b32 v{v.QC}, 4, v0
    v_mul_u32_u24 v{v.QC}, 3072, v{v.QC}
    v_and_b32 v{t}, 4, v0
    v_lshl_add_u32 v{v.QC}, v{t}, 2, v{v.QC}
    v_and_b32 v{t}, 8, v0
    v_add_u32 v{v.QC}, v{v.QC}, v{t}
    v_and_b32 v{t}, 3, v0
    v_lshl_add_u32 v{v.QC}, v{t}, 1, v{v.QC}
    v_add_u32 v{v.QC}, {EA + 2048}, v{v.QC}
    v_mov_b32 v{v.ONE+1}, 1.0
    """)
    for r in range(0, 16, 2):
        A(f"v_mov_b64 {P(v.ACC+r)}, 0")
    A("s_waitcnt vmcnt(0)")
    A("s_barrier")
    if not opt.get("b2"): stamp(6)
    for s in range(8):
        if s: A(f"v_xor_b32 v{GA}, {s*32}, v{XA}")
        A(f"ds_read_b128 {vr(v.XF+4*s,4)}, v{GA if s else XA} offset:{L_X}")
    trreads(A, v.WA, TN, 0)
    trreads(A, v.WB, TN, 32768)
    trreads(A, v.U2, TPm, 0, perm=True)
    A(f"v_add_u32 v{TN}, {L_W3 - L_W2}, v{TN}")
    trreads(A, v.W3F, TN, 0, n=1)
    A("s_waitcnt lgkmcnt(0)")
    A("s_barrier")
    A(f"s_mov_b32 s22, {NEG_LOG2E:#x}")
    fill = []
    for r in range(4):
        fill += [f"v_lshlrev_b32 v{v.S}, 16, v{v.W3F+r}", f"v_and_b32 v{v.S+1}, 0xffff0000, v{v.W3F+r}",
                 f"v_mul_f32 v{v.S}, s22, v{v.S}", f"v_mul_f32 v{v.S+1}, s22, v{v.S+1}",
                 f"v_cvt_pk_bf16_f32 v{v.W3F+r}, v{v.S}, v{v.S+1}"]
    fill += f"""v_lshrrev_b32 v{v.t0}, 2, v0
    v_add_u32 v{v.t0}, -1, v{v.t0}
    v_and_b32 v{v.t1}, 1, v{v.t0}
    v_lshlrev_b32 v{v.t1}, 4, v{v.t1}
    v_mov_b32 v{v.OHA}, 0x3f80
    v_lshlrev_b32 v{v.t1}, v{v.t1}, v{v.OHA}
    v_ashrrev_i32 v{v.t0}, 1, v{v.t0}
    v_and_b32 v{v.OHA}, 3, v0
    v_cmp_eq_u32 vcc, v{v.t0}, v{v.OHA}
    v_lshlrev_b32 v{v.t0}, 2, v0
    s_nop 0
    v_cndmask_b32 v{v.t1}, 0, v{v.t1}, vcc""".split("\n")
    fi = 0
    for s in range(8):
        A(mfma(v.E, v.XF + 4*s, v.WA + 4*s, "0" if s == 0 else None))
        for q in range(2):
            if fi < len(fill): A(fill[fi]); fi += 1
        A(mfma(v.RF, v.WB + 4*s, v.XF + 4*s, "0" if s == 0 else None))
        for q in range(2):
            if fi < len(fill): A(fill[fi]); fi += 1
    assert fi == len(fill)
    A(f"""
    v_cmp_gt_u32 vcc, 36, v0
    s_and_saveexec_b64 s[76:77], vcc
    ds_write_b32 v{v.t0}, v{v.t1}
    s_mov_b64 exec, s[76:77]
    s_nop 6
    """)
    for r in range(12):
        A(f"v_mul_f32 v{v.E+r}, s22, v{v.E+r}")
    A(f"""
    v_cvt_pk_bf16_f32 v{v.QS}, v{v.E}, v{v.E+1}
    v_cvt_pk_bf16_f32 v{v.QS+1}, v{v.E+2}, v{v.E+3}
    v_cvt_pk_bf16_f32 v{v.QF+2}, v{v.E+4}, v{v.E+5}
    v_cvt_pk_bf16_f32 v{v.QF+3}, v{v.E+6}, v{v.E+7}
    v_cvt_pk_bf16_f32 v{v.QS+2}, v{v.E+8}, v{v.E+9}
    v_cvt_pk_bf16_f32 v{v.QS+3}, v{v.E+10}, v{v.E+11}
    """)
    A("K2_ROUND:")
    Z = v.eF
    A(f"""
    v_mov_b64 {P(Z)}, 0
    v_mov_b64 {P(Z+2)}, 0
    s_mul_i32 s22, s3, 3072
    s_add_u32 s22, s22, {EA + 2048}
    v_add_u32 v{v.t0}, s22, v{v.t3}
    ds_write_b128 v{v.t0}, {vr(Z,4)}
    ds_write_b128 v{v.t0}, {vr(Z,4)} offset:24576
    ds_write_b128 v{v.t0}, {vr(Z,4)} offset:49152
    s_cmp_ge_u32 s3, 2
    s_cbranch_scc1 K2_Z1
    v_add_u32 v{v.t0}, 73728, v{v.t0}
    ds_write_b128 v{v.t0}, {vr(Z,4)}
    K2_Z1:
    v_mov_b32 v{v.ohF}, 0xffff
    v_mov_b32 v{v.ohF+1}, -1
    v_mov_b64 {P(v.ohF+2)}, {P(v.ohF)}
    ds_write_b128 v{v.t2}, {vr(v.ohF,4)} offset:{REC}
    s_movk_i32 s22, {REC_BYTES // 16 - 512}
    v_cmp_gt_u32 vcc, s22, v0
    s_and_saveexec_b64 s[22:23], vcc
    ds_write_b128 v{v.t2}, {vr(v.ohF,4)} offset:{REC + 8192}
    s_mov_b64 exec, s[22:23]
    s_cmp_ge_u32 s3, 3
    s_cbranch_scc1 K2_Z2
    s_cmp_eq_u32 s3, 0
    s_cselect_b32 s22, 0, -1
    v_mov_b32 v{v.t0}, s22
    v_lshlrev_b32 v{v.t1}, 2, v0
    ds_write_b32 v{v.t1}, v{v.t0} offset:{CNT}
    K2_Z2:
    """)
    for i in range(8):
        A(f"v_mov_b32 v{v.TP+2*i+1}, v{v.IX0+1}")
    A(f"""
    v_mov_b32 v{v.IEa+1}, v{v.IE+1}
    v_mov_b32 v{v.IEb+1}, v{v.IE+1}
    v_mov_b64 {P(v.S)}, 0
    v_mov_b32 v{v.aggF}, 1
    v_mov_b64 {P(v.REC+4)}, -1
    v_mov_b64 {P(v.REC+6)}, -1
    s_cmp_eq_u32 s{sMode}, 0
    s_cbranch_scc1 K2_FASTW
    s_lshl_b32 s22, s{sRound}, 9
    v_add_u32 v{v.EB}, s22, v0
    v_lshlrev_b32 v{v.t0}, 2, v{v.EB}
    buffer_load_dword v{v.REC}, v{v.t0}, {sr(sD,4)}, 0 offen
    buffer_load_dword v{v.REC+1}, v{v.t0}, {sr(sS,4)}, 0 offen
    s_mul_i32 s22, s2, 40
    s_waitcnt vmcnt(0)
    v_subrev_u32 v{v.REC}, s22, v{v.REC}
    v_cmp_le_u32 vcc, 20, v{v.REC}
    v_add_u32 v{v.t0}, 12, v{v.REC}
    s_nop 0
    v_cndmask_b32 v{v.t0}, v{v.REC}, v{v.t0}, vcc
    v_cmp_gt_u32 vcc, 40, v{v.REC}
    v_lshl_or_b32 v{v.t0}, v{v.t0}, 14, v{v.REC+1}
    v_mov_b32 v{v.REC+1}, -1
    v_cndmask_b32 v{v.REC}, -1, v{v.t0}, vcc
    v_mov_b64 {P(v.REC+2)}, -1
    s_waitcnt lgkmcnt(0)
    s_barrier
    s_branch K2_COUNT
    K2_FASTW:
    """)
    stamp(8)
    A(f"""
    s_mul_i32 s22, s2, {BINB}
    s_add_u32 s22, s22, {WS_CELL}
    s_add_u32 s23, s22, 8192
    s_movk_i32 s76, {1000 - 512}
    v_cmp_gt_u32 s[76:77], s76, v0
    s_lshr_b32 s78, s2, 3
    s_mul_i32 s78, s78, 81920
    v_lshlrev_b32 v{v.JK}, 7, v0
    s_cmp_lg_u32 s3, 0
    s_cbranch_scc1 K_POLLED
    s_and_b32 s79, s2, 63
    s_lshl_b32 s79, s79, 7
    s_add_u32 s79, s79, 0x4000
    s_mov_b64 exec, 1
    K_POLL:
    buffer_load_dword v{v.NS}, off, {sr(sFL,4)}, s79 sc1
    s_waitcnt vmcnt(0)
    v_cmp_ne_u32 vcc, s{sTag}, v{v.NS}
    s_cbranch_vccz K_POLLOK
    s_sleep 1
    s_branch K_POLL
    K_POLLOK:
    s_mov_b64 exec, -1
    {"buffer_inv sc1" if opt.get("inv") else ""}
    K_POLLED:
    s_waitcnt lgkmcnt(0)
    s_barrier
    """)
    stamp(10)
    NPF = opt.get("pf", 0)
    A(f"""
    buffer_load_dwordx4 {vr(v.REC,4)}, v{v.t2}, {sr(sWS,4)}, s22 offen {opt.get("cl", "sc1")}
    s_mov_b64 exec, s[76:77]
    buffer_load_dwordx4 {vr(v.REC+4,4)}, v{v.t2}, {sr(sWS,4)}, s23 offen {opt.get("cl", "sc1")}
    s_mov_b64 exec, -1
    ds_read_b128 {vr(v.SEL0,4)}, v{v.SEL0}
    ds_read_b128 {vr(v.SEL1,4)}, v{v.SEL1}
    """)
    npf = 0
    A(f"s_waitcnt vmcnt({1 + npf})")
    A("K2_COUNT:")
    stamp(12)
    for j in range(8):
        if j == 4:
            A(f"s_waitcnt vmcnt({npf})")
        l = A.label("cs")
        A(f"""
        v_cmp_gt_u32 {sr(sM+2*j,2)}, -2, v{v.REC+j}
        v_lshrrev_b32 v{v.AD+j}, 12, v{v.REC+j}
        v_and_b32 v{v.AD+j}, 0xfc, v{v.AD+j}
        s_mov_b64 exec, {sr(sM+2*j,2)}
        ds_add_rtn_u32 v{v.RANK+j}, v{v.AD+j}, v{v.aggF} offset:{CNT}
        s_mov_b64 exec, -1
        """)
    if NPF:
        A(f"s_cmp_lg_u32 s{sMode}, 0")
        A("s_cbranch_scc1 K2_NOPF")
        A("s_lshr_b32 s22, s2, 3")
        A("s_mul_i32 s22, s22, 81920")
        A(f"s_cmp_ge_u32 s3, {min(NPF, 8)}")
        A("s_cselect_b32 s22, 0x40000000, s22")
        A(f"buffer_load_dword v{v.JK2}, v{v.JK}, {sr(sWS,4)}, s22 offen")
        if NPF > 8:
            A("s_add_u32 s22, s22, 65536")
            A(f"s_cmp_ge_u32 s3, {NPF - 8}")
            A("s_cselect_b32 s22, 0x40000000, s22")
            A(f"buffer_load_dword v{v.JK2}, v{v.JK}, {sr(sWS,4)}, s22 offen")
        A("K2_NOPF:")
    A(f"""
    v_cmp_eq_u32 vcc, -2, v{v.REC+3}
    v_cmp_eq_u32 s[22:23], -2, v{v.REC+7}
    v_lshlrev_b32 v{v.t0}, 2, v{L}
    v_mov_b32 v{v.t1}, {FLAG}
    s_or_b64 s[22:23], vcc, s[22:23]
    s_cbranch_scc0 K2_NOMARK
    ds_write_b32 v{v.t1}, v{v.aggF}
    K2_NOMARK:
    s_waitcnt lgkmcnt(0)
    s_barrier
    {"s_memtime s[6:7]" if opt.get("b2") else ""}
    ds_read_b32 v{v.t0}, v{v.t0} offset:{CNT}
    ds_read_b32 v{v.t1}, v{v.t1}
    s_lshl_b32 s22, s{sG}, 5
    s_add_u32 s22, s22, 8
    s_waitcnt lgkmcnt(0)
    """)
    c = v.t0; pd = v.OHA
    A(f"""
    v_add_u32 v{c}, 3, v{c}
    v_and_b32 v{c}, -4, v{c}
    v_max_u32 v{c}, 4, v{c}
    v_cndmask_b32 v{pd}, 0, v{c}, {sr(sN20,2)}
    v_readfirstlane_b32 s87, v{v.t1}
    v_add_u32 v{v.t1}, {64 * CH}, v{v.EB}
    v_add_u32_dpp v{c}, v{pd}, v{pd} row_shr:1 row_mask:0xf bank_mask:0xf bound_ctrl:0
    s_nop 1
    v_add_u32_dpp v{c}, v{c}, v{c} row_shr:2 row_mask:0xf bank_mask:0xf bound_ctrl:0
    s_nop 1
    v_add_u32_dpp v{c}, v{c}, v{c} row_shr:4 row_mask:0xf bank_mask:0xf bound_ctrl:0
    s_nop 1
    v_add_u32_dpp v{c}, v{c}, v{c} row_shr:8 row_mask:0xf bank_mask:0xf bound_ctrl:0
    s_nop 1
    v_add_u32_dpp v{c}, v{c}, v{c} row_bcast:15 row_mask:0xa bank_mask:0xf
    s_nop 0
    v_sub_u32 v{pd}, v{c}, v{pd}
    v_add_u32 v{v.FV}, v{pd}, v{v.OHB}
    """)
    for j in range(8):
        A(f"ds_bpermute_b32 v{v.PK+j}, v{v.AD+j}, v{v.FV}")
    A(f"""
    v_readlane_b32 s{sT0}, v{c}, 31
    v_readlane_b32 s{sT1}, v{c}, 63
    v_readlane_b32 s{sTsw}, v{pd}, s22
    s_add_u32 s{sT0}, s{sT0}, 31
    s_lshr_b32 s{sT0}, s{sT0}, 5
    s_add_u32 s{sT1}, s{sT1}, 31
    s_lshr_b32 s{sT1}, s{sT1}, 5
    s_add_u32 s{sTsw}, s{sTsw}, 31
    s_lshr_b32 s{sTsw}, s{sTsw}, 5
    s_max_u32 s22, s{sT0}, s{sT1}
    s_cmp_eq_u32 s{sG}, 0
    s_cselect_b32 s{sTg}, s{sT0}, s{sT1}
    s_cmp_gt_u32 s22, {TG}
    s_cbranch_scc1 K2_OVF
    s_cmp_lg_u32 s87, -1
    s_cbranch_scc1 K2_OVF
    """)
    W0s = [v.aggF + 2, v.NS, v.NS + 2, v.DS]
    ool = []
    for j in range(8):
        W0 = W0s[j % 4]
        rare = (j % 4) >= 2
        body = f"""
        v_add_u32_sdwa v{v.RANK+j}, v{v.PK+j}, v{v.RANK+j} dst_sel:DWORD dst_unused:UNUSED_PAD src0_sel:WORD_0 src1_sel:DWORD
        v_lshrrev_b32 v{W0+1}, 20, v{v.REC+j}
        v_bfi_b32 v{W0}, s{sK3F}, v{v.REC+j}, v{v.PK+j}
        v_add_u32 v{W0+1}, v{W0+1}, v{v.EB if j < 4 else v.t1}
        v_lshlrev_b32 v{v.PK+j}, 3, v{v.RANK+j}
        v_lshrrev_b32 v{v.RANK+j}, 2, v{v.RANK+j}
        ds_write_b64 v{v.PK+j}, {P(W0)} offset:{REC}
        ds_write_b8 v{v.RANK+j}, v{v.AD+j} offset:{QN}
        """
        if j == 0: A("s_waitcnt lgkmcnt(0)")
        A(f"s_mov_b64 exec, {sr(sM+2*j,2)}")
        if rare:
            l = A.label("ss"); lb = A.label("sb")
            A(f"s_cbranch_execnz {l}")
            A(f"{lb}:")
            ool.append(f"{l}:\n{body}\ns_branch {lb}")
        else:
            A(body)
    A(f"""
    s_mov_b64 exec, -1
    s_waitcnt lgkmcnt(0)
    s_barrier
    K2_START:
    """)
    stamp(14)
    A(f"ds_read_u16 v{v.TP}, v{v.R1}")
    A(f"ds_read_u16 v{v.TP+2}, v{v.R1} offset:64")
    A(f"ds_read_b32 v{v.IEa}, v{v.Re}")
    A(f"ds_read_u8 v{v.t0}, v0 offset:{QN}")
    A(f"ds_read_b32 v{v.IEb}, v{v.Re} offset:1024")
    for i in range(1, 4):
        A(f"ds_read_u16 v{v.TP+4*i}, v{v.R1} offset:{i*256}")
        A(f"ds_read_u16 v{v.TP+4*i+2}, v{v.R1} offset:{i*256+64}")
    A(f"""
    s_lshr_b32 s22, s{sC}, 1
    s_mul_i32 s22, s22, 3072
    s_and_b32 s23, s{sC}, 1
    s_lshl_b32 s23, s23, 10
    s_add_u32 s22, s22, s23
    s_mul_i32 s{sElim}, s{sG}, {GEA}
    s_add_u32 s{sElim}, s{sElim}, {EA}
    s_add_u32 s{sEdst}, s{sElim}, s22
    s_add_u32 s{sElim}, s{sElim}, {GEA}
    s_mov_b32 s{sTile}, 0
    s_mov_b32 m0, s{sRing}
    s_waitcnt lgkmcnt(8)
    buffer_load_dwordx4 {P(v.TP)}, {sr(sP,4)}, 0 idxen offen lds
    s_add_u32 m0, s{sRing}, 1024
    s_cmp_lg_u32 s{sNoBar}, 0
    buffer_load_dwordx4 {P(v.TP+2)}, {sr(sP,4)}, 0 idxen offen lds
    s_cbranch_scc1 K2_NOE0
    s_mov_b32 m0, s{sEdst}
    s_waitcnt lgkmcnt(7)
    buffer_load_dwordx4 {P(v.IEa)}, {sr(sE,4)}, 0 idxen offen lds
    v_cmp_ne_u32 vcc, 0xff, v{v.t0}
    v_and_b32 v{v.t1}, 0x7c, v{v.t0}
    v_lshl_add_u32 v{v.t1}, v{v.t1}, 3, v{v.QC}
    v_lshrrev_b32 v{v.t0}, 1, v{v.t0}
    v_and_b32 v{v.t0}, 16, v{v.t0}
    v_xor_b32 v{v.t1}, v{v.t1}, v{v.t0}
    v_mov_b32 v{v.t0}, 0x3f80
    s_and_saveexec_b64 s[22:23], vcc
    ds_write_b16 v{v.t1}, v{v.t0}
    s_mov_b64 exec, s[22:23]
    s_add_u32 m0, s{sEdst}, 6144
    s_waitcnt lgkmcnt(6)
    buffer_load_dwordx4 {P(v.IEb)}, {sr(sE,4)}, 0 idxen offen lds
    K2_NOE0:
    ds_read_u8 v{v.OH0}, v{v.R2}
    ds_read_u8 v{v.OHA}, v{v.R2} offset:256
    ds_read_u16 v{v.IX0}, v{v.R1} offset:1024
    ds_read_u16 v{v.IX1}, v{v.R1} offset:{1024+64}
    ds_read_b32 v{v.IE}, v{v.Re} offset:2048
    s_add_u32 s{sEdst}, s{sEdst}, 12288
    s_add_u32 m0, s{sRing}, 2048
    s_waitcnt lgkmcnt(5)
    """)
    for i in range(2, 8):
        A(f"buffer_load_dwordx4 {P(v.TP+2*i)}, {sr(sP,4)}, 0 idxen offen lds")
        if i < 7:
            A(f"s_add_u32 m0, s{sRing}, {(i+1)*1024}")
            A("s_nop 0")
    A(f"""
    v_mov_b32 v{v.PROG}, 2
    v_mov_b32 v{v.QF}, v{v.QS}
    v_mov_b32 v{v.QF+1}, v{v.QS+1}
    v_mov_b64 {P(v.NS)}, 0
    v_mov_b64 {P(v.NS+2)}, 0
    v_mov_b64 {P(v.DS)}, {P(v.ONE)}
    v_mov_b64 {P(v.DS+2)}, {P(v.ONE)}
    v_mov_b64 {P(v.MSG)}, 0
    v_mov_b64 {P(v.MSG+2)}, 0
    v_mov_b64 {P(v.aggF)}, 0
    v_mov_b64 {P(v.aggF+2)}, 0
    s_cmp_lg_u32 s{sNoBar}, 0
    s_cbranch_scc1 K2_REDO2
    s_waitcnt vmcnt(7) lgkmcnt(0)
    s_barrier
    s_branch K2_GO
    K2_REDO2:
    s_waitcnt vmcnt(0) lgkmcnt(0)
    K2_GO:
    """)
    stamp(16)
    A(f"""
    ds_read_b128 {vr(v.ohF,4)}, v{v.OH0}
    ds_read_b128 {vr(v.eF,4)}, v{v.E_} offset:3072
    ds_read_b128 {vr(v.pF0,4)}, v{v.P0}
    ds_read_b128 {vr(v.pF1,4)}, v{v.P1}
    s_or_b32 s22, s{sMode}, s{sNoBar}
    s_cmp_lg_u32 s22, 0
    s_cbranch_scc1 K2_SAFEP
    """)
    chain(A, 3, "fast", None, ool, pre=True)
    A("K2_LOOP:")
    for k in range(4):
        stretch(A, k, "fast", ool)
        chain(A, k, "fast", "K2_EXIT", ool)
    A("s_branch K2_LOOP")
    A("K2_EXIT:")
    stamp(18)
    A(f"""
    s_setprio 0
    s_lshr_b32 s23, s{sTg}, 2
    s_mul_i32 s22, s23, 6144
    s_lshl_b32 s23, s23, 10
    v_subrev_u32 v{v.E_}, s22, v{v.E_}
    s_sub_u32 s22, s{sTg}, 1
    s_lshr_b32 s22, s22, 1
    s_mul_i32 s22, s22, 3072
    s_add_u32 s22, s22, {3072 + 2048}
    v_add_u32 v{v.t0}, s22, v{v.E_}
    s_waitcnt lgkmcnt(0)
    ds_read_b128 {vr(v.ohF,4)}, v{v.t0}
    s_bitcmp1_b32 s{sTg}, 0
    s_cbranch_scc0 K2_X1
    {mfma(v.ACC, v.MSG, v.aggF)}
    K2_X1:
    s_or_b32 s22, s{sMode}, s{sNoBar}
    s_cmp_lg_u32 s22, 0
    s_cbranch_scc1 K2_X2
    v_rcp_f32 v{v.RS}, v{v.DS}
    v_rcp_f32 v{v.RS+1}, v{v.DS+1}
    v_rcp_f32 v{v.RS+2}, v{v.DS+2}
    v_rcp_f32 v{v.RS+3}, v{v.DS+3}
    v_fma_f32 v{v.S}, v{v.DS}, v{v.DS+2}, v{v.S}
    v_fma_f32 v{v.S+1}, v{v.DS+1}, v{v.DS+3}, v{v.S+1}
    v_mul_f32 v{v.NS}, v{v.NS}, v{v.RS}
    v_mul_f32 v{v.NS+1}, v{v.NS+1}, v{v.RS+1}
    v_mul_f32 v{v.NS+2}, v{v.NS+2}, v{v.RS+2}
    v_mul_f32 v{v.NS+3}, v{v.NS+3}, v{v.RS+3}
    K2_X2:
    s_bitcmp1_b32 s{sTg}, 0
    s_cbranch_scc0 K2_X3
    v_cvt_pk_bf16_f32 v{v.MSG}, v{v.NS}, v{v.NS+1}
    v_cvt_pk_bf16_f32 v{v.MSG+1}, v{v.NS+2}, v{v.NS+3}
    s_branch K2_X4
    K2_X3:
    v_cvt_pk_bf16_f32 v{v.MSG+2}, v{v.NS}, v{v.NS+1}
    v_cvt_pk_bf16_f32 v{v.MSG+3}, v{v.NS+2}, v{v.NS+3}
    K2_X4:
    v_subrev_u32 v{v.R1}, s23, v{v.R1}
    v_subrev_u32 v{v.R2}, s23, v{v.R2}
    s_waitcnt lgkmcnt(0)
    {mfma(v.ACC, v.MSG, v.ohF)}
    v_subrev_u32 v{v.Re}, s23, v{v.Re}
    v_max_f32 v{v.S}, v{v.S}, v{v.S+1}
    v_add_u32 v{v.t0}, s{sRing}, v{v.t3}
    s_mul_i32 s22, s2, 40
    s_mul_i32 s23, s{sG}, 20
    s_add_u32 s22, s22, s23
    s_lshl_b32 s22, s22, 8
    s_lshl_b32 s23, s{sC}, 6
    s_add_u32 s22, s22, s23
    v_and_b32 v{v.t1}, 31, v{L}
    v_lshlrev_b32 v{v.t1}, 8, v{v.t1}
    v_lshrrev_b32 v{v.FV}, 5, v{L}
    v_lshl_add_u32 v{v.t1}, v{v.FV}, 4, v{v.t1}
    v_add_u32 v{v.t1}, s22, v{v.t1}
    v_bfrev_b32 v{v.FV}, 1
    v_cndmask_b32 v{v.t1}, v{v.FV}, v{v.t1}, {sr(sN20,2)}
    s_cmp_lg_u32 s{sMode}, 0
    s_cbranch_scc1 K2_NEXTR
    K2_FIN:
    s_mov_b32 s22, {NEG_LN2:#x}
    s_mov_b32 s23, {f2u(2.0**60):#x}
    """)
    for s in range(8):
        A(f"v_pk_mul_f32 {P(v.ACC+2*s)}, {P(v.ACC+2*s)}, s[22:23] op_sel_hi:[1,0]")
    for s in range(8):
        A(f"v_cvt_pk_bf16_f32 v{v.E+s}, v{v.ACC+2*s}, v{v.ACC+2*s+1}")
    A(f"v_mov_b64 {P(v.NS)}, 0")
    A(f"v_mov_b32 v{v.S+1}, 0")
    for s in range(8):
        A(f"v_pk_fma_f32 {P(v.S)}, {P(v.ACC+2*s)}, {P(v.NS)}, {P(v.S)}")
    A(f"""
    v_add_f32 v{v.S}, v{v.S}, v{v.S+1}
    s_or_b32 s22, s{sMode}, s{sNoBar}
    v_cmp_nge_f32 vcc, s23, v{v.S}
    s_cmp_lg_u32 s22, 0
    s_waitcnt vmcnt(0)
    s_cbranch_scc1 K2_FIN2
    s_cbranch_vccnz K2_REDO
    K2_FIN2:
    ds_write_b128 v{v.t0}, {vr(v.E,4)}
    ds_write_b128 v{v.t0}, {vr(v.E+4,4)} offset:1024
    s_lshl_b32 s22, s{sG}, 15
    s_add_u32 s22, s22, {RING}
    v_add_u32 v{v.t0}, s22, v{v.t3}
    s_waitcnt lgkmcnt(0)
    s_barrier
    """)
    stamp(96)
    F = v.RF
    for s in range(8):
        A(f"ds_read_b128 {vr(v.XF+4*s,4)}, v{v.t0} offset:{(s >> 1) * 8192 + (s & 1) * 1024}")
    for s in range(8):
        A(f"s_waitcnt lgkmcnt({7-s})")
        A(mfma(F, v.U2 + 4*s, v.XF + 4*s))
    A(f"s_mov_b32 s22, {NEG_LOG2E:#x}")
    A("s_nop 10")
    for r in range(0, 16, 2):
        A(f"v_pk_mul_f32 {P(v.E+r)}, {P(F+r)}, s[22:23] op_sel_hi:[1,0]")
    for r in range(16):
        A(f"v_exp_f32 v{v.E+r}, v{v.E+r}")
    for r in range(0, 16, 2):
        A(f"v_pk_add_f32 {P(v.E+r)}, {P(v.E+r)}, {P(v.ONE)}")
    for r in range(16):
        A(f"v_rcp_f32 v{v.E+r}, v{v.E+r}")
    for r in range(0, 16, 2):
        A(f"v_pk_mul_f32 {P(F+r)}, {P(F+r)}, {P(v.E+r)}")
    O = v.T1
    for r in range(8):
        A(f"v_cvt_pk_bf16_f32 v{O+r}, v{F+2*r}, v{F+2*r+1}")
    A(f"""
    s_nop 1
    v_permlane32_swap_b32 v{O}, v{O+2}
    v_permlane32_swap_b32 v{O+1}, v{O+3}
    v_permlane32_swap_b32 v{O+4}, v{O+6}
    v_permlane32_swap_b32 v{O+5}, v{O+7}
    buffer_store_dwordx4 {vr(O,4)}, v{v.t1}, {sr(sOUT,4)}, 0 offen
    buffer_store_dwordx4 {vr(O+4,4)}, v{v.t1}, {sr(sOUT,4)}, 0 offen offset:32
    """)
    if ST:
        A("s_waitcnt vmcnt(0)")
        A("s_memtime s[98:99]")
        A("s_memrealtime s[100:101]")
        A(f"""
        s_lshl_b32 s22, s2, 3
        s_add_u32 s22, s22, s3
        s_lshl_b32 s22, s22, 6
        s_add_u32 s22, s22, 0x800000
        v_mov_b32 v1, 0
        s_waitcnt lgkmcnt(0)
        """)
        for i, r in enumerate([90, 94, 4, 6, 8, 10, 12, 14, 16, 18, 96, 98, 92, 100, sTg]):
            A(f"v_mov_b32 v2, s{r}")
            A(f"buffer_store_dword v2, v1, {sr(sWS,4)}, s22 offen offset:{4*i}")
    A("K_END:")
    A("s_endpgm")
    A(f"""
    K_MASTER:
    s_memrealtime s[88:89]
    v_readfirstlane_b32 s3, v0
    s_cmp_lg_u32 s3, 0
    s_cbranch_scc1 K_END
    s_waitcnt lgkmcnt(0)
    """)
    srd(A, sDB, PDBG, 256)
    srd(A, sFL, PWS, NBIN * 16, add=WS_FLAG)
    srd(A, sW, PWS, 0x2000, add=WS_FLAG + 0x4000)
    A(f"""
    s_or_b32 s{sTag}, s88, 1
    v_mov_b32 v1, s{sTag}
    s_mov_b64 exec, 1
    buffer_store_dword v1, off, {sr(sDB,4)}, 0 sc1
    s_mov_b64 exec, -1
    v_lshlrev_b32 v2, 4, v0
    v_cmp_gt_u32 vcc, {NBIN - 192}, v0
    v_lshlrev_b32 v3, 7, v0
    s_nop 0
    v_cndmask_b32 v4, 0, v1, vcc
    K_MPOLL:
    buffer_load_dword v8, v2, {sr(sFL,4)}, 0 offen sc1
    buffer_load_dword v9, v2, {sr(sFL,4)}, 0 offen offset:1024 sc1
    buffer_load_dword v10, v2, {sr(sFL,4)}, 0 offen offset:2048 sc1
    buffer_load_dword v11, v2, {sr(sFL,4)}, 0 offen offset:3072 sc1
    s_waitcnt vmcnt(0)
    v_xor_b32 v8, v1, v8
    v_xor_b32 v9, v1, v9
    v_xor_b32 v10, v1, v10
    v_xor_b32 v11, v4, v11
    v_or3_b32 v8, v8, v9, v10
    v_or_b32 v8, v8, v11
    v_cmp_ne_u32 vcc, 0, v8
    s_cbranch_vccnz K_MPOLL
    buffer_store_dword v1, v3, {sr(sW,4)}, 0 offen sc1
    s_endpgm
    """)
    for o in ool: A(o)
    ool = []
    A("K2_SAFEP:")
    chain(A, 3, "safe", None, ool, pre=True)
    A("K2_SAFE:")
    for k in range(4):
        stretch(A, k, "safe", ool)
        chain(A, k, "safe", "K2_EXIT", ool)
    A("s_branch K2_SAFE")
    for o in ool: A(o)
    A(f"""
    K2_OVF:
    s_mov_b32 s{sMode}, 1
    s_waitcnt vmcnt(0) lgkmcnt(0)
    s_barrier
    s_branch K2_ROUND
    K2_NEXTR:
    s_waitcnt vmcnt(0)
    s_add_u32 s{sRound}, s{sRound}, 1
    s_cmp_ge_u32 s{sRound}, {E // 512}
    s_cbranch_scc1 K2_FIN
    s_barrier
    s_branch K2_ROUND
    K2_REDO:
    s_mov_b32 s{sNoBar}, 1
    """)
    for r in range(0, 16, 2):
        A(f"v_mov_b64 {P(v.ACC+r)}, 0")
    for i in range(8):
        A(f"v_mov_b32 v{v.TP+2*i+1}, v{v.IX0+1}")
    A("s_branch K2_START")
    return A.text()

HEADER = """; MPNN edge-MLP layer, fused single kernel (generated by gen/fz.py).
"""
def build(opt):
    out = HEADER + f"; @launch grid=({NBIN+1},1,1) block=(512,1,1) lds={LDS_TOTAL}\n"
    out += '.amdgcn_target "amdgcn-amd-amdhsa--gfx950"\n.text\n'
    out += f".globl {KNAME}\n.p2align 8\n.type {KNAME},@function\n" + gen(opt)
    acc = (NV + 3) // 4 * 4
    out += f""".section .rodata,"a"
.p2align 6
.amdhsa_kernel {KNAME}
  .amdhsa_next_free_vgpr {NV}
  .amdhsa_next_free_sgpr 102
  .amdhsa_accum_offset {acc}
  .amdhsa_group_segment_fixed_size 0
  .amdhsa_kernarg_size 72
  .amdhsa_user_sgpr_count 2
  .amdhsa_user_sgpr_kernarg_segment_ptr 1
  .amdhsa_system_sgpr_workgroup_id_x 1
.end_amdhsa_kernel
"""
    return out

if __name__ == "__main__":
    opt = {}
    for a in sys.argv[2:]:
        k_, v_ = a.split("=")
        opt[k_] = int(v_) if v_.lstrip("-").isdigit() else v_
    open(sys.argv[1], "w").write(build(opt))
```

```python
import sys, struct
from gen import Asm, vr, sr, srd, f2u, NEG_LOG2E, NEG_LN2, PX, PE, PSRC, PDST, PWM, PWU, POUT, PDBG, PWS, load_ptrs

KNAME = "standalone__mpnn_edge_mlp__graph_kernel"
N = 10000; E = 320000
NBIN = 250; NCHUNK = 125; CH = 2560
WS_CELL = 0x280000
WS_FLAG = 0x700000
WS_U = 0x708000
WS_END = WS_U + 0x10000
NWG = NBIN + 3
BIG = 0x7fffffff

CNT = 0x100; QN = 0x200; FLAG = 0x3F0; TRIP = 0x3F4; REC = 0x400
TG = 26; GSL = TG * 32
REC_BYTES = (2 * GSL + 160) * 8
EA = REC + REC_BYTES
GEA = (TG // 2) * 3072
RING = EA + 2 * GEA
JUNK = RING + 65536
LDS_TOTAL = JUNK + 1024
FLG = CNT + 48 * 4
L_X = RING; L_W2 = RING + 0x6000; L_W3 = L_W2 + 32768; L_BN = 0x8000
assert RING % 256 == 0 and LDS_TOTAL <= 163840

class R: pass
v = R()
_n = 1
def alloc(name, n, align=1):
    global _n
    _n = (_n + align - 1) // align * align
    setattr(v, name, _n)
    _n += n
for nm in ("t0", "t1", "t2", "t3", "lane", "FW", "FV", "PROG", "JK", "JK2", "JK3", "OHA", "P1", "FR", "LA"):
    alloc(nm, 1)
TABN = ("E_", "R1", "R2", "Re", "P0", "EB", "QC", "OHB", "S0a", "FRo", "IXo", "IEo", "S1a", "TRA", "OAl", "Z_")
alloc("TAB", 0, 4)
for nm in TABN[:8]:
    alloc(nm, 1)
for nm in ("IX0", "IX1", "IE", "ONE", "S"):
    alloc(nm, 2, 2)
alloc("OA", 1)
for nm in ("W3F", "QF", "QS", "SEL0", "SEL1", "eF", "ohF", "pF0", "pF1", "aggF", "MSG", "NS", "DS", "RS"):
    alloc(nm, 4, 4)
for nm in ("T", "T1", "E", "ACC"):
    alloc(nm, 16, 4)
alloc("U1", 32, 4); alloc("U2", 32, 4); alloc("XF", 32, 4)
NV = _n
assert NV <= 256
for i_, nm in enumerate(TABN[8:]): setattr(v, nm, v.SEL0 + i_)
v.WA = v.ohF
assert v.RS == v.ohF + 28 and v.SEL1 == v.SEL0 + 4 and v.E == v.T1 + 16
v.REC = v.T; v.RANK = v.T + 8; v.AD = v.E; v.PK = v.E + 8
v.W0 = v.T1
v.TPa = v.T1 + 10; v.TPb = v.T1 + 12; v.IEb = v.T1 + 14; v.OH0 = v.pF1

sWS, sP, sE, sX, sOUT, sD, sS = 24, 28, 32, 36, 40, 44, 48
sG, sC, sTg, sTile, sTsw, sTag, sRing, sEdst, sMode, sRound, sRole, sElim = 52, 53, 54, 55, 56, 57, 58, 59, 60, 61, 62, 63
sM = 64
sWm = 64; sDB = 68
sTB = 80
sUT = 82; sLate = 83; sK3F = 84; sT0, sT1 = 85, 86; sRel = 87; sUoff = 88; sPair = 89
sN40 = 36; sG1 = 38; sSl = 101; sE0 = 100

OPT = {}
def P(r): return f"v[{r}:{r+1}]"
def mfma(d, a, b, c=None):
    return f"v_mfma_f32_32x32x16_bf16 {vr(d,16)}, {vr(a,4)}, {vr(b,4)}, {vr(d,16) if c is None else c}"
def pi8v(m):
    return ((m & 5) << 5) | ((m & 18) << 2) | ((m & 8) << 1)

def tables():
    rows = []
    for l in range(64):
        m, h = l & 31, l >> 5
        a16 = 16 + ((l & 8) << 3) + ((l & 3) << 4)
        n_ = l - 20 if l >= 20 else l
        a16n = 16 + ((n_ & 8) << 3) + ((n_ & 3) << 4)
        ohb = (a16n << (16 + 8 * ((n_ >> 2) & 1))) if l < 40 else 0
        sel = a16 if ((l >> 2) & 1) == h else 0
        d = dict(
            E_=m * 32 + (((h ^ (m >> 3)) & 1) << 4) + EA - 3072,
            R1=pi8v(l >> 2) + REC, R2=pi8v(m) + h + 2 + REC, Re=pi8v(l >> 1) + 4 + REC,
            P0=m * 64 + ((((m >> 2) ^ (2 * h)) & 3) << 4) + RING,
            EB=(l >> 3) * CH,
            QC=(l >> 4) * 3072 + ((l & 4) << 2) + (l & 8) + ((l & 3) << 1) + EA + 2048,
            OHB=ohb, FRo=(l & 3) * 4 + FLG,
            IXo=(((l >> 4) ^ l) & 3) << 4, IEo=(((l >> 4) ^ l) & 1) << 4,
            S0a=sel if m < 16 else 0, S1a=sel if m >= 16 else 0,
            TRA=(l & 3) * 8 + ((l >> 2) & 3) * 256 + (((l >> 2) & 3) << 6) + ((l >> 4) & 1) * 32,
            OAl=(m * 256 + h * 16) if m < 20 else 0x40000000, Z_=0)
        rows.append([d[n] for n in TABN])
    out = []
    for b in range(4):
        for l in range(64):
            out.append(".long " + ", ".join(f"{x:#x}" for x in rows[l][4*b:4*b+4]))
    img = [0] * 256
    for e_ in range(8):
        img[4 * (e_ + 1) + (e_ >> 1)] = 0x3f80 << (16 * (e_ & 1))
    for i in range(128, 256): img[i] = 0xffffffff
    for i in range(0, 256, 4):
        out.append(".long " + ", ".join(f"{x:#x}" for x in img[i:i+4]))
    for i in range(64):
        out.append(".long 0xffff, 0xffffffff, 0xffff, 0xffffffff")
    return "\n".join(out) + "\n"

def lst(A, k, variant, r):
    if OPT.get("ls") and variant == "fast" and k == OPT["ls"] - 1: A(f"s_memtime s[{r}:{r+1}]")

def u_load(A, i):
    off = (i >> 3) * 32768 + (i & 7) * 1024
    A(f"s_add_u32 s22, s{sUoff}, {off & ~4095}")
    A(f"buffer_load_dwordx4 {vr(v.U1+4*i,4)}, v{v.t3}, {sr(sWS,4)}, s22 offen offset:{off & 4095}")

EK = 1
def chain(A, k, variant, exit_label, ool, pre=False, mid=None):
    kk = k if k < 3 else -1
    safe = variant == "safe"
    if not pre:
        A("s_setprio 2")
        A(f"s_add_u32 s{sTile}, s{sTile}, 1")
        A(f"s_cmp_ge_u32 s{sTile}, s{sTg}")
        A(f"s_cbranch_scc1 {exit_label}")
        lsw = A.label("sw"); lswb = A.label("swb")
        A(f"s_cmp_eq_u32 s{sTile}, s{sTsw}")
        A(f"s_cbranch_scc1 {lsw}")
        A(f"{lswb}:")
        ool.append(f"{lsw}:\nv_mov_b32 v{v.QF}, v{v.QS+2}\nv_mov_b32 v{v.QF+1}, v{v.QS+3}\ns_branch {lswb}")
        lst(A, k, variant, 10)
    A("s_waitcnt lgkmcnt(0)")
    if k % 2 == 0:
        A(mfma(v.ACC, v.MSG, v.aggF))
    n = 4 + (1 if ((k - 1) & 3) == EK or ((k - 2) & 3) == EK else 0)
    if pre: n = 5
    k2_ = kk + 2
    A(mfma(v.T, v.eF, v.W3F, "0"))
    A(f"ds_read_b128 {vr(v.eF,4)}, v{v.E_} offset:{3072 + (k2_ >> 1) * 3072 + (k2_ & 1) * 1024}")
    A(mfma(v.T, v.ohF, v.QF))
    A(f"ds_read_b128 {vr(v.ohF,4)}, v{v.OHA}")
    A(f"ds_read_u8 v{v.OHA}, v{v.R2} offset:{(kk + 3) * 256}")
    A(mfma(v.T, v.pF0, v.SEL0))
    A(mfma(v.T, v.pF1, v.SEL1))
    A(f"s_setprio 0")
    lst(A, k, variant, 14)
    if mid: mid()
    A(f"s_waitcnt vmcnt({n})" + (" lgkmcnt(0)" if pre else ""))
    n_after = 2
    if k == EK:
        A(f"s_cmp_lt_u32 s{sEdst}, s{sElim}")
        A(f"s_cselect_b32 m0, s{sEdst}, {JUNK}")
        A(f"s_add_u32 s{sEdst}, s{sEdst}, 6144")
        A(f"buffer_load_dwordx4 {P(v.IE)}, {sr(sE,4)}, 0 idxen offen lds")
        A(f"ds_read_b32 v{v.FV}, v{v.FR}")
        n_after += 5
    A(f"s_add_u32 m0, s{sRing}, {((k + 1) & 3) * 2048}")
    A(f"ds_read_b128 {vr(v.pF0,4)}, v{v.P0} offset:{((k + 2) & 3) * 2048}")
    A(f"buffer_load_dwordx4 {P(v.IX0)}, {sr(sP,4)}, 0 idxen offen lds")
    A(f"s_add_u32 m0, s{sRing}, {((k + 1) & 3) * 2048 + 1024}")
    A(f"ds_read_b128 {vr(v.pF1,4)}, v{v.P1} offset:{((k + 2) & 3) * 2048}")
    A(f"buffer_load_dwordx4 {P(v.IX1)}, {sr(sP,4)}, 0 idxen offen lds")
    A(f"ds_read_u16 v{v.IX0}, v{v.R1} offset:{(kk + 6) * 256}")
    A(f"ds_read_u16 v{v.IX1}, v{v.R1} offset:{(kk + 6) * 256 + 64}")
    n_after += 8
    if k % 2 == 1 and not pre:
        A(f"ds_read_b128 {vr(v.aggF,4)}, v{v.E_} offset:{(1 if k == 1 else 0) * 3072 + 2048}")
        n_after += 1
    if k == ((EK + 3) & 3):
        A("s_mov_b64 exec, 1")
        A(f"ds_write_b32 v{v.FW}, v{v.PROG}")
        A("s_mov_b64 exec, -1")
        A(f"ds_read_b32 v{v.IE}, v{v.Re} offset:{2 * 1024}")
        n_after += 4
    if not safe and not pre:
        lv = A.label("uv"); lvb = A.label("vb")
        A(f"s_sub_u32 s23, s{sTile}, s{sUT}")
        A(f"s_cmp_lt_u32 s23, 8")
        A(f"s_cbranch_scc1 {lv}")
        A(f"{lvb}:")
        n_after += 3
        B = Asm()
        B(f"{lv}:")
        B(f"s_cmp_ge_u32 s23, 4")
        B(f"s_cbranch_scc1 {lv}x")
        u_load(B, 2*k); u_load(B, 2*k+1)
        B(f"s_branch {lvb}")
        B(f"{lv}x:")
        u_load(B, 8+2*k); u_load(B, 8+2*k+1)
        B(f"s_branch {lvb}")
        ool.append(B.text())
    if n_after < 12:
        A(f"s_nop {12 - n_after - 1}")
    lst(A, k, variant, 12)

def stretch(A, k, variant, ool):
    T = v.T; E = v.E
    order = [0, 1, 8, 9, 2, 3, 10, 11, 4, 5, 12, 13, 6, 7, 14, 15]
    lst(A, k, variant, 94)
    for r in order:
        A(f"v_exp_f32 v{E+r}, v{T+r}")
    if variant != "safe":
        for r in range(4):
            A(f"v_rcp_f32 v{v.RS+r}, v{v.DS+r}")
    if k == 3:
        for s in (f"v_add_u32 v{v.E_}, 6144, v{v.E_}", f"v_add_u32 v{v.R1}, 1024, v{v.R1}",
                  f"v_add_u32 v{v.R2}, 1024, v{v.R2}", f"v_add_u32 v{v.Re}, 1024, v{v.Re}"): A(s)
    if k == ((EK + 3) & 3):
        A(f"v_add_u32 v{v.PROG}, 1, v{v.PROG}")
    if k == 2:
        lw = A.label("fw"); lb = A.label("fb")
        A("s_waitcnt lgkmcnt(0)")
        A(f"v_cmp_gt_u32 vcc, v{v.PROG}, v{v.FV}")
        ool.append(f"{lw}:\nds_read_b32 v{v.FV}, v{v.FR}\ns_waitcnt lgkmcnt(0)\nv_cmp_gt_u32 vcc, v{v.PROG}, v{v.FV}\ns_cbranch_vccnz {lw}\ns_branch {lb}")
    lst(A, k, variant, 4)
    A("s_setprio 1")
    mo = v.MSG + 2 * ((k + 1) % 2)
    if variant != "safe":
        A(f"v_pk_fma_f32 {P(v.S)}, {P(v.DS)}, {P(v.DS+2)}, {P(v.S)}")
        A(f"v_pk_mul_f32 {P(v.NS)}, {P(v.NS)}, {P(v.RS)}")
        A(f"v_pk_mul_f32 {P(v.NS+2)}, {P(v.NS+2)}, {P(v.RS+2)}")
    A(f"v_cvt_pk_bf16_f32 v{mo}, v{v.NS}, v{v.NS+1}")
    A(f"v_cvt_pk_bf16_f32 v{mo+1}, v{v.NS+2}, v{v.NS+3}")
    lst(A, k, variant, 6)
    if variant != "safe":
        ops = []
        for gi, g in enumerate((0, 8)):
            t, e = T + g, E + g
            o = [f"v_pk_add_f32 {P(e)}, {P(e)}, {P(v.ONE)}"]
            for u in (1, 2, 3):
                o.append(f"v_pk_fma_f32 {P(t)}, {P(t)}, {P(e+2*u)}, {P(t)}")
                o.append(f"v_pk_fma_f32 {P(t if u < 3 else v.NS+2*gi)}, {P(t+2*u)}, {P(e)}, {P(t)}")
                o.append(f"v_pk_fma_f32 {P(e if u < 3 else v.DS+2*gi)}, {P(e)}, {P(e+2*u)}, {P(e)}")
            ops.append(o)
        for a, b in zip(*ops):
            A(a); A(b)
    else:
        for r in range(0, 16, 2):
            A(f"v_pk_add_f32 {P(E+r)}, {P(E+r)}, {P(v.ONE)}")
        for r in range(16):
            A(f"v_rcp_f32 v{E+r}, v{E+r}")
        A("s_nop 0")
        for u in range(4):
            for gi, g in enumerate((0, 8)):
                if u == 0:
                    A(f"v_pk_mul_f32 {P(T+g)}, {P(T+g)}, {P(E+g)}")
                else:
                    A(f"v_pk_fma_f32 {P(T+g if u < 3 else v.NS+2*gi)}, {P(T+g+2*u)}, {P(E+g+2*u)}, {P(T+g)}")
    if k == 2:
        A(f"s_cbranch_vccnz {lw}")
        A(f"{lb}:")
    lst(A, k, variant, 8)

def gen(opt):
    OPT.clear(); OPT.update(opt)
    A = Asm()
    L = v.lane
    ST = opt.get("stamp", 0)
    PTS = opt.get("pts", "").split(",") if opt.get("pts") else []
    PSL = [44, 46, 48, 50, 96]
    def pt(name):
        if name in PTS:
            r = PSL[PTS.index(name)]
            A(f"s_memtime s[{r}:{r+1}]")
    def stamp(r, real=False):
        if PTS and r == 96: return
        if opt.get("ls") and r in (94, 4, 6, 8, 10, 12, 14): return
        if ST: A(f"s_mem{'real' if real else ''}time s[{r}:{r+1}]")
    ool = []
    WV = v.eF; XV = v.eF + 1; H = v.eF + 2; TRA = v.TRA
    A(f"{KNAME}:")
    stamp(90); stamp(92, True)
    A(f"s_cmp_ge_u32 s2, {NWG}")
    A("s_cbranch_scc1 K_END")
    load_ptrs(A)
    A(f"""
    v_lshrrev_b32 v{v.t0}, 6, v0
    v_and_b32 v{L}, 63, v0
    v_readfirstlane_b32 s3, v{v.t0}
    v_lshlrev_b32 v{v.t3}, 4, v{L}
    s_getpc_b64 {sr(sTB,2)}
    s_add_u32 s{sTB}, s{sTB}, K_TABLE@rel32@lo+4
    s_addc_u32 s{sTB+1}, s{sTB+1}, K_TABLE@rel32@hi+12
    global_load_dwordx4 {vr(v.SEL1,4)}, v{v.t3}, {sr(sTB,2)} offset:3072
    global_load_dwordx4 {vr(v.TAB,4)}, v{v.t3}, {sr(sTB,2)}
    global_load_dwordx4 {vr(v.TAB+4,4)}, v{v.t3}, {sr(sTB,2)} offset:1024
    global_load_dwordx4 {vr(v.SEL0,4)}, v{v.t3}, {sr(sTB,2)} offset:2048
    v_lshlrev_b32 v{v.t2}, 4, v0
    v_lshrrev_b32 v{WV}, 2, v{v.t3}
    v_lshrrev_b32 v{XV}, 4, v{v.t2}
    v_and_b32 v{WV}, 0xc0, v{WV}
    v_and_b32 v{XV}, 0xf0, v{XV}
    v_xor_b32 v{WV}, v{WV}, v{v.t3}
    v_xor_b32 v{XV}, v{XV}, v{v.t2}
    s_lshr_b32 s{sG}, s3, 2
    s_and_b32 s{sC}, s3, 3
    s_cmp_lt_u32 s2, 8
    s_cbranch_scc1 K_LOW
    K_LOWB:
    s_sub_u32 s23, s2, 3
    s_lshr_b32 s{sSl}, s23, 3
    s_cmp_ge_u32 s23, {NCHUNK}
    s_cselect_b32 s{sRole}, 1, 0
    s_cselect_b32 s22, {NCHUNK}, 0
    s_sub_u32 s{sPair}, s23, s22
    s_lshl_b32 s2, s{sPair}, 1
    s_add_u32 s2, s2, s{sRole}
    s_mul_i32 s{sUT}, s{sPair}, {80*256}
    s_sub_u32 s{sX+2}, {N*256}, s{sUT}
    s_mov_b32 s{sX+3}, 0x00020000
    s_lshl_b32 s76, s3, 10
    s_lshl_b32 s77, s3, 12
    s_cmp_eq_u32 s{sRole}, 0
    s_waitcnt lgkmcnt(0)
    s_cbranch_scc0 K_GEMM
    """)
    ool.append(f"""K_LOW:
    s_cmp_lg_u32 s3, 7
    s_cbranch_scc1 K_LOW2
    s_getpc_b64 s[22:23]
    K_PC:
    s_sub_u32 s22, s22, K_PC-{KNAME}
    s_subb_u32 s23, s23, 0
    v_lshlrev_b32 v{v.JK}, 7, v{L}
    v_add_u32 v{v.JK2}, 0x2000, v{v.JK}
    v_min_u32 v{v.JK2}, K_CODE_END-{KNAME}-4, v{v.JK2}
    global_load_dword v{v.PROG}, v{v.JK}, s[22:23]
    global_load_dword v{v.FV}, v{v.JK2}, s[22:23]
    K_LOW2:
    s_cmp_lt_u32 s2, 3
    s_cbranch_scc1 K_SPECIAL
    s_branch K_LOWB""")
    def xdma(n):
        A(f"""
        s_add_u32 s{sX}, s{PX}, s{sUT}
        s_addc_u32 s{sX+1}, s{PX+1}, 0
        s_add_u32 m0, s76, {L_X}
        s_movk_i32 s23, 0x2000
        buffer_load_dwordx4 v{XV}, {sr(sX,4)}, 0 offen lds
        s_add_u32 m0, s76, {L_X + 8192}
        s_movk_i32 s22, 0x4000
        buffer_load_dwordx4 v{XV}, {sr(sX,4)}, s23 offen lds
        """)
        if n == 3:
            A(f"s_add_u32 m0, s76, {L_X + 16384}")
            A("s_nop 0")
            A(f"buffer_load_dwordx4 v{XV}, {sr(sX,4)}, s22 offen lds")
    def wdma(soff, lds):
        A(f"s_add_u32 m0, s77, {lds}")
        if soff: A(f"s_add_u32 s22, s77, {soff}")
        else: A("s_nop 0")
        for q in range(4):
            A(f"buffer_load_dwordx4 v{WV}, {sr(sWm,4)}, s{22 if soff else 77} offen offset:{q*1024} lds")
    def w23dma():
        wdma(32768, L_W2)
        A(f"s_add_u32 m0, s76, {L_W3}")
        A(f"s_add_u32 s22, s76, 65536")
        A(f"buffer_load_dwordx4 v{WV}, {sr(sWm,4)}, s22 offen lds")
    def sconsts():
        srd(A, sP, PWS, 0 if opt.get('nop') else N, stride=256)
        srd(A, sE, PE, 0 if opt.get('noe') else E, stride=32)
        srd(A, sOUT, POUT, N * 256)
        srd(A, sDB, PDBG, 256)
        A(f"""
        s_mov_b32 s{sMode}, 0
        s_movk_i32 s{sK3F}, 0x3fff
        s_lshl_b32 s{sRing}, s3, 13
        s_lshr_b32 s22, s{sC}, 1
        s_mul_i32 s22, s22, 3072
        s_bfe_u32 s23, s{sC}, 0x10000
        s_lshl_b32 s23, s23, 10
        s_add_u32 s22, s22, s23
        s_mul_i32 s{sElim}, s{sG}, {GEA}
        s_add_u32 s{sE0}, s{sElim}, s22
        s_add_u32 s{sE0}, s{sE0}, {EA}
        s_and_b32 s{sRel}, s2, 63
        s_lshl_b32 s{sRel}, s{sRel}, 7
        s_add_u32 s{sRel}, s{sRel}, {WS_FLAG + 0x4000}
        """)
    def vconsts():
        A(f"""
        v_add_u32 v{v.P0}, s{sRing}, v{v.P0}
        v_add_u32 v{v.E_}, s{sElim}, v{v.E_}
        s_mul_i32 s22, s{sG}, {GSL*8}
        v_xor_b32 v{v.P1}, 16, v{v.P0}
        v_add_u32 v{v.R1}, s22, v{v.R1}
        v_add_u32 v{v.R2}, s22, v{v.R2}
        s_lshl_b32 s23, s{sC}, 8
        s_add_u32 s22, s22, s23
        v_add_u32 v{v.Re}, s22, v{v.Re}
        s_lshl_b32 s22, s{sC}, 6
        v_or_b32 v{v.IX0+1}, s22, v{v.IXo}
        v_or_b32 v{v.IX1+1}, s22, v{v.IXo}
        v_xor_b32 v{TRA}, s22, v{TRA}
        s_mul_i32 s23, s2, 40
        s_mul_i32 s78, s{sG}, 20
        s_add_u32 s23, s23, s78
        s_lshl_b32 s23, s23, 8
        s_add_u32 s23, s23, s22
        v_add_u32 v{v.OA}, s23, v{v.OAl}
        v_mov_b32 v{v.IE+1}, v{v.IEo}
        s_mul_i32 s22, s3, {8*CH}
        v_add_u32 v{v.EB}, s22, v{v.EB}
        s_mul_i32 s22, s3, {4*3072}
        v_add_u32 v{v.QC}, s22, v{v.QC}
        s_lshl_b32 s22, s3, 2
        v_add_u32 v{v.FW}, s22, v{v.FRo}
        s_lshl_b32 s22, s{sG}, 4
        v_add_u32 v{v.FR}, s22, v{v.FRo}
        v_lshrrev_b32 v{H}, 5, v{L}
        s_add_u32 s{sRing}, s{sRing}, {RING}
        s_add_u32 s{sElim}, s{sElim}, {EA + GEA}
        """)
    def lds_init():
        A(f"""
        s_mul_i32 s22, s3, 3072
        s_add_u32 m0, s22, {EA + 2048}
        s_brev_b32 s23, 2
        buffer_load_dwordx4 v{v.t3}, {sr(sWS,4)}, s23 offen lds
        s_add_u32 m0, s22, {EA + 2048 + 24576}
        s_cmp_lt_u32 s3, 2
        buffer_load_dwordx4 v{v.t3}, {sr(sWS,4)}, s23 offen lds
        s_cselect_b32 s78, 0, {JUNK - (EA + 2048 + 73728) - 7 * 3072}
        s_add_u32 m0, s22, {EA + 2048 + 49152}
        s_cselect_b32 s79, s22, {7 * 3072}
        buffer_load_dwordx4 v{v.t3}, {sr(sWS,4)}, s23 offen lds
        """.replace("s_cselect_b32 s78, 0, " + str(JUNK - (EA + 2048 + 73728) - 7 * 3072) + "\n", "").replace(
            f"        s_add_u32 m0, s22, {EA + 2048 + 49152}\n        s_cselect_b32 s79, s22, {7 * 3072}\n",
            f"        s_cselect_b32 s79, s22, {JUNK - (EA + 2048 + 73728)}\n        s_add_u32 m0, s22, {EA + 2048 + 49152}\n        s_lshl_b32 s22, s3, 10\n"))
        A(f"""
        s_add_u32 m0, s79, {EA + 2048 + 73728}
        s_add_u32 s78, s{sTB}, 4096
        buffer_load_dwordx4 v{v.t3}, {sr(sWS,4)}, s23 offen lds
        s_addc_u32 s79, s{sTB+1}, 0
        s_add_u32 m0, s22, {REC - 1024}
        s_cmp_eq_u32 s3, 7
        global_load_lds_dwordx4 v{v.t3}, s[78:79] offset:1024
        s_cbranch_scc1 {A.label('i7')}
        """)
        l7 = f"L_i7_{A.uid}"
        A(f"""
        s_add_u32 m0, s22, {REC + 8192 - 1024}
        s_nop 0
        global_load_lds_dwordx4 v{v.t3}, s[78:79] offset:1024
        {l7}b:
        """)
        ool.append(f"{l7}:\ns_mov_b32 m0, 0\ns_nop 0\nglobal_load_lds_dwordx4 v{v.t3}, s[78:79]\ns_branch {l7}b")
    def tagload(lbl):
        A(f"""
        s_cmp_lg_u32 s3, 0
        s_cbranch_scc1 {lbl}
        buffer_load_dword v{v.FV}, off, {sr(sDB,4)}, 0 sc1
        {lbl}:
        """)
    def qaddr():
        XA = v.E; GA = v.E + 1; TN = v.E + 2
        A(f"""
        s_mul_i32 s22, s{sG}, 20
        s_mul_i32 s23, s{sRole}, 40
        s_add_u32 s22, s22, s23
        v_and_b32 v{XA}, 31, v{L}
        v_add_u32 v{XA}, s22, v{XA}
        v_xor_b32 v{GA}, v{XA}, v{H}
        v_and_b32 v{GA}, 15, v{GA}
        v_lshl_or_b32 v{XA}, v{XA}, 4, v{GA}
        s_mov_b32 s22, {L_X}
        v_lshl_add_u32 v{XA}, v{XA}, 4, s22
        v_lshl_add_u32 v{TN}, v{H}, 11, v{TRA}
        v_add_u32 v{TN}, {L_W2}, v{TN}
        """)
    def qreads():
        XA = v.E; GA = v.E + 1; TN = v.E + 2
        for s_ in range(8):
            A(f"ds_read_b64_tr_b16 {vr(v.WA+4*s_,2)}, v{TN} offset:{s_*4096}")
            A(f"ds_read_b64_tr_b16 {vr(v.WA+4*s_+2,2)}, v{TN} offset:{s_*4096+1024}")
            if s_: A(f"v_xor_b32 v{GA}, {s_*32}, v{XA}")
            A(f"ds_read_b128 {vr(v.XF+4*s_,4)}, v{GA if s_ else XA}")
        A(f"ds_read_b64_tr_b16 {vr(v.W3F,2)}, v{TN} offset:32768")
        A(f"ds_read_b64_tr_b16 {vr(v.W3F+2,2)}, v{TN} offset:33792")
    def qmfma():
        for s_ in range(8):
            A(f"s_waitcnt lgkmcnt({min(15, 3*(7-s_) + 2)})")
            A(mfma(v.E, v.XF + 4*s_, v.WA + 4*s_, "0" if s_ == 0 else None))
            A(f"v_mov_b64 {P(v.ACC+2*s_)}, 0")
        A(f"""
        s_mov_b32 s72, {NEG_LOG2E:#x}
        v_cmp_gt_u32 {sr(sN40,2)}, 40, v{L}
        v_cmp_le_u32 {sr(sG1,2)}, 20, v{L}
        v_mov_b32 v{v.ONE}, 1.0
        v_mov_b32 v{v.ONE+1}, 1.0
        s_waitcnt lgkmcnt(0)
        """)
        for r in range(4):
            A(f"""
            v_lshlrev_b32 v{v.S}, 16, v{v.W3F+r}
            v_and_b32 v{v.S+1}, 0xffff0000, v{v.W3F+r}
            v_mul_f32 v{v.S}, s72, v{v.S}
            v_mul_f32 v{v.S+1}, s72, v{v.S+1}
            v_cvt_pk_bf16_f32 v{v.W3F+r}, v{v.S}, v{v.S+1}
            """)
    def post(x):
        A(f"""
        s_cmp_lg_u32 s3, 0
        s_cbranch_scc1 K_NP{x}
        v_readfirstlane_b32 s{sTag}, v{v.FV}
        s_cmp_eq_u32 s{sTag}, 0
        s_cbranch_scc1 K_TAG{x}
        K_TAGOK{x}:
        s_mov_b64 exec, 1
        buffer_store_dword v{v.FV}, off, {sr(sWS,4)}, s{sUoff} sc1
        s_mov_b64 exec, -1
        {"s_waitcnt vmcnt(7)" if x == "A" else ""}
        {"s_branch K_NQA" if x == "A" else ""}
        K_NP{x}:
        """)
        ool.append(f"K_TAG{x}:\nbuffer_load_dword v{v.FV}, off, {sr(sDB,4)}, 0 sc1\ns_waitcnt vmcnt(0)\nv_readfirstlane_b32 s{sTag}, v{v.FV}\ns_cmp_eq_u32 s{sTag}, 0\ns_cbranch_scc1 K_TAG{x}\ns_branch K_TAGOK{x}")
    MC = opt.get("mc", 0)
    D, S, RK, AD = v.T, v.T + 8, v.T1, v.T1 + 8
    CW = v.E
    A(f"s_mul_i32 s22, s{sPair}, {CH*4}")
    srd(A, sD, PDST, CH * 4, add="s22")
    A(f"""
    v_lshlrev_b32 v{v.t1}, 2, v0
    s_movk_i32 s23, 0x2000
    buffer_load_dwordx4 {vr(D,4)}, v{v.t2}, {sr(sD,4)}, 0 offen
    buffer_load_dword v{D+4}, v{v.t1}, {sr(sD,4)}, s23 offen
    """)
    srd(A, sS, PSRC, CH * 4, add="s22")
    A(f"""
    buffer_load_dwordx4 {vr(S,4)}, v{v.t2}, {sr(sS,4)}, 0 offen
    buffer_load_dword v{S+4}, v{v.t1}, {sr(sS,4)}, s23 offen
    v_mov_b64 {P(CW)}, -1
    v_mov_b64 {P(CW+2)}, -1
    v_mov_b32 v{CW+4}, 0
    ds_write_b128 v{v.t2}, {vr(CW,4)}
    ds_write_b128 v{v.t2}, {vr(CW,4)} offset:8192
    ds_write_b128 v{v.t2}, {vr(CW,4)} offset:16384
    ds_write_b128 v{v.t2}, {vr(CW,4)} offset:24576
    ds_write_b32 v{v.t1}, v{CW+4} offset:32768
    """)
    srd(A, sWm, PWM, 272 * 256)
    EARLY0 = opt.get("e0", 0)
    if EARLY0:
        xdma(2); w23dma()
    nb0 = 7 if EARLY0 else 0
    srd(A, sWS, PWS, WS_END if not ST else 0x1000000)
    sconsts()
    A(f"""
    v_lshlrev_b32 v{CW+6}, 22, v0
    v_add_u32 v{CW+7}, 0x800, v0
    v_lshlrev_b32 v{CW+7}, 20, v{CW+7}
    v_mov_b32 v{CW+5}, 16
    s_mov_b32 s72, -10
    s_mov_b32 s73, 0x100000
    s_mov_b32 s74, 0x200000
    s_mov_b32 s75, 0x300000
    s_lshl_b32 s78, s{sPair}, 15
    s_add_u32 s78, s78, {WS_CELL}
    s_lshl_b32 s{sUoff}, s{sPair}, {4 if MC else 6}
    s_add_u32 s{sUoff}, s{sUoff}, {WS_FLAG}
    s_movk_i32 s79, {31*16}
    s_waitcnt lgkmcnt(0)
    s_barrier
    s_waitcnt vmcnt({2 + nb0})
    """)
    stamp(94)
    t = CW + 8
    for j in range(5):
        A(f"""
        v_mul_u32_u24 v{AD+j}, 0xcccd, v{D+j}
        v_lshrrev_b32 v{AD+j}, 19, v{AD+j}
        v_and_b32 v{AD+j}, -4, v{AD+j}
        ds_add_rtn_u32 v{RK+j}, v{AD+j}, v{CW+5} offset:32768
        """)
    for j in range(5):
        A(f"v_mad_i32_i24 v{D+j}, v{AD+j}, s72, v{D+j}")
    A(f"s_waitcnt vmcnt({nb0})")
    for j in range(5):
        d = D + j
        A(f"v_lshl_or_b32 v{d}, v{d}, 14, v{S+j}")
        if j == 0: A(f"v_add_u32 v{d}, v{d}, v{CW+6}")
        elif j < 4: A(f"v_add3_u32 v{d}, v{d}, v{CW+6}, s{72+j}")
        else: A(f"v_add_u32 v{d}, v{d}, v{CW+7}")
    A("s_waitcnt lgkmcnt(0)")
    pt("rk")
    A(f"v_max3_u32 v{t}, v{RK}, v{RK+1}, v{RK+2}")
    A(f"v_max3_u32 v{t}, v{t}, v{RK+3}, v{RK+4}")
    A(f"v_cmp_le_u32 vcc, s79, v{t}")
    A("s_cbranch_vccnz K_BOVF")
    A("K_BOVB:")
    B = Asm()
    B("K_BOVF:")
    B(f"v_mov_b32 v{t}, -2")
    for j in range(5):
        B(f"v_cmp_le_u32 vcc, s79, v{RK+j}")
        B(f"v_min_u32 v{RK+j}, s79, v{RK+j}")
        B("s_nop 0")
        B(f"v_cndmask_b32 v{D+j}, v{D+j}, v{t}, vcc")
    B("s_branch K_BOVB")
    ool.append(B.text())
    for j in range(5):
        r = RK + j
        A(f"""
        v_lshrrev_b32 v{t}, 5, v{r}
        v_and_b32 v{r}, 0x70, v{r}
        v_and_or_b32 v{r}, v{t}, 12, v{r}
        v_lshl_add_u32 v{r}, v{AD+j}, 5, v{r}
        ds_write_b32 v{r}, v{D+j}
        """)
    tagload("K_NT1")
    A(f"""
    s_add_u32 s73, s78, 8192
    s_add_u32 s74, s78, 16384
    s_add_u32 s75, s78, 24576
    s_waitcnt lgkmcnt(0)
    s_barrier
    """)
    pt("cb")
    A(f"""
    ds_read_b128 {vr(v.T,4)}, v{v.t2}
    ds_read_b128 {vr(v.T+4,4)}, v{v.t2} offset:8192
    ds_read_b128 {vr(v.T+8,4)}, v{v.t2} offset:16384
    ds_read_b128 {vr(v.T+12,4)}, v{v.t2} offset:24576
    s_waitcnt lgkmcnt(3)
    buffer_store_dwordx4 {vr(v.T,4)}, v{v.t2}, {sr(sWS,4)}, s78 offen sc1
    s_waitcnt lgkmcnt(2)
    buffer_store_dwordx4 {vr(v.T+4,4)}, v{v.t2}, {sr(sWS,4)}, s73 offen sc1
    s_waitcnt lgkmcnt(1)
    buffer_store_dwordx4 {vr(v.T+8,4)}, v{v.t2}, {sr(sWS,4)}, s74 offen sc1
    s_waitcnt lgkmcnt(0)
    buffer_store_dwordx4 {vr(v.T+12,4)}, v{v.t2}, {sr(sWS,4)}, s75 offen sc1
    """)
    stamp(4)
    xdma(2); w23dma()
    vconsts()
    qaddr()
    A("s_barrier")
    pt("c1")
    lds_init()
    A("s_waitcnt vmcnt(13)")
    A("s_barrier")
    stamp(6)
    post("A")
    A("s_waitcnt vmcnt(6)")
    A("K_NQA:")
    A("s_barrier")
    pt("c2")
    qreads()
    qmfma()
    A("s_branch K_COMMON")
    A("K_GEMM:")
    xdma(3)
    srd(A, sWm, PWM, 272 * 256)
    wdma(0, 0)
    w23dma()
    srd(A, sWS, PWS, WS_END if not ST else 0x1000000)
    sconsts()
    XA = v.E; PA = v.E + 1; GA = v.E + 2; TN = v.E + 3
    A(f"""
    s_lshl_b32 s{sUoff}, s{sPair}, 4
    s_add_u32 s{sUoff}, s{sUoff}, {WS_FLAG + 0x2000}
    s_mov_b32 s72, {NEG_LOG2E:#x}
    s_add_u32 s73, s{sUT}, 0x2000
    s_add_u32 s74, s{sUT}, 0x4000
    s_cmp_ge_u32 s3, 4
    s_cselect_b32 s74, 0x40000000, s74
    v_add_u32 v{v.JK3}, {L_BN}, v{v.t2}
    v_and_b32 v{XA}, 31, v{L}
    s_lshl_b32 s22, s{sG}, 5
    v_add_u32 v{XA}, s22, v{XA}
    s_waitcnt vmcnt(12)
    """)
    vconsts()
    A(f"""
    v_lshl_add_u32 v{TN}, v{H}, 11, v{TRA}
    s_lshl_b32 s22, s{sC}, 2
    v_lshl_add_u32 v{PA}, v{H}, 1, s22
    v_xor_b32 v{PA}, v{PA}, v{XA}
    v_and_b32 v{PA}, 15, v{PA}
    v_lshl_or_b32 v{PA}, v{XA}, 4, v{PA}
    s_mov_b32 s22, {L_BN}
    v_lshl_add_u32 v{PA}, v{PA}, 4, s22
    v_xor_b32 v{GA}, v{H}, v{XA}
    v_and_b32 v{GA}, 15, v{GA}
    v_lshl_or_b32 v{XA}, v{XA}, 4, v{GA}
    s_mov_b32 s22, {L_X}
    v_lshl_add_u32 v{XA}, v{XA}, 4, s22
    """)
    for s_ in range(1, 8):
        A(f"v_xor_b32 v{v.E+8+s_}, {s_*32}, v{XA}")
    A("s_waitcnt vmcnt(5)")
    A("s_barrier")
    stamp(94)
    for s_ in range(8):
        A(f"ds_read_b64_tr_b16 {vr(v.WA+4*s_,2)}, v{TN} offset:{s_*4096}")
        A(f"ds_read_b64_tr_b16 {vr(v.WA+4*s_+2,2)}, v{TN} offset:{s_*4096+1024}")
        A(f"ds_read_b128 {vr(v.XF+4*s_,4)}, v{v.E+8+s_ if s_ else XA}")
    A(f"s_cmp_lg_u32 s{sG}, 0")
    A("s_cbranch_scc1 K_G1")
    for s_ in range(8):
        A(f"ds_read_b128 {vr(v.U2+4*s_,4)}, v{v.E+8+s_ if s_ else XA} offset:16384")
    tagload("K_NT2")
    for s_ in range(8):
        A(f"s_waitcnt lgkmcnt({min(15, 3*(7-s_) + 8)})")
        A(mfma(v.T, v.WA + 4*s_, v.XF + 4*s_, "0" if s_ == 0 else None))
    for s_ in range(8):
        A(f"s_waitcnt lgkmcnt({7-s_})")
        A(mfma(v.T1, v.WA + 4*s_, v.U2 + 4*s_, "0" if s_ == 0 else None))
    def pout(acc, off, pk):
        for r in range(0, 16, 2):
            if pk:
                A(f"v_pk_mul_f32 {P(acc+r)}, {P(acc+r)}, s[72:73] op_sel_hi:[1,0]")
            else:
                A(f"v_mul_f32 v{acc+r}, s72, v{acc+r}")
                A(f"v_mul_f32 v{acc+r+1}, s72, v{acc+r+1}")
        for r in range(0, 16, 2):
            A(f"v_cvt_pk_bf16_f32 v{acc+r//2}, v{acc+r}, v{acc+r+1}")
        A(f"ds_write_b128 v{PA}, {vr(acc,4)} offset:{off}")
        A(f"ds_write_b128 v{GA}, {vr(acc+4,4)} offset:{off}")
    A(f"v_xor_b32 v{GA}, 16, v{PA}")
    pout(v.T, 0, False)
    pout(v.T1, 16384, True)
    A("s_branch K_G3")
    A("K_G1:")
    for s_ in range(8):
        A(f"s_waitcnt lgkmcnt({min(15, 3*(7-s_))})")
        A(mfma(v.T, v.WA + 4*s_, v.XF + 4*s_, "0" if s_ == 0 else None))
    A(f"v_xor_b32 v{GA}, 16, v{PA}")
    A("s_nop 10")
    pout(v.T, 0, False)
    A("K_G3:")
    pt("g4")
    A(f"""
    s_waitcnt lgkmcnt(0)
    s_barrier
    ds_read_b128 {vr(v.T,4)}, v{v.JK3}
    ds_read_b128 {vr(v.T+4,4)}, v{v.JK3} offset:8192
    ds_read_b128 {vr(v.T+8,4)}, v{v.JK3} offset:16384
    s_waitcnt lgkmcnt(2)
    buffer_store_dwordx4 {vr(v.T,4)}, v{XV}, {sr(sWS,4)}, s{sUT} offen sc1
    s_waitcnt lgkmcnt(1)
    buffer_store_dwordx4 {vr(v.T+4,4)}, v{XV}, {sr(sWS,4)}, s73 offen sc1
    s_waitcnt lgkmcnt(0)
    buffer_store_dwordx4 {vr(v.T+8,4)}, v{XV}, {sr(sWS,4)}, s74 offen sc1
    """)
    stamp(4)
    A("s_waitcnt vmcnt(3)")
    qaddr()
    A("s_barrier")
    pt("c1")
    qreads()
    lds_init()
    pt("c2")
    qmfma()
    A("s_waitcnt vmcnt(6)")
    A("s_barrier")
    stamp(6)
    post("B")
    A("K_COMMON:")
    pt("c3")
    for r in range(0, 12, 2):
        A(f"v_pk_mul_f32 {P(v.E+r)}, {P(v.E+r)}, s[72:73] op_sel_hi:[1,0]")
    A(f"""
    v_cvt_pk_bf16_f32 v{v.QS}, v{v.E}, v{v.E+1}
    v_cvt_pk_bf16_f32 v{v.QS+1}, v{v.E+2}, v{v.E+3}
    v_cvt_pk_bf16_f32 v{v.QF+2}, v{v.E+4}, v{v.E+5}
    v_cvt_pk_bf16_f32 v{v.QF+3}, v{v.E+6}, v{v.E+7}
    v_cvt_pk_bf16_f32 v{v.QS+2}, v{v.E+8}, v{v.E+9}
    v_cvt_pk_bf16_f32 v{v.QS+3}, v{v.E+10}, v{v.E+11}
    s_lshl_b32 s{sUoff}, s{sC}, 13
    s_add_u32 s{sUoff}, s{sUoff}, {WS_U}
    """)
    def round_regs():
        A(f"""
        v_mov_b32 v{v.TPa+1}, v{v.IX0+1}
        v_mov_b32 v{v.TPb+1}, v{v.IX0+1}
        v_mov_b32 v{v.IEb+1}, v{v.IE+1}
        v_mov_b32 v{v.aggF}, 1
        v_mov_b64 {P(v.REC+4)}, -1
        v_mov_b64 {P(v.REC+6)}, -1
        v_add_u32 v{v.JK}, {64 * CH}, v{v.EB}
        """)
    def cell_addr():
        A(f"""
        s_lshl_b32 s22, s2, 7
        s_add_u32 s22, s22, {WS_CELL}
        s_add_u32 s23, s22, {64*32768}
        s_movk_i32 s76, {1000 - 512}
        v_cmp_gt_u32 s[76:77], s76, v0
        v_lshrrev_b32 v{v.t0}, 3, v0
        v_and_b32 v{v.t1}, 7, v0
        v_lshlrev_b32 v{v.t1}, 4, v{v.t1}
        v_lshl_add_u32 v{v.DS}, v{v.t0}, 15, v{v.t1}
        """)
    round_regs()
    cell_addr()
    stamp(8)
    A(f"""
    s_cmp_lg_u32 s3, 0
    s_cbranch_scc1 K_POLLED
    """)
    if MC:
        A(f"""
        s_add_u32 s78, s{sRel}, 0x2000
        K_POLL:
        buffer_load_dword v{v.NS}, off, {sr(sWS,4)}, s78 sc1
        s_waitcnt vmcnt(0)
        v_cmp_ne_u32 vcc, s{sTag}, v{v.NS}
        s_cbranch_vccz K_POLLED
        s_sleep {opt.get("slp", 2)}
        s_branch K_POLL
        """)
    else:
        A(f"""
    s_mov_b32 s78, {WS_FLAG}
    v_lshlrev_b32 v{v.t0}, 6, v{L}
    v_cmp_gt_u32 vcc, {NCHUNK - 64}, v{L}
    v_add_u32 v{v.t1}, 0x1000, v{v.t0}
    s_nop 0
    v_cndmask_b32 v{v.t1}, v{v.t0}, v{v.t1}, vcc
    K_POLL:
    buffer_load_dword v{v.NS}, v{v.t0}, {sr(sWS,4)}, s78 offen sc1
    buffer_load_dword v{v.NS+1}, v{v.t1}, {sr(sWS,4)}, s78 offen sc1
    s_waitcnt vmcnt(0)
    v_xor_b32 v{v.NS}, s{sTag}, v{v.NS}
    v_xor_b32 v{v.NS+1}, s{sTag}, v{v.NS+1}
    v_or_b32 v{v.NS}, v{v.NS}, v{v.NS+1}
    v_cmp_ne_u32 vcc, 0, v{v.NS}
    s_cbranch_vccz K_POLLED
    s_sleep {opt.get("slp", 2)}
    s_branch K_POLL
        """)
    A(f"""
    K_POLLED:
    s_waitcnt vmcnt(0)
    s_barrier
    """)
    stamp(10)
    A(f"""
    ds_read_b128 {vr(v.SEL0,4)}, v{v.S0a}
    ds_read_b128 {vr(v.SEL1,4)}, v{v.S1a}
    K2_CELLS:
    buffer_load_dwordx4 {vr(v.REC,4)}, v{v.DS}, {sr(sWS,4)}, s22 offen sc1
    s_mov_b64 exec, s[76:77]
    buffer_load_dwordx4 {vr(v.REC+4,4)}, v{v.DS}, {sr(sWS,4)}, s23 offen sc1
    s_mov_b64 exec, -1
    buffer_load_dword v{v.JK2}, off, {sr(sWS,4)}, s{sRel} sc1
    s_waitcnt vmcnt(0)
    K2_COUNT:
    """)
    stamp(12)
    ET = opt.get("et", 4)
    W0 = {0: v.W0, 1: v.W0 + 2, 4: v.W0 + 4, 5: v.W0 + 6}
    for j in range(8):
        main = j % 4 < 2
        body = f"""
        v_lshrrev_b32 v{v.AD+j}, 12, v{v.REC+j}
        v_and_b32 v{v.AD+j}, 0xfc, v{v.AD+j}
        s_mov_b64 exec, {sr(sM+2*j,2)}
        ds_add_rtn_u32 v{v.RANK+j}, v{v.AD+j}, v{v.aggF} offset:{CNT}
        """
        A(f"v_cmp_gt_u32 {sr(sM+2*j,2)}, -2, v{v.REC+j}")
        if main:
            A(body)
            A(f"v_lshrrev_b32 v{W0[j]+1}, 20, v{v.REC+j}")
            if ET:
                A(f"v_subrev_u32 v{v.t0}, 80, v{v.AD+j}")
            A(f"v_add_u32 v{W0[j]+1}, v{W0[j]+1}, v{v.EB if j < 4 else v.JK}")
            if ET:
                A(f"v_min_u32 v{v.t0}, v{v.t0}, v{v.AD+j}")
                A(f"v_cmpx_gt_u32 vcc, {4*ET}, v{v.t0}")
                A(f"buffer_load_dword v{v.JK3}, v{W0[j]+1}, {sr(sE,4)}, 0 idxen")
            A("s_mov_b64 exec, -1")
        else:
            l = A.label("cs"); lb = A.label("cb")
            body += "s_mov_b64 exec, -1\n"
            if j % 4 == 3:
                A(f"v_cmp_eq_u32 vcc, -2, v{v.REC+j}")
                A(f"s_or_b64 s[22:23], {sr(sM+2*j,2)}, vcc")
                body += f"s_cbranch_vccz {lb}\nv_mov_b32 v{v.t1}, {FLAG}\nds_write_b32 v{v.t1}, v{v.aggF}\n"
            else:
                A(f"s_cmp_lg_u64 {sr(sM+2*j,2)}, 0")
            A(f"s_cbranch_scc1 {l}")
            A(f"{lb}:")
            ool.append(f"{l}:\n{body}\ns_branch {lb}")
    NPF = opt.get("pf", 0)
    if NPF:
        A(f"""
        s_or_b32 s22, s3, s{sMode}
        s_cmp_lg_u32 s22, 0
        s_cbranch_scc1 K2_NOPF
        v_cmp_ne_u32 vcc, s{sTag}, v{v.JK2}
        s_cbranch_vccnz K2_NOPF
        s_mul_i32 s22, s{sSl}, 81920
        v_lshlrev_b32 v{v.t0}, 7, v{L}
        """)
        for q in range(NPF):
            A(f"buffer_load_dword v{v.JK3}, v{v.t0}, {sr(sWS,4)}, s22 offen")
            if q < NPF - 1: A("s_add_u32 s22, s22, 8192")
        A("K2_NOPF:")
    c = v.t0; pd = v.OHA
    A(f"""
    v_lshlrev_b32 v{v.t0}, 2, v{L}
    v_mov_b32 v{v.t1}, {FLAG}
    s_mul_i32 s22, s{sG}, 20
    s_add_u32 s22, s22, 8
    s_waitcnt lgkmcnt(0)
    s_barrier
    """)
    pt("b2")
    A(f"""
    ds_read_b32 v{v.t0}, v{v.t0} offset:{CNT}
    ds_read_b32 v{v.t1}, v{v.t1}
    s_waitcnt lgkmcnt(0)
    v_add_u32 v{c}, 3, v{c}
    v_and_b32 v{c}, -4, v{c}
    v_max_u32 v{c}, 4, v{c}
    v_cndmask_b32 v{pd}, 0, v{c}, {sr(sN40,2)}
    v_readfirstlane_b32 s23, v{v.t1}
    s_nop 0
    v_add_u32_dpp v{c}, v{pd}, v{pd} row_shr:1 row_mask:0xf bank_mask:0xf bound_ctrl:0
    s_nop 1
    v_add_u32_dpp v{c}, v{c}, v{c} row_shr:2 row_mask:0xf bank_mask:0xf bound_ctrl:0
    s_nop 1
    v_add_u32_dpp v{c}, v{c}, v{c} row_shr:4 row_mask:0xf bank_mask:0xf bound_ctrl:0
    s_nop 1
    v_add_u32_dpp v{c}, v{c}, v{c} row_shr:8 row_mask:0xf bank_mask:0xf bound_ctrl:0
    s_nop 1
    v_add_u32_dpp v{c}, v{c}, v{c} row_bcast:15 row_mask:0xa bank_mask:0xf
    s_nop 1
    v_add_u32_dpp v{c}, v{c}, v{c} row_bcast:31 row_mask:0xc bank_mask:0xf
    s_cmp_lg_u32 s23, -1
    s_cbranch_scc1 K2_OVF
    v_readlane_b32 s{sT0}, v{c}, 19
    v_readlane_b32 s{sT1}, v{c}, 39
    v_sub_u32 v{pd}, v{c}, v{pd}
    s_sub_u32 s23, {GSL}, s{sT0}
    v_add_u32 v{c}, s23, v{pd}
    v_cndmask_b32 v{pd}, v{pd}, v{c}, {sr(sG1,2)}
    v_add_u32 v{v.FV}, v{pd}, v{v.OHB}
    """)
    for j in (0, 1, 4, 5):
        A(f"ds_bpermute_b32 v{v.PK+j}, v{v.AD+j}, v{v.FV}")
    A(f"""
    v_readlane_b32 s{sTsw}, v{pd}, s22
    s_sub_u32 s{sT1}, s{sT1}, s{sT0}
    s_max_u32 s22, s{sT0}, s{sT1}
    s_cmp_gt_u32 s22, {GSL}
    s_cbranch_scc1 K2_OVF
    s_waitcnt lgkmcnt(0)
    """)
    pt("sc")
    for j in (0, 1, 4, 5, 2, 3, 6, 7):
        rare = (j % 4) >= 2
        w = v.W0 + 8 if rare else W0[j]
        body = f"""
        s_mov_b64 exec, {sr(sM+2*j,2)}
        v_add_u32_sdwa v{v.RANK+j}, v{v.PK+j}, v{v.RANK+j} dst_sel:DWORD dst_unused:UNUSED_PAD src0_sel:WORD_0 src1_sel:DWORD
        v_bfi_b32 v{w}, s{sK3F}, v{v.REC+j}, v{v.PK+j}
        v_lshlrev_b32 v{v.PK+j}, 3, v{v.RANK+j}
        v_lshrrev_b32 v{v.RANK+j}, 2, v{v.RANK+j}
        ds_write_b64 v{v.PK+j}, {P(w)} offset:{REC}
        ds_write_b8 v{v.RANK+j}, v{v.AD+j} offset:{QN}
        """
        if rare:
            l = A.label("ss"); lb = A.label("sb")
            A(f"s_cmp_lg_u64 {sr(sM+2*j,2)}, 0")
            A(f"s_cbranch_scc1 {l}")
            A(f"{lb}:")
            ool.append(f"{l}:\ns_mov_b64 exec, -1\nds_bpermute_b32 v{v.PK+j}, v{v.AD+j}, v{v.FV}\nv_lshrrev_b32 v{w+1}, 20, v{v.REC+j}\nv_add_u32 v{w+1}, v{w+1}, v{v.EB if j < 4 else v.JK}\ns_waitcnt lgkmcnt(0)\n{body}\ns_branch {lb}")
        else:
            A(body)
    A(f"""
    s_mov_b64 exec, -1
    s_or_b32 s22, s3, s{sMode}
    s_cmp_lg_u32 s22, 0
    s_cbranch_scc1 K2_RDY
    v_cmp_ne_u32 vcc, s{sTag}, v{v.JK2}
    s_cbranch_vccnz K2_RPOLL
    K2_RDY:
    s_mov_b32 m0, s{sRing}
    s_waitcnt lgkmcnt(0)
    s_barrier
    """)
    ool.append(f"K2_RPOLL:\nbuffer_load_dword v{v.JK2}, off, {sr(sWS,4)}, s{sRel} sc1\ns_waitcnt vmcnt(0)\nv_cmp_ne_u32 vcc, s{sTag}, v{v.JK2}\ns_cbranch_vccz K2_RDY\ns_sleep 1\ns_branch K2_RPOLL")
    stamp(14)
    A(f"""
    ds_read_u16 v{v.IX0}, v{v.R1}
    ds_read_u16 v{v.IX1}, v{v.R1} offset:64
    ds_read_b32 v{v.IE}, v{v.Re}
    ds_read_u8 v{v.t0}, v0 offset:{QN}
    ds_read_u16 v{v.TPa}, v{v.R1} offset:256
    ds_read_u16 v{v.TPb}, v{v.R1} offset:320
    ds_read_b32 v{v.IEb}, v{v.Re} offset:1024
    ds_read_u8 v{v.OH0}, v{v.R2}
    ds_read_u8 v{v.OHA}, v{v.R2} offset:256
    s_waitcnt lgkmcnt(8)
    buffer_load_dwordx4 {P(v.IX0)}, {sr(sP,4)}, 0 idxen offen lds
    s_add_u32 m0, s{sRing}, 1024
    s_waitcnt lgkmcnt(7)
    buffer_load_dwordx4 {P(v.IX1)}, {sr(sP,4)}, 0 idxen offen lds
    s_mov_b32 m0, s{sE0}
    s_waitcnt lgkmcnt(5)
    buffer_load_dwordx4 {P(v.IE)}, {sr(sE,4)}, 0 idxen offen lds
    v_cmp_ne_u32 vcc, 0xff, v{v.t0}
    v_subrev_u32 v{v.t1}, 80, v{v.t0}
    v_min_u32 v{v.t0}, v{v.t0}, v{v.t1}
    v_lshl_add_u32 v{v.t1}, v{v.t0}, 3, v{v.QC}
    v_lshrrev_b32 v{v.t0}, 1, v{v.t0}
    v_and_b32 v{v.t0}, 16, v{v.t0}
    v_xor_b32 v{v.t1}, v{v.t1}, v{v.t0}
    v_mov_b32 v{v.t0}, 0x3f80
    s_mov_b64 exec, vcc
    ds_write_b16 v{v.t1}, v{v.t0}
    s_mov_b64 exec, -1
    s_add_u32 m0, s{sRing}, 2048
    s_waitcnt lgkmcnt(0)
    buffer_load_dwordx4 {P(v.TPa)}, {sr(sP,4)}, 0 idxen offen lds
    s_add_u32 m0, s{sRing}, 3072
    ds_read_u16 v{v.IX0}, v{v.R1} offset:512
    buffer_load_dwordx4 {P(v.TPb)}, {sr(sP,4)}, 0 idxen offen lds
    ds_read_u16 v{v.IX1}, v{v.R1} offset:576
    ds_read_u16 v{v.TPa}, v{v.R1} offset:768
    ds_read_u16 v{v.TPb}, v{v.R1} offset:832
    s_mul_i32 s22, s{sG}, {GSL}
    s_sub_u32 s{sTsw}, s{sTsw}, s22
    s_add_u32 s{sTsw}, s{sTsw}, 31
    s_lshr_b32 s{sTsw}, s{sTsw}, 5
    s_add_u32 s{sT0}, s{sT0}, 31
    s_lshr_b32 s{sT0}, s{sT0}, 5
    s_add_u32 s{sT1}, s{sT1}, 31
    s_lshr_b32 s{sT1}, s{sT1}, 5
    s_cmp_gt_u32 s{sT0}, s{sT1}
    s_cselect_b32 s{sLate}, 1, 0
    s_xor_b32 s{sLate}, s{sLate}, s{sG}
    s_cmp_eq_u32 s{sG}, 0
    s_cselect_b32 s{sTg}, s{sT0}, s{sT1}
    s_sub_u32 s{sUT}, s{sTg}, 9
    s_and_b32 s{sUT}, s{sUT}, -4
    s_add_u32 s{sUT}, s{sUT}, 1
    s_cmp_lt_u32 s{sTg}, 9
    s_cselect_b32 s{sUT}, {BIG}, s{sUT}
    s_cmp_lg_u32 s{sMode}, 0
    s_cselect_b32 s{sUT}, {BIG}, s{sUT}
    s_sub_u32 s22, s{sTg}, 1
    s_lshr_b32 s22, s22, 1
    s_mul_i32 s22, s22, 3072
    s_add_u32 s22, s22, {3072 + 2048}
    v_add_u32 v{v.LA}, s22, v{v.E_}
    s_add_u32 s{sEdst}, s{sE0}, 12288
    s_mov_b32 s{sTile}, 0
    v_mov_b32 v{v.PROG}, 1
    v_mov_b64 {P(v.QF)}, {P(v.QS)}
    v_mov_b64 {P(v.NS)}, 0
    v_mov_b64 {P(v.NS+2)}, 0
    v_mov_b64 {P(v.DS)}, {P(v.ONE)}
    v_mov_b64 {P(v.DS+2)}, {P(v.ONE)}
    v_mov_b64 {P(v.MSG)}, 0
    v_mov_b64 {P(v.aggF)}, 0
    v_mov_b64 {P(v.aggF+2)}, 0
    v_mov_b64 {P(v.S)}, 0
    s_cmp_lg_u32 s{sMode}, 0
    s_waitcnt vmcnt(2) lgkmcnt(0)
    s_barrier
    """)
    stamp(16)
    A(f"""
    ds_read_b128 {vr(v.ohF,4)}, v{v.OH0}
    ds_read_b128 {vr(v.eF,4)}, v{v.E_} offset:3072
    ds_read_b128 {vr(v.pF0,4)}, v{v.P0}
    ds_read_b128 {vr(v.pF1,4)}, v{v.P1}
    s_cbranch_scc1 K2_SAFEP
    """)
    def late_issue():
        A(f"""
        s_add_u32 m0, s{sE0}, 6144
        s_nop 0
        buffer_load_dwordx4 {P(v.IEb)}, {sr(sE,4)}, 0 idxen offen lds
        s_add_u32 m0, s{sRing}, 4096
        s_nop 0
        buffer_load_dwordx4 {P(v.IX0)}, {sr(sP,4)}, 0 idxen offen lds
        s_add_u32 m0, s{sRing}, 5120
        ds_read_u16 v{v.IX0}, v{v.R1} offset:1024
        buffer_load_dwordx4 {P(v.IX1)}, {sr(sP,4)}, 0 idxen offen lds
        s_add_u32 m0, s{sRing}, 6144
        ds_read_u16 v{v.IX1}, v{v.R1} offset:1088
        buffer_load_dwordx4 {P(v.TPa)}, {sr(sP,4)}, 0 idxen offen lds
        s_add_u32 m0, s{sRing}, 7168
        s_nop 0
        buffer_load_dwordx4 {P(v.TPb)}, {sr(sP,4)}, 0 idxen offen lds
        """)
    chain(A, 3, "fast", None, ool, pre=True, mid=late_issue)
    A("K2_LOOP:")
    for k in range(4):
        stretch(A, k, "fast", ool)
        chain(A, k, "fast", "K2_EXIT", ool)
    A("s_branch K2_LOOP")
    A("K2_EXIT:")
    stamp(18)
    A(f"""
    s_setprio 0
    ds_read_b128 {vr(v.ohF,4)}, v{v.LA}
    v_rcp_f32 v{v.RS}, v{v.DS}
    v_rcp_f32 v{v.RS+1}, v{v.DS+1}
    v_rcp_f32 v{v.RS+2}, v{v.DS+2}
    v_rcp_f32 v{v.RS+3}, v{v.DS+3}
    v_fma_f32 v{v.S}, v{v.DS}, v{v.DS+2}, v{v.S}
    v_fma_f32 v{v.S+1}, v{v.DS+1}, v{v.DS+3}, v{v.S+1}
    v_mul_f32 v{v.NS}, v{v.NS}, v{v.RS}
    v_mul_f32 v{v.NS+1}, v{v.NS+1}, v{v.RS+1}
    v_mul_f32 v{v.NS+2}, v{v.NS+2}, v{v.RS+2}
    v_mul_f32 v{v.NS+3}, v{v.NS+3}, v{v.RS+3}
    K2_X2:
    s_bitcmp1_b32 s{sTg}, 0
    s_cbranch_scc0 K2_X3
    s_waitcnt lgkmcnt(1)
    {mfma(v.ACC, v.MSG, v.aggF)}
    v_cvt_pk_bf16_f32 v{v.MSG}, v{v.NS}, v{v.NS+1}
    v_cvt_pk_bf16_f32 v{v.MSG+1}, v{v.NS+2}, v{v.NS+3}
    s_branch K2_X4
    K2_X3:
    v_cvt_pk_bf16_f32 v{v.MSG+2}, v{v.NS}, v{v.NS+1}
    v_cvt_pk_bf16_f32 v{v.MSG+3}, v{v.NS+2}, v{v.NS+3}
    K2_X4:
    v_max_f32 v{v.S}, v{v.S}, v{v.S+1}
    s_waitcnt lgkmcnt(0)
    {mfma(v.ACC, v.MSG, v.ohF)}
    v_add_u32 v{v.t0}, s{sRing}, v{v.t3}
    s_cmp_eq_u32 s{sMode}, 1
    s_cbranch_scc1 K2_NEXTR
    K2_FIN:
    s_cmp_eq_u32 s{sUT}, {BIG}
    s_cbranch_scc1 K2_ULD
    K2_ULB:
    s_mov_b32 s22, {NEG_LN2:#x}
    s_mov_b32 s23, {f2u(2.0**60):#x}
    v_mov_b64 {P(v.NS)}, 0
    v_mov_b32 v{v.S+1}, 0
    s_lshl_b32 s76, s{sG}, 15
    s_add_u32 s76, s76, {RING}
    v_add_u32 v{v.t1}, s76, v{v.t3}
    v_mov_b32 v{v.JK}, {TRIP}
    """)
    B = Asm(); B("K2_ULD:")
    for i in range(16): u_load(B, i)
    B("s_branch K2_ULB"); ool.append(B.text())
    for s in range(8):
        A(f"v_pk_mul_f32 {P(v.ACC+2*s)}, {P(v.ACC+2*s)}, s[22:23] op_sel_hi:[1,0]")
    for s in range(8):
        A(f"v_cvt_pk_bf16_f32 v{v.E+s}, v{v.ACC+2*s}, v{v.ACC+2*s+1}")
    A("s_waitcnt vmcnt(0)")
    A(f"ds_write_b128 v{v.t0}, {vr(v.E,4)}")
    A(f"ds_write_b128 v{v.t0}, {vr(v.E+4,4)} offset:1024")
    for s in range(8):
        A(f"v_pk_fma_f32 {P(v.S)}, {P(v.ACC+2*s)}, {P(v.NS)}, {P(v.S)}")
    F = v.T; AG = v.T1
    A(f"""
    v_add_f32 v{v.S}, v{v.S}, v{v.S+1}
    v_cmp_nge_f32 vcc, s23, v{v.S}
    s_cbranch_vccnz K2_TRIP
    K2_TRB:
    s_cmp_lg_u32 s{sLate}, 0
    s_waitcnt lgkmcnt(0)
    s_cbranch_scc1 K2_LATE
    """)
    ool.append(f"K2_TRIP:\ns_cmp_lg_u32 s{sMode}, 0\ns_cbranch_scc1 K2_TRB\nds_write_b32 v{v.JK}, v{v.NS}\ns_branch K2_TRB")
    def rg():
        for s_ in range(8):
            A(mfma(F, v.U1 + 4*s_, v.XF + 4*s_, "0" if s_ == 0 else None))
    def rd():
        A("s_barrier")
        stamp(96)
        A(f"ds_read_b32 v{v.JK}, v{v.JK}")
        for s in range(8):
            A(f"ds_read_b128 {vr(AG+4*s,4)}, v{v.t1} offset:{(s >> 1) * 8192 + (s & 1) * 1024}")
    rg(); rd()
    A("s_branch K2_JOIN")
    A("K2_LATE:")
    rd(); rg()
    A("K2_JOIN:")
    for s in range(8):
        A(f"s_waitcnt lgkmcnt({7-s})")
        A(mfma(F, v.U2 + 4*s, AG + 4*s))
    A(f"""
    v_readfirstlane_b32 s23, v{v.JK}
    s_mov_b32 s22, {NEG_LOG2E:#x}
    s_cmp_eq_u32 s23, 0
    s_cbranch_scc1 K2_REDO
    s_nop 7
    """)
    for r in range(0, 16, 2):
        A(f"v_pk_mul_f32 {P(v.E+r)}, {P(F+r)}, s[22:23] op_sel_hi:[1,0]")
    for r in range(16):
        A(f"v_exp_f32 v{v.E+r}, v{v.E+r}")
    for r in range(0, 16, 2):
        A(f"v_pk_add_f32 {P(v.E+r)}, {P(v.E+r)}, {P(v.ONE)}")
    for r in range(16):
        A(f"v_rcp_f32 v{v.E+r}, v{v.E+r}")
    for r in range(0, 16, 2):
        A(f"v_pk_mul_f32 {P(F+r)}, {P(F+r)}, {P(v.E+r)}")
    O = v.T1
    for r in range(8):
        A(f"v_cvt_pk_bf16_f32 v{O+r}, v{F+2*r}, v{F+2*r+1}")
    A(f"""
    s_nop 1
    v_permlane32_swap_b32 v{O}, v{O+2}
    v_permlane32_swap_b32 v{O+1}, v{O+3}
    v_permlane32_swap_b32 v{O+4}, v{O+6}
    v_permlane32_swap_b32 v{O+5}, v{O+7}
    buffer_store_dwordx4 {vr(O,4)}, v{v.OA}, {sr(sOUT,4)}, 0 offen
    buffer_store_dwordx4 {vr(O+4,4)}, v{v.OA}, {sr(sOUT,4)}, 0 offen offset:32
    """)
    if ST:
        A("s_waitcnt vmcnt(0)")
        A("s_memtime s[98:99]")
        A("s_memrealtime s[100:101]")
        A(f"""
        s_lshl_b32 s22, s2, 3
        s_add_u32 s22, s22, s3
        s_lshl_b32 s22, s22, 6
        s_add_u32 s22, s22, 0x800000
        v_mov_b32 v1, 0
        s_waitcnt lgkmcnt(0)
        """)
        for i, r in enumerate([90, 94, 4, 6, 8, 10, 12, 14, 16, 18, 96, 98, 92, 100, sTg] if not PTS else [90, 94, 4, 44, 46, 48, 50, 96, 6, 12, 14, 98, 92, 100, sTg]):
            A(f"v_mov_b32 v2, s{r}")
            A(f"buffer_store_dword v2, v1, {sr(sWS,4)}, s22 offen offset:{4*i}")
    A("K_END:")
    A("s_endpgm")
    for o in ool: A(o)
    del ool[:]
    A(f"""
    K_SPECIAL:
    s_memrealtime s[88:89]
    s_waitcnt lgkmcnt(0)
    """)
    srd(A, sDB, PDBG, 256)
    srd(A, sWS, PWS, WS_END)
    A(f"""
    s_cmp_lg_u32 s2, 0
    s_cbranch_scc1 K_HELPER
    s_cmp_lg_u32 s3, 0
    s_cbranch_scc1 K_END
    s_or_b32 s{sTag}, s88, 1
    v_mov_b32 v1, s{sTag}
    s_mov_b64 exec, 1
    buffer_store_dword v1, off, {sr(sDB,4)}, 0 sc1
    s_mov_b64 exec, -1
    v_lshlrev_b32 v2, 4, v0
    v_cmp_gt_u32 vcc, {NCHUNK + 2 - 64}, v0
    v_add_u32 v4, 1024, v2
    s_mov_b32 s22, {WS_FLAG + 0x2000}
    v_cndmask_b32 v4, v2, v4, vcc
    v_lshlrev_b32 v3, 7, v0
    s_mov_b32 s23, {WS_FLAG + 0x4000}
    """)
    if MC:
        A(f"""
        v_cmp_gt_u32 vcc, {NCHUNK - 64}, v0
        v_add_u32 v5, 1024, v2
        s_mov_b32 s76, {WS_FLAG}
        v_cndmask_b32 v5, v2, v5, vcc
        s_mov_b32 s77, {WS_FLAG + 0x6000}
        K_MPOLL0:
        buffer_load_dword v8, v2, {sr(sWS,4)}, s76 offen sc1
        buffer_load_dword v9, v5, {sr(sWS,4)}, s76 offen sc1
        s_waitcnt vmcnt(0)
        v_xor_b32 v8, v1, v8
        v_xor_b32 v9, v1, v9
        v_or_b32 v8, v8, v9
        v_cmp_ne_u32 vcc, 0, v8
        s_cbranch_vccnz K_MPOLL0
        buffer_store_dword v1, v3, {sr(sWS,4)}, s77 offen sc1
        {"s_memrealtime s[92:93]" if ST else ""}
        """)
    A(f"""
    K_MPOLL:
    buffer_load_dword v8, v2, {sr(sWS,4)}, s22 offen sc1
    buffer_load_dword v9, v4, {sr(sWS,4)}, s22 offen sc1
    s_waitcnt vmcnt(0)
    v_xor_b32 v8, v1, v8
    v_xor_b32 v9, v1, v9
    v_or_b32 v8, v8, v9
    v_cmp_ne_u32 vcc, 0, v8
    s_cbranch_vccnz K_MPOLL
    buffer_store_dword v1, v3, {sr(sWS,4)}, s23 offen sc1
    {"s_memrealtime s[90:91]" if ST else ""}
    {"s_waitcnt lgkmcnt(0)" if ST else ""}
    {"v_mov_b32 v2, s90" if ST else ""}
    {f"buffer_store_dword v2, off, {sr(sDB,4)}, 0 offset:8" if ST else ""}
    {"v_mov_b32 v2, s92" if ST else ""}
    {f"buffer_store_dword v2, off, {sr(sDB,4)}, 0 offset:12" if ST else ""}
    s_endpgm
    K_HELPER:
    s_sub_u32 s87, s2, 1
    s_lshl_b32 s82, s87, 15
    s_lshl_b32 s77, s3, 12
    """)
    srd(A, sWm, PWU, 32768, add="s82")
    wdma(0, 0)
    A(f"""
    s_waitcnt vmcnt(4)
    s_lshl_b32 s22, s{sC}, 6
    v_xor_b32 v{TRA}, s22, v{TRA}
    v_lshrrev_b32 v{H}, 5, v{L}
    s_sub_u32 s22, 11, s87
    v_lshlrev_b32 v{H}, s22, v{H}
    v_add_u32 v{TRA}, v{TRA}, v{H}
    s_lshl_b32 s22, s{sG}, 14
    v_add_u32 v{TRA}, s22, v{TRA}
    s_lshl_b32 s22, 1024, s87
    v_add_u32 v{H}, s22, v{TRA}
    s_lshl_b32 s22, s{sC}, 13
    s_add_u32 s82, s82, s22
    s_lshl_b32 s22, s{sG}, 12
    s_add_u32 s82, s82, s22
    s_add_u32 s82, s82, {WS_U}
    s_waitcnt vmcnt(0)
    s_barrier
    """)
    for s_ in range(4):
        A(f"ds_read_b64_tr_b16 {vr(v.T+4*s_,2)}, v{TRA} offset:{s_*4096}")
        A(f"ds_read_b64_tr_b16 {vr(v.T+4*s_+2,2)}, v{H} offset:{s_*4096}")
    A("s_waitcnt lgkmcnt(0)")
    for s_ in range(4):
        A(f"buffer_store_dwordx4 {vr(v.T+4*s_,4)}, v{v.t3}, {sr(sWS,4)}, s82 offen offset:{s_*1024} sc1")
    A(f"""
    s_waitcnt vmcnt(0)
    s_barrier
    s_cmp_lg_u32 s3, 0
    s_cbranch_scc1 K_END
    K_HTAG:
    buffer_load_dword v1, off, {sr(sDB,4)}, 0 sc1
    s_waitcnt vmcnt(0)
    v_readfirstlane_b32 s22, v1
    s_cmp_eq_u32 s22, 0
    s_cbranch_scc1 K_HTAG
    s_lshl_b32 s22, s87, 4
    s_add_u32 s22, s22, {WS_FLAG + 0x2000 + NCHUNK * 16}
    s_mov_b64 exec, 1
    buffer_store_dword v1, off, {sr(sWS,4)}, s22 sc1
    s_endpgm
    """)
    A("K2_SAFEP:")
    chain(A, 3, "safe", None, ool, pre=True, mid=late_issue)
    A("K2_SAFE:")
    for k in range(4):
        stretch(A, k, "safe", ool)
        chain(A, k, "safe", "K2_SEXIT", ool)
    A("s_branch K2_SAFE")
    A(f"""
    K2_SEXIT:
    s_setprio 0
    ds_read_b128 {vr(v.ohF,4)}, v{v.LA}
    s_branch K2_X2
    """)
    def restore():
        A(f"""
        s_lshr_b32 s23, s{sTg}, 2
        s_mul_i32 s22, s23, 6144
        s_lshl_b32 s23, s23, 10
        v_subrev_u32 v{v.E_}, s22, v{v.E_}
        v_subrev_u32 v{v.R1}, s23, v{v.R1}
        v_subrev_u32 v{v.R2}, s23, v{v.R2}
        v_subrev_u32 v{v.Re}, s23, v{v.Re}
        """)
    A("K2_REDO:")
    restore()
    A(f"s_mov_b32 s{sMode}, 2")
    A("s_nop 7")
    for r in range(0, 16, 2):
        A(f"v_mov_b64 {P(v.ACC+r)}, 0")
    A("s_waitcnt vmcnt(0) lgkmcnt(0)")
    A("s_barrier")
    lds_init()
    round_regs()
    cell_addr()
    A("s_waitcnt vmcnt(0)")
    A("s_barrier")
    A("s_branch K2_CELLS")
    A(f"""
    K2_OVF:
    s_cmp_eq_u32 s{sMode}, 0
    s_cbranch_scc0 K2_OV2
    s_cmp_lg_u32 s3, 0
    s_cbranch_scc1 K2_OV2
    K2_OV1:
    buffer_load_dword v{v.JK2}, off, {sr(sWS,4)}, s{sRel} sc1
    s_waitcnt vmcnt(0)
    v_cmp_ne_u32 vcc, s{sTag}, v{v.JK2}
    s_cbranch_vccnz K2_OV1
    K2_OV2:
    s_mov_b32 s{sMode}, 1
    s_mov_b32 s{sRound}, 0
    s_branch K2_ROUND
    K2_NEXTR:
    s_add_u32 s{sRound}, s{sRound}, 1
    s_cmp_ge_u32 s{sRound}, {E // 512}
    s_cbranch_scc1 K2_FIN
    """)
    restore()
    A(f"""
    K2_ROUND:
    s_load_dwordx4 s[76:79], s[0:1], 16
    s_waitcnt vmcnt(0) lgkmcnt(0)
    s_barrier
    """)
    srd(A, sS, 76, E * 4)
    srd(A, sD, 78, E * 4)
    A(f"""
    s_lshl_b32 s22, s{sRound}, 9
    v_add_u32 v{v.EB}, s22, v0
    v_lshlrev_b32 v{v.t0}, 2, v{v.EB}
    buffer_load_dword v{v.REC}, v{v.t0}, {sr(sD,4)}, 0 offen
    buffer_load_dword v{v.REC+1}, v{v.t0}, {sr(sS,4)}, 0 offen
    """)
    lds_init()
    round_regs()
    A(f"""
    s_mul_i32 s22, s2, 40
    s_waitcnt vmcnt(0)
    v_subrev_u32 v{v.REC}, s22, v{v.REC}
    v_cmp_gt_u32 vcc, 40, v{v.REC}
    v_lshl_or_b32 v{v.t0}, v{v.REC}, 14, v{v.REC+1}
    v_mov_b32 v{v.REC+1}, -1
    v_cndmask_b32 v{v.REC}, -1, v{v.t0}, vcc
    v_mov_b64 {P(v.REC+2)}, -1
    s_barrier
    s_branch K2_COUNT
    """)
    for o in ool: A(o)
    A("K_CODE_END:")
    return A.text()

HEADER = """; MPNN edge-MLP layer, fused single kernel (generated by gen/fz5.py).
"""
def build(opt):
    out = HEADER + f"; @launch grid=({NWG},1,1) block=(512,1,1) lds={LDS_TOTAL}\n"
    out += '.amdgcn_target "amdgcn-amd-amdhsa--gfx950"\n.text\n'
    out += f".globl {KNAME}\n.p2align 8\n.type {KNAME},@function\n" + gen(opt)
    acc = (NV + 3) // 4 * 4
    out += f""".section .rodata,"a"
.p2align 8
K_TABLE:
{tables()}.p2align 6
.amdhsa_kernel {KNAME}
  .amdhsa_next_free_vgpr {NV}
  .amdhsa_next_free_sgpr 102
  .amdhsa_accum_offset {acc}
  .amdhsa_group_segment_fixed_size 0
  .amdhsa_kernarg_size 72
  .amdhsa_user_sgpr_count 2
  .amdhsa_user_sgpr_kernarg_segment_ptr 1
  .amdhsa_system_sgpr_workgroup_id_x 1
.end_amdhsa_kernel
"""
    return out

if __name__ == "__main__":
    opt = {}
    for a in sys.argv[2:]:
        k_, v_ = a.split("=")
        opt[k_] = int(v_) if v_.lstrip("-").isdigit() else v_
    open(sys.argv[1], "w").write(build(opt))
```

```python
import sys, struct
from gen import Asm, vr, sr, srd, f2u, NEG_LOG2E, NEG_LN2, PX, PE, PSRC, PDST, PWM, PWU, POUT, PDBG, PWS, load_ptrs

KNAME = "standalone__mpnn_edge_mlp__graph_kernel"
N = 10000; E = 320000
NBIN = 250; NCHUNK = 125; CH = 2560
WS_CELL = 0x280000
WS_FLAG = 0x700000
WS_U = 0x708000
WS_END = WS_U + 0x10000
NWG = NBIN + 3
BIG = 0x7fffffff

CNT = 0x100; QN = 0x200; FLAG = 0x3F0; TRIP = 0x3F4; REC = 0x400
TG = 26; GSL = TG * 32
REC_BYTES = (2 * GSL + 160) * 8
EA = REC + REC_BYTES
GEA = (TG // 2) * 3072
RING = EA + 2 * GEA
JUNK = RING + 65536
LDS_TOTAL = JUNK + 1024
FLG = CNT + 48 * 4
L_X = RING; L_W2 = RING + 0x6000; L_W3 = L_W2 + 32768; L_BN = 0x8000
assert RING % 256 == 0 and LDS_TOTAL <= 163840

class R: pass
v = R()
_n = 1
def alloc(name, n, align=1):
    global _n
    _n = (_n + align - 1) // align * align
    setattr(v, name, _n)
    _n += n
for nm in ("t0", "t1", "t2", "t3", "lane", "FW", "FV", "PROG", "JK", "JK2", "JK3", "OHA", "P1", "FR", "LA"):
    alloc(nm, 1)
TABN = ("E_", "R1", "R2", "Re", "P0", "EB", "QC", "OHB", "S0a", "FRo", "IXo", "IEo", "S1a", "TRA", "OAl", "Z_")
alloc("TAB", 0, 4)
for nm in TABN[:8]:
    alloc(nm, 1)
for nm in ("IX0", "IX1", "IE", "ONE", "S"):
    alloc(nm, 2, 2)
alloc("OA", 1)
for nm in ("W3F", "QF", "QS", "SEL0", "SEL1", "eF", "ohF", "pF0", "pF1", "aggF", "MSG", "NS", "DS", "RS"):
    alloc(nm, 4, 4)
for nm in ("T", "T1", "E", "ACC"):
    alloc(nm, 16, 4)
alloc("U1", 32, 4); alloc("U2", 32, 4); alloc("XF", 32, 4)
NV = _n
assert NV <= 256
for i_, nm in enumerate(TABN[8:]): setattr(v, nm, v.SEL0 + i_)
v.WA = v.ohF
assert v.RS == v.ohF + 28 and v.SEL1 == v.SEL0 + 4 and v.E == v.T1 + 16
v.REC = v.T; v.RANK = v.T + 8; v.AD = v.E; v.PK = v.E + 8
v.W0 = v.T1
v.TPa = v.T1 + 10; v.TPb = v.T1 + 12; v.IEb = v.T1 + 14; v.OH0 = v.pF1

sWS, sP, sE, sX, sOUT, sD, sS = 24, 28, 32, 36, 40, 44, 48
sG, sC, sTg, sTile, sTsw, sTag, sRing, sEdst, sMode, sRound, sRole, sElim = 52, 53, 54, 55, 56, 57, 58, 59, 60, 61, 62, 63
sM = 64
sWm = 64; sDB = 68
sTB = 80
sUT = 82; sLate = 83; sK3F = 84; sT0, sT1 = 85, 86; sRel = 87; sUoff = 88; sPair = 89
sN40 = 36; sG1 = 38; sSl = 101; sE0 = 100

OPT = {}
def P(r): return f"v[{r}:{r+1}]"
def mfma(d, a, b, c=None):
    return f"v_mfma_f32_32x32x16_bf16 {vr(d,16)}, {vr(a,4)}, {vr(b,4)}, {vr(d,16) if c is None else c}"
def pi8v(m):
    return ((m & 5) << 5) | ((m & 18) << 2) | ((m & 8) << 1)

def tables():
    rows = []
    for l in range(64):
        m, h = l & 31, l >> 5
        a16 = 16 + ((l & 8) << 3) + ((l & 3) << 4)
        n_ = l - 20 if l >= 20 else l
        a16n = 16 + ((n_ & 8) << 3) + ((n_ & 3) << 4)
        ohb = (a16n << (16 + 8 * ((n_ >> 2) & 1))) if l < 40 else 0
        sel = a16 if ((l >> 2) & 1) == h else 0
        d = dict(
            E_=m * 32 + (((h ^ (m >> 3)) & 1) << 4) + EA - 3072,
            R1=pi8v(l >> 2) + REC, R2=pi8v(m) + h + 2 + REC, Re=pi8v(l >> 1) + 4 + REC,
            P0=m * 64 + ((((m >> 2) ^ (2 * h)) & 3) << 4) + RING,
            EB=(l >> 3) * CH,
            QC=(l >> 4) * 3072 + ((l & 4) << 2) + (l & 8) + ((l & 3) << 1) + EA + 2048,
            OHB=ohb, FRo=(l & 3) * 4 + FLG,
            IXo=(((l >> 4) ^ l) & 3) << 4, IEo=(((l >> 4) ^ l) & 1) << 4,
            S0a=sel if m < 16 else 0, S1a=sel if m >= 16 else 0,
            TRA=(l & 3) * 8 + ((l >> 2) & 3) * 256 + (((l >> 2) & 3) << 6) + ((l >> 4) & 1) * 32,
            OAl=(m * 256 + h * 16) if m < 20 else 0x40000000, Z_=0)
        rows.append([d[n] for n in TABN])
    out = []
    for b in range(4):
        for l in range(64):
            out.append(".long " + ", ".join(f"{x:#x}" for x in rows[l][4*b:4*b+4]))
    img = [0] * 256
    for e_ in range(8):
        img[4 * (e_ + 1) + (e_ >> 1)] = 0x3f80 << (16 * (e_ & 1))
    for i in range(128, 256): img[i] = 0xffffffff
    for i in range(0, 256, 4):
        out.append(".long " + ", ".join(f"{x:#x}" for x in img[i:i+4]))
    for i in range(64):
        out.append(".long 0xffff, 0xffffffff, 0xffff, 0xffffffff")
    return "\n".join(out) + "\n"

def lst(A, k, variant, r):
    if OPT.get("ls") and variant == "fast" and k == OPT["ls"] - 1: A(f"s_memtime s[{r}:{r+1}]")

def u_load(A, i):
    off = (i >> 3) * 32768 + (i & 7) * 1024
    A(f"s_add_u32 s22, s{sUoff}, {off & ~4095}")
    A(f"buffer_load_dwordx4 {vr(v.U1+4*i,4)}, v{v.t3}, {sr(sWS,4)}, s22 offen offset:{off & 4095}")

def chain(A, k, variant, exit_label, ool, pre=False, mid=None):
    kk = k if k < 3 else -1
    safe = variant == "safe"
    EK = OPT.get("ek", 3)
    if not pre:
        A("s_setprio 2")
        A(f"s_add_u32 s{sTile}, s{sTile}, 1")
        A(f"s_cmp_ge_u32 s{sTile}, s{sTg}")
        A(f"s_cbranch_scc1 {exit_label}")
        lsw = A.label("sw"); lswb = A.label("swb")
        A(f"s_cmp_eq_u32 s{sTile}, s{sTsw}")
        A(f"s_cbranch_scc1 {lsw}")
        A(f"{lswb}:")
        ool.append(f"{lsw}:\nv_mov_b32 v{v.QF}, v{v.QS+2}\nv_mov_b32 v{v.QF+1}, v{v.QS+3}\ns_branch {lswb}")
        lst(A, k, variant, 10)
    A("s_waitcnt lgkmcnt(0)")
    if k % 2 == 0:
        A(mfma(v.ACC, v.MSG, v.aggF))
    n = 4 + (1 if ((k - 1) & 3) == EK or ((k - 2) & 3) == EK else 0)
    if EK == 3 and k == 1: n = 2
    if pre: n = 4 if EK == 3 else 5
    k2_ = kk + 2
    eread = f"ds_read_b128 {vr(v.eF,4)}, v{v.E_} offset:{3072 + (k2_ >> 1) * 3072 + (k2_ & 1) * 1024}"
    if k == 2: A(f"ds_read_b32 v{v.FV}, v{v.FR}")
    A(mfma(v.T, v.eF, v.W3F, "0"))
    if k != 2: A(eread)
    A(mfma(v.T, v.ohF, v.QF))
    A(f"ds_read_b128 {vr(v.ohF,4)}, v{v.OHA}")
    A(f"ds_read_u8 v{v.OHA}, v{v.R2} offset:{(kk + 3) * 256}")
    A(mfma(v.T, v.pF0, v.SEL0))
    if k == 2:
        A("s_waitcnt lgkmcnt(2)")
        A(f"v_cmp_gt_u32 vcc, v{v.PROG}, v{v.FV}")
    A(mfma(v.T, v.pF1, v.SEL1))
    A(f"s_setprio 0")
    lst(A, k, variant, 14)
    n_after = 2
    if k == 2:
        lw = A.label("fw"); lb = A.label("fb")
        A(f"s_cbranch_vccnz {lw}")
        A(f"{lb}:")
        A(eread)
        ool.append(f"{lw}:\nds_read_b32 v{v.FV}, v{v.FR}\ns_waitcnt lgkmcnt(0)\nv_cmp_gt_u32 vcc, v{v.PROG}, v{v.FV}\ns_cbranch_vccnz {lw}\ns_branch {lb}")
        n_after += 2
    if mid: mid()
    A(f"s_waitcnt vmcnt({n})" + (" lgkmcnt(0)" if pre else ""))
    if k == 1:
        A("s_mov_b64 exec, 1")
        A(f"ds_write_b32 v{v.FW}, v{v.PROG}")
        A("s_mov_b64 exec, -1")
        n_after += 3
    if k == EK:
        A(f"s_cmp_lt_u32 s{sEdst}, s{sElim}")
        A(f"s_cselect_b32 m0, s{sEdst}, {JUNK}")
        A(f"s_add_u32 s{sEdst}, s{sEdst}, 6144")
        A(f"buffer_load_dwordx4 {P(v.IE)}, {sr(sE,4)}, 0 idxen offen lds")
        n_after += 4
    A(f"s_add_u32 m0, s{sRing}, {((k + 1) & 3) * 2048}")
    A(f"ds_read_b128 {vr(v.pF0,4)}, v{v.P0} offset:{((k + 2) & 3) * 2048}")
    A(f"buffer_load_dwordx4 {P(v.IX0)}, {sr(sP,4)}, 0 idxen offen lds")
    A(f"s_add_u32 m0, s{sRing}, {((k + 1) & 3) * 2048 + 1024}")
    A(f"ds_read_b128 {vr(v.pF1,4)}, v{v.P1} offset:{((k + 2) & 3) * 2048}")
    A(f"buffer_load_dwordx4 {P(v.IX1)}, {sr(sP,4)}, 0 idxen offen lds")
    A(f"ds_read_u16 v{v.IX0}, v{v.R1} offset:{(kk + 6) * 256}")
    A(f"ds_read_u16 v{v.IX1}, v{v.R1} offset:{(kk + 6) * 256 + 64}")
    n_after += 8
    if k % 2 == 1 and not pre:
        A(f"ds_read_b128 {vr(v.aggF,4)}, v{v.E_} offset:{(1 if k == 1 else 0) * 3072 + 2048}")
        n_after += 1
    if k == EK - 1:
        A(f"ds_read_b32 v{v.IE}, v{v.Re} offset:{2 * 1024}")
        n_after += 1
    if not safe and not pre:
        lv = A.label("uv"); lvb = A.label("vb")
        A(f"s_sub_u32 s23, s{sTile}, s{sUT}")
        A(f"s_cmp_lt_u32 s23, 8")
        A(f"s_cbranch_scc1 {lv}")
        A(f"{lvb}:")
        n_after += 3
        B = Asm()
        B(f"{lv}:")
        B(f"s_cmp_ge_u32 s23, 4")
        B(f"s_cbranch_scc1 {lv}x")
        u_load(B, 2*k); u_load(B, 2*k+1)
        B(f"s_branch {lvb}")
        B(f"{lv}x:")
        u_load(B, 8+2*k); u_load(B, 8+2*k+1)
        B(f"s_branch {lvb}")
        ool.append(B.text())
    if n_after < 12:
        A(f"s_nop {12 - n_after - 1}")
    lst(A, k, variant, 12)

def stretch(A, k, variant, ool):
    T = v.T; E = v.E
    order = [0, 1, 8, 9, 2, 3, 10, 11, 4, 5, 12, 13, 6, 7, 14, 15]
    lst(A, k, variant, 94)
    for r in order:
        A(f"v_exp_f32 v{E+r}, v{T+r}")
    if variant != "safe":
        for r in range(4):
            A(f"v_rcp_f32 v{v.RS+r}, v{v.DS+r}")
    if k == 3:
        for s in (f"v_add_u32 v{v.E_}, 6144, v{v.E_}", f"v_add_u32 v{v.R1}, 1024, v{v.R1}",
                  f"v_add_u32 v{v.R2}, 1024, v{v.R2}", f"v_add_u32 v{v.Re}, 1024, v{v.Re}"): A(s)
    if k == 0:
        A(f"v_add_u32 v{v.PROG}, 1, v{v.PROG}")
    lst(A, k, variant, 4)
    A("s_setprio 1")
    mo = v.MSG + 2 * ((k + 1) % 2)
    if variant != "safe":
        A(f"v_pk_fma_f32 {P(v.S)}, {P(v.DS)}, {P(v.DS+2)}, {P(v.S)}")
        A(f"v_pk_mul_f32 {P(v.NS)}, {P(v.NS)}, {P(v.RS)}")
        A(f"v_pk_mul_f32 {P(v.NS+2)}, {P(v.NS+2)}, {P(v.RS+2)}")
    A(f"v_cvt_pk_bf16_f32 v{mo}, v{v.NS}, v{v.NS+1}")
    A(f"v_cvt_pk_bf16_f32 v{mo+1}, v{v.NS+2}, v{v.NS+3}")
    lst(A, k, variant, 6)
    if variant != "safe":
        ops = []
        for gi, g in enumerate((0, 8)):
            t, e = T + g, E + g
            o = [f"v_pk_add_f32 {P(e)}, {P(e)}, {P(v.ONE)}"]
            for u in (1, 2, 3):
                o.append(f"v_pk_fma_f32 {P(t)}, {P(t)}, {P(e+2*u)}, {P(t)}")
                o.append(f"v_pk_fma_f32 {P(t if u < 3 else v.NS+2*gi)}, {P(t+2*u)}, {P(e)}, {P(t)}")
                o.append(f"v_pk_fma_f32 {P(e if u < 3 else v.DS+2*gi)}, {P(e)}, {P(e+2*u)}, {P(e)}")
            ops.append(o)
        for a, b in zip(*ops):
            A(a); A(b)
    else:
        for r in range(0, 16, 2):
            A(f"v_pk_add_f32 {P(E+r)}, {P(E+r)}, {P(v.ONE)}")
        for r in range(16):
            A(f"v_rcp_f32 v{E+r}, v{E+r}")
        A("s_nop 0")
        for u in range(4):
            for gi, g in enumerate((0, 8)):
                if u == 0:
                    A(f"v_pk_mul_f32 {P(T+g)}, {P(T+g)}, {P(E+g)}")
                else:
                    A(f"v_pk_fma_f32 {P(T+g if u < 3 else v.NS+2*gi)}, {P(T+g+2*u)}, {P(E+g+2*u)}, {P(T+g)}")
    lst(A, k, variant, 8)

def gen(opt):
    OPT.clear(); OPT.update(opt)
    A = Asm()
    L = v.lane
    ST = opt.get("stamp", 0)
    PTS = opt.get("pts", "").split(",") if opt.get("pts") else []
    PSL = [44, 46, 48, 50, 96]
    def pt(name):
        if name in PTS:
            r = PSL[PTS.index(name)]
            A(f"s_memtime s[{r}:{r+1}]")
    def stamp(r, real=False):
        if PTS and r == 96: return
        if opt.get("ls") and r in (94, 4, 6, 8, 10, 12, 14): return
        if ST: A(f"s_mem{'real' if real else ''}time s[{r}:{r+1}]")
    ool = []
    WV = v.eF; XV = v.eF + 1; H = v.eF + 2; TRA = v.TRA
    A(f"{KNAME}:")
    stamp(90); stamp(92, True)
    A(f"s_cmp_ge_u32 s2, {NWG}")
    A("s_cbranch_scc1 K_END")
    load_ptrs(A)
    A(f"""
    v_lshrrev_b32 v{v.t0}, 6, v0
    v_and_b32 v{L}, 63, v0
    v_readfirstlane_b32 s3, v{v.t0}
    v_lshlrev_b32 v{v.t3}, 4, v{L}
    s_getpc_b64 {sr(sTB,2)}
    s_add_u32 s{sTB}, s{sTB}, K_TABLE@rel32@lo+4
    s_addc_u32 s{sTB+1}, s{sTB+1}, K_TABLE@rel32@hi+12
    global_load_dwordx4 {vr(v.SEL1,4)}, v{v.t3}, {sr(sTB,2)} offset:3072
    global_load_dwordx4 {vr(v.TAB,4)}, v{v.t3}, {sr(sTB,2)}
    global_load_dwordx4 {vr(v.TAB+4,4)}, v{v.t3}, {sr(sTB,2)} offset:1024
    global_load_dwordx4 {vr(v.SEL0,4)}, v{v.t3}, {sr(sTB,2)} offset:2048
    v_lshlrev_b32 v{v.t2}, 4, v0
    v_lshrrev_b32 v{WV}, 2, v{v.t3}
    v_lshrrev_b32 v{XV}, 4, v{v.t2}
    v_and_b32 v{WV}, 0xc0, v{WV}
    v_and_b32 v{XV}, 0xf0, v{XV}
    v_xor_b32 v{WV}, v{WV}, v{v.t3}
    v_xor_b32 v{XV}, v{XV}, v{v.t2}
    s_lshr_b32 s{sG}, s3, 2
    s_and_b32 s{sC}, s3, 3
    s_cmp_lt_u32 s2, 8
    s_cbranch_scc1 K_LOW
    K_LOWB:
    s_sub_u32 s23, s2, 3
    s_lshr_b32 s{sSl}, s23, 3
    s_cmp_ge_u32 s23, {NCHUNK}
    s_cselect_b32 s{sRole}, {1 - opt.get("r1f", 1)}, {opt.get("r1f", 1)}
    s_cselect_b32 s22, {NCHUNK}, 0
    s_sub_u32 s{sPair}, s23, s22
    s_lshl_b32 s2, s{sPair}, 1
    s_add_u32 s2, s2, s{sRole}
    s_mul_i32 s{sUT}, s{sPair}, {80*256}
    s_sub_u32 s{sX+2}, {N*256}, s{sUT}
    s_mov_b32 s{sX+3}, 0x00020000
    s_lshl_b32 s76, s3, 10
    s_add_u32 s77, s3, s{sSl}
    s_and_b32 s77, s77, {7 if opt.get("rot", 1) else 0}
    {"" if opt.get("rot", 1) else "s_mov_b32 s77, s3"}
    s_lshl_b32 s77, s77, 12
    s_cmp_eq_u32 s{sRole}, 0
    s_waitcnt lgkmcnt(0)
    s_cbranch_scc0 K_GEMM
    """)
    ool.append(f"""K_LOW:
    s_cmp_lg_u32 s3, 7
    s_cbranch_scc1 K_LOW2
    s_getpc_b64 s[22:23]
    K_PC:
    s_sub_u32 s22, s22, K_PC-{KNAME}
    s_subb_u32 s23, s23, 0
    v_lshlrev_b32 v{v.JK}, 7, v{L}
    v_add_u32 v{v.JK2}, 0x2000, v{v.JK}
    v_min_u32 v{v.JK2}, K_CODE_END-{KNAME}-4, v{v.JK2}
    global_load_dword v{v.PROG}, v{v.JK}, s[22:23]
    global_load_dword v{v.FV}, v{v.JK2}, s[22:23]
    K_LOW2:
    s_cmp_lt_u32 s2, 3
    s_cbranch_scc1 K_SPECIAL
    s_branch K_LOWB""")
    def xdma(n):
        A(f"""
        s_add_u32 s{sX}, s{PX}, s{sUT}
        s_addc_u32 s{sX+1}, s{PX+1}, 0
        s_add_u32 m0, s76, {L_X}
        s_movk_i32 s23, 0x2000
        buffer_load_dwordx4 v{XV}, {sr(sX,4)}, 0 offen lds
        s_add_u32 m0, s76, {L_X + 8192}
        s_movk_i32 s22, 0x4000
        buffer_load_dwordx4 v{XV}, {sr(sX,4)}, s23 offen lds
        """)
        if n == 3:
            A(f"s_add_u32 m0, s76, {L_X + 16384}")
            A("s_nop 0")
            A(f"buffer_load_dwordx4 v{XV}, {sr(sX,4)}, s22 offen lds")
    def wdma(soff, lds):
        A(f"s_add_u32 m0, s77, {lds}")
        if soff: A(f"s_add_u32 s22, s77, {soff}")
        else: A("s_nop 0")
        for q in range(4):
            A(f"buffer_load_dwordx4 v{WV}, {sr(sWm,4)}, s{22 if soff else 77} offen offset:{q*1024} lds")
    def w23dma(w2=True):
        if w2: wdma(32768, L_W2)
        A(f"s_add_u32 m0, s76, {L_W3}")
        A(f"s_add_u32 s22, s76, 65536")
        A(f"buffer_load_dwordx4 v{WV}, {sr(sWm,4)}, s22 offen lds")
    def sconsts():
        srd(A, sP, PWS, 0 if opt.get('nop') else N, stride=256)
        srd(A, sE, PE, 0 if opt.get('noe') else E, stride=32)
        srd(A, sOUT, POUT, N * 256)
        srd(A, sDB, PDBG, 256)
        A(f"""
        s_mov_b32 s{sMode}, 0
        s_movk_i32 s{sK3F}, 0x3fff
        s_lshl_b32 s{sRing}, s3, 13
        s_lshr_b32 s22, s{sC}, 1
        s_mul_i32 s22, s22, 3072
        s_bfe_u32 s23, s{sC}, 0x10000
        s_lshl_b32 s23, s23, 10
        s_add_u32 s22, s22, s23
        s_mul_i32 s{sElim}, s{sG}, {GEA}
        s_add_u32 s{sE0}, s{sElim}, s22
        s_add_u32 s{sE0}, s{sE0}, {EA}
        s_and_b32 s{sRel}, s2, 63
        s_lshl_b32 s{sRel}, s{sRel}, 7
        s_add_u32 s{sRel}, s{sRel}, {WS_FLAG + 0x4000}
        """)
    def vconsts():
        A(f"""
        v_add_u32 v{v.P0}, s{sRing}, v{v.P0}
        v_add_u32 v{v.E_}, s{sElim}, v{v.E_}
        s_mul_i32 s22, s{sG}, {GSL*8}
        v_xor_b32 v{v.P1}, 16, v{v.P0}
        v_add_u32 v{v.R1}, s22, v{v.R1}
        v_add_u32 v{v.R2}, s22, v{v.R2}
        s_lshl_b32 s23, s{sC}, 8
        s_add_u32 s22, s22, s23
        v_add_u32 v{v.Re}, s22, v{v.Re}
        s_lshl_b32 s22, s{sC}, 6
        v_or_b32 v{v.IX0+1}, s22, v{v.IXo}
        v_or_b32 v{v.IX1+1}, s22, v{v.IXo}
        v_xor_b32 v{TRA}, s22, v{TRA}
        s_mul_i32 s23, s2, 40
        s_mul_i32 s78, s{sG}, 20
        s_add_u32 s23, s23, s78
        s_lshl_b32 s23, s23, 8
        s_add_u32 s23, s23, s22
        v_add_u32 v{v.OA}, s23, v{v.OAl}
        v_mov_b32 v{v.IE+1}, v{v.IEo}
        s_mul_i32 s22, s3, {8*CH}
        v_add_u32 v{v.EB}, s22, v{v.EB}
        s_mul_i32 s22, s3, {4*3072}
        v_add_u32 v{v.QC}, s22, v{v.QC}
        s_lshl_b32 s22, s3, 2
        v_add_u32 v{v.FW}, s22, v{v.FRo}
        s_lshl_b32 s22, s{sG}, 4
        v_add_u32 v{v.FR}, s22, v{v.FRo}
        v_lshrrev_b32 v{H}, 5, v{L}
        s_add_u32 s{sRing}, s{sRing}, {RING}
        s_add_u32 s{sElim}, s{sElim}, {EA + GEA}
        """)
    def lds_init():
        A(f"""
        s_mul_i32 s22, s3, 3072
        s_add_u32 m0, s22, {EA + 2048}
        s_brev_b32 s23, 2
        buffer_load_dwordx4 v{v.t3}, {sr(sWS,4)}, s23 offen lds
        s_add_u32 m0, s22, {EA + 2048 + 24576}
        s_cmp_lt_u32 s3, 2
        buffer_load_dwordx4 v{v.t3}, {sr(sWS,4)}, s23 offen lds
        s_cselect_b32 s78, 0, {JUNK - (EA + 2048 + 73728) - 7 * 3072}
        s_add_u32 m0, s22, {EA + 2048 + 49152}
        s_cselect_b32 s79, s22, {7 * 3072}
        buffer_load_dwordx4 v{v.t3}, {sr(sWS,4)}, s23 offen lds
        """.replace("s_cselect_b32 s78, 0, " + str(JUNK - (EA + 2048 + 73728) - 7 * 3072) + "\n", "").replace(
            f"        s_add_u32 m0, s22, {EA + 2048 + 49152}\n        s_cselect_b32 s79, s22, {7 * 3072}\n",
            f"        s_cselect_b32 s79, s22, {JUNK - (EA + 2048 + 73728)}\n        s_add_u32 m0, s22, {EA + 2048 + 49152}\n        s_lshl_b32 s22, s3, 10\n"))
        A(f"""
        s_add_u32 m0, s79, {EA + 2048 + 73728}
        s_add_u32 s78, s{sTB}, 4096
        buffer_load_dwordx4 v{v.t3}, {sr(sWS,4)}, s23 offen lds
        s_addc_u32 s79, s{sTB+1}, 0
        s_add_u32 m0, s22, {REC - 1024}
        s_cmp_eq_u32 s3, 7
        global_load_lds_dwordx4 v{v.t3}, s[78:79] offset:1024
        s_cbranch_scc1 {A.label('i7')}
        """)
        l7 = f"L_i7_{A.uid}"
        A(f"""
        s_add_u32 m0, s22, {REC + 8192 - 1024}
        s_nop 0
        global_load_lds_dwordx4 v{v.t3}, s[78:79] offset:1024
        {l7}b:
        """)
        ool.append(f"{l7}:\ns_mov_b32 m0, 0\ns_nop 0\nglobal_load_lds_dwordx4 v{v.t3}, s[78:79]\ns_branch {l7}b")
    def tagshare(x, va):
        A(f"""
        s_cmp_lg_u32 s3, 0
        s_cbranch_scc1 K_NS{x}
        {"s_waitcnt vmcnt(0)" if x == "B" else ""}
        K_TAGOK{x}:
        v_cmp_eq_u32 vcc, 0, v{v.FV}
        s_cbranch_vccnz K_TAG{x}
        ds_write_b32 v{va}, v{v.FV}
        K_NS{x}:
        """)
        ool.append(f"K_TAG{x}:\nbuffer_load_dword v{v.FV}, off, {sr(sDB,4)}, 0 sc1\ns_waitcnt vmcnt(0)\ns_branch K_TAGOK{x}")
    def xred(regs, xs):
        for r, x in zip(regs, xs): A(f"v_bitop3_b32 v{x}, v{r}, v{r+1}, v{r+2} bitop3:0x96")
        for r, x in zip(regs, xs): A(f"v_xor_b32 v{x}, v{x}, v{r+3}")
        for pat in ("quad_perm:[1,0,3,2]", "quad_perm:[2,3,0,1]", "row_half_mirror"):
            if len(xs) < 3: A(f"s_nop {2 - len(xs)}")
            for x in xs: A(f"v_xor_b32_dpp v{x}, v{x}, v{x} {pat} row_mask:0xf bank_mask:0xf")
    def tagload(lbl):
        A(f"""
        s_cmp_lg_u32 s3, 0
        s_cbranch_scc1 {lbl}
        buffer_load_dword v{v.FV}, off, {sr(sDB,4)}, 0 sc1
        {lbl}:
        """)
    def qaddr():
        XA = v.E; GA = v.E + 1; TN = v.E + 2
        A(f"""
        s_mul_i32 s22, s{sG}, 20
        s_mul_i32 s23, s{sRole}, 40
        s_add_u32 s22, s22, s23
        v_and_b32 v{XA}, 31, v{L}
        v_add_u32 v{XA}, s22, v{XA}
        v_xor_b32 v{GA}, v{XA}, v{H}
        v_and_b32 v{GA}, 15, v{GA}
        v_lshl_or_b32 v{XA}, v{XA}, 4, v{GA}
        s_mov_b32 s22, {L_X}
        v_lshl_add_u32 v{XA}, v{XA}, 4, s22
        v_lshl_add_u32 v{TN}, v{H}, 11, v{TRA}
        v_add_u32 v{TN}, {L_W2}, v{TN}
        """)
    def qreads():
        XA = v.E; GA = v.E + 1; TN = v.E + 2
        for s_ in range(8):
            A(f"ds_read_b64_tr_b16 {vr(v.WA+4*s_,2)}, v{TN} offset:{s_*4096}")
            A(f"ds_read_b64_tr_b16 {vr(v.WA+4*s_+2,2)}, v{TN} offset:{s_*4096+1024}")
            if s_: A(f"v_xor_b32 v{GA}, {s_*32}, v{XA}")
            A(f"ds_read_b128 {vr(v.XF+4*s_,4)}, v{GA if s_ else XA}")
        A(f"ds_read_b64_tr_b16 {vr(v.W3F,2)}, v{TN} offset:32768")
        A(f"ds_read_b64_tr_b16 {vr(v.W3F+2,2)}, v{TN} offset:33792")
    def qmfma():
        for s_ in range(8):
            A(f"s_waitcnt lgkmcnt({min(15, 3*(7-s_) + 2)})")
            A(mfma(v.E, v.XF + 4*s_, v.WA + 4*s_, "0" if s_ == 0 else None))
            A(f"v_mov_b64 {P(v.ACC+2*s_)}, 0")
        A(f"""
        s_mov_b32 s72, {NEG_LOG2E:#x}
        v_cmp_gt_u32 {sr(sN40,2)}, 40, v{L}
        v_cmp_le_u32 {sr(sG1,2)}, 20, v{L}
        v_mov_b32 v{v.ONE}, 1.0
        v_mov_b32 v{v.ONE+1}, 1.0
        s_waitcnt lgkmcnt(0)
        """)
        for r in range(4):
            A(f"""
            v_lshlrev_b32 v{v.S}, 16, v{v.W3F+r}
            v_and_b32 v{v.S+1}, 0xffff0000, v{v.W3F+r}
            v_mul_f32 v{v.S}, s72, v{v.S}
            v_mul_f32 v{v.S+1}, s72, v{v.S+1}
            v_cvt_pk_bf16_f32 v{v.W3F+r}, v{v.S}, v{v.S+1}
            """)
    def post(x):
        A(f"""
        s_cmp_lg_u32 s3, 0
        s_cbranch_scc1 K_NP{x}
        v_readfirstlane_b32 s{sTag}, v{v.FV}
        s_cmp_eq_u32 s{sTag}, 0
        s_cbranch_scc1 K_TAG{x}
        K_TAGOK{x}:
        s_mov_b64 exec, 1
        buffer_store_dword v{v.FV}, off, {sr(sWS,4)}, s{sUoff} sc1
        s_mov_b64 exec, -1
        K_NP{x}:
        """)
        ool.append(f"K_TAG{x}:\nbuffer_load_dword v{v.FV}, off, {sr(sDB,4)}, 0 sc1\ns_waitcnt vmcnt(0)\nv_readfirstlane_b32 s{sTag}, v{v.FV}\ns_cmp_eq_u32 s{sTag}, 0\ns_cbranch_scc1 K_TAG{x}\ns_branch K_TAGOK{x}")
    MC = opt.get("mc", 0)
    D, S, RK, AD = v.T, v.T + 8, v.T1, v.T1 + 8
    CW = v.E
    A(f"s_mul_i32 s22, s{sPair}, {CH*4}")
    srd(A, sD, PDST, CH * 4, add="s22")
    A(f"""
    v_lshlrev_b32 v{v.t1}, 2, v0
    s_movk_i32 s23, 0x2000
    buffer_load_dwordx4 {vr(D,4)}, v{v.t2}, {sr(sD,4)}, 0 offen
    buffer_load_dword v{D+4}, v{v.t1}, {sr(sD,4)}, s23 offen
    """)
    srd(A, sS, PSRC, CH * 4, add="s22")
    A(f"""
    buffer_load_dwordx4 {vr(S,4)}, v{v.t2}, {sr(sS,4)}, 0 offen
    buffer_load_dword v{S+4}, v{v.t1}, {sr(sS,4)}, s23 offen
    v_mov_b64 {P(CW)}, -1
    v_mov_b64 {P(CW+2)}, -1
    v_mov_b32 v{CW+4}, 0
    ds_write_b128 v{v.t2}, {vr(CW,4)}
    ds_write_b128 v{v.t2}, {vr(CW,4)} offset:8192
    ds_write_b128 v{v.t2}, {vr(CW,4)} offset:16384
    ds_write_b128 v{v.t2}, {vr(CW,4)} offset:24576
    ds_write_b32 v{v.t1}, v{CW+4} offset:32768
    """)
    srd(A, sWm, PWM, 272 * 256)
    EARLY0 = opt.get("e0", 0)
    P0M = opt.get("p0", 2)
    if P0M == 1:
        xdma(2); w23dma(False)
    nb0 = 3 if P0M == 1 else 0
    srd(A, sWS, PWS, WS_END if not ST else 0x1000000)
    sconsts()
    A(f"""
    v_lshlrev_b32 v{CW+6}, 22, v0
    v_add_u32 v{CW+7}, 0x800, v0
    v_lshlrev_b32 v{CW+7}, 20, v{CW+7}
    v_mov_b32 v{CW+5}, 16
    s_mov_b32 s72, -10
    s_mov_b32 s73, 0x100000
    s_mov_b32 s74, 0x200000
    s_mov_b32 s75, 0x300000
    s_lshl_b32 s78, s{sPair}, 15
    s_add_u32 s78, s78, {WS_CELL}
    v_mov_b32 v{CW+9}, {32768 + 1024}
    s_movk_i32 s79, {31*16}
    s_waitcnt lgkmcnt(0)
    s_barrier
    s_waitcnt vmcnt({2 + nb0})
    """)
    stamp(94)
    tagload("K_NT1")
    t = CW + 8
    for j in range(5):
        A(f"""
        v_mul_u32_u24 v{AD+j}, 0xcccd, v{D+j}
        v_lshrrev_b32 v{AD+j}, 19, v{AD+j}
        v_and_b32 v{AD+j}, -4, v{AD+j}
        ds_add_rtn_u32 v{RK+j}, v{AD+j}, v{CW+5} offset:32768
        """)
    if P0M == 1:
        wdma(32768, L_W2); nb0 += 4
    if P0M == 2:
        xdma(2); w23dma(); nb0 += 7
    for j in range(5):
        A(f"v_mad_i32_i24 v{D+j}, v{AD+j}, s72, v{D+j}")
    A(f"s_waitcnt vmcnt({nb0})")
    tagshare("A", CW + 9)
    for j in range(5):
        d = D + j
        A(f"v_lshl_or_b32 v{d}, v{d}, 14, v{S+j}")
        if j == 0: A(f"v_add_u32 v{d}, v{d}, v{CW+6}")
        elif j < 4: A(f"v_add3_u32 v{d}, v{d}, v{CW+6}, s{72+j}")
        else: A(f"v_add_u32 v{d}, v{d}, v{CW+7}")
    A("s_waitcnt lgkmcnt(0)")
    pt("rk")
    A(f"v_max3_u32 v{t}, v{RK}, v{RK+1}, v{RK+2}")
    A(f"v_max3_u32 v{t}, v{t}, v{RK+3}, v{RK+4}")
    A(f"v_cmp_le_u32 vcc, s79, v{t}")
    A("s_cbranch_vccnz K_BOVF")
    A("K_BOVB:")
    B = Asm()
    B("K_BOVF:")
    B(f"v_mov_b32 v{t}, -2")
    for j in range(5):
        B(f"v_cmp_le_u32 vcc, s79, v{RK+j}")
        B(f"v_min_u32 v{RK+j}, s79, v{RK+j}")
        B("s_nop 0")
        B(f"v_cndmask_b32 v{D+j}, v{D+j}, v{t}, vcc")
    B("s_branch K_BOVB")
    ool.append(B.text())
    for j in range(5):
        r = RK + j
        A(f"""
        v_lshrrev_b32 v{t}, 5, v{r}
        v_and_b32 v{r}, 0x70, v{r}
        v_and_or_b32 v{r}, v{t}, 12, v{r}
        v_lshl_add_u32 v{r}, v{AD+j}, 5, v{r}
        ds_write_b32 v{r}, v{D+j}
        """)
    A(f"""
    s_add_u32 s73, s78, 8192
    s_add_u32 s74, s78, 16384
    s_add_u32 s75, s78, 24576
    s_waitcnt lgkmcnt(0)
    s_barrier
    """)
    pt("cb")
    A(f"""
    ds_read_b32 v{v.FV}, v{CW+9}
    ds_read_b128 {vr(v.T,4)}, v{v.t2}
    ds_read_b128 {vr(v.T+4,4)}, v{v.t2} offset:8192
    ds_read_b128 {vr(v.T+8,4)}, v{v.t2} offset:16384
    ds_read_b128 {vr(v.T+12,4)}, v{v.t2} offset:24576
    s_waitcnt lgkmcnt(0)
    v_not_b32 v{v.T1+4}, v{v.FV}
    """)
    xred([v.T + 4*q for q in range(4)], [v.T1 + q for q in range(4)])
    A("s_mov_b32 exec_lo, 0x80808080")
    A("s_mov_b32 exec_hi, 0x80808080")
    for q in range(4):
        A(f"v_xor_b32 v{v.T+4*q+3}, v{v.T1+q}, v{v.T1+4}")
    A("s_mov_b64 exec, -1")
    for q in range(4):
        A(f"buffer_store_dwordx4 {vr(v.T+4*q,4)}, v{v.t2}, {sr(sWS,4)}, s{(78,73,74,75)[q]} offen sc1")
    stamp(4)
    vconsts()
    A("s_waitcnt vmcnt(4)")
    A("s_branch K_COM0")
    A("K_GEMM:")
    pt("k0")
    if opt.get("wfirst"):
        srd(A, sWm, PWM, 272 * 256)
        wdma(0, 0)
        xdma(3)
    else:
        xdma(3)
        srd(A, sWm, PWM, 272 * 256)
        wdma(0, 0)
    G1M = opt.get("g1", 2)
    pt("g0")
    if G1M == 0: w23dma()
    pt("g1")
    srd(A, sWS, PWS, WS_END if not ST else 0x1000000)
    sconsts()
    XA = v.E; PA = v.E + 1; GA = v.E + 2; TN = v.E + 3
    A(f"""
    s_lshl_b32 s{sPair}, s{sPair}, 4
    s_add_u32 s{sPair}, s{sPair}, {WS_FLAG + 0x2000}
    s_mov_b32 s72, {NEG_LOG2E:#x}
    s_add_u32 s73, s{sUT}, 0x2000
    s_add_u32 s74, s{sUT}, 0x4000
    s_cmp_ge_u32 s3, 4
    s_cselect_b32 s74, 0x40000000, s74
    v_add_u32 v{v.JK3}, {L_BN}, v{v.t2}
    v_and_b32 v{XA}, 31, v{L}
    s_lshl_b32 s22, s{sG}, 5
    v_add_u32 v{XA}, s22, v{XA}
    s_waitcnt vmcnt({12 if G1M == 0 else 7})
    """)
    pt("g2")
    vconsts()
    A(f"""
    v_lshl_add_u32 v{TN}, v{H}, 11, v{TRA}
    s_lshl_b32 s22, s{sC}, 2
    v_lshl_add_u32 v{PA}, v{H}, 1, s22
    v_xor_b32 v{PA}, v{PA}, v{XA}
    v_and_b32 v{PA}, 15, v{PA}
    v_lshl_or_b32 v{PA}, v{XA}, 4, v{PA}
    s_mov_b32 s22, {L_BN}
    v_lshl_add_u32 v{PA}, v{PA}, 4, s22
    v_xor_b32 v{GA}, v{H}, v{XA}
    v_and_b32 v{GA}, 15, v{GA}
    v_lshl_or_b32 v{XA}, v{XA}, 4, v{GA}
    s_mov_b32 s22, {L_X}
    v_lshl_add_u32 v{XA}, v{XA}, 4, s22
    """)
    for s_ in range(1, 8):
        A(f"v_xor_b32 v{v.E+8+s_}, {s_*32}, v{XA}")
    pt("g3")
    if "gx" in PTS:
        A("s_waitcnt vmcnt(4)")
        pt("gx")
        A("s_waitcnt vmcnt(0)")
        pt("gw")
    if G1M == 1: w23dma()
    A(f"s_waitcnt vmcnt({5 if G1M < 2 else 0})")
    A("s_barrier")
    stamp(94)
    for s_ in range(8):
        A(f"ds_read_b64_tr_b16 {vr(v.WA+4*s_,2)}, v{TN} offset:{s_*4096}")
        A(f"ds_read_b64_tr_b16 {vr(v.WA+4*s_+2,2)}, v{TN} offset:{s_*4096+1024}")
        A(f"ds_read_b128 {vr(v.XF+4*s_,4)}, v{v.E+8+s_ if s_ else XA}")
    if G1M == 2: w23dma()
    A(f"s_cmp_lg_u32 s{sG}, 0")
    A("s_cbranch_scc1 K_G1")
    for s_ in range(8):
        A(f"ds_read_b128 {vr(v.U2+4*s_,4)}, v{v.E+8+s_ if s_ else XA} offset:16384")
    tagload("K_NT2")
    for s_ in range(8):
        A(f"s_waitcnt lgkmcnt({min(15, 3*(7-s_) + 8)})")
        A(mfma(v.T, v.WA + 4*s_, v.XF + 4*s_, "0" if s_ == 0 else None))
    for s_ in range(8):
        A(f"s_waitcnt lgkmcnt({7-s_})")
        A(mfma(v.T1, v.WA + 4*s_, v.U2 + 4*s_, "0" if s_ == 0 else None))
    def pout(acc, off, pk):
        for r in range(0, 16, 2):
            if pk:
                A(f"v_pk_mul_f32 {P(acc+r)}, {P(acc+r)}, s[72:73] op_sel_hi:[1,0]")
            else:
                A(f"v_mul_f32 v{acc+r}, s72, v{acc+r}")
                A(f"v_mul_f32 v{acc+r+1}, s72, v{acc+r+1}")
        for r in range(0, 16, 2):
            A(f"v_cvt_pk_bf16_f32 v{acc+r//2}, v{acc+r}, v{acc+r+1}")
        A(f"ds_write_b128 v{PA}, {vr(acc,4)} offset:{off}")
        A(f"ds_write_b128 v{GA}, {vr(acc+4,4)} offset:{off}")
    A(f"v_xor_b32 v{GA}, 16, v{PA}")
    pout(v.T, 0, False)
    pout(v.T1, 16384, True)
    A("s_branch K_G3")
    A("K_G1:")
    for s_ in range(8):
        A(f"s_waitcnt lgkmcnt({min(15, 3*(7-s_))})")
        A(mfma(v.T, v.WA + 4*s_, v.XF + 4*s_, "0" if s_ == 0 else None))
    A(f"v_xor_b32 v{GA}, 16, v{PA}")
    A("s_nop 10")
    pout(v.T, 0, False)
    A("K_G3:")
    pt("g4")
    A(f"v_mov_b32 v{v.JK}, {L_BN + 24576}")
    tagshare("B", v.JK)
    A(f"""
    s_waitcnt lgkmcnt(0)
    s_barrier
    ds_read_b32 v{v.FV}, v{v.JK}
    ds_read_b128 {vr(v.T,4)}, v{v.JK3}
    ds_read_b128 {vr(v.T+4,4)}, v{v.JK3} offset:8192
    ds_read_b128 {vr(v.T+8,4)}, v{v.JK3} offset:16384
    s_waitcnt lgkmcnt(2)
    buffer_store_dwordx4 {vr(v.T,4)}, v{XV}, {sr(sWS,4)}, s{sUT} offen sc1
    s_waitcnt lgkmcnt(1)
    buffer_store_dwordx4 {vr(v.T+4,4)}, v{XV}, {sr(sWS,4)}, s73 offen sc1
    s_waitcnt lgkmcnt(0)
    buffer_store_dwordx4 {vr(v.T+8,4)}, v{XV}, {sr(sWS,4)}, s74 offen sc1
    """)
    stamp(4)
    A("s_waitcnt vmcnt(3)")
    A("K_COM0:")
    A(f"v_readfirstlane_b32 s{sTag}, v{v.FV}")
    qaddr()
    A("s_barrier")
    pt("c1")
    qreads()
    lds_init()
    pt("c2")
    qmfma()
    stamp(6)
    A("K_COMMON:")
    pt("c3")
    for r in range(0, 12, 2):
        A(f"v_pk_mul_f32 {P(v.E+r)}, {P(v.E+r)}, s[72:73] op_sel_hi:[1,0]")
    A(f"""
    v_cvt_pk_bf16_f32 v{v.QS}, v{v.E}, v{v.E+1}
    v_cvt_pk_bf16_f32 v{v.QS+1}, v{v.E+2}, v{v.E+3}
    v_cvt_pk_bf16_f32 v{v.QF+2}, v{v.E+4}, v{v.E+5}
    v_cvt_pk_bf16_f32 v{v.QF+3}, v{v.E+6}, v{v.E+7}
    v_cvt_pk_bf16_f32 v{v.QS+2}, v{v.E+8}, v{v.E+9}
    v_cvt_pk_bf16_f32 v{v.QS+3}, v{v.E+10}, v{v.E+11}
    s_lshl_b32 s{sUoff}, s{sC}, 13
    s_add_u32 s{sUoff}, s{sUoff}, {WS_U}
    """)
    def round_regs():
        A(f"""
        v_mov_b32 v{v.TPa+1}, v{v.IX0+1}
        v_mov_b32 v{v.TPb+1}, v{v.IX0+1}
        v_mov_b32 v{v.IEb+1}, v{v.IE+1}
        v_mov_b32 v{v.aggF}, 1
        v_mov_b64 {P(v.REC+4)}, -1
        v_mov_b64 {P(v.REC+6)}, -1
        v_add_u32 v{v.JK}, {64 * CH}, v{v.EB}
        """)
    def cell_addr():
        A(f"""
        s_lshl_b32 s22, s2, 7
        s_add_u32 s22, s22, {WS_CELL}
        s_add_u32 s23, s22, {64*32768}
        s_movk_i32 s76, {1000 - 512}
        v_cmp_gt_u32 s[76:77], s76, v0
        v_lshrrev_b32 v{v.t0}, 3, v0
        v_and_b32 v{v.t1}, 7, v0
        v_lshlrev_b32 v{v.t1}, 4, v{v.t1}
        v_lshl_add_u32 v{v.DS}, v{v.t0}, 15, v{v.t1}
        """)
    round_regs()
    A(f"""
    s_cmp_eq_u32 s{sRole}, 0
    s_cbranch_scc1 {"K2_B3" if opt.get("isl") else "K2_B2"}
    s_waitcnt vmcnt(6)
    s_barrier
    s_cmp_eq_u32 s3, 0
    s_cbranch_scc1 K2_B1
    K2_B2:
    """)
    stamp(8)
    A("K2_CELLS:")
    cell_addr()
    A("s_mov_b64 s[74:75], -1")
    A("s_and_b32 s72, s76, 0x80808080")
    A("s_and_b32 s73, s77, 0x80808080")
    stamp(10)
    A(f"""
    K_POLL:
    s_mov_b64 exec, s[74:75]
    buffer_load_dwordx4 {vr(v.REC,4)}, v{v.DS}, {sr(sWS,4)}, s22 offen sc1
    s_mov_b64 exec, s[76:77]
    buffer_load_dwordx4 {vr(v.REC+4,4)}, v{v.DS}, {sr(sWS,4)}, s23 offen sc1
    s_mov_b64 exec, -1
    buffer_load_dword v{v.JK2}, off, {sr(sWS,4)}, s{sRel} sc1
    s_waitcnt vmcnt(0)
    """)
    xred([v.REC, v.REC + 4], [v.NS, v.NS + 1])
    A(f"""
    v_xor_b32 v{v.NS}, s{sTag}, v{v.NS}
    v_xor_b32 v{v.NS+1}, s{sTag}, v{v.NS+1}
    v_cmp_lt_u32 s[74:75], 1, v{v.NS}
    v_cmp_lt_u32 vcc, 1, v{v.NS+1}
    s_and_b64 s[76:77], s[76:77], vcc
    s_or_b64 s[78:79], s[74:75], s[76:77]
    s_cbranch_scc1 K_POLL2
    s_mov_b32 exec_lo, 0x80808080
    s_mov_b32 exec_hi, 0x80808080
    v_not_b32 v{v.REC+3}, v{v.NS}
    s_mov_b64 exec, s[72:73]
    v_not_b32 v{v.REC+7}, v{v.NS+1}
    s_mov_b64 exec, -1
    """)
    A(f"""
    s_cmp_lg_u32 s{sMode}, 0
    s_barrier
    s_cbranch_scc1 K2_COUNT
    ds_read_b128 {vr(v.SEL0,4)}, v{v.S0a}
    ds_read_b128 {vr(v.SEL1,4)}, v{v.S1a}
    K2_COUNT:
    """)
    ool.append(f"K2_B1:\ns_mov_b64 exec, 1\nbuffer_store_dword v{v.FV}, off, {sr(sWS,4)}, s{sPair} sc1\ns_mov_b64 exec, -1\ns_branch K2_B2")
    if opt.get("isl"): ool.append(f"K2_B3:\ns_waitcnt vmcnt(6)\ns_sleep {opt.get('isl') - 1}\ns_branch K2_B2")
    ool.append(f"K_POLL2:\ns_sleep {opt.get('slp', 12)}\ns_branch K_POLL")
    stamp(12)
    ET = opt.get("et", 4)
    W0 = {0: v.W0, 1: v.W0 + 2, 4: v.W0 + 4, 5: v.W0 + 6}
    for j in range(8):
        main = j % 4 < 2
        body = f"""
        v_lshrrev_b32 v{v.AD+j}, 12, v{v.REC+j}
        v_and_b32 v{v.AD+j}, 0xfc, v{v.AD+j}
        s_mov_b64 exec, {sr(sM+2*j,2)}
        ds_add_rtn_u32 v{v.RANK+j}, v{v.AD+j}, v{v.aggF} offset:{CNT}
        """
        A(f"v_cmp_gt_u32 {sr(sM+2*j,2)}, -2, v{v.REC+j}")
        if main:
            A(body)
            A(f"v_lshrrev_b32 v{W0[j]+1}, 20, v{v.REC+j}")
            if ET:
                A(f"v_subrev_u32 v{v.t0}, 80, v{v.AD+j}")
            A(f"v_add_u32 v{W0[j]+1}, v{W0[j]+1}, v{v.EB if j < 4 else v.JK}")
            if ET:
                A(f"v_min_u32 v{v.t0}, v{v.t0}, v{v.AD+j}")
                A(f"v_cmpx_gt_u32 vcc, {4*ET}, v{v.t0}")
                A(f"buffer_load_dword v{v.JK3}, v{W0[j]+1}, {sr(sE,4)}, 0 idxen")
            A("s_mov_b64 exec, -1")
        else:
            l = A.label("cs"); lb = A.label("cb")
            body += "s_mov_b64 exec, -1\n"
            if j % 4 == 3:
                A(f"v_cmp_eq_u32 vcc, -2, v{v.REC+j}")
                A(f"s_or_b64 s[22:23], {sr(sM+2*j,2)}, vcc")
                body += f"s_cbranch_vccz {lb}\nv_mov_b32 v{v.t1}, {FLAG}\nds_write_b32 v{v.t1}, v{v.aggF}\n"
            else:
                A(f"s_cmp_lg_u64 {sr(sM+2*j,2)}, 0")
            A(f"s_cbranch_scc1 {l}")
            A(f"{lb}:")
            ool.append(f"{l}:\n{body}\ns_branch {lb}")
    NPF = opt.get("pf", 0)
    if NPF:
        A(f"""
        s_or_b32 s22, s3, s{sMode}
        s_cmp_lg_u32 s22, 0
        s_cbranch_scc1 K2_NOPF
        v_cmp_ne_u32 vcc, s{sTag}, v{v.JK2}
        s_cbranch_vccnz K2_NOPF
        s_mul_i32 s22, s{sSl}, 81920
        v_lshlrev_b32 v{v.t0}, 7, v{L}
        """)
        for q in range(NPF):
            A(f"buffer_load_dword v{v.JK3}, v{v.t0}, {sr(sWS,4)}, s22 offen")
            if q < NPF - 1: A("s_add_u32 s22, s22, 8192")
        A("K2_NOPF:")
    c = v.t0; pd = v.OHA
    A(f"""
    v_lshlrev_b32 v{v.t0}, 2, v{L}
    v_mov_b32 v{v.t1}, {FLAG}
    s_mul_i32 s22, s{sG}, 20
    s_add_u32 s22, s22, 8
    s_waitcnt lgkmcnt(0)
    s_barrier
    """)
    pt("b2")
    A(f"""
    ds_read_b32 v{v.t0}, v{v.t0} offset:{CNT}
    ds_read_b32 v{v.t1}, v{v.t1}
    s_waitcnt lgkmcnt(0)
    v_add_u32 v{c}, 3, v{c}
    v_and_b32 v{c}, -4, v{c}
    v_max_u32 v{c}, 4, v{c}
    v_cndmask_b32 v{pd}, 0, v{c}, {sr(sN40,2)}
    v_readfirstlane_b32 s23, v{v.t1}
    s_nop 0
    v_add_u32_dpp v{c}, v{pd}, v{pd} row_shr:1 row_mask:0xf bank_mask:0xf bound_ctrl:0
    s_nop 1
    v_add_u32_dpp v{c}, v{c}, v{c} row_shr:2 row_mask:0xf bank_mask:0xf bound_ctrl:0
    s_nop 1
    v_add_u32_dpp v{c}, v{c}, v{c} row_shr:4 row_mask:0xf bank_mask:0xf bound_ctrl:0
    s_nop 1
    v_add_u32_dpp v{c}, v{c}, v{c} row_shr:8 row_mask:0xf bank_mask:0xf bound_ctrl:0
    s_nop 1
    v_add_u32_dpp v{c}, v{c}, v{c} row_bcast:15 row_mask:0xa bank_mask:0xf
    s_nop 1
    v_add_u32_dpp v{c}, v{c}, v{c} row_bcast:31 row_mask:0xc bank_mask:0xf
    s_cmp_lg_u32 s23, -1
    s_cbranch_scc1 K2_OVF
    v_readlane_b32 s{sT0}, v{c}, 19
    v_readlane_b32 s{sT1}, v{c}, 39
    v_sub_u32 v{pd}, v{c}, v{pd}
    s_sub_u32 s23, {GSL}, s{sT0}
    v_add_u32 v{c}, s23, v{pd}
    v_cndmask_b32 v{pd}, v{pd}, v{c}, {sr(sG1,2)}
    v_add_u32 v{v.FV}, v{pd}, v{v.OHB}
    """)
    for j in (0, 1, 4, 5):
        A(f"ds_bpermute_b32 v{v.PK+j}, v{v.AD+j}, v{v.FV}")
    A(f"""
    v_readlane_b32 s{sTsw}, v{pd}, s22
    s_sub_u32 s{sT1}, s{sT1}, s{sT0}
    s_max_u32 s22, s{sT0}, s{sT1}
    s_cmp_gt_u32 s22, {GSL}
    s_cbranch_scc1 K2_OVF
    s_waitcnt lgkmcnt(0)
    """)
    pt("sc")
    for j in (0, 1, 4, 5, 2, 3, 6, 7):
        rare = (j % 4) >= 2
        w = v.W0 + 8 if rare else W0[j]
        body = f"""
        s_mov_b64 exec, {sr(sM+2*j,2)}
        v_add_u32_sdwa v{v.RANK+j}, v{v.PK+j}, v{v.RANK+j} dst_sel:DWORD dst_unused:UNUSED_PAD src0_sel:WORD_0 src1_sel:DWORD
        v_bfi_b32 v{w}, s{sK3F}, v{v.REC+j}, v{v.PK+j}
        v_lshlrev_b32 v{v.PK+j}, 3, v{v.RANK+j}
        v_lshrrev_b32 v{v.RANK+j}, 2, v{v.RANK+j}
        ds_write_b64 v{v.PK+j}, {P(w)} offset:{REC}
        ds_write_b8 v{v.RANK+j}, v{v.AD+j} offset:{QN}
        """
        if rare:
            l = A.label("ss"); lb = A.label("sb")
            A(f"s_cmp_lg_u64 {sr(sM+2*j,2)}, 0")
            A(f"s_cbranch_scc1 {l}")
            A(f"{lb}:")
            ool.append(f"{l}:\ns_mov_b64 exec, -1\nds_bpermute_b32 v{v.PK+j}, v{v.AD+j}, v{v.FV}\nv_lshrrev_b32 v{w+1}, 20, v{v.REC+j}\nv_add_u32 v{w+1}, v{w+1}, v{v.EB if j < 4 else v.JK}\ns_waitcnt lgkmcnt(0)\n{body}\ns_branch {lb}")
        else:
            A(body)
    A(f"""
    s_mov_b64 exec, -1
    s_or_b32 s22, s3, s{sMode}
    s_cmp_lg_u32 s22, 0
    s_cbranch_scc1 K2_RDY
    v_cmp_ne_u32 vcc, s{sTag}, v{v.JK2}
    s_cbranch_vccnz {"K2_SPOLL" if opt.get("sp", 1) else "K2_RPOLL"}
    K2_RDY:
    s_mov_b32 m0, s{sRing}
    s_waitcnt lgkmcnt(0)
    s_barrier
    """)
    ool.append(f"K2_RPOLL:\nbuffer_load_dword v{v.JK2}, off, {sr(sWS,4)}, s{sRel} sc1\ns_waitcnt vmcnt(0)\nv_cmp_ne_u32 vcc, s{sTag}, v{v.JK2}\ns_cbranch_vccz K2_RDY\ns_sleep 1\ns_branch K2_RPOLL")
    ool.append(f"K2_SPOLL:\ns_mov_b32 s23, 0\nK2_SP2:\ns_buffer_load_dword s22, {sr(sWS,4)}, s{sRel} glc\ns_waitcnt lgkmcnt(0)\ns_cmp_eq_u32 s22, s{sTag}\ns_cbranch_scc1 K2_RDY\ns_add_u32 s23, s23, 1\ns_cmp_lt_u32 s23, 16\ns_cbranch_scc1 K2_SP2\ns_branch K2_RPOLL")
    stamp(14)
    A(f"""
    ds_read_u16 v{v.IX0}, v{v.R1}
    ds_read_u16 v{v.IX1}, v{v.R1} offset:64
    ds_read_b32 v{v.IE}, v{v.Re}
    ds_read_u8 v{v.t0}, v0 offset:{QN}
    ds_read_u16 v{v.TPa}, v{v.R1} offset:256
    ds_read_u16 v{v.TPb}, v{v.R1} offset:320
    ds_read_b32 v{v.IEb}, v{v.Re} offset:1024
    ds_read_u8 v{v.OH0}, v{v.R2}
    ds_read_u8 v{v.OHA}, v{v.R2} offset:256
    s_waitcnt lgkmcnt(8)
    buffer_load_dwordx4 {P(v.IX0)}, {sr(sP,4)}, 0 idxen offen lds
    s_add_u32 m0, s{sRing}, 1024
    s_waitcnt lgkmcnt(7)
    buffer_load_dwordx4 {P(v.IX1)}, {sr(sP,4)}, 0 idxen offen lds
    s_mov_b32 m0, s{sE0}
    s_waitcnt lgkmcnt(5)
    buffer_load_dwordx4 {P(v.IE)}, {sr(sE,4)}, 0 idxen offen lds
    v_cmp_ne_u32 vcc, 0xff, v{v.t0}
    v_subrev_u32 v{v.t1}, 80, v{v.t0}
    v_min_u32 v{v.t0}, v{v.t0}, v{v.t1}
    v_lshl_add_u32 v{v.t1}, v{v.t0}, 3, v{v.QC}
    v_lshrrev_b32 v{v.t0}, 1, v{v.t0}
    v_and_b32 v{v.t0}, 16, v{v.t0}
    v_xor_b32 v{v.t1}, v{v.t1}, v{v.t0}
    v_mov_b32 v{v.t0}, 0x3f80
    s_mov_b64 exec, vcc
    ds_write_b16 v{v.t1}, v{v.t0}
    s_mov_b64 exec, -1
    s_add_u32 m0, s{sRing}, 2048
    s_waitcnt lgkmcnt(0)
    buffer_load_dwordx4 {P(v.TPa)}, {sr(sP,4)}, 0 idxen offen lds
    s_add_u32 m0, s{sRing}, 3072
    ds_read_u16 v{v.IX0}, v{v.R1} offset:512
    buffer_load_dwordx4 {P(v.TPb)}, {sr(sP,4)}, 0 idxen offen lds
    ds_read_u16 v{v.IX1}, v{v.R1} offset:576
    ds_read_u16 v{v.TPa}, v{v.R1} offset:768
    ds_read_u16 v{v.TPb}, v{v.R1} offset:832
    s_mul_i32 s22, s{sG}, {GSL}
    s_sub_u32 s{sTsw}, s{sTsw}, s22
    s_add_u32 s{sTsw}, s{sTsw}, 31
    s_lshr_b32 s{sTsw}, s{sTsw}, 5
    s_add_u32 s{sT0}, s{sT0}, 31
    s_lshr_b32 s{sT0}, s{sT0}, 5
    s_add_u32 s{sT1}, s{sT1}, 31
    s_lshr_b32 s{sT1}, s{sT1}, 5
    s_cmp_gt_u32 s{sT0}, s{sT1}
    s_cselect_b32 s{sLate}, 1, 0
    s_xor_b32 s{sLate}, s{sLate}, s{sG}
    s_cmp_eq_u32 s{sG}, 0
    s_cselect_b32 s{sTg}, s{sT0}, s{sT1}
    s_sub_u32 s{sUT}, s{sTg}, 9
    s_and_b32 s{sUT}, s{sUT}, -4
    s_add_u32 s{sUT}, s{sUT}, 1
    s_cmp_lt_u32 s{sTg}, 9
    s_cselect_b32 s{sUT}, {BIG}, s{sUT}
    s_cmp_lg_u32 s{sMode}, 0
    s_cselect_b32 s{sUT}, {BIG}, s{sUT}
    s_sub_u32 s22, s{sTg}, 1
    s_lshr_b32 s22, s22, 1
    s_mul_i32 s22, s22, 3072
    s_add_u32 s22, s22, {3072 + 2048}
    v_add_u32 v{v.LA}, s22, v{v.E_}
    s_add_u32 s{sEdst}, s{sE0}, {6144 if opt.get('ek', 3) == 3 else 12288}
    s_mov_b32 s{sTile}, 0
    v_mov_b32 v{v.PROG}, 1
    v_mov_b64 {P(v.QF)}, {P(v.QS)}
    v_mov_b64 {P(v.NS)}, 0
    v_mov_b64 {P(v.NS+2)}, 0
    v_mov_b64 {P(v.DS)}, {P(v.ONE)}
    v_mov_b64 {P(v.DS+2)}, {P(v.ONE)}
    v_mov_b64 {P(v.MSG)}, 0
    v_mov_b64 {P(v.aggF)}, 0
    v_mov_b64 {P(v.aggF+2)}, 0
    v_mov_b64 {P(v.S)}, 0
    s_cmp_lg_u32 s{sMode}, 0
    s_waitcnt vmcnt(2) lgkmcnt(0)
    s_barrier
    """)
    stamp(16)
    A(f"""
    ds_read_b128 {vr(v.ohF,4)}, v{v.OH0}
    ds_read_b128 {vr(v.eF,4)}, v{v.E_} offset:3072
    ds_read_b128 {vr(v.pF0,4)}, v{v.P0}
    ds_read_b128 {vr(v.pF1,4)}, v{v.P1}
    s_cbranch_scc1 K2_SAFEP
    """)
    def late_issue():
        A(f"""
        s_add_u32 m0, s{sRing}, 4096
        s_nop 0
        buffer_load_dwordx4 {P(v.IX0)}, {sr(sP,4)}, 0 idxen offen lds
        s_add_u32 m0, s{sRing}, 5120
        ds_read_u16 v{v.IX0}, v{v.R1} offset:1024
        buffer_load_dwordx4 {P(v.IX1)}, {sr(sP,4)}, 0 idxen offen lds
        """)
        if opt.get("ek", 3) == 2:
            A(f"""
            s_add_u32 m0, s{sE0}, 6144
            s_nop 0
            buffer_load_dwordx4 {P(v.IEb)}, {sr(sE,4)}, 0 idxen offen lds
            """)
        else:
            A(f"v_mov_b32 v{v.IE}, v{v.IEb}")
        A(f"""
        s_add_u32 m0, s{sRing}, 6144
        ds_read_u16 v{v.IX1}, v{v.R1} offset:1088
        buffer_load_dwordx4 {P(v.TPa)}, {sr(sP,4)}, 0 idxen offen lds
        s_add_u32 m0, s{sRing}, 7168
        s_nop 0
        buffer_load_dwordx4 {P(v.TPb)}, {sr(sP,4)}, 0 idxen offen lds
        """)
    chain(A, 3, "fast", None, ool, pre=True, mid=late_issue)
    A("K2_LOOP:")
    for k in range(4):
        stretch(A, k, "fast", ool)
        chain(A, k, "fast", "K2_EXIT", ool)
    A("s_branch K2_LOOP")
    A("K2_EXIT:")
    stamp(18)
    A(f"""
    s_setprio 0
    ds_read_b128 {vr(v.ohF,4)}, v{v.LA}
    v_rcp_f32 v{v.RS}, v{v.DS}
    v_rcp_f32 v{v.RS+1}, v{v.DS+1}
    v_rcp_f32 v{v.RS+2}, v{v.DS+2}
    v_rcp_f32 v{v.RS+3}, v{v.DS+3}
    v_fma_f32 v{v.S}, v{v.DS}, v{v.DS+2}, v{v.S}
    v_fma_f32 v{v.S+1}, v{v.DS+1}, v{v.DS+3}, v{v.S+1}
    v_mul_f32 v{v.NS}, v{v.NS}, v{v.RS}
    v_mul_f32 v{v.NS+1}, v{v.NS+1}, v{v.RS+1}
    v_mul_f32 v{v.NS+2}, v{v.NS+2}, v{v.RS+2}
    v_mul_f32 v{v.NS+3}, v{v.NS+3}, v{v.RS+3}
    K2_X2:
    s_bitcmp1_b32 s{sTg}, 0
    s_cbranch_scc0 K2_X3
    s_waitcnt lgkmcnt(1)
    {mfma(v.ACC, v.MSG, v.aggF)}
    v_cvt_pk_bf16_f32 v{v.MSG}, v{v.NS}, v{v.NS+1}
    v_cvt_pk_bf16_f32 v{v.MSG+1}, v{v.NS+2}, v{v.NS+3}
    s_branch K2_X4
    K2_X3:
    v_cvt_pk_bf16_f32 v{v.MSG+2}, v{v.NS}, v{v.NS+1}
    v_cvt_pk_bf16_f32 v{v.MSG+3}, v{v.NS+2}, v{v.NS+3}
    K2_X4:
    v_max_f32 v{v.S}, v{v.S}, v{v.S+1}
    s_waitcnt lgkmcnt(0)
    {mfma(v.ACC, v.MSG, v.ohF)}
    v_add_u32 v{v.t0}, s{sRing}, v{v.t3}
    s_cmp_eq_u32 s{sMode}, 1
    s_cbranch_scc1 K2_NEXTR
    K2_FIN:
    s_cmp_eq_u32 s{sUT}, {BIG}
    s_cbranch_scc1 K2_ULD
    K2_ULB:
    s_mov_b32 s22, {NEG_LN2:#x}
    s_mov_b32 s23, {f2u(2.0**60):#x}
    v_mov_b64 {P(v.NS)}, 0
    v_mov_b32 v{v.S+1}, 0
    s_lshl_b32 s76, s{sG}, 15
    s_add_u32 s76, s76, {RING}
    v_add_u32 v{v.t1}, s76, v{v.t3}
    v_mov_b32 v{v.JK}, {TRIP}
    """)
    B = Asm(); B("K2_ULD:")
    for i in range(16): u_load(B, i)
    B("s_branch K2_ULB"); ool.append(B.text())
    for s in range(8):
        A(f"v_pk_mul_f32 {P(v.ACC+2*s)}, {P(v.ACC+2*s)}, s[22:23] op_sel_hi:[1,0]")
    for s in range(8):
        A(f"v_cvt_pk_bf16_f32 v{v.E+s}, v{v.ACC+2*s}, v{v.ACC+2*s+1}")
    A("s_waitcnt vmcnt(0)")
    A(f"ds_write_b128 v{v.t0}, {vr(v.E,4)}")
    A(f"ds_write_b128 v{v.t0}, {vr(v.E+4,4)} offset:1024")
    for s in range(8):
        A(f"v_pk_fma_f32 {P(v.S)}, {P(v.ACC+2*s)}, {P(v.NS)}, {P(v.S)}")
    F = v.T; AG = v.T1
    A(f"""
    v_add_f32 v{v.S}, v{v.S}, v{v.S+1}
    v_cmp_nge_f32 vcc, s23, v{v.S}
    s_cbranch_vccnz K2_TRIP
    K2_TRB:
    s_cmp_lg_u32 s{sLate}, 0
    s_waitcnt lgkmcnt(0)
    s_cbranch_scc1 K2_LATE
    """)
    ool.append(f"K2_TRIP:\ns_cmp_lg_u32 s{sMode}, 0\ns_cbranch_scc1 K2_TRB\nds_write_b32 v{v.JK}, v{v.NS}\ns_branch K2_TRB")
    def rg():
        for s_ in range(8):
            A(mfma(F, v.U1 + 4*s_, v.XF + 4*s_, "0" if s_ == 0 else None))
    def rd():
        A("s_barrier")
        stamp(96)
        A(f"ds_read_b32 v{v.JK}, v{v.JK}")
        for s in range(8):
            A(f"ds_read_b128 {vr(AG+4*s,4)}, v{v.t1} offset:{(s >> 1) * 8192 + (s & 1) * 1024}")
    rg(); rd()
    if opt.get("ep2", 1): A("s_setprio 2")
    A("s_branch K2_JOIN")
    A("K2_LATE:")
    rd(); rg()
    A("K2_JOIN:")
    for s in range(8):
        A(f"s_waitcnt lgkmcnt({7-s})")
        A(mfma(F, v.U2 + 4*s, AG + 4*s))
    A(f"""
    s_setprio 0
    v_readfirstlane_b32 s23, v{v.JK}
    s_mov_b32 s22, {NEG_LOG2E:#x}
    s_cmp_eq_u32 s23, 0
    s_cbranch_scc1 K2_REDO
    s_cmp_lg_u32 s{sLate}, 0
    s_nop 5
    s_cbranch_scc1 K2_ACT2
    """)
    def act(pk):
        for r in range(0, 16, 2):
            if pk: A(f"v_pk_mul_f32 {P(v.E+r)}, {P(F+r)}, s[22:23] op_sel_hi:[1,0]")
            else:
                A(f"v_mul_f32 v{v.E+r}, s22, v{F+r}"); A(f"v_mul_f32 v{v.E+r+1}, s22, v{F+r+1}")
        for r in range(16):
            A(f"v_exp_f32 v{v.E+r}, v{v.E+r}")
        for r in range(0, 16, 2):
            if pk: A(f"v_pk_add_f32 {P(v.E+r)}, {P(v.E+r)}, {P(v.ONE)}")
            else:
                A(f"v_add_f32 v{v.E+r}, 1.0, v{v.E+r}"); A(f"v_add_f32 v{v.E+r+1}, 1.0, v{v.E+r+1}")
        for r in range(16):
            A(f"v_rcp_f32 v{v.E+r}, v{v.E+r}")
        for r in range(0, 16, 2):
            if pk: A(f"v_pk_mul_f32 {P(F+r)}, {P(F+r)}, {P(v.E+r)}")
            else:
                A(f"v_mul_f32 v{F+r}, v{F+r}, v{v.E+r}"); A(f"v_mul_f32 v{F+r+1}, v{F+r+1}, v{v.E+r+1}")
    act(not opt.get("ep2", 1))
    A("s_branch K2_ACT3")
    A("K2_ACT2:")
    act(True)
    A("K2_ACT3:")
    O = v.T1
    for r in range(8):
        A(f"v_cvt_pk_bf16_f32 v{O+r}, v{F+2*r}, v{F+2*r+1}")
    A(f"""
    s_nop 1
    v_permlane32_swap_b32 v{O}, v{O+2}
    v_permlane32_swap_b32 v{O+1}, v{O+3}
    v_permlane32_swap_b32 v{O+4}, v{O+6}
    v_permlane32_swap_b32 v{O+5}, v{O+7}
    buffer_store_dwordx4 {vr(O,4)}, v{v.OA}, {sr(sOUT,4)}, 0 offen {opt.get("ost", "").replace("_", " ")}
    buffer_store_dwordx4 {vr(O+4,4)}, v{v.OA}, {sr(sOUT,4)}, 0 offen offset:32 {opt.get("ost", "").replace("_", " ")}
    """)
    if ST:
        A("s_waitcnt vmcnt(0)")
        A("s_memtime s[98:99]")
        A("s_memrealtime s[100:101]")
        A(f"""
        s_lshl_b32 s22, s2, 3
        s_add_u32 s22, s22, s3
        s_lshl_b32 s22, s22, 6
        s_add_u32 s22, s22, 0xA00000
        v_mov_b32 v1, 0
        s_waitcnt lgkmcnt(0)
        """)
        for i, r in enumerate([90, 94, 4, 6, 8, 10, 12, 14, 16, 18, 96, 98, 92, 100, sTg] if not PTS else [90, 94, 4, 44, 46, 48, 50, 96, 6, 12, 14, 98, 92, 100, sTg]):
            A(f"v_mov_b32 v2, s{r}")
            A(f"buffer_store_dword v2, v1, {sr(sWS,4)}, s22 offen offset:{4*i}")
    A("K_END:")
    A("s_endpgm")
    for o in ool: A(o)
    del ool[:]
    A(f"""
    K_SPECIAL:
    s_memrealtime s[88:89]
    s_waitcnt lgkmcnt(0)
    """)
    srd(A, sDB, PDBG, 256)
    srd(A, sWS, PWS, WS_END)
    A(f"""
    s_cmp_lg_u32 s2, 0
    s_cbranch_scc1 K_HELPER
    s_cmp_lg_u32 s3, 0
    s_cbranch_scc1 K_END
    s_or_b32 s{sTag}, s88, 1
    v_mov_b32 v1, s{sTag}
    s_mov_b64 exec, 1
    buffer_store_dword v1, off, {sr(sDB,4)}, 0 sc1
    s_mov_b64 exec, -1
    v_lshlrev_b32 v2, 4, v0
    v_cmp_gt_u32 vcc, {NCHUNK + 2 - 64}, v0
    v_add_u32 v4, 1024, v2
    s_mov_b32 s22, {WS_FLAG + 0x2000}
    v_cndmask_b32 v4, v2, v4, vcc
    v_lshlrev_b32 v3, 7, v0
    s_mov_b32 s23, {WS_FLAG + 0x4000}
    """)
    if MC:
        A(f"""
        v_cmp_gt_u32 vcc, {NCHUNK - 64}, v0
        v_add_u32 v5, 1024, v2
        s_mov_b32 s76, {WS_FLAG}
        v_cndmask_b32 v5, v2, v5, vcc
        s_mov_b32 s77, {WS_FLAG + 0x6000}
        K_MPOLL0:
        buffer_load_dword v8, v2, {sr(sWS,4)}, s76 offen sc1
        buffer_load_dword v9, v5, {sr(sWS,4)}, s76 offen sc1
        s_waitcnt vmcnt(0)
        v_xor_b32 v8, v1, v8
        v_xor_b32 v9, v1, v9
        v_or_b32 v8, v8, v9
        v_cmp_ne_u32 vcc, 0, v8
        s_cbranch_vccnz K_MPOLL0
        buffer_store_dword v1, v3, {sr(sWS,4)}, s77 offen sc1
        {"s_memrealtime s[92:93]" if ST else ""}
        """)
    A(f"""
    K_MPOLL:
    buffer_load_dword v8, v2, {sr(sWS,4)}, s22 offen sc1
    buffer_load_dword v9, v4, {sr(sWS,4)}, s22 offen sc1
    s_waitcnt vmcnt(0)
    v_xor_b32 v8, v1, v8
    v_xor_b32 v9, v1, v9
    v_or_b32 v8, v8, v9
    v_cmp_ne_u32 vcc, 0, v8
    s_cbranch_vccnz K_MPOLL
    buffer_store_dword v1, v3, {sr(sWS,4)}, s23 offen sc1
    {"s_memrealtime s[90:91]" if ST else ""}
    {"s_waitcnt lgkmcnt(0)" if ST else ""}
    {"v_mov_b32 v2, s90" if ST else ""}
    {f"buffer_store_dword v2, off, {sr(sDB,4)}, 0 offset:8" if ST else ""}
    {"v_mov_b32 v2, s92" if ST else ""}
    {f"buffer_store_dword v2, off, {sr(sDB,4)}, 0 offset:12" if ST else ""}
    s_endpgm
    K_HELPER:
    s_sub_u32 s87, s2, 1
    s_lshl_b32 s82, s87, 15
    s_lshl_b32 s77, s3, 12
    """)
    srd(A, sWm, PWU, 32768, add="s82")
    wdma(0, 0)
    A(f"""
    s_waitcnt vmcnt(4)
    s_lshl_b32 s22, s{sC}, 6
    v_xor_b32 v{TRA}, s22, v{TRA}
    v_lshrrev_b32 v{H}, 5, v{L}
    s_sub_u32 s22, 11, s87
    v_lshlrev_b32 v{H}, s22, v{H}
    v_add_u32 v{TRA}, v{TRA}, v{H}
    s_lshl_b32 s22, s{sG}, 14
    v_add_u32 v{TRA}, s22, v{TRA}
    s_lshl_b32 s22, 1024, s87
    v_add_u32 v{H}, s22, v{TRA}
    s_lshl_b32 s22, s{sC}, 13
    s_add_u32 s82, s82, s22
    s_lshl_b32 s22, s{sG}, 12
    s_add_u32 s82, s82, s22
    s_add_u32 s82, s82, {WS_U}
    s_waitcnt vmcnt(0)
    s_barrier
    """)
    for s_ in range(4):
        A(f"ds_read_b64_tr_b16 {vr(v.T+4*s_,2)}, v{TRA} offset:{s_*4096}")
        A(f"ds_read_b64_tr_b16 {vr(v.T+4*s_+2,2)}, v{H} offset:{s_*4096}")
    A("s_waitcnt lgkmcnt(0)")
    for s_ in range(4):
        A(f"buffer_store_dwordx4 {vr(v.T+4*s_,4)}, v{v.t3}, {sr(sWS,4)}, s82 offen offset:{s_*1024} sc1")
    A(f"""
    s_waitcnt vmcnt(0)
    s_barrier
    s_cmp_lg_u32 s3, 0
    s_cbranch_scc1 K_END
    K_HTAG:
    buffer_load_dword v1, off, {sr(sDB,4)}, 0 sc1
    s_waitcnt vmcnt(0)
    v_readfirstlane_b32 s22, v1
    s_cmp_eq_u32 s22, 0
    s_cbranch_scc1 K_HTAG
    s_lshl_b32 s22, s87, 4
    s_add_u32 s22, s22, {WS_FLAG + 0x2000 + NCHUNK * 16}
    s_mov_b64 exec, 1
    buffer_store_dword v1, off, {sr(sWS,4)}, s22 sc1
    s_endpgm
    """)
    A("K2_SAFEP:")
    chain(A, 3, "safe", None, ool, pre=True, mid=late_issue)
    A("K2_SAFE:")
    for k in range(4):
        stretch(A, k, "safe", ool)
        chain(A, k, "safe", "K2_SEXIT", ool)
    A("s_branch K2_SAFE")
    A(f"""
    K2_SEXIT:
    s_setprio 0
    ds_read_b128 {vr(v.ohF,4)}, v{v.LA}
    s_branch K2_X2
    """)
    def restore():
        A(f"""
        s_lshr_b32 s23, s{sTg}, 2
        s_mul_i32 s22, s23, 6144
        s_lshl_b32 s23, s23, 10
        v_subrev_u32 v{v.E_}, s22, v{v.E_}
        v_subrev_u32 v{v.R1}, s23, v{v.R1}
        v_subrev_u32 v{v.R2}, s23, v{v.R2}
        v_subrev_u32 v{v.Re}, s23, v{v.Re}
        """)
    A("K2_REDO:")
    restore()
    A(f"s_mov_b32 s{sMode}, 2")
    A("s_nop 7")
    for r in range(0, 16, 2):
        A(f"v_mov_b64 {P(v.ACC+r)}, 0")
    A("s_waitcnt vmcnt(0) lgkmcnt(0)")
    A("s_barrier")
    lds_init()
    round_regs()
    A("s_branch K2_CELLS")
    A(f"""
    K2_OVF:
    s_cmp_eq_u32 s{sMode}, 0
    s_cbranch_scc0 K2_OV2
    s_cmp_lg_u32 s3, 0
    s_cbranch_scc1 K2_OV2
    K2_OV1:
    buffer_load_dword v{v.JK2}, off, {sr(sWS,4)}, s{sRel} sc1
    s_waitcnt vmcnt(0)
    v_cmp_ne_u32 vcc, s{sTag}, v{v.JK2}
    s_cbranch_vccnz K2_OV1
    K2_OV2:
    s_mov_b32 s{sMode}, 1
    s_mov_b32 s{sRound}, 0
    s_branch K2_ROUND
    K2_NEXTR:
    s_add_u32 s{sRound}, s{sRound}, 1
    s_cmp_ge_u32 s{sRound}, {E // 512}
    s_cbranch_scc1 K2_FIN
    """)
    restore()
    A(f"""
    K2_ROUND:
    s_load_dwordx4 s[76:79], s[0:1], 16
    s_waitcnt vmcnt(0) lgkmcnt(0)
    s_barrier
    """)
    srd(A, sS, 76, E * 4)
    srd(A, sD, 78, E * 4)
    A(f"""
    s_lshl_b32 s22, s{sRound}, 9
    v_add_u32 v{v.EB}, s22, v0
    v_lshlrev_b32 v{v.t0}, 2, v{v.EB}
    buffer_load_dword v{v.REC}, v{v.t0}, {sr(sD,4)}, 0 offen
    buffer_load_dword v{v.REC+1}, v{v.t0}, {sr(sS,4)}, 0 offen
    """)
    lds_init()
    round_regs()
    A(f"""
    s_mul_i32 s22, s2, 40
    s_waitcnt vmcnt(0)
    v_subrev_u32 v{v.REC}, s22, v{v.REC}
    v_cmp_gt_u32 vcc, 40, v{v.REC}
    v_lshl_or_b32 v{v.t0}, v{v.REC}, 14, v{v.REC+1}
    v_mov_b32 v{v.REC+1}, -1
    v_cndmask_b32 v{v.REC}, -1, v{v.t0}, vcc
    v_mov_b64 {P(v.REC+2)}, -1
    s_barrier
    s_branch K2_COUNT
    """)
    for o in ool: A(o)
    A("K_CODE_END:")
    return A.text()

HEADER = """; MPNN edge-MLP layer, fused single kernel (generated by gen/fz9.py).
"""
def build(opt):
    out = HEADER + f"; @launch grid=({NWG},1,1) block=(512,1,1) lds={LDS_TOTAL}\n"
    out += '.amdgcn_target "amdgcn-amd-amdhsa--gfx950"\n.text\n'
    out += f".globl {KNAME}\n.p2align 8\n.type {KNAME},@function\n" + gen(opt)
    acc = (NV + 3) // 4 * 4
    out += f""".section .rodata,"a"
.p2align 8
K_TABLE:
{tables()}.p2align 6
.amdhsa_kernel {KNAME}
  .amdhsa_next_free_vgpr {NV}
  .amdhsa_next_free_sgpr 102
  .amdhsa_accum_offset {acc}
  .amdhsa_group_segment_fixed_size 0
  .amdhsa_kernarg_size 72
  .amdhsa_user_sgpr_count 2
  .amdhsa_user_sgpr_kernarg_segment_ptr 1
  .amdhsa_system_sgpr_workgroup_id_x 1
.end_amdhsa_kernel
"""
    return out

if __name__ == "__main__":
    opt = {}
    for a in sys.argv[2:]:
        k_, v_ = a.split("=")
        opt[k_] = int(v_) if v_.lstrip("-").isdigit() else v_
    open(sys.argv[1], "w").write(build(opt))
```

```python
import sys
import gen, k2
from gen import *

def reduce_code(A, base, n, field, op, dst, sh=9):
    init = {"min": "-1", "max": "0", "add": "0"}[op]
    A(f"v_mov_b32 v10, {init}")
    for j in range((n + 63) // 64):
        A(f"v_add_u32 v2, {j*64}, v0")
        A(f"v_cmp_gt_u32 vcc, {n}, v2" if n <= 64 else f"s_movk_i32 s30, {n}\nv_cmp_gt_u32 vcc, s30, v2")
        A(f"v_lshlrev_b32 v2, {sh}, v2")
        A(f"s_mov_b32 s31, {base}")
        if isinstance(field, tuple):
            A(f"buffer_load_dword v3, v2, s[24:27], s31 offen offset:{field[0]*4}")
            A(f"buffer_load_dword v4, v2, s[24:27], s31 offen offset:{field[1]*4}")
            A("s_waitcnt vmcnt(0)")
            A("v_sub_u32 v3, v3, v4")
        else:
            A(f"buffer_load_dword v3, v2, s[24:27], s31 offen offset:{field*4}")
            A("s_waitcnt vmcnt(0)")
        A(f"v_cndmask_b32 v3, {init}, v3, vcc")
        A(f"v_{op}_u32 v10, v10, v3")
    A(f"s_mov_b32 s{dst}, {init}")
    for l in range(64):
        A(f"v_readlane_b32 s30, v10, {l}")
        A(f"s_{op}_u32 s{dst}, s{dst}, s30")

def diag(expr):
    A = Asm()
    A("diag_kernel:")
    A("s_cmp_ge_u32 s2, 1")
    A("s_cbranch_scc1 D_END")
    A("s_memrealtime s[50:51]")
    load_ptrs(A)
    A("s_waitcnt lgkmcnt(0)")
    srd(A, 24, PWS, 0x1000000)
    kind = expr[0]
    if kind == "deadline":
        reduce_code(A, 0x900000, 285, 2, "min", 40)
        A(f"s_add_u32 s42, s40, {expr[1]}")
    elif kind == "real":
        reduce_code(A, *expr[1], 40)
        reduce_code(A, *expr[2], 41)
        A("s_sub_u32 s42, s40, s41")
        A(f"s_mul_i32 s42, s42, {expr[3]}")
        A("s_add_u32 s42, s42, s50")
    elif kind == "cyc":
        reduce_code(A, expr[1], expr[2], expr[3], "add", 40)
        A(f"s_mul_hi_u32 s42, s40, {int(2**32 / expr[2] / 4)}")
        A("s_add_u32 s42, s42, s50")
    A("D_SPIN:")
    A("s_memrealtime s[52:53]")
    A("s_waitcnt lgkmcnt(0)")
    A("s_sub_u32 s54, s52, s42")
    A("s_cmp_lt_i32 s54, 0")
    A("s_cbranch_scc1 D_SPIN")
    A("D_END:")
    A("s_endpgm")
    return A.text()

def make(path, expr, opt):
    s = gen.build(opt, k2)
    l2 = [l for l in s.split("\n") if "kernel=edge_kernel" in l][0]
    s = s.replace(l2, l2 + "\n; @launch kernel=diag_kernel grid=(1,1,1) block=(64,1,1) lds=0")
    s = s.replace('.section .rodata,"a"\n', ".globl diag_kernel\n.p2align 8\n.type diag_kernel,@function\n" + diag(expr) + '.section .rodata,"a"\n' + kd("diag_kernel", 16))
    open(path, "w").write(s)

if __name__ == "__main__":
    opt = {"k1st": "", "stamp": 1}
    for a in sys.argv[2:]:
        k_, v_ = a.split("=")
        opt[k_] = int(v_) if v_.lstrip("-").isdigit() else v_.replace("_", " ")
    K1 = 0x900000; K2 = 0x800000
    sets = {
      "1": [("deadline", 10000),
            ("real", (K1, 285, 3, "max"), (K1, 285, 2, "min"), 10),
            ("real", (K2, 250, 9, "min"), (K1, 285, 3, "max"), 10),
            ("real", (K2, 250, 10, "max"), (K2, 250, 9, "min"), 10),
            ("cyc", K2, 250, (2, 0)),
            ("cyc", K2, 250, (5, 4)),
           ],
      "2": [("cyc", K2, 250, (1, 0)), ("cyc", K2, 250, (4, 2)), ("cyc", K2, 250, (6, 5)), ("cyc", K2, 250, (8, 6)),
            ("cyc", K1, 128, (4, 0)), ("cyc", K1 + 128 * 512, 157, (4, 0))],
    }
    for i, e in enumerate(sets[sys.argv[1]]):
        make(f"dg{i}.s", e, opt)
```

```python
import sys
import gen, fz9 as fz
from gen import *
from diag import reduce_code
def diag(expr):
    A = Asm()
    A("diag_kernel:")
    A("s_cmp_ge_u32 s2, 1")
    A("s_cbranch_scc1 D_END")
    A("s_memrealtime s[50:51]")
    load_ptrs(A)
    A("s_waitcnt lgkmcnt(0)")
    srd(A, 24, PWS, 0x1000000)
    kind = expr[0]
    K2 = 0xA00000
    if kind == "deadline":
        reduce_code(A, K2, 250, 12, "min", 40)
        A(f"s_add_u32 s42, s40, {expr[1]}")
    elif kind == "span":
        reduce_code(A, K2, 250, 13, "max", 40)
        reduce_code(A, K2, 250, 12, "min", 41)
        A("s_sub_u32 s42, s40, s41")
        A(f"s_mul_i32 s42, s42, 10")
        A("s_add_u32 s42, s42, s50")
    elif kind == "cyc":
        reduce_code(A, K2, 250, expr[1], "add", 40)
        A(f"s_mul_hi_u32 s42, s40, {int(2**32 / 250 / 4)}")
        A("s_add_u32 s42, s42, s50")
    elif kind == "zero":
        A("s_mov_b32 s42, s50")
    A("D_SPIN:")
    A("s_memrealtime s[52:53]")
    A("s_waitcnt lgkmcnt(0)")
    A("s_sub_u32 s54, s52, s42")
    A("s_cmp_lt_i32 s54, 0")
    A("s_cbranch_scc1 D_SPIN")
    A("D_END:")
    A("s_endpgm")
    return A.text()
def make(path, expr, opt):
    s = fz.build(opt)
    l = [l for l in s.split("\n") if "@launch" in l][0]
    s = s.replace(l, l.replace("@launch ", f"@launch kernel={fz.KNAME} ") + "\n; @launch kernel=diag_kernel grid=(1,1,1) block=(64,1,1) lds=0")
    s = s.replace('.section .rodata,"a"\n', ".globl diag_kernel\n.p2align 8\n.type diag_kernel,@function\n" + diag(expr) + '.section .rodata,"a"\n' + kd("diag_kernel", 16))
    open(path, "w").write(s)
if __name__ == "__main__":
    opt = {"stamp": 1}
    ex = sys.argv[1].split(",")
    for a in sys.argv[2:]:
        k_, v_ = a.split("=")
        opt[k_] = int(v_) if v_.lstrip("-").isdigit() else v_
    for i, e in enumerate(ex):
        if e == "F": x = ("deadline", 10000)
        elif e == "S": x = ("span",)
        elif e == "Z": x = ("zero",)
        else:
            a, b = e.split("-"); x = ("cyc", (int(a), int(b)))
        make(f"dg{i}.s", x, opt)
```

```python
import sys, struct
from gen import Asm, vr, sr, srd, f2u, NEG_LOG2E, NEG_LN2, PX, PE, PSRC, PDST, PWM, PWU, POUT, PDBG, PWS, load_ptrs

KNAME = "standalone__mpnn_edge_mlp__graph_kernel"
N = 10000; E = 320000
NBIN = 250; NCHUNK = 125; CH = 2560
WS_CELL = 0x280000
WS_FLAG = 0x700000
WS_U = 0x708000
WS_END = WS_U + 0x10000
NWG = NBIN + 3
BIG = 0x7fffffff

CNT = 0x100; QN = 0x200; FLAG = 0x3F0; TRIP = 0x3F4; REC = 0x400
TG = 26; GSL = TG * 32
REC_BYTES = (2 * GSL + 160) * 8
EA = REC + REC_BYTES
GEA = (TG // 2) * 3072
RING = EA + 2 * GEA
JUNK = RING + 65536
LDS_TOTAL = JUNK + 1024
FLG = CNT + 48 * 4
L_X = RING; L_W2 = RING + 0x6000; L_W3 = L_W2 + 32768; L_BN = 0x8000
assert RING % 256 == 0 and LDS_TOTAL <= 163840

class R: pass
v = R()
_n = 1
def alloc(name, n, align=1):
    global _n
    _n = (_n + align - 1) // align * align
    setattr(v, name, _n)
    _n += n
for nm in ("t0", "t1", "t2", "t3", "lane", "FW", "FV", "PROG", "JK", "JK2", "JK3", "OHA", "P1", "FR", "LA"):
    alloc(nm, 1)
TABN = ("E_", "R1", "R2", "Re", "P0", "EB", "QC", "OHB", "S0a", "FRo", "IXo", "IEo", "S1a", "TRA", "OAl", "Z_")
alloc("TAB", 0, 4)
for nm in TABN[:8]:
    alloc(nm, 1)
for nm in ("IX0", "IX1", "IE", "ONE", "S"):
    alloc(nm, 2, 2)
alloc("OA", 1)
for nm in ("W3F", "QF", "QS", "SEL0", "SEL1", "eF", "ohF", "pF0", "pF1", "aggF", "MSG", "NS", "DS", "RS"):
    alloc(nm, 4, 4)
for nm in ("T", "T1", "E", "ACC"):
    alloc(nm, 16, 4)
alloc("U1", 32, 4); alloc("U2", 32, 4); alloc("XF", 32, 4)
NV = _n
assert NV <= 256
for i_, nm in enumerate(TABN[8:]): setattr(v, nm, v.SEL0 + i_)
v.WA = v.ohF
assert v.RS == v.ohF + 28 and v.SEL1 == v.SEL0 + 4 and v.E == v.T1 + 16
v.REC = v.T; v.RANK = v.T + 8; v.AD = v.E; v.PK = v.E + 8
v.W0 = v.T1
v.TPa = v.T1 + 10; v.TPb = v.T1 + 12; v.IEb = v.T1 + 14; v.OH0 = v.pF1

sWS, sP, sE, sX, sOUT, sD, sS = 24, 28, 32, 36, 40, 44, 48
sG, sC, sTg, sTile, sTsw, sTag, sRing, sEdst, sMode, sRound, sRole, sElim = 52, 53, 54, 55, 56, 57, 58, 59, 60, 61, 62, 63
sM = 64
sWm = 64; sDB = 68
sTB = 80
sUT = 82; sLate = 83; sK3F = 84; sT0, sT1 = 85, 86; sRel = 87; sUoff = 88; sPair = 89
sN40 = 36; sG1 = 38; sSl = 101; sE0 = 100

OPT = {}
def P(r): return f"v[{r}:{r+1}]"
def mfma(d, a, b, c=None):
    return f"v_mfma_f32_32x32x16_bf16 {vr(d,16)}, {vr(a,4)}, {vr(b,4)}, {vr(d,16) if c is None else c}"
def pi8v(m):
    return ((m & 5) << 5) | ((m & 18) << 2) | ((m & 8) << 1)

def tables():
    rows = []
    for l in range(64):
        m, h = l & 31, l >> 5
        a16 = 16 + ((l & 8) << 3) + ((l & 3) << 4)
        n_ = l - 20 if l >= 20 else l
        a16n = 16 + ((n_ & 8) << 3) + ((n_ & 3) << 4)
        ohb = (a16n << (16 + 8 * ((n_ >> 2) & 1))) if l < 40 else 0
        sel = a16 if ((l >> 2) & 1) == h else 0
        d = dict(
            E_=m * 32 + (((h ^ (m >> 3)) & 1) << 4) + EA - 3072,
            R1=pi8v(l >> 2) + REC, R2=pi8v(m) + h + 2 + REC, Re=pi8v(l >> 1) + 4 + REC,
            P0=m * 64 + ((((m >> 2) ^ (2 * h)) & 3) << 4) + RING,
            EB=(l >> 3) * CH,
            QC=(l >> 4) * 3072 + ((l & 4) << 2) + (l & 8) + ((l & 3) << 1) + EA + 2048,
            OHB=ohb, FRo=(l & 3) * 4 + FLG,
            IXo=(((l >> 4) ^ l) & 3) << 4, IEo=(((l >> 4) ^ l) & 1) << 4,
            S0a=sel if m < 16 else 0, S1a=sel if m >= 16 else 0,
            TRA=(l & 3) * 8 + ((l >> 2) & 3) * 256 + (((l >> 2) & 3) << 6) + ((l >> 4) & 1) * 32,
            OAl=(m * 256 + h * 16) if m < 20 else 0x40000000, Z_=0)
        rows.append([d[n] for n in TABN])
    out = []
    for b in range(4):
        for l in range(64):
            out.append(".long " + ", ".join(f"{x:#x}" for x in rows[l][4*b:4*b+4]))
    img = [0] * 256
    for e_ in range(8):
        img[4 * (e_ + 1) + (e_ >> 1)] = 0x3f80 << (16 * (e_ & 1))
    for i in range(128, 256): img[i] = 0xffffffff
    for i in range(0, 256, 4):
        out.append(".long " + ", ".join(f"{x:#x}" for x in img[i:i+4]))
    for i in range(64):
        out.append(".long 0xffff, 0xffffffff, 0xffff, 0xffffffff")
    return "\n".join(out) + "\n"

def lst(A, k, variant, r):
    if OPT.get("ls") and variant == "fast" and k == OPT["ls"] - 1: A(f"s_memtime s[{r}:{r+1}]")

def u_load(A, i):
    off = (i >> 3) * 32768 + (i & 7) * 1024
    A(f"s_add_u32 s22, s{sUoff}, {off & ~4095}")
    A(f"buffer_load_dwordx4 {vr(v.U1+4*i,4)}, v{v.t3}, {sr(sWS,4)}, s22 offen offset:{off & 4095}")

def chain(A, k, variant, exit_label, ool, pre=False, mid=None):
    kk = k if k < 3 else -1
    safe = variant == "safe"
    EK = OPT.get("ek", 3)
    if not pre:
        A("s_setprio 2")
        A(f"s_add_u32 s{sTile}, s{sTile}, 1")
        A(f"s_cmp_ge_u32 s{sTile}, s{sTg}")
        A(f"s_cbranch_scc1 {exit_label}")
        lsw = A.label("sw"); lswb = A.label("swb")
        A(f"s_cmp_eq_u32 s{sTile}, s{sTsw}")
        A(f"s_cbranch_scc1 {lsw}")
        A(f"{lswb}:")
        ool.append(f"{lsw}:\nv_mov_b32 v{v.QF}, v{v.QS+2}\nv_mov_b32 v{v.QF+1}, v{v.QS+3}\ns_branch {lswb}")
        lst(A, k, variant, 10)
    A("s_waitcnt lgkmcnt(0)")
    if k % 2 == 0:
        A(mfma(v.ACC, v.MSG, v.aggF))
    n = 4 + (1 if ((k - 1) & 3) == EK or ((k - 2) & 3) == EK else 0)
    if EK == 3 and k == 1: n = 2
    if pre: n = 4 if EK == 3 else 5
    k2_ = kk + 2
    eread = f"ds_read_b128 {vr(v.eF,4)}, v{v.E_} offset:{3072 + (k2_ >> 1) * 3072 + (k2_ & 1) * 1024}"
    if k == 2: A(f"ds_read_b32 v{v.FV}, v{v.FR}")
    A(mfma(v.T, v.eF, v.W3F, "0"))
    if k != 2: A(eread)
    A(mfma(v.T, v.ohF, v.QF))
    A(f"ds_read_b128 {vr(v.ohF,4)}, v{v.OHA}")
    A(f"ds_read_u8 v{v.OHA}, v{v.R2} offset:{(kk + 3) * 256}")
    A(mfma(v.T, v.pF0, v.SEL0))
    if k == 2:
        A("s_waitcnt lgkmcnt(2)")
        A(f"v_cmp_gt_u32 vcc, v{v.PROG}, v{v.FV}")
    A(mfma(v.T, v.pF1, v.SEL1))
    A(f"s_setprio 0")
    lst(A, k, variant, 14)
    n_after = 2
    if k == 2:
        lw = A.label("fw"); lb = A.label("fb")
        A(f"s_cbranch_vccnz {lw}")
        A(f"{lb}:")
        A(eread)
        ool.append(f"{lw}:\nds_read_b32 v{v.FV}, v{v.FR}\ns_waitcnt lgkmcnt(0)\nv_cmp_gt_u32 vcc, v{v.PROG}, v{v.FV}\ns_cbranch_vccnz {lw}\ns_branch {lb}")
        n_after += 2
    if mid: mid()
    A(f"s_waitcnt vmcnt({n})" + (" lgkmcnt(0)" if pre else ""))
    if k == 1:
        A("s_mov_b64 exec, 1")
        A(f"ds_write_b32 v{v.FW}, v{v.PROG}")
        A("s_mov_b64 exec, -1")
        n_after += 3
    if k == EK:
        A(f"s_cmp_lt_u32 s{sEdst}, s{sElim}")
        A(f"s_cselect_b32 m0, s{sEdst}, {JUNK}")
        A(f"s_add_u32 s{sEdst}, s{sEdst}, 6144")
        A(f"buffer_load_dwordx4 {P(v.IE)}, {sr(sE,4)}, 0 idxen offen lds")
        n_after += 4
    A(f"s_add_u32 m0, s{sRing}, {((k + 1) & 3) * 2048}")
    A(f"ds_read_b128 {vr(v.pF0,4)}, v{v.P0} offset:{((k + 2) & 3) * 2048}")
    A(f"buffer_load_dwordx4 {P(v.IX0)}, {sr(sP,4)}, 0 idxen offen lds")
    A(f"s_add_u32 m0, s{sRing}, {((k + 1) & 3) * 2048 + 1024}")
    A(f"ds_read_b128 {vr(v.pF1,4)}, v{v.P1} offset:{((k + 2) & 3) * 2048}")
    A(f"buffer_load_dwordx4 {P(v.IX1)}, {sr(sP,4)}, 0 idxen offen lds")
    A(f"ds_read_u16 v{v.IX0}, v{v.R1} offset:{(kk + 6) * 256}")
    A(f"ds_read_u16 v{v.IX1}, v{v.R1} offset:{(kk + 6) * 256 + 64}")
    n_after += 8
    if k % 2 == 1 and not pre:
        A(f"ds_read_b128 {vr(v.aggF,4)}, v{v.E_} offset:{(1 if k == 1 else 0) * 3072 + 2048}")
        n_after += 1
    if k == EK - 1:
        A(f"ds_read_b32 v{v.IE}, v{v.Re} offset:{2 * 1024}")
        n_after += 1
    if not safe and not pre:
        lv = A.label("uv"); lvb = A.label("vb")
        A(f"s_sub_u32 s23, s{sTile}, s{sUT}")
        A(f"s_cmp_lt_u32 s23, 8")
        A(f"s_cbranch_scc1 {lv}")
        A(f"{lvb}:")
        n_after += 3
        B = Asm()
        B(f"{lv}:")
        B(f"s_cmp_ge_u32 s23, 4")
        B(f"s_cbranch_scc1 {lv}x")
        u_load(B, 2*k); u_load(B, 2*k+1)
        B(f"s_branch {lvb}")
        B(f"{lv}x:")
        u_load(B, 8+2*k); u_load(B, 8+2*k+1)
        B(f"s_branch {lvb}")
        ool.append(B.text())
    if n_after < 12:
        A(f"s_nop {12 - n_after - 1}")
    lst(A, k, variant, 12)

def stretch(A, k, variant, ool):
    T = v.T; E = v.E
    order = [0, 1, 8, 9, 2, 3, 10, 11, 4, 5, 12, 13, 6, 7, 14, 15]
    lst(A, k, variant, 94)
    for r in order:
        A(f"v_exp_f32 v{E+r}, v{T+r}")
    if variant != "safe":
        for r in range(4):
            A(f"v_rcp_f32 v{v.RS+r}, v{v.DS+r}")
    if k == 3:
        for s in (f"v_add_u32 v{v.E_}, 6144, v{v.E_}", f"v_add_u32 v{v.R1}, 1024, v{v.R1}",
                  f"v_add_u32 v{v.R2}, 1024, v{v.R2}", f"v_add_u32 v{v.Re}, 1024, v{v.Re}"): A(s)
    if k == 0:
        A(f"v_add_u32 v{v.PROG}, 1, v{v.PROG}")
    lst(A, k, variant, 4)
    A("s_setprio 1")
    mo = v.MSG + 2 * ((k + 1) % 2)
    if variant != "safe":
        A(f"v_pk_fma_f32 {P(v.S)}, {P(v.DS)}, {P(v.DS+2)}, {P(v.S)}")
        A(f"v_pk_mul_f32 {P(v.NS)}, {P(v.NS)}, {P(v.RS)}")
        A(f"v_pk_mul_f32 {P(v.NS+2)}, {P(v.NS+2)}, {P(v.RS+2)}")
    A(f"v_cvt_pk_bf16_f32 v{mo}, v{v.NS}, v{v.NS+1}")
    A(f"v_cvt_pk_bf16_f32 v{mo+1}, v{v.NS+2}, v{v.NS+3}")
    lst(A, k, variant, 6)
    if variant != "safe":
        ops = []
        for gi, g in enumerate((0, 8)):
            t, e = T + g, E + g
            o = [f"v_pk_add_f32 {P(e)}, {P(e)}, {P(v.ONE)}"]
            for u in (1, 2, 3):
                o.append(f"v_pk_fma_f32 {P(t)}, {P(t)}, {P(e+2*u)}, {P(t)}")
                o.append(f"v_pk_fma_f32 {P(t if u < 3 else v.NS+2*gi)}, {P(t+2*u)}, {P(e)}, {P(t)}")
                o.append(f"v_pk_fma_f32 {P(e if u < 3 else v.DS+2*gi)}, {P(e)}, {P(e+2*u)}, {P(e)}")
            ops.append(o)
        for a, b in zip(*ops):
            A(a); A(b)
    else:
        for r in range(0, 16, 2):
            A(f"v_pk_add_f32 {P(E+r)}, {P(E+r)}, {P(v.ONE)}")
        for r in range(16):
            A(f"v_rcp_f32 v{E+r}, v{E+r}")
        A("s_nop 0")
        for u in range(4):
            for gi, g in enumerate((0, 8)):
                if u == 0:
                    A(f"v_pk_mul_f32 {P(T+g)}, {P(T+g)}, {P(E+g)}")
                else:
                    A(f"v_pk_fma_f32 {P(T+g if u < 3 else v.NS+2*gi)}, {P(T+g+2*u)}, {P(E+g+2*u)}, {P(T+g)}")
    lst(A, k, variant, 8)

def gen(opt):
    OPT.clear(); OPT.update(opt)
    A = Asm()
    L = v.lane
    ST = opt.get("stamp", 0)
    PTS = opt.get("pts", "").split(",") if opt.get("pts") else []
    PSL = [44, 46, 48, 50, 96]
    def pt(name):
        if name in PTS:
            r = PSL[PTS.index(name)]
            A(f"s_memtime s[{r}:{r+1}]")
    def stamp(r, real=False):
        if PTS and r == 96: return
        if opt.get("ls") and r in (94, 4, 6, 8, 10, 12, 14): return
        if ST: A(f"s_mem{'real' if real else ''}time s[{r}:{r+1}]")
    ool = []
    WV = v.eF; XV = v.eF + 1; H = v.eF + 2; TRA = v.TRA
    A(f"{KNAME}:")
    stamp(90); stamp(92, True)
    A(f"s_cmp_ge_u32 s2, {NWG}")
    A("s_cbranch_scc1 K_END")
    load_ptrs(A)
    A(f"""
    v_lshrrev_b32 v{v.t0}, 6, v0
    v_and_b32 v{L}, 63, v0
    v_readfirstlane_b32 s3, v{v.t0}
    v_lshlrev_b32 v{v.t3}, 4, v{L}
    s_getpc_b64 {sr(sTB,2)}
    s_add_u32 s{sTB}, s{sTB}, K_TABLE@rel32@lo+4
    s_addc_u32 s{sTB+1}, s{sTB+1}, K_TABLE@rel32@hi+12
    global_load_dwordx4 {vr(v.SEL1,4)}, v{v.t3}, {sr(sTB,2)} offset:3072
    global_load_dwordx4 {vr(v.TAB,4)}, v{v.t3}, {sr(sTB,2)}
    global_load_dwordx4 {vr(v.TAB+4,4)}, v{v.t3}, {sr(sTB,2)} offset:1024
    global_load_dwordx4 {vr(v.SEL0,4)}, v{v.t3}, {sr(sTB,2)} offset:2048
    v_lshlrev_b32 v{v.t2}, 4, v0
    v_lshrrev_b32 v{WV}, 2, v{v.t3}
    v_lshrrev_b32 v{XV}, 4, v{v.t2}
    v_and_b32 v{WV}, 0xc0, v{WV}
    v_and_b32 v{XV}, 0xf0, v{XV}
    v_xor_b32 v{WV}, v{WV}, v{v.t3}
    v_xor_b32 v{XV}, v{XV}, v{v.t2}
    s_lshr_b32 s{sG}, s3, 2
    s_and_b32 s{sC}, s3, 3
    s_cmp_lt_u32 s2, 8
    s_cbranch_scc1 K_LOW
    K_LOWB:
    s_sub_u32 s23, s2, 3
    s_lshr_b32 s{sSl}, s23, 3
    s_cmp_ge_u32 s23, {NCHUNK}
    s_cselect_b32 s{sRole}, {1 - opt.get("r1f", 1)}, {opt.get("r1f", 1)}
    s_cselect_b32 s22, {NCHUNK}, 0
    s_sub_u32 s{sPair}, s23, s22
    s_lshl_b32 s2, s{sPair}, 1
    s_add_u32 s2, s2, s{sRole}
    s_mul_i32 s{sUT}, s{sPair}, {80*256}
    s_sub_u32 s{sX+2}, {N*256}, s{sUT}
    s_mov_b32 s{sX+3}, 0x00020000
    s_lshl_b32 s76, s3, 10
    s_add_u32 s77, s3, s{sSl}
    s_and_b32 s77, s77, {7 if opt.get("rot", 1) else 0}
    {"" if opt.get("rot", 1) else "s_mov_b32 s77, s3"}
    s_lshl_b32 s77, s77, 12
    s_cmp_eq_u32 s{sRole}, 0
    s_waitcnt lgkmcnt(0)
    """)
    def wsadj():
        if opt.get("wsoff"):
            A(f"s_add_u32 s{PWS}, s{PWS}, {opt['wsoff'] << 20}")
            A(f"s_addc_u32 s{PWS+1}, s{PWS+1}, 0")
    wsadj()
    if opt.get("wsoff"): A(f"s_cmp_eq_u32 s{sRole}, 0")
    A("s_cbranch_scc0 K_GEMM")
    ool.append(f"""K_LOW:
    s_cmp_lg_u32 s3, 7
    s_cbranch_scc1 K_LOW2
    s_getpc_b64 s[22:23]
    K_PC:
    s_sub_u32 s22, s22, K_PC-{KNAME}
    s_subb_u32 s23, s23, 0
    v_lshlrev_b32 v{v.JK}, 7, v{L}
    v_add_u32 v{v.JK2}, 0x2000, v{v.JK}
    v_min_u32 v{v.JK2}, K_CODE_END-{KNAME}-4, v{v.JK2}
    global_load_dword v{v.PROG}, v{v.JK}, s[22:23]
    global_load_dword v{v.FV}, v{v.JK2}, s[22:23]
    K_LOW2:
    s_cmp_lt_u32 s2, 3
    s_cbranch_scc1 K_SPECIAL
    s_branch K_LOWB""")
    def xdma(n):
        A(f"""
        s_add_u32 s{sX}, s{PX}, s{sUT}
        s_addc_u32 s{sX+1}, s{PX+1}, 0
        s_add_u32 m0, s76, {L_X}
        s_movk_i32 s23, 0x2000
        buffer_load_dwordx4 v{XV}, {sr(sX,4)}, 0 offen lds
        s_add_u32 m0, s76, {L_X + 8192}
        s_movk_i32 s22, 0x4000
        buffer_load_dwordx4 v{XV}, {sr(sX,4)}, s23 offen lds
        """)
        if n == 3:
            A(f"s_add_u32 m0, s76, {L_X + 16384}")
            A("s_nop 0")
            A(f"buffer_load_dwordx4 v{XV}, {sr(sX,4)}, s22 offen lds")
    def wdma(soff, lds):
        A(f"s_add_u32 m0, s77, {lds}")
        if soff: A(f"s_add_u32 s22, s77, {soff}")
        else: A("s_nop 0")
        for q in range(4):
            A(f"buffer_load_dwordx4 v{WV}, {sr(sWm,4)}, s{22 if soff else 77} offen offset:{q*1024} lds")
    def w23dma(w2=True):
        if w2: wdma(32768, L_W2)
        A(f"s_add_u32 m0, s76, {L_W3}")
        A(f"s_add_u32 s22, s76, 65536")
        A(f"buffer_load_dwordx4 v{WV}, {sr(sWm,4)}, s22 offen lds")
    def sconsts():
        srd(A, sP, PWS, 0 if opt.get('nop') else N, stride=256)
        srd(A, sE, PE, 0 if opt.get('noe') else E, stride=32)
        srd(A, sOUT, POUT, N * 256)
        srd(A, sDB, PDBG, 256)
        A(f"""
        s_mov_b32 s{sMode}, 0
        s_movk_i32 s{sK3F}, 0x3fff
        s_lshl_b32 s{sRing}, s3, 13
        s_lshr_b32 s22, s{sC}, 1
        s_mul_i32 s22, s22, 3072
        s_bfe_u32 s23, s{sC}, 0x10000
        s_lshl_b32 s23, s23, 10
        s_add_u32 s22, s22, s23
        s_mul_i32 s{sElim}, s{sG}, {GEA}
        s_add_u32 s{sE0}, s{sElim}, s22
        s_add_u32 s{sE0}, s{sE0}, {EA}
        s_and_b32 s{sRel}, s2, 63
        s_lshl_b32 s{sRel}, s{sRel}, 7
        s_add_u32 s{sRel}, s{sRel}, {WS_FLAG + 0x4000}
        """)
    def vconsts():
        A(f"""
        v_add_u32 v{v.P0}, s{sRing}, v{v.P0}
        v_add_u32 v{v.E_}, s{sElim}, v{v.E_}
        s_mul_i32 s22, s{sG}, {GSL*8}
        v_xor_b32 v{v.P1}, 16, v{v.P0}
        v_add_u32 v{v.R1}, s22, v{v.R1}
        v_add_u32 v{v.R2}, s22, v{v.R2}
        s_lshl_b32 s23, s{sC}, 8
        s_add_u32 s22, s22, s23
        v_add_u32 v{v.Re}, s22, v{v.Re}
        s_lshl_b32 s22, s{sC}, 6
        v_or_b32 v{v.IX0+1}, s22, v{v.IXo}
        v_or_b32 v{v.IX1+1}, s22, v{v.IXo}
        v_xor_b32 v{TRA}, s22, v{TRA}
        s_mul_i32 s23, s2, 40
        s_mul_i32 s78, s{sG}, 20
        s_add_u32 s23, s23, s78
        s_lshl_b32 s23, s23, 8
        s_add_u32 s23, s23, s22
        v_add_u32 v{v.OA}, s23, v{v.OAl}
        v_mov_b32 v{v.IE+1}, v{v.IEo}
        s_mul_i32 s22, s3, {8*CH}
        v_add_u32 v{v.EB}, s22, v{v.EB}
        s_mul_i32 s22, s3, {4*3072}
        v_add_u32 v{v.QC}, s22, v{v.QC}
        s_lshl_b32 s22, s3, 2
        v_add_u32 v{v.FW}, s22, v{v.FRo}
        s_lshl_b32 s22, s{sG}, 4
        v_add_u32 v{v.FR}, s22, v{v.FRo}
        v_lshrrev_b32 v{H}, 5, v{L}
        s_add_u32 s{sRing}, s{sRing}, {RING}
        s_add_u32 s{sElim}, s{sElim}, {EA + GEA}
        """)
    def lds_init():
        A(f"""
        s_mul_i32 s22, s3, 3072
        s_add_u32 m0, s22, {EA + 2048}
        s_brev_b32 s23, 2
        buffer_load_dwordx4 v{v.t3}, {sr(sWS,4)}, s23 offen lds
        s_add_u32 m0, s22, {EA + 2048 + 24576}
        s_cmp_lt_u32 s3, 2
        buffer_load_dwordx4 v{v.t3}, {sr(sWS,4)}, s23 offen lds
        s_cselect_b32 s78, 0, {JUNK - (EA + 2048 + 73728) - 7 * 3072}
        s_add_u32 m0, s22, {EA + 2048 + 49152}
        s_cselect_b32 s79, s22, {7 * 3072}
        buffer_load_dwordx4 v{v.t3}, {sr(sWS,4)}, s23 offen lds
        """.replace("s_cselect_b32 s78, 0, " + str(JUNK - (EA + 2048 + 73728) - 7 * 3072) + "\n", "").replace(
            f"        s_add_u32 m0, s22, {EA + 2048 + 49152}\n        s_cselect_b32 s79, s22, {7 * 3072}\n",
            f"        s_cselect_b32 s79, s22, {JUNK - (EA + 2048 + 73728)}\n        s_add_u32 m0, s22, {EA + 2048 + 49152}\n        s_lshl_b32 s22, s3, 10\n"))
        A(f"""
        s_add_u32 m0, s79, {EA + 2048 + 73728}
        s_add_u32 s78, s{sTB}, 4096
        buffer_load_dwordx4 v{v.t3}, {sr(sWS,4)}, s23 offen lds
        s_addc_u32 s79, s{sTB+1}, 0
        s_add_u32 m0, s22, {REC - 1024}
        s_cmp_eq_u32 s3, 7
        global_load_lds_dwordx4 v{v.t3}, s[78:79] offset:1024
        s_cbranch_scc1 {A.label('i7')}
        """)
        l7 = f"L_i7_{A.uid}"
        A(f"""
        s_add_u32 m0, s22, {REC + 8192 - 1024}
        s_nop 0
        global_load_lds_dwordx4 v{v.t3}, s[78:79] offset:1024
        {l7}b:
        """)
        ool.append(f"{l7}:\ns_mov_b32 m0, 0\ns_nop 0\nglobal_load_lds_dwordx4 v{v.t3}, s[78:79]\ns_branch {l7}b")
    def tagshare(x, va):
        A(f"""
        s_cmp_lg_u32 s3, 0
        s_cbranch_scc1 K_NS{x}
        {"s_waitcnt vmcnt(0)" if x == "B" else ""}
        K_TAGOK{x}:
        v_cmp_eq_u32 vcc, 0, v{v.FV}
        s_cbranch_vccnz K_TAG{x}
        ds_write_b32 v{va}, v{v.FV}
        K_NS{x}:
        """)
        ool.append(f"K_TAG{x}:\nbuffer_load_dword v{v.FV}, off, {sr(sDB,4)}, 0 sc1\ns_waitcnt vmcnt(0)\ns_branch K_TAGOK{x}")
    def xred(regs, xs):
        for r, x in zip(regs, xs): A(f"v_bitop3_b32 v{x}, v{r}, v{r+1}, v{r+2} bitop3:0x96")
        for r, x in zip(regs, xs): A(f"v_xor_b32 v{x}, v{x}, v{r+3}")
        for pat in ("quad_perm:[1,0,3,2]", "quad_perm:[2,3,0,1]", "row_half_mirror"):
            if len(xs) < 3: A(f"s_nop {2 - len(xs)}")
            for x in xs: A(f"v_xor_b32_dpp v{x}, v{x}, v{x} {pat} row_mask:0xf bank_mask:0xf")
    def tagload(lbl):
        A(f"""
        s_cmp_lg_u32 s3, 0
        s_cbranch_scc1 {lbl}
        buffer_load_dword v{v.FV}, off, {sr(sDB,4)}, 0 sc1
        {lbl}:
        """)
    def qaddr():
        XA = v.E; GA = v.E + 1; TN = v.E + 2
        A(f"""
        s_mul_i32 s22, s{sG}, 20
        s_mul_i32 s23, s{sRole}, 40
        s_add_u32 s22, s22, s23
        v_and_b32 v{XA}, 31, v{L}
        v_add_u32 v{XA}, s22, v{XA}
        v_xor_b32 v{GA}, v{XA}, v{H}
        v_and_b32 v{GA}, 15, v{GA}
        v_lshl_or_b32 v{XA}, v{XA}, 4, v{GA}
        s_mov_b32 s22, {L_X}
        v_lshl_add_u32 v{XA}, v{XA}, 4, s22
        v_lshl_add_u32 v{TN}, v{H}, 11, v{TRA}
        v_add_u32 v{TN}, {L_W2}, v{TN}
        """)
    def qreads():
        XA = v.E; GA = v.E + 1; TN = v.E + 2
        for s_ in range(8):
            A(f"ds_read_b64_tr_b16 {vr(v.WA+4*s_,2)}, v{TN} offset:{s_*4096}")
            A(f"ds_read_b64_tr_b16 {vr(v.WA+4*s_+2,2)}, v{TN} offset:{s_*4096+1024}")
            if s_: A(f"v_xor_b32 v{GA}, {s_*32}, v{XA}")
            A(f"ds_read_b128 {vr(v.XF+4*s_,4)}, v{GA if s_ else XA}")
        A(f"ds_read_b64_tr_b16 {vr(v.W3F,2)}, v{TN} offset:32768")
        A(f"ds_read_b64_tr_b16 {vr(v.W3F+2,2)}, v{TN} offset:33792")
    def qmfma():
        for s_ in range(8):
            A(f"s_waitcnt lgkmcnt({min(15, 3*(7-s_) + 2)})")
            A(mfma(v.E, v.XF + 4*s_, v.WA + 4*s_, "0" if s_ == 0 else None))
            A(f"v_mov_b64 {P(v.ACC+2*s_)}, 0")
        A(f"""
        s_mov_b32 s72, {NEG_LOG2E:#x}
        v_cmp_gt_u32 {sr(sN40,2)}, 40, v{L}
        v_cmp_le_u32 {sr(sG1,2)}, 20, v{L}
        v_mov_b32 v{v.ONE}, 1.0
        v_mov_b32 v{v.ONE+1}, 1.0
        s_waitcnt lgkmcnt(0)
        """)
        for r in range(4):
            A(f"""
            v_lshlrev_b32 v{v.S}, 16, v{v.W3F+r}
            v_and_b32 v{v.S+1}, 0xffff0000, v{v.W3F+r}
            v_mul_f32 v{v.S}, s72, v{v.S}
            v_mul_f32 v{v.S+1}, s72, v{v.S+1}
            v_cvt_pk_bf16_f32 v{v.W3F+r}, v{v.S}, v{v.S+1}
            """)
    def post(x):
        A(f"""
        s_cmp_lg_u32 s3, 0
        s_cbranch_scc1 K_NP{x}
        v_readfirstlane_b32 s{sTag}, v{v.FV}
        s_cmp_eq_u32 s{sTag}, 0
        s_cbranch_scc1 K_TAG{x}
        K_TAGOK{x}:
        s_mov_b64 exec, 1
        buffer_store_dword v{v.FV}, off, {sr(sWS,4)}, s{sUoff} sc1
        s_mov_b64 exec, -1
        K_NP{x}:
        """)
        ool.append(f"K_TAG{x}:\nbuffer_load_dword v{v.FV}, off, {sr(sDB,4)}, 0 sc1\ns_waitcnt vmcnt(0)\nv_readfirstlane_b32 s{sTag}, v{v.FV}\ns_cmp_eq_u32 s{sTag}, 0\ns_cbranch_scc1 K_TAG{x}\ns_branch K_TAGOK{x}")
    MC = opt.get("mc", 0)
    D, S, RK, AD = v.T, v.T + 8, v.T1, v.T1 + 8
    CW = v.E
    A(f"s_mul_i32 s22, s{sPair}, {CH*4}")
    srd(A, sD, PDST, CH * 4, add="s22")
    A(f"""
    v_lshlrev_b32 v{v.t1}, 2, v0
    s_movk_i32 s23, 0x2000
    buffer_load_dwordx4 {vr(D,4)}, v{v.t2}, {sr(sD,4)}, 0 offen
    buffer_load_dword v{D+4}, v{v.t1}, {sr(sD,4)}, s23 offen
    """)
    srd(A, sS, PSRC, CH * 4, add="s22")
    A(f"""
    buffer_load_dwordx4 {vr(S,4)}, v{v.t2}, {sr(sS,4)}, 0 offen
    buffer_load_dword v{S+4}, v{v.t1}, {sr(sS,4)}, s23 offen
    v_mov_b64 {P(CW)}, -1
    v_mov_b64 {P(CW+2)}, -1
    v_mov_b32 v{CW+4}, 0
    ds_write_b128 v{v.t2}, {vr(CW,4)}
    ds_write_b128 v{v.t2}, {vr(CW,4)} offset:8192
    ds_write_b128 v{v.t2}, {vr(CW,4)} offset:16384
    ds_write_b128 v{v.t2}, {vr(CW,4)} offset:24576
    ds_write_b32 v{v.t1}, v{CW+4} offset:32768
    """)
    srd(A, sWm, PWM, 272 * 256)
    EARLY0 = opt.get("e0", 0)
    P0M = opt.get("p0", 2)
    if P0M == 1:
        xdma(2); w23dma(False)
    nb0 = 3 if P0M == 1 else 0
    srd(A, sWS, PWS, WS_END if not ST else 0x1000000)
    sconsts()
    A(f"""
    v_lshlrev_b32 v{CW+6}, 22, v0
    v_add_u32 v{CW+7}, 0x800, v0
    v_lshlrev_b32 v{CW+7}, 20, v{CW+7}
    v_mov_b32 v{CW+5}, 16
    s_mov_b32 s72, -10
    s_mov_b32 s73, 0x100000
    s_mov_b32 s74, 0x200000
    s_mov_b32 s75, 0x300000
    s_lshl_b32 s78, s{sPair}, 15
    s_add_u32 s78, s78, {WS_CELL}
    v_mov_b32 v{CW+9}, {32768 + 1024}
    s_movk_i32 s79, {31*16}
    s_waitcnt lgkmcnt(0)
    s_barrier
    s_waitcnt vmcnt({2 + nb0})
    """)
    stamp(94)
    tagload("K_NT1")
    t = CW + 8
    for j in range(5):
        A(f"""
        v_mul_u32_u24 v{AD+j}, 0xcccd, v{D+j}
        v_lshrrev_b32 v{AD+j}, 19, v{AD+j}
        v_and_b32 v{AD+j}, -4, v{AD+j}
        ds_add_rtn_u32 v{RK+j}, v{AD+j}, v{CW+5} offset:32768
        """)
    if P0M == 1:
        wdma(32768, L_W2); nb0 += 4
    if P0M == 2:
        xdma(2); w23dma(); nb0 += 7
    for j in range(5):
        A(f"v_mad_i32_i24 v{D+j}, v{AD+j}, s72, v{D+j}")
    A(f"s_waitcnt vmcnt({nb0})")
    tagshare("A", CW + 9)
    for j in range(5):
        d = D + j
        A(f"v_lshl_or_b32 v{d}, v{d}, 14, v{S+j}")
        if j == 0: A(f"v_add_u32 v{d}, v{d}, v{CW+6}")
        elif j < 4: A(f"v_add3_u32 v{d}, v{d}, v{CW+6}, s{72+j}")
        else: A(f"v_add_u32 v{d}, v{d}, v{CW+7}")
    A("s_waitcnt lgkmcnt(0)")
    pt("rk")
    A(f"v_max3_u32 v{t}, v{RK}, v{RK+1}, v{RK+2}")
    A(f"v_max3_u32 v{t}, v{t}, v{RK+3}, v{RK+4}")
    A(f"v_cmp_le_u32 vcc, s79, v{t}")
    A("s_cbranch_vccnz K_BOVF")
    A("K_BOVB:")
    B = Asm()
    B("K_BOVF:")
    B(f"v_mov_b32 v{t}, -2")
    for j in range(5):
        B(f"v_cmp_le_u32 vcc, s79, v{RK+j}")
        B(f"v_min_u32 v{RK+j}, s79, v{RK+j}")
        B("s_nop 0")
        B(f"v_cndmask_b32 v{D+j}, v{D+j}, v{t}, vcc")
    B("s_branch K_BOVB")
    ool.append(B.text())
    for j in range(5):
        r = RK + j
        A(f"""
        v_lshrrev_b32 v{t}, 5, v{r}
        v_and_b32 v{r}, 0x70, v{r}
        v_and_or_b32 v{r}, v{t}, 12, v{r}
        v_lshl_add_u32 v{r}, v{AD+j}, 5, v{r}
        ds_write_b32 v{r}, v{D+j}
        """)
    A(f"""
    s_add_u32 s73, s78, 8192
    s_add_u32 s74, s78, 16384
    s_add_u32 s75, s78, 24576
    s_waitcnt lgkmcnt(0)
    s_barrier
    """)
    pt("cb")
    A(f"""
    ds_read_b32 v{v.FV}, v{CW+9}
    ds_read_b128 {vr(v.T,4)}, v{v.t2}
    ds_read_b128 {vr(v.T+4,4)}, v{v.t2} offset:8192
    ds_read_b128 {vr(v.T+8,4)}, v{v.t2} offset:16384
    ds_read_b128 {vr(v.T+12,4)}, v{v.t2} offset:24576
    s_waitcnt lgkmcnt(0)
    v_not_b32 v{v.T1+4}, v{v.FV}
    """)
    xred([v.T + 4*q for q in range(4)], [v.T1 + q for q in range(4)])
    A("s_mov_b32 exec_lo, 0x80808080")
    A("s_mov_b32 exec_hi, 0x80808080")
    for q in range(4):
        A(f"v_xor_b32 v{v.T+4*q+3}, v{v.T1+q}, v{v.T1+4}")
    A("s_mov_b64 exec, -1")
    for q in range(4):
        A(f"buffer_store_dwordx4 {vr(v.T+4*q,4)}, v{v.t2}, {sr(sWS,4)}, s{(78,73,74,75)[q]} offen sc1")
    stamp(4)
    vconsts()
    A("s_waitcnt vmcnt(4)")
    A("s_branch K_COM0")
    A("K_GEMM:")
    pt("k0")
    if opt.get("wfirst"):
        srd(A, sWm, PWM, 272 * 256)
        wdma(0, 0)
        xdma(3)
    else:
        xdma(3)
        srd(A, sWm, PWM, 272 * 256)
        wdma(0, 0)
    G1M = opt.get("g1", 2)
    pt("g0")
    if G1M == 0: w23dma()
    pt("g1")
    srd(A, sWS, PWS, WS_END if not ST else 0x1000000)
    sconsts()
    XA = v.E; PA = v.E + 1; GA = v.E + 2; TN = v.E + 3
    A(f"""
    s_lshl_b32 s{sPair}, s{sPair}, 4
    s_add_u32 s{sPair}, s{sPair}, {WS_FLAG + 0x2000}
    s_mov_b32 s72, {NEG_LOG2E:#x}
    s_add_u32 s73, s{sUT}, 0x2000
    s_add_u32 s74, s{sUT}, 0x4000
    s_cmp_ge_u32 s3, 4
    s_cselect_b32 s74, 0x40000000, s74
    v_add_u32 v{v.JK3}, {L_BN}, v{v.t2}
    v_and_b32 v{XA}, 31, v{L}
    s_lshl_b32 s22, s{sG}, 5
    v_add_u32 v{XA}, s22, v{XA}
    s_waitcnt vmcnt({12 if G1M == 0 else 7})
    """)
    pt("g2")
    vconsts()
    A(f"""
    v_lshl_add_u32 v{TN}, v{H}, 11, v{TRA}
    s_lshl_b32 s22, s{sC}, 2
    v_lshl_add_u32 v{PA}, v{H}, 1, s22
    v_xor_b32 v{PA}, v{PA}, v{XA}
    v_and_b32 v{PA}, 15, v{PA}
    v_lshl_or_b32 v{PA}, v{XA}, 4, v{PA}
    s_mov_b32 s22, {L_BN}
    v_lshl_add_u32 v{PA}, v{PA}, 4, s22
    v_xor_b32 v{GA}, v{H}, v{XA}
    v_and_b32 v{GA}, 15, v{GA}
    v_lshl_or_b32 v{XA}, v{XA}, 4, v{GA}
    s_mov_b32 s22, {L_X}
    v_lshl_add_u32 v{XA}, v{XA}, 4, s22
    """)
    for s_ in range(1, 8):
        A(f"v_xor_b32 v{v.E+8+s_}, {s_*32}, v{XA}")
    pt("g3")
    if "gx" in PTS:
        A("s_waitcnt vmcnt(4)")
        pt("gx")
        A("s_waitcnt vmcnt(0)")
        pt("gw")
    if G1M == 1: w23dma()
    A(f"s_waitcnt vmcnt({5 if G1M < 2 else 0})")
    A("s_barrier")
    stamp(94)
    for s_ in range(8):
        A(f"ds_read_b64_tr_b16 {vr(v.WA+4*s_,2)}, v{TN} offset:{s_*4096}")
        A(f"ds_read_b64_tr_b16 {vr(v.WA+4*s_+2,2)}, v{TN} offset:{s_*4096+1024}")
        A(f"ds_read_b128 {vr(v.XF+4*s_,4)}, v{v.E+8+s_ if s_ else XA}")
    if G1M == 2: w23dma()
    A(f"s_cmp_lg_u32 s{sG}, 0")
    A("s_cbranch_scc1 K_G1")
    for s_ in range(8):
        A(f"ds_read_b128 {vr(v.U2+4*s_,4)}, v{v.E+8+s_ if s_ else XA} offset:16384")
    tagload("K_NT2")
    for s_ in range(8):
        A(f"s_waitcnt lgkmcnt({min(15, 3*(7-s_) + 8)})")
        A(mfma(v.T, v.WA + 4*s_, v.XF + 4*s_, "0" if s_ == 0 else None))
    for s_ in range(8):
        A(f"s_waitcnt lgkmcnt({7-s_})")
        A(mfma(v.T1, v.WA + 4*s_, v.U2 + 4*s_, "0" if s_ == 0 else None))
    def pout(acc, off, pk):
        for r in range(0, 16, 2):
            if pk:
                A(f"v_pk_mul_f32 {P(acc+r)}, {P(acc+r)}, s[72:73] op_sel_hi:[1,0]")
            else:
                A(f"v_mul_f32 v{acc+r}, s72, v{acc+r}")
                A(f"v_mul_f32 v{acc+r+1}, s72, v{acc+r+1}")
        for r in range(0, 16, 2):
            A(f"v_cvt_pk_bf16_f32 v{acc+r//2}, v{acc+r}, v{acc+r+1}")
        A(f"ds_write_b128 v{PA}, {vr(acc,4)} offset:{off}")
        A(f"ds_write_b128 v{GA}, {vr(acc+4,4)} offset:{off}")
    A(f"v_xor_b32 v{GA}, 16, v{PA}")
    pout(v.T, 0, False)
    pout(v.T1, 16384, True)
    A("s_branch K_G3")
    A("K_G1:")
    for s_ in range(8):
        A(f"s_waitcnt lgkmcnt({min(15, 3*(7-s_))})")
        A(mfma(v.T, v.WA + 4*s_, v.XF + 4*s_, "0" if s_ == 0 else None))
    A(f"v_xor_b32 v{GA}, 16, v{PA}")
    A("s_nop 10")
    pout(v.T, 0, False)
    A("K_G3:")
    pt("g4")
    A(f"v_mov_b32 v{v.JK}, {L_BN + 24576}")
    tagshare("B", v.JK)
    A(f"""
    s_waitcnt lgkmcnt(0)
    s_barrier
    ds_read_b32 v{v.FV}, v{v.JK}
    ds_read_b128 {vr(v.T,4)}, v{v.JK3}
    ds_read_b128 {vr(v.T+4,4)}, v{v.JK3} offset:8192
    ds_read_b128 {vr(v.T+8,4)}, v{v.JK3} offset:16384
    s_waitcnt lgkmcnt(2)
    buffer_store_dwordx4 {vr(v.T,4)}, v{XV}, {sr(sWS,4)}, s{sUT} offen sc1
    s_waitcnt lgkmcnt(1)
    buffer_store_dwordx4 {vr(v.T+4,4)}, v{XV}, {sr(sWS,4)}, s73 offen sc1
    s_waitcnt lgkmcnt(0)
    buffer_store_dwordx4 {vr(v.T+8,4)}, v{XV}, {sr(sWS,4)}, s74 offen sc1
    """)
    stamp(4)
    A("s_waitcnt vmcnt(3)")
    A("K_COM0:")
    A(f"v_readfirstlane_b32 s{sTag}, v{v.FV}")
    qaddr()
    A("s_barrier")
    pt("c1")
    qreads()
    lds_init()
    pt("c2")
    qmfma()
    stamp(6)
    A("K_COMMON:")
    pt("c3")
    for r in range(0, 12, 2):
        A(f"v_pk_mul_f32 {P(v.E+r)}, {P(v.E+r)}, s[72:73] op_sel_hi:[1,0]")
    A(f"""
    v_cvt_pk_bf16_f32 v{v.QS}, v{v.E}, v{v.E+1}
    v_cvt_pk_bf16_f32 v{v.QS+1}, v{v.E+2}, v{v.E+3}
    v_cvt_pk_bf16_f32 v{v.QF+2}, v{v.E+4}, v{v.E+5}
    v_cvt_pk_bf16_f32 v{v.QF+3}, v{v.E+6}, v{v.E+7}
    v_cvt_pk_bf16_f32 v{v.QS+2}, v{v.E+8}, v{v.E+9}
    v_cvt_pk_bf16_f32 v{v.QS+3}, v{v.E+10}, v{v.E+11}
    s_lshl_b32 s{sUoff}, s{sC}, 13
    s_add_u32 s{sUoff}, s{sUoff}, {WS_U}
    """)
    def round_regs():
        A(f"""
        v_mov_b32 v{v.TPa+1}, v{v.IX0+1}
        v_mov_b32 v{v.TPb+1}, v{v.IX0+1}
        v_mov_b32 v{v.IEb+1}, v{v.IE+1}
        v_mov_b32 v{v.aggF}, 1
        v_mov_b64 {P(v.REC+4)}, -1
        v_mov_b64 {P(v.REC+6)}, -1
        v_add_u32 v{v.JK}, {64 * CH}, v{v.EB}
        """)
    def cell_addr():
        A(f"""
        s_lshl_b32 s22, s2, 7
        s_add_u32 s22, s22, {WS_CELL}
        s_add_u32 s23, s22, {64*32768}
        s_movk_i32 s76, {1000 - 512}
        v_cmp_gt_u32 s[76:77], s76, v0
        v_lshrrev_b32 v{v.t0}, 3, v0
        v_and_b32 v{v.t1}, 7, v0
        v_lshlrev_b32 v{v.t1}, 4, v{v.t1}
        v_lshl_add_u32 v{v.DS}, v{v.t0}, 15, v{v.t1}
        """)
    round_regs()
    A(f"""
    s_cmp_eq_u32 s{sRole}, 0
    s_cbranch_scc1 {"K2_B3" if opt.get("isl") else "K2_B2"}
    s_waitcnt vmcnt(6)
    s_barrier
    s_cmp_eq_u32 s3, 0
    s_cbranch_scc1 K2_B1
    K2_B2:
    """)
    stamp(8)
    A("K2_CELLS:")
    cell_addr()
    A("s_mov_b64 s[74:75], -1")
    A("s_and_b32 s72, s76, 0x80808080")
    A("s_and_b32 s73, s77, 0x80808080")
    stamp(10)
    A(f"""
    K_POLL:
    s_mov_b64 exec, s[74:75]
    buffer_load_dwordx4 {vr(v.REC,4)}, v{v.DS}, {sr(sWS,4)}, s22 offen sc1
    s_mov_b64 exec, s[76:77]
    buffer_load_dwordx4 {vr(v.REC+4,4)}, v{v.DS}, {sr(sWS,4)}, s23 offen sc1
    s_mov_b64 exec, -1
    buffer_load_dword v{v.JK2}, off, {sr(sWS,4)}, s{sRel} sc1
    s_waitcnt vmcnt(0)
    """)
    xred([v.REC, v.REC + 4], [v.NS, v.NS + 1])
    A(f"""
    v_xor_b32 v{v.NS}, s{sTag}, v{v.NS}
    v_xor_b32 v{v.NS+1}, s{sTag}, v{v.NS+1}
    v_cmp_lt_u32 s[74:75], 1, v{v.NS}
    v_cmp_lt_u32 vcc, 1, v{v.NS+1}
    s_and_b64 s[76:77], s[76:77], vcc
    s_or_b64 s[78:79], s[74:75], s[76:77]
    s_cbranch_scc1 K_POLL2
    s_mov_b32 exec_lo, 0x80808080
    s_mov_b32 exec_hi, 0x80808080
    v_not_b32 v{v.REC+3}, v{v.NS}
    s_mov_b64 exec, s[72:73]
    v_not_b32 v{v.REC+7}, v{v.NS+1}
    s_mov_b64 exec, -1
    """)
    A(f"""
    s_cmp_lg_u32 s{sMode}, 0
    s_barrier
    s_cbranch_scc1 K2_COUNT
    ds_read_b128 {vr(v.SEL0,4)}, v{v.S0a}
    ds_read_b128 {vr(v.SEL1,4)}, v{v.S1a}
    K2_COUNT:
    """)
    ool.append(f"K2_B1:\ns_mov_b64 exec, 1\nbuffer_store_dword v{v.FV}, off, {sr(sWS,4)}, s{sPair} sc1\ns_mov_b64 exec, -1\ns_branch K2_B2")
    if opt.get("isl"): ool.append(f"K2_B3:\ns_waitcnt vmcnt(6)\ns_sleep {opt.get('isl') - 1}\ns_branch K2_B2")
    ool.append(f"K_POLL2:\ns_sleep {opt.get('slp', 12)}\ns_branch K_POLL")
    stamp(12)
    ET = opt.get("et", 4)
    W0 = {0: v.W0, 1: v.W0 + 2, 4: v.W0 + 4, 5: v.W0 + 6}
    for j in range(8):
        main = j % 4 < 2
        body = f"""
        v_lshrrev_b32 v{v.AD+j}, 12, v{v.REC+j}
        v_and_b32 v{v.AD+j}, 0xfc, v{v.AD+j}
        s_mov_b64 exec, {sr(sM+2*j,2)}
        ds_add_rtn_u32 v{v.RANK+j}, v{v.AD+j}, v{v.aggF} offset:{CNT}
        """
        A(f"v_cmp_gt_u32 {sr(sM+2*j,2)}, -2, v{v.REC+j}")
        if main:
            A(body)
            A(f"v_lshrrev_b32 v{W0[j]+1}, 20, v{v.REC+j}")
            if ET:
                A(f"v_subrev_u32 v{v.t0}, 80, v{v.AD+j}")
            A(f"v_add_u32 v{W0[j]+1}, v{W0[j]+1}, v{v.EB if j < 4 else v.JK}")
            if ET:
                A(f"v_min_u32 v{v.t0}, v{v.t0}, v{v.AD+j}")
                A(f"v_cmpx_gt_u32 vcc, {4*ET}, v{v.t0}")
                A(f"buffer_load_dword v{v.JK3}, v{W0[j]+1}, {sr(sE,4)}, 0 idxen")
            A("s_mov_b64 exec, -1")
        else:
            l = A.label("cs"); lb = A.label("cb")
            body += "s_mov_b64 exec, -1\n"
            if j % 4 == 3:
                A(f"v_cmp_eq_u32 vcc, -2, v{v.REC+j}")
                A(f"s_or_b64 s[22:23], {sr(sM+2*j,2)}, vcc")
                body += f"s_cbranch_vccz {lb}\nv_mov_b32 v{v.t1}, {FLAG}\nds_write_b32 v{v.t1}, v{v.aggF}\n"
            else:
                A(f"s_cmp_lg_u64 {sr(sM+2*j,2)}, 0")
            A(f"s_cbranch_scc1 {l}")
            A(f"{lb}:")
            ool.append(f"{l}:\n{body}\ns_branch {lb}")
    NPF = opt.get("pf", 0)
    if NPF:
        A(f"""
        s_or_b32 s22, s3, s{sMode}
        s_cmp_lg_u32 s22, 0
        s_cbranch_scc1 K2_NOPF
        v_cmp_ne_u32 vcc, s{sTag}, v{v.JK2}
        s_cbranch_vccnz K2_NOPF
        s_mul_i32 s22, s{sSl}, 81920
        v_lshlrev_b32 v{v.t0}, 7, v{L}
        """)
        for q in range(NPF):
            A(f"buffer_load_dword v{v.JK3}, v{v.t0}, {sr(sWS,4)}, s22 offen")
            if q < NPF - 1: A("s_add_u32 s22, s22, 8192")
        A("K2_NOPF:")
    c = v.t0; pd = v.OHA
    A(f"""
    v_lshlrev_b32 v{v.t0}, 2, v{L}
    v_mov_b32 v{v.t1}, {FLAG}
    s_mul_i32 s22, s{sG}, 20
    s_add_u32 s22, s22, 8
    s_waitcnt lgkmcnt(0)
    s_barrier
    """)
    pt("b2")
    A(f"""
    ds_read_b32 v{v.t0}, v{v.t0} offset:{CNT}
    ds_read_b32 v{v.t1}, v{v.t1}
    s_waitcnt lgkmcnt(0)
    v_add_u32 v{c}, 3, v{c}
    v_and_b32 v{c}, -4, v{c}
    v_max_u32 v{c}, 4, v{c}
    v_cndmask_b32 v{pd}, 0, v{c}, {sr(sN40,2)}
    v_readfirstlane_b32 s23, v{v.t1}
    s_nop 0
    v_add_u32_dpp v{c}, v{pd}, v{pd} row_shr:1 row_mask:0xf bank_mask:0xf bound_ctrl:0
    s_nop 1
    v_add_u32_dpp v{c}, v{c}, v{c} row_shr:2 row_mask:0xf bank_mask:0xf bound_ctrl:0
    s_nop 1
    v_add_u32_dpp v{c}, v{c}, v{c} row_shr:4 row_mask:0xf bank_mask:0xf bound_ctrl:0
    s_nop 1
    v_add_u32_dpp v{c}, v{c}, v{c} row_shr:8 row_mask:0xf bank_mask:0xf bound_ctrl:0
    s_nop 1
    v_add_u32_dpp v{c}, v{c}, v{c} row_bcast:15 row_mask:0xa bank_mask:0xf
    s_nop 1
    v_add_u32_dpp v{c}, v{c}, v{c} row_bcast:31 row_mask:0xc bank_mask:0xf
    s_cmp_lg_u32 s23, -1
    s_cbranch_scc1 K2_OVF
    v_readlane_b32 s{sT0}, v{c}, 19
    v_readlane_b32 s{sT1}, v{c}, 39
    v_sub_u32 v{pd}, v{c}, v{pd}
    s_sub_u32 s23, {GSL}, s{sT0}
    v_add_u32 v{c}, s23, v{pd}
    v_cndmask_b32 v{pd}, v{pd}, v{c}, {sr(sG1,2)}
    v_add_u32 v{v.FV}, v{pd}, v{v.OHB}
    """)
    for j in (0, 1, 4, 5):
        A(f"ds_bpermute_b32 v{v.PK+j}, v{v.AD+j}, v{v.FV}")
    A(f"""
    v_readlane_b32 s{sTsw}, v{pd}, s22
    s_sub_u32 s{sT1}, s{sT1}, s{sT0}
    s_max_u32 s22, s{sT0}, s{sT1}
    s_cmp_gt_u32 s22, {GSL}
    s_cbranch_scc1 K2_OVF
    s_waitcnt lgkmcnt(0)
    """)
    pt("sc")
    for j in (0, 1, 4, 5, 2, 3, 6, 7):
        rare = (j % 4) >= 2
        w = v.W0 + 8 if rare else W0[j]
        body = f"""
        s_mov_b64 exec, {sr(sM+2*j,2)}
        v_add_u32_sdwa v{v.RANK+j}, v{v.PK+j}, v{v.RANK+j} dst_sel:DWORD dst_unused:UNUSED_PAD src0_sel:WORD_0 src1_sel:DWORD
        v_bfi_b32 v{w}, s{sK3F}, v{v.REC+j}, v{v.PK+j}
        v_lshlrev_b32 v{v.PK+j}, 3, v{v.RANK+j}
        v_lshrrev_b32 v{v.RANK+j}, 2, v{v.RANK+j}
        ds_write_b64 v{v.PK+j}, {P(w)} offset:{REC}
        ds_write_b8 v{v.RANK+j}, v{v.AD+j} offset:{QN}
        """
        if rare:
            l = A.label("ss"); lb = A.label("sb")
            A(f"s_cmp_lg_u64 {sr(sM+2*j,2)}, 0")
            A(f"s_cbranch_scc1 {l}")
            A(f"{lb}:")
            ool.append(f"{l}:\ns_mov_b64 exec, -1\nds_bpermute_b32 v{v.PK+j}, v{v.AD+j}, v{v.FV}\nv_lshrrev_b32 v{w+1}, 20, v{v.REC+j}\nv_add_u32 v{w+1}, v{w+1}, v{v.EB if j < 4 else v.JK}\ns_waitcnt lgkmcnt(0)\n{body}\ns_branch {lb}")
        else:
            A(body)
    A(f"""
    s_mov_b64 exec, -1
    s_or_b32 s22, s3, s{sMode}
    s_cmp_lg_u32 s22, 0
    s_cbranch_scc1 K2_RDY
    v_cmp_ne_u32 vcc, s{sTag}, v{v.JK2}
    s_cbranch_vccnz {"K2_SPOLL" if opt.get("sp", 1) else "K2_RPOLL"}
    K2_RDY:
    s_mov_b32 m0, s{sRing}
    s_waitcnt lgkmcnt(0)
    s_barrier
    """)
    ool.append(f"K2_RPOLL:\nbuffer_load_dword v{v.JK2}, off, {sr(sWS,4)}, s{sRel} sc1\ns_waitcnt vmcnt(0)\nv_cmp_ne_u32 vcc, s{sTag}, v{v.JK2}\ns_cbranch_vccz K2_RDY\ns_sleep 1\ns_branch K2_RPOLL")
    ool.append(f"K2_SPOLL:\ns_mov_b32 s23, 0\nK2_SP2:\ns_buffer_load_dword s22, {sr(sWS,4)}, s{sRel} glc\ns_waitcnt lgkmcnt(0)\ns_cmp_eq_u32 s22, s{sTag}\ns_cbranch_scc1 K2_RDY\ns_add_u32 s23, s23, 1\ns_cmp_lt_u32 s23, 16\ns_cbranch_scc1 K2_SP2\ns_branch K2_RPOLL")
    stamp(14)
    A(f"""
    ds_read_u16 v{v.IX0}, v{v.R1}
    ds_read_u16 v{v.IX1}, v{v.R1} offset:64
    ds_read_b32 v{v.IE}, v{v.Re}
    ds_read_u8 v{v.t0}, v0 offset:{QN}
    ds_read_u16 v{v.TPa}, v{v.R1} offset:256
    ds_read_u16 v{v.TPb}, v{v.R1} offset:320
    ds_read_b32 v{v.IEb}, v{v.Re} offset:1024
    ds_read_u8 v{v.OH0}, v{v.R2}
    ds_read_u8 v{v.OHA}, v{v.R2} offset:256
    s_waitcnt lgkmcnt(8)
    buffer_load_dwordx4 {P(v.IX0)}, {sr(sP,4)}, 0 idxen offen lds
    s_add_u32 m0, s{sRing}, 1024
    s_waitcnt lgkmcnt(7)
    buffer_load_dwordx4 {P(v.IX1)}, {sr(sP,4)}, 0 idxen offen lds
    s_mov_b32 m0, s{sE0}
    s_waitcnt lgkmcnt(5)
    buffer_load_dwordx4 {P(v.IE)}, {sr(sE,4)}, 0 idxen offen lds
    v_cmp_ne_u32 vcc, 0xff, v{v.t0}
    v_subrev_u32 v{v.t1}, 80, v{v.t0}
    v_min_u32 v{v.t0}, v{v.t0}, v{v.t1}
    v_lshl_add_u32 v{v.t1}, v{v.t0}, 3, v{v.QC}
    v_lshrrev_b32 v{v.t0}, 1, v{v.t0}
    v_and_b32 v{v.t0}, 16, v{v.t0}
    v_xor_b32 v{v.t1}, v{v.t1}, v{v.t0}
    v_mov_b32 v{v.t0}, 0x3f80
    s_mov_b64 exec, vcc
    ds_write_b16 v{v.t1}, v{v.t0}
    s_mov_b64 exec, -1
    s_add_u32 m0, s{sRing}, 2048
    s_waitcnt lgkmcnt(0)
    buffer_load_dwordx4 {P(v.TPa)}, {sr(sP,4)}, 0 idxen offen lds
    s_add_u32 m0, s{sRing}, 3072
    ds_read_u16 v{v.IX0}, v{v.R1} offset:512
    buffer_load_dwordx4 {P(v.TPb)}, {sr(sP,4)}, 0 idxen offen lds
    ds_read_u16 v{v.IX1}, v{v.R1} offset:576
    ds_read_u16 v{v.TPa}, v{v.R1} offset:768
    ds_read_u16 v{v.TPb}, v{v.R1} offset:832
    s_mul_i32 s22, s{sG}, {GSL}
    s_sub_u32 s{sTsw}, s{sTsw}, s22
    s_add_u32 s{sTsw}, s{sTsw}, 31
    s_lshr_b32 s{sTsw}, s{sTsw}, 5
    s_add_u32 s{sT0}, s{sT0}, 31
    s_lshr_b32 s{sT0}, s{sT0}, 5
    s_add_u32 s{sT1}, s{sT1}, 31
    s_lshr_b32 s{sT1}, s{sT1}, 5
    s_cmp_gt_u32 s{sT0}, s{sT1}
    s_cselect_b32 s{sLate}, 1, 0
    s_xor_b32 s{sLate}, s{sLate}, s{sG}
    s_cmp_eq_u32 s{sG}, 0
    s_cselect_b32 s{sTg}, s{sT0}, s{sT1}
    s_sub_u32 s{sUT}, s{sTg}, 9
    s_and_b32 s{sUT}, s{sUT}, -4
    s_add_u32 s{sUT}, s{sUT}, 1
    s_cmp_lt_u32 s{sTg}, 9
    s_cselect_b32 s{sUT}, {BIG}, s{sUT}
    s_cmp_lg_u32 s{sMode}, 0
    s_cselect_b32 s{sUT}, {BIG}, s{sUT}
    s_sub_u32 s22, s{sTg}, 1
    s_lshr_b32 s22, s22, 1
    s_mul_i32 s22, s22, 3072
    s_add_u32 s22, s22, {3072 + 2048}
    v_add_u32 v{v.LA}, s22, v{v.E_}
    s_add_u32 s{sEdst}, s{sE0}, {6144 if opt.get('ek', 3) == 3 else 12288}
    s_mov_b32 s{sTile}, 0
    v_mov_b32 v{v.PROG}, 1
    v_mov_b64 {P(v.QF)}, {P(v.QS)}
    v_mov_b64 {P(v.NS)}, 0
    v_mov_b64 {P(v.NS+2)}, 0
    v_mov_b64 {P(v.DS)}, {P(v.ONE)}
    v_mov_b64 {P(v.DS+2)}, {P(v.ONE)}
    v_mov_b64 {P(v.MSG)}, 0
    v_mov_b64 {P(v.aggF)}, 0
    v_mov_b64 {P(v.aggF+2)}, 0
    v_mov_b64 {P(v.S)}, 0
    s_cmp_lg_u32 s{sMode}, 0
    s_waitcnt vmcnt(2) lgkmcnt(0)
    s_barrier
    """)
    stamp(16)
    A(f"""
    ds_read_b128 {vr(v.ohF,4)}, v{v.OH0}
    ds_read_b128 {vr(v.eF,4)}, v{v.E_} offset:3072
    ds_read_b128 {vr(v.pF0,4)}, v{v.P0}
    ds_read_b128 {vr(v.pF1,4)}, v{v.P1}
    s_cbranch_scc1 K2_SAFEP
    """)
    def late_issue():
        A(f"""
        s_add_u32 m0, s{sRing}, 4096
        s_nop 0
        buffer_load_dwordx4 {P(v.IX0)}, {sr(sP,4)}, 0 idxen offen lds
        s_add_u32 m0, s{sRing}, 5120
        ds_read_u16 v{v.IX0}, v{v.R1} offset:1024
        buffer_load_dwordx4 {P(v.IX1)}, {sr(sP,4)}, 0 idxen offen lds
        """)
        if opt.get("ek", 3) == 2:
            A(f"""
            s_add_u32 m0, s{sE0}, 6144
            s_nop 0
            buffer_load_dwordx4 {P(v.IEb)}, {sr(sE,4)}, 0 idxen offen lds
            """)
        else:
            A(f"v_mov_b32 v{v.IE}, v{v.IEb}")
        A(f"""
        s_add_u32 m0, s{sRing}, 6144
        ds_read_u16 v{v.IX1}, v{v.R1} offset:1088
        buffer_load_dwordx4 {P(v.TPa)}, {sr(sP,4)}, 0 idxen offen lds
        s_add_u32 m0, s{sRing}, 7168
        s_nop 0
        buffer_load_dwordx4 {P(v.TPb)}, {sr(sP,4)}, 0 idxen offen lds
        """)
    chain(A, 3, "fast", None, ool, pre=True, mid=late_issue)
    A("K2_LOOP:")
    for k in range(4):
        stretch(A, k, "fast", ool)
        chain(A, k, "fast", "K2_EXIT", ool)
    A("s_branch K2_LOOP")
    A("K2_EXIT:")
    stamp(18)
    A(f"""
    s_setprio 0
    ds_read_b128 {vr(v.ohF,4)}, v{v.LA}
    v_rcp_f32 v{v.RS}, v{v.DS}
    v_rcp_f32 v{v.RS+1}, v{v.DS+1}
    v_rcp_f32 v{v.RS+2}, v{v.DS+2}
    v_rcp_f32 v{v.RS+3}, v{v.DS+3}
    v_fma_f32 v{v.S}, v{v.DS}, v{v.DS+2}, v{v.S}
    v_fma_f32 v{v.S+1}, v{v.DS+1}, v{v.DS+3}, v{v.S+1}
    v_mul_f32 v{v.NS}, v{v.NS}, v{v.RS}
    v_mul_f32 v{v.NS+1}, v{v.NS+1}, v{v.RS+1}
    v_mul_f32 v{v.NS+2}, v{v.NS+2}, v{v.RS+2}
    v_mul_f32 v{v.NS+3}, v{v.NS+3}, v{v.RS+3}
    K2_X2:
    s_bitcmp1_b32 s{sTg}, 0
    s_cbranch_scc0 K2_X3
    s_waitcnt lgkmcnt(1)
    {mfma(v.ACC, v.MSG, v.aggF)}
    v_cvt_pk_bf16_f32 v{v.MSG}, v{v.NS}, v{v.NS+1}
    v_cvt_pk_bf16_f32 v{v.MSG+1}, v{v.NS+2}, v{v.NS+3}
    s_branch K2_X4
    K2_X3:
    v_cvt_pk_bf16_f32 v{v.MSG+2}, v{v.NS}, v{v.NS+1}
    v_cvt_pk_bf16_f32 v{v.MSG+3}, v{v.NS+2}, v{v.NS+3}
    K2_X4:
    v_max_f32 v{v.S}, v{v.S}, v{v.S+1}
    s_waitcnt lgkmcnt(0)
    {mfma(v.ACC, v.MSG, v.ohF)}
    v_add_u32 v{v.t0}, s{sRing}, v{v.t3}
    s_cmp_eq_u32 s{sMode}, 1
    s_cbranch_scc1 K2_NEXTR
    K2_FIN:
    s_cmp_eq_u32 s{sUT}, {BIG}
    s_cbranch_scc1 K2_ULD
    K2_ULB:
    s_mov_b32 s22, {NEG_LN2:#x}
    s_mov_b32 s23, {f2u(2.0**60):#x}
    v_mov_b64 {P(v.NS)}, 0
    v_mov_b32 v{v.S+1}, 0
    s_lshl_b32 s76, s{sG}, 15
    s_add_u32 s76, s76, {RING}
    v_add_u32 v{v.t1}, s76, v{v.t3}
    v_mov_b32 v{v.JK}, {TRIP}
    """)
    B = Asm(); B("K2_ULD:")
    for i in range(16): u_load(B, i)
    B("s_branch K2_ULB"); ool.append(B.text())
    for s in range(8):
        A(f"v_pk_mul_f32 {P(v.ACC+2*s)}, {P(v.ACC+2*s)}, s[22:23] op_sel_hi:[1,0]")
    for s in range(8):
        A(f"v_cvt_pk_bf16_f32 v{v.E+s}, v{v.ACC+2*s}, v{v.ACC+2*s+1}")
    A("s_waitcnt vmcnt(0)")
    A(f"ds_write_b128 v{v.t0}, {vr(v.E,4)}")
    A(f"ds_write_b128 v{v.t0}, {vr(v.E+4,4)} offset:1024")
    for s in range(8):
        A(f"v_pk_fma_f32 {P(v.S)}, {P(v.ACC+2*s)}, {P(v.NS)}, {P(v.S)}")
    F = v.T; AG = v.T1
    A(f"""
    v_add_f32 v{v.S}, v{v.S}, v{v.S+1}
    v_cmp_nge_f32 vcc, s23, v{v.S}
    s_cbranch_vccnz K2_TRIP
    K2_TRB:
    s_cmp_lg_u32 s{sLate}, 0
    s_waitcnt lgkmcnt(0)
    s_cbranch_scc1 K2_LATE
    """)
    ool.append(f"K2_TRIP:\ns_cmp_lg_u32 s{sMode}, 0\ns_cbranch_scc1 K2_TRB\nds_write_b32 v{v.JK}, v{v.NS}\ns_branch K2_TRB")
    def rg():
        for s_ in range(8):
            A(mfma(F, v.U1 + 4*s_, v.XF + 4*s_, "0" if s_ == 0 else None))
    def rd():
        A("s_barrier")
        stamp(96)
        A(f"ds_read_b32 v{v.JK}, v{v.JK}")
        for s in range(8):
            A(f"ds_read_b128 {vr(AG+4*s,4)}, v{v.t1} offset:{(s >> 1) * 8192 + (s & 1) * 1024}")
    rg(); rd()
    if opt.get("ep2", 1): A("s_setprio 2")
    A("s_branch K2_JOIN")
    A("K2_LATE:")
    rd(); rg()
    A("K2_JOIN:")
    for s in range(8):
        A(f"s_waitcnt lgkmcnt({7-s})")
        A(mfma(F, v.U2 + 4*s, AG + 4*s))
    A(f"""
    s_setprio 0
    v_readfirstlane_b32 s23, v{v.JK}
    s_mov_b32 s22, {NEG_LOG2E:#x}
    s_cmp_eq_u32 s23, 0
    s_cbranch_scc1 K2_REDO
    s_cmp_lg_u32 s{sLate}, 0
    s_nop 5
    s_cbranch_scc1 K2_ACT2
    """)
    def act(pk):
        for r in range(0, 16, 2):
            if pk: A(f"v_pk_mul_f32 {P(v.E+r)}, {P(F+r)}, s[22:23] op_sel_hi:[1,0]")
            else:
                A(f"v_mul_f32 v{v.E+r}, s22, v{F+r}"); A(f"v_mul_f32 v{v.E+r+1}, s22, v{F+r+1}")
        for r in range(16):
            A(f"v_exp_f32 v{v.E+r}, v{v.E+r}")
        for r in range(0, 16, 2):
            if pk: A(f"v_pk_add_f32 {P(v.E+r)}, {P(v.E+r)}, {P(v.ONE)}")
            else:
                A(f"v_add_f32 v{v.E+r}, 1.0, v{v.E+r}"); A(f"v_add_f32 v{v.E+r+1}, 1.0, v{v.E+r+1}")
        for r in range(16):
            A(f"v_rcp_f32 v{v.E+r}, v{v.E+r}")
        for r in range(0, 16, 2):
            if pk: A(f"v_pk_mul_f32 {P(F+r)}, {P(F+r)}, {P(v.E+r)}")
            else:
                A(f"v_mul_f32 v{F+r}, v{F+r}, v{v.E+r}"); A(f"v_mul_f32 v{F+r+1}, v{F+r+1}, v{v.E+r+1}")
    act(not opt.get("ep2", 1))
    A("s_branch K2_ACT3")
    A("K2_ACT2:")
    act(True)
    A("K2_ACT3:")
    O = v.T1
    for r in range(8):
        A(f"v_cvt_pk_bf16_f32 v{O+r}, v{F+2*r}, v{F+2*r+1}")
    A(f"""
    s_nop 1
    v_permlane32_swap_b32 v{O}, v{O+2}
    v_permlane32_swap_b32 v{O+1}, v{O+3}
    v_permlane32_swap_b32 v{O+4}, v{O+6}
    v_permlane32_swap_b32 v{O+5}, v{O+7}
    buffer_store_dwordx4 {vr(O,4)}, v{v.OA}, {sr(sOUT,4)}, 0 offen {opt.get("ost", "").replace("_", " ")}
    buffer_store_dwordx4 {vr(O+4,4)}, v{v.OA}, {sr(sOUT,4)}, 0 offen offset:32 {opt.get("ost", "").replace("_", " ")}
    """)
    if ST:
        A("s_waitcnt vmcnt(0)")
        A("s_memtime s[98:99]")
        A("s_memrealtime s[100:101]")
        A(f"""
        s_lshl_b32 s22, s2, 3
        s_add_u32 s22, s22, s3
        s_lshl_b32 s22, s22, 6
        s_add_u32 s22, s22, 0xA00000
        v_mov_b32 v1, 0
        s_waitcnt lgkmcnt(0)
        """)
        for i, r in enumerate([90, 94, 4, 6, 8, 10, 12, 14, 16, 18, 96, 98, 92, 100, sTg] if not PTS else [90, 94, 4, 44, 46, 48, 50, 96, 6, 12, 14, 98, 92, 100, sTg]):
            A(f"v_mov_b32 v2, s{r}")
            A(f"buffer_store_dword v2, v1, {sr(sWS,4)}, s22 offen offset:{4*i}")
    A("K_END:")
    A("s_endpgm")
    for o in ool: A(o)
    del ool[:]
    A(f"""
    K_SPECIAL:
    s_memrealtime s[88:89]
    s_waitcnt lgkmcnt(0)
    """)
    wsadj()
    srd(A, sDB, PDBG, 256)
    srd(A, sWS, PWS, WS_END)
    A(f"""
    s_cmp_lg_u32 s2, 0
    s_cbranch_scc1 K_HELPER
    s_cmp_lg_u32 s3, 0
    s_cbranch_scc1 K_END
    s_or_b32 s{sTag}, s88, 1
    v_mov_b32 v1, s{sTag}
    s_mov_b64 exec, 1
    buffer_store_dword v1, off, {sr(sDB,4)}, 0 sc1
    s_mov_b64 exec, -1
    v_lshlrev_b32 v2, 4, v0
    v_cmp_gt_u32 vcc, {NCHUNK + 2 - 64}, v0
    v_add_u32 v4, 1024, v2
    s_mov_b32 s22, {WS_FLAG + 0x2000}
    v_cndmask_b32 v4, v2, v4, vcc
    v_lshlrev_b32 v3, 7, v0
    s_mov_b32 s23, {WS_FLAG + 0x4000}
    """)
    if MC:
        A(f"""
        v_cmp_gt_u32 vcc, {NCHUNK - 64}, v0
        v_add_u32 v5, 1024, v2
        s_mov_b32 s76, {WS_FLAG}
        v_cndmask_b32 v5, v2, v5, vcc
        s_mov_b32 s77, {WS_FLAG + 0x6000}
        K_MPOLL0:
        buffer_load_dword v8, v2, {sr(sWS,4)}, s76 offen sc1
        buffer_load_dword v9, v5, {sr(sWS,4)}, s76 offen sc1
        s_waitcnt vmcnt(0)
        v_xor_b32 v8, v1, v8
        v_xor_b32 v9, v1, v9
        v_or_b32 v8, v8, v9
        v_cmp_ne_u32 vcc, 0, v8
        s_cbranch_vccnz K_MPOLL0
        buffer_store_dword v1, v3, {sr(sWS,4)}, s77 offen sc1
        {"s_memrealtime s[92:93]" if ST else ""}
        """)
    A(f"""
    K_MPOLL:
    buffer_load_dword v8, v2, {sr(sWS,4)}, s22 offen sc1
    buffer_load_dword v9, v4, {sr(sWS,4)}, s22 offen sc1
    s_waitcnt vmcnt(0)
    v_xor_b32 v8, v1, v8
    v_xor_b32 v9, v1, v9
    v_or_b32 v8, v8, v9
    v_cmp_ne_u32 vcc, 0, v8
    s_cbranch_vccnz K_MPOLL
    buffer_store_dword v1, v3, {sr(sWS,4)}, s23 offen sc1
    {"s_memrealtime s[90:91]" if ST else ""}
    {"s_waitcnt lgkmcnt(0)" if ST else ""}
    {"v_mov_b32 v2, s90" if ST else ""}
    {f"buffer_store_dword v2, off, {sr(sDB,4)}, 0 offset:8" if ST else ""}
    {"v_mov_b32 v2, s92" if ST else ""}
    {f"buffer_store_dword v2, off, {sr(sDB,4)}, 0 offset:12" if ST else ""}
    s_endpgm
    K_HELPER:
    s_sub_u32 s87, s2, 1
    s_lshl_b32 s82, s87, 15
    s_lshl_b32 s77, s3, 12
    """)
    srd(A, sWm, PWU, 32768, add="s82")
    wdma(0, 0)
    A(f"""
    s_waitcnt vmcnt(4)
    s_lshl_b32 s22, s{sC}, 6
    v_xor_b32 v{TRA}, s22, v{TRA}
    v_lshrrev_b32 v{H}, 5, v{L}
    s_sub_u32 s22, 11, s87
    v_lshlrev_b32 v{H}, s22, v{H}
    v_add_u32 v{TRA}, v{TRA}, v{H}
    s_lshl_b32 s22, s{sG}, 14
    v_add_u32 v{TRA}, s22, v{TRA}
    s_lshl_b32 s22, 1024, s87
    v_add_u32 v{H}, s22, v{TRA}
    s_lshl_b32 s22, s{sC}, 13
    s_add_u32 s82, s82, s22
    s_lshl_b32 s22, s{sG}, 12
    s_add_u32 s82, s82, s22
    s_add_u32 s82, s82, {WS_U}
    s_waitcnt vmcnt(0)
    s_barrier
    """)
    for s_ in range(4):
        A(f"ds_read_b64_tr_b16 {vr(v.T+4*s_,2)}, v{TRA} offset:{s_*4096}")
        A(f"ds_read_b64_tr_b16 {vr(v.T+4*s_+2,2)}, v{H} offset:{s_*4096}")
    A("s_waitcnt lgkmcnt(0)")
    for s_ in range(4):
        A(f"buffer_store_dwordx4 {vr(v.T+4*s_,4)}, v{v.t3}, {sr(sWS,4)}, s82 offen offset:{s_*1024} sc1")
    A(f"""
    s_waitcnt vmcnt(0)
    s_barrier
    s_cmp_lg_u32 s3, 0
    s_cbranch_scc1 K_END
    K_HTAG:
    buffer_load_dword v1, off, {sr(sDB,4)}, 0 sc1
    s_waitcnt vmcnt(0)
    v_readfirstlane_b32 s22, v1
    s_cmp_eq_u32 s22, 0
    s_cbranch_scc1 K_HTAG
    s_lshl_b32 s22, s87, 4
    s_add_u32 s22, s22, {WS_FLAG + 0x2000 + NCHUNK * 16}
    s_mov_b64 exec, 1
    buffer_store_dword v1, off, {sr(sWS,4)}, s22 sc1
    s_endpgm
    """)
    A("K2_SAFEP:")
    chain(A, 3, "safe", None, ool, pre=True, mid=late_issue)
    A("K2_SAFE:")
    for k in range(4):
        stretch(A, k, "safe", ool)
        chain(A, k, "safe", "K2_SEXIT", ool)
    A("s_branch K2_SAFE")
    A(f"""
    K2_SEXIT:
    s_setprio 0
    ds_read_b128 {vr(v.ohF,4)}, v{v.LA}
    s_branch K2_X2
    """)
    def restore():
        A(f"""
        s_lshr_b32 s23, s{sTg}, 2
        s_mul_i32 s22, s23, 6144
        s_lshl_b32 s23, s23, 10
        v_subrev_u32 v{v.E_}, s22, v{v.E_}
        v_subrev_u32 v{v.R1}, s23, v{v.R1}
        v_subrev_u32 v{v.R2}, s23, v{v.R2}
        v_subrev_u32 v{v.Re}, s23, v{v.Re}
        """)
    A("K2_REDO:")
    restore()
    A(f"s_mov_b32 s{sMode}, 2")
    A("s_nop 7")
    for r in range(0, 16, 2):
        A(f"v_mov_b64 {P(v.ACC+r)}, 0")
    A("s_waitcnt vmcnt(0) lgkmcnt(0)")
    A("s_barrier")
    lds_init()
    round_regs()
    A("s_branch K2_CELLS")
    A(f"""
    K2_OVF:
    s_cmp_eq_u32 s{sMode}, 0
    s_cbranch_scc0 K2_OV2
    s_cmp_lg_u32 s3, 0
    s_cbranch_scc1 K2_OV2
    K2_OV1:
    buffer_load_dword v{v.JK2}, off, {sr(sWS,4)}, s{sRel} sc1
    s_waitcnt vmcnt(0)
    v_cmp_ne_u32 vcc, s{sTag}, v{v.JK2}
    s_cbranch_vccnz K2_OV1
    K2_OV2:
    s_mov_b32 s{sMode}, 1
    s_mov_b32 s{sRound}, 0
    s_branch K2_ROUND
    K2_NEXTR:
    s_add_u32 s{sRound}, s{sRound}, 1
    s_cmp_ge_u32 s{sRound}, {E // 512}
    s_cbranch_scc1 K2_FIN
    """)
    restore()
    A(f"""
    K2_ROUND:
    s_load_dwordx4 s[76:79], s[0:1], 16
    s_waitcnt vmcnt(0) lgkmcnt(0)
    s_barrier
    """)
    srd(A, sS, 76, E * 4)
    srd(A, sD, 78, E * 4)
    A(f"""
    s_lshl_b32 s22, s{sRound}, 9
    v_add_u32 v{v.EB}, s22, v0
    v_lshlrev_b32 v{v.t0}, 2, v{v.EB}
    buffer_load_dword v{v.REC}, v{v.t0}, {sr(sD,4)}, 0 offen
    buffer_load_dword v{v.REC+1}, v{v.t0}, {sr(sS,4)}, 0 offen
    """)
    lds_init()
    round_regs()
    A(f"""
    s_mul_i32 s22, s2, 40
    s_waitcnt vmcnt(0)
    v_subrev_u32 v{v.REC}, s22, v{v.REC}
    v_cmp_gt_u32 vcc, 40, v{v.REC}
    v_lshl_or_b32 v{v.t0}, v{v.REC}, 14, v{v.REC+1}
    v_mov_b32 v{v.REC+1}, -1
    v_cndmask_b32 v{v.REC}, -1, v{v.t0}, vcc
    v_mov_b64 {P(v.REC+2)}, -1
    s_barrier
    s_branch K2_COUNT
    """)
    for o in ool: A(o)
    A("K_CODE_END:")
    return A.text()

HEADER = """; MPNN edge-MLP layer, fused single kernel (generated by gen/fz9.py).
"""
def build(opt):
    out = HEADER + f"; @launch grid=({NWG},1,1) block=(512,1,1) lds={LDS_TOTAL}\n"
    out += '.amdgcn_target "amdgcn-amd-amdhsa--gfx950"\n.text\n'
    out += f".globl {KNAME}\n.p2align 8\n.type {KNAME},@function\n" + gen(opt)
    acc = (NV + 3) // 4 * 4
    out += f""".section .rodata,"a"
.p2align 8
K_TABLE:
{tables()}.p2align 6
.amdhsa_kernel {KNAME}
  .amdhsa_next_free_vgpr {NV}
  .amdhsa_next_free_sgpr 102
  .amdhsa_accum_offset {acc}
  .amdhsa_group_segment_fixed_size 0
  .amdhsa_kernarg_size 72
  .amdhsa_user_sgpr_count 2
  .amdhsa_user_sgpr_kernarg_segment_ptr 1
  .amdhsa_system_sgpr_workgroup_id_x 1
.end_amdhsa_kernel
"""
    return out

if __name__ == "__main__":
    opt = {}
    for a in sys.argv[2:]:
        k_, v_ = a.split("=")
        opt[k_] = int(v_) if v_.lstrip("-").isdigit() else v_
    open(sys.argv[1], "w").write(build(opt))
```

```python
import sys
import gen, fz9 as fz
from gen import *
from diag import reduce_code
def diag(expr):
    A = Asm()
    A("diag_kernel:")
    A("s_cmp_ge_u32 s2, 1")
    A("s_cbranch_scc1 D_END")
    A("s_memrealtime s[50:51]")
    load_ptrs(A)
    A("s_waitcnt lgkmcnt(0)")
    srd(A, 24, PWS, 0x1000000)
    kind = expr[0]
    K2 = 0xA00000
    if kind == "deadline":
        reduce_code(A, K2, 250, 12, "min", 40)
        A(f"s_add_u32 s42, s40, {expr[1]}")
    elif kind == "span":
        reduce_code(A, K2, 250, 13, "max", 40)
        reduce_code(A, K2, 250, 12, "min", 41)
        A("s_sub_u32 s42, s40, s41")
        A(f"s_mul_i32 s42, s42, 10")
        A("s_add_u32 s42, s42, s50")
    elif kind == "cyc":
        reduce_code(A, K2, 250, expr[1], "add", 40)
        A(f"s_mul_hi_u32 s42, s40, {int(2**32 / 250 / 4)}")
        A("s_add_u32 s42, s42, s50")
    elif kind == "cy2":
        reduce_code(A, K2 + 512 * expr[2], 125, expr[1], expr[3], 40, sh=10)
        if expr[3] == "add": A(f"s_mul_hi_u32 s42, s40, {int(2**32 / 125 / 4)}")
        else: A("s_lshr_b32 s42, s40, 2")
        A("s_add_u32 s42, s42, s50")
    elif kind == "zero":
        A("s_mov_b32 s42, s50")
    A("D_SPIN:")
    A("s_memrealtime s[52:53]")
    A("s_waitcnt lgkmcnt(0)")
    A("s_sub_u32 s54, s52, s42")
    A("s_cmp_lt_i32 s54, 0")
    A("s_cbranch_scc1 D_SPIN")
    A("D_END:")
    A("s_endpgm")
    return A.text()
def make(path, expr, opt):
    s = fz.build(opt)
    l = [l for l in s.split("\n") if "@launch" in l][0]
    s = s.replace(l, l.replace("@launch ", f"@launch kernel={fz.KNAME} ") + "\n; @launch kernel=diag_kernel grid=(1,1,1) block=(64,1,1) lds=0")
    s = s.replace('.section .rodata,"a"\n', ".globl diag_kernel\n.p2align 8\n.type diag_kernel,@function\n" + diag(expr) + '.section .rodata,"a"\n' + kd("diag_kernel", 16))
    open(path, "w").write(s)
if __name__ == "__main__":
    opt = {"stamp": 1}
    ex = sys.argv[1].split(",")
    for a in sys.argv[2:]:
        k_, v_ = a.split("=")
        opt[k_] = int(v_) if v_.lstrip("-").isdigit() else v_
    for i, e in enumerate(ex):
        if e == "F": x = ("deadline", 10000)
        elif e == "S": x = ("span",)
        elif e == "Z": x = ("zero",)
        elif e[0] in "eoEO":
            a, b = e[1:].split("-"); x = ("cy2", (int(a), int(b)), 0 if e[0] in "eE" else 1, "add" if e[0] in "eo" else "max")
        else:
            a, b = e.split("-"); x = ("cyc", (int(a), int(b)))
        make(f"dg{i}.s", x, opt)
```

```python
import sys, struct
from gen import Asm, vr, sr, srd, f2u, NEG_LOG2E, NEG_LN2, PX, PE, PSRC, PDST, PWM, PWU, POUT, PDBG, PWS, load_ptrs

KNAME = "standalone__mpnn_edge_mlp__graph_kernel"
N = 10000; E = 320000
NBIN = 250; NCHUNK = 125; CH = 2560
WS_CELL = 0x280000
WS_FLAG = 0x700000
WS_U = 0x708000
WS_END = WS_U + 0x10000
NWG = NBIN + 3
BIG = 0x7fffffff

CNT = 0x100; QN = 0x200; FLAG = 0x3F0; TRIP = 0x3F4; REC = 0x400
TG = 26; GSL = TG * 32
REC_BYTES = (2 * GSL + 160) * 8
EA = REC + REC_BYTES
GEA = (TG // 2) * 3072
RING = EA + 2 * GEA
JUNK = RING + 65536
LDS_TOTAL = JUNK + 1024
FLG = CNT + 48 * 4
L_X = RING; L_W2 = RING + 0x6000; L_W3 = L_W2 + 32768; L_BN = 0x8000
assert RING % 256 == 0 and LDS_TOTAL <= 163840

class R: pass
v = R()
_n = 1
def alloc(name, n, align=1):
    global _n
    _n = (_n + align - 1) // align * align
    setattr(v, name, _n)
    _n += n
for nm in ("t0", "t1", "t2", "t3", "lane", "FW", "FV", "PROG", "JK", "JK2", "JK3", "OHA", "P1", "FR", "LA"):
    alloc(nm, 1)
TABN = ("E_", "R1", "R2", "Re", "P0", "EB", "QC", "OHB", "S0a", "FRo", "IXo", "IEo", "S1a", "TRA", "OAl", "Z_")
alloc("TAB", 0, 4)
for nm in TABN[:8]:
    alloc(nm, 1)
for nm in ("IX0", "IX1", "IE", "ONE", "S"):
    alloc(nm, 2, 2)
alloc("OA", 1)
for nm in ("W3F", "QF", "QS", "SEL0", "SEL1", "eF", "ohF", "pF0", "pF1", "aggF", "MSG", "NS", "DS", "RS"):
    alloc(nm, 4, 4)
for nm in ("T", "T1", "E", "ACC"):
    alloc(nm, 16, 4)
alloc("U1", 32, 4); alloc("U2", 32, 4); alloc("XF", 32, 4)
NV = _n
assert NV <= 256
for i_, nm in enumerate(TABN[8:]): setattr(v, nm, v.SEL0 + i_)
v.WA = v.ohF
assert v.RS == v.ohF + 28 and v.SEL1 == v.SEL0 + 4 and v.E == v.T1 + 16
v.REC = v.T; v.RANK = v.T + 8; v.AD = v.E; v.PK = v.E + 8
v.W0 = v.T1
v.TPa = v.T1 + 10; v.TPb = v.T1 + 12; v.IEb = v.T1 + 14; v.OH0 = v.pF1

sWS, sP, sE, sX, sOUT, sD, sS = 24, 28, 32, 36, 40, 44, 48
sG, sC, sTg, sTile, sTsw, sTag, sRing, sEdst, sMode, sRound, sRole, sElim = 52, 53, 54, 55, 56, 57, 58, 59, 60, 61, 62, 63
sM = 64
sWm = 64; sDB = 68
sTB = 80
sUT = 82; sLate = 83; sK3F = 84; sT0, sT1 = 85, 86; sRel = 87; sUoff = 88; sPair = 89
sN40 = 36; sG1 = 38; sSl = 101; sE0 = 100

OPT = {}
def P(r): return f"v[{r}:{r+1}]"
def mfma(d, a, b, c=None):
    return f"v_mfma_f32_32x32x16_bf16 {vr(d,16)}, {vr(a,4)}, {vr(b,4)}, {vr(d,16) if c is None else c}"
def pi8v(m):
    return ((m & 5) << 5) | ((m & 18) << 2) | ((m & 8) << 1)

def tables():
    rows = []
    for l in range(64):
        m, h = l & 31, l >> 5
        a16 = 16 + ((l & 8) << 3) + ((l & 3) << 4)
        n_ = l - 20 if l >= 20 else l
        a16n = 16 + ((n_ & 8) << 3) + ((n_ & 3) << 4)
        ohb = (a16n << (16 + 8 * ((n_ >> 2) & 1))) if l < 40 else 0
        sel = a16 if ((l >> 2) & 1) == h else 0
        d = dict(
            E_=m * 32 + (((h ^ (m >> 3)) & 1) << 4) + EA - 3072,
            R1=pi8v(l >> 2) + REC, R2=pi8v(m) + h + 2 + REC, Re=pi8v(l >> 1) + 4 + REC,
            P0=m * 64 + ((((m >> 2) ^ (2 * h)) & 3) << 4) + RING,
            EB=(l >> 3) * CH,
            QC=(l >> 4) * 3072 + ((l & 4) << 2) + (l & 8) + ((l & 3) << 1) + EA + 2048,
            OHB=ohb, FRo=(l & 3) * 4 + FLG,
            IXo=(((l >> 4) ^ l) & 3) << 4, IEo=(((l >> 4) ^ l) & 1) << 4,
            S0a=sel if m < 16 else 0, S1a=sel if m >= 16 else 0,
            TRA=(l & 3) * 8 + ((l >> 2) & 3) * 256 + (((l >> 2) & 3) << 6) + ((l >> 4) & 1) * 32,
            OAl=(m * 256 + h * 16) if m < 20 else 0x40000000, Z_=0)
        rows.append([d[n] for n in TABN])
    out = []
    for b in range(4):
        for l in range(64):
            out.append(".long " + ", ".join(f"{x:#x}" for x in rows[l][4*b:4*b+4]))
    img = [0] * 256
    for e_ in range(8):
        img[4 * (e_ + 1) + (e_ >> 1)] = 0x3f80 << (16 * (e_ & 1))
    for i in range(128, 256): img[i] = 0xffffffff
    for i in range(0, 256, 4):
        out.append(".long " + ", ".join(f"{x:#x}" for x in img[i:i+4]))
    for i in range(64):
        out.append(".long 0xffff, 0xffffffff, 0xffff, 0xffffffff")
    return "\n".join(out) + "\n"

def lst(A, k, variant, r):
    if OPT.get("ls") and variant == "fast" and k == OPT["ls"] - 1: A(f"s_memtime s[{r}:{r+1}]")

def u_load(A, i):
    off = (i >> 3) * 32768 + (i & 7) * 1024
    A(f"s_add_u32 s22, s{sUoff}, {off & ~4095}")
    A(f"buffer_load_dwordx4 {vr(v.U1+4*i,4)}, v{v.t3}, {sr(sWS,4)}, s22 offen offset:{off & 4095}")

def chain(A, k, variant, exit_label, ool, pre=False, mid=None):
    kk = k if k < 3 else -1
    safe = variant == "safe"
    EK = OPT.get("ek", 3)
    if not pre:
        A("s_setprio 2")
        A(f"s_add_u32 s{sTile}, s{sTile}, 1")
        A(f"s_cmp_ge_u32 s{sTile}, s{sTg}")
        A(f"s_cbranch_scc1 {exit_label}")
        lsw = A.label("sw"); lswb = A.label("swb")
        A(f"s_cmp_eq_u32 s{sTile}, s{sTsw}")
        A(f"s_cbranch_scc1 {lsw}")
        A(f"{lswb}:")
        ool.append(f"{lsw}:\nv_mov_b32 v{v.QF}, v{v.QS+2}\nv_mov_b32 v{v.QF+1}, v{v.QS+3}\ns_branch {lswb}")
        lst(A, k, variant, 10)
    A("s_waitcnt lgkmcnt(0)")
    if k % 2 == 0:
        A(mfma(v.ACC, v.MSG, v.aggF))
    n = 4 + (1 if ((k - 1) & 3) == EK or ((k - 2) & 3) == EK else 0)
    if EK == 3 and k == 1: n = 2
    if pre: n = 4 if EK == 3 else 5
    k2_ = kk + 2
    eread = f"ds_read_b128 {vr(v.eF,4)}, v{v.E_} offset:{3072 + (k2_ >> 1) * 3072 + (k2_ & 1) * 1024}"
    if k == 2: A(f"ds_read_b32 v{v.FV}, v{v.FR}")
    A(mfma(v.T, v.eF, v.W3F, "0"))
    if k != 2: A(eread)
    A(mfma(v.T, v.ohF, v.QF))
    A(f"ds_read_b128 {vr(v.ohF,4)}, v{v.OHA}")
    A(f"ds_read_u8 v{v.OHA}, v{v.R2} offset:{(kk + 3) * 256}")
    A(mfma(v.T, v.pF0, v.SEL0))
    if k == 2:
        A("s_waitcnt lgkmcnt(2)")
        A(f"v_cmp_gt_u32 vcc, v{v.PROG}, v{v.FV}")
    A(mfma(v.T, v.pF1, v.SEL1))
    A(f"s_setprio 0")
    lst(A, k, variant, 14)
    n_after = 2
    if k == 2:
        lw = A.label("fw"); lb = A.label("fb")
        A(f"s_cbranch_vccnz {lw}")
        A(f"{lb}:")
        A(eread)
        ool.append(f"{lw}:\nds_read_b32 v{v.FV}, v{v.FR}\ns_waitcnt lgkmcnt(0)\nv_cmp_gt_u32 vcc, v{v.PROG}, v{v.FV}\ns_cbranch_vccnz {lw}\ns_branch {lb}")
        n_after += 2
    if mid: mid()
    A(f"s_waitcnt vmcnt({n})" + (" lgkmcnt(0)" if pre else ""))
    if k == 1:
        A("s_mov_b64 exec, 1")
        A(f"ds_write_b32 v{v.FW}, v{v.PROG}")
        A("s_mov_b64 exec, -1")
        n_after += 3
    if k == EK:
        A(f"s_cmp_lt_u32 s{sEdst}, s{sElim}")
        A(f"s_cselect_b32 m0, s{sEdst}, {JUNK}")
        A(f"s_add_u32 s{sEdst}, s{sEdst}, 6144")
        A(f"buffer_load_dwordx4 {P(v.IE)}, {sr(sE,4)}, 0 idxen offen lds")
        n_after += 4
    A(f"s_add_u32 m0, s{sRing}, {((k + 1) & 3) * 2048}")
    A(f"ds_read_b128 {vr(v.pF0,4)}, v{v.P0} offset:{((k + 2) & 3) * 2048}")
    A(f"buffer_load_dwordx4 {P(v.IX0)}, {sr(sP,4)}, 0 idxen offen lds")
    A(f"s_add_u32 m0, s{sRing}, {((k + 1) & 3) * 2048 + 1024}")
    A(f"ds_read_b128 {vr(v.pF1,4)}, v{v.P1} offset:{((k + 2) & 3) * 2048}")
    A(f"buffer_load_dwordx4 {P(v.IX1)}, {sr(sP,4)}, 0 idxen offen lds")
    A(f"ds_read_u16 v{v.IX0}, v{v.R1} offset:{(kk + 6) * 256}")
    A(f"ds_read_u16 v{v.IX1}, v{v.R1} offset:{(kk + 6) * 256 + 64}")
    n_after += 8
    if k % 2 == 1 and not pre:
        A(f"ds_read_b128 {vr(v.aggF,4)}, v{v.E_} offset:{(1 if k == 1 else 0) * 3072 + 2048}")
        n_after += 1
    if k == EK - 1:
        A(f"ds_read_b32 v{v.IE}, v{v.Re} offset:{2 * 1024}")
        n_after += 1
    if not safe and not pre:
        lv = A.label("uv"); lvb = A.label("vb")
        A(f"s_sub_u32 s23, s{sTile}, s{sUT}")
        A(f"s_cmp_lt_u32 s23, 8")
        A(f"s_cbranch_scc1 {lv}")
        A(f"{lvb}:")
        n_after += 3
        B = Asm()
        B(f"{lv}:")
        B(f"s_cmp_ge_u32 s23, 4")
        B(f"s_cbranch_scc1 {lv}x")
        u_load(B, 2*k); u_load(B, 2*k+1)
        B(f"s_branch {lvb}")
        B(f"{lv}x:")
        u_load(B, 8+2*k); u_load(B, 8+2*k+1)
        B(f"s_branch {lvb}")
        ool.append(B.text())
    if n_after < 12:
        A(f"s_nop {12 - n_after - 1}")
    lst(A, k, variant, 12)

def stretch(A, k, variant, ool):
    T = v.T; E = v.E
    order = [0, 1, 8, 9, 2, 3, 10, 11, 4, 5, 12, 13, 6, 7, 14, 15]
    lst(A, k, variant, 94)
    for r in order:
        A(f"v_exp_f32 v{E+r}, v{T+r}")
    if variant != "safe":
        for r in range(4):
            A(f"v_rcp_f32 v{v.RS+r}, v{v.DS+r}")
    if k == 3:
        for s in (f"v_add_u32 v{v.E_}, 6144, v{v.E_}", f"v_add_u32 v{v.R1}, 1024, v{v.R1}",
                  f"v_add_u32 v{v.R2}, 1024, v{v.R2}", f"v_add_u32 v{v.Re}, 1024, v{v.Re}"): A(s)
    if k == 0:
        A(f"v_add_u32 v{v.PROG}, 1, v{v.PROG}")
    lst(A, k, variant, 4)
    A("s_setprio 1")
    mo = v.MSG + 2 * ((k + 1) % 2)
    if variant != "safe":
        A(f"v_pk_fma_f32 {P(v.S)}, {P(v.DS)}, {P(v.DS+2)}, {P(v.S)}")
        A(f"v_pk_mul_f32 {P(v.NS)}, {P(v.NS)}, {P(v.RS)}")
        A(f"v_pk_mul_f32 {P(v.NS+2)}, {P(v.NS+2)}, {P(v.RS+2)}")
    A(f"v_cvt_pk_bf16_f32 v{mo}, v{v.NS}, v{v.NS+1}")
    A(f"v_cvt_pk_bf16_f32 v{mo+1}, v{v.NS+2}, v{v.NS+3}")
    lst(A, k, variant, 6)
    if variant != "safe":
        ops = []
        for gi, g in enumerate((0, 8)):
            t, e = T + g, E + g
            o = [f"v_pk_add_f32 {P(e)}, {P(e)}, {P(v.ONE)}"]
            for u in (1, 2, 3):
                o.append(f"v_pk_fma_f32 {P(t)}, {P(t)}, {P(e+2*u)}, {P(t)}")
                o.append(f"v_pk_fma_f32 {P(t if u < 3 else v.NS+2*gi)}, {P(t+2*u)}, {P(e)}, {P(t)}")
                o.append(f"v_pk_fma_f32 {P(e if u < 3 else v.DS+2*gi)}, {P(e)}, {P(e+2*u)}, {P(e)}")
            ops.append(o)
        for a, b in zip(*ops):
            A(a); A(b)
    else:
        for r in range(0, 16, 2):
            A(f"v_pk_add_f32 {P(E+r)}, {P(E+r)}, {P(v.ONE)}")
        for r in range(16):
            A(f"v_rcp_f32 v{E+r}, v{E+r}")
        A("s_nop 0")
        for u in range(4):
            for gi, g in enumerate((0, 8)):
                if u == 0:
                    A(f"v_pk_mul_f32 {P(T+g)}, {P(T+g)}, {P(E+g)}")
                else:
                    A(f"v_pk_fma_f32 {P(T+g if u < 3 else v.NS+2*gi)}, {P(T+g+2*u)}, {P(E+g+2*u)}, {P(T+g)}")
    lst(A, k, variant, 8)

def gen(opt):
    OPT.clear(); OPT.update(opt)
    A = Asm()
    L = v.lane
    ST = opt.get("stamp", 0)
    PTS = opt.get("pts", "").split(",") if opt.get("pts") else []
    PSL = [44, 46, 48, 50, 96]
    def pt(name):
        if name in PTS:
            r = PSL[PTS.index(name)]
            A(f"s_memtime s[{r}:{r+1}]")
    def stamp(r, real=False):
        if PTS and r == 96: return
        if opt.get("ls") and r in (94, 4, 6, 8, 10, 12, 14): return
        if ST: A(f"s_mem{'real' if real else ''}time s[{r}:{r+1}]")
    ool = []
    STF = opt.get("stf", "sc1").replace("_", " ")
    WV = v.eF; XV = v.eF + 1; H = v.eF + 2; TRA = v.TRA
    A(f"{KNAME}:")
    stamp(90); stamp(92, True)
    A(f"s_cmp_ge_u32 s2, {NWG}")
    A("s_cbranch_scc1 K_END")
    load_ptrs(A)
    A(f"""
    v_lshrrev_b32 v{v.t0}, 6, v0
    v_and_b32 v{L}, 63, v0
    v_readfirstlane_b32 s3, v{v.t0}
    v_lshlrev_b32 v{v.t3}, 4, v{L}
    s_getpc_b64 {sr(sTB,2)}
    s_add_u32 s{sTB}, s{sTB}, K_TABLE@rel32@lo+4
    s_addc_u32 s{sTB+1}, s{sTB+1}, K_TABLE@rel32@hi+12
    global_load_dwordx4 {vr(v.SEL1,4)}, v{v.t3}, {sr(sTB,2)} offset:3072
    global_load_dwordx4 {vr(v.TAB,4)}, v{v.t3}, {sr(sTB,2)}
    global_load_dwordx4 {vr(v.TAB+4,4)}, v{v.t3}, {sr(sTB,2)} offset:1024
    global_load_dwordx4 {vr(v.SEL0,4)}, v{v.t3}, {sr(sTB,2)} offset:2048
    v_lshlrev_b32 v{v.t2}, 4, v0
    v_lshrrev_b32 v{WV}, 2, v{v.t3}
    v_lshrrev_b32 v{XV}, 4, v{v.t2}
    v_and_b32 v{WV}, 0xc0, v{WV}
    v_and_b32 v{XV}, 0xf0, v{XV}
    v_xor_b32 v{WV}, v{WV}, v{v.t3}
    v_xor_b32 v{XV}, v{XV}, v{v.t2}
    s_lshr_b32 s{sG}, s3, 2
    s_and_b32 s{sC}, s3, 3
    s_cmp_lt_u32 s2, 8
    s_cbranch_scc1 K_LOW
    K_LOWB:
    s_sub_u32 s23, s2, 3
    s_lshr_b32 s{sSl}, s23, 3
    s_cmp_ge_u32 s23, {NCHUNK}
    s_cselect_b32 s{sRole}, {1 - opt.get("r1f", 1)}, {opt.get("r1f", 1)}
    s_cselect_b32 s22, {NCHUNK}, 0
    s_sub_u32 s{sPair}, s23, s22
    s_lshl_b32 s2, s{sPair}, 1
    s_add_u32 s2, s2, s{sRole}
    s_mul_i32 s{sUT}, s{sPair}, {80*256}
    s_sub_u32 s{sX+2}, {N*256}, s{sUT}
    s_mov_b32 s{sX+3}, 0x00020000
    s_lshl_b32 s76, s3, 10
    s_add_u32 s77, s3, s{sSl}
    s_and_b32 s77, s77, {7 if opt.get("rot", 1) else 0}
    {"" if opt.get("rot", 1) else "s_mov_b32 s77, s3"}
    s_lshl_b32 s77, s77, 12
    s_cmp_eq_u32 s{sRole}, 0
    s_waitcnt lgkmcnt(0)
    """)
    def wsadj():
        if opt.get("wsoff"):
            A(f"s_add_u32 s{PWS}, s{PWS}, {opt['wsoff'] << 20}")
            A(f"s_addc_u32 s{PWS+1}, s{PWS+1}, 0")
    wsadj()
    if opt.get("wsoff"): A(f"s_cmp_eq_u32 s{sRole}, 0")
    A("s_cbranch_scc0 K_GEMM")
    ool.append(f"""K_LOW:
    s_cmp_lg_u32 s3, 7
    s_cbranch_scc1 K_LOW2
    s_getpc_b64 s[22:23]
    K_PC:
    s_sub_u32 s22, s22, K_PC-{KNAME}
    s_subb_u32 s23, s23, 0
    v_lshlrev_b32 v{v.JK}, 7, v{L}
    v_add_u32 v{v.JK2}, 0x2000, v{v.JK}
    v_min_u32 v{v.JK2}, K_CODE_END-{KNAME}-4, v{v.JK2}
    global_load_dword v{v.PROG}, v{v.JK}, s[22:23]
    global_load_dword v{v.FV}, v{v.JK2}, s[22:23]
    K_LOW2:
    s_cmp_lt_u32 s2, 3
    s_cbranch_scc1 K_SPECIAL
    s_branch K_LOWB""")
    def xdma(n):
        A(f"""
        s_add_u32 s{sX}, s{PX}, s{sUT}
        s_addc_u32 s{sX+1}, s{PX+1}, 0
        s_add_u32 m0, s76, {L_X}
        s_movk_i32 s23, 0x2000
        buffer_load_dwordx4 v{XV}, {sr(sX,4)}, 0 offen lds
        s_add_u32 m0, s76, {L_X + 8192}
        s_movk_i32 s22, 0x4000
        buffer_load_dwordx4 v{XV}, {sr(sX,4)}, s23 offen lds
        """)
        if n == 3:
            A(f"s_add_u32 m0, s76, {L_X + 16384}")
            A("s_nop 0")
            A(f"buffer_load_dwordx4 v{XV}, {sr(sX,4)}, s22 offen lds")
    def wdma(soff, lds):
        A(f"s_add_u32 m0, s77, {lds}")
        if soff: A(f"s_add_u32 s22, s77, {soff}")
        else: A("s_nop 0")
        for q in range(4):
            A(f"buffer_load_dwordx4 v{WV}, {sr(sWm,4)}, s{22 if soff else 77} offen offset:{q*1024} lds")
    def w23dma(w2=True):
        if w2: wdma(32768, L_W2)
        A(f"s_add_u32 m0, s76, {L_W3}")
        A(f"s_add_u32 s22, s76, 65536")
        A(f"buffer_load_dwordx4 v{WV}, {sr(sWm,4)}, s22 offen lds")
    def sconsts():
        srd(A, sP, PWS, 0 if opt.get('nop') else N, stride=256)
        srd(A, sE, PE, 0 if opt.get('noe') else E, stride=32)
        srd(A, sOUT, POUT, N * 256)
        srd(A, sDB, PDBG, 256)
        A(f"""
        s_mov_b32 s{sMode}, 0
        s_movk_i32 s{sK3F}, 0x3fff
        s_lshl_b32 s{sRing}, s3, 13
        s_lshr_b32 s22, s{sC}, 1
        s_mul_i32 s22, s22, 3072
        s_bfe_u32 s23, s{sC}, 0x10000
        s_lshl_b32 s23, s23, 10
        s_add_u32 s22, s22, s23
        s_mul_i32 s{sElim}, s{sG}, {GEA}
        s_add_u32 s{sE0}, s{sElim}, s22
        s_add_u32 s{sE0}, s{sE0}, {EA}
        s_and_b32 s{sRel}, s2, 63
        s_lshl_b32 s{sRel}, s{sRel}, 7
        s_add_u32 s{sRel}, s{sRel}, {WS_FLAG + 0x4000}
        """)
    def vconsts():
        A(f"""
        v_add_u32 v{v.P0}, s{sRing}, v{v.P0}
        v_add_u32 v{v.E_}, s{sElim}, v{v.E_}
        s_mul_i32 s22, s{sG}, {GSL*8}
        v_xor_b32 v{v.P1}, 16, v{v.P0}
        v_add_u32 v{v.R1}, s22, v{v.R1}
        v_add_u32 v{v.R2}, s22, v{v.R2}
        s_lshl_b32 s23, s{sC}, 8
        s_add_u32 s22, s22, s23
        v_add_u32 v{v.Re}, s22, v{v.Re}
        s_lshl_b32 s22, s{sC}, 6
        v_or_b32 v{v.IX0+1}, s22, v{v.IXo}
        v_or_b32 v{v.IX1+1}, s22, v{v.IXo}
        v_xor_b32 v{TRA}, s22, v{TRA}
        s_mul_i32 s23, s2, 40
        s_mul_i32 s78, s{sG}, 20
        s_add_u32 s23, s23, s78
        s_lshl_b32 s23, s23, 8
        s_add_u32 s23, s23, s22
        v_add_u32 v{v.OA}, s23, v{v.OAl}
        v_mov_b32 v{v.IE+1}, v{v.IEo}
        s_mul_i32 s22, s3, {8*CH}
        v_add_u32 v{v.EB}, s22, v{v.EB}
        s_mul_i32 s22, s3, {4*3072}
        v_add_u32 v{v.QC}, s22, v{v.QC}
        s_lshl_b32 s22, s3, 2
        v_add_u32 v{v.FW}, s22, v{v.FRo}
        s_lshl_b32 s22, s{sG}, 4
        v_add_u32 v{v.FR}, s22, v{v.FRo}
        v_lshrrev_b32 v{H}, 5, v{L}
        s_add_u32 s{sRing}, s{sRing}, {RING}
        s_add_u32 s{sElim}, s{sElim}, {EA + GEA}
        """)
    def lds_init():
        A(f"""
        s_mul_i32 s22, s3, 3072
        s_add_u32 m0, s22, {EA + 2048}
        s_brev_b32 s23, 2
        buffer_load_dwordx4 v{v.t3}, {sr(sWS,4)}, s23 offen lds
        s_add_u32 m0, s22, {EA + 2048 + 24576}
        s_cmp_lt_u32 s3, 2
        buffer_load_dwordx4 v{v.t3}, {sr(sWS,4)}, s23 offen lds
        s_cselect_b32 s78, 0, {JUNK - (EA + 2048 + 73728) - 7 * 3072}
        s_add_u32 m0, s22, {EA + 2048 + 49152}
        s_cselect_b32 s79, s22, {7 * 3072}
        buffer_load_dwordx4 v{v.t3}, {sr(sWS,4)}, s23 offen lds
        """.replace("s_cselect_b32 s78, 0, " + str(JUNK - (EA + 2048 + 73728) - 7 * 3072) + "\n", "").replace(
            f"        s_add_u32 m0, s22, {EA + 2048 + 49152}\n        s_cselect_b32 s79, s22, {7 * 3072}\n",
            f"        s_cselect_b32 s79, s22, {JUNK - (EA + 2048 + 73728)}\n        s_add_u32 m0, s22, {EA + 2048 + 49152}\n        s_lshl_b32 s22, s3, 10\n"))
        A(f"""
        s_add_u32 m0, s79, {EA + 2048 + 73728}
        s_add_u32 s78, s{sTB}, 4096
        buffer_load_dwordx4 v{v.t3}, {sr(sWS,4)}, s23 offen lds
        s_addc_u32 s79, s{sTB+1}, 0
        s_add_u32 m0, s22, {REC - 1024}
        s_cmp_eq_u32 s3, 7
        global_load_lds_dwordx4 v{v.t3}, s[78:79] offset:1024
        s_cbranch_scc1 {A.label('i7')}
        """)
        l7 = f"L_i7_{A.uid}"
        A(f"""
        s_add_u32 m0, s22, {REC + 8192 - 1024}
        s_nop 0
        global_load_lds_dwordx4 v{v.t3}, s[78:79] offset:1024
        {l7}b:
        """)
        ool.append(f"{l7}:\ns_mov_b32 m0, 0\ns_nop 0\nglobal_load_lds_dwordx4 v{v.t3}, s[78:79]\ns_branch {l7}b")
    def tagshare(x, va):
        A(f"""
        s_cmp_lg_u32 s3, 0
        s_cbranch_scc1 K_NS{x}
        {"s_waitcnt vmcnt(0)" if x == "B" else ""}
        K_TAGOK{x}:
        v_cmp_eq_u32 vcc, 0, v{v.FV}
        s_cbranch_vccnz K_TAG{x}
        ds_write_b32 v{va}, v{v.FV}
        K_NS{x}:
        """)
        ool.append(f"K_TAG{x}:\nbuffer_load_dword v{v.FV}, off, {sr(sDB,4)}, 0 sc1\ns_waitcnt vmcnt(0)\ns_branch K_TAGOK{x}")
    def xred(regs, xs):
        for r, x in zip(regs, xs): A(f"v_bitop3_b32 v{x}, v{r}, v{r+1}, v{r+2} bitop3:0x96")
        for r, x in zip(regs, xs): A(f"v_xor_b32 v{x}, v{x}, v{r+3}")
        for pat in ("quad_perm:[1,0,3,2]", "quad_perm:[2,3,0,1]", "row_half_mirror"):
            if len(xs) < 3: A(f"s_nop {2 - len(xs)}")
            for x in xs: A(f"v_xor_b32_dpp v{x}, v{x}, v{x} {pat} row_mask:0xf bank_mask:0xf")
    def tagload(lbl):
        A(f"""
        s_cmp_lg_u32 s3, 0
        s_cbranch_scc1 {lbl}
        buffer_load_dword v{v.FV}, off, {sr(sDB,4)}, 0 sc1
        {lbl}:
        """)
    def qaddr():
        XA = v.E; GA = v.E + 1; TN = v.E + 2
        A(f"""
        s_mul_i32 s22, s{sG}, 20
        s_mul_i32 s23, s{sRole}, 40
        s_add_u32 s22, s22, s23
        v_and_b32 v{XA}, 31, v{L}
        v_add_u32 v{XA}, s22, v{XA}
        v_xor_b32 v{GA}, v{XA}, v{H}
        v_and_b32 v{GA}, 15, v{GA}
        v_lshl_or_b32 v{XA}, v{XA}, 4, v{GA}
        s_mov_b32 s22, {L_X}
        v_lshl_add_u32 v{XA}, v{XA}, 4, s22
        v_lshl_add_u32 v{TN}, v{H}, 11, v{TRA}
        v_add_u32 v{TN}, {L_W2}, v{TN}
        """)
    def qreads():
        XA = v.E; GA = v.E + 1; TN = v.E + 2
        for s_ in range(8):
            A(f"ds_read_b64_tr_b16 {vr(v.WA+4*s_,2)}, v{TN} offset:{s_*4096}")
            A(f"ds_read_b64_tr_b16 {vr(v.WA+4*s_+2,2)}, v{TN} offset:{s_*4096+1024}")
            if s_: A(f"v_xor_b32 v{GA}, {s_*32}, v{XA}")
            A(f"ds_read_b128 {vr(v.XF+4*s_,4)}, v{GA if s_ else XA}")
        A(f"ds_read_b64_tr_b16 {vr(v.W3F,2)}, v{TN} offset:32768")
        A(f"ds_read_b64_tr_b16 {vr(v.W3F+2,2)}, v{TN} offset:33792")
    def qmfma():
        for s_ in range(8):
            A(f"s_waitcnt lgkmcnt({min(15, 3*(7-s_) + 2)})")
            A(mfma(v.E, v.XF + 4*s_, v.WA + 4*s_, "0" if s_ == 0 else None))
            A(f"v_mov_b64 {P(v.ACC+2*s_)}, 0")
        A(f"""
        s_mov_b32 s72, {NEG_LOG2E:#x}
        v_cmp_gt_u32 {sr(sN40,2)}, 40, v{L}
        v_cmp_le_u32 {sr(sG1,2)}, 20, v{L}
        v_mov_b32 v{v.ONE}, 1.0
        v_mov_b32 v{v.ONE+1}, 1.0
        s_waitcnt lgkmcnt(0)
        """)
        for r in range(4):
            A(f"""
            v_lshlrev_b32 v{v.S}, 16, v{v.W3F+r}
            v_and_b32 v{v.S+1}, 0xffff0000, v{v.W3F+r}
            v_mul_f32 v{v.S}, s72, v{v.S}
            v_mul_f32 v{v.S+1}, s72, v{v.S+1}
            v_cvt_pk_bf16_f32 v{v.W3F+r}, v{v.S}, v{v.S+1}
            """)
    def post(x):
        A(f"""
        s_cmp_lg_u32 s3, 0
        s_cbranch_scc1 K_NP{x}
        v_readfirstlane_b32 s{sTag}, v{v.FV}
        s_cmp_eq_u32 s{sTag}, 0
        s_cbranch_scc1 K_TAG{x}
        K_TAGOK{x}:
        s_mov_b64 exec, 1
        buffer_store_dword v{v.FV}, off, {sr(sWS,4)}, s{sUoff} sc1
        s_mov_b64 exec, -1
        K_NP{x}:
        """)
        ool.append(f"K_TAG{x}:\nbuffer_load_dword v{v.FV}, off, {sr(sDB,4)}, 0 sc1\ns_waitcnt vmcnt(0)\nv_readfirstlane_b32 s{sTag}, v{v.FV}\ns_cmp_eq_u32 s{sTag}, 0\ns_cbranch_scc1 K_TAG{x}\ns_branch K_TAGOK{x}")
    MC = opt.get("mc", 0)
    D, S, RK, AD = v.T, v.T + 8, v.T1, v.T1 + 8
    CW = v.E
    A(f"s_mul_i32 s22, s{sPair}, {CH*4}")
    srd(A, sD, PDST, CH * 4, add="s22")
    A(f"""
    v_lshlrev_b32 v{v.t1}, 2, v0
    s_movk_i32 s23, 0x2000
    buffer_load_dwordx4 {vr(D,4)}, v{v.t2}, {sr(sD,4)}, 0 offen
    buffer_load_dword v{D+4}, v{v.t1}, {sr(sD,4)}, s23 offen
    """)
    srd(A, sS, PSRC, CH * 4, add="s22")
    A(f"""
    buffer_load_dwordx4 {vr(S,4)}, v{v.t2}, {sr(sS,4)}, 0 offen
    buffer_load_dword v{S+4}, v{v.t1}, {sr(sS,4)}, s23 offen
    v_mov_b64 {P(CW)}, -1
    v_mov_b64 {P(CW+2)}, -1
    v_mov_b32 v{CW+4}, 0
    ds_write_b128 v{v.t2}, {vr(CW,4)}
    ds_write_b128 v{v.t2}, {vr(CW,4)} offset:8192
    ds_write_b128 v{v.t2}, {vr(CW,4)} offset:16384
    ds_write_b128 v{v.t2}, {vr(CW,4)} offset:24576
    ds_write_b32 v{v.t1}, v{CW+4} offset:32768
    """)
    srd(A, sWm, PWM, 272 * 256)
    EARLY0 = opt.get("e0", 0)
    P0M = opt.get("p0", 2)
    if P0M == 1:
        xdma(2); w23dma(False)
    nb0 = 3 if P0M == 1 else 0
    srd(A, sWS, PWS, WS_END if not ST else 0x1000000)
    sconsts()
    A(f"""
    v_lshlrev_b32 v{CW+6}, 22, v0
    v_add_u32 v{CW+7}, 0x800, v0
    v_lshlrev_b32 v{CW+7}, 20, v{CW+7}
    v_mov_b32 v{CW+5}, 16
    s_mov_b32 s72, -10
    s_mov_b32 s73, 0x100000
    s_mov_b32 s74, 0x200000
    s_mov_b32 s75, 0x300000
    s_lshl_b32 s78, s{sPair}, 15
    s_add_u32 s78, s78, {WS_CELL}
    v_mov_b32 v{CW+9}, {32768 + 1024}
    s_movk_i32 s79, {31*16}
    s_waitcnt lgkmcnt(0)
    s_barrier
    s_waitcnt vmcnt({2 + nb0})
    """)
    stamp(94)
    tagload("K_NT1")
    t = CW + 8
    for j in range(5):
        A(f"""
        v_mul_u32_u24 v{AD+j}, 0xcccd, v{D+j}
        v_lshrrev_b32 v{AD+j}, 19, v{AD+j}
        v_and_b32 v{AD+j}, -4, v{AD+j}
        ds_add_rtn_u32 v{RK+j}, v{AD+j}, v{CW+5} offset:32768
        """)
    if P0M == 1:
        wdma(32768, L_W2); nb0 += 4
    if P0M == 2:
        xdma(2); w23dma(); nb0 += 7
    for j in range(5):
        A(f"v_mad_i32_i24 v{D+j}, v{AD+j}, s72, v{D+j}")
    A(f"s_waitcnt vmcnt({nb0})")
    tagshare("A", CW + 9)
    for j in range(5):
        d = D + j
        A(f"v_lshl_or_b32 v{d}, v{d}, 14, v{S+j}")
        if j == 0: A(f"v_add_u32 v{d}, v{d}, v{CW+6}")
        elif j < 4: A(f"v_add3_u32 v{d}, v{d}, v{CW+6}, s{72+j}")
        else: A(f"v_add_u32 v{d}, v{d}, v{CW+7}")
    A("s_waitcnt lgkmcnt(0)")
    pt("rk")
    A(f"v_max3_u32 v{t}, v{RK}, v{RK+1}, v{RK+2}")
    A(f"v_max3_u32 v{t}, v{t}, v{RK+3}, v{RK+4}")
    A(f"v_cmp_le_u32 vcc, s79, v{t}")
    A("s_cbranch_vccnz K_BOVF")
    A("K_BOVB:")
    B = Asm()
    B("K_BOVF:")
    B(f"v_mov_b32 v{t}, -2")
    for j in range(5):
        B(f"v_cmp_le_u32 vcc, s79, v{RK+j}")
        B(f"v_min_u32 v{RK+j}, s79, v{RK+j}")
        B("s_nop 0")
        B(f"v_cndmask_b32 v{D+j}, v{D+j}, v{t}, vcc")
    B("s_branch K_BOVB")
    ool.append(B.text())
    for j in range(5):
        r = RK + j
        A(f"""
        v_lshrrev_b32 v{t}, 5, v{r}
        v_and_b32 v{r}, 0x70, v{r}
        v_and_or_b32 v{r}, v{t}, 12, v{r}
        v_lshl_add_u32 v{r}, v{AD+j}, 5, v{r}
        ds_write_b32 v{r}, v{D+j}
        """)
    A(f"""
    s_add_u32 s73, s78, 8192
    s_add_u32 s74, s78, 16384
    s_add_u32 s75, s78, 24576
    s_waitcnt lgkmcnt(0)
    s_barrier
    """)
    pt("cb")
    A(f"""
    ds_read_b32 v{v.FV}, v{CW+9}
    ds_read_b128 {vr(v.T,4)}, v{v.t2}
    ds_read_b128 {vr(v.T+4,4)}, v{v.t2} offset:8192
    ds_read_b128 {vr(v.T+8,4)}, v{v.t2} offset:16384
    ds_read_b128 {vr(v.T+12,4)}, v{v.t2} offset:24576
    s_waitcnt lgkmcnt(0)
    v_not_b32 v{v.T1+4}, v{v.FV}
    """)
    xred([v.T + 4*q for q in range(4)], [v.T1 + q for q in range(4)])
    A("s_mov_b32 exec_lo, 0x80808080")
    A("s_mov_b32 exec_hi, 0x80808080")
    for q in range(4):
        A(f"v_xor_b32 v{v.T+4*q+3}, v{v.T1+q}, v{v.T1+4}")
    A("s_mov_b64 exec, -1")
    for q in range(4):
        A(f"buffer_store_dwordx4 {vr(v.T+4*q,4)}, v{v.t2}, {sr(sWS,4)}, s{(78,73,74,75)[q]} offen {STF}")
    stamp(4)
    vconsts()
    A("s_waitcnt vmcnt(4)")
    A("s_branch K_COM0")
    A("K_GEMM:")
    pt("k0")
    if opt.get("wfirst"):
        srd(A, sWm, PWM, 272 * 256)
        wdma(0, 0)
        xdma(3)
    else:
        xdma(3)
        srd(A, sWm, PWM, 272 * 256)
        wdma(0, 0)
    G1M = opt.get("g1", 2)
    pt("g0")
    if G1M == 0: w23dma()
    pt("g1")
    srd(A, sWS, PWS, WS_END if not ST else 0x1000000)
    sconsts()
    XA = v.E; PA = v.E + 1; GA = v.E + 2; TN = v.E + 3
    A(f"""
    s_lshl_b32 s{sPair}, s{sPair}, 4
    s_add_u32 s{sPair}, s{sPair}, {WS_FLAG + 0x2000}
    s_mov_b32 s72, {NEG_LOG2E:#x}
    s_add_u32 s73, s{sUT}, 0x2000
    s_add_u32 s74, s{sUT}, 0x4000
    s_cmp_ge_u32 s3, 4
    s_cselect_b32 s74, 0x40000000, s74
    v_add_u32 v{v.JK3}, {L_BN}, v{v.t2}
    v_and_b32 v{XA}, 31, v{L}
    s_lshl_b32 s22, s{sG}, 5
    v_add_u32 v{XA}, s22, v{XA}
    s_waitcnt vmcnt({12 if G1M == 0 else 7})
    """)
    pt("g2")
    vconsts()
    A(f"""
    v_lshl_add_u32 v{TN}, v{H}, 11, v{TRA}
    s_lshl_b32 s22, s{sC}, 2
    v_lshl_add_u32 v{PA}, v{H}, 1, s22
    v_xor_b32 v{PA}, v{PA}, v{XA}
    v_and_b32 v{PA}, 15, v{PA}
    v_lshl_or_b32 v{PA}, v{XA}, 4, v{PA}
    s_mov_b32 s22, {L_BN}
    v_lshl_add_u32 v{PA}, v{PA}, 4, s22
    v_xor_b32 v{GA}, v{H}, v{XA}
    v_and_b32 v{GA}, 15, v{GA}
    v_lshl_or_b32 v{XA}, v{XA}, 4, v{GA}
    s_mov_b32 s22, {L_X}
    v_lshl_add_u32 v{XA}, v{XA}, 4, s22
    """)
    for s_ in range(1, 8):
        A(f"v_xor_b32 v{v.E+8+s_}, {s_*32}, v{XA}")
    pt("g3")
    if "gx" in PTS:
        A("s_waitcnt vmcnt(4)")
        pt("gx")
        A("s_waitcnt vmcnt(0)")
        pt("gw")
    if G1M == 1: w23dma()
    A(f"s_waitcnt vmcnt({5 if G1M < 2 else 0})")
    A("s_barrier")
    stamp(94)
    for s_ in range(8):
        A(f"ds_read_b64_tr_b16 {vr(v.WA+4*s_,2)}, v{TN} offset:{s_*4096}")
        A(f"ds_read_b64_tr_b16 {vr(v.WA+4*s_+2,2)}, v{TN} offset:{s_*4096+1024}")
        A(f"ds_read_b128 {vr(v.XF+4*s_,4)}, v{v.E+8+s_ if s_ else XA}")
    if G1M == 2: w23dma()
    A(f"s_cmp_lg_u32 s{sG}, 0")
    A("s_cbranch_scc1 K_G1")
    for s_ in range(8):
        A(f"ds_read_b128 {vr(v.U2+4*s_,4)}, v{v.E+8+s_ if s_ else XA} offset:16384")
    tagload("K_NT2")
    for s_ in range(8):
        A(f"s_waitcnt lgkmcnt({min(15, 3*(7-s_) + 8)})")
        A(mfma(v.T, v.WA + 4*s_, v.XF + 4*s_, "0" if s_ == 0 else None))
    for s_ in range(8):
        A(f"s_waitcnt lgkmcnt({7-s_})")
        A(mfma(v.T1, v.WA + 4*s_, v.U2 + 4*s_, "0" if s_ == 0 else None))
    def pout(acc, off, pk):
        for r in range(0, 16, 2):
            if pk:
                A(f"v_pk_mul_f32 {P(acc+r)}, {P(acc+r)}, s[72:73] op_sel_hi:[1,0]")
            else:
                A(f"v_mul_f32 v{acc+r}, s72, v{acc+r}")
                A(f"v_mul_f32 v{acc+r+1}, s72, v{acc+r+1}")
        for r in range(0, 16, 2):
            A(f"v_cvt_pk_bf16_f32 v{acc+r//2}, v{acc+r}, v{acc+r+1}")
        A(f"ds_write_b128 v{PA}, {vr(acc,4)} offset:{off}")
        A(f"ds_write_b128 v{GA}, {vr(acc+4,4)} offset:{off}")
    A(f"v_xor_b32 v{GA}, 16, v{PA}")
    pout(v.T, 0, False)
    pout(v.T1, 16384, True)
    A("s_branch K_G3")
    A("K_G1:")
    for s_ in range(8):
        A(f"s_waitcnt lgkmcnt({min(15, 3*(7-s_))})")
        A(mfma(v.T, v.WA + 4*s_, v.XF + 4*s_, "0" if s_ == 0 else None))
    A(f"v_xor_b32 v{GA}, 16, v{PA}")
    A("s_nop 10")
    pout(v.T, 0, False)
    A("K_G3:")
    pt("g4")
    A(f"v_mov_b32 v{v.JK}, {L_BN + 24576}")
    tagshare("B", v.JK)
    A(f"""
    s_waitcnt lgkmcnt(0)
    s_barrier
    ds_read_b32 v{v.FV}, v{v.JK}
    ds_read_b128 {vr(v.T,4)}, v{v.JK3}
    ds_read_b128 {vr(v.T+4,4)}, v{v.JK3} offset:8192
    ds_read_b128 {vr(v.T+8,4)}, v{v.JK3} offset:16384
    s_waitcnt lgkmcnt(2)
    buffer_store_dwordx4 {vr(v.T,4)}, v{XV}, {sr(sWS,4)}, s{sUT} offen {STF}
    s_waitcnt lgkmcnt(1)
    buffer_store_dwordx4 {vr(v.T+4,4)}, v{XV}, {sr(sWS,4)}, s73 offen {STF}
    s_waitcnt lgkmcnt(0)
    buffer_store_dwordx4 {vr(v.T+8,4)}, v{XV}, {sr(sWS,4)}, s74 offen {STF}
    """)
    stamp(4)
    A("s_waitcnt vmcnt(3)")
    A("K_COM0:")
    A(f"v_readfirstlane_b32 s{sTag}, v{v.FV}")
    qaddr()
    A("s_barrier")
    pt("c1")
    qreads()
    lds_init()
    pt("c2")
    qmfma()
    stamp(6)
    A("K_COMMON:")
    pt("c3")
    for r in range(0, 12, 2):
        A(f"v_pk_mul_f32 {P(v.E+r)}, {P(v.E+r)}, s[72:73] op_sel_hi:[1,0]")
    A(f"""
    v_cvt_pk_bf16_f32 v{v.QS}, v{v.E}, v{v.E+1}
    v_cvt_pk_bf16_f32 v{v.QS+1}, v{v.E+2}, v{v.E+3}
    v_cvt_pk_bf16_f32 v{v.QF+2}, v{v.E+4}, v{v.E+5}
    v_cvt_pk_bf16_f32 v{v.QF+3}, v{v.E+6}, v{v.E+7}
    v_cvt_pk_bf16_f32 v{v.QS+2}, v{v.E+8}, v{v.E+9}
    v_cvt_pk_bf16_f32 v{v.QS+3}, v{v.E+10}, v{v.E+11}
    s_lshl_b32 s{sUoff}, s{sC}, 13
    s_add_u32 s{sUoff}, s{sUoff}, {WS_U}
    """)
    def round_regs():
        A(f"""
        v_mov_b32 v{v.TPa+1}, v{v.IX0+1}
        v_mov_b32 v{v.TPb+1}, v{v.IX0+1}
        v_mov_b32 v{v.IEb+1}, v{v.IE+1}
        v_mov_b32 v{v.aggF}, 1
        v_mov_b64 {P(v.REC+4)}, -1
        v_mov_b64 {P(v.REC+6)}, -1
        v_add_u32 v{v.JK}, {64 * CH}, v{v.EB}
        """)
    def cell_addr():
        A(f"""
        s_lshl_b32 s22, s2, 7
        s_add_u32 s22, s22, {WS_CELL}
        s_add_u32 s23, s22, {64*32768}
        s_movk_i32 s76, {1000 - 512}
        v_cmp_gt_u32 s[76:77], s76, v0
        v_lshrrev_b32 v{v.t0}, 3, v0
        v_and_b32 v{v.t1}, 7, v0
        v_lshlrev_b32 v{v.t1}, 4, v{v.t1}
        v_lshl_add_u32 v{v.DS}, v{v.t0}, 15, v{v.t1}
        """)
    round_regs()
    A(f"""
    s_cmp_eq_u32 s{sRole}, 0
    s_cbranch_scc1 {"K2_B3" if opt.get("isl", 8) else "K2_B2"}
    s_waitcnt vmcnt(6)
    s_barrier
    s_cmp_eq_u32 s3, 0
    s_cbranch_scc1 K2_B1
    K2_B2:
    """)
    stamp(8)
    A("K2_CELLS:")
    cell_addr()
    A("s_mov_b64 s[74:75], -1")
    A("s_and_b32 s72, s76, 0x80808080")
    A("s_and_b32 s73, s77, 0x80808080")
    stamp(10)
    A(f"""
    K_POLL:
    s_mov_b64 exec, s[74:75]
    buffer_load_dwordx4 {vr(v.REC,4)}, v{v.DS}, {sr(sWS,4)}, s22 offen sc1
    s_mov_b64 exec, s[76:77]
    buffer_load_dwordx4 {vr(v.REC+4,4)}, v{v.DS}, {sr(sWS,4)}, s23 offen sc1
    s_mov_b64 exec, -1
    buffer_load_dword v{v.JK2}, off, {sr(sWS,4)}, s{sRel} sc1
    s_waitcnt vmcnt(0)
    """)
    xred([v.REC, v.REC + 4], [v.NS, v.NS + 1])
    A(f"""
    v_xor_b32 v{v.NS}, s{sTag}, v{v.NS}
    v_xor_b32 v{v.NS+1}, s{sTag}, v{v.NS+1}
    v_cmp_lt_u32 s[74:75], 1, v{v.NS}
    v_cmp_lt_u32 vcc, 1, v{v.NS+1}
    s_and_b64 s[76:77], s[76:77], vcc
    s_or_b64 s[78:79], s[74:75], s[76:77]
    s_cbranch_scc1 K_POLL2
    s_mov_b32 exec_lo, 0x80808080
    s_mov_b32 exec_hi, 0x80808080
    v_not_b32 v{v.REC+3}, v{v.NS}
    s_mov_b64 exec, s[72:73]
    v_not_b32 v{v.REC+7}, v{v.NS+1}
    s_mov_b64 exec, -1
    """)
    A(f"""
    s_cmp_lg_u32 s{sMode}, 0
    s_barrier
    s_cbranch_scc1 K2_COUNT
    ds_read_b128 {vr(v.SEL0,4)}, v{v.S0a}
    ds_read_b128 {vr(v.SEL1,4)}, v{v.S1a}
    K2_COUNT:
    """)
    ool.append(f"K2_B1:\ns_mov_b64 exec, 1\nbuffer_store_dword v{v.FV}, off, {sr(sWS,4)}, s{sPair} sc1\ns_mov_b64 exec, -1\ns_branch K2_B2")
    if opt.get("isl", 8): ool.append(f"K2_B3:\ns_waitcnt vmcnt(6)\ns_sleep {opt.get('isl', 8) - 1}\ns_branch K2_B2")
    ool.append(f"K_POLL2:\ns_sleep {opt.get('slp', 12)}\ns_branch K_POLL")
    stamp(12)
    ET = opt.get("et", 5)
    W0 = {0: v.W0, 1: v.W0 + 2, 4: v.W0 + 4, 5: v.W0 + 6}
    for j in range(8):
        main = j % 4 < 2
        body = f"""
        v_lshrrev_b32 v{v.AD+j}, 12, v{v.REC+j}
        v_and_b32 v{v.AD+j}, 0xfc, v{v.AD+j}
        s_mov_b64 exec, {sr(sM+2*j,2)}
        ds_add_rtn_u32 v{v.RANK+j}, v{v.AD+j}, v{v.aggF} offset:{CNT}
        """
        A(f"v_cmp_gt_u32 {sr(sM+2*j,2)}, -2, v{v.REC+j}")
        if main:
            A(body)
            A(f"v_lshrrev_b32 v{W0[j]+1}, 20, v{v.REC+j}")
            if ET:
                A(f"v_subrev_u32 v{v.t0}, 80, v{v.AD+j}")
            A(f"v_add_u32 v{W0[j]+1}, v{W0[j]+1}, v{v.EB if j < 4 else v.JK}")
            if ET:
                A(f"v_min_u32 v{v.t0}, v{v.t0}, v{v.AD+j}")
                A(f"v_cmpx_gt_u32 vcc, {4*ET}, v{v.t0}")
                A(f"buffer_load_dword v{v.JK3}, v{W0[j]+1}, {sr(sE,4)}, 0 idxen")
            A("s_mov_b64 exec, -1")
        else:
            l = A.label("cs"); lb = A.label("cb")
            body += "s_mov_b64 exec, -1\n"
            if j % 4 == 3:
                A(f"v_cmp_eq_u32 vcc, -2, v{v.REC+j}")
                A(f"s_or_b64 s[22:23], {sr(sM+2*j,2)}, vcc")
                body += f"s_cbranch_vccz {lb}\nv_mov_b32 v{v.t1}, {FLAG}\nds_write_b32 v{v.t1}, v{v.aggF}\n"
            else:
                A(f"s_cmp_lg_u64 {sr(sM+2*j,2)}, 0")
            A(f"s_cbranch_scc1 {l}")
            A(f"{lb}:")
            ool.append(f"{l}:\n{body}\ns_branch {lb}")
    NPF = opt.get("pf", 0)
    if NPF:
        A(f"""
        s_or_b32 s22, s3, s{sMode}
        s_cmp_lg_u32 s22, 0
        s_cbranch_scc1 K2_NOPF
        v_cmp_ne_u32 vcc, s{sTag}, v{v.JK2}
        s_cbranch_vccnz K2_NOPF
        s_mul_i32 s22, s{sSl}, 81920
        v_lshlrev_b32 v{v.t0}, 7, v{L}
        """)
        for q in range(NPF):
            A(f"buffer_load_dword v{v.JK3}, v{v.t0}, {sr(sWS,4)}, s22 offen")
            if q < NPF - 1: A("s_add_u32 s22, s22, 8192")
        A("K2_NOPF:")
    c = v.t0; pd = v.OHA
    A(f"""
    v_lshlrev_b32 v{v.t0}, 2, v{L}
    v_mov_b32 v{v.t1}, {FLAG}
    s_mul_i32 s22, s{sG}, 20
    s_add_u32 s22, s22, 8
    s_waitcnt lgkmcnt(0)
    s_barrier
    """)
    pt("b2")
    A(f"""
    ds_read_b32 v{v.t0}, v{v.t0} offset:{CNT}
    ds_read_b32 v{v.t1}, v{v.t1}
    s_waitcnt lgkmcnt(0)
    v_add_u32 v{c}, 3, v{c}
    v_and_b32 v{c}, -4, v{c}
    v_max_u32 v{c}, 4, v{c}
    v_cndmask_b32 v{pd}, 0, v{c}, {sr(sN40,2)}
    v_readfirstlane_b32 s23, v{v.t1}
    s_nop 0
    v_add_u32_dpp v{c}, v{pd}, v{pd} row_shr:1 row_mask:0xf bank_mask:0xf bound_ctrl:0
    s_nop 1
    v_add_u32_dpp v{c}, v{c}, v{c} row_shr:2 row_mask:0xf bank_mask:0xf bound_ctrl:0
    s_nop 1
    v_add_u32_dpp v{c}, v{c}, v{c} row_shr:4 row_mask:0xf bank_mask:0xf bound_ctrl:0
    s_nop 1
    v_add_u32_dpp v{c}, v{c}, v{c} row_shr:8 row_mask:0xf bank_mask:0xf bound_ctrl:0
    s_nop 1
    v_add_u32_dpp v{c}, v{c}, v{c} row_bcast:15 row_mask:0xa bank_mask:0xf
    s_nop 1
    v_add_u32_dpp v{c}, v{c}, v{c} row_bcast:31 row_mask:0xc bank_mask:0xf
    s_cmp_lg_u32 s23, -1
    s_cbranch_scc1 K2_OVF
    v_readlane_b32 s{sT0}, v{c}, 19
    v_readlane_b32 s{sT1}, v{c}, 39
    v_sub_u32 v{pd}, v{c}, v{pd}
    s_sub_u32 s23, {GSL}, s{sT0}
    v_add_u32 v{c}, s23, v{pd}
    v_cndmask_b32 v{pd}, v{pd}, v{c}, {sr(sG1,2)}
    v_add_u32 v{v.FV}, v{pd}, v{v.OHB}
    """)
    for j in (0, 1, 4, 5):
        A(f"ds_bpermute_b32 v{v.PK+j}, v{v.AD+j}, v{v.FV}")
    A(f"""
    v_readlane_b32 s{sTsw}, v{pd}, s22
    s_sub_u32 s{sT1}, s{sT1}, s{sT0}
    s_max_u32 s22, s{sT0}, s{sT1}
    s_cmp_gt_u32 s22, {GSL}
    s_cbranch_scc1 K2_OVF
    s_waitcnt lgkmcnt(0)
    """)
    pt("sc")
    for j in (0, 1, 4, 5, 2, 3, 6, 7):
        rare = (j % 4) >= 2
        w = v.W0 + 8 if rare else W0[j]
        body = f"""
        s_mov_b64 exec, {sr(sM+2*j,2)}
        v_add_u32_sdwa v{v.RANK+j}, v{v.PK+j}, v{v.RANK+j} dst_sel:DWORD dst_unused:UNUSED_PAD src0_sel:WORD_0 src1_sel:DWORD
        v_bfi_b32 v{w}, s{sK3F}, v{v.REC+j}, v{v.PK+j}
        v_lshlrev_b32 v{v.PK+j}, 3, v{v.RANK+j}
        v_lshrrev_b32 v{v.RANK+j}, 2, v{v.RANK+j}
        ds_write_b64 v{v.PK+j}, {P(w)} offset:{REC}
        ds_write_b8 v{v.RANK+j}, v{v.AD+j} offset:{QN}
        """
        if rare:
            l = A.label("ss"); lb = A.label("sb")
            A(f"s_cmp_lg_u64 {sr(sM+2*j,2)}, 0")
            A(f"s_cbranch_scc1 {l}")
            A(f"{lb}:")
            ool.append(f"{l}:\ns_mov_b64 exec, -1\nds_bpermute_b32 v{v.PK+j}, v{v.AD+j}, v{v.FV}\nv_lshrrev_b32 v{w+1}, 20, v{v.REC+j}\nv_add_u32 v{w+1}, v{w+1}, v{v.EB if j < 4 else v.JK}\ns_waitcnt lgkmcnt(0)\n{body}\ns_branch {lb}")
        else:
            A(body)
    A(f"""
    s_mov_b64 exec, -1
    s_or_b32 s22, s3, s{sMode}
    s_cmp_lg_u32 s22, 0
    s_cbranch_scc1 K2_RDY
    v_cmp_ne_u32 vcc, s{sTag}, v{v.JK2}
    s_cbranch_vccnz {"K2_SPOLL" if opt.get("sp", 1) else "K2_RPOLL"}
    K2_RDY:
    s_mov_b32 m0, s{sRing}
    s_waitcnt lgkmcnt(0)
    s_barrier
    """)
    ool.append(f"K2_RPOLL:\nbuffer_load_dword v{v.JK2}, off, {sr(sWS,4)}, s{sRel} sc1\ns_waitcnt vmcnt(0)\nv_cmp_ne_u32 vcc, s{sTag}, v{v.JK2}\ns_cbranch_vccz K2_RDY\ns_sleep 1\ns_branch K2_RPOLL")
    ool.append(f"K2_SPOLL:\ns_mov_b32 s23, 0\nK2_SP2:\ns_buffer_load_dword s22, {sr(sWS,4)}, s{sRel} glc\ns_waitcnt lgkmcnt(0)\ns_cmp_eq_u32 s22, s{sTag}\ns_cbranch_scc1 K2_RDY\ns_add_u32 s23, s23, 1\ns_cmp_lt_u32 s23, 16\ns_cbranch_scc1 K2_SP2\ns_branch K2_RPOLL")
    stamp(14)
    A(f"""
    ds_read_u16 v{v.IX0}, v{v.R1}
    ds_read_u16 v{v.IX1}, v{v.R1} offset:64
    ds_read_b32 v{v.IE}, v{v.Re}
    ds_read_u8 v{v.t0}, v0 offset:{QN}
    ds_read_u16 v{v.TPa}, v{v.R1} offset:256
    ds_read_u16 v{v.TPb}, v{v.R1} offset:320
    ds_read_b32 v{v.IEb}, v{v.Re} offset:1024
    ds_read_u8 v{v.OH0}, v{v.R2}
    ds_read_u8 v{v.OHA}, v{v.R2} offset:256
    s_waitcnt lgkmcnt(8)
    buffer_load_dwordx4 {P(v.IX0)}, {sr(sP,4)}, 0 idxen offen lds
    s_add_u32 m0, s{sRing}, 1024
    s_waitcnt lgkmcnt(7)
    buffer_load_dwordx4 {P(v.IX1)}, {sr(sP,4)}, 0 idxen offen lds
    s_mov_b32 m0, s{sE0}
    s_waitcnt lgkmcnt(5)
    buffer_load_dwordx4 {P(v.IE)}, {sr(sE,4)}, 0 idxen offen lds
    v_cmp_ne_u32 vcc, 0xff, v{v.t0}
    v_subrev_u32 v{v.t1}, 80, v{v.t0}
    v_min_u32 v{v.t0}, v{v.t0}, v{v.t1}
    v_lshl_add_u32 v{v.t1}, v{v.t0}, 3, v{v.QC}
    v_lshrrev_b32 v{v.t0}, 1, v{v.t0}
    v_and_b32 v{v.t0}, 16, v{v.t0}
    v_xor_b32 v{v.t1}, v{v.t1}, v{v.t0}
    v_mov_b32 v{v.t0}, 0x3f80
    s_mov_b64 exec, vcc
    ds_write_b16 v{v.t1}, v{v.t0}
    s_mov_b64 exec, -1
    s_add_u32 m0, s{sRing}, 2048
    s_waitcnt lgkmcnt(0)
    buffer_load_dwordx4 {P(v.TPa)}, {sr(sP,4)}, 0 idxen offen lds
    s_add_u32 m0, s{sRing}, 3072
    ds_read_u16 v{v.IX0}, v{v.R1} offset:512
    buffer_load_dwordx4 {P(v.TPb)}, {sr(sP,4)}, 0 idxen offen lds
    ds_read_u16 v{v.IX1}, v{v.R1} offset:576
    ds_read_u16 v{v.TPa}, v{v.R1} offset:768
    ds_read_u16 v{v.TPb}, v{v.R1} offset:832
    s_mul_i32 s22, s{sG}, {GSL}
    s_sub_u32 s{sTsw}, s{sTsw}, s22
    s_add_u32 s{sTsw}, s{sTsw}, 31
    s_lshr_b32 s{sTsw}, s{sTsw}, 5
    s_add_u32 s{sT0}, s{sT0}, 31
    s_lshr_b32 s{sT0}, s{sT0}, 5
    s_add_u32 s{sT1}, s{sT1}, 31
    s_lshr_b32 s{sT1}, s{sT1}, 5
    s_cmp_gt_u32 s{sT0}, s{sT1}
    s_cselect_b32 s{sLate}, 1, 0
    s_xor_b32 s{sLate}, s{sLate}, s{sG}
    s_cmp_eq_u32 s{sG}, 0
    s_cselect_b32 s{sTg}, s{sT0}, s{sT1}
    s_sub_u32 s{sUT}, s{sTg}, 9
    s_and_b32 s{sUT}, s{sUT}, -4
    s_add_u32 s{sUT}, s{sUT}, 1
    s_cmp_lt_u32 s{sTg}, 9
    s_cselect_b32 s{sUT}, {BIG}, s{sUT}
    s_cmp_lg_u32 s{sMode}, 0
    s_cselect_b32 s{sUT}, {BIG}, s{sUT}
    s_sub_u32 s22, s{sTg}, 1
    s_lshr_b32 s22, s22, 1
    s_mul_i32 s22, s22, 3072
    s_add_u32 s22, s22, {3072 + 2048}
    v_add_u32 v{v.LA}, s22, v{v.E_}
    s_add_u32 s{sEdst}, s{sE0}, {6144 if opt.get('ek', 3) == 3 else 12288}
    s_mov_b32 s{sTile}, 0
    v_mov_b32 v{v.PROG}, 1
    v_mov_b64 {P(v.QF)}, {P(v.QS)}
    v_mov_b64 {P(v.NS)}, 0
    v_mov_b64 {P(v.NS+2)}, 0
    v_mov_b64 {P(v.DS)}, {P(v.ONE)}
    v_mov_b64 {P(v.DS+2)}, {P(v.ONE)}
    v_mov_b64 {P(v.MSG)}, 0
    v_mov_b64 {P(v.aggF)}, 0
    v_mov_b64 {P(v.aggF+2)}, 0
    v_mov_b64 {P(v.S)}, 0
    s_cmp_lg_u32 s{sMode}, 0
    s_waitcnt vmcnt(2) lgkmcnt(0)
    s_barrier
    """)
    stamp(16)
    A(f"""
    ds_read_b128 {vr(v.ohF,4)}, v{v.OH0}
    ds_read_b128 {vr(v.eF,4)}, v{v.E_} offset:3072
    ds_read_b128 {vr(v.pF0,4)}, v{v.P0}
    ds_read_b128 {vr(v.pF1,4)}, v{v.P1}
    s_cbranch_scc1 K2_SAFEP
    """)
    def late_issue():
        A(f"""
        s_add_u32 m0, s{sRing}, 4096
        s_nop 0
        buffer_load_dwordx4 {P(v.IX0)}, {sr(sP,4)}, 0 idxen offen lds
        s_add_u32 m0, s{sRing}, 5120
        ds_read_u16 v{v.IX0}, v{v.R1} offset:1024
        buffer_load_dwordx4 {P(v.IX1)}, {sr(sP,4)}, 0 idxen offen lds
        """)
        if opt.get("ek", 3) == 2:
            A(f"""
            s_add_u32 m0, s{sE0}, 6144
            s_nop 0
            buffer_load_dwordx4 {P(v.IEb)}, {sr(sE,4)}, 0 idxen offen lds
            """)
        else:
            A(f"v_mov_b32 v{v.IE}, v{v.IEb}")
        A(f"""
        s_add_u32 m0, s{sRing}, 6144
        ds_read_u16 v{v.IX1}, v{v.R1} offset:1088
        buffer_load_dwordx4 {P(v.TPa)}, {sr(sP,4)}, 0 idxen offen lds
        s_add_u32 m0, s{sRing}, 7168
        s_nop 0
        buffer_load_dwordx4 {P(v.TPb)}, {sr(sP,4)}, 0 idxen offen lds
        """)
    chain(A, 3, "fast", None, ool, pre=True, mid=late_issue)
    A("K2_LOOP:")
    for k in range(4):
        stretch(A, k, "fast", ool)
        chain(A, k, "fast", "K2_EXIT", ool)
    A("s_branch K2_LOOP")
    A("K2_EXIT:")
    stamp(18)
    A(f"""
    s_setprio 0
    ds_read_b128 {vr(v.ohF,4)}, v{v.LA}
    v_rcp_f32 v{v.RS}, v{v.DS}
    v_rcp_f32 v{v.RS+1}, v{v.DS+1}
    v_rcp_f32 v{v.RS+2}, v{v.DS+2}
    v_rcp_f32 v{v.RS+3}, v{v.DS+3}
    v_fma_f32 v{v.S}, v{v.DS}, v{v.DS+2}, v{v.S}
    v_fma_f32 v{v.S+1}, v{v.DS+1}, v{v.DS+3}, v{v.S+1}
    v_mul_f32 v{v.NS}, v{v.NS}, v{v.RS}
    v_mul_f32 v{v.NS+1}, v{v.NS+1}, v{v.RS+1}
    v_mul_f32 v{v.NS+2}, v{v.NS+2}, v{v.RS+2}
    v_mul_f32 v{v.NS+3}, v{v.NS+3}, v{v.RS+3}
    K2_X2:
    s_bitcmp1_b32 s{sTg}, 0
    s_cbranch_scc0 K2_X3
    s_waitcnt lgkmcnt(1)
    {mfma(v.ACC, v.MSG, v.aggF)}
    v_cvt_pk_bf16_f32 v{v.MSG}, v{v.NS}, v{v.NS+1}
    v_cvt_pk_bf16_f32 v{v.MSG+1}, v{v.NS+2}, v{v.NS+3}
    s_branch K2_X4
    K2_X3:
    v_cvt_pk_bf16_f32 v{v.MSG+2}, v{v.NS}, v{v.NS+1}
    v_cvt_pk_bf16_f32 v{v.MSG+3}, v{v.NS+2}, v{v.NS+3}
    K2_X4:
    v_max_f32 v{v.S}, v{v.S}, v{v.S+1}
    s_waitcnt lgkmcnt(0)
    {mfma(v.ACC, v.MSG, v.ohF)}
    v_add_u32 v{v.t0}, s{sRing}, v{v.t3}
    s_cmp_eq_u32 s{sMode}, 1
    s_cbranch_scc1 K2_NEXTR
    K2_FIN:
    s_cmp_eq_u32 s{sUT}, {BIG}
    s_cbranch_scc1 K2_ULD
    K2_ULB:
    s_mov_b32 s22, {NEG_LN2:#x}
    s_mov_b32 s23, {f2u(2.0**60):#x}
    v_mov_b64 {P(v.NS)}, 0
    v_mov_b32 v{v.S+1}, 0
    s_lshl_b32 s76, s{sG}, 15
    s_add_u32 s76, s76, {RING}
    v_add_u32 v{v.t1}, s76, v{v.t3}
    v_mov_b32 v{v.JK}, {TRIP}
    """)
    B = Asm(); B("K2_ULD:")
    for i in range(16): u_load(B, i)
    B("s_branch K2_ULB"); ool.append(B.text())
    for s in range(8):
        A(f"v_pk_mul_f32 {P(v.ACC+2*s)}, {P(v.ACC+2*s)}, s[22:23] op_sel_hi:[1,0]")
    for s in range(8):
        A(f"v_cvt_pk_bf16_f32 v{v.E+s}, v{v.ACC+2*s}, v{v.ACC+2*s+1}")
    A("s_waitcnt vmcnt(0)")
    A(f"ds_write_b128 v{v.t0}, {vr(v.E,4)}")
    A(f"ds_write_b128 v{v.t0}, {vr(v.E+4,4)} offset:1024")
    for s in range(8):
        A(f"v_pk_fma_f32 {P(v.S)}, {P(v.ACC+2*s)}, {P(v.NS)}, {P(v.S)}")
    F = v.T; AG = v.T1
    A(f"""
    v_add_f32 v{v.S}, v{v.S}, v{v.S+1}
    v_cmp_nge_f32 vcc, s23, v{v.S}
    s_cbranch_vccnz K2_TRIP
    K2_TRB:
    s_cmp_lg_u32 s{sLate}, 0
    s_waitcnt lgkmcnt(0)
    s_cbranch_scc1 K2_LATE
    """)
    ool.append(f"K2_TRIP:\ns_cmp_lg_u32 s{sMode}, 0\ns_cbranch_scc1 K2_TRB\nds_write_b32 v{v.JK}, v{v.NS}\ns_branch K2_TRB")
    def rg():
        for s_ in range(8):
            A(mfma(F, v.U1 + 4*s_, v.XF + 4*s_, "0" if s_ == 0 else None))
    def rd():
        A("s_barrier")
        stamp(96)
        A(f"ds_read_b32 v{v.JK}, v{v.JK}")
        for s in range(8):
            A(f"ds_read_b128 {vr(AG+4*s,4)}, v{v.t1} offset:{(s >> 1) * 8192 + (s & 1) * 1024}")
    rg(); rd()
    if opt.get("ep2", 1): A("s_setprio 2")
    A("s_branch K2_JOIN")
    A("K2_LATE:")
    rd(); rg()
    A("K2_JOIN:")
    for s in range(8):
        A(f"s_waitcnt lgkmcnt({7-s})")
        A(mfma(F, v.U2 + 4*s, AG + 4*s))
    A(f"""
    s_setprio 0
    v_readfirstlane_b32 s23, v{v.JK}
    s_mov_b32 s22, {NEG_LOG2E:#x}
    s_cmp_eq_u32 s23, 0
    s_cbranch_scc1 K2_REDO
    s_cmp_lg_u32 s{sLate}, 0
    s_nop 5
    s_cbranch_scc1 K2_ACT2
    """)
    def act(pk):
        for r in range(0, 16, 2):
            if pk: A(f"v_pk_mul_f32 {P(v.E+r)}, {P(F+r)}, s[22:23] op_sel_hi:[1,0]")
            else:
                A(f"v_mul_f32 v{v.E+r}, s22, v{F+r}"); A(f"v_mul_f32 v{v.E+r+1}, s22, v{F+r+1}")
        for r in range(16):
            A(f"v_exp_f32 v{v.E+r}, v{v.E+r}")
        for r in range(0, 16, 2):
            if pk: A(f"v_pk_add_f32 {P(v.E+r)}, {P(v.E+r)}, {P(v.ONE)}")
            else:
                A(f"v_add_f32 v{v.E+r}, 1.0, v{v.E+r}"); A(f"v_add_f32 v{v.E+r+1}, 1.0, v{v.E+r+1}")
        for r in range(16):
            A(f"v_rcp_f32 v{v.E+r}, v{v.E+r}")
        for r in range(0, 16, 2):
            if pk: A(f"v_pk_mul_f32 {P(F+r)}, {P(F+r)}, {P(v.E+r)}")
            else:
                A(f"v_mul_f32 v{F+r}, v{F+r}, v{v.E+r}"); A(f"v_mul_f32 v{F+r+1}, v{F+r+1}, v{v.E+r+1}")
    act(not opt.get("ep2", 1))
    A("s_branch K2_ACT3")
    A("K2_ACT2:")
    act(True)
    A("K2_ACT3:")
    O = v.T1
    for r in range(8):
        A(f"v_cvt_pk_bf16_f32 v{O+r}, v{F+2*r}, v{F+2*r+1}")
    A(f"""
    s_nop 1
    v_permlane32_swap_b32 v{O}, v{O+2}
    v_permlane32_swap_b32 v{O+1}, v{O+3}
    v_permlane32_swap_b32 v{O+4}, v{O+6}
    v_permlane32_swap_b32 v{O+5}, v{O+7}
    buffer_store_dwordx4 {vr(O,4)}, v{v.OA}, {sr(sOUT,4)}, 0 offen {opt.get("ost", "").replace("_", " ")}
    buffer_store_dwordx4 {vr(O+4,4)}, v{v.OA}, {sr(sOUT,4)}, 0 offen offset:32 {opt.get("ost", "").replace("_", " ")}
    """)
    if ST:
        A("s_waitcnt vmcnt(0)")
        A("s_memtime s[98:99]")
        A("s_memrealtime s[100:101]")
        A(f"""
        s_lshl_b32 s22, s2, 3
        s_add_u32 s22, s22, s3
        s_lshl_b32 s22, s22, 6
        s_add_u32 s22, s22, 0xA00000
        v_mov_b32 v1, 0
        s_waitcnt lgkmcnt(0)
        """)
        for i, r in enumerate([90, 94, 4, 6, 8, 10, 12, 14, 16, 18, 96, 98, 92, 100, sTg] if not PTS else [90, 94, 4, 44, 46, 48, 50, 96, 6, 12, 14, 98, 92, 100, sTg]):
            A(f"v_mov_b32 v2, s{r}")
            A(f"buffer_store_dword v2, v1, {sr(sWS,4)}, s22 offen offset:{4*i}")
    A("K_END:")
    A("s_endpgm")
    for o in ool: A(o)
    del ool[:]
    A(f"""
    K_SPECIAL:
    s_memrealtime s[88:89]
    s_waitcnt lgkmcnt(0)
    """)
    wsadj()
    srd(A, sDB, PDBG, 256)
    srd(A, sWS, PWS, WS_END)
    A(f"""
    s_cmp_lg_u32 s2, 0
    s_cbranch_scc1 K_HELPER
    s_cmp_lg_u32 s3, 0
    s_cbranch_scc1 K_END
    s_or_b32 s{sTag}, s88, 1
    v_mov_b32 v1, s{sTag}
    s_mov_b64 exec, 1
    buffer_store_dword v1, off, {sr(sDB,4)}, 0 sc1
    s_mov_b64 exec, -1
    v_lshlrev_b32 v2, 4, v0
    v_cmp_gt_u32 vcc, {NCHUNK + 2 - 64}, v0
    v_add_u32 v4, 1024, v2
    s_mov_b32 s22, {WS_FLAG + 0x2000}
    v_cndmask_b32 v4, v2, v4, vcc
    v_lshlrev_b32 v3, 7, v0
    s_mov_b32 s23, {WS_FLAG + 0x4000}
    """)
    if MC:
        A(f"""
        v_cmp_gt_u32 vcc, {NCHUNK - 64}, v0
        v_add_u32 v5, 1024, v2
        s_mov_b32 s76, {WS_FLAG}
        v_cndmask_b32 v5, v2, v5, vcc
        s_mov_b32 s77, {WS_FLAG + 0x6000}
        K_MPOLL0:
        buffer_load_dword v8, v2, {sr(sWS,4)}, s76 offen sc1
        buffer_load_dword v9, v5, {sr(sWS,4)}, s76 offen sc1
        s_waitcnt vmcnt(0)
        v_xor_b32 v8, v1, v8
        v_xor_b32 v9, v1, v9
        v_or_b32 v8, v8, v9
        v_cmp_ne_u32 vcc, 0, v8
        s_cbranch_vccnz K_MPOLL0
        buffer_store_dword v1, v3, {sr(sWS,4)}, s77 offen sc1
        {"s_memrealtime s[92:93]" if ST else ""}
        """)
    A(f"""
    K_MPOLL:
    buffer_load_dword v8, v2, {sr(sWS,4)}, s22 offen sc1
    buffer_load_dword v9, v4, {sr(sWS,4)}, s22 offen sc1
    s_waitcnt vmcnt(0)
    v_xor_b32 v8, v1, v8
    v_xor_b32 v9, v1, v9
    v_or_b32 v8, v8, v9
    v_cmp_ne_u32 vcc, 0, v8
    s_cbranch_vccnz K_MPOLL
    buffer_store_dword v1, v3, {sr(sWS,4)}, s23 offen sc1
    {"s_memrealtime s[90:91]" if ST else ""}
    {"s_waitcnt lgkmcnt(0)" if ST else ""}
    {"v_mov_b32 v2, s90" if ST else ""}
    {f"buffer_store_dword v2, off, {sr(sDB,4)}, 0 offset:8" if ST else ""}
    {"v_mov_b32 v2, s92" if ST else ""}
    {f"buffer_store_dword v2, off, {sr(sDB,4)}, 0 offset:12" if ST else ""}
    s_endpgm
    K_HELPER:
    s_sub_u32 s87, s2, 1
    s_lshl_b32 s82, s87, 15
    s_lshl_b32 s77, s3, 12
    """)
    srd(A, sWm, PWU, 32768, add="s82")
    wdma(0, 0)
    A(f"""
    s_waitcnt vmcnt(4)
    s_lshl_b32 s22, s{sC}, 6
    v_xor_b32 v{TRA}, s22, v{TRA}
    v_lshrrev_b32 v{H}, 5, v{L}
    s_sub_u32 s22, 11, s87
    v_lshlrev_b32 v{H}, s22, v{H}
    v_add_u32 v{TRA}, v{TRA}, v{H}
    s_lshl_b32 s22, s{sG}, 14
    v_add_u32 v{TRA}, s22, v{TRA}
    s_lshl_b32 s22, 1024, s87
    v_add_u32 v{H}, s22, v{TRA}
    s_lshl_b32 s22, s{sC}, 13
    s_add_u32 s82, s82, s22
    s_lshl_b32 s22, s{sG}, 12
    s_add_u32 s82, s82, s22
    s_add_u32 s82, s82, {WS_U}
    s_waitcnt vmcnt(0)
    s_barrier
    """)
    for s_ in range(4):
        A(f"ds_read_b64_tr_b16 {vr(v.T+4*s_,2)}, v{TRA} offset:{s_*4096}")
        A(f"ds_read_b64_tr_b16 {vr(v.T+4*s_+2,2)}, v{H} offset:{s_*4096}")
    A("s_waitcnt lgkmcnt(0)")
    for s_ in range(4):
        A(f"buffer_store_dwordx4 {vr(v.T+4*s_,4)}, v{v.t3}, {sr(sWS,4)}, s82 offen offset:{s_*1024} sc1")
    A(f"""
    s_waitcnt vmcnt(0)
    s_barrier
    s_cmp_lg_u32 s3, 0
    s_cbranch_scc1 K_END
    K_HTAG:
    buffer_load_dword v1, off, {sr(sDB,4)}, 0 sc1
    s_waitcnt vmcnt(0)
    v_readfirstlane_b32 s22, v1
    s_cmp_eq_u32 s22, 0
    s_cbranch_scc1 K_HTAG
    s_lshl_b32 s22, s87, 4
    s_add_u32 s22, s22, {WS_FLAG + 0x2000 + NCHUNK * 16}
    s_mov_b64 exec, 1
    buffer_store_dword v1, off, {sr(sWS,4)}, s22 sc1
    s_endpgm
    """)
    A("K2_SAFEP:")
    chain(A, 3, "safe", None, ool, pre=True, mid=late_issue)
    A("K2_SAFE:")
    for k in range(4):
        stretch(A, k, "safe", ool)
        chain(A, k, "safe", "K2_SEXIT", ool)
    A("s_branch K2_SAFE")
    A(f"""
    K2_SEXIT:
    s_setprio 0
    ds_read_b128 {vr(v.ohF,4)}, v{v.LA}
    s_branch K2_X2
    """)
    def restore():
        A(f"""
        s_lshr_b32 s23, s{sTg}, 2
        s_mul_i32 s22, s23, 6144
        s_lshl_b32 s23, s23, 10
        v_subrev_u32 v{v.E_}, s22, v{v.E_}
        v_subrev_u32 v{v.R1}, s23, v{v.R1}
        v_subrev_u32 v{v.R2}, s23, v{v.R2}
        v_subrev_u32 v{v.Re}, s23, v{v.Re}
        """)
    A("K2_REDO:")
    restore()
    A(f"s_mov_b32 s{sMode}, 2")
    A("s_nop 7")
    for r in range(0, 16, 2):
        A(f"v_mov_b64 {P(v.ACC+r)}, 0")
    A("s_waitcnt vmcnt(0) lgkmcnt(0)")
    A("s_barrier")
    lds_init()
    round_regs()
    A("s_branch K2_CELLS")
    A(f"""
    K2_OVF:
    s_cmp_eq_u32 s{sMode}, 0
    s_cbranch_scc0 K2_OV2
    s_cmp_lg_u32 s3, 0
    s_cbranch_scc1 K2_OV2
    K2_OV1:
    buffer_load_dword v{v.JK2}, off, {sr(sWS,4)}, s{sRel} sc1
    s_waitcnt vmcnt(0)
    v_cmp_ne_u32 vcc, s{sTag}, v{v.JK2}
    s_cbranch_vccnz K2_OV1
    K2_OV2:
    s_mov_b32 s{sMode}, 1
    s_mov_b32 s{sRound}, 0
    s_branch K2_ROUND
    K2_NEXTR:
    s_add_u32 s{sRound}, s{sRound}, 1
    s_cmp_ge_u32 s{sRound}, {E // 512}
    s_cbranch_scc1 K2_FIN
    """)
    restore()
    A(f"""
    K2_ROUND:
    s_load_dwordx4 s[76:79], s[0:1], 16
    s_waitcnt vmcnt(0) lgkmcnt(0)
    s_barrier
    """)
    srd(A, sS, 76, E * 4)
    srd(A, sD, 78, E * 4)
    A(f"""
    s_lshl_b32 s22, s{sRound}, 9
    v_add_u32 v{v.EB}, s22, v0
    v_lshlrev_b32 v{v.t0}, 2, v{v.EB}
    buffer_load_dword v{v.REC}, v{v.t0}, {sr(sD,4)}, 0 offen
    buffer_load_dword v{v.REC+1}, v{v.t0}, {sr(sS,4)}, 0 offen
    """)
    lds_init()
    round_regs()
    A(f"""
    s_mul_i32 s22, s2, 40
    s_waitcnt vmcnt(0)
    v_subrev_u32 v{v.REC}, s22, v{v.REC}
    v_cmp_gt_u32 vcc, 40, v{v.REC}
    v_lshl_or_b32 v{v.t0}, v{v.REC}, 14, v{v.REC+1}
    v_mov_b32 v{v.REC+1}, -1
    v_cndmask_b32 v{v.REC}, -1, v{v.t0}, vcc
    v_mov_b64 {P(v.REC+2)}, -1
    s_barrier
    s_branch K2_COUNT
    """)
    for o in ool: A(o)
    A("K_CODE_END:")
    return A.text()

HEADER = """; MPNN edge-MLP layer, fused single kernel (generated by gen/fz9.py).
"""
def build(opt):
    out = HEADER + f"; @launch grid=({NWG},1,1) block=(512,1,1) lds={LDS_TOTAL}\n"
    out += '.amdgcn_target "amdgcn-amd-amdhsa--gfx950"\n.text\n'
    out += f".globl {KNAME}\n.p2align 8\n.type {KNAME},@function\n" + gen(opt)
    acc = (NV + 3) // 4 * 4
    out += f""".section .rodata,"a"
.p2align 8
K_TABLE:
{tables()}.p2align 6
.amdhsa_kernel {KNAME}
  .amdhsa_next_free_vgpr {NV}
  .amdhsa_next_free_sgpr 102
  .amdhsa_accum_offset {acc}
  .amdhsa_group_segment_fixed_size 0
  .amdhsa_kernarg_size 72
  .amdhsa_user_sgpr_count 2
  .amdhsa_user_sgpr_kernarg_segment_ptr 1
  .amdhsa_system_sgpr_workgroup_id_x 1
.end_amdhsa_kernel
"""
    return out

if __name__ == "__main__":
    opt = {}
    for a in sys.argv[2:]:
        k_, v_ = a.split("=")
        opt[k_] = int(v_) if v_.lstrip("-").isdigit() else v_
    open(sys.argv[1], "w").write(build(opt))
```

```python
import sys
import gen, fz14 as fz
from gen import *
from diag import reduce_code
def diag(expr):
    A = Asm()
    A("diag_kernel:")
    A("s_cmp_ge_u32 s2, 1")
    A("s_cbranch_scc1 D_END")
    A("s_memrealtime s[50:51]")
    load_ptrs(A)
    A("s_waitcnt lgkmcnt(0)")
    srd(A, 24, PWS, 0x1000000)
    kind = expr[0]
    K2 = 0xA00000
    if kind == "deadline":
        reduce_code(A, K2, 250, 12, "min", 40)
        A(f"s_add_u32 s42, s40, {expr[1]}")
    elif kind == "span":
        reduce_code(A, K2, 250, 13, "max", 40)
        reduce_code(A, K2, 250, 12, "min", 41)
        A("s_sub_u32 s42, s40, s41")
        A(f"s_mul_i32 s42, s42, 10")
        A("s_add_u32 s42, s42, s50")
    elif kind == "cyc":
        reduce_code(A, K2, 250, expr[1], "add", 40)
        A(f"s_mul_hi_u32 s42, s40, {int(2**32 / 250 / 4)}")
        A("s_add_u32 s42, s42, s50")
    elif kind == "cy2":
        reduce_code(A, K2 + 512 * expr[2], 125, expr[1], expr[3], 40, sh=10)
        if expr[3] == "add": A(f"s_mul_hi_u32 s42, s40, {int(2**32 / 125 / 4)}")
        else: A("s_lshr_b32 s42, s40, 2")
        A("s_add_u32 s42, s42, s50")
    elif kind == "skew":
        reduce_code(A, K2, 250, 12, "max", 40)
        reduce_code(A, K2, 250, 12, "min", 41)
        A("s_sub_u32 s42, s40, s41")
        A(f"s_mul_i32 s42, s42, 10")
        A("s_add_u32 s42, s42, s50")
    elif kind == "zero":
        A("s_mov_b32 s42, s50")
    A("D_SPIN:")
    A("s_memrealtime s[52:53]")
    A("s_waitcnt lgkmcnt(0)")
    A("s_sub_u32 s54, s52, s42")
    A("s_cmp_lt_i32 s54, 0")
    A("s_cbranch_scc1 D_SPIN")
    A("D_END:")
    A("s_endpgm")
    return A.text()
def make(path, expr, opt):
    s = fz.build(opt)
    l = [l for l in s.split("\n") if "@launch" in l][0]
    s = s.replace(l, l.replace("@launch ", f"@launch kernel={fz.KNAME} ") + "\n; @launch kernel=diag_kernel grid=(1,1,1) block=(64,1,1) lds=0")
    s = s.replace('.section .rodata,"a"\n', ".globl diag_kernel\n.p2align 8\n.type diag_kernel,@function\n" + diag(expr) + '.section .rodata,"a"\n' + kd("diag_kernel", 16))
    open(path, "w").write(s)
if __name__ == "__main__":
    opt = {"stamp": 1}
    ex = sys.argv[1].split(",")
    for a in sys.argv[2:]:
        k_, v_ = a.split("=")
        opt[k_] = int(v_) if v_.lstrip("-").isdigit() else v_
    for i, e in enumerate(ex):
        if e == "F": x = ("deadline", 10000)
        elif e == "S": x = ("span",)
        elif e == "Z": x = ("zero",)
        elif e == "K": x = ("skew",)
        elif e[0] in "eoEO":
            a, b = e[1:].split("-"); x = ("cy2", (int(a), int(b)), 0 if e[0] in "eE" else 1, "add" if e[0] in "eo" else "max")
        else:
            a, b = e.split("-"); x = ("cyc", (int(a), int(b)))
        make(f"cdna_kernels/{opt.get('pre', 'dg')}{i}.s", x, opt)
```

```python
import sys, struct
from gen import Asm, vr, sr, srd, f2u, NEG_LOG2E, NEG_LN2, PX, PE, PSRC, PDST, PWM, PWU, POUT, PDBG, PWS, load_ptrs

KNAME = "standalone__mpnn_edge_mlp__graph_kernel"
N = 10000; E = 320000
NBIN = 250; NCHUNK = 125; CH = 2560
WS_CELL = 0x280000
WS_FLAG = 0x700000
WS_U = 0x708000
WS_END = WS_U + 0x10000
NWG = NBIN + 3
BIG = 0x7fffffff

CNT = 0x100; QN = 0x200; FLAG = 0x3F0; TRIP = 0x3F4; REC = 0x400
TG = 26; GSL = TG * 32
REC_BYTES = (2 * GSL + 160) * 8
EA = REC + REC_BYTES
GEA = (TG // 2) * 3072
RING = EA + 2 * GEA
JUNK = RING + 65536
LDS_TOTAL = JUNK + 1024
FLG = CNT + 48 * 4
L_X = RING; L_W2 = RING + 0x6000; L_W3 = L_W2 + 32768; L_BN = 0x8000
assert RING % 256 == 0 and LDS_TOTAL <= 163840

class R: pass
v = R()
_n = 1
def alloc(name, n, align=1):
    global _n
    _n = (_n + align - 1) // align * align
    setattr(v, name, _n)
    _n += n
for nm in ("t0", "t1", "t2", "t3", "lane", "FW", "FV", "PROG", "JK", "JK2", "JK3", "OHA", "P1", "FR", "LA"):
    alloc(nm, 1)
TABN = ("E_", "R1", "R2", "Re", "P0", "EB", "QC", "OHB", "S0a", "FRo", "IXo", "IEo", "S1a", "TRA", "OAl", "Z_")
alloc("TAB", 0, 4)
for nm in TABN[:8]:
    alloc(nm, 1)
for nm in ("IX0", "IX1", "IE", "ONE", "S"):
    alloc(nm, 2, 2)
alloc("OA", 1)
for nm in ("W3F", "QF", "QS", "SEL0", "SEL1", "eF", "ohF", "pF0", "pF1", "aggF", "MSG", "NS", "DS", "RS"):
    alloc(nm, 4, 4)
for nm in ("T", "T1", "E", "ACC"):
    alloc(nm, 16, 4)
alloc("U1", 32, 4); alloc("U2", 32, 4); alloc("XF", 32, 4)
NV = _n
assert NV <= 256
for i_, nm in enumerate(TABN[8:]): setattr(v, nm, v.SEL0 + i_)
v.WA = v.ohF
assert v.RS == v.ohF + 28 and v.SEL1 == v.SEL0 + 4 and v.E == v.T1 + 16
v.REC = v.T; v.RANK = v.T + 8; v.AD = v.E; v.PK = v.E + 8
v.W0 = v.T1
v.TPa = v.T1 + 10; v.TPb = v.T1 + 12; v.IEb = v.T1 + 14; v.OH0 = v.pF1

sWS, sP, sE, sX, sOUT, sD, sS = 24, 28, 32, 36, 40, 44, 48
sG, sC, sTg, sTile, sTsw, sTag, sRing, sEdst, sMode, sRound, sRole, sElim = 52, 53, 54, 55, 56, 57, 58, 59, 60, 61, 62, 63
sM = 64
sWm = 64; sDB = 68
sTB = 80
sUT = 82; sLate = 83; sK3F = 84; sT0, sT1 = 85, 86; sRel = 87; sUoff = 88; sPair = 89
sN40 = 36; sG1 = 38; sSl = 101; sE0 = 100; sOff = 61

OPT = {}
def P(r): return f"v[{r}:{r+1}]"
def mfma(d, a, b, c=None):
    return f"v_mfma_f32_32x32x16_bf16 {vr(d,16)}, {vr(a,4)}, {vr(b,4)}, {vr(d,16) if c is None else c}"
def pi8v(m):
    return ((m & 5) << 5) | ((m & 18) << 2) | ((m & 8) << 1)

def tables():
    rows = []
    for l in range(64):
        m, h = l & 31, l >> 5
        a16 = 16 + ((l & 8) << 3) + ((l & 3) << 4)
        n_ = l - 20 if l >= 20 else l
        a16n = 16 + ((n_ & 8) << 3) + ((n_ & 3) << 4)
        ohb = (a16n << (16 + 8 * ((n_ >> 2) & 1))) if l < 40 else 0
        sel = a16 if ((l >> 2) & 1) == h else 0
        d = dict(
            E_=m * 32 + (((h ^ (m >> 3)) & 1) << 4) + EA - 3072,
            R1=pi8v(l >> 2) + REC, R2=pi8v(m) + h + 2 + REC, Re=pi8v(l >> 1) + 4 + REC,
            P0=m * 64 + ((((m >> 2) ^ (2 * h)) & 3) << 4) + RING,
            EB=(l >> 3) * CH,
            QC=(l >> 4) * 3072 + ((l & 4) << 2) + (l & 8) + ((l & 3) << 1) + EA + 2048,
            OHB=ohb, FRo=(l & 3) * 4 + FLG,
            IXo=(((l >> 4) ^ l) & 3) << 4, IEo=(((l >> 4) ^ l) & 1) << 4,
            S0a=sel if m < 16 else 0, S1a=sel if m >= 16 else 0,
            TRA=(l & 3) * 8 + ((l >> 2) & 3) * 256 + (((l >> 2) & 3) << 6) + ((l >> 4) & 1) * 32,
            OAl=(m * 256 + h * 16) if m < 20 else 0x40000000, Z_=0)
        rows.append([d[n] for n in TABN])
    out = []
    for b in range(4):
        for l in range(64):
            out.append(".long " + ", ".join(f"{x:#x}" for x in rows[l][4*b:4*b+4]))
    img = [0] * 256
    for e_ in range(8):
        img[4 * (e_ + 1) + (e_ >> 1)] = 0x3f80 << (16 * (e_ & 1))
    for i in range(128, 256): img[i] = 0xffffffff
    for i in range(0, 256, 4):
        out.append(".long " + ", ".join(f"{x:#x}" for x in img[i:i+4]))
    for i in range(64):
        out.append(".long 0xffff, 0xffffffff, 0xffff, 0xffffffff")
    return "\n".join(out) + "\n"

def lst(A, k, variant, r):
    if OPT.get("ls") and variant == "fast" and k == OPT["ls"] - 1: A(f"s_memtime s[{r}:{r+1}]")

def u_load(A, i):
    off = (i >> 3) * 32768 + (i & 7) * 1024
    A(f"s_add_u32 s22, s{sUoff}, {off & ~4095}")
    A(f"buffer_load_dwordx4 {vr(v.U1+4*i,4)}, v{v.t3}, {sr(sWS,4)}, s22 offen offset:{off & 4095}")

def chain(A, k, variant, exit_label, ool, pre=False, mid=None):
    kk = k if k < 3 else -1
    safe = variant == "safe"
    EK = OPT.get("ek", 3)
    if not pre:
        A("s_setprio 2")
        A(f"s_add_u32 s{sTile}, s{sTile}, 1")
        A(f"s_cmp_ge_u32 s{sTile}, s{sTg}")
        A(f"s_cbranch_scc1 {exit_label}")
        lsw = A.label("sw"); lswb = A.label("swb")
        A(f"s_cmp_eq_u32 s{sTile}, s{sTsw}")
        A(f"s_cbranch_scc1 {lsw}")
        A(f"{lswb}:")
        ool.append(f"{lsw}:\nv_mov_b32 v{v.QF}, v{v.QS+2}\nv_mov_b32 v{v.QF+1}, v{v.QS+3}\ns_branch {lswb}")
        lst(A, k, variant, 10)
    A("s_waitcnt lgkmcnt(0)")
    if k % 2 == 0:
        A(mfma(v.ACC, v.MSG, v.aggF))
    n = 4 + (1 if ((k - 1) & 3) == EK or ((k - 2) & 3) == EK else 0)
    if EK == 3 and k == 1: n = 2
    if pre: n = 4 if EK == 3 else 5
    k2_ = kk + 2
    eread = f"ds_read_b128 {vr(v.eF,4)}, v{v.E_} offset:{3072 + (k2_ >> 1) * 3072 + (k2_ & 1) * 1024}"
    if k == 2: A(f"ds_read_b32 v{v.FV}, v{v.FR}")
    A(mfma(v.T, v.eF, v.W3F, "0"))
    if k != 2: A(eread)
    A(mfma(v.T, v.ohF, v.QF))
    A(f"ds_read_b128 {vr(v.ohF,4)}, v{v.OHA}")
    A(f"ds_read_u8 v{v.OHA}, v{v.R2} offset:{(kk + 3) * 256}")
    A(mfma(v.T, v.pF0, v.SEL0))
    if k == 2:
        A("s_waitcnt lgkmcnt(2)")
        A(f"v_cmp_gt_u32 vcc, v{v.PROG}, v{v.FV}")
    A(mfma(v.T, v.pF1, v.SEL1))
    A(f"s_setprio 0")
    lst(A, k, variant, 14)
    n_after = 2
    if k == 2:
        lw = A.label("fw"); lb = A.label("fb")
        A(f"s_cbranch_vccnz {lw}")
        A(f"{lb}:")
        A(eread)
        ool.append(f"{lw}:\nds_read_b32 v{v.FV}, v{v.FR}\ns_waitcnt lgkmcnt(0)\nv_cmp_gt_u32 vcc, v{v.PROG}, v{v.FV}\ns_cbranch_vccnz {lw}\ns_branch {lb}")
        n_after += 2
    if mid: mid()
    A(f"s_waitcnt vmcnt({n})" + (" lgkmcnt(0)" if pre else ""))
    if k == 1:
        A("s_mov_b64 exec, 1")
        A(f"ds_write_b32 v{v.FW}, v{v.PROG}")
        A("s_mov_b64 exec, -1")
        n_after += 3
    if k == EK:
        A(f"s_cmp_lt_u32 s{sEdst}, s{sElim}")
        A(f"s_cselect_b32 m0, s{sEdst}, {JUNK}")
        A(f"s_add_u32 s{sEdst}, s{sEdst}, 6144")
        A(f"buffer_load_dwordx4 {P(v.IE)}, {sr(sE,4)}, 0 idxen offen lds")
        n_after += 4
    A(f"s_add_u32 m0, s{sRing}, {((k + 1) & 3) * 2048}")
    A(f"ds_read_b128 {vr(v.pF0,4)}, v{v.P0} offset:{((k + 2) & 3) * 2048}")
    A(f"buffer_load_dwordx4 {P(v.IX0)}, {sr(sP,4)}, 0 idxen offen lds")
    A(f"s_add_u32 m0, s{sRing}, {((k + 1) & 3) * 2048 + 1024}")
    A(f"ds_read_b128 {vr(v.pF1,4)}, v{v.P1} offset:{((k + 2) & 3) * 2048}")
    A(f"buffer_load_dwordx4 {P(v.IX1)}, {sr(sP,4)}, 0 idxen offen lds")
    A(f"ds_read_u16 v{v.IX0}, v{v.R1} offset:{(kk + 6) * 256}")
    A(f"ds_read_u16 v{v.IX1}, v{v.R1} offset:{(kk + 6) * 256 + 64}")
    n_after += 8
    if k % 2 == 1 and not pre:
        A(f"ds_read_b128 {vr(v.aggF,4)}, v{v.E_} offset:{(1 if k == 1 else 0) * 3072 + 2048}")
        n_after += 1
    if k == EK - 1:
        A(f"ds_read_b32 v{v.IE}, v{v.Re} offset:{2 * 1024}")
        n_after += 1
    if not safe and not pre:
        lv = A.label("uv"); lvb = A.label("vb")
        A(f"s_sub_u32 s23, s{sTile}, s{sUT}")
        A(f"s_cmp_lt_u32 s23, 8")
        A(f"s_cbranch_scc1 {lv}")
        A(f"{lvb}:")
        n_after += 3
        B = Asm()
        B(f"{lv}:")
        B(f"s_cmp_ge_u32 s23, 4")
        B(f"s_cbranch_scc1 {lv}x")
        u_load(B, 2*k); u_load(B, 2*k+1)
        B(f"s_branch {lvb}")
        B(f"{lv}x:")
        u_load(B, 8+2*k); u_load(B, 8+2*k+1)
        B(f"s_branch {lvb}")
        ool.append(B.text())
    if n_after < 12:
        A(f"s_nop {12 - n_after - 1}")
    lst(A, k, variant, 12)

def stretch(A, k, variant, ool):
    T = v.T; E = v.E
    order = [0, 1, 8, 9, 2, 3, 10, 11, 4, 5, 12, 13, 6, 7, 14, 15]
    lst(A, k, variant, 94)
    for r in order:
        A(f"v_exp_f32 v{E+r}, v{T+r}")
    if variant != "safe":
        for r in range(4):
            A(f"v_rcp_f32 v{v.RS+r}, v{v.DS+r}")
    if k == 3:
        for s in (f"v_add_u32 v{v.E_}, 6144, v{v.E_}", f"v_add_u32 v{v.R1}, 1024, v{v.R1}",
                  f"v_add_u32 v{v.R2}, 1024, v{v.R2}", f"v_add_u32 v{v.Re}, 1024, v{v.Re}"): A(s)
    if k == 0:
        A(f"v_add_u32 v{v.PROG}, 1, v{v.PROG}")
    lst(A, k, variant, 4)
    A("s_setprio 1")
    mo = v.MSG + 2 * ((k + 1) % 2)
    if variant != "safe":
        A(f"v_pk_fma_f32 {P(v.S)}, {P(v.DS)}, {P(v.DS+2)}, {P(v.S)}")
        A(f"v_pk_mul_f32 {P(v.NS)}, {P(v.NS)}, {P(v.RS)}")
        A(f"v_pk_mul_f32 {P(v.NS+2)}, {P(v.NS+2)}, {P(v.RS+2)}")
    A(f"v_cvt_pk_bf16_f32 v{mo}, v{v.NS}, v{v.NS+1}")
    A(f"v_cvt_pk_bf16_f32 v{mo+1}, v{v.NS+2}, v{v.NS+3}")
    lst(A, k, variant, 6)
    if variant != "safe":
        ops = []
        for gi, g in enumerate((0, 8)):
            t, e = T + g, E + g
            o = [f"v_pk_add_f32 {P(e)}, {P(e)}, {P(v.ONE)}"]
            for u in (1, 2, 3):
                o.append(f"v_pk_fma_f32 {P(t)}, {P(t)}, {P(e+2*u)}, {P(t)}")
                o.append(f"v_pk_fma_f32 {P(t if u < 3 else v.NS+2*gi)}, {P(t+2*u)}, {P(e)}, {P(t)}")
                o.append(f"v_pk_fma_f32 {P(e if u < 3 else v.DS+2*gi)}, {P(e)}, {P(e+2*u)}, {P(e)}")
            ops.append(o)
        for a, b in zip(*ops):
            A(a); A(b)
    else:
        for r in range(0, 16, 2):
            A(f"v_pk_add_f32 {P(E+r)}, {P(E+r)}, {P(v.ONE)}")
        for r in range(16):
            A(f"v_rcp_f32 v{E+r}, v{E+r}")
        A("s_nop 0")
        for u in range(4):
            for gi, g in enumerate((0, 8)):
                if u == 0:
                    A(f"v_pk_mul_f32 {P(T+g)}, {P(T+g)}, {P(E+g)}")
                else:
                    A(f"v_pk_fma_f32 {P(T+g if u < 3 else v.NS+2*gi)}, {P(T+g+2*u)}, {P(E+g+2*u)}, {P(T+g)}")
    lst(A, k, variant, 8)

def gen(opt):
    OPT.clear(); OPT.update(opt)
    A = Asm()
    L = v.lane
    ST = opt.get("stamp", 0)
    PTS = opt.get("pts", "").split(",") if opt.get("pts") else []
    PSL = [44, 46, 48, 50, 96]
    def pt(name):
        if name in PTS:
            r = PSL[PTS.index(name)]
            A(f"s_memtime s[{r}:{r+1}]")
    def stamp(r, real=False):
        if PTS and r == 96: return
        if opt.get("ls") and r in (94, 4, 6, 8, 10, 12, 14): return
        if ST: A(f"s_mem{'real' if real else ''}time s[{r}:{r+1}]")
    ool = []
    STF = opt.get("stf", "sc1").replace("_", " ")
    WV = v.eF; XV = v.eF + 1; H = v.eF + 2; TRA = v.TRA
    A(f"{KNAME}:")
    stamp(90); stamp(92, True)
    A(f"s_cmp_ge_u32 s2, {NWG}")
    A("s_cbranch_scc1 K_END")
    load_ptrs(A)
    A(f"""
    v_lshrrev_b32 v{v.t0}, 6, v0
    v_and_b32 v{L}, 63, v0
    v_readfirstlane_b32 s3, v{v.t0}
    v_lshlrev_b32 v{v.t3}, 4, v{L}
    s_getpc_b64 {sr(sTB,2)}
    s_add_u32 s{sTB}, s{sTB}, K_TABLE@rel32@lo+4
    s_addc_u32 s{sTB+1}, s{sTB+1}, K_TABLE@rel32@hi+12
    global_load_dwordx4 {vr(v.SEL1,4)}, v{v.t3}, {sr(sTB,2)} offset:3072
    global_load_dwordx4 {vr(v.TAB,4)}, v{v.t3}, {sr(sTB,2)}
    global_load_dwordx4 {vr(v.TAB+4,4)}, v{v.t3}, {sr(sTB,2)} offset:1024
    global_load_dwordx4 {vr(v.SEL0,4)}, v{v.t3}, {sr(sTB,2)} offset:2048
    v_lshlrev_b32 v{v.t2}, 4, v0
    v_lshrrev_b32 v{WV}, 2, v{v.t3}
    v_lshrrev_b32 v{XV}, 4, v{v.t2}
    v_and_b32 v{WV}, 0xc0, v{WV}
    v_and_b32 v{XV}, 0xf0, v{XV}
    v_xor_b32 v{WV}, v{WV}, v{v.t3}
    v_xor_b32 v{XV}, v{XV}, v{v.t2}
    s_lshr_b32 s{sG}, s3, 2
    s_and_b32 s{sC}, s3, 3
    s_cmp_lt_u32 s2, 8
    s_cbranch_scc1 K_LOW
    K_LOWB:
    s_sub_u32 s23, s2, 3
    s_lshr_b32 s{sSl}, s23, 3
    s_cmp_ge_u32 s23, {NCHUNK}
    s_cselect_b32 s{sRole}, {1 - opt.get("r1f", 1)}, {opt.get("r1f", 1)}
    s_cselect_b32 s22, {NCHUNK}, 0
    s_sub_u32 s{sPair}, s23, s22
    s_lshl_b32 s2, s{sPair}, 1
    s_add_u32 s2, s2, s{sRole}
    s_mul_i32 s{sUT}, s{sPair}, {80*256}
    s_sub_u32 s{sX+2}, {N*256}, s{sUT}
    s_mov_b32 s{sX+3}, 0x00020000
    s_lshl_b32 s76, s3, 10
    s_add_u32 s77, s3, s{sSl}
    s_and_b32 s77, s77, {7 if opt.get("rot", 1) else 0}
    {"" if opt.get("rot", 1) else "s_mov_b32 s77, s3"}
    s_lshl_b32 s77, s77, 12
    s_cmp_eq_u32 s{sRole}, 0
    s_waitcnt lgkmcnt(0)
    """)
    def wsadj():
        if opt.get("wsoff"):
            A(f"s_add_u32 s{PWS}, s{PWS}, {opt['wsoff'] << 20}")
            A(f"s_addc_u32 s{PWS+1}, s{PWS+1}, 0")
    wsadj()
    if opt.get("wsoff"): A(f"s_cmp_eq_u32 s{sRole}, 0")
    A("s_cbranch_scc0 K_GEMM")
    ool.append(f"""K_LOW:
    s_cmp_lg_u32 s3, 7
    s_cbranch_scc1 K_LOW2
    s_getpc_b64 s[22:23]
    K_PC:
    s_sub_u32 s22, s22, K_PC-{KNAME}
    s_subb_u32 s23, s23, 0
    v_lshlrev_b32 v{v.JK}, 7, v{L}
    v_add_u32 v{v.JK2}, 0x2000, v{v.JK}
    v_min_u32 v{v.JK2}, K_CODE_END-{KNAME}-4, v{v.JK2}
    global_load_dword v{v.PROG}, v{v.JK}, s[22:23]
    global_load_dword v{v.FV}, v{v.JK2}, s[22:23]
    K_LOW2:
    s_cmp_lt_u32 s2, 3
    s_cbranch_scc1 K_SPECIAL
    s_branch K_LOWB""")
    def xdma(n):
        A(f"""
        s_add_u32 s{sX}, s{PX}, s{sUT}
        s_addc_u32 s{sX+1}, s{PX+1}, 0
        s_add_u32 m0, s76, {L_X}
        s_movk_i32 s23, 0x2000
        buffer_load_dwordx4 v{XV}, {sr(sX,4)}, 0 offen lds
        s_add_u32 m0, s76, {L_X + 8192}
        s_movk_i32 s22, 0x4000
        buffer_load_dwordx4 v{XV}, {sr(sX,4)}, s23 offen lds
        """)
        if n == 3:
            A(f"s_add_u32 m0, s76, {L_X + 16384}")
            A("s_nop 0")
            A(f"buffer_load_dwordx4 v{XV}, {sr(sX,4)}, s22 offen lds")
    def wdma(soff, lds):
        A(f"s_add_u32 m0, s77, {lds}")
        if soff: A(f"s_add_u32 s22, s77, {soff}")
        else: A("s_nop 0")
        for q in range(4):
            A(f"buffer_load_dwordx4 v{WV}, {sr(sWm,4)}, s{22 if soff else 77} offen offset:{q*1024} lds")
    def w23dma(w2=True):
        if w2: wdma(32768, L_W2)
        A(f"s_add_u32 m0, s76, {L_W3}")
        A(f"s_add_u32 s22, s76, 65536")
        A(f"buffer_load_dwordx4 v{WV}, {sr(sWm,4)}, s22 offen lds")
    def sconsts():
        srd(A, sP, PWS, 0 if opt.get('nop') else N, stride=256)
        srd(A, sE, PE, 0 if opt.get('noe') else E, stride=32)
        srd(A, sOUT, POUT, N * 256)
        srd(A, sDB, PDBG, 256)
        A(f"""
        s_mov_b32 s{sMode}, 0
        s_movk_i32 s{sK3F}, 0x3fff
        s_lshl_b32 s{sRing}, s3, 13
        s_lshr_b32 s22, s{sC}, 1
        s_mul_i32 s22, s22, 3072
        s_bfe_u32 s23, s{sC}, 0x10000
        s_lshl_b32 s23, s23, 10
        s_add_u32 s22, s22, s23
        s_mul_i32 s{sElim}, s{sG}, {GEA}
        s_add_u32 s{sE0}, s{sElim}, s22
        s_add_u32 s{sE0}, s{sE0}, {EA}
        s_and_b32 s{sRel}, s2, 63
        s_lshl_b32 s{sRel}, s{sRel}, 7
        s_add_u32 s{sRel}, s{sRel}, {WS_FLAG + 0x4000}
        """)
    def vconsts():
        A(f"""
        v_add_u32 v{v.P0}, s{sRing}, v{v.P0}
        v_add_u32 v{v.E_}, s{sElim}, v{v.E_}
        s_mul_i32 s22, s{sG}, {GSL*8}
        v_xor_b32 v{v.P1}, 16, v{v.P0}
        v_add_u32 v{v.R1}, s22, v{v.R1}
        v_add_u32 v{v.R2}, s22, v{v.R2}
        s_lshl_b32 s23, s{sC}, 8
        s_add_u32 s22, s22, s23
        v_add_u32 v{v.Re}, s22, v{v.Re}
        s_lshl_b32 s22, s{sC}, 6
        v_or_b32 v{v.IX0+1}, s22, v{v.IXo}
        v_or_b32 v{v.IX1+1}, s22, v{v.IXo}
        v_xor_b32 v{TRA}, s22, v{TRA}
        s_mul_i32 s23, s2, 40
        s_mul_i32 s78, s{sG}, 20
        s_add_u32 s23, s23, s78
        s_lshl_b32 s23, s23, 8
        s_add_u32 s23, s23, s22
        v_add_u32 v{v.OA}, s23, v{v.OAl}
        v_mov_b32 v{v.IE+1}, v{v.IEo}
        s_mul_i32 s22, s3, {8*CH}
        v_add_u32 v{v.EB}, s22, v{v.EB}
        s_mul_i32 s22, s3, {4*3072}
        v_add_u32 v{v.QC}, s22, v{v.QC}
        s_lshl_b32 s22, s3, 2
        v_add_u32 v{v.FW}, s22, v{v.FRo}
        s_lshl_b32 s22, s{sG}, 4
        v_add_u32 v{v.FR}, s22, v{v.FRo}
        v_lshrrev_b32 v{H}, 5, v{L}
        s_add_u32 s{sRing}, s{sRing}, {RING}
        s_add_u32 s{sElim}, s{sElim}, {EA + GEA}
        """)
    def lds_init():
        A(f"""
        s_mul_i32 s22, s3, 3072
        s_add_u32 m0, s22, {EA + 2048}
        s_brev_b32 s23, 2
        buffer_load_dwordx4 v{v.t3}, {sr(sWS,4)}, s23 offen lds
        s_add_u32 m0, s22, {EA + 2048 + 24576}
        s_cmp_lt_u32 s3, 2
        buffer_load_dwordx4 v{v.t3}, {sr(sWS,4)}, s23 offen lds
        s_cselect_b32 s78, 0, {JUNK - (EA + 2048 + 73728) - 7 * 3072}
        s_add_u32 m0, s22, {EA + 2048 + 49152}
        s_cselect_b32 s79, s22, {7 * 3072}
        buffer_load_dwordx4 v{v.t3}, {sr(sWS,4)}, s23 offen lds
        """.replace("s_cselect_b32 s78, 0, " + str(JUNK - (EA + 2048 + 73728) - 7 * 3072) + "\n", "").replace(
            f"        s_add_u32 m0, s22, {EA + 2048 + 49152}\n        s_cselect_b32 s79, s22, {7 * 3072}\n",
            f"        s_cselect_b32 s79, s22, {JUNK - (EA + 2048 + 73728)}\n        s_add_u32 m0, s22, {EA + 2048 + 49152}\n        s_lshl_b32 s22, s3, 10\n"))
        A(f"""
        s_add_u32 m0, s79, {EA + 2048 + 73728}
        s_add_u32 s78, s{sTB}, 4096
        buffer_load_dwordx4 v{v.t3}, {sr(sWS,4)}, s23 offen lds
        s_addc_u32 s79, s{sTB+1}, 0
        s_add_u32 m0, s22, {REC - 1024}
        s_cmp_eq_u32 s3, 7
        global_load_lds_dwordx4 v{v.t3}, s[78:79] offset:1024
        s_cbranch_scc1 {A.label('i7')}
        """)
        l7 = f"L_i7_{A.uid}"
        A(f"""
        s_add_u32 m0, s22, {REC + 8192 - 1024}
        s_nop 0
        global_load_lds_dwordx4 v{v.t3}, s[78:79] offset:1024
        {l7}b:
        """)
        ool.append(f"{l7}:\ns_mov_b32 m0, 0\ns_nop 0\nglobal_load_lds_dwordx4 v{v.t3}, s[78:79]\ns_branch {l7}b")
    def tagshare(x, va):
        A(f"""
        s_cmp_lg_u32 s3, 0
        s_cbranch_scc1 K_NS{x}
        {"s_waitcnt vmcnt(0)" if x == "B" else ""}
        K_TAGOK{x}:
        v_cmp_eq_u32 vcc, 0, v{v.FV}
        s_cbranch_vccnz K_TAG{x}
        ds_write_b32 v{va}, v{v.FV}
        K_NS{x}:
        """)
        ool.append(f"K_TAG{x}:\nbuffer_load_dword v{v.FV}, off, {sr(sDB,4)}, 0 sc1\ns_waitcnt vmcnt(0)\ns_branch K_TAGOK{x}")
    def xred(regs, xs):
        for r, x in zip(regs, xs): A(f"v_bitop3_b32 v{x}, v{r}, v{r+1}, v{r+2} bitop3:0x96")
        for r, x in zip(regs, xs): A(f"v_xor_b32 v{x}, v{x}, v{r+3}")
        for pat in ("quad_perm:[1,0,3,2]", "quad_perm:[2,3,0,1]", "row_half_mirror"):
            if len(xs) < 3: A(f"s_nop {2 - len(xs)}")
            for x in xs: A(f"v_xor_b32_dpp v{x}, v{x}, v{x} {pat} row_mask:0xf bank_mask:0xf")
    def tagload(lbl):
        A(f"""
        s_cmp_lg_u32 s3, 0
        s_cbranch_scc1 {lbl}
        buffer_load_dword v{v.FV}, off, {sr(sDB,4)}, 0 sc1
        {lbl}:
        """)
    def qaddr():
        XA = v.E; GA = v.E + 1; TN = v.E + 2
        A(f"""
        s_mul_i32 s22, s{sG}, 20
        s_mul_i32 s23, s{sRole}, 40
        s_add_u32 s22, s22, s23
        v_and_b32 v{XA}, 31, v{L}
        v_add_u32 v{XA}, s22, v{XA}
        v_xor_b32 v{GA}, v{XA}, v{H}
        v_and_b32 v{GA}, 15, v{GA}
        v_lshl_or_b32 v{XA}, v{XA}, 4, v{GA}
        s_mov_b32 s22, {L_X}
        v_lshl_add_u32 v{XA}, v{XA}, 4, s22
        v_lshl_add_u32 v{TN}, v{H}, 11, v{TRA}
        v_add_u32 v{TN}, {L_W2}, v{TN}
        """)
    def qreads():
        XA = v.E; GA = v.E + 1; TN = v.E + 2
        for s_ in range(8):
            A(f"ds_read_b64_tr_b16 {vr(v.WA+4*s_,2)}, v{TN} offset:{s_*4096}")
            A(f"ds_read_b64_tr_b16 {vr(v.WA+4*s_+2,2)}, v{TN} offset:{s_*4096+1024}")
            if s_: A(f"v_xor_b32 v{GA}, {s_*32}, v{XA}")
            A(f"ds_read_b128 {vr(v.XF+4*s_,4)}, v{GA if s_ else XA}")
        A(f"ds_read_b64_tr_b16 {vr(v.W3F,2)}, v{TN} offset:32768")
        A(f"ds_read_b64_tr_b16 {vr(v.W3F+2,2)}, v{TN} offset:33792")
    def qmfma():
        for s_ in range(8):
            A(f"s_waitcnt lgkmcnt({min(15, 3*(7-s_) + 2)})")
            A(mfma(v.E, v.XF + 4*s_, v.WA + 4*s_, "0" if s_ == 0 else None))
            A(f"v_mov_b64 {P(v.ACC+2*s_)}, 0")
        A(f"""
        s_mov_b32 s72, {NEG_LOG2E:#x}
        v_cmp_gt_u32 {sr(sN40,2)}, 40, v{L}
        v_cmp_le_u32 {sr(sG1,2)}, 20, v{L}
        v_mov_b32 v{v.ONE}, 1.0
        v_mov_b32 v{v.ONE+1}, 1.0
        s_waitcnt lgkmcnt(0)
        """)
        for r in range(4):
            A(f"""
            v_lshlrev_b32 v{v.S}, 16, v{v.W3F+r}
            v_and_b32 v{v.S+1}, 0xffff0000, v{v.W3F+r}
            v_mul_f32 v{v.S}, s72, v{v.S}
            v_mul_f32 v{v.S+1}, s72, v{v.S+1}
            v_cvt_pk_bf16_f32 v{v.W3F+r}, v{v.S}, v{v.S+1}
            """)
    def post(x):
        A(f"""
        s_cmp_lg_u32 s3, 0
        s_cbranch_scc1 K_NP{x}
        v_readfirstlane_b32 s{sTag}, v{v.FV}
        s_cmp_eq_u32 s{sTag}, 0
        s_cbranch_scc1 K_TAG{x}
        K_TAGOK{x}:
        s_mov_b64 exec, 1
        buffer_store_dword v{v.FV}, off, {sr(sWS,4)}, s{sUoff} sc1
        s_mov_b64 exec, -1
        K_NP{x}:
        """)
        ool.append(f"K_TAG{x}:\nbuffer_load_dword v{v.FV}, off, {sr(sDB,4)}, 0 sc1\ns_waitcnt vmcnt(0)\nv_readfirstlane_b32 s{sTag}, v{v.FV}\ns_cmp_eq_u32 s{sTag}, 0\ns_cbranch_scc1 K_TAG{x}\ns_branch K_TAGOK{x}")
    MC = opt.get("mc", 0)
    D, S, RK, AD = v.T, v.T + 8, v.T1, v.T1 + 8
    CW = v.E
    A(f"s_mul_i32 s22, s{sPair}, {CH*4}")
    srd(A, sD, PDST, CH * 4, add="s22")
    A(f"""
    v_lshlrev_b32 v{v.t1}, 2, v0
    s_movk_i32 s23, 0x2000
    buffer_load_dwordx4 {vr(D,4)}, v{v.t2}, {sr(sD,4)}, 0 offen
    buffer_load_dword v{D+4}, v{v.t1}, {sr(sD,4)}, s23 offen
    """)
    srd(A, sS, PSRC, CH * 4, add="s22")
    A(f"""
    buffer_load_dwordx4 {vr(S,4)}, v{v.t2}, {sr(sS,4)}, 0 offen
    buffer_load_dword v{S+4}, v{v.t1}, {sr(sS,4)}, s23 offen
    v_mov_b64 {P(CW)}, -1
    v_mov_b64 {P(CW+2)}, -1
    v_mov_b32 v{CW+4}, 0
    ds_write_b128 v{v.t2}, {vr(CW,4)}
    ds_write_b128 v{v.t2}, {vr(CW,4)} offset:8192
    ds_write_b128 v{v.t2}, {vr(CW,4)} offset:16384
    ds_write_b128 v{v.t2}, {vr(CW,4)} offset:24576
    ds_write_b32 v{v.t1}, v{CW+4} offset:32768
    """)
    srd(A, sWm, PWM, 272 * 256)
    EARLY0 = opt.get("e0", 0)
    P0M = opt.get("p0", 2)
    if P0M == 1:
        xdma(2); w23dma(False)
    nb0 = 3 if P0M == 1 else 0
    srd(A, sWS, PWS, 0x10000000 if opt.get('rw') else (WS_END if not ST else 0x1000000))
    sconsts()
    A(f"""
    v_lshlrev_b32 v{CW+6}, 22, v0
    v_add_u32 v{CW+7}, 0x800, v0
    v_lshlrev_b32 v{CW+7}, 20, v{CW+7}
    v_mov_b32 v{CW+5}, 16
    s_mov_b32 s72, -10
    s_mov_b32 s73, 0x100000
    s_mov_b32 s74, 0x200000
    s_mov_b32 s75, 0x300000
    s_lshl_b32 s78, s{sPair}, 15
    s_add_u32 s78, s78, {WS_CELL}
    v_mov_b32 v{CW+9}, {32768 + 1024}
    s_movk_i32 s79, {31*16}
    s_waitcnt lgkmcnt(0)
    s_barrier
    s_waitcnt vmcnt({2 + nb0})
    """)
    stamp(94)
    tagload("K_NT1")
    t = CW + 8
    for j in range(5):
        A(f"""
        v_mul_u32_u24 v{AD+j}, 0xcccd, v{D+j}
        v_lshrrev_b32 v{AD+j}, 19, v{AD+j}
        v_and_b32 v{AD+j}, -4, v{AD+j}
        ds_add_rtn_u32 v{RK+j}, v{AD+j}, v{CW+5} offset:32768
        """)
    if P0M == 1:
        wdma(32768, L_W2); nb0 += 4
    if P0M == 2:
        xdma(2); w23dma(); nb0 += 7
    for j in range(5):
        A(f"v_mad_i32_i24 v{D+j}, v{AD+j}, s72, v{D+j}")
    A(f"s_waitcnt vmcnt({nb0})")
    tagshare("A", CW + 9)
    for j in range(5):
        d = D + j
        A(f"v_lshl_or_b32 v{d}, v{d}, 14, v{S+j}")
        if j == 0: A(f"v_add_u32 v{d}, v{d}, v{CW+6}")
        elif j < 4: A(f"v_add3_u32 v{d}, v{d}, v{CW+6}, s{72+j}")
        else: A(f"v_add_u32 v{d}, v{d}, v{CW+7}")
    A("s_waitcnt lgkmcnt(0)")
    pt("rk")
    A(f"v_max3_u32 v{t}, v{RK}, v{RK+1}, v{RK+2}")
    A(f"v_max3_u32 v{t}, v{t}, v{RK+3}, v{RK+4}")
    A(f"v_cmp_le_u32 vcc, s79, v{t}")
    A("s_cbranch_vccnz K_BOVF")
    A("K_BOVB:")
    B = Asm()
    B("K_BOVF:")
    B(f"v_mov_b32 v{t}, -2")
    for j in range(5):
        B(f"v_cmp_le_u32 vcc, s79, v{RK+j}")
        B(f"v_min_u32 v{RK+j}, s79, v{RK+j}")
        B("s_nop 0")
        B(f"v_cndmask_b32 v{D+j}, v{D+j}, v{t}, vcc")
    B("s_branch K_BOVB")
    ool.append(B.text())
    for j in range(5):
        r = RK + j
        A(f"""
        v_lshrrev_b32 v{t}, 5, v{r}
        v_and_b32 v{r}, 0x70, v{r}
        v_and_or_b32 v{r}, v{t}, 12, v{r}
        v_lshl_add_u32 v{r}, v{AD+j}, 5, v{r}
        ds_write_b32 v{r}, v{D+j}
        """)
    A(f"""
    s_add_u32 s73, s78, 8192
    s_add_u32 s74, s78, 16384
    s_add_u32 s75, s78, 24576
    s_waitcnt lgkmcnt(0)
    s_barrier
    """)
    pt("cb")
    A(f"""
    ds_read_b32 v{v.FV}, v{CW+9}
    ds_read_b128 {vr(v.T,4)}, v{v.t2}
    ds_read_b128 {vr(v.T+4,4)}, v{v.t2} offset:8192
    ds_read_b128 {vr(v.T+8,4)}, v{v.t2} offset:16384
    ds_read_b128 {vr(v.T+12,4)}, v{v.t2} offset:24576
    s_waitcnt lgkmcnt(0)
    v_not_b32 v{v.T1+4}, v{v.FV}
    """)
    def mkoff(regs):
        if not opt.get("rw"): return
        A(f"v_readfirstlane_b32 s{sOff}, v{v.FV}")
        A(f"s_bfe_u32 s{sOff}, s{sOff}, 0x40006")
        A(f"s_max_u32 s{sOff}, s{sOff}, 1")
        A(f"s_lshl_b32 s{sOff}, s{sOff}, 24")
        for r in regs: A(f"s_add_u32 s{r}, s{r}, s{sOff}")
        A(f"s_add_u32 s{sP}, s{sP}, s{sOff}")
        A(f"s_addc_u32 s{sP+1}, s{sP+1}, 0")
    mkoff([78, 73, 74, 75])
    xred([v.T + 4*q for q in range(4)], [v.T1 + q for q in range(4)])
    A("s_mov_b32 exec_lo, 0x80808080")
    A("s_mov_b32 exec_hi, 0x80808080")
    for q in range(4):
        A(f"v_xor_b32 v{v.T+4*q+3}, v{v.T1+q}, v{v.T1+4}")
    A("s_mov_b64 exec, -1")
    for q in range(4):
        A(f"buffer_store_dwordx4 {vr(v.T+4*q,4)}, v{v.t2}, {sr(sWS,4)}, s{(78,73,74,75)[q]} offen {STF}")
    stamp(4)
    vconsts()
    A("s_waitcnt vmcnt(4)")
    A("s_branch K_COM0")
    A("K_GEMM:")
    pt("k0")
    if opt.get("wfirst"):
        srd(A, sWm, PWM, 272 * 256)
        wdma(0, 0)
        xdma(3)
    else:
        xdma(3)
        srd(A, sWm, PWM, 272 * 256)
        wdma(0, 0)
    G1M = opt.get("g1", 2)
    pt("g0")
    if G1M == 0: w23dma()
    pt("g1")
    srd(A, sWS, PWS, 0x10000000 if opt.get('rw') else (WS_END if not ST else 0x1000000))
    sconsts()
    XA = v.E; PA = v.E + 1; GA = v.E + 2; TN = v.E + 3
    A(f"""
    s_lshl_b32 s{sPair}, s{sPair}, 4
    s_add_u32 s{sPair}, s{sPair}, {WS_FLAG + 0x2000}
    s_mov_b32 s72, {NEG_LOG2E:#x}
    s_add_u32 s73, s{sUT}, 0x2000
    s_add_u32 s74, s{sUT}, 0x4000
    s_cmp_ge_u32 s3, 4
    s_cselect_b32 s74, 0x40000000, s74
    v_add_u32 v{v.JK3}, {L_BN}, v{v.t2}
    v_and_b32 v{XA}, 31, v{L}
    s_lshl_b32 s22, s{sG}, 5
    v_add_u32 v{XA}, s22, v{XA}
    s_waitcnt vmcnt({12 if G1M == 0 else 7})
    """)
    pt("g2")
    vconsts()
    A(f"""
    v_lshl_add_u32 v{TN}, v{H}, 11, v{TRA}
    s_lshl_b32 s22, s{sC}, 2
    v_lshl_add_u32 v{PA}, v{H}, 1, s22
    v_xor_b32 v{PA}, v{PA}, v{XA}
    v_and_b32 v{PA}, 15, v{PA}
    v_lshl_or_b32 v{PA}, v{XA}, 4, v{PA}
    s_mov_b32 s22, {L_BN}
    v_lshl_add_u32 v{PA}, v{PA}, 4, s22
    v_xor_b32 v{GA}, v{H}, v{XA}
    v_and_b32 v{GA}, 15, v{GA}
    v_lshl_or_b32 v{XA}, v{XA}, 4, v{GA}
    s_mov_b32 s22, {L_X}
    v_lshl_add_u32 v{XA}, v{XA}, 4, s22
    """)
    for s_ in range(1, 8):
        A(f"v_xor_b32 v{v.E+8+s_}, {s_*32}, v{XA}")
    pt("g3")
    if "gx" in PTS:
        A("s_waitcnt vmcnt(4)")
        pt("gx")
        A("s_waitcnt vmcnt(0)")
        pt("gw")
    if G1M == 1: w23dma()
    A(f"s_waitcnt vmcnt({5 if G1M < 2 else 0})")
    A("s_barrier")
    stamp(94)
    for s_ in range(8):
        A(f"ds_read_b64_tr_b16 {vr(v.WA+4*s_,2)}, v{TN} offset:{s_*4096}")
        A(f"ds_read_b64_tr_b16 {vr(v.WA+4*s_+2,2)}, v{TN} offset:{s_*4096+1024}")
        A(f"ds_read_b128 {vr(v.XF+4*s_,4)}, v{v.E+8+s_ if s_ else XA}")
    if G1M == 2: w23dma()
    A(f"s_cmp_lg_u32 s{sG}, 0")
    A("s_cbranch_scc1 K_G1")
    for s_ in range(8):
        A(f"ds_read_b128 {vr(v.U2+4*s_,4)}, v{v.E+8+s_ if s_ else XA} offset:16384")
    tagload("K_NT2")
    for s_ in range(8):
        A(f"s_waitcnt lgkmcnt({min(15, 3*(7-s_) + 8)})")
        A(mfma(v.T, v.WA + 4*s_, v.XF + 4*s_, "0" if s_ == 0 else None))
    for s_ in range(8):
        A(f"s_waitcnt lgkmcnt({7-s_})")
        A(mfma(v.T1, v.WA + 4*s_, v.U2 + 4*s_, "0" if s_ == 0 else None))
    def pout(acc, off, pk):
        for r in range(0, 16, 2):
            if pk:
                A(f"v_pk_mul_f32 {P(acc+r)}, {P(acc+r)}, s[72:73] op_sel_hi:[1,0]")
            else:
                A(f"v_mul_f32 v{acc+r}, s72, v{acc+r}")
                A(f"v_mul_f32 v{acc+r+1}, s72, v{acc+r+1}")
        for r in range(0, 16, 2):
            A(f"v_cvt_pk_bf16_f32 v{acc+r//2}, v{acc+r}, v{acc+r+1}")
        A(f"ds_write_b128 v{PA}, {vr(acc,4)} offset:{off}")
        A(f"ds_write_b128 v{GA}, {vr(acc+4,4)} offset:{off}")
    A(f"v_xor_b32 v{GA}, 16, v{PA}")
    pout(v.T, 0, False)
    pout(v.T1, 16384, True)
    A("s_branch K_G3")
    A("K_G1:")
    for s_ in range(8):
        A(f"s_waitcnt lgkmcnt({min(15, 3*(7-s_))})")
        A(mfma(v.T, v.WA + 4*s_, v.XF + 4*s_, "0" if s_ == 0 else None))
    A(f"v_xor_b32 v{GA}, 16, v{PA}")
    A("s_nop 10")
    pout(v.T, 0, False)
    A("K_G3:")
    pt("g4")
    A(f"v_mov_b32 v{v.JK}, {L_BN + 24576}")
    tagshare("B", v.JK)
    A(f"""
    s_waitcnt lgkmcnt(0)
    s_barrier
    ds_read_b32 v{v.FV}, v{v.JK}
    ds_read_b128 {vr(v.T,4)}, v{v.JK3}
    ds_read_b128 {vr(v.T+4,4)}, v{v.JK3} offset:8192
    ds_read_b128 {vr(v.T+8,4)}, v{v.JK3} offset:16384
    s_waitcnt lgkmcnt(2)
    """)
    mkoff([sUT, 73, 74])
    A(f"""
    buffer_store_dwordx4 {vr(v.T,4)}, v{XV}, {sr(sWS,4)}, s{sUT} offen {STF}
    s_waitcnt lgkmcnt(1)
    buffer_store_dwordx4 {vr(v.T+4,4)}, v{XV}, {sr(sWS,4)}, s73 offen {STF}
    s_waitcnt lgkmcnt(0)
    buffer_store_dwordx4 {vr(v.T+8,4)}, v{XV}, {sr(sWS,4)}, s74 offen {STF}
    """)
    stamp(4)
    A("s_waitcnt vmcnt(3)")
    A("K_COM0:")
    A(f"v_readfirstlane_b32 s{sTag}, v{v.FV}")
    qaddr()
    A("s_barrier")
    pt("c1")
    qreads()
    lds_init()
    pt("c2")
    qmfma()
    stamp(6)
    A("K_COMMON:")
    pt("c3")
    for r in range(0, 12, 2):
        A(f"v_pk_mul_f32 {P(v.E+r)}, {P(v.E+r)}, s[72:73] op_sel_hi:[1,0]")
    A(f"""
    v_cvt_pk_bf16_f32 v{v.QS}, v{v.E}, v{v.E+1}
    v_cvt_pk_bf16_f32 v{v.QS+1}, v{v.E+2}, v{v.E+3}
    v_cvt_pk_bf16_f32 v{v.QF+2}, v{v.E+4}, v{v.E+5}
    v_cvt_pk_bf16_f32 v{v.QF+3}, v{v.E+6}, v{v.E+7}
    v_cvt_pk_bf16_f32 v{v.QS+2}, v{v.E+8}, v{v.E+9}
    v_cvt_pk_bf16_f32 v{v.QS+3}, v{v.E+10}, v{v.E+11}
    s_lshl_b32 s{sUoff}, s{sC}, 13
    s_add_u32 s{sUoff}, s{sUoff}, {WS_U}
    """)
    def round_regs():
        A(f"""
        v_mov_b32 v{v.TPa+1}, v{v.IX0+1}
        v_mov_b32 v{v.TPb+1}, v{v.IX0+1}
        v_mov_b32 v{v.IEb+1}, v{v.IE+1}
        v_mov_b32 v{v.aggF}, 1
        v_mov_b64 {P(v.REC+4)}, -1
        v_mov_b64 {P(v.REC+6)}, -1
        v_add_u32 v{v.JK}, {64 * CH}, v{v.EB}
        """)
    def cell_addr():
        A(f"""
        s_lshl_b32 s22, s2, 7
        s_add_u32 s22, s22, {WS_CELL}
        {f"s_add_u32 s22, s22, s{sOff}" if opt.get("rw") else ""}
        s_add_u32 s23, s22, {64*32768}
        s_movk_i32 s76, {1000 - 512}
        v_cmp_gt_u32 s[76:77], s76, v0
        v_lshrrev_b32 v{v.t0}, 3, v0
        v_and_b32 v{v.t1}, 7, v0
        v_lshlrev_b32 v{v.t1}, 4, v{v.t1}
        v_lshl_add_u32 v{v.DS}, v{v.t0}, 15, v{v.t1}
        """)
    round_regs()
    A(f"""
    s_cmp_eq_u32 s{sRole}, 0
    s_cbranch_scc1 {"K2_B3" if opt.get("isl", 8) else "K2_B2"}
    s_waitcnt vmcnt(6)
    s_barrier
    s_cmp_eq_u32 s3, 0
    s_cbranch_scc1 K2_B1
    K2_B2:
    """)
    stamp(8)
    A("K2_CELLS:")
    cell_addr()
    A("s_mov_b64 s[74:75], -1")
    A("s_and_b32 s72, s76, 0x80808080")
    A("s_and_b32 s73, s77, 0x80808080")
    stamp(10)
    A(f"""
    K_POLL:
    s_mov_b64 exec, s[74:75]
    buffer_load_dwordx4 {vr(v.REC,4)}, v{v.DS}, {sr(sWS,4)}, s22 offen sc1
    s_mov_b64 exec, s[76:77]
    buffer_load_dwordx4 {vr(v.REC+4,4)}, v{v.DS}, {sr(sWS,4)}, s23 offen sc1
    s_mov_b64 exec, -1
    buffer_load_dword v{v.JK2}, off, {sr(sWS,4)}, s{sRel} sc1
    s_waitcnt vmcnt(0)
    """)
    xred([v.REC, v.REC + 4], [v.NS, v.NS + 1])
    A(f"""
    v_xor_b32 v{v.NS}, s{sTag}, v{v.NS}
    v_xor_b32 v{v.NS+1}, s{sTag}, v{v.NS+1}
    v_cmp_lt_u32 s[74:75], 1, v{v.NS}
    v_cmp_lt_u32 vcc, 1, v{v.NS+1}
    s_and_b64 s[76:77], s[76:77], vcc
    s_or_b64 s[78:79], s[74:75], s[76:77]
    s_cbranch_scc1 K_POLL2
    s_mov_b32 exec_lo, 0x80808080
    s_mov_b32 exec_hi, 0x80808080
    v_not_b32 v{v.REC+3}, v{v.NS}
    s_mov_b64 exec, s[72:73]
    v_not_b32 v{v.REC+7}, v{v.NS+1}
    s_mov_b64 exec, -1
    """)
    A(f"""
    s_cmp_lg_u32 s{sMode}, 0
    s_barrier
    s_cbranch_scc1 K2_COUNT
    ds_read_b128 {vr(v.SEL0,4)}, v{v.S0a}
    ds_read_b128 {vr(v.SEL1,4)}, v{v.S1a}
    K2_COUNT:
    """)
    ool.append(f"K2_B1:\ns_mov_b64 exec, 1\nbuffer_store_dword v{v.FV}, off, {sr(sWS,4)}, s{sPair} sc1\ns_mov_b64 exec, -1\ns_branch K2_B2")
    if opt.get("isl", 8): ool.append(f"K2_B3:\ns_waitcnt vmcnt(6)\ns_sleep {opt.get('isl', 8) - 1}\ns_branch K2_B2")
    ool.append(f"K_POLL2:\ns_sleep {opt.get('slp', 12)}\ns_branch K_POLL")
    stamp(12)
    ET = opt.get("et", 5)
    W0 = {0: v.W0, 1: v.W0 + 2, 4: v.W0 + 4, 5: v.W0 + 6}
    for j in range(8):
        main = j % 4 < 2
        body = f"""
        v_lshrrev_b32 v{v.AD+j}, 12, v{v.REC+j}
        v_and_b32 v{v.AD+j}, 0xfc, v{v.AD+j}
        s_mov_b64 exec, {sr(sM+2*j,2)}
        ds_add_rtn_u32 v{v.RANK+j}, v{v.AD+j}, v{v.aggF} offset:{CNT}
        """
        A(f"v_cmp_gt_u32 {sr(sM+2*j,2)}, -2, v{v.REC+j}")
        if main:
            A(body)
            A(f"v_lshrrev_b32 v{W0[j]+1}, 20, v{v.REC+j}")
            if ET:
                A(f"v_subrev_u32 v{v.t0}, 80, v{v.AD+j}")
            A(f"v_add_u32 v{W0[j]+1}, v{W0[j]+1}, v{v.EB if j < 4 else v.JK}")
            if ET:
                A(f"v_min_u32 v{v.t0}, v{v.t0}, v{v.AD+j}")
                A(f"v_cmpx_gt_u32 vcc, {4*ET}, v{v.t0}")
                A(f"buffer_load_dword v{v.JK3}, v{W0[j]+1}, {sr(sE,4)}, 0 idxen")
            A("s_mov_b64 exec, -1")
        else:
            l = A.label("cs"); lb = A.label("cb")
            body += "s_mov_b64 exec, -1\n"
            if j % 4 == 3:
                A(f"v_cmp_eq_u32 vcc, -2, v{v.REC+j}")
                A(f"s_or_b64 s[22:23], {sr(sM+2*j,2)}, vcc")
                body += f"s_cbranch_vccz {lb}\nv_mov_b32 v{v.t1}, {FLAG}\nds_write_b32 v{v.t1}, v{v.aggF}\n"
            else:
                A(f"s_cmp_lg_u64 {sr(sM+2*j,2)}, 0")
            A(f"s_cbranch_scc1 {l}")
            A(f"{lb}:")
            ool.append(f"{l}:\n{body}\ns_branch {lb}")
    NPF = opt.get("pf", 0)
    if NPF:
        A(f"""
        s_or_b32 s22, s3, s{sMode}
        s_cmp_lg_u32 s22, 0
        s_cbranch_scc1 K2_NOPF
        v_cmp_ne_u32 vcc, s{sTag}, v{v.JK2}
        s_cbranch_vccnz K2_NOPF
        s_mul_i32 s22, s{sSl}, 81920
        v_lshlrev_b32 v{v.t0}, 7, v{L}
        """)
        for q in range(NPF):
            A(f"buffer_load_dword v{v.JK3}, v{v.t0}, {sr(sWS,4)}, s22 offen")
            if q < NPF - 1: A("s_add_u32 s22, s22, 8192")
        A("K2_NOPF:")
    c = v.t0; pd = v.OHA
    A(f"""
    v_lshlrev_b32 v{v.t0}, 2, v{L}
    v_mov_b32 v{v.t1}, {FLAG}
    s_mul_i32 s22, s{sG}, 20
    s_add_u32 s22, s22, 8
    s_waitcnt lgkmcnt(0)
    s_barrier
    """)
    pt("b2")
    A(f"""
    ds_read_b32 v{v.t0}, v{v.t0} offset:{CNT}
    ds_read_b32 v{v.t1}, v{v.t1}
    s_waitcnt lgkmcnt(0)
    v_add_u32 v{c}, 3, v{c}
    v_and_b32 v{c}, -4, v{c}
    v_max_u32 v{c}, 4, v{c}
    v_cndmask_b32 v{pd}, 0, v{c}, {sr(sN40,2)}
    v_readfirstlane_b32 s23, v{v.t1}
    s_nop 0
    v_add_u32_dpp v{c}, v{pd}, v{pd} row_shr:1 row_mask:0xf bank_mask:0xf bound_ctrl:0
    s_nop 1
    v_add_u32_dpp v{c}, v{c}, v{c} row_shr:2 row_mask:0xf bank_mask:0xf bound_ctrl:0
    s_nop 1
    v_add_u32_dpp v{c}, v{c}, v{c} row_shr:4 row_mask:0xf bank_mask:0xf bound_ctrl:0
    s_nop 1
    v_add_u32_dpp v{c}, v{c}, v{c} row_shr:8 row_mask:0xf bank_mask:0xf bound_ctrl:0
    s_nop 1
    v_add_u32_dpp v{c}, v{c}, v{c} row_bcast:15 row_mask:0xa bank_mask:0xf
    s_nop 1
    v_add_u32_dpp v{c}, v{c}, v{c} row_bcast:31 row_mask:0xc bank_mask:0xf
    s_cmp_lg_u32 s23, -1
    s_cbranch_scc1 K2_OVF
    v_readlane_b32 s{sT0}, v{c}, 19
    v_readlane_b32 s{sT1}, v{c}, 39
    v_sub_u32 v{pd}, v{c}, v{pd}
    s_sub_u32 s23, {GSL}, s{sT0}
    v_add_u32 v{c}, s23, v{pd}
    v_cndmask_b32 v{pd}, v{pd}, v{c}, {sr(sG1,2)}
    v_add_u32 v{v.FV}, v{pd}, v{v.OHB}
    """)
    for j in (0, 1, 4, 5):
        A(f"ds_bpermute_b32 v{v.PK+j}, v{v.AD+j}, v{v.FV}")
    A(f"""
    v_readlane_b32 s{sTsw}, v{pd}, s22
    s_sub_u32 s{sT1}, s{sT1}, s{sT0}
    s_max_u32 s22, s{sT0}, s{sT1}
    s_cmp_gt_u32 s22, {GSL}
    s_cbranch_scc1 K2_OVF
    s_waitcnt lgkmcnt(0)
    """)
    pt("sc")
    for j in (0, 1, 4, 5, 2, 3, 6, 7):
        rare = (j % 4) >= 2
        w = v.W0 + 8 if rare else W0[j]
        body = f"""
        s_mov_b64 exec, {sr(sM+2*j,2)}
        v_add_u32_sdwa v{v.RANK+j}, v{v.PK+j}, v{v.RANK+j} dst_sel:DWORD dst_unused:UNUSED_PAD src0_sel:WORD_0 src1_sel:DWORD
        v_bfi_b32 v{w}, s{sK3F}, v{v.REC+j}, v{v.PK+j}
        v_lshlrev_b32 v{v.PK+j}, 3, v{v.RANK+j}
        v_lshrrev_b32 v{v.RANK+j}, 2, v{v.RANK+j}
        ds_write_b64 v{v.PK+j}, {P(w)} offset:{REC}
        ds_write_b8 v{v.RANK+j}, v{v.AD+j} offset:{QN}
        """
        if rare:
            l = A.label("ss"); lb = A.label("sb")
            A(f"s_cmp_lg_u64 {sr(sM+2*j,2)}, 0")
            A(f"s_cbranch_scc1 {l}")
            A(f"{lb}:")
            ool.append(f"{l}:\ns_mov_b64 exec, -1\nds_bpermute_b32 v{v.PK+j}, v{v.AD+j}, v{v.FV}\nv_lshrrev_b32 v{w+1}, 20, v{v.REC+j}\nv_add_u32 v{w+1}, v{w+1}, v{v.EB if j < 4 else v.JK}\ns_waitcnt lgkmcnt(0)\n{body}\ns_branch {lb}")
        else:
            A(body)
    A(f"""
    s_mov_b64 exec, -1
    s_or_b32 s22, s3, s{sMode}
    s_cmp_lg_u32 s22, 0
    s_cbranch_scc1 K2_RDY
    v_cmp_ne_u32 vcc, s{sTag}, v{v.JK2}
    s_cbranch_vccnz {"K2_SPOLL" if opt.get("sp", 1) else "K2_RPOLL"}
    K2_RDY:
    s_mov_b32 m0, s{sRing}
    s_waitcnt lgkmcnt(0)
    s_barrier
    """)
    ool.append(f"K2_RPOLL:\nbuffer_load_dword v{v.JK2}, off, {sr(sWS,4)}, s{sRel} sc1\ns_waitcnt vmcnt(0)\nv_cmp_ne_u32 vcc, s{sTag}, v{v.JK2}\ns_cbranch_vccz K2_RDY\ns_sleep 1\ns_branch K2_RPOLL")
    ool.append(f"K2_SPOLL:\ns_mov_b32 s23, 0\nK2_SP2:\ns_buffer_load_dword s22, {sr(sWS,4)}, s{sRel} glc\ns_waitcnt lgkmcnt(0)\ns_cmp_eq_u32 s22, s{sTag}\ns_cbranch_scc1 K2_RDY\ns_add_u32 s23, s23, 1\ns_cmp_lt_u32 s23, 16\ns_cbranch_scc1 K2_SP2\ns_branch K2_RPOLL")
    stamp(14)
    A(f"""
    ds_read_u16 v{v.IX0}, v{v.R1}
    ds_read_u16 v{v.IX1}, v{v.R1} offset:64
    ds_read_b32 v{v.IE}, v{v.Re}
    ds_read_u8 v{v.t0}, v0 offset:{QN}
    ds_read_u16 v{v.TPa}, v{v.R1} offset:256
    ds_read_u16 v{v.TPb}, v{v.R1} offset:320
    ds_read_b32 v{v.IEb}, v{v.Re} offset:1024
    ds_read_u8 v{v.OH0}, v{v.R2}
    ds_read_u8 v{v.OHA}, v{v.R2} offset:256
    s_waitcnt lgkmcnt(8)
    buffer_load_dwordx4 {P(v.IX0)}, {sr(sP,4)}, 0 idxen offen lds
    s_add_u32 m0, s{sRing}, 1024
    s_waitcnt lgkmcnt(7)
    buffer_load_dwordx4 {P(v.IX1)}, {sr(sP,4)}, 0 idxen offen lds
    s_mov_b32 m0, s{sE0}
    s_waitcnt lgkmcnt(5)
    buffer_load_dwordx4 {P(v.IE)}, {sr(sE,4)}, 0 idxen offen lds
    v_cmp_ne_u32 vcc, 0xff, v{v.t0}
    v_subrev_u32 v{v.t1}, 80, v{v.t0}
    v_min_u32 v{v.t0}, v{v.t0}, v{v.t1}
    v_lshl_add_u32 v{v.t1}, v{v.t0}, 3, v{v.QC}
    v_lshrrev_b32 v{v.t0}, 1, v{v.t0}
    v_and_b32 v{v.t0}, 16, v{v.t0}
    v_xor_b32 v{v.t1}, v{v.t1}, v{v.t0}
    v_mov_b32 v{v.t0}, 0x3f80
    s_mov_b64 exec, vcc
    ds_write_b16 v{v.t1}, v{v.t0}
    s_mov_b64 exec, -1
    s_add_u32 m0, s{sRing}, 2048
    s_waitcnt lgkmcnt(0)
    buffer_load_dwordx4 {P(v.TPa)}, {sr(sP,4)}, 0 idxen offen lds
    s_add_u32 m0, s{sRing}, 3072
    ds_read_u16 v{v.IX0}, v{v.R1} offset:512
    buffer_load_dwordx4 {P(v.TPb)}, {sr(sP,4)}, 0 idxen offen lds
    ds_read_u16 v{v.IX1}, v{v.R1} offset:576
    ds_read_u16 v{v.TPa}, v{v.R1} offset:768
    ds_read_u16 v{v.TPb}, v{v.R1} offset:832
    s_mul_i32 s22, s{sG}, {GSL}
    s_sub_u32 s{sTsw}, s{sTsw}, s22
    s_add_u32 s{sTsw}, s{sTsw}, 31
    s_lshr_b32 s{sTsw}, s{sTsw}, 5
    s_add_u32 s{sT0}, s{sT0}, 31
    s_lshr_b32 s{sT0}, s{sT0}, 5
    s_add_u32 s{sT1}, s{sT1}, 31
    s_lshr_b32 s{sT1}, s{sT1}, 5
    s_cmp_gt_u32 s{sT0}, s{sT1}
    s_cselect_b32 s{sLate}, 1, 0
    s_xor_b32 s{sLate}, s{sLate}, s{sG}
    s_cmp_eq_u32 s{sG}, 0
    s_cselect_b32 s{sTg}, s{sT0}, s{sT1}
    s_sub_u32 s{sUT}, s{sTg}, 9
    s_and_b32 s{sUT}, s{sUT}, -4
    s_add_u32 s{sUT}, s{sUT}, 1
    s_cmp_lt_u32 s{sTg}, 9
    s_cselect_b32 s{sUT}, {BIG}, s{sUT}
    s_cmp_lg_u32 s{sMode}, 0
    s_cselect_b32 s{sUT}, {BIG}, s{sUT}
    s_sub_u32 s22, s{sTg}, 1
    s_lshr_b32 s22, s22, 1
    s_mul_i32 s22, s22, 3072
    s_add_u32 s22, s22, {3072 + 2048}
    v_add_u32 v{v.LA}, s22, v{v.E_}
    s_add_u32 s{sEdst}, s{sE0}, {6144 if opt.get('ek', 3) == 3 else 12288}
    s_mov_b32 s{sTile}, 0
    v_mov_b32 v{v.PROG}, 1
    v_mov_b64 {P(v.QF)}, {P(v.QS)}
    v_mov_b64 {P(v.NS)}, 0
    v_mov_b64 {P(v.NS+2)}, 0
    v_mov_b64 {P(v.DS)}, {P(v.ONE)}
    v_mov_b64 {P(v.DS+2)}, {P(v.ONE)}
    v_mov_b64 {P(v.MSG)}, 0
    v_mov_b64 {P(v.aggF)}, 0
    v_mov_b64 {P(v.aggF+2)}, 0
    v_mov_b64 {P(v.S)}, 0
    s_cmp_lg_u32 s{sMode}, 0
    s_waitcnt vmcnt(2) lgkmcnt(0)
    s_barrier
    """)
    stamp(16)
    A(f"""
    ds_read_b128 {vr(v.ohF,4)}, v{v.OH0}
    ds_read_b128 {vr(v.eF,4)}, v{v.E_} offset:3072
    ds_read_b128 {vr(v.pF0,4)}, v{v.P0}
    ds_read_b128 {vr(v.pF1,4)}, v{v.P1}
    s_cbranch_scc1 K2_SAFEP
    """)
    def late_issue():
        A(f"""
        s_add_u32 m0, s{sRing}, 4096
        s_nop 0
        buffer_load_dwordx4 {P(v.IX0)}, {sr(sP,4)}, 0 idxen offen lds
        s_add_u32 m0, s{sRing}, 5120
        ds_read_u16 v{v.IX0}, v{v.R1} offset:1024
        buffer_load_dwordx4 {P(v.IX1)}, {sr(sP,4)}, 0 idxen offen lds
        """)
        if opt.get("ek", 3) == 2:
            A(f"""
            s_add_u32 m0, s{sE0}, 6144
            s_nop 0
            buffer_load_dwordx4 {P(v.IEb)}, {sr(sE,4)}, 0 idxen offen lds
            """)
        else:
            A(f"v_mov_b32 v{v.IE}, v{v.IEb}")
        A(f"""
        s_add_u32 m0, s{sRing}, 6144
        ds_read_u16 v{v.IX1}, v{v.R1} offset:1088
        buffer_load_dwordx4 {P(v.TPa)}, {sr(sP,4)}, 0 idxen offen lds
        s_add_u32 m0, s{sRing}, 7168
        s_nop 0
        buffer_load_dwordx4 {P(v.TPb)}, {sr(sP,4)}, 0 idxen offen lds
        """)
    chain(A, 3, "fast", None, ool, pre=True, mid=late_issue)
    A("K2_LOOP:")
    for k in range(4):
        stretch(A, k, "fast", ool)
        chain(A, k, "fast", "K2_EXIT", ool)
    A("s_branch K2_LOOP")
    A("K2_EXIT:")
    stamp(18)
    A(f"""
    s_setprio 0
    ds_read_b128 {vr(v.ohF,4)}, v{v.LA}
    v_rcp_f32 v{v.RS}, v{v.DS}
    v_rcp_f32 v{v.RS+1}, v{v.DS+1}
    v_rcp_f32 v{v.RS+2}, v{v.DS+2}
    v_rcp_f32 v{v.RS+3}, v{v.DS+3}
    v_fma_f32 v{v.S}, v{v.DS}, v{v.DS+2}, v{v.S}
    v_fma_f32 v{v.S+1}, v{v.DS+1}, v{v.DS+3}, v{v.S+1}
    v_mul_f32 v{v.NS}, v{v.NS}, v{v.RS}
    v_mul_f32 v{v.NS+1}, v{v.NS+1}, v{v.RS+1}
    v_mul_f32 v{v.NS+2}, v{v.NS+2}, v{v.RS+2}
    v_mul_f32 v{v.NS+3}, v{v.NS+3}, v{v.RS+3}
    K2_X2:
    s_bitcmp1_b32 s{sTg}, 0
    s_cbranch_scc0 K2_X3
    s_waitcnt lgkmcnt(1)
    {mfma(v.ACC, v.MSG, v.aggF)}
    v_cvt_pk_bf16_f32 v{v.MSG}, v{v.NS}, v{v.NS+1}
    v_cvt_pk_bf16_f32 v{v.MSG+1}, v{v.NS+2}, v{v.NS+3}
    s_branch K2_X4
    K2_X3:
    v_cvt_pk_bf16_f32 v{v.MSG+2}, v{v.NS}, v{v.NS+1}
    v_cvt_pk_bf16_f32 v{v.MSG+3}, v{v.NS+2}, v{v.NS+3}
    K2_X4:
    v_max_f32 v{v.S}, v{v.S}, v{v.S+1}
    s_waitcnt lgkmcnt(0)
    {mfma(v.ACC, v.MSG, v.ohF)}
    v_add_u32 v{v.t0}, s{sRing}, v{v.t3}
    s_cmp_eq_u32 s{sMode}, 1
    s_cbranch_scc1 K2_NEXTR
    K2_FIN:
    s_cmp_eq_u32 s{sUT}, {BIG}
    s_cbranch_scc1 K2_ULD
    K2_ULB:
    s_mov_b32 s22, {NEG_LN2:#x}
    s_mov_b32 s23, {f2u(2.0**60):#x}
    v_mov_b64 {P(v.NS)}, 0
    v_mov_b32 v{v.S+1}, 0
    s_lshl_b32 s76, s{sG}, 15
    s_add_u32 s76, s76, {RING}
    v_add_u32 v{v.t1}, s76, v{v.t3}
    v_mov_b32 v{v.JK}, {TRIP}
    """)
    B = Asm(); B("K2_ULD:")
    for i in range(16): u_load(B, i)
    B("s_branch K2_ULB"); ool.append(B.text())
    for s in range(8):
        A(f"v_pk_mul_f32 {P(v.ACC+2*s)}, {P(v.ACC+2*s)}, s[22:23] op_sel_hi:[1,0]")
    for s in range(8):
        A(f"v_cvt_pk_bf16_f32 v{v.E+s}, v{v.ACC+2*s}, v{v.ACC+2*s+1}")
    A("s_waitcnt vmcnt(0)")
    A(f"ds_write_b128 v{v.t0}, {vr(v.E,4)}")
    A(f"ds_write_b128 v{v.t0}, {vr(v.E+4,4)} offset:1024")
    for s in range(8):
        A(f"v_pk_fma_f32 {P(v.S)}, {P(v.ACC+2*s)}, {P(v.NS)}, {P(v.S)}")
    F = v.T; AG = v.T1
    A(f"""
    v_add_f32 v{v.S}, v{v.S}, v{v.S+1}
    v_cmp_nge_f32 vcc, s23, v{v.S}
    s_cbranch_vccnz K2_TRIP
    K2_TRB:
    s_cmp_lg_u32 s{sLate}, 0
    s_waitcnt lgkmcnt(0)
    s_cbranch_scc1 K2_LATE
    """)
    ool.append(f"K2_TRIP:\ns_cmp_lg_u32 s{sMode}, 0\ns_cbranch_scc1 K2_TRB\nds_write_b32 v{v.JK}, v{v.NS}\ns_branch K2_TRB")
    def rg():
        for s_ in range(8):
            A(mfma(F, v.U1 + 4*s_, v.XF + 4*s_, "0" if s_ == 0 else None))
    def rd():
        A("s_barrier")
        stamp(96)
        A(f"ds_read_b32 v{v.JK}, v{v.JK}")
        for s in range(8):
            A(f"ds_read_b128 {vr(AG+4*s,4)}, v{v.t1} offset:{(s >> 1) * 8192 + (s & 1) * 1024}")
    rg(); rd()
    if opt.get("ep2", 1): A("s_setprio 2")
    A("s_branch K2_JOIN")
    A("K2_LATE:")
    rd(); rg()
    A("K2_JOIN:")
    for s in range(8):
        A(f"s_waitcnt lgkmcnt({7-s})")
        A(mfma(F, v.U2 + 4*s, AG + 4*s))
    A(f"""
    s_setprio 0
    v_readfirstlane_b32 s23, v{v.JK}
    s_mov_b32 s22, {NEG_LOG2E:#x}
    s_cmp_eq_u32 s23, 0
    s_cbranch_scc1 K2_REDO
    s_cmp_lg_u32 s{sLate}, 0
    s_nop 5
    s_cbranch_scc1 K2_ACT2
    """)
    def act(pk):
        for r in range(0, 16, 2):
            if pk: A(f"v_pk_mul_f32 {P(v.E+r)}, {P(F+r)}, s[22:23] op_sel_hi:[1,0]")
            else:
                A(f"v_mul_f32 v{v.E+r}, s22, v{F+r}"); A(f"v_mul_f32 v{v.E+r+1}, s22, v{F+r+1}")
        for r in range(16):
            A(f"v_exp_f32 v{v.E+r}, v{v.E+r}")
        for r in range(0, 16, 2):
            if pk: A(f"v_pk_add_f32 {P(v.E+r)}, {P(v.E+r)}, {P(v.ONE)}")
            else:
                A(f"v_add_f32 v{v.E+r}, 1.0, v{v.E+r}"); A(f"v_add_f32 v{v.E+r+1}, 1.0, v{v.E+r+1}")
        for r in range(16):
            A(f"v_rcp_f32 v{v.E+r}, v{v.E+r}")
        for r in range(0, 16, 2):
            if pk: A(f"v_pk_mul_f32 {P(F+r)}, {P(F+r)}, {P(v.E+r)}")
            else:
                A(f"v_mul_f32 v{F+r}, v{F+r}, v{v.E+r}"); A(f"v_mul_f32 v{F+r+1}, v{F+r+1}, v{v.E+r+1}")
    act(not opt.get("ep2", 1))
    A("s_branch K2_ACT3")
    A("K2_ACT2:")
    act(True)
    A("K2_ACT3:")
    O = v.T1
    for r in range(8):
        A(f"v_cvt_pk_bf16_f32 v{O+r}, v{F+2*r}, v{F+2*r+1}")
    A(f"""
    s_nop 1
    v_permlane32_swap_b32 v{O}, v{O+2}
    v_permlane32_swap_b32 v{O+1}, v{O+3}
    v_permlane32_swap_b32 v{O+4}, v{O+6}
    v_permlane32_swap_b32 v{O+5}, v{O+7}
    buffer_store_dwordx4 {vr(O,4)}, v{v.OA}, {sr(sOUT,4)}, 0 offen {opt.get("ost", "").replace("_", " ")}
    buffer_store_dwordx4 {vr(O+4,4)}, v{v.OA}, {sr(sOUT,4)}, 0 offen offset:32 {opt.get("ost", "").replace("_", " ")}
    """)
    if ST:
        A("s_waitcnt vmcnt(0)")
        A("s_memtime s[98:99]")
        A("s_memrealtime s[100:101]")
        A(f"""
        s_lshl_b32 s22, s2, 3
        s_add_u32 s22, s22, s3
        s_lshl_b32 s22, s22, 6
        s_add_u32 s22, s22, 0xA00000
        v_mov_b32 v1, 0
        s_waitcnt lgkmcnt(0)
        """)
        for i, r in enumerate([90, 94, 4, 6, 8, 10, 12, 14, 16, 18, 96, 98, 92, 100, sTg] if not PTS else [90, 94, 4, 44, 46, 48, 50, 96, 6, 12, 14, 98, 92, 100, sTg]):
            A(f"v_mov_b32 v2, s{r}")
            A(f"buffer_store_dword v2, v1, {sr(sWS,4)}, s22 offen offset:{4*i}")
    A("K_END:")
    A("s_endpgm")
    for o in ool: A(o)
    del ool[:]
    A(f"""
    K_SPECIAL:
    s_memrealtime s[88:89]
    s_waitcnt lgkmcnt(0)
    """)
    wsadj()
    srd(A, sDB, PDBG, 256)
    srd(A, sWS, PWS, WS_END)
    A(f"""
    s_cmp_lg_u32 s2, 0
    s_cbranch_scc1 K_HELPER
    s_cmp_lg_u32 s3, 0
    s_cbranch_scc1 K_END
    s_or_b32 s{sTag}, s88, 1
    v_mov_b32 v1, s{sTag}
    s_mov_b64 exec, 1
    buffer_store_dword v1, off, {sr(sDB,4)}, 0 sc1
    s_mov_b64 exec, -1
    v_lshlrev_b32 v2, 4, v0
    v_cmp_gt_u32 vcc, {NCHUNK + 2 - 64}, v0
    v_add_u32 v4, 1024, v2
    s_mov_b32 s22, {WS_FLAG + 0x2000}
    v_cndmask_b32 v4, v2, v4, vcc
    v_lshlrev_b32 v3, 7, v0
    s_mov_b32 s23, {WS_FLAG + 0x4000}
    """)
    if MC:
        A(f"""
        v_cmp_gt_u32 vcc, {NCHUNK - 64}, v0
        v_add_u32 v5, 1024, v2
        s_mov_b32 s76, {WS_FLAG}
        v_cndmask_b32 v5, v2, v5, vcc
        s_mov_b32 s77, {WS_FLAG + 0x6000}
        K_MPOLL0:
        buffer_load_dword v8, v2, {sr(sWS,4)}, s76 offen sc1
        buffer_load_dword v9, v5, {sr(sWS,4)}, s76 offen sc1
        s_waitcnt vmcnt(0)
        v_xor_b32 v8, v1, v8
        v_xor_b32 v9, v1, v9
        v_or_b32 v8, v8, v9
        v_cmp_ne_u32 vcc, 0, v8
        s_cbranch_vccnz K_MPOLL0
        buffer_store_dword v1, v3, {sr(sWS,4)}, s77 offen sc1
        {"s_memrealtime s[92:93]" if ST else ""}
        """)
    A(f"""
    K_MPOLL:
    buffer_load_dword v8, v2, {sr(sWS,4)}, s22 offen sc1
    buffer_load_dword v9, v4, {sr(sWS,4)}, s22 offen sc1
    s_waitcnt vmcnt(0)
    v_xor_b32 v8, v1, v8
    v_xor_b32 v9, v1, v9
    v_or_b32 v8, v8, v9
    v_cmp_ne_u32 vcc, 0, v8
    s_cbranch_vccnz K_MPOLL
    buffer_store_dword v1, v3, {sr(sWS,4)}, s23 offen sc1
    {"s_memrealtime s[90:91]" if ST else ""}
    {"s_waitcnt lgkmcnt(0)" if ST else ""}
    {"v_mov_b32 v2, s90" if ST else ""}
    {f"buffer_store_dword v2, off, {sr(sDB,4)}, 0 offset:8" if ST else ""}
    {"v_mov_b32 v2, s92" if ST else ""}
    {f"buffer_store_dword v2, off, {sr(sDB,4)}, 0 offset:12" if ST else ""}
    s_endpgm
    K_HELPER:
    s_sub_u32 s87, s2, 1
    s_lshl_b32 s82, s87, 15
    s_lshl_b32 s77, s3, 12
    """)
    srd(A, sWm, PWU, 32768, add="s82")
    wdma(0, 0)
    A(f"""
    s_waitcnt vmcnt(4)
    s_lshl_b32 s22, s{sC}, 6
    v_xor_b32 v{TRA}, s22, v{TRA}
    v_lshrrev_b32 v{H}, 5, v{L}
    s_sub_u32 s22, 11, s87
    v_lshlrev_b32 v{H}, s22, v{H}
    v_add_u32 v{TRA}, v{TRA}, v{H}
    s_lshl_b32 s22, s{sG}, 14
    v_add_u32 v{TRA}, s22, v{TRA}
    s_lshl_b32 s22, 1024, s87
    v_add_u32 v{H}, s22, v{TRA}
    s_lshl_b32 s22, s{sC}, 13
    s_add_u32 s82, s82, s22
    s_lshl_b32 s22, s{sG}, 12
    s_add_u32 s82, s82, s22
    s_add_u32 s82, s82, {WS_U}
    s_waitcnt vmcnt(0)
    s_barrier
    """)
    for s_ in range(4):
        A(f"ds_read_b64_tr_b16 {vr(v.T+4*s_,2)}, v{TRA} offset:{s_*4096}")
        A(f"ds_read_b64_tr_b16 {vr(v.T+4*s_+2,2)}, v{H} offset:{s_*4096}")
    A("s_waitcnt lgkmcnt(0)")
    for s_ in range(4):
        A(f"buffer_store_dwordx4 {vr(v.T+4*s_,4)}, v{v.t3}, {sr(sWS,4)}, s82 offen offset:{s_*1024} sc1")
    A(f"""
    s_waitcnt vmcnt(0)
    s_barrier
    s_cmp_lg_u32 s3, 0
    s_cbranch_scc1 K_END
    K_HTAG:
    buffer_load_dword v1, off, {sr(sDB,4)}, 0 sc1
    s_waitcnt vmcnt(0)
    v_readfirstlane_b32 s22, v1
    s_cmp_eq_u32 s22, 0
    s_cbranch_scc1 K_HTAG
    s_lshl_b32 s22, s87, 4
    s_add_u32 s22, s22, {WS_FLAG + 0x2000 + NCHUNK * 16}
    s_mov_b64 exec, 1
    buffer_store_dword v1, off, {sr(sWS,4)}, s22 sc1
    s_endpgm
    """)
    A("K2_SAFEP:")
    chain(A, 3, "safe", None, ool, pre=True, mid=late_issue)
    A("K2_SAFE:")
    for k in range(4):
        stretch(A, k, "safe", ool)
        chain(A, k, "safe", "K2_SEXIT", ool)
    A("s_branch K2_SAFE")
    A(f"""
    K2_SEXIT:
    s_setprio 0
    ds_read_b128 {vr(v.ohF,4)}, v{v.LA}
    s_branch K2_X2
    """)
    def restore():
        A(f"""
        s_lshr_b32 s23, s{sTg}, 2
        s_mul_i32 s22, s23, 6144
        s_lshl_b32 s23, s23, 10
        v_subrev_u32 v{v.E_}, s22, v{v.E_}
        v_subrev_u32 v{v.R1}, s23, v{v.R1}
        v_subrev_u32 v{v.R2}, s23, v{v.R2}
        v_subrev_u32 v{v.Re}, s23, v{v.Re}
        """)
    A("K2_REDO:")
    restore()
    A(f"s_mov_b32 s{sMode}, 2")
    A("s_nop 7")
    for r in range(0, 16, 2):
        A(f"v_mov_b64 {P(v.ACC+r)}, 0")
    A("s_waitcnt vmcnt(0) lgkmcnt(0)")
    A("s_barrier")
    lds_init()
    round_regs()
    A("s_branch K2_CELLS")
    A(f"""
    K2_OVF:
    s_cmp_eq_u32 s{sMode}, 0
    s_cbranch_scc0 K2_OV2
    s_cmp_lg_u32 s3, 0
    s_cbranch_scc1 K2_OV2
    K2_OV1:
    buffer_load_dword v{v.JK2}, off, {sr(sWS,4)}, s{sRel} sc1
    s_waitcnt vmcnt(0)
    v_cmp_ne_u32 vcc, s{sTag}, v{v.JK2}
    s_cbranch_vccnz K2_OV1
    K2_OV2:
    s_mov_b32 s{sMode}, 1
    s_mov_b32 s{sRound}, 0
    s_branch K2_ROUND
    K2_NEXTR:
    s_add_u32 s{sRound}, s{sRound}, 1
    s_cmp_ge_u32 s{sRound}, {E // 512}
    s_cbranch_scc1 K2_FIN
    """)
    restore()
    A(f"""
    K2_ROUND:
    s_load_dwordx4 s[76:79], s[0:1], 16
    s_waitcnt vmcnt(0) lgkmcnt(0)
    s_barrier
    """)
    srd(A, sS, 76, E * 4)
    srd(A, sD, 78, E * 4)
    A(f"""
    s_lshl_b32 s22, s{sRound}, 9
    v_add_u32 v{v.EB}, s22, v0
    v_lshlrev_b32 v{v.t0}, 2, v{v.EB}
    buffer_load_dword v{v.REC}, v{v.t0}, {sr(sD,4)}, 0 offen
    buffer_load_dword v{v.REC+1}, v{v.t0}, {sr(sS,4)}, 0 offen
    """)
    lds_init()
    round_regs()
    A(f"""
    s_mul_i32 s22, s2, 40
    s_waitcnt vmcnt(0)
    v_subrev_u32 v{v.REC}, s22, v{v.REC}
    v_cmp_gt_u32 vcc, 40, v{v.REC}
    v_lshl_or_b32 v{v.t0}, v{v.REC}, 14, v{v.REC+1}
    v_mov_b32 v{v.REC+1}, -1
    v_cndmask_b32 v{v.REC}, -1, v{v.t0}, vcc
    v_mov_b64 {P(v.REC+2)}, -1
    s_barrier
    s_branch K2_COUNT
    """)
    for o in ool: A(o)
    A("K_CODE_END:")
    return A.text()

HEADER = """; MPNN edge-MLP layer, fused single kernel (generated by gen/fz9.py).
"""
def build(opt):
    out = HEADER + f"; @launch grid=({NWG},1,1) block=(512,1,1) lds={LDS_TOTAL}\n"
    out += '.amdgcn_target "amdgcn-amd-amdhsa--gfx950"\n.text\n'
    out += f".globl {KNAME}\n.p2align 8\n.type {KNAME},@function\n" + gen(opt)
    acc = (NV + 3) // 4 * 4
    out += f""".section .rodata,"a"
.p2align 8
K_TABLE:
{tables()}.p2align 6
.amdhsa_kernel {KNAME}
  .amdhsa_next_free_vgpr {NV}
  .amdhsa_next_free_sgpr 102
  .amdhsa_accum_offset {acc}
  .amdhsa_group_segment_fixed_size 0
  .amdhsa_kernarg_size 72
  .amdhsa_user_sgpr_count 2
  .amdhsa_user_sgpr_kernarg_segment_ptr 1
  .amdhsa_system_sgpr_workgroup_id_x 1
.end_amdhsa_kernel
"""
    return out

if __name__ == "__main__":
    opt = {}
    for a in sys.argv[2:]:
        k_, v_ = a.split("=")
        opt[k_] = int(v_) if v_.lstrip("-").isdigit() else v_
    open(sys.argv[1], "w").write(build(opt))
```

```python
import sys, struct
from gen import Asm, vr, sr, srd, f2u, NEG_LOG2E, NEG_LN2, PX, PE, PSRC, PDST, PWM, PWU, POUT, PDBG, PWS, load_ptrs

KNAME = "standalone__mpnn_edge_mlp__graph_kernel"
N = 10000; E = 320000
NBIN = 250; NCHUNK = 125; CH = 2560
WS_CELL = 0x280000
WS_FLAG = 0x700000
WS_U = 0x708000
WS_END = WS_U + 0x10000
NWG = NBIN + 3
BIG = 0x7fffffff

CNT = 0x100; QN = 0x200; FLAG = 0x3F0; TRIP = 0x3F4; REC = 0x400
TG = 26; GSL = TG * 32
REC_BYTES = (2 * GSL + 160) * 8
EA = REC + REC_BYTES
GEA = (TG // 2) * 3072
RING = EA + 2 * GEA
JUNK = RING + 65536
LDS_TOTAL = JUNK + 1024
FLG = CNT + 48 * 4
L_X = RING; L_W2 = RING + 0x6000; L_W3 = L_W2 + 32768; L_BN = 0x8000
assert RING % 256 == 0 and LDS_TOTAL <= 163840

class R: pass
v = R()
_n = 1
def alloc(name, n, align=1):
    global _n
    _n = (_n + align - 1) // align * align
    setattr(v, name, _n)
    _n += n
for nm in ("t0", "t1", "t2", "t3", "lane", "FW", "FV", "PROG", "JK", "JK2", "JK3", "OHA", "P1", "FR", "LA"):
    alloc(nm, 1)
TABN = ("E_", "R1", "R2", "Re", "P0", "EB", "QC", "OHB", "S0a", "FRo", "IXo", "IEo", "S1a", "TRA", "OAl", "Z_")
alloc("TAB", 0, 4)
for nm in TABN[:8]:
    alloc(nm, 1)
for nm in ("IX0", "IX1", "IE", "ONE", "S"):
    alloc(nm, 2, 2)
alloc("OA", 1)
for nm in ("W3F", "QF", "QS", "SEL0", "SEL1", "eF", "ohF", "pF0", "pF1", "aggF", "MSG", "NS", "DS", "RS"):
    alloc(nm, 4, 4)
for nm in ("T", "T1", "E", "ACC"):
    alloc(nm, 16, 4)
alloc("U1", 32, 4); alloc("U2", 32, 4); alloc("XF", 32, 4)
NV = _n
assert NV <= 256
for i_, nm in enumerate(TABN[8:]): setattr(v, nm, v.SEL0 + i_)
v.WA = v.ohF
assert v.RS == v.ohF + 28 and v.SEL1 == v.SEL0 + 4 and v.E == v.T1 + 16
v.REC = v.T; v.RANK = v.T + 8; v.AD = v.E; v.PK = v.E + 8
v.W0 = v.T1
v.TPa = v.T1 + 10; v.TPb = v.T1 + 12; v.IEb = v.T1 + 14; v.OH0 = v.pF1

sWS, sP, sE, sX, sOUT, sD, sS = 24, 28, 32, 36, 40, 44, 48
sG, sC, sTg, sTile, sTsw, sTag, sRing, sEdst, sMode, sRound, sRole, sElim = 52, 53, 54, 55, 56, 57, 58, 59, 60, 61, 62, 63
sM = 64
sWm = 64; sDB = 68
sTB = 80
sUT = 82; sLate = 83; sK3F = 84; sT0, sT1 = 85, 86; sRel = 87; sUoff = 88; sPair = 89
sN40 = 36; sG1 = 38; sSl = 101; sE0 = 100; sOff = 61

OPT = {}
def P(r): return f"v[{r}:{r+1}]"
def mfma(d, a, b, c=None):
    return f"v_mfma_f32_32x32x16_bf16 {vr(d,16)}, {vr(a,4)}, {vr(b,4)}, {vr(d,16) if c is None else c}"
def pi8v(m):
    return ((m & 5) << 5) | ((m & 18) << 2) | ((m & 8) << 1)

def tables():
    rows = []
    for l in range(64):
        m, h = l & 31, l >> 5
        a16 = 16 + ((l & 8) << 3) + ((l & 3) << 4)
        n_ = l - 20 if l >= 20 else l
        a16n = 16 + ((n_ & 8) << 3) + ((n_ & 3) << 4)
        ohb = (a16n << (16 + 8 * ((n_ >> 2) & 1))) if l < 40 else 0
        sel = a16 if ((l >> 2) & 1) == h else 0
        d = dict(
            E_=m * 32 + (((h ^ (m >> 3)) & 1) << 4) + EA - 3072,
            R1=pi8v(l >> 2) + REC, R2=pi8v(m) + h + 2 + REC, Re=pi8v(l >> 1) + 4 + REC,
            P0=m * 64 + ((((m >> 2) ^ (2 * h)) & 3) << 4) + RING,
            EB=(l >> 3) * CH,
            QC=(l >> 4) * 3072 + ((l & 4) << 2) + (l & 8) + ((l & 3) << 1) + EA + 2048,
            OHB=ohb, FRo=(l & 3) * 4 + FLG,
            IXo=(((l >> 4) ^ l) & 3) << 4, IEo=(((l >> 4) ^ l) & 1) << 4,
            S0a=sel if m < 16 else 0, S1a=sel if m >= 16 else 0,
            TRA=(l & 3) * 8 + ((l >> 2) & 3) * 256 + (((l >> 2) & 3) << 6) + ((l >> 4) & 1) * 32,
            OAl=(m * 256 + h * 16) if m < 20 else 0x40000000, Z_=0)
        rows.append([d[n] for n in TABN])
    out = []
    for b in range(4):
        for l in range(64):
            out.append(".long " + ", ".join(f"{x:#x}" for x in rows[l][4*b:4*b+4]))
    img = [0] * 256
    for e_ in range(8):
        img[4 * (e_ + 1) + (e_ >> 1)] = 0x3f80 << (16 * (e_ & 1))
    for i in range(128, 256): img[i] = 0xffffffff
    for i in range(0, 256, 4):
        out.append(".long " + ", ".join(f"{x:#x}" for x in img[i:i+4]))
    for i in range(64):
        out.append(".long 0xffff, 0xffffffff, 0xffff, 0xffffffff")
    return "\n".join(out) + "\n"

def lst(A, k, variant, r):
    if OPT.get("ls") and variant == "fast" and k == OPT["ls"] - 1: A(f"s_memtime s[{r}:{r+1}]")

def u_load(A, i):
    off = (i >> 3) * 32768 + (i & 7) * 1024
    A(f"s_add_u32 s22, s{sUoff}, {off & ~4095}")
    A(f"buffer_load_dwordx4 {vr(v.U1+4*i,4)}, v{v.t3}, {sr(sWS,4)}, s22 offen offset:{off & 4095}")

def chain(A, k, variant, exit_label, ool, pre=False, mid=None):
    kk = k if k < 3 else -1
    safe = variant == "safe"
    EK = OPT.get("ek", 3)
    if not pre:
        A("s_setprio 2")
        A(f"s_add_u32 s{sTile}, s{sTile}, 1")
        A(f"s_cmp_ge_u32 s{sTile}, s{sTg}")
        A(f"s_cbranch_scc1 {exit_label}")
        lsw = A.label("sw"); lswb = A.label("swb")
        A(f"s_cmp_eq_u32 s{sTile}, s{sTsw}")
        A(f"s_cbranch_scc1 {lsw}")
        A(f"{lswb}:")
        ool.append(f"{lsw}:\nv_mov_b32 v{v.QF}, v{v.QS+2}\nv_mov_b32 v{v.QF+1}, v{v.QS+3}\ns_branch {lswb}")
        lst(A, k, variant, 10)
    A("s_waitcnt lgkmcnt(0)")
    if k % 2 == 0:
        A(mfma(v.ACC, v.MSG, v.aggF))
    n = 4 + (1 if ((k - 1) & 3) == EK or ((k - 2) & 3) == EK else 0)
    if EK == 3 and k == 1: n = 2
    if pre: n = 4 if EK == 3 else 5
    k2_ = kk + 2
    eread = f"ds_read_b128 {vr(v.eF,4)}, v{v.E_} offset:{3072 + (k2_ >> 1) * 3072 + (k2_ & 1) * 1024}"
    if k == 2: A(f"ds_read_b32 v{v.FV}, v{v.FR}")
    A(mfma(v.T, v.eF, v.W3F, "0"))
    if k != 2: A(eread)
    A(mfma(v.T, v.ohF, v.QF))
    A(f"ds_read_b128 {vr(v.ohF,4)}, v{v.OHA}")
    A(f"ds_read_u8 v{v.OHA}, v{v.R2} offset:{(kk + 3) * 256}")
    A(mfma(v.T, v.pF0, v.SEL0))
    if k == 2:
        A("s_waitcnt lgkmcnt(2)")
        A(f"v_cmp_gt_u32 vcc, v{v.PROG}, v{v.FV}")
    A(mfma(v.T, v.pF1, v.SEL1))
    A(f"s_setprio 0")
    lst(A, k, variant, 14)
    n_after = 2
    if k == 2:
        lw = A.label("fw"); lb = A.label("fb")
        A(f"s_cbranch_vccnz {lw}")
        A(f"{lb}:")
        A(eread)
        ool.append(f"{lw}:\nds_read_b32 v{v.FV}, v{v.FR}\ns_waitcnt lgkmcnt(0)\nv_cmp_gt_u32 vcc, v{v.PROG}, v{v.FV}\ns_cbranch_vccnz {lw}\ns_branch {lb}")
        n_after += 2
    if mid: mid()
    A(f"s_waitcnt vmcnt({n})" + (" lgkmcnt(0)" if pre else ""))
    if k == 1:
        A("s_mov_b64 exec, 1")
        A(f"ds_write_b32 v{v.FW}, v{v.PROG}")
        A("s_mov_b64 exec, -1")
        n_after += 3
    if k == EK:
        A(f"s_cmp_lt_u32 s{sEdst}, s{sElim}")
        A(f"s_cselect_b32 m0, s{sEdst}, {JUNK}")
        A(f"s_add_u32 s{sEdst}, s{sEdst}, 6144")
        A(f"buffer_load_dwordx4 {P(v.IE)}, {sr(sE,4)}, 0 idxen offen lds")
        n_after += 4
    A(f"s_add_u32 m0, s{sRing}, {((k + 1) & 3) * 2048}")
    A(f"ds_read_b128 {vr(v.pF0,4)}, v{v.P0} offset:{((k + 2) & 3) * 2048}")
    A(f"buffer_load_dwordx4 {P(v.IX0)}, {sr(sP,4)}, 0 idxen offen lds")
    A(f"s_add_u32 m0, s{sRing}, {((k + 1) & 3) * 2048 + 1024}")
    A(f"ds_read_b128 {vr(v.pF1,4)}, v{v.P1} offset:{((k + 2) & 3) * 2048}")
    A(f"buffer_load_dwordx4 {P(v.IX1)}, {sr(sP,4)}, 0 idxen offen lds")
    A(f"ds_read_u16 v{v.IX0}, v{v.R1} offset:{(kk + 6) * 256}")
    A(f"ds_read_u16 v{v.IX1}, v{v.R1} offset:{(kk + 6) * 256 + 64}")
    n_after += 8
    if k % 2 == 1 and not pre:
        A(f"ds_read_b128 {vr(v.aggF,4)}, v{v.E_} offset:{(1 if k == 1 else 0) * 3072 + 2048}")
        n_after += 1
    if k == EK - 1:
        A(f"ds_read_b32 v{v.IE}, v{v.Re} offset:{2 * 1024}")
        n_after += 1
    if not safe and not pre:
        lv = A.label("uv"); lvb = A.label("vb")
        A(f"s_sub_u32 s23, s{sTile}, s{sUT}")
        A(f"s_cmp_lt_u32 s23, 8")
        A(f"s_cbranch_scc1 {lv}")
        A(f"{lvb}:")
        n_after += 3
        B = Asm()
        B(f"{lv}:")
        B(f"s_cmp_ge_u32 s23, 4")
        B(f"s_cbranch_scc1 {lv}x")
        u_load(B, 2*k); u_load(B, 2*k+1)
        B(f"s_branch {lvb}")
        B(f"{lv}x:")
        u_load(B, 8+2*k); u_load(B, 8+2*k+1)
        B(f"s_branch {lvb}")
        ool.append(B.text())
    if n_after < 12:
        A(f"s_nop {12 - n_after - 1}")
    lst(A, k, variant, 12)

def stretch(A, k, variant, ool):
    T = v.T; E = v.E
    order = [0, 1, 8, 9, 2, 3, 10, 11, 4, 5, 12, 13, 6, 7, 14, 15]
    lst(A, k, variant, 94)
    for r in order:
        A(f"v_exp_f32 v{E+r}, v{T+r}")
    if variant != "safe":
        for r in range(4):
            A(f"v_rcp_f32 v{v.RS+r}, v{v.DS+r}")
    if k == 3:
        for s in (f"v_add_u32 v{v.E_}, 6144, v{v.E_}", f"v_add_u32 v{v.R1}, 1024, v{v.R1}",
                  f"v_add_u32 v{v.R2}, 1024, v{v.R2}", f"v_add_u32 v{v.Re}, 1024, v{v.Re}"): A(s)
    if k == 0:
        A(f"v_add_u32 v{v.PROG}, 1, v{v.PROG}")
    lst(A, k, variant, 4)
    A("s_setprio 1")
    mo = v.MSG + 2 * ((k + 1) % 2)
    if variant != "safe":
        A(f"v_pk_fma_f32 {P(v.S)}, {P(v.DS)}, {P(v.DS+2)}, {P(v.S)}")
        A(f"v_pk_mul_f32 {P(v.NS)}, {P(v.NS)}, {P(v.RS)}")
        A(f"v_pk_mul_f32 {P(v.NS+2)}, {P(v.NS+2)}, {P(v.RS+2)}")
    A(f"v_cvt_pk_bf16_f32 v{mo}, v{v.NS}, v{v.NS+1}")
    A(f"v_cvt_pk_bf16_f32 v{mo+1}, v{v.NS+2}, v{v.NS+3}")
    lst(A, k, variant, 6)
    if variant != "safe":
        ops = []
        for gi, g in enumerate((0, 8)):
            t, e = T + g, E + g
            o = [f"v_pk_add_f32 {P(e)}, {P(e)}, {P(v.ONE)}"]
            for u in (1, 2, 3):
                o.append(f"v_pk_fma_f32 {P(t)}, {P(t)}, {P(e+2*u)}, {P(t)}")
                o.append(f"v_pk_fma_f32 {P(t if u < 3 else v.NS+2*gi)}, {P(t+2*u)}, {P(e)}, {P(t)}")
                o.append(f"v_pk_fma_f32 {P(e if u < 3 else v.DS+2*gi)}, {P(e)}, {P(e+2*u)}, {P(e)}")
            ops.append(o)
        for a, b in zip(*ops):
            A(a); A(b)
    else:
        for r in range(0, 16, 2):
            A(f"v_pk_add_f32 {P(E+r)}, {P(E+r)}, {P(v.ONE)}")
        for r in range(16):
            A(f"v_rcp_f32 v{E+r}, v{E+r}")
        A("s_nop 0")
        for u in range(4):
            for gi, g in enumerate((0, 8)):
                if u == 0:
                    A(f"v_pk_mul_f32 {P(T+g)}, {P(T+g)}, {P(E+g)}")
                else:
                    A(f"v_pk_fma_f32 {P(T+g if u < 3 else v.NS+2*gi)}, {P(T+g+2*u)}, {P(E+g+2*u)}, {P(T+g)}")
    lst(A, k, variant, 8)

def gen(opt):
    OPT.clear(); OPT.update(opt)
    A = Asm()
    L = v.lane
    ST = opt.get("stamp", 0)
    PTS = opt.get("pts", "").split(",") if opt.get("pts") else []
    PSL = [44, 46, 48, 50, 96]
    def pt(name):
        if name in PTS:
            r = PSL[PTS.index(name)]
            A(f"s_memtime s[{r}:{r+1}]")
    def stamp(r, real=False):
        if PTS and r == 96: return
        if opt.get("ls") and r in (94, 4, 6, 8, 10, 12, 14): return
        if ST: A(f"s_mem{'real' if real else ''}time s[{r}:{r+1}]")
    ool = []
    STF = opt.get("stf", "sc1").replace("_", " ")
    WV = v.eF; XV = v.eF + 1; H = v.eF + 2; TRA = v.TRA
    A(f"{KNAME}:")
    stamp(90); stamp(92, True)
    A(f"s_cmp_ge_u32 s2, {NWG}")
    A("s_cbranch_scc1 K_END")
    load_ptrs(A)
    A(f"""
    v_lshrrev_b32 v{v.t0}, 6, v0
    v_and_b32 v{L}, 63, v0
    v_readfirstlane_b32 s3, v{v.t0}
    v_lshlrev_b32 v{v.t3}, 4, v{L}
    s_getpc_b64 {sr(sTB,2)}
    s_add_u32 s{sTB}, s{sTB}, K_TABLE@rel32@lo+4
    s_addc_u32 s{sTB+1}, s{sTB+1}, K_TABLE@rel32@hi+12
    global_load_dwordx4 {vr(v.SEL1,4)}, v{v.t3}, {sr(sTB,2)} offset:3072
    global_load_dwordx4 {vr(v.TAB,4)}, v{v.t3}, {sr(sTB,2)}
    global_load_dwordx4 {vr(v.TAB+4,4)}, v{v.t3}, {sr(sTB,2)} offset:1024
    global_load_dwordx4 {vr(v.SEL0,4)}, v{v.t3}, {sr(sTB,2)} offset:2048
    v_lshlrev_b32 v{v.t2}, 4, v0
    v_lshrrev_b32 v{WV}, 2, v{v.t3}
    v_lshrrev_b32 v{XV}, 4, v{v.t2}
    v_and_b32 v{WV}, 0xc0, v{WV}
    v_and_b32 v{XV}, 0xf0, v{XV}
    v_xor_b32 v{WV}, v{WV}, v{v.t3}
    v_xor_b32 v{XV}, v{XV}, v{v.t2}
    s_lshr_b32 s{sG}, s3, 2
    s_and_b32 s{sC}, s3, 3
    s_cmp_lt_u32 s2, 8
    s_cbranch_scc1 K_LOW
    K_LOWB:
    s_sub_u32 s23, s2, 3
    s_lshr_b32 s{sSl}, s23, 3
    s_cmp_ge_u32 s23, {NCHUNK}
    s_cselect_b32 s{sRole}, {1 - opt.get("r1f", 1)}, {opt.get("r1f", 1)}
    s_cselect_b32 s22, {NCHUNK}, 0
    s_sub_u32 s{sPair}, s23, s22
    s_lshl_b32 s2, s{sPair}, 1
    s_add_u32 s2, s2, s{sRole}
    s_mul_i32 s{sUT}, s{sPair}, {80*256}
    s_sub_u32 s{sX+2}, {N*256}, s{sUT}
    s_mov_b32 s{sX+3}, 0x00020000
    s_lshl_b32 s76, s3, 10
    s_add_u32 s77, s3, s{sSl}
    s_and_b32 s77, s77, {7 if opt.get("rot", 1) else 0}
    {"" if opt.get("rot", 1) else "s_mov_b32 s77, s3"}
    s_lshl_b32 s77, s77, 12
    s_cmp_eq_u32 s{sRole}, 0
    s_waitcnt lgkmcnt(0)
    """)
    def wsadj():
        if opt.get("wsoff"):
            A(f"s_add_u32 s{PWS}, s{PWS}, {opt['wsoff'] << 20}")
            A(f"s_addc_u32 s{PWS+1}, s{PWS+1}, 0")
    wsadj()
    if opt.get("wsoff"): A(f"s_cmp_eq_u32 s{sRole}, 0")
    A("s_cbranch_scc0 K_GEMM")
    ool.append(f"""K_LOW:
    s_cmp_lg_u32 s3, 7
    s_cbranch_scc1 K_LOW2
    s_getpc_b64 s[22:23]
    K_PC:
    s_sub_u32 s22, s22, K_PC-{KNAME}
    s_subb_u32 s23, s23, 0
    v_lshlrev_b32 v{v.JK}, 7, v{L}
    v_add_u32 v{v.JK2}, 0x2000, v{v.JK}
    v_min_u32 v{v.JK2}, K_CODE_END-{KNAME}-4, v{v.JK2}
    global_load_dword v{v.PROG}, v{v.JK}, s[22:23]
    global_load_dword v{v.FV}, v{v.JK2}, s[22:23]
    K_LOW2:
    s_cmp_lt_u32 s2, 3
    s_cbranch_scc1 K_SPECIAL
    s_branch K_LOWB""")
    def xdma(n):
        A(f"""
        s_add_u32 s{sX}, s{PX}, s{sUT}
        s_addc_u32 s{sX+1}, s{PX+1}, 0
        s_add_u32 m0, s76, {L_X}
        s_movk_i32 s23, 0x2000
        buffer_load_dwordx4 v{XV}, {sr(sX,4)}, 0 offen lds
        s_add_u32 m0, s76, {L_X + 8192}
        s_movk_i32 s22, 0x4000
        buffer_load_dwordx4 v{XV}, {sr(sX,4)}, s23 offen lds
        """)
        if n == 3:
            A(f"s_add_u32 m0, s76, {L_X + 16384}")
            A("s_nop 0")
            A(f"buffer_load_dwordx4 v{XV}, {sr(sX,4)}, s22 offen lds")
    def wdma(soff, lds):
        A(f"s_add_u32 m0, s77, {lds}")
        if soff: A(f"s_add_u32 s22, s77, {soff}")
        else: A("s_nop 0")
        for q in range(4):
            A(f"buffer_load_dwordx4 v{WV}, {sr(sWm,4)}, s{22 if soff else 77} offen offset:{q*1024} lds")
    def w23dma(w2=True):
        if w2: wdma(32768, L_W2)
        A(f"s_add_u32 m0, s76, {L_W3}")
        A(f"s_add_u32 s22, s76, 65536")
        A(f"buffer_load_dwordx4 v{WV}, {sr(sWm,4)}, s22 offen lds")
    def sconsts():
        srd(A, sP, PWS, 0 if opt.get('nop') else N, stride=256)
        srd(A, sE, PE, 0 if opt.get('noe') else E, stride=32)
        srd(A, sOUT, POUT, N * 256)
        srd(A, sDB, PDBG, 256)
        A(f"""
        s_mov_b32 s{sMode}, 0
        s_movk_i32 s{sK3F}, 0x3fff
        s_lshl_b32 s{sRing}, s3, 13
        s_lshr_b32 s22, s{sC}, 1
        s_mul_i32 s22, s22, 3072
        s_bfe_u32 s23, s{sC}, 0x10000
        s_lshl_b32 s23, s23, 10
        s_add_u32 s22, s22, s23
        s_mul_i32 s{sElim}, s{sG}, {GEA}
        s_add_u32 s{sE0}, s{sElim}, s22
        s_add_u32 s{sE0}, s{sE0}, {EA}
        s_and_b32 s{sRel}, s2, 63
        s_lshl_b32 s{sRel}, s{sRel}, 7
        s_add_u32 s{sRel}, s{sRel}, {WS_FLAG + 0x4000}
        """)
    def vconsts():
        A(f"""
        v_add_u32 v{v.P0}, s{sRing}, v{v.P0}
        v_add_u32 v{v.E_}, s{sElim}, v{v.E_}
        s_mul_i32 s22, s{sG}, {GSL*8}
        v_xor_b32 v{v.P1}, 16, v{v.P0}
        v_add_u32 v{v.R1}, s22, v{v.R1}
        v_add_u32 v{v.R2}, s22, v{v.R2}
        s_lshl_b32 s23, s{sC}, 8
        s_add_u32 s22, s22, s23
        v_add_u32 v{v.Re}, s22, v{v.Re}
        s_lshl_b32 s22, s{sC}, 6
        v_or_b32 v{v.IX0+1}, s22, v{v.IXo}
        v_or_b32 v{v.IX1+1}, s22, v{v.IXo}
        v_xor_b32 v{TRA}, s22, v{TRA}
        s_mul_i32 s23, s2, 40
        s_mul_i32 s78, s{sG}, 20
        s_add_u32 s23, s23, s78
        s_lshl_b32 s23, s23, 8
        s_add_u32 s23, s23, s22
        v_add_u32 v{v.OA}, s23, v{v.OAl}
        v_mov_b32 v{v.IE+1}, v{v.IEo}
        s_mul_i32 s22, s3, {8*CH}
        v_add_u32 v{v.EB}, s22, v{v.EB}
        s_mul_i32 s22, s3, {4*3072}
        v_add_u32 v{v.QC}, s22, v{v.QC}
        s_lshl_b32 s22, s3, 2
        v_add_u32 v{v.FW}, s22, v{v.FRo}
        s_lshl_b32 s22, s{sG}, 4
        v_add_u32 v{v.FR}, s22, v{v.FRo}
        v_lshrrev_b32 v{H}, 5, v{L}
        s_add_u32 s{sRing}, s{sRing}, {RING}
        s_add_u32 s{sElim}, s{sElim}, {EA + GEA}
        """)
    def lds_init():
        A(f"""
        s_mul_i32 s22, s3, 3072
        s_add_u32 m0, s22, {EA + 2048}
        s_brev_b32 s23, 2
        buffer_load_dwordx4 v{v.t3}, {sr(sWS,4)}, s23 offen lds
        s_add_u32 m0, s22, {EA + 2048 + 24576}
        s_cmp_lt_u32 s3, 2
        buffer_load_dwordx4 v{v.t3}, {sr(sWS,4)}, s23 offen lds
        s_cselect_b32 s78, 0, {JUNK - (EA + 2048 + 73728) - 7 * 3072}
        s_add_u32 m0, s22, {EA + 2048 + 49152}
        s_cselect_b32 s79, s22, {7 * 3072}
        buffer_load_dwordx4 v{v.t3}, {sr(sWS,4)}, s23 offen lds
        """.replace("s_cselect_b32 s78, 0, " + str(JUNK - (EA + 2048 + 73728) - 7 * 3072) + "\n", "").replace(
            f"        s_add_u32 m0, s22, {EA + 2048 + 49152}\n        s_cselect_b32 s79, s22, {7 * 3072}\n",
            f"        s_cselect_b32 s79, s22, {JUNK - (EA + 2048 + 73728)}\n        s_add_u32 m0, s22, {EA + 2048 + 49152}\n        s_lshl_b32 s22, s3, 10\n"))
        A(f"""
        s_add_u32 m0, s79, {EA + 2048 + 73728}
        s_add_u32 s78, s{sTB}, 4096
        buffer_load_dwordx4 v{v.t3}, {sr(sWS,4)}, s23 offen lds
        s_addc_u32 s79, s{sTB+1}, 0
        s_add_u32 m0, s22, {REC - 1024}
        s_cmp_eq_u32 s3, 7
        global_load_lds_dwordx4 v{v.t3}, s[78:79] offset:1024
        s_cbranch_scc1 {A.label('i7')}
        """)
        l7 = f"L_i7_{A.uid}"
        A(f"""
        s_add_u32 m0, s22, {REC + 8192 - 1024}
        s_nop 0
        global_load_lds_dwordx4 v{v.t3}, s[78:79] offset:1024
        {l7}b:
        """)
        ool.append(f"{l7}:\ns_mov_b32 m0, 0\ns_nop 0\nglobal_load_lds_dwordx4 v{v.t3}, s[78:79]\ns_branch {l7}b")
    def tagshare(x, va):
        A(f"""
        s_cmp_lg_u32 s3, 0
        s_cbranch_scc1 K_NS{x}
        {"s_waitcnt vmcnt(0)" if x == "B" else ""}
        K_TAGOK{x}:
        v_cmp_eq_u32 vcc, 0, v{v.FV}
        s_cbranch_vccnz K_TAG{x}
        ds_write_b32 v{va}, v{v.FV}
        K_NS{x}:
        """)
        ool.append(f"K_TAG{x}:\nbuffer_load_dword v{v.FV}, off, {sr(sDB,4)}, 0 sc1\ns_waitcnt vmcnt(0)\ns_branch K_TAGOK{x}")
    def xred(regs, xs):
        for r, x in zip(regs, xs): A(f"v_bitop3_b32 v{x}, v{r}, v{r+1}, v{r+2} bitop3:0x96")
        for r, x in zip(regs, xs): A(f"v_xor_b32 v{x}, v{x}, v{r+3}")
        for pat in ("quad_perm:[1,0,3,2]", "quad_perm:[2,3,0,1]", "row_half_mirror"):
            if len(xs) < 3: A(f"s_nop {2 - len(xs)}")
            for x in xs: A(f"v_xor_b32_dpp v{x}, v{x}, v{x} {pat} row_mask:0xf bank_mask:0xf")
    def tagload(lbl):
        A(f"""
        s_cmp_lg_u32 s3, 0
        s_cbranch_scc1 {lbl}
        buffer_load_dword v{v.FV}, off, {sr(sDB,4)}, 0 sc1
        {lbl}:
        """)
    def qaddr():
        XA = v.E; GA = v.E + 1; TN = v.E + 2
        A(f"""
        s_mul_i32 s22, s{sG}, 20
        s_mul_i32 s23, s{sRole}, 40
        s_add_u32 s22, s22, s23
        v_and_b32 v{XA}, 31, v{L}
        v_add_u32 v{XA}, s22, v{XA}
        v_xor_b32 v{GA}, v{XA}, v{H}
        v_and_b32 v{GA}, 15, v{GA}
        v_lshl_or_b32 v{XA}, v{XA}, 4, v{GA}
        s_mov_b32 s22, {L_X}
        v_lshl_add_u32 v{XA}, v{XA}, 4, s22
        v_lshl_add_u32 v{TN}, v{H}, 11, v{TRA}
        v_add_u32 v{TN}, {L_W2}, v{TN}
        """)
    def qreads():
        XA = v.E; GA = v.E + 1; TN = v.E + 2
        for s_ in range(8):
            A(f"ds_read_b64_tr_b16 {vr(v.WA+4*s_,2)}, v{TN} offset:{s_*4096}")
            A(f"ds_read_b64_tr_b16 {vr(v.WA+4*s_+2,2)}, v{TN} offset:{s_*4096+1024}")
            if s_: A(f"v_xor_b32 v{GA}, {s_*32}, v{XA}")
            A(f"ds_read_b128 {vr(v.XF+4*s_,4)}, v{GA if s_ else XA}")
        A(f"ds_read_b64_tr_b16 {vr(v.W3F,2)}, v{TN} offset:32768")
        A(f"ds_read_b64_tr_b16 {vr(v.W3F+2,2)}, v{TN} offset:33792")
    def qmfma():
        for s_ in range(8):
            A(f"s_waitcnt lgkmcnt({min(15, 3*(7-s_) + 2)})")
            A(mfma(v.E, v.XF + 4*s_, v.WA + 4*s_, "0" if s_ == 0 else None))
            A(f"v_mov_b64 {P(v.ACC+2*s_)}, 0")
        A(f"""
        s_mov_b32 s72, {NEG_LOG2E:#x}
        v_cmp_gt_u32 {sr(sN40,2)}, 40, v{L}
        v_cmp_le_u32 {sr(sG1,2)}, 20, v{L}
        v_mov_b32 v{v.ONE}, 1.0
        v_mov_b32 v{v.ONE+1}, 1.0
        s_waitcnt lgkmcnt(0)
        """)
        for r in range(4):
            A(f"""
            v_lshlrev_b32 v{v.S}, 16, v{v.W3F+r}
            v_and_b32 v{v.S+1}, 0xffff0000, v{v.W3F+r}
            v_mul_f32 v{v.S}, s72, v{v.S}
            v_mul_f32 v{v.S+1}, s72, v{v.S+1}
            v_cvt_pk_bf16_f32 v{v.W3F+r}, v{v.S}, v{v.S+1}
            """)
    def post(x):
        A(f"""
        s_cmp_lg_u32 s3, 0
        s_cbranch_scc1 K_NP{x}
        v_readfirstlane_b32 s{sTag}, v{v.FV}
        s_cmp_eq_u32 s{sTag}, 0
        s_cbranch_scc1 K_TAG{x}
        K_TAGOK{x}:
        s_mov_b64 exec, 1
        buffer_store_dword v{v.FV}, off, {sr(sWS,4)}, s{sUoff} sc1
        s_mov_b64 exec, -1
        K_NP{x}:
        """)
        ool.append(f"K_TAG{x}:\nbuffer_load_dword v{v.FV}, off, {sr(sDB,4)}, 0 sc1\ns_waitcnt vmcnt(0)\nv_readfirstlane_b32 s{sTag}, v{v.FV}\ns_cmp_eq_u32 s{sTag}, 0\ns_cbranch_scc1 K_TAG{x}\ns_branch K_TAGOK{x}")
    MC = opt.get("mc", 0)
    D, S, RK, AD = v.T, v.T + 8, v.T1, v.T1 + 8
    CW = v.E
    A(f"s_mul_i32 s22, s{sPair}, {CH*4}")
    srd(A, sD, PDST, CH * 4, add="s22")
    A(f"""
    v_lshlrev_b32 v{v.t1}, 2, v0
    s_movk_i32 s23, 0x2000
    buffer_load_dwordx4 {vr(D,4)}, v{v.t2}, {sr(sD,4)}, 0 offen
    buffer_load_dword v{D+4}, v{v.t1}, {sr(sD,4)}, s23 offen
    """)
    srd(A, sS, PSRC, CH * 4, add="s22")
    A(f"""
    buffer_load_dwordx4 {vr(S,4)}, v{v.t2}, {sr(sS,4)}, 0 offen
    buffer_load_dword v{S+4}, v{v.t1}, {sr(sS,4)}, s23 offen
    v_mov_b64 {P(CW)}, -1
    v_mov_b64 {P(CW+2)}, -1
    v_mov_b32 v{CW+4}, 0
    ds_write_b128 v{v.t2}, {vr(CW,4)}
    ds_write_b128 v{v.t2}, {vr(CW,4)} offset:8192
    ds_write_b128 v{v.t2}, {vr(CW,4)} offset:16384
    ds_write_b128 v{v.t2}, {vr(CW,4)} offset:24576
    ds_write_b32 v{v.t1}, v{CW+4} offset:32768
    """)
    srd(A, sWm, PWM, 272 * 256)
    EARLY0 = opt.get("e0", 0)
    P0M = opt.get("p0", 2)
    if P0M == 1:
        xdma(2); w23dma(False)
    nb0 = 3 if P0M == 1 else 0
    srd(A, sWS, PWS, 0x10000000 if opt.get('rw') else (WS_END if not ST else 0x1000000))
    sconsts()
    A(f"""
    v_lshlrev_b32 v{CW+6}, 22, v0
    v_add_u32 v{CW+7}, 0x800, v0
    v_lshlrev_b32 v{CW+7}, 20, v{CW+7}
    v_mov_b32 v{CW+5}, 16
    s_mov_b32 s72, -10
    s_mov_b32 s73, 0x100000
    s_mov_b32 s74, 0x200000
    s_mov_b32 s75, 0x300000
    s_lshl_b32 s78, s{sPair}, 15
    s_add_u32 s78, s78, {WS_CELL}
    v_mov_b32 v{CW+9}, {32768 + 1024}
    s_movk_i32 s79, {31*16}
    s_waitcnt lgkmcnt(0)
    s_barrier
    s_waitcnt vmcnt({2 + nb0})
    """)
    stamp(94)
    tagload("K_NT1")
    t = CW + 8
    for j in range(5):
        A(f"""
        v_mul_u32_u24 v{AD+j}, 0xcccd, v{D+j}
        v_lshrrev_b32 v{AD+j}, 19, v{AD+j}
        v_and_b32 v{AD+j}, -4, v{AD+j}
        ds_add_rtn_u32 v{RK+j}, v{AD+j}, v{CW+5} offset:32768
        """)
    if P0M == 1:
        wdma(32768, L_W2); nb0 += 4
    if P0M == 2:
        xdma(2); w23dma(); nb0 += 7
    for j in range(5):
        A(f"v_mad_i32_i24 v{D+j}, v{AD+j}, s72, v{D+j}")
    A(f"s_waitcnt vmcnt({nb0})")
    tagshare("A", CW + 9)
    for j in range(5):
        d = D + j
        A(f"v_lshl_or_b32 v{d}, v{d}, 14, v{S+j}")
        if j == 0: A(f"v_add_u32 v{d}, v{d}, v{CW+6}")
        elif j < 4: A(f"v_add3_u32 v{d}, v{d}, v{CW+6}, s{72+j}")
        else: A(f"v_add_u32 v{d}, v{d}, v{CW+7}")
    A("s_waitcnt lgkmcnt(0)")
    pt("rk")
    A(f"v_max3_u32 v{t}, v{RK}, v{RK+1}, v{RK+2}")
    A(f"v_max3_u32 v{t}, v{t}, v{RK+3}, v{RK+4}")
    A(f"v_cmp_le_u32 vcc, s79, v{t}")
    A("s_cbranch_vccnz K_BOVF")
    A("K_BOVB:")
    B = Asm()
    B("K_BOVF:")
    B(f"v_mov_b32 v{t}, -2")
    for j in range(5):
        B(f"v_cmp_le_u32 vcc, s79, v{RK+j}")
        B(f"v_min_u32 v{RK+j}, s79, v{RK+j}")
        B("s_nop 0")
        B(f"v_cndmask_b32 v{D+j}, v{D+j}, v{t}, vcc")
    B("s_branch K_BOVB")
    ool.append(B.text())
    for j in range(5):
        r = RK + j
        A(f"""
        v_lshrrev_b32 v{t}, 5, v{r}
        v_and_b32 v{r}, 0x70, v{r}
        v_and_or_b32 v{r}, v{t}, 12, v{r}
        v_lshl_add_u32 v{r}, v{AD+j}, 5, v{r}
        ds_write_b32 v{r}, v{D+j}
        """)
    A(f"""
    s_add_u32 s73, s78, 8192
    s_add_u32 s74, s78, 16384
    s_add_u32 s75, s78, 24576
    s_waitcnt lgkmcnt(0)
    s_barrier
    """)
    pt("cb")
    A(f"""
    ds_read_b32 v{v.FV}, v{CW+9}
    ds_read_b128 {vr(v.T,4)}, v{v.t2}
    ds_read_b128 {vr(v.T+4,4)}, v{v.t2} offset:8192
    ds_read_b128 {vr(v.T+8,4)}, v{v.t2} offset:16384
    ds_read_b128 {vr(v.T+12,4)}, v{v.t2} offset:24576
    s_waitcnt lgkmcnt(0)
    v_not_b32 v{v.T1+4}, v{v.FV}
    """)
    def mkoff(regs):
        if not opt.get("rw"): return
        A(f"v_readfirstlane_b32 s{sOff}, v{v.FV}")
        A(f"s_bfe_u32 s{sOff}, s{sOff}, 0x40006")
        A(f"s_max_u32 s{sOff}, s{sOff}, 1")
        A(f"s_lshl_b32 s{sOff}, s{sOff}, 24")
        for r in regs: A(f"s_add_u32 s{r}, s{r}, s{sOff}")
        A(f"s_add_u32 s{sP}, s{sP}, s{sOff}")
        A(f"s_addc_u32 s{sP+1}, s{sP+1}, 0")
    mkoff([78, 73, 74, 75])
    xred([v.T + 4*q for q in range(4)], [v.T1 + q for q in range(4)])
    A("s_mov_b32 exec_lo, 0x80808080")
    A("s_mov_b32 exec_hi, 0x80808080")
    for q in range(4):
        A(f"v_xor_b32 v{v.T+4*q+3}, v{v.T1+q}, v{v.T1+4}")
    A("s_mov_b64 exec, -1")
    for q in range(4):
        A(f"buffer_store_dwordx4 {vr(v.T+4*q,4)}, v{v.t2}, {sr(sWS,4)}, s{(78,73,74,75)[q]} offen {STF}")
    stamp(4)
    vconsts()
    A("s_waitcnt vmcnt(4)")
    A("s_branch K_COM0")
    A("K_GEMM:")
    pt("k0")
    if opt.get("wfirst"):
        srd(A, sWm, PWM, 272 * 256)
        wdma(0, 0)
        xdma(3)
    else:
        xdma(3)
        srd(A, sWm, PWM, 272 * 256)
        wdma(0, 0)
    G1M = opt.get("g1", 2)
    pt("g0")
    if G1M == 0: w23dma()
    pt("g1")
    srd(A, sWS, PWS, 0x10000000 if opt.get('rw') else (WS_END if not ST else 0x1000000))
    sconsts()
    if opt.get("tlb"):
        A(f"""
        s_cmp_lg_u32 s3, 7
        s_cbranch_scc1 K_NOTLB
        v_lshlrev_b32 v{v.JK}, 21, v{L}
        v_lshlrev_b32 v{v.JK2}, 16, v{L}
        s_mov_b32 s22, 0x7ff80
        buffer_load_dword v{v.PROG}, v{v.JK}, {sr(sWS,4)}, s22 offen
        {f"buffer_load_dword v{v.LA}, v{v.JK2}, {sr(sE,4)}, 0 idxen" if opt.get("tlb") >= 2 else ""}
        {f"buffer_load_dword v{v.OHA}, v{v.JK}, {sr(sOUT,4)}, 0 offen" if opt.get("tlb") >= 2 else ""}
        K_NOTLB:
        """)
    XA = v.E; PA = v.E + 1; GA = v.E + 2; TN = v.E + 3
    A(f"""
    s_lshl_b32 s{sPair}, s{sPair}, 4
    s_add_u32 s{sPair}, s{sPair}, {WS_FLAG + 0x2000}
    s_mov_b32 s72, {NEG_LOG2E:#x}
    s_add_u32 s73, s{sUT}, 0x2000
    s_add_u32 s74, s{sUT}, 0x4000
    s_cmp_ge_u32 s3, 4
    s_cselect_b32 s74, 0x40000000, s74
    v_add_u32 v{v.JK3}, {L_BN}, v{v.t2}
    v_and_b32 v{XA}, 31, v{L}
    s_lshl_b32 s22, s{sG}, 5
    v_add_u32 v{XA}, s22, v{XA}
    s_waitcnt vmcnt({12 if G1M == 0 else 7})
    """)
    pt("g2")
    vconsts()
    A(f"""
    v_lshl_add_u32 v{TN}, v{H}, 11, v{TRA}
    s_lshl_b32 s22, s{sC}, 2
    v_lshl_add_u32 v{PA}, v{H}, 1, s22
    v_xor_b32 v{PA}, v{PA}, v{XA}
    v_and_b32 v{PA}, 15, v{PA}
    v_lshl_or_b32 v{PA}, v{XA}, 4, v{PA}
    s_mov_b32 s22, {L_BN}
    v_lshl_add_u32 v{PA}, v{PA}, 4, s22
    v_xor_b32 v{GA}, v{H}, v{XA}
    v_and_b32 v{GA}, 15, v{GA}
    v_lshl_or_b32 v{XA}, v{XA}, 4, v{GA}
    s_mov_b32 s22, {L_X}
    v_lshl_add_u32 v{XA}, v{XA}, 4, s22
    """)
    for s_ in range(1, 8):
        A(f"v_xor_b32 v{v.E+8+s_}, {s_*32}, v{XA}")
    pt("g3")
    if "gx" in PTS:
        A("s_waitcnt vmcnt(4)")
        pt("gx")
        A("s_waitcnt vmcnt(0)")
        pt("gw")
    if G1M == 1: w23dma()
    A(f"s_waitcnt vmcnt({5 if G1M < 2 else 0})")
    A("s_barrier")
    stamp(94)
    for s_ in range(8):
        A(f"ds_read_b64_tr_b16 {vr(v.WA+4*s_,2)}, v{TN} offset:{s_*4096}")
        A(f"ds_read_b64_tr_b16 {vr(v.WA+4*s_+2,2)}, v{TN} offset:{s_*4096+1024}")
        A(f"ds_read_b128 {vr(v.XF+4*s_,4)}, v{v.E+8+s_ if s_ else XA}")
    if G1M == 2: w23dma()
    A(f"s_cmp_lg_u32 s{sG}, 0")
    A("s_cbranch_scc1 K_G1")
    for s_ in range(8):
        A(f"ds_read_b128 {vr(v.U2+4*s_,4)}, v{v.E+8+s_ if s_ else XA} offset:16384")
    tagload("K_NT2")
    for s_ in range(8):
        A(f"s_waitcnt lgkmcnt({min(15, 3*(7-s_) + 8)})")
        A(mfma(v.T, v.WA + 4*s_, v.XF + 4*s_, "0" if s_ == 0 else None))
    for s_ in range(8):
        A(f"s_waitcnt lgkmcnt({7-s_})")
        A(mfma(v.T1, v.WA + 4*s_, v.U2 + 4*s_, "0" if s_ == 0 else None))
    def pout(acc, off, pk):
        for r in range(0, 16, 2):
            if pk:
                A(f"v_pk_mul_f32 {P(acc+r)}, {P(acc+r)}, s[72:73] op_sel_hi:[1,0]")
            else:
                A(f"v_mul_f32 v{acc+r}, s72, v{acc+r}")
                A(f"v_mul_f32 v{acc+r+1}, s72, v{acc+r+1}")
        for r in range(0, 16, 2):
            A(f"v_cvt_pk_bf16_f32 v{acc+r//2}, v{acc+r}, v{acc+r+1}")
        A(f"ds_write_b128 v{PA}, {vr(acc,4)} offset:{off}")
        A(f"ds_write_b128 v{GA}, {vr(acc+4,4)} offset:{off}")
    A(f"v_xor_b32 v{GA}, 16, v{PA}")
    pout(v.T, 0, False)
    pout(v.T1, 16384, True)
    A("s_branch K_G3")
    A("K_G1:")
    for s_ in range(8):
        A(f"s_waitcnt lgkmcnt({min(15, 3*(7-s_))})")
        A(mfma(v.T, v.WA + 4*s_, v.XF + 4*s_, "0" if s_ == 0 else None))
    A(f"v_xor_b32 v{GA}, 16, v{PA}")
    A("s_nop 10")
    pout(v.T, 0, False)
    A("K_G3:")
    pt("g4")
    A(f"v_mov_b32 v{v.JK}, {L_BN + 24576}")
    tagshare("B", v.JK)
    A(f"""
    s_waitcnt lgkmcnt(0)
    s_barrier
    ds_read_b32 v{v.FV}, v{v.JK}
    ds_read_b128 {vr(v.T,4)}, v{v.JK3}
    ds_read_b128 {vr(v.T+4,4)}, v{v.JK3} offset:8192
    ds_read_b128 {vr(v.T+8,4)}, v{v.JK3} offset:16384
    s_waitcnt lgkmcnt(2)
    """)
    mkoff([sUT, 73, 74])
    A(f"""
    buffer_store_dwordx4 {vr(v.T,4)}, v{XV}, {sr(sWS,4)}, s{sUT} offen {STF}
    s_waitcnt lgkmcnt(1)
    buffer_store_dwordx4 {vr(v.T+4,4)}, v{XV}, {sr(sWS,4)}, s73 offen {STF}
    s_waitcnt lgkmcnt(0)
    buffer_store_dwordx4 {vr(v.T+8,4)}, v{XV}, {sr(sWS,4)}, s74 offen {STF}
    """)
    stamp(4)
    A("s_waitcnt vmcnt(3)")
    A("K_COM0:")
    A(f"v_readfirstlane_b32 s{sTag}, v{v.FV}")
    qaddr()
    A("s_barrier")
    pt("c1")
    qreads()
    lds_init()
    pt("c2")
    qmfma()
    stamp(6)
    A("K_COMMON:")
    pt("c3")
    for r in range(0, 12, 2):
        A(f"v_pk_mul_f32 {P(v.E+r)}, {P(v.E+r)}, s[72:73] op_sel_hi:[1,0]")
    A(f"""
    v_cvt_pk_bf16_f32 v{v.QS}, v{v.E}, v{v.E+1}
    v_cvt_pk_bf16_f32 v{v.QS+1}, v{v.E+2}, v{v.E+3}
    v_cvt_pk_bf16_f32 v{v.QF+2}, v{v.E+4}, v{v.E+5}
    v_cvt_pk_bf16_f32 v{v.QF+3}, v{v.E+6}, v{v.E+7}
    v_cvt_pk_bf16_f32 v{v.QS+2}, v{v.E+8}, v{v.E+9}
    v_cvt_pk_bf16_f32 v{v.QS+3}, v{v.E+10}, v{v.E+11}
    s_lshl_b32 s{sUoff}, s{sC}, 13
    s_add_u32 s{sUoff}, s{sUoff}, {WS_U}
    """)
    def round_regs():
        A(f"""
        v_mov_b32 v{v.TPa+1}, v{v.IX0+1}
        v_mov_b32 v{v.TPb+1}, v{v.IX0+1}
        v_mov_b32 v{v.IEb+1}, v{v.IE+1}
        v_mov_b32 v{v.aggF}, 1
        v_mov_b64 {P(v.REC+4)}, -1
        v_mov_b64 {P(v.REC+6)}, -1
        v_add_u32 v{v.JK}, {64 * CH}, v{v.EB}
        """)
    def cell_addr():
        A(f"""
        s_lshl_b32 s22, s2, 7
        s_add_u32 s22, s22, {WS_CELL}
        {f"s_add_u32 s22, s22, s{sOff}" if opt.get("rw") else ""}
        s_add_u32 s23, s22, {64*32768}
        s_movk_i32 s76, {1000 - 512}
        v_cmp_gt_u32 s[76:77], s76, v0
        v_lshrrev_b32 v{v.t0}, 3, v0
        v_and_b32 v{v.t1}, 7, v0
        v_lshlrev_b32 v{v.t1}, 4, v{v.t1}
        v_lshl_add_u32 v{v.DS}, v{v.t0}, 15, v{v.t1}
        """)
    round_regs()
    A(f"""
    s_cmp_eq_u32 s{sRole}, 0
    s_cbranch_scc1 {"K2_B3" if opt.get("isl", 8) else "K2_B2"}
    s_waitcnt vmcnt(6)
    s_barrier
    s_cmp_eq_u32 s3, 0
    s_cbranch_scc1 K2_B1
    K2_B2:
    """)
    stamp(8)
    A("K2_CELLS:")
    cell_addr()
    A("s_mov_b64 s[74:75], -1")
    A("s_and_b32 s72, s76, 0x80808080")
    A("s_and_b32 s73, s77, 0x80808080")
    stamp(10)
    A(f"""
    K_POLL:
    s_mov_b64 exec, s[74:75]
    buffer_load_dwordx4 {vr(v.REC,4)}, v{v.DS}, {sr(sWS,4)}, s22 offen sc1
    s_mov_b64 exec, s[76:77]
    buffer_load_dwordx4 {vr(v.REC+4,4)}, v{v.DS}, {sr(sWS,4)}, s23 offen sc1
    s_mov_b64 exec, -1
    buffer_load_dword v{v.JK2}, off, {sr(sWS,4)}, s{sRel} sc1
    s_waitcnt vmcnt(0)
    """)
    xred([v.REC, v.REC + 4], [v.NS, v.NS + 1])
    A(f"""
    v_xor_b32 v{v.NS}, s{sTag}, v{v.NS}
    v_xor_b32 v{v.NS+1}, s{sTag}, v{v.NS+1}
    v_cmp_lt_u32 s[74:75], 1, v{v.NS}
    v_cmp_lt_u32 vcc, 1, v{v.NS+1}
    s_and_b64 s[76:77], s[76:77], vcc
    s_or_b64 s[78:79], s[74:75], s[76:77]
    s_cbranch_scc1 K_POLL2
    s_mov_b32 exec_lo, 0x80808080
    s_mov_b32 exec_hi, 0x80808080
    v_not_b32 v{v.REC+3}, v{v.NS}
    s_mov_b64 exec, s[72:73]
    v_not_b32 v{v.REC+7}, v{v.NS+1}
    s_mov_b64 exec, -1
    """)
    A(f"""
    s_cmp_lg_u32 s{sMode}, 0
    s_barrier
    s_cbranch_scc1 K2_COUNT
    ds_read_b128 {vr(v.SEL0,4)}, v{v.S0a}
    ds_read_b128 {vr(v.SEL1,4)}, v{v.S1a}
    K2_COUNT:
    """)
    ool.append(f"K2_B1:\ns_mov_b64 exec, 1\nbuffer_store_dword v{v.FV}, off, {sr(sWS,4)}, s{sPair} sc1\ns_mov_b64 exec, -1\ns_branch K2_B2")
    if opt.get("isl", 8): ool.append(f"K2_B3:\ns_waitcnt vmcnt(6)\ns_sleep {opt.get('isl', 8) - 1}\ns_branch K2_B2")
    ool.append(f"K_POLL2:\ns_sleep {opt.get('slp', 12)}\ns_branch K_POLL")
    stamp(12)
    ET = opt.get("et", 5)
    W0 = {0: v.W0, 1: v.W0 + 2, 4: v.W0 + 4, 5: v.W0 + 6}
    for j in range(8):
        main = j % 4 < 2
        body = f"""
        v_lshrrev_b32 v{v.AD+j}, 12, v{v.REC+j}
        v_and_b32 v{v.AD+j}, 0xfc, v{v.AD+j}
        s_mov_b64 exec, {sr(sM+2*j,2)}
        ds_add_rtn_u32 v{v.RANK+j}, v{v.AD+j}, v{v.aggF} offset:{CNT}
        """
        A(f"v_cmp_gt_u32 {sr(sM+2*j,2)}, -2, v{v.REC+j}")
        if main:
            A(body)
            A(f"v_lshrrev_b32 v{W0[j]+1}, 20, v{v.REC+j}")
            if ET:
                A(f"v_subrev_u32 v{v.t0}, 80, v{v.AD+j}")
            A(f"v_add_u32 v{W0[j]+1}, v{W0[j]+1}, v{v.EB if j < 4 else v.JK}")
            if ET:
                A(f"v_min_u32 v{v.t0}, v{v.t0}, v{v.AD+j}")
                A(f"v_cmpx_gt_u32 vcc, {4*ET}, v{v.t0}")
                A(f"buffer_load_dword v{v.JK3}, v{W0[j]+1}, {sr(sE,4)}, 0 idxen")
            A("s_mov_b64 exec, -1")
        else:
            l = A.label("cs"); lb = A.label("cb")
            body += "s_mov_b64 exec, -1\n"
            if j % 4 == 3:
                A(f"v_cmp_eq_u32 vcc, -2, v{v.REC+j}")
                A(f"s_or_b64 s[22:23], {sr(sM+2*j,2)}, vcc")
                body += f"s_cbranch_vccz {lb}\nv_mov_b32 v{v.t1}, {FLAG}\nds_write_b32 v{v.t1}, v{v.aggF}\n"
            else:
                A(f"s_cmp_lg_u64 {sr(sM+2*j,2)}, 0")
            A(f"s_cbranch_scc1 {l}")
            A(f"{lb}:")
            ool.append(f"{l}:\n{body}\ns_branch {lb}")
    NPF = opt.get("pf", 0)
    if NPF:
        A(f"""
        s_or_b32 s22, s3, s{sMode}
        s_cmp_lg_u32 s22, 0
        s_cbranch_scc1 K2_NOPF
        v_cmp_ne_u32 vcc, s{sTag}, v{v.JK2}
        s_cbranch_vccnz K2_NOPF
        s_mul_i32 s22, s{sSl}, 81920
        v_lshlrev_b32 v{v.t0}, 7, v{L}
        """)
        for q in range(NPF):
            A(f"buffer_load_dword v{v.JK3}, v{v.t0}, {sr(sWS,4)}, s22 offen")
            if q < NPF - 1: A("s_add_u32 s22, s22, 8192")
        A("K2_NOPF:")
    c = v.t0; pd = v.OHA
    A(f"""
    v_lshlrev_b32 v{v.t0}, 2, v{L}
    v_mov_b32 v{v.t1}, {FLAG}
    s_mul_i32 s22, s{sG}, 20
    s_add_u32 s22, s22, 8
    s_waitcnt lgkmcnt(0)
    s_barrier
    """)
    pt("b2")
    A(f"""
    ds_read_b32 v{v.t0}, v{v.t0} offset:{CNT}
    ds_read_b32 v{v.t1}, v{v.t1}
    s_waitcnt lgkmcnt(0)
    v_add_u32 v{c}, 3, v{c}
    v_and_b32 v{c}, -4, v{c}
    v_max_u32 v{c}, 4, v{c}
    v_cndmask_b32 v{pd}, 0, v{c}, {sr(sN40,2)}
    v_readfirstlane_b32 s23, v{v.t1}
    s_nop 0
    v_add_u32_dpp v{c}, v{pd}, v{pd} row_shr:1 row_mask:0xf bank_mask:0xf bound_ctrl:0
    s_nop 1
    v_add_u32_dpp v{c}, v{c}, v{c} row_shr:2 row_mask:0xf bank_mask:0xf bound_ctrl:0
    s_nop 1
    v_add_u32_dpp v{c}, v{c}, v{c} row_shr:4 row_mask:0xf bank_mask:0xf bound_ctrl:0
    s_nop 1
    v_add_u32_dpp v{c}, v{c}, v{c} row_shr:8 row_mask:0xf bank_mask:0xf bound_ctrl:0
    s_nop 1
    v_add_u32_dpp v{c}, v{c}, v{c} row_bcast:15 row_mask:0xa bank_mask:0xf
    s_nop 1
    v_add_u32_dpp v{c}, v{c}, v{c} row_bcast:31 row_mask:0xc bank_mask:0xf
    s_cmp_lg_u32 s23, -1
    s_cbranch_scc1 K2_OVF
    v_readlane_b32 s{sT0}, v{c}, 19
    v_readlane_b32 s{sT1}, v{c}, 39
    v_sub_u32 v{pd}, v{c}, v{pd}
    s_sub_u32 s23, {GSL}, s{sT0}
    v_add_u32 v{c}, s23, v{pd}
    v_cndmask_b32 v{pd}, v{pd}, v{c}, {sr(sG1,2)}
    v_add_u32 v{v.FV}, v{pd}, v{v.OHB}
    """)
    for j in (0, 1, 4, 5):
        A(f"ds_bpermute_b32 v{v.PK+j}, v{v.AD+j}, v{v.FV}")
    A(f"""
    v_readlane_b32 s{sTsw}, v{pd}, s22
    s_sub_u32 s{sT1}, s{sT1}, s{sT0}
    s_max_u32 s22, s{sT0}, s{sT1}
    s_cmp_gt_u32 s22, {GSL}
    s_cbranch_scc1 K2_OVF
    s_waitcnt lgkmcnt(0)
    """)
    pt("sc")
    for j in (0, 1, 4, 5, 2, 3, 6, 7):
        rare = (j % 4) >= 2
        w = v.W0 + 8 if rare else W0[j]
        body = f"""
        s_mov_b64 exec, {sr(sM+2*j,2)}
        v_add_u32_sdwa v{v.RANK+j}, v{v.PK+j}, v{v.RANK+j} dst_sel:DWORD dst_unused:UNUSED_PAD src0_sel:WORD_0 src1_sel:DWORD
        v_bfi_b32 v{w}, s{sK3F}, v{v.REC+j}, v{v.PK+j}
        v_lshlrev_b32 v{v.PK+j}, 3, v{v.RANK+j}
        v_lshrrev_b32 v{v.RANK+j}, 2, v{v.RANK+j}
        ds_write_b64 v{v.PK+j}, {P(w)} offset:{REC}
        ds_write_b8 v{v.RANK+j}, v{v.AD+j} offset:{QN}
        """
        if rare:
            l = A.label("ss"); lb = A.label("sb")
            A(f"s_cmp_lg_u64 {sr(sM+2*j,2)}, 0")
            A(f"s_cbranch_scc1 {l}")
            A(f"{lb}:")
            ool.append(f"{l}:\ns_mov_b64 exec, -1\nds_bpermute_b32 v{v.PK+j}, v{v.AD+j}, v{v.FV}\nv_lshrrev_b32 v{w+1}, 20, v{v.REC+j}\nv_add_u32 v{w+1}, v{w+1}, v{v.EB if j < 4 else v.JK}\ns_waitcnt lgkmcnt(0)\n{body}\ns_branch {lb}")
        else:
            A(body)
    A(f"""
    s_mov_b64 exec, -1
    s_or_b32 s22, s3, s{sMode}
    s_cmp_lg_u32 s22, 0
    s_cbranch_scc1 K2_RDY
    v_cmp_ne_u32 vcc, s{sTag}, v{v.JK2}
    s_cbranch_vccnz {"K2_SPOLL" if opt.get("sp", 1) else "K2_RPOLL"}
    K2_RDY:
    s_mov_b32 m0, s{sRing}
    s_waitcnt lgkmcnt(0)
    s_barrier
    """)
    ool.append(f"K2_RPOLL:\nbuffer_load_dword v{v.JK2}, off, {sr(sWS,4)}, s{sRel} sc1\ns_waitcnt vmcnt(0)\nv_cmp_ne_u32 vcc, s{sTag}, v{v.JK2}\ns_cbranch_vccz K2_RDY\ns_sleep 1\ns_branch K2_RPOLL")
    ool.append(f"K2_SPOLL:\ns_mov_b32 s23, 0\nK2_SP2:\ns_buffer_load_dword s22, {sr(sWS,4)}, s{sRel} glc\ns_waitcnt lgkmcnt(0)\ns_cmp_eq_u32 s22, s{sTag}\ns_cbranch_scc1 K2_RDY\ns_add_u32 s23, s23, 1\ns_cmp_lt_u32 s23, 16\ns_cbranch_scc1 K2_SP2\ns_branch K2_RPOLL")
    stamp(14)
    A(f"""
    ds_read_u16 v{v.IX0}, v{v.R1}
    ds_read_u16 v{v.IX1}, v{v.R1} offset:64
    ds_read_b32 v{v.IE}, v{v.Re}
    ds_read_u8 v{v.t0}, v0 offset:{QN}
    ds_read_u16 v{v.TPa}, v{v.R1} offset:256
    ds_read_u16 v{v.TPb}, v{v.R1} offset:320
    ds_read_b32 v{v.IEb}, v{v.Re} offset:1024
    ds_read_u8 v{v.OH0}, v{v.R2}
    ds_read_u8 v{v.OHA}, v{v.R2} offset:256
    s_waitcnt lgkmcnt(8)
    buffer_load_dwordx4 {P(v.IX0)}, {sr(sP,4)}, 0 idxen offen lds
    s_add_u32 m0, s{sRing}, 1024
    s_waitcnt lgkmcnt(7)
    buffer_load_dwordx4 {P(v.IX1)}, {sr(sP,4)}, 0 idxen offen lds
    s_mov_b32 m0, s{sE0}
    s_waitcnt lgkmcnt(5)
    buffer_load_dwordx4 {P(v.IE)}, {sr(sE,4)}, 0 idxen offen lds
    v_cmp_ne_u32 vcc, 0xff, v{v.t0}
    v_subrev_u32 v{v.t1}, 80, v{v.t0}
    v_min_u32 v{v.t0}, v{v.t0}, v{v.t1}
    v_lshl_add_u32 v{v.t1}, v{v.t0}, 3, v{v.QC}
    v_lshrrev_b32 v{v.t0}, 1, v{v.t0}
    v_and_b32 v{v.t0}, 16, v{v.t0}
    v_xor_b32 v{v.t1}, v{v.t1}, v{v.t0}
    v_mov_b32 v{v.t0}, 0x3f80
    s_mov_b64 exec, vcc
    ds_write_b16 v{v.t1}, v{v.t0}
    s_mov_b64 exec, -1
    s_add_u32 m0, s{sRing}, 2048
    s_waitcnt lgkmcnt(0)
    buffer_load_dwordx4 {P(v.TPa)}, {sr(sP,4)}, 0 idxen offen lds
    s_add_u32 m0, s{sRing}, 3072
    ds_read_u16 v{v.IX0}, v{v.R1} offset:512
    buffer_load_dwordx4 {P(v.TPb)}, {sr(sP,4)}, 0 idxen offen lds
    ds_read_u16 v{v.IX1}, v{v.R1} offset:576
    ds_read_u16 v{v.TPa}, v{v.R1} offset:768
    ds_read_u16 v{v.TPb}, v{v.R1} offset:832
    s_mul_i32 s22, s{sG}, {GSL}
    s_sub_u32 s{sTsw}, s{sTsw}, s22
    s_add_u32 s{sTsw}, s{sTsw}, 31
    s_lshr_b32 s{sTsw}, s{sTsw}, 5
    s_add_u32 s{sT0}, s{sT0}, 31
    s_lshr_b32 s{sT0}, s{sT0}, 5
    s_add_u32 s{sT1}, s{sT1}, 31
    s_lshr_b32 s{sT1}, s{sT1}, 5
    s_cmp_gt_u32 s{sT0}, s{sT1}
    s_cselect_b32 s{sLate}, 1, 0
    s_xor_b32 s{sLate}, s{sLate}, s{sG}
    s_cmp_eq_u32 s{sG}, 0
    s_cselect_b32 s{sTg}, s{sT0}, s{sT1}
    s_sub_u32 s{sUT}, s{sTg}, 9
    s_and_b32 s{sUT}, s{sUT}, -4
    s_add_u32 s{sUT}, s{sUT}, 1
    s_cmp_lt_u32 s{sTg}, 9
    s_cselect_b32 s{sUT}, {BIG}, s{sUT}
    s_cmp_lg_u32 s{sMode}, 0
    s_cselect_b32 s{sUT}, {BIG}, s{sUT}
    s_sub_u32 s22, s{sTg}, 1
    s_lshr_b32 s22, s22, 1
    s_mul_i32 s22, s22, 3072
    s_add_u32 s22, s22, {3072 + 2048}
    v_add_u32 v{v.LA}, s22, v{v.E_}
    s_add_u32 s{sEdst}, s{sE0}, {6144 if opt.get('ek', 3) == 3 else 12288}
    s_mov_b32 s{sTile}, 0
    v_mov_b32 v{v.PROG}, 1
    v_mov_b64 {P(v.QF)}, {P(v.QS)}
    v_mov_b64 {P(v.NS)}, 0
    v_mov_b64 {P(v.NS+2)}, 0
    v_mov_b64 {P(v.DS)}, {P(v.ONE)}
    v_mov_b64 {P(v.DS+2)}, {P(v.ONE)}
    v_mov_b64 {P(v.MSG)}, 0
    v_mov_b64 {P(v.aggF)}, 0
    v_mov_b64 {P(v.aggF+2)}, 0
    v_mov_b64 {P(v.S)}, 0
    s_cmp_lg_u32 s{sMode}, 0
    s_waitcnt vmcnt(2) lgkmcnt(0)
    s_barrier
    """)
    stamp(16)
    A(f"""
    ds_read_b128 {vr(v.ohF,4)}, v{v.OH0}
    ds_read_b128 {vr(v.eF,4)}, v{v.E_} offset:3072
    ds_read_b128 {vr(v.pF0,4)}, v{v.P0}
    ds_read_b128 {vr(v.pF1,4)}, v{v.P1}
    s_cbranch_scc1 K2_SAFEP
    """)
    def late_issue():
        A(f"""
        s_add_u32 m0, s{sRing}, 4096
        s_nop 0
        buffer_load_dwordx4 {P(v.IX0)}, {sr(sP,4)}, 0 idxen offen lds
        s_add_u32 m0, s{sRing}, 5120
        ds_read_u16 v{v.IX0}, v{v.R1} offset:1024
        buffer_load_dwordx4 {P(v.IX1)}, {sr(sP,4)}, 0 idxen offen lds
        """)
        if opt.get("ek", 3) == 2:
            A(f"""
            s_add_u32 m0, s{sE0}, 6144
            s_nop 0
            buffer_load_dwordx4 {P(v.IEb)}, {sr(sE,4)}, 0 idxen offen lds
            """)
        else:
            A(f"v_mov_b32 v{v.IE}, v{v.IEb}")
        A(f"""
        s_add_u32 m0, s{sRing}, 6144
        ds_read_u16 v{v.IX1}, v{v.R1} offset:1088
        buffer_load_dwordx4 {P(v.TPa)}, {sr(sP,4)}, 0 idxen offen lds
        s_add_u32 m0, s{sRing}, 7168
        s_nop 0
        buffer_load_dwordx4 {P(v.TPb)}, {sr(sP,4)}, 0 idxen offen lds
        """)
    chain(A, 3, "fast", None, ool, pre=True, mid=late_issue)
    A("K2_LOOP:")
    for k in range(4):
        stretch(A, k, "fast", ool)
        chain(A, k, "fast", "K2_EXIT", ool)
    A("s_branch K2_LOOP")
    A("K2_EXIT:")
    stamp(18)
    A(f"""
    s_setprio 0
    ds_read_b128 {vr(v.ohF,4)}, v{v.LA}
    v_rcp_f32 v{v.RS}, v{v.DS}
    v_rcp_f32 v{v.RS+1}, v{v.DS+1}
    v_rcp_f32 v{v.RS+2}, v{v.DS+2}
    v_rcp_f32 v{v.RS+3}, v{v.DS+3}
    v_fma_f32 v{v.S}, v{v.DS}, v{v.DS+2}, v{v.S}
    v_fma_f32 v{v.S+1}, v{v.DS+1}, v{v.DS+3}, v{v.S+1}
    v_mul_f32 v{v.NS}, v{v.NS}, v{v.RS}
    v_mul_f32 v{v.NS+1}, v{v.NS+1}, v{v.RS+1}
    v_mul_f32 v{v.NS+2}, v{v.NS+2}, v{v.RS+2}
    v_mul_f32 v{v.NS+3}, v{v.NS+3}, v{v.RS+3}
    K2_X2:
    s_bitcmp1_b32 s{sTg}, 0
    s_cbranch_scc0 K2_X3
    s_waitcnt lgkmcnt(1)
    {mfma(v.ACC, v.MSG, v.aggF)}
    v_cvt_pk_bf16_f32 v{v.MSG}, v{v.NS}, v{v.NS+1}
    v_cvt_pk_bf16_f32 v{v.MSG+1}, v{v.NS+2}, v{v.NS+3}
    s_branch K2_X4
    K2_X3:
    v_cvt_pk_bf16_f32 v{v.MSG+2}, v{v.NS}, v{v.NS+1}
    v_cvt_pk_bf16_f32 v{v.MSG+3}, v{v.NS+2}, v{v.NS+3}
    K2_X4:
    v_max_f32 v{v.S}, v{v.S}, v{v.S+1}
    s_waitcnt lgkmcnt(0)
    {mfma(v.ACC, v.MSG, v.ohF)}
    v_add_u32 v{v.t0}, s{sRing}, v{v.t3}
    s_cmp_eq_u32 s{sMode}, 1
    s_cbranch_scc1 K2_NEXTR
    K2_FIN:
    s_cmp_eq_u32 s{sUT}, {BIG}
    s_cbranch_scc1 K2_ULD
    K2_ULB:
    s_mov_b32 s22, {NEG_LN2:#x}
    s_mov_b32 s23, {f2u(2.0**60):#x}
    v_mov_b64 {P(v.NS)}, 0
    v_mov_b32 v{v.S+1}, 0
    s_lshl_b32 s76, s{sG}, 15
    s_add_u32 s76, s76, {RING}
    v_add_u32 v{v.t1}, s76, v{v.t3}
    v_mov_b32 v{v.JK}, {TRIP}
    """)
    B = Asm(); B("K2_ULD:")
    for i in range(16): u_load(B, i)
    B("s_branch K2_ULB"); ool.append(B.text())
    for s in range(8):
        A(f"v_pk_mul_f32 {P(v.ACC+2*s)}, {P(v.ACC+2*s)}, s[22:23] op_sel_hi:[1,0]")
    for s in range(8):
        A(f"v_cvt_pk_bf16_f32 v{v.E+s}, v{v.ACC+2*s}, v{v.ACC+2*s+1}")
    A("s_waitcnt vmcnt(0)")
    A(f"ds_write_b128 v{v.t0}, {vr(v.E,4)}")
    A(f"ds_write_b128 v{v.t0}, {vr(v.E+4,4)} offset:1024")
    for s in range(8):
        A(f"v_pk_fma_f32 {P(v.S)}, {P(v.ACC+2*s)}, {P(v.NS)}, {P(v.S)}")
    F = v.T; AG = v.T1
    A(f"""
    v_add_f32 v{v.S}, v{v.S}, v{v.S+1}
    v_cmp_nge_f32 vcc, s23, v{v.S}
    s_cbranch_vccnz K2_TRIP
    K2_TRB:
    s_cmp_lg_u32 s{sLate}, 0
    s_waitcnt lgkmcnt(0)
    s_cbranch_scc1 K2_LATE
    """)
    ool.append(f"K2_TRIP:\ns_cmp_lg_u32 s{sMode}, 0\ns_cbranch_scc1 K2_TRB\nds_write_b32 v{v.JK}, v{v.NS}\ns_branch K2_TRB")
    def rg():
        for s_ in range(8):
            A(mfma(F, v.U1 + 4*s_, v.XF + 4*s_, "0" if s_ == 0 else None))
    def rd():
        A("s_barrier")
        stamp(96)
        A(f"ds_read_b32 v{v.JK}, v{v.JK}")
        for s in range(8):
            A(f"ds_read_b128 {vr(AG+4*s,4)}, v{v.t1} offset:{(s >> 1) * 8192 + (s & 1) * 1024}")
    rg(); rd()
    if opt.get("ep2", 1): A("s_setprio 2")
    A("s_branch K2_JOIN")
    A("K2_LATE:")
    rd(); rg()
    A("K2_JOIN:")
    for s in range(8):
        A(f"s_waitcnt lgkmcnt({7-s})")
        A(mfma(F, v.U2 + 4*s, AG + 4*s))
    A(f"""
    s_setprio 0
    v_readfirstlane_b32 s23, v{v.JK}
    s_mov_b32 s22, {NEG_LOG2E:#x}
    s_cmp_eq_u32 s23, 0
    s_cbranch_scc1 K2_REDO
    s_cmp_lg_u32 s{sLate}, 0
    s_nop 5
    s_cbranch_scc1 K2_ACT2
    """)
    def act(pk):
        for r in range(0, 16, 2):
            if pk: A(f"v_pk_mul_f32 {P(v.E+r)}, {P(F+r)}, s[22:23] op_sel_hi:[1,0]")
            else:
                A(f"v_mul_f32 v{v.E+r}, s22, v{F+r}"); A(f"v_mul_f32 v{v.E+r+1}, s22, v{F+r+1}")
        for r in range(16):
            A(f"v_exp_f32 v{v.E+r}, v{v.E+r}")
        for r in range(0, 16, 2):
            if pk: A(f"v_pk_add_f32 {P(v.E+r)}, {P(v.E+r)}, {P(v.ONE)}")
            else:
                A(f"v_add_f32 v{v.E+r}, 1.0, v{v.E+r}"); A(f"v_add_f32 v{v.E+r+1}, 1.0, v{v.E+r+1}")
        for r in range(16):
            A(f"v_rcp_f32 v{v.E+r}, v{v.E+r}")
        for r in range(0, 16, 2):
            if pk: A(f"v_pk_mul_f32 {P(F+r)}, {P(F+r)}, {P(v.E+r)}")
            else:
                A(f"v_mul_f32 v{F+r}, v{F+r}, v{v.E+r}"); A(f"v_mul_f32 v{F+r+1}, v{F+r+1}, v{v.E+r+1}")
    act(not opt.get("ep2", 1))
    A("s_branch K2_ACT3")
    A("K2_ACT2:")
    act(True)
    A("K2_ACT3:")
    O = v.T1
    for r in range(8):
        A(f"v_cvt_pk_bf16_f32 v{O+r}, v{F+2*r}, v{F+2*r+1}")
    A(f"""
    s_nop 1
    v_permlane32_swap_b32 v{O}, v{O+2}
    v_permlane32_swap_b32 v{O+1}, v{O+3}
    v_permlane32_swap_b32 v{O+4}, v{O+6}
    v_permlane32_swap_b32 v{O+5}, v{O+7}
    buffer_store_dwordx4 {vr(O,4)}, v{v.OA}, {sr(sOUT,4)}, 0 offen {opt.get("ost", "").replace("_", " ")}
    buffer_store_dwordx4 {vr(O+4,4)}, v{v.OA}, {sr(sOUT,4)}, 0 offen offset:32 {opt.get("ost", "").replace("_", " ")}
    """)
    if ST:
        A("s_waitcnt vmcnt(0)")
        A("s_memtime s[98:99]")
        A("s_memrealtime s[100:101]")
        A(f"""
        s_lshl_b32 s22, s2, 3
        s_add_u32 s22, s22, s3
        s_lshl_b32 s22, s22, 6
        s_add_u32 s22, s22, 0xA00000
        v_mov_b32 v1, 0
        s_waitcnt lgkmcnt(0)
        """)
        for i, r in enumerate([90, 94, 4, 6, 8, 10, 12, 14, 16, 18, 96, 98, 92, 100, sTg] if not PTS else [90, 94, 4, 44, 46, 48, 50, 96, 6, 12, 14, 98, 92, 100, sTg]):
            A(f"v_mov_b32 v2, s{r}")
            A(f"buffer_store_dword v2, v1, {sr(sWS,4)}, s22 offen offset:{4*i}")
    A("K_END:")
    A("s_endpgm")
    for o in ool: A(o)
    del ool[:]
    A(f"""
    K_SPECIAL:
    s_memrealtime s[88:89]
    s_waitcnt lgkmcnt(0)
    """)
    wsadj()
    srd(A, sDB, PDBG, 256)
    srd(A, sWS, PWS, WS_END)
    A(f"""
    s_cmp_lg_u32 s2, 0
    s_cbranch_scc1 K_HELPER
    s_cmp_lg_u32 s3, 0
    s_cbranch_scc1 K_END
    s_or_b32 s{sTag}, s88, 1
    v_mov_b32 v1, s{sTag}
    s_mov_b64 exec, 1
    buffer_store_dword v1, off, {sr(sDB,4)}, 0 sc1
    s_mov_b64 exec, -1
    v_lshlrev_b32 v2, 4, v0
    v_cmp_gt_u32 vcc, {NCHUNK + 2 - 64}, v0
    v_add_u32 v4, 1024, v2
    s_mov_b32 s22, {WS_FLAG + 0x2000}
    v_cndmask_b32 v4, v2, v4, vcc
    v_lshlrev_b32 v3, 7, v0
    s_mov_b32 s23, {WS_FLAG + 0x4000}
    """)
    if MC:
        A(f"""
        v_cmp_gt_u32 vcc, {NCHUNK - 64}, v0
        v_add_u32 v5, 1024, v2
        s_mov_b32 s76, {WS_FLAG}
        v_cndmask_b32 v5, v2, v5, vcc
        s_mov_b32 s77, {WS_FLAG + 0x6000}
        K_MPOLL0:
        buffer_load_dword v8, v2, {sr(sWS,4)}, s76 offen sc1
        buffer_load_dword v9, v5, {sr(sWS,4)}, s76 offen sc1
        s_waitcnt vmcnt(0)
        v_xor_b32 v8, v1, v8
        v_xor_b32 v9, v1, v9
        v_or_b32 v8, v8, v9
        v_cmp_ne_u32 vcc, 0, v8
        s_cbranch_vccnz K_MPOLL0
        buffer_store_dword v1, v3, {sr(sWS,4)}, s77 offen sc1
        {"s_memrealtime s[92:93]" if ST else ""}
        """)
    A(f"""
    K_MPOLL:
    buffer_load_dword v8, v2, {sr(sWS,4)}, s22 offen sc1
    buffer_load_dword v9, v4, {sr(sWS,4)}, s22 offen sc1
    s_waitcnt vmcnt(0)
    v_xor_b32 v8, v1, v8
    v_xor_b32 v9, v1, v9
    v_or_b32 v8, v8, v9
    v_cmp_ne_u32 vcc, 0, v8
    s_cbranch_vccnz K_MPOLL
    buffer_store_dword v1, v3, {sr(sWS,4)}, s23 offen sc1
    {"s_memrealtime s[90:91]" if ST else ""}
    {"s_waitcnt lgkmcnt(0)" if ST else ""}
    {"v_mov_b32 v2, s90" if ST else ""}
    {f"buffer_store_dword v2, off, {sr(sDB,4)}, 0 offset:8" if ST else ""}
    {"v_mov_b32 v2, s92" if ST else ""}
    {f"buffer_store_dword v2, off, {sr(sDB,4)}, 0 offset:12" if ST else ""}
    s_endpgm
    K_HELPER:
    s_sub_u32 s87, s2, 1
    s_lshl_b32 s82, s87, 15
    s_lshl_b32 s77, s3, 12
    """)
    srd(A, sWm, PWU, 32768, add="s82")
    wdma(0, 0)
    A(f"""
    s_waitcnt vmcnt(4)
    s_lshl_b32 s22, s{sC}, 6
    v_xor_b32 v{TRA}, s22, v{TRA}
    v_lshrrev_b32 v{H}, 5, v{L}
    s_sub_u32 s22, 11, s87
    v_lshlrev_b32 v{H}, s22, v{H}
    v_add_u32 v{TRA}, v{TRA}, v{H}
    s_lshl_b32 s22, s{sG}, 14
    v_add_u32 v{TRA}, s22, v{TRA}
    s_lshl_b32 s22, 1024, s87
    v_add_u32 v{H}, s22, v{TRA}
    s_lshl_b32 s22, s{sC}, 13
    s_add_u32 s82, s82, s22
    s_lshl_b32 s22, s{sG}, 12
    s_add_u32 s82, s82, s22
    s_add_u32 s82, s82, {WS_U}
    s_waitcnt vmcnt(0)
    s_barrier
    """)
    for s_ in range(4):
        A(f"ds_read_b64_tr_b16 {vr(v.T+4*s_,2)}, v{TRA} offset:{s_*4096}")
        A(f"ds_read_b64_tr_b16 {vr(v.T+4*s_+2,2)}, v{H} offset:{s_*4096}")
    A("s_waitcnt lgkmcnt(0)")
    for s_ in range(4):
        A(f"buffer_store_dwordx4 {vr(v.T+4*s_,4)}, v{v.t3}, {sr(sWS,4)}, s82 offen offset:{s_*1024} sc1")
    A(f"""
    s_waitcnt vmcnt(0)
    s_barrier
    s_cmp_lg_u32 s3, 0
    s_cbranch_scc1 K_END
    K_HTAG:
    buffer_load_dword v1, off, {sr(sDB,4)}, 0 sc1
    s_waitcnt vmcnt(0)
    v_readfirstlane_b32 s22, v1
    s_cmp_eq_u32 s22, 0
    s_cbranch_scc1 K_HTAG
    s_lshl_b32 s22, s87, 4
    s_add_u32 s22, s22, {WS_FLAG + 0x2000 + NCHUNK * 16}
    s_mov_b64 exec, 1
    buffer_store_dword v1, off, {sr(sWS,4)}, s22 sc1
    s_endpgm
    """)
    A("K2_SAFEP:")
    chain(A, 3, "safe", None, ool, pre=True, mid=late_issue)
    A("K2_SAFE:")
    for k in range(4):
        stretch(A, k, "safe", ool)
        chain(A, k, "safe", "K2_SEXIT", ool)
    A("s_branch K2_SAFE")
    A(f"""
    K2_SEXIT:
    s_setprio 0
    ds_read_b128 {vr(v.ohF,4)}, v{v.LA}
    s_branch K2_X2
    """)
    def restore():
        A(f"""
        s_lshr_b32 s23, s{sTg}, 2
        s_mul_i32 s22, s23, 6144
        s_lshl_b32 s23, s23, 10
        v_subrev_u32 v{v.E_}, s22, v{v.E_}
        v_subrev_u32 v{v.R1}, s23, v{v.R1}
        v_subrev_u32 v{v.R2}, s23, v{v.R2}
        v_subrev_u32 v{v.Re}, s23, v{v.Re}
        """)
    A("K2_REDO:")
    restore()
    A(f"s_mov_b32 s{sMode}, 2")
    A("s_nop 7")
    for r in range(0, 16, 2):
        A(f"v_mov_b64 {P(v.ACC+r)}, 0")
    A("s_waitcnt vmcnt(0) lgkmcnt(0)")
    A("s_barrier")
    lds_init()
    round_regs()
    A("s_branch K2_CELLS")
    A(f"""
    K2_OVF:
    s_cmp_eq_u32 s{sMode}, 0
    s_cbranch_scc0 K2_OV2
    s_cmp_lg_u32 s3, 0
    s_cbranch_scc1 K2_OV2
    K2_OV1:
    buffer_load_dword v{v.JK2}, off, {sr(sWS,4)}, s{sRel} sc1
    s_waitcnt vmcnt(0)
    v_cmp_ne_u32 vcc, s{sTag}, v{v.JK2}
    s_cbranch_vccnz K2_OV1
    K2_OV2:
    s_mov_b32 s{sMode}, 1
    s_mov_b32 s{sRound}, 0
    s_branch K2_ROUND
    K2_NEXTR:
    s_add_u32 s{sRound}, s{sRound}, 1
    s_cmp_ge_u32 s{sRound}, {E // 512}
    s_cbranch_scc1 K2_FIN
    """)
    restore()
    A(f"""
    K2_ROUND:
    s_load_dwordx4 s[76:79], s[0:1], 16
    s_waitcnt vmcnt(0) lgkmcnt(0)
    s_barrier
    """)
    srd(A, sS, 76, E * 4)
    srd(A, sD, 78, E * 4)
    A(f"""
    s_lshl_b32 s22, s{sRound}, 9
    v_add_u32 v{v.EB}, s22, v0
    v_lshlrev_b32 v{v.t0}, 2, v{v.EB}
    buffer_load_dword v{v.REC}, v{v.t0}, {sr(sD,4)}, 0 offen
    buffer_load_dword v{v.REC+1}, v{v.t0}, {sr(sS,4)}, 0 offen
    """)
    lds_init()
    round_regs()
    A(f"""
    s_mul_i32 s22, s2, 40
    s_waitcnt vmcnt(0)
    v_subrev_u32 v{v.REC}, s22, v{v.REC}
    v_cmp_gt_u32 vcc, 40, v{v.REC}
    v_lshl_or_b32 v{v.t0}, v{v.REC}, 14, v{v.REC+1}
    v_mov_b32 v{v.REC+1}, -1
    v_cndmask_b32 v{v.REC}, -1, v{v.t0}, vcc
    v_mov_b64 {P(v.REC+2)}, -1
    s_barrier
    s_branch K2_COUNT
    """)
    for o in ool: A(o)
    A("K_CODE_END:")
    return A.text()

HEADER = """; MPNN edge-MLP layer, fused single kernel (generated by gen/fz9.py).
"""
def build(opt):
    out = HEADER + f"; @launch grid=({NWG},1,1) block=(512,1,1) lds={LDS_TOTAL}\n"
    out += '.amdgcn_target "amdgcn-amd-amdhsa--gfx950"\n.text\n'
    out += f".globl {KNAME}\n.p2align 8\n.type {KNAME},@function\n" + gen(opt)
    acc = (NV + 3) // 4 * 4
    out += f""".section .rodata,"a"
.p2align 8
K_TABLE:
{tables()}.p2align 6
.amdhsa_kernel {KNAME}
  .amdhsa_next_free_vgpr {NV}
  .amdhsa_next_free_sgpr 102
  .amdhsa_accum_offset {acc}
  .amdhsa_group_segment_fixed_size 0
  .amdhsa_kernarg_size 72
  .amdhsa_user_sgpr_count 2
  .amdhsa_user_sgpr_kernarg_segment_ptr 1
  .amdhsa_system_sgpr_workgroup_id_x 1
.end_amdhsa_kernel
"""
    return out

if __name__ == "__main__":
    opt = {}
    for a in sys.argv[2:]:
        k_, v_ = a.split("=")
        opt[k_] = int(v_) if v_.lstrip("-").isdigit() else v_
    open(sys.argv[1], "w").write(build(opt))
```

```python
import sys, struct
from gen import Asm, vr, sr, srd, f2u, NEG_LOG2E, NEG_LN2, PX, PE, PSRC, PDST, PWM, PWU, POUT, PDBG, PWS, load_ptrs

KNAME = "standalone__mpnn_edge_mlp__graph_kernel"
N = 10000; E = 320000
NBIN = 250; NCHUNK = 125; CH = 2560
WS_CELL = 0x280000
WS_FLAG = 0x700000
WS_U = 0x708000
WS_END = WS_U + 0x10000
NWG = NBIN + 3
BIG = 0x7fffffff

CNT = 0x100; QN = 0x200; FLAG = 0x3F0; TRIP = 0x3F4; REC = 0x400
TG = 26; GSL = TG * 32
REC_BYTES = (2 * GSL + 160) * 8
EA = REC + REC_BYTES
GEA = (TG // 2) * 3072
RING = EA + 2 * GEA
JUNK = RING + 65536
LDS_TOTAL = JUNK + 1024
FLG = CNT + 48 * 4
L_X = RING; L_W2 = RING + 0x6000; L_W3 = L_W2 + 32768; L_BN = 0x8000
assert RING % 256 == 0 and LDS_TOTAL <= 163840

class R: pass
v = R()
_n = 1
def alloc(name, n, align=1):
    global _n
    _n = (_n + align - 1) // align * align
    setattr(v, name, _n)
    _n += n
for nm in ("t0", "t1", "t2", "t3", "lane", "FW", "FV", "PROG", "JK", "JK2", "JK3", "OHA", "P1", "FR", "LA"):
    alloc(nm, 1)
TABN = ("E_", "R1", "R2", "Re", "P0", "EB", "QC", "OHB", "S0a", "FRo", "IXo", "IEo", "S1a", "TRA", "OAl", "Z_")
alloc("TAB", 0, 4)
for nm in TABN[:8]:
    alloc(nm, 1)
for nm in ("IX0", "IX1", "IE", "ONE", "S"):
    alloc(nm, 2, 2)
alloc("OA", 1)
for nm in ("W3F", "QF", "QS", "SEL0", "SEL1", "eF", "ohF", "pF0", "pF1", "aggF", "MSG", "NS", "DS", "RS"):
    alloc(nm, 4, 4)
for nm in ("T", "T1", "E", "ACC"):
    alloc(nm, 16, 4)
alloc("U1", 32, 4); alloc("U2", 32, 4); alloc("XF", 32, 4)
NV = _n
assert NV <= 256
for i_, nm in enumerate(TABN[8:]): setattr(v, nm, v.SEL0 + i_)
v.WA = v.ohF
assert v.RS == v.ohF + 28 and v.SEL1 == v.SEL0 + 4 and v.E == v.T1 + 16
v.REC = v.T; v.RANK = v.T + 8; v.AD = v.E; v.PK = v.E + 8
v.W0 = v.T1
v.TPa = v.T1 + 10; v.TPb = v.T1 + 12; v.IEb = v.T1 + 14; v.OH0 = v.pF1

sWS, sP, sE, sX, sOUT, sD, sS = 24, 28, 32, 36, 40, 44, 48
sG, sC, sTg, sTile, sTsw, sTag, sRing, sEdst, sMode, sRound, sRole, sElim = 52, 53, 54, 55, 56, 57, 58, 59, 60, 61, 62, 63
sM = 64
sWm = 64; sDB = 68
sTB = 80
sUT = 82; sLate = 83; sK3F = 84; sT0, sT1 = 85, 86; sRel = 87; sUoff = 88; sPair = 89
sN40 = 36; sG1 = 38; sSl = 101; sE0 = 100; sOff = 61

OPT = {}
def P(r): return f"v[{r}:{r+1}]"
def mfma(d, a, b, c=None):
    return f"v_mfma_f32_32x32x16_bf16 {vr(d,16)}, {vr(a,4)}, {vr(b,4)}, {vr(d,16) if c is None else c}"
def pi8v(m):
    return ((m & 5) << 5) | ((m & 18) << 2) | ((m & 8) << 1)

def tables():
    rows = []
    for l in range(64):
        m, h = l & 31, l >> 5
        a16 = 16 + ((l & 8) << 3) + ((l & 3) << 4)
        n_ = l - 20 if l >= 20 else l
        a16n = 16 + ((n_ & 8) << 3) + ((n_ & 3) << 4)
        ohb = (a16n << (16 + 8 * ((n_ >> 2) & 1))) if l < 40 else 0
        sel = a16 if ((l >> 2) & 1) == h else 0
        d = dict(
            E_=m * 32 + (((h ^ (m >> 3)) & 1) << 4) + EA - 3072,
            R1=pi8v(l >> 2) + REC, R2=pi8v(m) + h + 2 + REC, Re=pi8v(l >> 1) + 4 + REC,
            P0=m * 64 + ((((m >> 2) ^ (2 * h)) & 3) << 4) + RING,
            EB=(l >> 3) * CH,
            QC=(l >> 4) * 3072 + ((l & 4) << 2) + (l & 8) + ((l & 3) << 1) + EA + 2048,
            OHB=ohb, FRo=(l & 3) * 4 + FLG,
            IXo=(((l >> 4) ^ l) & 3) << 4, IEo=(((l >> 4) ^ l) & 1) << 4,
            S0a=sel if m < 16 else 0, S1a=sel if m >= 16 else 0,
            TRA=(l & 3) * 8 + ((l >> 2) & 3) * 256 + (((l >> 2) & 3) << 6) + ((l >> 4) & 1) * 32,
            OAl=(m * 256 + h * 16) if m < 20 else 0x40000000, Z_=0)
        rows.append([d[n] for n in TABN])
    out = []
    for b in range(4):
        for l in range(64):
            out.append(".long " + ", ".join(f"{x:#x}" for x in rows[l][4*b:4*b+4]))
    img = [0] * 256
    for e_ in range(8):
        img[4 * (e_ + 1) + (e_ >> 1)] = 0x3f80 << (16 * (e_ & 1))
    for i in range(128, 256): img[i] = 0xffffffff
    for i in range(0, 256, 4):
        out.append(".long " + ", ".join(f"{x:#x}" for x in img[i:i+4]))
    for i in range(64):
        out.append(".long 0xffff, 0xffffffff, 0xffff, 0xffffffff")
    return "\n".join(out) + "\n"

def lst(A, k, variant, r):
    if OPT.get("ls") and variant == "fast" and k == OPT["ls"] - 1: A(f"s_memtime s[{r}:{r+1}]")

def u_load(A, i):
    off = (i >> 3) * 32768 + (i & 7) * 1024
    A(f"s_add_u32 s22, s{sUoff}, {off & ~4095}")
    A(f"buffer_load_dwordx4 {vr(v.U1+4*i,4)}, v{v.t3}, {sr(sWS,4)}, s22 offen offset:{off & 4095}")

def chain(A, k, variant, exit_label, ool, pre=False, mid=None):
    kk = k if k < 3 else -1
    safe = variant == "safe"
    EK = OPT.get("ek", 3)
    if not pre:
        A("s_setprio 2")
        A(f"s_add_u32 s{sTile}, s{sTile}, 1")
        A(f"s_cmp_ge_u32 s{sTile}, s{sTg}")
        A(f"s_cbranch_scc1 {exit_label}")
        lsw = A.label("sw"); lswb = A.label("swb")
        A(f"s_cmp_eq_u32 s{sTile}, s{sTsw}")
        A(f"s_cbranch_scc1 {lsw}")
        A(f"{lswb}:")
        ool.append(f"{lsw}:\nv_mov_b32 v{v.QF}, v{v.QS+2}\nv_mov_b32 v{v.QF+1}, v{v.QS+3}\ns_branch {lswb}")
        lst(A, k, variant, 10)
    A("s_waitcnt lgkmcnt(0)")
    if k % 2 == 0:
        A(mfma(v.ACC, v.MSG, v.aggF))
    n = 4 + (1 if ((k - 1) & 3) == EK or ((k - 2) & 3) == EK else 0)
    if EK == 3 and k == 1: n = 2
    if pre: n = 4 if EK == 3 else 5
    k2_ = kk + 2
    eread = f"ds_read_b128 {vr(v.eF,4)}, v{v.E_} offset:{3072 + (k2_ >> 1) * 3072 + (k2_ & 1) * 1024}"
    if k == 2: A(f"ds_read_b32 v{v.FV}, v{v.FR}")
    A(mfma(v.T, v.eF, v.W3F, "0"))
    if k != 2: A(eread)
    A(mfma(v.T, v.ohF, v.QF))
    A(f"ds_read_b128 {vr(v.ohF,4)}, v{v.OHA}")
    A(f"ds_read_u8 v{v.OHA}, v{v.R2} offset:{(kk + 3) * 256}")
    A(mfma(v.T, v.pF0, v.SEL0))
    if k == 2:
        A("s_waitcnt lgkmcnt(2)")
        A(f"v_cmp_gt_u32 vcc, v{v.PROG}, v{v.FV}")
    A(mfma(v.T, v.pF1, v.SEL1))
    A(f"s_setprio 0")
    lst(A, k, variant, 14)
    n_after = 2
    if k == 2:
        lw = A.label("fw"); lb = A.label("fb")
        A(f"s_cbranch_vccnz {lw}")
        A(f"{lb}:")
        A(eread)
        ool.append(f"{lw}:\nds_read_b32 v{v.FV}, v{v.FR}\ns_waitcnt lgkmcnt(0)\nv_cmp_gt_u32 vcc, v{v.PROG}, v{v.FV}\ns_cbranch_vccnz {lw}\ns_branch {lb}")
        n_after += 2
    if mid: mid()
    A(f"s_waitcnt vmcnt({n})" + (" lgkmcnt(0)" if pre else ""))
    if k == 1:
        A("s_mov_b64 exec, 1")
        A(f"ds_write_b32 v{v.FW}, v{v.PROG}")
        A("s_mov_b64 exec, -1")
        n_after += 3
    if k == EK:
        A(f"s_cmp_lt_u32 s{sEdst}, s{sElim}")
        A(f"s_cselect_b32 m0, s{sEdst}, {JUNK}")
        A(f"s_add_u32 s{sEdst}, s{sEdst}, 6144")
        A(f"buffer_load_dwordx4 {P(v.IE)}, {sr(sE,4)}, 0 idxen offen lds")
        n_after += 4
    A(f"s_add_u32 m0, s{sRing}, {((k + 1) & 3) * 2048}")
    A(f"ds_read_b128 {vr(v.pF0,4)}, v{v.P0} offset:{((k + 2) & 3) * 2048}")
    A(f"buffer_load_dwordx4 {P(v.IX0)}, {sr(sP,4)}, 0 idxen offen lds")
    A(f"s_add_u32 m0, s{sRing}, {((k + 1) & 3) * 2048 + 1024}")
    A(f"ds_read_b128 {vr(v.pF1,4)}, v{v.P1} offset:{((k + 2) & 3) * 2048}")
    A(f"buffer_load_dwordx4 {P(v.IX1)}, {sr(sP,4)}, 0 idxen offen lds")
    A(f"ds_read_u16 v{v.IX0}, v{v.R1} offset:{(kk + 6) * 256}")
    A(f"ds_read_u16 v{v.IX1}, v{v.R1} offset:{(kk + 6) * 256 + 64}")
    n_after += 8
    if k % 2 == 1 and not pre:
        A(f"ds_read_b128 {vr(v.aggF,4)}, v{v.E_} offset:{(1 if k == 1 else 0) * 3072 + 2048}")
        n_after += 1
    if k == EK - 1:
        A(f"ds_read_b32 v{v.IE}, v{v.Re} offset:{2 * 1024}")
        n_after += 1
    if not safe and not pre:
        lv = A.label("uv"); lvb = A.label("vb")
        A(f"s_sub_u32 s23, s{sTile}, s{sUT}")
        A(f"s_cmp_lt_u32 s23, 8")
        A(f"s_cbranch_scc1 {lv}")
        A(f"{lvb}:")
        n_after += 3
        B = Asm()
        B(f"{lv}:")
        B(f"s_cmp_ge_u32 s23, 4")
        B(f"s_cbranch_scc1 {lv}x")
        u_load(B, 2*k); u_load(B, 2*k+1)
        B(f"s_branch {lvb}")
        B(f"{lv}x:")
        u_load(B, 8+2*k); u_load(B, 8+2*k+1)
        B(f"s_branch {lvb}")
        ool.append(B.text())
    if n_after < 12:
        A(f"s_nop {12 - n_after - 1}")
    lst(A, k, variant, 12)

def stretch(A, k, variant, ool):
    T = v.T; E = v.E
    order = [0, 1, 8, 9, 2, 3, 10, 11, 4, 5, 12, 13, 6, 7, 14, 15]
    lst(A, k, variant, 94)
    for r in order:
        A(f"v_exp_f32 v{E+r}, v{T+r}")
    if variant != "safe":
        for r in range(4):
            A(f"v_rcp_f32 v{v.RS+r}, v{v.DS+r}")
    if k == 3:
        for s in (f"v_add_u32 v{v.E_}, 6144, v{v.E_}", f"v_add_u32 v{v.R1}, 1024, v{v.R1}",
                  f"v_add_u32 v{v.R2}, 1024, v{v.R2}", f"v_add_u32 v{v.Re}, 1024, v{v.Re}"): A(s)
    if k == 0:
        A(f"v_add_u32 v{v.PROG}, 1, v{v.PROG}")
    lst(A, k, variant, 4)
    A("s_setprio 1")
    mo = v.MSG + 2 * ((k + 1) % 2)
    if variant != "safe":
        A(f"v_pk_fma_f32 {P(v.S)}, {P(v.DS)}, {P(v.DS+2)}, {P(v.S)}")
        A(f"v_pk_mul_f32 {P(v.NS)}, {P(v.NS)}, {P(v.RS)}")
        A(f"v_pk_mul_f32 {P(v.NS+2)}, {P(v.NS+2)}, {P(v.RS+2)}")
    A(f"v_cvt_pk_bf16_f32 v{mo}, v{v.NS}, v{v.NS+1}")
    A(f"v_cvt_pk_bf16_f32 v{mo+1}, v{v.NS+2}, v{v.NS+3}")
    lst(A, k, variant, 6)
    if variant != "safe":
        ops = []
        for gi, g in enumerate((0, 8)):
            t, e = T + g, E + g
            o = [f"v_pk_add_f32 {P(e)}, {P(e)}, {P(v.ONE)}"]
            for u in (1, 2, 3):
                o.append(f"v_pk_fma_f32 {P(t)}, {P(t)}, {P(e+2*u)}, {P(t)}")
                o.append(f"v_pk_fma_f32 {P(t if u < 3 else v.NS+2*gi)}, {P(t+2*u)}, {P(e)}, {P(t)}")
                o.append(f"v_pk_fma_f32 {P(e if u < 3 else v.DS+2*gi)}, {P(e)}, {P(e+2*u)}, {P(e)}")
            ops.append(o)
        for a, b in zip(*ops):
            A(a); A(b)
    else:
        for r in range(0, 16, 2):
            A(f"v_pk_add_f32 {P(E+r)}, {P(E+r)}, {P(v.ONE)}")
        for r in range(16):
            A(f"v_rcp_f32 v{E+r}, v{E+r}")
        A("s_nop 0")
        for u in range(4):
            for gi, g in enumerate((0, 8)):
                if u == 0:
                    A(f"v_pk_mul_f32 {P(T+g)}, {P(T+g)}, {P(E+g)}")
                else:
                    A(f"v_pk_fma_f32 {P(T+g if u < 3 else v.NS+2*gi)}, {P(T+g+2*u)}, {P(E+g+2*u)}, {P(T+g)}")
    lst(A, k, variant, 8)

def gen(opt):
    OPT.clear(); OPT.update(opt)
    A = Asm()
    L = v.lane
    ST = opt.get("stamp", 0)
    PTS = opt.get("pts", "").split(",") if opt.get("pts") else []
    PSL = [44, 46, 48, 50, 96]
    def pt(name):
        if name in PTS:
            r = PSL[PTS.index(name)]
            A(f"s_memtime s[{r}:{r+1}]")
    def stamp(r, real=False):
        if PTS and r == 96: return
        if opt.get("ls") and r in (94, 4, 6, 8, 10, 12, 14): return
        if ST: A(f"s_mem{'real' if real else ''}time s[{r}:{r+1}]")
    ool = []
    STF = opt.get("stf", "sc1").replace("_", " ")
    WV = v.eF; XV = v.eF + 1; H = v.eF + 2; TRA = v.TRA
    A(f"{KNAME}:")
    stamp(90); stamp(92, True)
    A(f"s_cmp_ge_u32 s2, {NWG}")
    A("s_cbranch_scc1 K_END")
    load_ptrs(A)
    A(f"""
    v_lshrrev_b32 v{v.t0}, 6, v0
    v_and_b32 v{L}, 63, v0
    v_readfirstlane_b32 s3, v{v.t0}
    v_lshlrev_b32 v{v.t3}, 4, v{L}
    s_getpc_b64 {sr(sTB,2)}
    s_add_u32 s{sTB}, s{sTB}, K_TABLE@rel32@lo+4
    s_addc_u32 s{sTB+1}, s{sTB+1}, K_TABLE@rel32@hi+12
    global_load_dwordx4 {vr(v.SEL1,4)}, v{v.t3}, {sr(sTB,2)} offset:3072
    global_load_dwordx4 {vr(v.TAB,4)}, v{v.t3}, {sr(sTB,2)}
    global_load_dwordx4 {vr(v.TAB+4,4)}, v{v.t3}, {sr(sTB,2)} offset:1024
    global_load_dwordx4 {vr(v.SEL0,4)}, v{v.t3}, {sr(sTB,2)} offset:2048
    v_lshlrev_b32 v{v.t2}, 4, v0
    v_lshrrev_b32 v{WV}, 2, v{v.t3}
    v_lshrrev_b32 v{XV}, 4, v{v.t2}
    v_and_b32 v{WV}, 0xc0, v{WV}
    v_and_b32 v{XV}, 0xf0, v{XV}
    v_xor_b32 v{WV}, v{WV}, v{v.t3}
    v_xor_b32 v{XV}, v{XV}, v{v.t2}
    s_lshr_b32 s{sG}, s3, 2
    s_and_b32 s{sC}, s3, 3
    s_cmp_lt_u32 s2, 8
    s_cbranch_scc1 K_LOW
    K_LOWB:
    s_sub_u32 s23, s2, 3
    s_lshr_b32 s{sSl}, s23, 3
    s_cmp_ge_u32 s23, {NCHUNK}
    s_cselect_b32 s{sRole}, {1 - opt.get("r1f", 1)}, {opt.get("r1f", 1)}
    s_cselect_b32 s22, {NCHUNK}, 0
    s_sub_u32 s{sPair}, s23, s22
    s_lshl_b32 s2, s{sPair}, 1
    s_add_u32 s2, s2, s{sRole}
    s_mul_i32 s{sUT}, s{sPair}, {80*256}
    s_sub_u32 s{sX+2}, {N*256}, s{sUT}
    s_mov_b32 s{sX+3}, 0x00020000
    s_lshl_b32 s76, s3, 10
    s_add_u32 s77, s3, s{sSl}
    s_and_b32 s77, s77, {7 if opt.get("rot", 1) else 0}
    {"" if opt.get("rot", 1) else "s_mov_b32 s77, s3"}
    s_lshl_b32 s77, s77, 12
    s_cmp_eq_u32 s{sRole}, 0
    s_waitcnt lgkmcnt(0)
    """)
    def wsadj():
        if opt.get("wsoff"):
            A(f"s_add_u32 s{PWS}, s{PWS}, {opt['wsoff'] << 20}")
            A(f"s_addc_u32 s{PWS+1}, s{PWS+1}, 0")
    wsadj()
    if opt.get("wsoff"): A(f"s_cmp_eq_u32 s{sRole}, 0")
    A("s_cbranch_scc0 K_GEMM")
    ool.append(f"""K_LOW:
    s_cmp_lg_u32 s3, 7
    s_cbranch_scc1 K_LOW2
    s_getpc_b64 s[22:23]
    K_PC:
    s_sub_u32 s22, s22, K_PC-{KNAME}
    s_subb_u32 s23, s23, 0
    v_lshlrev_b32 v{v.JK}, 7, v{L}
    v_add_u32 v{v.JK2}, 0x2000, v{v.JK}
    v_min_u32 v{v.JK2}, K_CODE_END-{KNAME}-4, v{v.JK2}
    global_load_dword v{v.PROG}, v{v.JK}, s[22:23]
    global_load_dword v{v.FV}, v{v.JK2}, s[22:23]
    K_LOW2:
    s_cmp_lt_u32 s2, 3
    s_cbranch_scc1 K_SPECIAL
    s_branch K_LOWB""")
    def xdma(n):
        A(f"""
        s_add_u32 s{sX}, s{PX}, s{sUT}
        s_addc_u32 s{sX+1}, s{PX+1}, 0
        s_add_u32 m0, s76, {L_X}
        s_movk_i32 s23, 0x2000
        buffer_load_dwordx4 v{XV}, {sr(sX,4)}, 0 offen lds
        s_add_u32 m0, s76, {L_X + 8192}
        s_movk_i32 s22, 0x4000
        buffer_load_dwordx4 v{XV}, {sr(sX,4)}, s23 offen lds
        """)
        if n == 3:
            A(f"s_add_u32 m0, s76, {L_X + 16384}")
            A("s_nop 0")
            A(f"buffer_load_dwordx4 v{XV}, {sr(sX,4)}, s22 offen lds")
    def wdma(soff, lds):
        A(f"s_add_u32 m0, s77, {lds}")
        if soff: A(f"s_add_u32 s22, s77, {soff}")
        else: A("s_nop 0")
        for q in range(4):
            A(f"buffer_load_dwordx4 v{WV}, {sr(sWm,4)}, s{22 if soff else 77} offen offset:{q*1024} lds")
    def w23dma(w2=True):
        if w2: wdma(32768, L_W2)
        A(f"s_add_u32 m0, s76, {L_W3}")
        A(f"s_add_u32 s22, s76, 65536")
        A(f"buffer_load_dwordx4 v{WV}, {sr(sWm,4)}, s22 offen lds")
    def sconsts():
        srd(A, sP, PWS, 0 if opt.get('nop') else N, stride=256)
        srd(A, sE, PE, 0 if opt.get('noe') else E, stride=32)
        srd(A, sOUT, POUT, N * 256)
        srd(A, sDB, PDBG, 256)
        A(f"""
        s_mov_b32 s{sMode}, 0
        s_movk_i32 s{sK3F}, 0x3fff
        s_lshl_b32 s{sRing}, s3, 13
        s_lshr_b32 s22, s{sC}, 1
        s_mul_i32 s22, s22, 3072
        s_bfe_u32 s23, s{sC}, 0x10000
        s_lshl_b32 s23, s23, 10
        s_add_u32 s22, s22, s23
        s_mul_i32 s{sElim}, s{sG}, {GEA}
        s_add_u32 s{sE0}, s{sElim}, s22
        s_add_u32 s{sE0}, s{sE0}, {EA}
        s_and_b32 s{sRel}, s2, 63
        s_lshl_b32 s{sRel}, s{sRel}, 7
        s_add_u32 s{sRel}, s{sRel}, {WS_FLAG + 0x4000}
        """)
    def vconsts():
        A(f"""
        v_add_u32 v{v.P0}, s{sRing}, v{v.P0}
        v_add_u32 v{v.E_}, s{sElim}, v{v.E_}
        s_mul_i32 s22, s{sG}, {GSL*8}
        v_xor_b32 v{v.P1}, 16, v{v.P0}
        v_add_u32 v{v.R1}, s22, v{v.R1}
        v_add_u32 v{v.R2}, s22, v{v.R2}
        s_lshl_b32 s23, s{sC}, 8
        s_add_u32 s22, s22, s23
        v_add_u32 v{v.Re}, s22, v{v.Re}
        s_lshl_b32 s22, s{sC}, 6
        v_or_b32 v{v.IX0+1}, s22, v{v.IXo}
        v_or_b32 v{v.IX1+1}, s22, v{v.IXo}
        v_xor_b32 v{TRA}, s22, v{TRA}
        s_mul_i32 s23, s2, 40
        s_mul_i32 s78, s{sG}, 20
        s_add_u32 s23, s23, s78
        s_lshl_b32 s23, s23, 8
        s_add_u32 s23, s23, s22
        v_add_u32 v{v.OA}, s23, v{v.OAl}
        v_mov_b32 v{v.IE+1}, v{v.IEo}
        s_mul_i32 s22, s3, {8*CH}
        v_add_u32 v{v.EB}, s22, v{v.EB}
        s_mul_i32 s22, s3, {4*3072}
        v_add_u32 v{v.QC}, s22, v{v.QC}
        s_lshl_b32 s22, s3, 2
        v_add_u32 v{v.FW}, s22, v{v.FRo}
        s_lshl_b32 s22, s{sG}, 4
        v_add_u32 v{v.FR}, s22, v{v.FRo}
        v_lshrrev_b32 v{H}, 5, v{L}
        s_add_u32 s{sRing}, s{sRing}, {RING}
        s_add_u32 s{sElim}, s{sElim}, {EA + GEA}
        """)
    def lds_init():
        A(f"""
        s_mul_i32 s22, s3, 3072
        s_add_u32 m0, s22, {EA + 2048}
        s_brev_b32 s23, 2
        buffer_load_dwordx4 v{v.t3}, {sr(sWS,4)}, s23 offen lds
        s_add_u32 m0, s22, {EA + 2048 + 24576}
        s_cmp_lt_u32 s3, 2
        buffer_load_dwordx4 v{v.t3}, {sr(sWS,4)}, s23 offen lds
        s_cselect_b32 s78, 0, {JUNK - (EA + 2048 + 73728) - 7 * 3072}
        s_add_u32 m0, s22, {EA + 2048 + 49152}
        s_cselect_b32 s79, s22, {7 * 3072}
        buffer_load_dwordx4 v{v.t3}, {sr(sWS,4)}, s23 offen lds
        """.replace("s_cselect_b32 s78, 0, " + str(JUNK - (EA + 2048 + 73728) - 7 * 3072) + "\n", "").replace(
            f"        s_add_u32 m0, s22, {EA + 2048 + 49152}\n        s_cselect_b32 s79, s22, {7 * 3072}\n",
            f"        s_cselect_b32 s79, s22, {JUNK - (EA + 2048 + 73728)}\n        s_add_u32 m0, s22, {EA + 2048 + 49152}\n        s_lshl_b32 s22, s3, 10\n"))
        A(f"""
        s_add_u32 m0, s79, {EA + 2048 + 73728}
        s_add_u32 s78, s{sTB}, 4096
        buffer_load_dwordx4 v{v.t3}, {sr(sWS,4)}, s23 offen lds
        s_addc_u32 s79, s{sTB+1}, 0
        s_add_u32 m0, s22, {REC - 1024}
        s_cmp_eq_u32 s3, 7
        global_load_lds_dwordx4 v{v.t3}, s[78:79] offset:1024
        s_cbranch_scc1 {A.label('i7')}
        """)
        l7 = f"L_i7_{A.uid}"
        A(f"""
        s_add_u32 m0, s22, {REC + 8192 - 1024}
        s_nop 0
        global_load_lds_dwordx4 v{v.t3}, s[78:79] offset:1024
        {l7}b:
        """)
        ool.append(f"{l7}:\ns_mov_b32 m0, 0\ns_nop 0\nglobal_load_lds_dwordx4 v{v.t3}, s[78:79]\ns_branch {l7}b")
    def tagshare(x, va):
        A(f"""
        s_cmp_lg_u32 s3, 0
        s_cbranch_scc1 K_NS{x}
        {"s_waitcnt vmcnt(0)" if x == "B" else ""}
        K_TAGOK{x}:
        v_cmp_eq_u32 vcc, 0, v{v.FV}
        s_cbranch_vccnz K_TAG{x}
        ds_write_b32 v{va}, v{v.FV}
        K_NS{x}:
        """)
        ool.append(f"K_TAG{x}:\nbuffer_load_dword v{v.FV}, off, {sr(sDB,4)}, 0 sc1\ns_waitcnt vmcnt(0)\ns_branch K_TAGOK{x}")
    def xred(regs, xs):
        for r, x in zip(regs, xs): A(f"v_bitop3_b32 v{x}, v{r}, v{r+1}, v{r+2} bitop3:0x96")
        for r, x in zip(regs, xs): A(f"v_xor_b32 v{x}, v{x}, v{r+3}")
        for pat in ("quad_perm:[1,0,3,2]", "quad_perm:[2,3,0,1]", "row_half_mirror"):
            if len(xs) < 3: A(f"s_nop {2 - len(xs)}")
            for x in xs: A(f"v_xor_b32_dpp v{x}, v{x}, v{x} {pat} row_mask:0xf bank_mask:0xf")
    def tagload(lbl):
        A(f"""
        s_cmp_lg_u32 s3, 0
        s_cbranch_scc1 {lbl}
        buffer_load_dword v{v.FV}, off, {sr(sDB,4)}, 0 sc1
        {lbl}:
        """)
    def qaddr():
        XA = v.E; GA = v.E + 1; TN = v.E + 2
        A(f"""
        s_mul_i32 s22, s{sG}, 20
        s_mul_i32 s23, s{sRole}, 40
        s_add_u32 s22, s22, s23
        v_and_b32 v{XA}, 31, v{L}
        v_add_u32 v{XA}, s22, v{XA}
        v_xor_b32 v{GA}, v{XA}, v{H}
        v_and_b32 v{GA}, 15, v{GA}
        v_lshl_or_b32 v{XA}, v{XA}, 4, v{GA}
        s_mov_b32 s22, {L_X}
        v_lshl_add_u32 v{XA}, v{XA}, 4, s22
        v_lshl_add_u32 v{TN}, v{H}, 11, v{TRA}
        v_add_u32 v{TN}, {L_W2}, v{TN}
        """)
    def qreads():
        XA = v.E; GA = v.E + 1; TN = v.E + 2
        for s_ in range(8):
            A(f"ds_read_b64_tr_b16 {vr(v.WA+4*s_,2)}, v{TN} offset:{s_*4096}")
            A(f"ds_read_b64_tr_b16 {vr(v.WA+4*s_+2,2)}, v{TN} offset:{s_*4096+1024}")
            if s_: A(f"v_xor_b32 v{GA}, {s_*32}, v{XA}")
            A(f"ds_read_b128 {vr(v.XF+4*s_,4)}, v{GA if s_ else XA}")
        A(f"ds_read_b64_tr_b16 {vr(v.W3F,2)}, v{TN} offset:32768")
        A(f"ds_read_b64_tr_b16 {vr(v.W3F+2,2)}, v{TN} offset:33792")
    def qmfma():
        for s_ in range(8):
            A(f"s_waitcnt lgkmcnt({min(15, 3*(7-s_) + 2)})")
            A(mfma(v.E, v.XF + 4*s_, v.WA + 4*s_, "0" if s_ == 0 else None))
            A(f"v_mov_b64 {P(v.ACC+2*s_)}, 0")
        A(f"""
        s_mov_b32 s72, {NEG_LOG2E:#x}
        v_cmp_gt_u32 {sr(sN40,2)}, 40, v{L}
        v_cmp_le_u32 {sr(sG1,2)}, 20, v{L}
        v_mov_b32 v{v.ONE}, 1.0
        v_mov_b32 v{v.ONE+1}, 1.0
        s_waitcnt lgkmcnt(0)
        """)
        for r in range(4):
            A(f"""
            v_lshlrev_b32 v{v.S}, 16, v{v.W3F+r}
            v_and_b32 v{v.S+1}, 0xffff0000, v{v.W3F+r}
            v_mul_f32 v{v.S}, s72, v{v.S}
            v_mul_f32 v{v.S+1}, s72, v{v.S+1}
            v_cvt_pk_bf16_f32 v{v.W3F+r}, v{v.S}, v{v.S+1}
            """)
    def post(x):
        A(f"""
        s_cmp_lg_u32 s3, 0
        s_cbranch_scc1 K_NP{x}
        v_readfirstlane_b32 s{sTag}, v{v.FV}
        s_cmp_eq_u32 s{sTag}, 0
        s_cbranch_scc1 K_TAG{x}
        K_TAGOK{x}:
        s_mov_b64 exec, 1
        buffer_store_dword v{v.FV}, off, {sr(sWS,4)}, s{sUoff} sc1
        s_mov_b64 exec, -1
        K_NP{x}:
        """)
        ool.append(f"K_TAG{x}:\nbuffer_load_dword v{v.FV}, off, {sr(sDB,4)}, 0 sc1\ns_waitcnt vmcnt(0)\nv_readfirstlane_b32 s{sTag}, v{v.FV}\ns_cmp_eq_u32 s{sTag}, 0\ns_cbranch_scc1 K_TAG{x}\ns_branch K_TAGOK{x}")
    MC = opt.get("mc", 0)
    D, S, RK, AD = v.T, v.T + 8, v.T1, v.T1 + 8
    CW = v.E
    A(f"s_mul_i32 s22, s{sPair}, {CH*4}")
    srd(A, sD, PDST, CH * 4, add="s22")
    A(f"""
    v_lshlrev_b32 v{v.t1}, 2, v0
    s_movk_i32 s23, 0x2000
    buffer_load_dwordx4 {vr(D,4)}, v{v.t2}, {sr(sD,4)}, 0 offen
    buffer_load_dword v{D+4}, v{v.t1}, {sr(sD,4)}, s23 offen
    """)
    srd(A, sS, PSRC, CH * 4, add="s22")
    A(f"""
    buffer_load_dwordx4 {vr(S,4)}, v{v.t2}, {sr(sS,4)}, 0 offen
    buffer_load_dword v{S+4}, v{v.t1}, {sr(sS,4)}, s23 offen
    v_mov_b64 {P(CW)}, -1
    v_mov_b64 {P(CW+2)}, -1
    v_mov_b32 v{CW+4}, 0
    ds_write_b128 v{v.t2}, {vr(CW,4)}
    ds_write_b128 v{v.t2}, {vr(CW,4)} offset:8192
    ds_write_b128 v{v.t2}, {vr(CW,4)} offset:16384
    ds_write_b128 v{v.t2}, {vr(CW,4)} offset:24576
    ds_write_b32 v{v.t1}, v{CW+4} offset:32768
    """)
    srd(A, sWm, PWM, 272 * 256)
    EARLY0 = opt.get("e0", 0)
    P0M = opt.get("p0", 2)
    if P0M == 1:
        xdma(2); w23dma(False)
    nb0 = 3 if P0M == 1 else 0
    srd(A, sWS, PWS, 0x10000000 if (opt.get('rw') or opt.get('dup')) else (WS_END if not ST else 0x1000000))
    sconsts()
    A(f"""
    v_lshlrev_b32 v{CW+6}, 22, v0
    v_add_u32 v{CW+7}, 0x800, v0
    v_lshlrev_b32 v{CW+7}, 20, v{CW+7}
    v_mov_b32 v{CW+5}, 16
    s_mov_b32 s72, -10
    s_mov_b32 s73, 0x100000
    s_mov_b32 s74, 0x200000
    s_mov_b32 s75, 0x300000
    s_lshl_b32 s78, s{sPair}, 15
    s_add_u32 s78, s78, {WS_CELL}
    v_mov_b32 v{CW+9}, {32768 + 1024}
    s_movk_i32 s79, {31*16}
    s_waitcnt lgkmcnt(0)
    s_barrier
    s_waitcnt vmcnt({2 + nb0})
    """)
    stamp(94)
    tagload("K_NT1")
    t = CW + 8
    for j in range(5):
        A(f"""
        v_mul_u32_u24 v{AD+j}, 0xcccd, v{D+j}
        v_lshrrev_b32 v{AD+j}, 19, v{AD+j}
        v_and_b32 v{AD+j}, -4, v{AD+j}
        ds_add_rtn_u32 v{RK+j}, v{AD+j}, v{CW+5} offset:32768
        """)
    if P0M == 1:
        wdma(32768, L_W2); nb0 += 4
    if P0M == 2:
        xdma(2); w23dma(); nb0 += 7
    for j in range(5):
        A(f"v_mad_i32_i24 v{D+j}, v{AD+j}, s72, v{D+j}")
    A(f"s_waitcnt vmcnt({nb0})")
    tagshare("A", CW + 9)
    for j in range(5):
        d = D + j
        A(f"v_lshl_or_b32 v{d}, v{d}, 14, v{S+j}")
        if j == 0: A(f"v_add_u32 v{d}, v{d}, v{CW+6}")
        elif j < 4: A(f"v_add3_u32 v{d}, v{d}, v{CW+6}, s{72+j}")
        else: A(f"v_add_u32 v{d}, v{d}, v{CW+7}")
    A("s_waitcnt lgkmcnt(0)")
    pt("rk")
    A(f"v_max3_u32 v{t}, v{RK}, v{RK+1}, v{RK+2}")
    A(f"v_max3_u32 v{t}, v{t}, v{RK+3}, v{RK+4}")
    A(f"v_cmp_le_u32 vcc, s79, v{t}")
    A("s_cbranch_vccnz K_BOVF")
    A("K_BOVB:")
    B = Asm()
    B("K_BOVF:")
    B(f"v_mov_b32 v{t}, -2")
    for j in range(5):
        B(f"v_cmp_le_u32 vcc, s79, v{RK+j}")
        B(f"v_min_u32 v{RK+j}, s79, v{RK+j}")
        B("s_nop 0")
        B(f"v_cndmask_b32 v{D+j}, v{D+j}, v{t}, vcc")
    B("s_branch K_BOVB")
    ool.append(B.text())
    for j in range(5):
        r = RK + j
        A(f"""
        v_lshrrev_b32 v{t}, 5, v{r}
        v_and_b32 v{r}, 0x70, v{r}
        v_and_or_b32 v{r}, v{t}, 12, v{r}
        v_lshl_add_u32 v{r}, v{AD+j}, 5, v{r}
        ds_write_b32 v{r}, v{D+j}
        """)
    A(f"""
    s_add_u32 s73, s78, 8192
    s_add_u32 s74, s78, 16384
    s_add_u32 s75, s78, 24576
    s_waitcnt lgkmcnt(0)
    s_barrier
    """)
    pt("cb")
    A(f"""
    ds_read_b32 v{v.FV}, v{CW+9}
    ds_read_b128 {vr(v.T,4)}, v{v.t2}
    ds_read_b128 {vr(v.T+4,4)}, v{v.t2} offset:8192
    ds_read_b128 {vr(v.T+8,4)}, v{v.t2} offset:16384
    ds_read_b128 {vr(v.T+12,4)}, v{v.t2} offset:24576
    s_waitcnt lgkmcnt(0)
    v_not_b32 v{v.T1+4}, v{v.FV}
    """)
    def mkoff(regs):
        if not opt.get("rw"): return
        A(f"v_readfirstlane_b32 s{sOff}, v{v.FV}")
        A(f"s_bfe_u32 s{sOff}, s{sOff}, 0x40006")
        A(f"s_max_u32 s{sOff}, s{sOff}, 1")
        A(f"s_lshl_b32 s{sOff}, s{sOff}, 24")
        for r in regs: A(f"s_add_u32 s{r}, s{r}, s{sOff}")
        A(f"s_add_u32 s{sP}, s{sP}, s{sOff}")
        A(f"s_addc_u32 s{sP+1}, s{sP+1}, 0")
    mkoff([78, 73, 74, 75])
    xred([v.T + 4*q for q in range(4)], [v.T1 + q for q in range(4)])
    A("s_mov_b32 exec_lo, 0x80808080")
    A("s_mov_b32 exec_hi, 0x80808080")
    for q in range(4):
        A(f"v_xor_b32 v{v.T+4*q+3}, v{v.T1+q}, v{v.T1+4}")
    A("s_mov_b64 exec, -1")
    if opt.get("dup") == 1:
        A(f"v_add_u32 v{v.T1+5}, 0x1000000, v{v.t2}")
        for q in range(4):
            A(f"buffer_store_dwordx4 {vr(v.T+4*q,4)}, v{v.T1+5}, {sr(sWS,4)}, s{(78,73,74,75)[q]} offen {STF}")
    for q in range(4):
        A(f"buffer_store_dwordx4 {vr(v.T+4*q,4)}, v{v.t2}, {sr(sWS,4)}, s{(78,73,74,75)[q]} offen {STF}")
    if opt.get("dup") == 2:
        A(f"v_add_u32 v{v.T1+5}, 0x1000000, v{v.t2}")
        for q in range(4):
            A(f"buffer_store_dwordx4 {vr(v.T+4*q,4)}, v{v.T1+5}, {sr(sWS,4)}, s{(78,73,74,75)[q]} offen {STF}")
    stamp(4)
    vconsts()
    A(f"s_waitcnt vmcnt({8 if opt.get('dup') else 4})")
    A("s_branch K_COM0")
    A("K_GEMM:")
    pt("k0")
    if opt.get("wfirst"):
        srd(A, sWm, PWM, 272 * 256)
        wdma(0, 0)
        xdma(3)
    else:
        xdma(3)
        srd(A, sWm, PWM, 272 * 256)
        wdma(0, 0)
    G1M = opt.get("g1", 2)
    pt("g0")
    if G1M == 0: w23dma()
    pt("g1")
    srd(A, sWS, PWS, 0x10000000 if (opt.get('rw') or opt.get('dup')) else (WS_END if not ST else 0x1000000))
    sconsts()
    if opt.get("tlb"):
        A(f"""
        s_cmp_lg_u32 s3, 7
        s_cbranch_scc1 K_NOTLB
        v_lshlrev_b32 v{v.JK}, 21, v{L}
        v_lshlrev_b32 v{v.JK2}, 16, v{L}
        s_mov_b32 s22, 0x7ff80
        buffer_load_dword v{v.PROG}, v{v.JK}, {sr(sWS,4)}, s22 offen
        {f"buffer_load_dword v{v.LA}, v{v.JK2}, {sr(sE,4)}, 0 idxen" if opt.get("tlb") >= 2 else ""}
        {f"buffer_load_dword v{v.OHA}, v{v.JK}, {sr(sOUT,4)}, 0 offen" if opt.get("tlb") >= 2 else ""}
        K_NOTLB:
        """)
    XA = v.E; PA = v.E + 1; GA = v.E + 2; TN = v.E + 3
    A(f"""
    s_lshl_b32 s{sPair}, s{sPair}, 4
    s_add_u32 s{sPair}, s{sPair}, {WS_FLAG + 0x2000}
    s_mov_b32 s72, {NEG_LOG2E:#x}
    s_add_u32 s73, s{sUT}, 0x2000
    s_add_u32 s74, s{sUT}, 0x4000
    s_cmp_ge_u32 s3, 4
    s_cselect_b32 s74, 0x40000000, s74
    v_add_u32 v{v.JK3}, {L_BN}, v{v.t2}
    v_and_b32 v{XA}, 31, v{L}
    s_lshl_b32 s22, s{sG}, 5
    v_add_u32 v{XA}, s22, v{XA}
    s_waitcnt vmcnt({12 if G1M == 0 else 7})
    """)
    pt("g2")
    vconsts()
    A(f"""
    v_lshl_add_u32 v{TN}, v{H}, 11, v{TRA}
    s_lshl_b32 s22, s{sC}, 2
    v_lshl_add_u32 v{PA}, v{H}, 1, s22
    v_xor_b32 v{PA}, v{PA}, v{XA}
    v_and_b32 v{PA}, 15, v{PA}
    v_lshl_or_b32 v{PA}, v{XA}, 4, v{PA}
    s_mov_b32 s22, {L_BN}
    v_lshl_add_u32 v{PA}, v{PA}, 4, s22
    v_xor_b32 v{GA}, v{H}, v{XA}
    v_and_b32 v{GA}, 15, v{GA}
    v_lshl_or_b32 v{XA}, v{XA}, 4, v{GA}
    s_mov_b32 s22, {L_X}
    v_lshl_add_u32 v{XA}, v{XA}, 4, s22
    """)
    for s_ in range(1, 8):
        A(f"v_xor_b32 v{v.E+8+s_}, {s_*32}, v{XA}")
    pt("g3")
    if "gx" in PTS:
        A("s_waitcnt vmcnt(4)")
        pt("gx")
        A("s_waitcnt vmcnt(0)")
        pt("gw")
    if G1M == 1: w23dma()
    A(f"s_waitcnt vmcnt({5 if G1M < 2 else 0})")
    A("s_barrier")
    stamp(94)
    for s_ in range(8):
        A(f"ds_read_b64_tr_b16 {vr(v.WA+4*s_,2)}, v{TN} offset:{s_*4096}")
        A(f"ds_read_b64_tr_b16 {vr(v.WA+4*s_+2,2)}, v{TN} offset:{s_*4096+1024}")
        A(f"ds_read_b128 {vr(v.XF+4*s_,4)}, v{v.E+8+s_ if s_ else XA}")
    if G1M == 2: w23dma()
    A(f"s_cmp_lg_u32 s{sG}, 0")
    A("s_cbranch_scc1 K_G1")
    for s_ in range(8):
        A(f"ds_read_b128 {vr(v.U2+4*s_,4)}, v{v.E+8+s_ if s_ else XA} offset:16384")
    tagload("K_NT2")
    for s_ in range(8):
        A(f"s_waitcnt lgkmcnt({min(15, 3*(7-s_) + 8)})")
        A(mfma(v.T, v.WA + 4*s_, v.XF + 4*s_, "0" if s_ == 0 else None))
    for s_ in range(8):
        A(f"s_waitcnt lgkmcnt({7-s_})")
        A(mfma(v.T1, v.WA + 4*s_, v.U2 + 4*s_, "0" if s_ == 0 else None))
    def pout(acc, off, pk):
        for r in range(0, 16, 2):
            if pk:
                A(f"v_pk_mul_f32 {P(acc+r)}, {P(acc+r)}, s[72:73] op_sel_hi:[1,0]")
            else:
                A(f"v_mul_f32 v{acc+r}, s72, v{acc+r}")
                A(f"v_mul_f32 v{acc+r+1}, s72, v{acc+r+1}")
        for r in range(0, 16, 2):
            A(f"v_cvt_pk_bf16_f32 v{acc+r//2}, v{acc+r}, v{acc+r+1}")
        A(f"ds_write_b128 v{PA}, {vr(acc,4)} offset:{off}")
        A(f"ds_write_b128 v{GA}, {vr(acc+4,4)} offset:{off}")
    A(f"v_xor_b32 v{GA}, 16, v{PA}")
    pout(v.T, 0, False)
    pout(v.T1, 16384, True)
    A("s_branch K_G3")
    A("K_G1:")
    for s_ in range(8):
        A(f"s_waitcnt lgkmcnt({min(15, 3*(7-s_))})")
        A(mfma(v.T, v.WA + 4*s_, v.XF + 4*s_, "0" if s_ == 0 else None))
    A(f"v_xor_b32 v{GA}, 16, v{PA}")
    A("s_nop 10")
    pout(v.T, 0, False)
    A("K_G3:")
    pt("g4")
    A(f"v_mov_b32 v{v.JK}, {L_BN + 24576}")
    tagshare("B", v.JK)
    A(f"""
    s_waitcnt lgkmcnt(0)
    s_barrier
    ds_read_b32 v{v.FV}, v{v.JK}
    ds_read_b128 {vr(v.T,4)}, v{v.JK3}
    ds_read_b128 {vr(v.T+4,4)}, v{v.JK3} offset:8192
    ds_read_b128 {vr(v.T+8,4)}, v{v.JK3} offset:16384
    s_waitcnt lgkmcnt(2)
    """)
    mkoff([sUT, 73, 74])
    A(f"""
    buffer_store_dwordx4 {vr(v.T,4)}, v{XV}, {sr(sWS,4)}, s{sUT} offen {STF}
    s_waitcnt lgkmcnt(1)
    buffer_store_dwordx4 {vr(v.T+4,4)}, v{XV}, {sr(sWS,4)}, s73 offen {STF}
    s_waitcnt lgkmcnt(0)
    buffer_store_dwordx4 {vr(v.T+8,4)}, v{XV}, {sr(sWS,4)}, s74 offen {STF}
    """)
    stamp(4)
    A("s_waitcnt vmcnt(3)")
    A("K_COM0:")
    A(f"v_readfirstlane_b32 s{sTag}, v{v.FV}")
    qaddr()
    A("s_barrier")
    pt("c1")
    qreads()
    lds_init()
    pt("c2")
    qmfma()
    stamp(6)
    A("K_COMMON:")
    pt("c3")
    for r in range(0, 12, 2):
        A(f"v_pk_mul_f32 {P(v.E+r)}, {P(v.E+r)}, s[72:73] op_sel_hi:[1,0]")
    A(f"""
    v_cvt_pk_bf16_f32 v{v.QS}, v{v.E}, v{v.E+1}
    v_cvt_pk_bf16_f32 v{v.QS+1}, v{v.E+2}, v{v.E+3}
    v_cvt_pk_bf16_f32 v{v.QF+2}, v{v.E+4}, v{v.E+5}
    v_cvt_pk_bf16_f32 v{v.QF+3}, v{v.E+6}, v{v.E+7}
    v_cvt_pk_bf16_f32 v{v.QS+2}, v{v.E+8}, v{v.E+9}
    v_cvt_pk_bf16_f32 v{v.QS+3}, v{v.E+10}, v{v.E+11}
    s_lshl_b32 s{sUoff}, s{sC}, 13
    s_add_u32 s{sUoff}, s{sUoff}, {WS_U}
    """)
    def round_regs():
        A(f"""
        v_mov_b32 v{v.TPa+1}, v{v.IX0+1}
        v_mov_b32 v{v.TPb+1}, v{v.IX0+1}
        v_mov_b32 v{v.IEb+1}, v{v.IE+1}
        v_mov_b32 v{v.aggF}, 1
        v_mov_b64 {P(v.REC+4)}, -1
        v_mov_b64 {P(v.REC+6)}, -1
        v_add_u32 v{v.JK}, {64 * CH}, v{v.EB}
        """)
    def cell_addr():
        A(f"""
        s_lshl_b32 s22, s2, 7
        s_add_u32 s22, s22, {WS_CELL}
        {f"s_add_u32 s22, s22, s{sOff}" if opt.get("rw") else ""}
        s_add_u32 s23, s22, {64*32768}
        s_movk_i32 s76, {1000 - 512}
        v_cmp_gt_u32 s[76:77], s76, v0
        v_lshrrev_b32 v{v.t0}, 3, v0
        v_and_b32 v{v.t1}, 7, v0
        v_lshlrev_b32 v{v.t1}, 4, v{v.t1}
        v_lshl_add_u32 v{v.DS}, v{v.t0}, 15, v{v.t1}
        """)
    round_regs()
    A(f"""
    s_cmp_eq_u32 s{sRole}, 0
    s_cbranch_scc1 {"K2_B3" if opt.get("isl", 8) else "K2_B2"}
    s_waitcnt vmcnt(6)
    s_barrier
    s_cmp_eq_u32 s3, 0
    s_cbranch_scc1 K2_B1
    K2_B2:
    """)
    stamp(8)
    A("K2_CELLS:")
    cell_addr()
    A("s_mov_b64 s[74:75], -1")
    A("s_and_b32 s72, s76, 0x80808080")
    A("s_and_b32 s73, s77, 0x80808080")
    stamp(10)
    A(f"""
    K_POLL:
    s_mov_b64 exec, s[74:75]
    buffer_load_dwordx4 {vr(v.REC,4)}, v{v.DS}, {sr(sWS,4)}, s22 offen sc1
    s_mov_b64 exec, s[76:77]
    buffer_load_dwordx4 {vr(v.REC+4,4)}, v{v.DS}, {sr(sWS,4)}, s23 offen sc1
    s_mov_b64 exec, -1
    buffer_load_dword v{v.JK2}, off, {sr(sWS,4)}, s{sRel} sc1
    s_waitcnt vmcnt(0)
    """)
    xred([v.REC, v.REC + 4], [v.NS, v.NS + 1])
    A(f"""
    v_xor_b32 v{v.NS}, s{sTag}, v{v.NS}
    v_xor_b32 v{v.NS+1}, s{sTag}, v{v.NS+1}
    v_cmp_lt_u32 s[74:75], 1, v{v.NS}
    v_cmp_lt_u32 vcc, 1, v{v.NS+1}
    s_and_b64 s[76:77], s[76:77], vcc
    s_or_b64 s[78:79], s[74:75], s[76:77]
    s_cbranch_scc1 K_POLL2
    s_mov_b32 exec_lo, 0x80808080
    s_mov_b32 exec_hi, 0x80808080
    v_not_b32 v{v.REC+3}, v{v.NS}
    s_mov_b64 exec, s[72:73]
    v_not_b32 v{v.REC+7}, v{v.NS+1}
    s_mov_b64 exec, -1
    """)
    A(f"""
    s_cmp_lg_u32 s{sMode}, 0
    s_barrier
    s_cbranch_scc1 K2_COUNT
    ds_read_b128 {vr(v.SEL0,4)}, v{v.S0a}
    ds_read_b128 {vr(v.SEL1,4)}, v{v.S1a}
    K2_COUNT:
    """)
    ool.append(f"K2_B1:\ns_mov_b64 exec, 1\nbuffer_store_dword v{v.FV}, off, {sr(sWS,4)}, s{sPair} sc1\ns_mov_b64 exec, -1\ns_branch K2_B2")
    if opt.get("isl", 8): ool.append(f"K2_B3:\ns_waitcnt vmcnt(6)\ns_sleep {opt.get('isl', 8) - 1}\ns_branch K2_B2")
    ool.append(f"K_POLL2:\ns_sleep {opt.get('slp', 12)}\ns_branch K_POLL")
    stamp(12)
    ET = opt.get("et", 5)
    W0 = {0: v.W0, 1: v.W0 + 2, 4: v.W0 + 4, 5: v.W0 + 6}
    for j in range(8):
        main = j % 4 < 2
        body = f"""
        v_lshrrev_b32 v{v.AD+j}, 12, v{v.REC+j}
        v_and_b32 v{v.AD+j}, 0xfc, v{v.AD+j}
        s_mov_b64 exec, {sr(sM+2*j,2)}
        ds_add_rtn_u32 v{v.RANK+j}, v{v.AD+j}, v{v.aggF} offset:{CNT}
        """
        A(f"v_cmp_gt_u32 {sr(sM+2*j,2)}, -2, v{v.REC+j}")
        if main:
            A(body)
            A(f"v_lshrrev_b32 v{W0[j]+1}, 20, v{v.REC+j}")
            if ET:
                A(f"v_subrev_u32 v{v.t0}, 80, v{v.AD+j}")
            A(f"v_add_u32 v{W0[j]+1}, v{W0[j]+1}, v{v.EB if j < 4 else v.JK}")
            if ET:
                A(f"v_min_u32 v{v.t0}, v{v.t0}, v{v.AD+j}")
                A(f"v_cmpx_gt_u32 vcc, {4*ET}, v{v.t0}")
                A(f"buffer_load_dword v{v.JK3}, v{W0[j]+1}, {sr(sE,4)}, 0 idxen")
            A("s_mov_b64 exec, -1")
        else:
            l = A.label("cs"); lb = A.label("cb")
            body += "s_mov_b64 exec, -1\n"
            if j % 4 == 3:
                A(f"v_cmp_eq_u32 vcc, -2, v{v.REC+j}")
                A(f"s_or_b64 s[22:23], {sr(sM+2*j,2)}, vcc")
                body += f"s_cbranch_vccz {lb}\nv_mov_b32 v{v.t1}, {FLAG}\nds_write_b32 v{v.t1}, v{v.aggF}\n"
            else:
                A(f"s_cmp_lg_u64 {sr(sM+2*j,2)}, 0")
            A(f"s_cbranch_scc1 {l}")
            A(f"{lb}:")
            ool.append(f"{l}:\n{body}\ns_branch {lb}")
    NPF = opt.get("pf", 0)
    if NPF:
        A(f"""
        s_or_b32 s22, s3, s{sMode}
        s_cmp_lg_u32 s22, 0
        s_cbranch_scc1 K2_NOPF
        v_cmp_ne_u32 vcc, s{sTag}, v{v.JK2}
        s_cbranch_vccnz K2_NOPF
        s_mul_i32 s22, s{sSl}, 81920
        v_lshlrev_b32 v{v.t0}, 7, v{L}
        """)
        for q in range(NPF):
            A(f"buffer_load_dword v{v.JK3}, v{v.t0}, {sr(sWS,4)}, s22 offen")
            if q < NPF - 1: A("s_add_u32 s22, s22, 8192")
        A("K2_NOPF:")
    c = v.t0; pd = v.OHA
    A(f"""
    v_lshlrev_b32 v{v.t0}, 2, v{L}
    v_mov_b32 v{v.t1}, {FLAG}
    s_mul_i32 s22, s{sG}, 20
    s_add_u32 s22, s22, 8
    s_waitcnt lgkmcnt(0)
    s_barrier
    """)
    pt("b2")
    A(f"""
    ds_read_b32 v{v.t0}, v{v.t0} offset:{CNT}
    ds_read_b32 v{v.t1}, v{v.t1}
    s_waitcnt lgkmcnt(0)
    v_add_u32 v{c}, 3, v{c}
    v_and_b32 v{c}, -4, v{c}
    v_max_u32 v{c}, 4, v{c}
    v_cndmask_b32 v{pd}, 0, v{c}, {sr(sN40,2)}
    v_readfirstlane_b32 s23, v{v.t1}
    s_nop 0
    v_add_u32_dpp v{c}, v{pd}, v{pd} row_shr:1 row_mask:0xf bank_mask:0xf bound_ctrl:0
    s_nop 1
    v_add_u32_dpp v{c}, v{c}, v{c} row_shr:2 row_mask:0xf bank_mask:0xf bound_ctrl:0
    s_nop 1
    v_add_u32_dpp v{c}, v{c}, v{c} row_shr:4 row_mask:0xf bank_mask:0xf bound_ctrl:0
    s_nop 1
    v_add_u32_dpp v{c}, v{c}, v{c} row_shr:8 row_mask:0xf bank_mask:0xf bound_ctrl:0
    s_nop 1
    v_add_u32_dpp v{c}, v{c}, v{c} row_bcast:15 row_mask:0xa bank_mask:0xf
    s_nop 1
    v_add_u32_dpp v{c}, v{c}, v{c} row_bcast:31 row_mask:0xc bank_mask:0xf
    s_cmp_lg_u32 s23, -1
    s_cbranch_scc1 K2_OVF
    v_readlane_b32 s{sT0}, v{c}, 19
    v_readlane_b32 s{sT1}, v{c}, 39
    v_sub_u32 v{pd}, v{c}, v{pd}
    s_sub_u32 s23, {GSL}, s{sT0}
    v_add_u32 v{c}, s23, v{pd}
    v_cndmask_b32 v{pd}, v{pd}, v{c}, {sr(sG1,2)}
    v_add_u32 v{v.FV}, v{pd}, v{v.OHB}
    """)
    for j in (0, 1, 4, 5):
        A(f"ds_bpermute_b32 v{v.PK+j}, v{v.AD+j}, v{v.FV}")
    A(f"""
    v_readlane_b32 s{sTsw}, v{pd}, s22
    s_sub_u32 s{sT1}, s{sT1}, s{sT0}
    s_max_u32 s22, s{sT0}, s{sT1}
    s_cmp_gt_u32 s22, {GSL}
    s_cbranch_scc1 K2_OVF
    s_waitcnt lgkmcnt(0)
    """)
    pt("sc")
    for j in (0, 1, 4, 5, 2, 3, 6, 7):
        rare = (j % 4) >= 2
        w = v.W0 + 8 if rare else W0[j]
        body = f"""
        s_mov_b64 exec, {sr(sM+2*j,2)}
        v_add_u32_sdwa v{v.RANK+j}, v{v.PK+j}, v{v.RANK+j} dst_sel:DWORD dst_unused:UNUSED_PAD src0_sel:WORD_0 src1_sel:DWORD
        v_bfi_b32 v{w}, s{sK3F}, v{v.REC+j}, v{v.PK+j}
        v_lshlrev_b32 v{v.PK+j}, 3, v{v.RANK+j}
        v_lshrrev_b32 v{v.RANK+j}, 2, v{v.RANK+j}
        ds_write_b64 v{v.PK+j}, {P(w)} offset:{REC}
        ds_write_b8 v{v.RANK+j}, v{v.AD+j} offset:{QN}
        """
        if rare:
            l = A.label("ss"); lb = A.label("sb")
            A(f"s_cmp_lg_u64 {sr(sM+2*j,2)}, 0")
            A(f"s_cbranch_scc1 {l}")
            A(f"{lb}:")
            ool.append(f"{l}:\ns_mov_b64 exec, -1\nds_bpermute_b32 v{v.PK+j}, v{v.AD+j}, v{v.FV}\nv_lshrrev_b32 v{w+1}, 20, v{v.REC+j}\nv_add_u32 v{w+1}, v{w+1}, v{v.EB if j < 4 else v.JK}\ns_waitcnt lgkmcnt(0)\n{body}\ns_branch {lb}")
        else:
            A(body)
    A(f"""
    s_mov_b64 exec, -1
    s_or_b32 s22, s3, s{sMode}
    s_cmp_lg_u32 s22, 0
    s_cbranch_scc1 K2_RDY
    v_cmp_ne_u32 vcc, s{sTag}, v{v.JK2}
    s_cbranch_vccnz {"K2_SPOLL" if opt.get("sp", 1) else "K2_RPOLL"}
    K2_RDY:
    s_mov_b32 m0, s{sRing}
    s_waitcnt lgkmcnt(0)
    s_barrier
    """)
    ool.append(f"K2_RPOLL:\nbuffer_load_dword v{v.JK2}, off, {sr(sWS,4)}, s{sRel} sc1\ns_waitcnt vmcnt(0)\nv_cmp_ne_u32 vcc, s{sTag}, v{v.JK2}\ns_cbranch_vccz K2_RDY\ns_sleep 1\ns_branch K2_RPOLL")
    ool.append(f"K2_SPOLL:\ns_mov_b32 s23, 0\nK2_SP2:\ns_buffer_load_dword s22, {sr(sWS,4)}, s{sRel} glc\ns_waitcnt lgkmcnt(0)\ns_cmp_eq_u32 s22, s{sTag}\ns_cbranch_scc1 K2_RDY\ns_add_u32 s23, s23, 1\ns_cmp_lt_u32 s23, 16\ns_cbranch_scc1 K2_SP2\ns_branch K2_RPOLL")
    stamp(14)
    A(f"""
    ds_read_u16 v{v.IX0}, v{v.R1}
    ds_read_u16 v{v.IX1}, v{v.R1} offset:64
    ds_read_b32 v{v.IE}, v{v.Re}
    ds_read_u8 v{v.t0}, v0 offset:{QN}
    ds_read_u16 v{v.TPa}, v{v.R1} offset:256
    ds_read_u16 v{v.TPb}, v{v.R1} offset:320
    ds_read_b32 v{v.IEb}, v{v.Re} offset:1024
    ds_read_u8 v{v.OH0}, v{v.R2}
    ds_read_u8 v{v.OHA}, v{v.R2} offset:256
    s_waitcnt lgkmcnt(8)
    buffer_load_dwordx4 {P(v.IX0)}, {sr(sP,4)}, 0 idxen offen lds
    s_add_u32 m0, s{sRing}, 1024
    s_waitcnt lgkmcnt(7)
    buffer_load_dwordx4 {P(v.IX1)}, {sr(sP,4)}, 0 idxen offen lds
    s_mov_b32 m0, s{sE0}
    s_waitcnt lgkmcnt(5)
    buffer_load_dwordx4 {P(v.IE)}, {sr(sE,4)}, 0 idxen offen lds
    v_cmp_ne_u32 vcc, 0xff, v{v.t0}
    v_subrev_u32 v{v.t1}, 80, v{v.t0}
    v_min_u32 v{v.t0}, v{v.t0}, v{v.t1}
    v_lshl_add_u32 v{v.t1}, v{v.t0}, 3, v{v.QC}
    v_lshrrev_b32 v{v.t0}, 1, v{v.t0}
    v_and_b32 v{v.t0}, 16, v{v.t0}
    v_xor_b32 v{v.t1}, v{v.t1}, v{v.t0}
    v_mov_b32 v{v.t0}, 0x3f80
    s_mov_b64 exec, vcc
    ds_write_b16 v{v.t1}, v{v.t0}
    s_mov_b64 exec, -1
    s_add_u32 m0, s{sRing}, 2048
    s_waitcnt lgkmcnt(0)
    buffer_load_dwordx4 {P(v.TPa)}, {sr(sP,4)}, 0 idxen offen lds
    s_add_u32 m0, s{sRing}, 3072
    ds_read_u16 v{v.IX0}, v{v.R1} offset:512
    buffer_load_dwordx4 {P(v.TPb)}, {sr(sP,4)}, 0 idxen offen lds
    ds_read_u16 v{v.IX1}, v{v.R1} offset:576
    ds_read_u16 v{v.TPa}, v{v.R1} offset:768
    ds_read_u16 v{v.TPb}, v{v.R1} offset:832
    s_mul_i32 s22, s{sG}, {GSL}
    s_sub_u32 s{sTsw}, s{sTsw}, s22
    s_add_u32 s{sTsw}, s{sTsw}, 31
    s_lshr_b32 s{sTsw}, s{sTsw}, 5
    s_add_u32 s{sT0}, s{sT0}, 31
    s_lshr_b32 s{sT0}, s{sT0}, 5
    s_add_u32 s{sT1}, s{sT1}, 31
    s_lshr_b32 s{sT1}, s{sT1}, 5
    s_cmp_gt_u32 s{sT0}, s{sT1}
    s_cselect_b32 s{sLate}, 1, 0
    s_xor_b32 s{sLate}, s{sLate}, s{sG}
    s_cmp_eq_u32 s{sG}, 0
    s_cselect_b32 s{sTg}, s{sT0}, s{sT1}
    s_sub_u32 s{sUT}, s{sTg}, 9
    s_and_b32 s{sUT}, s{sUT}, -4
    s_add_u32 s{sUT}, s{sUT}, 1
    s_cmp_lt_u32 s{sTg}, 9
    s_cselect_b32 s{sUT}, {BIG}, s{sUT}
    s_cmp_lg_u32 s{sMode}, 0
    s_cselect_b32 s{sUT}, {BIG}, s{sUT}
    s_sub_u32 s22, s{sTg}, 1
    s_lshr_b32 s22, s22, 1
    s_mul_i32 s22, s22, 3072
    s_add_u32 s22, s22, {3072 + 2048}
    v_add_u32 v{v.LA}, s22, v{v.E_}
    s_add_u32 s{sEdst}, s{sE0}, {6144 if opt.get('ek', 3) == 3 else 12288}
    s_mov_b32 s{sTile}, 0
    v_mov_b32 v{v.PROG}, 1
    v_mov_b64 {P(v.QF)}, {P(v.QS)}
    v_mov_b64 {P(v.NS)}, 0
    v_mov_b64 {P(v.NS+2)}, 0
    v_mov_b64 {P(v.DS)}, {P(v.ONE)}
    v_mov_b64 {P(v.DS+2)}, {P(v.ONE)}
    v_mov_b64 {P(v.MSG)}, 0
    v_mov_b64 {P(v.aggF)}, 0
    v_mov_b64 {P(v.aggF+2)}, 0
    v_mov_b64 {P(v.S)}, 0
    s_cmp_lg_u32 s{sMode}, 0
    s_waitcnt vmcnt(2) lgkmcnt(0)
    s_barrier
    """)
    stamp(16)
    A(f"""
    ds_read_b128 {vr(v.ohF,4)}, v{v.OH0}
    ds_read_b128 {vr(v.eF,4)}, v{v.E_} offset:3072
    ds_read_b128 {vr(v.pF0,4)}, v{v.P0}
    ds_read_b128 {vr(v.pF1,4)}, v{v.P1}
    s_cbranch_scc1 K2_SAFEP
    """)
    def late_issue():
        A(f"""
        s_add_u32 m0, s{sRing}, 4096
        s_nop 0
        buffer_load_dwordx4 {P(v.IX0)}, {sr(sP,4)}, 0 idxen offen lds
        s_add_u32 m0, s{sRing}, 5120
        ds_read_u16 v{v.IX0}, v{v.R1} offset:1024
        buffer_load_dwordx4 {P(v.IX1)}, {sr(sP,4)}, 0 idxen offen lds
        """)
        if opt.get("ek", 3) == 2:
            A(f"""
            s_add_u32 m0, s{sE0}, 6144
            s_nop 0
            buffer_load_dwordx4 {P(v.IEb)}, {sr(sE,4)}, 0 idxen offen lds
            """)
        else:
            A(f"v_mov_b32 v{v.IE}, v{v.IEb}")
        A(f"""
        s_add_u32 m0, s{sRing}, 6144
        ds_read_u16 v{v.IX1}, v{v.R1} offset:1088
        buffer_load_dwordx4 {P(v.TPa)}, {sr(sP,4)}, 0 idxen offen lds
        s_add_u32 m0, s{sRing}, 7168
        s_nop 0
        buffer_load_dwordx4 {P(v.TPb)}, {sr(sP,4)}, 0 idxen offen lds
        """)
    chain(A, 3, "fast", None, ool, pre=True, mid=late_issue)
    A("K2_LOOP:")
    for k in range(4):
        stretch(A, k, "fast", ool)
        chain(A, k, "fast", "K2_EXIT", ool)
    A("s_branch K2_LOOP")
    A("K2_EXIT:")
    stamp(18)
    A(f"""
    s_setprio 0
    ds_read_b128 {vr(v.ohF,4)}, v{v.LA}
    v_rcp_f32 v{v.RS}, v{v.DS}
    v_rcp_f32 v{v.RS+1}, v{v.DS+1}
    v_rcp_f32 v{v.RS+2}, v{v.DS+2}
    v_rcp_f32 v{v.RS+3}, v{v.DS+3}
    v_fma_f32 v{v.S}, v{v.DS}, v{v.DS+2}, v{v.S}
    v_fma_f32 v{v.S+1}, v{v.DS+1}, v{v.DS+3}, v{v.S+1}
    v_mul_f32 v{v.NS}, v{v.NS}, v{v.RS}
    v_mul_f32 v{v.NS+1}, v{v.NS+1}, v{v.RS+1}
    v_mul_f32 v{v.NS+2}, v{v.NS+2}, v{v.RS+2}
    v_mul_f32 v{v.NS+3}, v{v.NS+3}, v{v.RS+3}
    K2_X2:
    s_bitcmp1_b32 s{sTg}, 0
    s_cbranch_scc0 K2_X3
    s_waitcnt lgkmcnt(1)
    {mfma(v.ACC, v.MSG, v.aggF)}
    v_cvt_pk_bf16_f32 v{v.MSG}, v{v.NS}, v{v.NS+1}
    v_cvt_pk_bf16_f32 v{v.MSG+1}, v{v.NS+2}, v{v.NS+3}
    s_branch K2_X4
    K2_X3:
    v_cvt_pk_bf16_f32 v{v.MSG+2}, v{v.NS}, v{v.NS+1}
    v_cvt_pk_bf16_f32 v{v.MSG+3}, v{v.NS+2}, v{v.NS+3}
    K2_X4:
    v_max_f32 v{v.S}, v{v.S}, v{v.S+1}
    s_waitcnt lgkmcnt(0)
    {mfma(v.ACC, v.MSG, v.ohF)}
    v_add_u32 v{v.t0}, s{sRing}, v{v.t3}
    s_cmp_eq_u32 s{sMode}, 1
    s_cbranch_scc1 K2_NEXTR
    K2_FIN:
    s_cmp_eq_u32 s{sUT}, {BIG}
    s_cbranch_scc1 K2_ULD
    K2_ULB:
    s_mov_b32 s22, {NEG_LN2:#x}
    s_mov_b32 s23, {f2u(2.0**60):#x}
    v_mov_b64 {P(v.NS)}, 0
    v_mov_b32 v{v.S+1}, 0
    s_lshl_b32 s76, s{sG}, 15
    s_add_u32 s76, s76, {RING}
    v_add_u32 v{v.t1}, s76, v{v.t3}
    v_mov_b32 v{v.JK}, {TRIP}
    """)
    B = Asm(); B("K2_ULD:")
    for i in range(16): u_load(B, i)
    B("s_branch K2_ULB"); ool.append(B.text())
    for s in range(8):
        A(f"v_pk_mul_f32 {P(v.ACC+2*s)}, {P(v.ACC+2*s)}, s[22:23] op_sel_hi:[1,0]")
    for s in range(8):
        A(f"v_cvt_pk_bf16_f32 v{v.E+s}, v{v.ACC+2*s}, v{v.ACC+2*s+1}")
    A("s_waitcnt vmcnt(0)")
    A(f"ds_write_b128 v{v.t0}, {vr(v.E,4)}")
    A(f"ds_write_b128 v{v.t0}, {vr(v.E+4,4)} offset:1024")
    for s in range(8):
        A(f"v_pk_fma_f32 {P(v.S)}, {P(v.ACC+2*s)}, {P(v.NS)}, {P(v.S)}")
    F = v.T; AG = v.T1
    A(f"""
    v_add_f32 v{v.S}, v{v.S}, v{v.S+1}
    v_cmp_nge_f32 vcc, s23, v{v.S}
    s_cbranch_vccnz K2_TRIP
    K2_TRB:
    s_cmp_lg_u32 s{sLate}, 0
    s_waitcnt lgkmcnt(0)
    s_cbranch_scc1 K2_LATE
    """)
    ool.append(f"K2_TRIP:\ns_cmp_lg_u32 s{sMode}, 0\ns_cbranch_scc1 K2_TRB\nds_write_b32 v{v.JK}, v{v.NS}\ns_branch K2_TRB")
    def rg():
        for s_ in range(8):
            A(mfma(F, v.U1 + 4*s_, v.XF + 4*s_, "0" if s_ == 0 else None))
    def rd():
        A("s_barrier")
        stamp(96)
        A(f"ds_read_b32 v{v.JK}, v{v.JK}")
        for s in range(8):
            A(f"ds_read_b128 {vr(AG+4*s,4)}, v{v.t1} offset:{(s >> 1) * 8192 + (s & 1) * 1024}")
    rg(); rd()
    if opt.get("ep2", 1): A("s_setprio 2")
    A("s_branch K2_JOIN")
    A("K2_LATE:")
    rd(); rg()
    A("K2_JOIN:")
    for s in range(8):
        A(f"s_waitcnt lgkmcnt({7-s})")
        A(mfma(F, v.U2 + 4*s, AG + 4*s))
    A(f"""
    s_setprio 0
    v_readfirstlane_b32 s23, v{v.JK}
    s_mov_b32 s22, {NEG_LOG2E:#x}
    s_cmp_eq_u32 s23, 0
    s_cbranch_scc1 K2_REDO
    s_cmp_lg_u32 s{sLate}, 0
    s_nop 5
    s_cbranch_scc1 K2_ACT2
    """)
    def act(pk):
        for r in range(0, 16, 2):
            if pk: A(f"v_pk_mul_f32 {P(v.E+r)}, {P(F+r)}, s[22:23] op_sel_hi:[1,0]")
            else:
                A(f"v_mul_f32 v{v.E+r}, s22, v{F+r}"); A(f"v_mul_f32 v{v.E+r+1}, s22, v{F+r+1}")
        for r in range(16):
            A(f"v_exp_f32 v{v.E+r}, v{v.E+r}")
        for r in range(0, 16, 2):
            if pk: A(f"v_pk_add_f32 {P(v.E+r)}, {P(v.E+r)}, {P(v.ONE)}")
            else:
                A(f"v_add_f32 v{v.E+r}, 1.0, v{v.E+r}"); A(f"v_add_f32 v{v.E+r+1}, 1.0, v{v.E+r+1}")
        for r in range(16):
            A(f"v_rcp_f32 v{v.E+r}, v{v.E+r}")
        for r in range(0, 16, 2):
            if pk: A(f"v_pk_mul_f32 {P(F+r)}, {P(F+r)}, {P(v.E+r)}")
            else:
                A(f"v_mul_f32 v{F+r}, v{F+r}, v{v.E+r}"); A(f"v_mul_f32 v{F+r+1}, v{F+r+1}, v{v.E+r+1}")
    act(not opt.get("ep2", 1))
    A("s_branch K2_ACT3")
    A("K2_ACT2:")
    act(True)
    A("K2_ACT3:")
    O = v.T1
    for r in range(8):
        A(f"v_cvt_pk_bf16_f32 v{O+r}, v{F+2*r}, v{F+2*r+1}")
    A(f"""
    s_nop 1
    v_permlane32_swap_b32 v{O}, v{O+2}
    v_permlane32_swap_b32 v{O+1}, v{O+3}
    v_permlane32_swap_b32 v{O+4}, v{O+6}
    v_permlane32_swap_b32 v{O+5}, v{O+7}
    buffer_store_dwordx4 {vr(O,4)}, v{v.OA}, {sr(sOUT,4)}, 0 offen {opt.get("ost", "").replace("_", " ")}
    buffer_store_dwordx4 {vr(O+4,4)}, v{v.OA}, {sr(sOUT,4)}, 0 offen offset:32 {opt.get("ost", "").replace("_", " ")}
    """)
    if ST:
        A("s_waitcnt vmcnt(0)")
        A("s_memtime s[98:99]")
        A("s_memrealtime s[100:101]")
        A(f"""
        s_lshl_b32 s22, s2, 3
        s_add_u32 s22, s22, s3
        s_lshl_b32 s22, s22, 6
        s_add_u32 s22, s22, 0xA00000
        v_mov_b32 v1, 0
        s_waitcnt lgkmcnt(0)
        """)
        for i, r in enumerate([90, 94, 4, 6, 8, 10, 12, 14, 16, 18, 96, 98, 92, 100, sTg] if not PTS else [90, 94, 4, 44, 46, 48, 50, 96, 6, 12, 14, 98, 92, 100, sTg]):
            A(f"v_mov_b32 v2, s{r}")
            A(f"buffer_store_dword v2, v1, {sr(sWS,4)}, s22 offen offset:{4*i}")
    A("K_END:")
    A("s_endpgm")
    for o in ool: A(o)
    del ool[:]
    A(f"""
    K_SPECIAL:
    s_memrealtime s[88:89]
    s_waitcnt lgkmcnt(0)
    """)
    wsadj()
    srd(A, sDB, PDBG, 256)
    srd(A, sWS, PWS, WS_END)
    A(f"""
    s_cmp_lg_u32 s2, 0
    s_cbranch_scc1 K_HELPER
    s_cmp_lg_u32 s3, 0
    s_cbranch_scc1 K_END
    s_or_b32 s{sTag}, s88, 1
    v_mov_b32 v1, s{sTag}
    s_mov_b64 exec, 1
    buffer_store_dword v1, off, {sr(sDB,4)}, 0 sc1
    s_mov_b64 exec, -1
    v_lshlrev_b32 v2, 4, v0
    v_cmp_gt_u32 vcc, {NCHUNK + 2 - 64}, v0
    v_add_u32 v4, 1024, v2
    s_mov_b32 s22, {WS_FLAG + 0x2000}
    v_cndmask_b32 v4, v2, v4, vcc
    v_lshlrev_b32 v3, 7, v0
    s_mov_b32 s23, {WS_FLAG + 0x4000}
    """)
    if MC:
        A(f"""
        v_cmp_gt_u32 vcc, {NCHUNK - 64}, v0
        v_add_u32 v5, 1024, v2
        s_mov_b32 s76, {WS_FLAG}
        v_cndmask_b32 v5, v2, v5, vcc
        s_mov_b32 s77, {WS_FLAG + 0x6000}
        K_MPOLL0:
        buffer_load_dword v8, v2, {sr(sWS,4)}, s76 offen sc1
        buffer_load_dword v9, v5, {sr(sWS,4)}, s76 offen sc1
        s_waitcnt vmcnt(0)
        v_xor_b32 v8, v1, v8
        v_xor_b32 v9, v1, v9
        v_or_b32 v8, v8, v9
        v_cmp_ne_u32 vcc, 0, v8
        s_cbranch_vccnz K_MPOLL0
        buffer_store_dword v1, v3, {sr(sWS,4)}, s77 offen sc1
        {"s_memrealtime s[92:93]" if ST else ""}
        """)
    A(f"""
    K_MPOLL:
    buffer_load_dword v8, v2, {sr(sWS,4)}, s22 offen sc1
    buffer_load_dword v9, v4, {sr(sWS,4)}, s22 offen sc1
    s_waitcnt vmcnt(0)
    v_xor_b32 v8, v1, v8
    v_xor_b32 v9, v1, v9
    v_or_b32 v8, v8, v9
    v_cmp_ne_u32 vcc, 0, v8
    s_cbranch_vccnz K_MPOLL
    buffer_store_dword v1, v3, {sr(sWS,4)}, s23 offen sc1
    {"s_memrealtime s[90:91]" if ST else ""}
    {"s_waitcnt lgkmcnt(0)" if ST else ""}
    {"v_mov_b32 v2, s90" if ST else ""}
    {f"buffer_store_dword v2, off, {sr(sDB,4)}, 0 offset:8" if ST else ""}
    {"v_mov_b32 v2, s92" if ST else ""}
    {f"buffer_store_dword v2, off, {sr(sDB,4)}, 0 offset:12" if ST else ""}
    s_endpgm
    K_HELPER:
    s_sub_u32 s87, s2, 1
    s_lshl_b32 s82, s87, 15
    s_lshl_b32 s77, s3, 12
    """)
    srd(A, sWm, PWU, 32768, add="s82")
    wdma(0, 0)
    A(f"""
    s_waitcnt vmcnt(4)
    s_lshl_b32 s22, s{sC}, 6
    v_xor_b32 v{TRA}, s22, v{TRA}
    v_lshrrev_b32 v{H}, 5, v{L}
    s_sub_u32 s22, 11, s87
    v_lshlrev_b32 v{H}, s22, v{H}
    v_add_u32 v{TRA}, v{TRA}, v{H}
    s_lshl_b32 s22, s{sG}, 14
    v_add_u32 v{TRA}, s22, v{TRA}
    s_lshl_b32 s22, 1024, s87
    v_add_u32 v{H}, s22, v{TRA}
    s_lshl_b32 s22, s{sC}, 13
    s_add_u32 s82, s82, s22
    s_lshl_b32 s22, s{sG}, 12
    s_add_u32 s82, s82, s22
    s_add_u32 s82, s82, {WS_U}
    s_waitcnt vmcnt(0)
    s_barrier
    """)
    for s_ in range(4):
        A(f"ds_read_b64_tr_b16 {vr(v.T+4*s_,2)}, v{TRA} offset:{s_*4096}")
        A(f"ds_read_b64_tr_b16 {vr(v.T+4*s_+2,2)}, v{H} offset:{s_*4096}")
    A("s_waitcnt lgkmcnt(0)")
    for s_ in range(4):
        A(f"buffer_store_dwordx4 {vr(v.T+4*s_,4)}, v{v.t3}, {sr(sWS,4)}, s82 offen offset:{s_*1024} sc1")
    A(f"""
    s_waitcnt vmcnt(0)
    s_barrier
    s_cmp_lg_u32 s3, 0
    s_cbranch_scc1 K_END
    K_HTAG:
    buffer_load_dword v1, off, {sr(sDB,4)}, 0 sc1
    s_waitcnt vmcnt(0)
    v_readfirstlane_b32 s22, v1
    s_cmp_eq_u32 s22, 0
    s_cbranch_scc1 K_HTAG
    s_lshl_b32 s22, s87, 4
    s_add_u32 s22, s22, {WS_FLAG + 0x2000 + NCHUNK * 16}
    s_mov_b64 exec, 1
    buffer_store_dword v1, off, {sr(sWS,4)}, s22 sc1
    s_endpgm
    """)
    A("K2_SAFEP:")
    chain(A, 3, "safe", None, ool, pre=True, mid=late_issue)
    A("K2_SAFE:")
    for k in range(4):
        stretch(A, k, "safe", ool)
        chain(A, k, "safe", "K2_SEXIT", ool)
    A("s_branch K2_SAFE")
    A(f"""
    K2_SEXIT:
    s_setprio 0
    ds_read_b128 {vr(v.ohF,4)}, v{v.LA}
    s_branch K2_X2
    """)
    def restore():
        A(f"""
        s_lshr_b32 s23, s{sTg}, 2
        s_mul_i32 s22, s23, 6144
        s_lshl_b32 s23, s23, 10
        v_subrev_u32 v{v.E_}, s22, v{v.E_}
        v_subrev_u32 v{v.R1}, s23, v{v.R1}
        v_subrev_u32 v{v.R2}, s23, v{v.R2}
        v_subrev_u32 v{v.Re}, s23, v{v.Re}
        """)
    A("K2_REDO:")
    restore()
    A(f"s_mov_b32 s{sMode}, 2")
    A("s_nop 7")
    for r in range(0, 16, 2):
        A(f"v_mov_b64 {P(v.ACC+r)}, 0")
    A("s_waitcnt vmcnt(0) lgkmcnt(0)")
    A("s_barrier")
    lds_init()
    round_regs()
    A("s_branch K2_CELLS")
    A(f"""
    K2_OVF:
    s_cmp_eq_u32 s{sMode}, 0
    s_cbranch_scc0 K2_OV2
    s_cmp_lg_u32 s3, 0
    s_cbranch_scc1 K2_OV2
    K2_OV1:
    buffer_load_dword v{v.JK2}, off, {sr(sWS,4)}, s{sRel} sc1
    s_waitcnt vmcnt(0)
    v_cmp_ne_u32 vcc, s{sTag}, v{v.JK2}
    s_cbranch_vccnz K2_OV1
    K2_OV2:
    s_mov_b32 s{sMode}, 1
    s_mov_b32 s{sRound}, 0
    s_branch K2_ROUND
    K2_NEXTR:
    s_add_u32 s{sRound}, s{sRound}, 1
    s_cmp_ge_u32 s{sRound}, {E // 512}
    s_cbranch_scc1 K2_FIN
    """)
    restore()
    A(f"""
    K2_ROUND:
    s_load_dwordx4 s[76:79], s[0:1], 16
    s_waitcnt vmcnt(0) lgkmcnt(0)
    s_barrier
    """)
    srd(A, sS, 76, E * 4)
    srd(A, sD, 78, E * 4)
    A(f"""
    s_lshl_b32 s22, s{sRound}, 9
    v_add_u32 v{v.EB}, s22, v0
    v_lshlrev_b32 v{v.t0}, 2, v{v.EB}
    buffer_load_dword v{v.REC}, v{v.t0}, {sr(sD,4)}, 0 offen
    buffer_load_dword v{v.REC+1}, v{v.t0}, {sr(sS,4)}, 0 offen
    """)
    lds_init()
    round_regs()
    A(f"""
    s_mul_i32 s22, s2, 40
    s_waitcnt vmcnt(0)
    v_subrev_u32 v{v.REC}, s22, v{v.REC}
    v_cmp_gt_u32 vcc, 40, v{v.REC}
    v_lshl_or_b32 v{v.t0}, v{v.REC}, 14, v{v.REC+1}
    v_mov_b32 v{v.REC+1}, -1
    v_cndmask_b32 v{v.REC}, -1, v{v.t0}, vcc
    v_mov_b64 {P(v.REC+2)}, -1
    s_barrier
    s_branch K2_COUNT
    """)
    for o in ool: A(o)
    A("K_CODE_END:")
    return A.text()

HEADER = """; MPNN edge-MLP layer, fused single kernel (generated by gen/fz9.py).
"""
def build(opt):
    out = HEADER + f"; @launch grid=({NWG},1,1) block=(512,1,1) lds={LDS_TOTAL}\n"
    out += '.amdgcn_target "amdgcn-amd-amdhsa--gfx950"\n.text\n'
    out += f".globl {KNAME}\n.p2align 8\n.type {KNAME},@function\n" + gen(opt)
    acc = (NV + 3) // 4 * 4
    out += f""".section .rodata,"a"
.p2align 8
K_TABLE:
{tables()}.p2align 6
.amdhsa_kernel {KNAME}
  .amdhsa_next_free_vgpr {NV}
  .amdhsa_next_free_sgpr 102
  .amdhsa_accum_offset {acc}
  .amdhsa_group_segment_fixed_size 0
  .amdhsa_kernarg_size 72
  .amdhsa_user_sgpr_count 2
  .amdhsa_user_sgpr_kernarg_segment_ptr 1
  .amdhsa_system_sgpr_workgroup_id_x 1
.end_amdhsa_kernel
"""
    return out

if __name__ == "__main__":
    opt = {}
    for a in sys.argv[2:]:
        k_, v_ = a.split("=")
        opt[k_] = int(v_) if v_.lstrip("-").isdigit() else v_
    open(sys.argv[1], "w").write(build(opt))
```

```python
import sys, struct
from gen import Asm, vr, sr, srd, f2u, NEG_LOG2E, NEG_LN2, PX, PE, PSRC, PDST, PWM, PWU, POUT, PDBG, PWS, load_ptrs

KNAME = "standalone__mpnn_edge_mlp__graph_kernel"
N = 10000; E = 320000
NBIN = 250; NCHUNK = 125; CH = 2560
WS_CELL = 0x280000
WS_FLAG = 0x700000
WS_U = 0x708000
WS_END = WS_U + 0x10000
NWG = NBIN + 3
BIG = 0x7fffffff

CNT = 0x100; QN = 0x200; FLAG = 0x3F0; TRIP = 0x3F4; REC = 0x400
TG = 26; GSL = TG * 32
REC_BYTES = (2 * GSL + 160) * 8
EA = REC + REC_BYTES
GEA = (TG // 2) * 3072
RING = EA + 2 * GEA
JUNK = RING + 65536
LDS_TOTAL = JUNK + 1024
FLG = CNT + 48 * 4
L_X = RING; L_W2 = RING + 0x6000; L_W3 = L_W2 + 32768; L_BN = 0x8000
assert RING % 256 == 0 and LDS_TOTAL <= 163840

class R: pass
v = R()
_n = 1
def alloc(name, n, align=1):
    global _n
    _n = (_n + align - 1) // align * align
    setattr(v, name, _n)
    _n += n
for nm in ("t0", "t1", "t2", "t3", "lane", "FW", "FV", "PROG", "JK", "JK2", "JK3", "OHA", "P1", "FR", "LA"):
    alloc(nm, 1)
TABN = ("E_", "R1", "R2", "Re", "P0", "EB", "QC", "OHB", "S0a", "FRo", "IXo", "IEo", "S1a", "TRA", "OAl", "Z_")
alloc("TAB", 0, 4)
for nm in TABN[:8]:
    alloc(nm, 1)
for nm in ("IX0", "IX1", "IE", "ONE", "S"):
    alloc(nm, 2, 2)
alloc("OA", 1)
for nm in ("W3F", "QF", "QS", "SEL0", "SEL1", "eF", "ohF", "pF0", "pF1", "aggF", "MSG", "NS", "DS", "RS"):
    alloc(nm, 4, 4)
for nm in ("T", "T1", "E", "ACC"):
    alloc(nm, 16, 4)
alloc("U1", 32, 4); alloc("U2", 32, 4); alloc("XF", 32, 4)
NV = _n
assert NV <= 256
for i_, nm in enumerate(TABN[8:]): setattr(v, nm, v.SEL0 + i_)
v.WA = v.ohF
assert v.RS == v.ohF + 28 and v.SEL1 == v.SEL0 + 4 and v.E == v.T1 + 16
v.REC = v.T; v.RANK = v.T + 8; v.AD = v.E; v.PK = v.E + 8
v.W0 = v.T1
v.TPa = v.T1 + 10; v.TPb = v.T1 + 12; v.IEb = v.T1 + 14; v.OH0 = v.pF1

sWS, sP, sE, sX, sOUT, sD, sS = 24, 28, 32, 36, 40, 44, 48
sG, sC, sTg, sTile, sTsw, sTag, sRing, sEdst, sMode, sRound, sRole, sElim = 52, 53, 54, 55, 56, 57, 58, 59, 60, 61, 62, 63
sM = 64
sWm = 64; sDB = 68
sTB = 80
sUT = 82; sLate = 83; sK3F = 84; sT0, sT1 = 85, 86; sRel = 87; sUoff = 88; sPair = 89
sN40 = 36; sG1 = 38; sSl = 101; sE0 = 100; sOff = 61

OPT = {}
def P(r): return f"v[{r}:{r+1}]"
def mfma(d, a, b, c=None):
    return f"v_mfma_f32_32x32x16_bf16 {vr(d,16)}, {vr(a,4)}, {vr(b,4)}, {vr(d,16) if c is None else c}"
def pi8v(m):
    return ((m & 5) << 5) | ((m & 18) << 2) | ((m & 8) << 1)

def tables():
    rows = []
    for l in range(64):
        m, h = l & 31, l >> 5
        a16 = 16 + ((l & 8) << 3) + ((l & 3) << 4)
        n_ = l - 20 if l >= 20 else l
        a16n = 16 + ((n_ & 8) << 3) + ((n_ & 3) << 4)
        ohb = (a16n << (16 + 8 * ((n_ >> 2) & 1))) if l < 40 else 0
        sel = a16 if ((l >> 2) & 1) == h else 0
        d = dict(
            E_=m * 32 + (((h ^ (m >> 3)) & 1) << 4) + EA - 3072,
            R1=pi8v(l >> 2) + REC, R2=pi8v(m) + h + 2 + REC, Re=pi8v(l >> 1) + 4 + REC,
            P0=m * 64 + ((((m >> 2) ^ (2 * h)) & 3) << 4) + RING,
            EB=(l >> 3) * CH,
            QC=(l >> 4) * 3072 + ((l & 4) << 2) + (l & 8) + ((l & 3) << 1) + EA + 2048,
            OHB=ohb, FRo=(l & 3) * 4 + FLG,
            IXo=(((l >> 4) ^ l) & 3) << 4, IEo=(((l >> 4) ^ l) & 1) << 4,
            S0a=sel if m < 16 else 0, S1a=sel if m >= 16 else 0,
            TRA=(l & 3) * 8 + ((l >> 2) & 3) * 256 + (((l >> 2) & 3) << 6) + ((l >> 4) & 1) * 32,
            OAl=(m * 256 + h * 16) if m < 20 else 0x40000000, Z_=0)
        rows.append([d[n] for n in TABN])
    out = []
    for b in range(4):
        for l in range(64):
            out.append(".long " + ", ".join(f"{x:#x}" for x in rows[l][4*b:4*b+4]))
    img = [0] * 256
    for e_ in range(8):
        img[4 * (e_ + 1) + (e_ >> 1)] = 0x3f80 << (16 * (e_ & 1))
    for i in range(128, 256): img[i] = 0xffffffff
    for i in range(0, 256, 4):
        out.append(".long " + ", ".join(f"{x:#x}" for x in img[i:i+4]))
    for i in range(64):
        out.append(".long 0xffff, 0xffffffff, 0xffff, 0xffffffff")
    return "\n".join(out) + "\n"

def lst(A, k, variant, r):
    if OPT.get("ls") and variant == "fast" and k == OPT["ls"] - 1: A(f"s_memtime s[{r}:{r+1}]")

def u_load(A, i):
    off = (i >> 3) * 32768 + (i & 7) * 1024
    A(f"s_add_u32 s22, s{sUoff}, {off & ~4095}")
    A(f"buffer_load_dwordx4 {vr(v.U1+4*i,4)}, v{v.t3}, {sr(sWS,4)}, s22 offen offset:{off & 4095}")

def chain(A, k, variant, exit_label, ool, pre=False, mid=None):
    kk = k if k < 3 else -1
    safe = variant == "safe"
    EK = OPT.get("ek", 3)
    if not pre:
        A("s_setprio 2")
        A(f"s_add_u32 s{sTile}, s{sTile}, 1")
        A(f"s_cmp_ge_u32 s{sTile}, s{sTg}")
        A(f"s_cbranch_scc1 {exit_label}")
        lsw = A.label("sw"); lswb = A.label("swb")
        A(f"s_cmp_eq_u32 s{sTile}, s{sTsw}")
        A(f"s_cbranch_scc1 {lsw}")
        A(f"{lswb}:")
        ool.append(f"{lsw}:\nv_mov_b32 v{v.QF}, v{v.QS+2}\nv_mov_b32 v{v.QF+1}, v{v.QS+3}\ns_branch {lswb}")
        lst(A, k, variant, 10)
    A("s_waitcnt lgkmcnt(0)")
    if k % 2 == 0:
        A(mfma(v.ACC, v.MSG, v.aggF))
    n = 4 + (1 if ((k - 1) & 3) == EK or ((k - 2) & 3) == EK else 0)
    if EK == 3 and k == 1: n = 2
    if pre: n = 4 if EK == 3 else 5
    k2_ = kk + 2
    eread = f"ds_read_b128 {vr(v.eF,4)}, v{v.E_} offset:{3072 + (k2_ >> 1) * 3072 + (k2_ & 1) * 1024}"
    if k == 2: A(f"ds_read_b32 v{v.FV}, v{v.FR}")
    A(mfma(v.T, v.eF, v.W3F, "0"))
    if k != 2: A(eread)
    A(mfma(v.T, v.ohF, v.QF))
    A(f"ds_read_b128 {vr(v.ohF,4)}, v{v.OHA}")
    A(f"ds_read_u8 v{v.OHA}, v{v.R2} offset:{(kk + 3) * 256}")
    A(mfma(v.T, v.pF0, v.SEL0))
    if k == 2:
        A("s_waitcnt lgkmcnt(2)")
        A(f"v_cmp_gt_u32 vcc, v{v.PROG}, v{v.FV}")
    A(mfma(v.T, v.pF1, v.SEL1))
    A(f"s_setprio 0")
    lst(A, k, variant, 14)
    n_after = 2
    if k == 2:
        lw = A.label("fw"); lb = A.label("fb")
        A(f"s_cbranch_vccnz {lw}")
        A(f"{lb}:")
        A(eread)
        ool.append(f"{lw}:\nds_read_b32 v{v.FV}, v{v.FR}\ns_waitcnt lgkmcnt(0)\nv_cmp_gt_u32 vcc, v{v.PROG}, v{v.FV}\ns_cbranch_vccnz {lw}\ns_branch {lb}")
        n_after += 2
    if mid: mid()
    A(f"s_waitcnt vmcnt({n})" + (" lgkmcnt(0)" if pre else ""))
    if k == 1:
        A("s_mov_b64 exec, 1")
        A(f"ds_write_b32 v{v.FW}, v{v.PROG}")
        A("s_mov_b64 exec, -1")
        n_after += 3
    if k == EK:
        A(f"s_cmp_lt_u32 s{sEdst}, s{sElim}")
        A(f"s_cselect_b32 m0, s{sEdst}, {JUNK}")
        A(f"s_add_u32 s{sEdst}, s{sEdst}, 6144")
        A(f"buffer_load_dwordx4 {P(v.IE)}, {sr(sE,4)}, 0 idxen offen lds")
        n_after += 4
    A(f"s_add_u32 m0, s{sRing}, {((k + 1) & 3) * 2048}")
    A(f"ds_read_b128 {vr(v.pF0,4)}, v{v.P0} offset:{((k + 2) & 3) * 2048}")
    A(f"buffer_load_dwordx4 {P(v.IX0)}, {sr(sP,4)}, 0 idxen offen lds")
    A(f"s_add_u32 m0, s{sRing}, {((k + 1) & 3) * 2048 + 1024}")
    A(f"ds_read_b128 {vr(v.pF1,4)}, v{v.P1} offset:{((k + 2) & 3) * 2048}")
    A(f"buffer_load_dwordx4 {P(v.IX1)}, {sr(sP,4)}, 0 idxen offen lds")
    A(f"ds_read_u16 v{v.IX0}, v{v.R1} offset:{(kk + 6) * 256}")
    A(f"ds_read_u16 v{v.IX1}, v{v.R1} offset:{(kk + 6) * 256 + 64}")
    n_after += 8
    if k % 2 == 1 and not pre:
        A(f"ds_read_b128 {vr(v.aggF,4)}, v{v.E_} offset:{(1 if k == 1 else 0) * 3072 + 2048}")
        n_after += 1
    if k == EK - 1:
        A(f"ds_read_b32 v{v.IE}, v{v.Re} offset:{2 * 1024}")
        n_after += 1
    if not safe and not pre:
        lv = A.label("uv"); lvb = A.label("vb")
        A(f"s_sub_u32 s23, s{sTile}, s{sUT}")
        A(f"s_cmp_lt_u32 s23, 8")
        A(f"s_cbranch_scc1 {lv}")
        A(f"{lvb}:")
        n_after += 3
        B = Asm()
        B(f"{lv}:")
        B(f"s_cmp_ge_u32 s23, 4")
        B(f"s_cbranch_scc1 {lv}x")
        u_load(B, 2*k); u_load(B, 2*k+1)
        B(f"s_branch {lvb}")
        B(f"{lv}x:")
        u_load(B, 8+2*k); u_load(B, 8+2*k+1)
        B(f"s_branch {lvb}")
        ool.append(B.text())
    if n_after < 12:
        A(f"s_nop {12 - n_after - 1}")
    lst(A, k, variant, 12)

def stretch(A, k, variant, ool):
    T = v.T; E = v.E
    order = [0, 1, 8, 9, 2, 3, 10, 11, 4, 5, 12, 13, 6, 7, 14, 15]
    lst(A, k, variant, 94)
    for r in order:
        A(f"v_exp_f32 v{E+r}, v{T+r}")
    if variant != "safe":
        for r in range(4):
            A(f"v_rcp_f32 v{v.RS+r}, v{v.DS+r}")
    if k == 3:
        for s in (f"v_add_u32 v{v.E_}, 6144, v{v.E_}", f"v_add_u32 v{v.R1}, 1024, v{v.R1}",
                  f"v_add_u32 v{v.R2}, 1024, v{v.R2}", f"v_add_u32 v{v.Re}, 1024, v{v.Re}"): A(s)
    if k == 0:
        A(f"v_add_u32 v{v.PROG}, 1, v{v.PROG}")
    lst(A, k, variant, 4)
    A("s_setprio 1")
    mo = v.MSG + 2 * ((k + 1) % 2)
    if variant != "safe":
        A(f"v_pk_fma_f32 {P(v.S)}, {P(v.DS)}, {P(v.DS+2)}, {P(v.S)}")
        A(f"v_pk_mul_f32 {P(v.NS)}, {P(v.NS)}, {P(v.RS)}")
        A(f"v_pk_mul_f32 {P(v.NS+2)}, {P(v.NS+2)}, {P(v.RS+2)}")
    A(f"v_cvt_pk_bf16_f32 v{mo}, v{v.NS}, v{v.NS+1}")
    A(f"v_cvt_pk_bf16_f32 v{mo+1}, v{v.NS+2}, v{v.NS+3}")
    lst(A, k, variant, 6)
    if variant != "safe":
        ops = []
        for gi, g in enumerate((0, 8)):
            t, e = T + g, E + g
            o = [f"v_pk_add_f32 {P(e)}, {P(e)}, {P(v.ONE)}"]
            for u in (1, 2, 3):
                o.append(f"v_pk_fma_f32 {P(t)}, {P(t)}, {P(e+2*u)}, {P(t)}")
                o.append(f"v_pk_fma_f32 {P(t if u < 3 else v.NS+2*gi)}, {P(t+2*u)}, {P(e)}, {P(t)}")
                o.append(f"v_pk_fma_f32 {P(e if u < 3 else v.DS+2*gi)}, {P(e)}, {P(e+2*u)}, {P(e)}")
            ops.append(o)
        for a, b in zip(*ops):
            A(a); A(b)
    else:
        for r in range(0, 16, 2):
            A(f"v_pk_add_f32 {P(E+r)}, {P(E+r)}, {P(v.ONE)}")
        for r in range(16):
            A(f"v_rcp_f32 v{E+r}, v{E+r}")
        A("s_nop 0")
        for u in range(4):
            for gi, g in enumerate((0, 8)):
                if u == 0:
                    A(f"v_pk_mul_f32 {P(T+g)}, {P(T+g)}, {P(E+g)}")
                else:
                    A(f"v_pk_fma_f32 {P(T+g if u < 3 else v.NS+2*gi)}, {P(T+g+2*u)}, {P(E+g+2*u)}, {P(T+g)}")
    lst(A, k, variant, 8)

def gen(opt):
    OPT.clear(); OPT.update(opt)
    A = Asm()
    L = v.lane
    ST = opt.get("stamp", 0)
    PTS = opt.get("pts", "").split(",") if opt.get("pts") else []
    PSL = [44, 46, 48, 50, 96]
    def pt(name):
        if name in PTS:
            r = PSL[PTS.index(name)]
            A(f"s_memtime s[{r}:{r+1}]")
    def stamp(r, real=False):
        if PTS and r == 96: return
        if opt.get("ls") and r in (94, 4, 6, 8, 10, 12, 14): return
        if ST: A(f"s_mem{'real' if real else ''}time s[{r}:{r+1}]")
    ool = []
    STF = opt.get("stf", "sc0_sc1").replace("_", " ")
    WV = v.eF; XV = v.eF + 1; H = v.eF + 2; TRA = v.TRA
    A(f"{KNAME}:")
    stamp(90); stamp(92, True)
    A(f"s_cmp_ge_u32 s2, {NWG}")
    A("s_cbranch_scc1 K_END")
    load_ptrs(A)
    A(f"""
    v_lshrrev_b32 v{v.t0}, 6, v0
    v_and_b32 v{L}, 63, v0
    v_readfirstlane_b32 s3, v{v.t0}
    v_lshlrev_b32 v{v.t3}, 4, v{L}
    s_getpc_b64 {sr(sTB,2)}
    s_add_u32 s{sTB}, s{sTB}, K_TABLE@rel32@lo+4
    s_addc_u32 s{sTB+1}, s{sTB+1}, K_TABLE@rel32@hi+12
    global_load_dwordx4 {vr(v.SEL1,4)}, v{v.t3}, {sr(sTB,2)} offset:3072
    global_load_dwordx4 {vr(v.TAB,4)}, v{v.t3}, {sr(sTB,2)}
    global_load_dwordx4 {vr(v.TAB+4,4)}, v{v.t3}, {sr(sTB,2)} offset:1024
    global_load_dwordx4 {vr(v.SEL0,4)}, v{v.t3}, {sr(sTB,2)} offset:2048
    v_lshlrev_b32 v{v.t2}, 4, v0
    v_lshrrev_b32 v{WV}, 2, v{v.t3}
    v_lshrrev_b32 v{XV}, 4, v{v.t2}
    v_and_b32 v{WV}, 0xc0, v{WV}
    v_and_b32 v{XV}, 0xf0, v{XV}
    v_xor_b32 v{WV}, v{WV}, v{v.t3}
    v_xor_b32 v{XV}, v{XV}, v{v.t2}
    s_lshr_b32 s{sG}, s3, 2
    s_and_b32 s{sC}, s3, 3
    s_cmp_lt_u32 s2, 8
    s_cbranch_scc1 K_LOW
    K_LOWB:
    s_sub_u32 s23, s2, 3
    s_lshr_b32 s{sSl}, s23, 3
    s_cmp_ge_u32 s23, {NCHUNK}
    s_cselect_b32 s{sRole}, {1 - opt.get("r1f", 0)}, {opt.get("r1f", 0)}
    s_cselect_b32 s22, {NCHUNK}, 0
    s_sub_u32 s{sPair}, s23, s22
    s_lshl_b32 s2, s{sPair}, 1
    s_add_u32 s2, s2, s{sRole}
    s_mul_i32 s{sUT}, s{sPair}, {80*256}
    s_sub_u32 s{sX+2}, {N*256}, s{sUT}
    s_mov_b32 s{sX+3}, 0x00020000
    s_lshl_b32 s76, s3, 10
    s_add_u32 s77, s3, s{sSl}
    s_and_b32 s77, s77, {7 if opt.get("rot", 1) else 0}
    {"" if opt.get("rot", 1) else "s_mov_b32 s77, s3"}
    s_lshl_b32 s77, s77, 12
    s_cmp_eq_u32 s{sRole}, 0
    s_waitcnt lgkmcnt(0)
    """)
    def wsadj():
        if opt.get("wsoff"):
            A(f"s_add_u32 s{PWS}, s{PWS}, {opt['wsoff'] << 20}")
            A(f"s_addc_u32 s{PWS+1}, s{PWS+1}, 0")
    wsadj()
    if opt.get("wsoff"): A(f"s_cmp_eq_u32 s{sRole}, 0")
    A("s_cbranch_scc0 K_GEMM")
    ool.append(f"""K_LOW:
    s_cmp_lg_u32 s3, 7
    s_cbranch_scc1 K_LOW2
    s_getpc_b64 s[22:23]
    K_PC:
    s_sub_u32 s22, s22, K_PC-{KNAME}
    s_subb_u32 s23, s23, 0
    v_lshlrev_b32 v{v.JK}, 7, v{L}
    v_add_u32 v{v.JK2}, 0x2000, v{v.JK}
    v_min_u32 v{v.JK2}, K_CODE_END-{KNAME}-4, v{v.JK2}
    global_load_dword v{v.PROG}, v{v.JK}, s[22:23]
    global_load_dword v{v.FV}, v{v.JK2}, s[22:23]
    K_LOW2:
    s_cmp_lt_u32 s2, 3
    s_cbranch_scc1 K_SPECIAL
    s_branch K_LOWB""")
    def xdma(n):
        A(f"""
        s_add_u32 s{sX}, s{PX}, s{sUT}
        s_addc_u32 s{sX+1}, s{PX+1}, 0
        s_add_u32 m0, s76, {L_X}
        s_movk_i32 s23, 0x2000
        buffer_load_dwordx4 v{XV}, {sr(sX,4)}, 0 offen lds
        s_add_u32 m0, s76, {L_X + 8192}
        s_movk_i32 s22, 0x4000
        buffer_load_dwordx4 v{XV}, {sr(sX,4)}, s23 offen lds
        """)
        if n == 3:
            A(f"s_add_u32 m0, s76, {L_X + 16384}")
            A("s_nop 0")
            A(f"buffer_load_dwordx4 v{XV}, {sr(sX,4)}, s22 offen lds")
    def wdma(soff, lds):
        A(f"s_add_u32 m0, s77, {lds}")
        if soff: A(f"s_add_u32 s22, s77, {soff}")
        else: A("s_nop 0")
        for q in range(4):
            A(f"buffer_load_dwordx4 v{WV}, {sr(sWm,4)}, s{22 if soff else 77} offen offset:{q*1024} lds")
    def w23dma(w2=True):
        if w2: wdma(32768, L_W2)
        A(f"s_add_u32 m0, s76, {L_W3}")
        A(f"s_add_u32 s22, s76, 65536")
        A(f"buffer_load_dwordx4 v{WV}, {sr(sWm,4)}, s22 offen lds")
    def sconsts():
        srd(A, sP, PWS, 0 if opt.get('nop') else N, stride=256)
        srd(A, sE, PE, 0 if opt.get('noe') else E, stride=32)
        srd(A, sOUT, POUT, N * 256)
        srd(A, sDB, PDBG, 256)
        A(f"""
        s_mov_b32 s{sMode}, 0
        s_movk_i32 s{sK3F}, 0x3fff
        s_lshl_b32 s{sRing}, s3, 13
        s_lshr_b32 s22, s{sC}, 1
        s_mul_i32 s22, s22, 3072
        s_bfe_u32 s23, s{sC}, 0x10000
        s_lshl_b32 s23, s23, 10
        s_add_u32 s22, s22, s23
        s_mul_i32 s{sElim}, s{sG}, {GEA}
        s_add_u32 s{sE0}, s{sElim}, s22
        s_add_u32 s{sE0}, s{sE0}, {EA}
        s_and_b32 s{sRel}, s2, 63
        s_lshl_b32 s{sRel}, s{sRel}, 7
        s_add_u32 s{sRel}, s{sRel}, {WS_FLAG + 0x4000}
        """)
    def vconsts():
        A(f"""
        v_add_u32 v{v.P0}, s{sRing}, v{v.P0}
        v_add_u32 v{v.E_}, s{sElim}, v{v.E_}
        s_mul_i32 s22, s{sG}, {GSL*8}
        v_xor_b32 v{v.P1}, 16, v{v.P0}
        v_add_u32 v{v.R1}, s22, v{v.R1}
        v_add_u32 v{v.R2}, s22, v{v.R2}
        s_lshl_b32 s23, s{sC}, 8
        s_add_u32 s22, s22, s23
        v_add_u32 v{v.Re}, s22, v{v.Re}
        s_lshl_b32 s22, s{sC}, 6
        v_or_b32 v{v.IX0+1}, s22, v{v.IXo}
        v_or_b32 v{v.IX1+1}, s22, v{v.IXo}
        v_xor_b32 v{TRA}, s22, v{TRA}
        s_mul_i32 s23, s2, 40
        s_mul_i32 s78, s{sG}, 20
        s_add_u32 s23, s23, s78
        s_lshl_b32 s23, s23, 8
        s_add_u32 s23, s23, s22
        v_add_u32 v{v.OA}, s23, v{v.OAl}
        v_mov_b32 v{v.IE+1}, v{v.IEo}
        s_mul_i32 s22, s3, {8*CH}
        v_add_u32 v{v.EB}, s22, v{v.EB}
        s_mul_i32 s22, s3, {4*3072}
        v_add_u32 v{v.QC}, s22, v{v.QC}
        s_lshl_b32 s22, s3, 2
        v_add_u32 v{v.FW}, s22, v{v.FRo}
        s_lshl_b32 s22, s{sG}, 4
        v_add_u32 v{v.FR}, s22, v{v.FRo}
        v_lshrrev_b32 v{H}, 5, v{L}
        s_add_u32 s{sRing}, s{sRing}, {RING}
        s_add_u32 s{sElim}, s{sElim}, {EA + GEA}
        """)
    def lds_init():
        A(f"""
        s_mul_i32 s22, s3, 3072
        s_add_u32 m0, s22, {EA + 2048}
        s_brev_b32 s23, 2
        buffer_load_dwordx4 v{v.t3}, {sr(sWS,4)}, s23 offen lds
        s_add_u32 m0, s22, {EA + 2048 + 24576}
        s_cmp_lt_u32 s3, 2
        buffer_load_dwordx4 v{v.t3}, {sr(sWS,4)}, s23 offen lds
        s_cselect_b32 s78, 0, {JUNK - (EA + 2048 + 73728) - 7 * 3072}
        s_add_u32 m0, s22, {EA + 2048 + 49152}
        s_cselect_b32 s79, s22, {7 * 3072}
        buffer_load_dwordx4 v{v.t3}, {sr(sWS,4)}, s23 offen lds
        """.replace("s_cselect_b32 s78, 0, " + str(JUNK - (EA + 2048 + 73728) - 7 * 3072) + "\n", "").replace(
            f"        s_add_u32 m0, s22, {EA + 2048 + 49152}\n        s_cselect_b32 s79, s22, {7 * 3072}\n",
            f"        s_cselect_b32 s79, s22, {JUNK - (EA + 2048 + 73728)}\n        s_add_u32 m0, s22, {EA + 2048 + 49152}\n        s_lshl_b32 s22, s3, 10\n"))
        A(f"""
        s_add_u32 m0, s79, {EA + 2048 + 73728}
        s_add_u32 s78, s{sTB}, 4096
        buffer_load_dwordx4 v{v.t3}, {sr(sWS,4)}, s23 offen lds
        s_addc_u32 s79, s{sTB+1}, 0
        s_add_u32 m0, s22, {REC - 1024}
        s_cmp_eq_u32 s3, 7
        global_load_lds_dwordx4 v{v.t3}, s[78:79] offset:1024
        s_cbranch_scc1 {A.label('i7')}
        """)
        l7 = f"L_i7_{A.uid}"
        A(f"""
        s_add_u32 m0, s22, {REC + 8192 - 1024}
        s_nop 0
        global_load_lds_dwordx4 v{v.t3}, s[78:79] offset:1024
        {l7}b:
        """)
        ool.append(f"{l7}:\ns_mov_b32 m0, 0\ns_nop 0\nglobal_load_lds_dwordx4 v{v.t3}, s[78:79]\ns_branch {l7}b")
    def tagget(x):
        A(f"""
        s_cmp_eq_u32 s{sTag}, 0
        s_cbranch_scc1 K_TAG{x}
        K_TAGOK{x}:
        """)
        ool.append(f"K_TAG{x}:\ns_buffer_load_dword s{sTag}, {sr(sDB,4)}, 0 glc\ns_waitcnt lgkmcnt(0)\ns_cmp_eq_u32 s{sTag}, 0\ns_cbranch_scc1 K_TAG{x}\ns_branch K_TAGOK{x}")
    def xred(regs, xs):
        for r, x in zip(regs, xs): A(f"v_bitop3_b32 v{x}, v{r}, v{r+1}, v{r+2} bitop3:0x96")
        for r, x in zip(regs, xs): A(f"v_xor_b32 v{x}, v{x}, v{r+3}")
        for pat in ("quad_perm:[1,0,3,2]", "quad_perm:[2,3,0,1]", "row_half_mirror"):
            if len(xs) < 3: A(f"s_nop {2 - len(xs)}")
            for x in xs: A(f"v_xor_b32_dpp v{x}, v{x}, v{x} {pat} row_mask:0xf bank_mask:0xf")
    def tagload(lbl):
        A(f"s_buffer_load_dword s{sTag}, {sr(sDB,4)}, 0 glc")
    def qaddr():
        XA = v.E; GA = v.E + 1; TN = v.E + 2
        A(f"""
        s_mul_i32 s22, s{sG}, 20
        s_mul_i32 s23, s{sRole}, 40
        s_add_u32 s22, s22, s23
        v_and_b32 v{XA}, 31, v{L}
        v_add_u32 v{XA}, s22, v{XA}
        v_xor_b32 v{GA}, v{XA}, v{H}
        v_and_b32 v{GA}, 15, v{GA}
        v_lshl_or_b32 v{XA}, v{XA}, 4, v{GA}
        s_mov_b32 s22, {L_X}
        v_lshl_add_u32 v{XA}, v{XA}, 4, s22
        v_lshl_add_u32 v{TN}, v{H}, 11, v{TRA}
        v_add_u32 v{TN}, {L_W2}, v{TN}
        """)
    def qreads():
        XA = v.E; GA = v.E + 1; TN = v.E + 2
        for s_ in range(8):
            A(f"ds_read_b64_tr_b16 {vr(v.WA+4*s_,2)}, v{TN} offset:{s_*4096}")
            A(f"ds_read_b64_tr_b16 {vr(v.WA+4*s_+2,2)}, v{TN} offset:{s_*4096+1024}")
            if s_: A(f"v_xor_b32 v{GA}, {s_*32}, v{XA}")
            A(f"ds_read_b128 {vr(v.XF+4*s_,4)}, v{GA if s_ else XA}")
        A(f"ds_read_b64_tr_b16 {vr(v.W3F,2)}, v{TN} offset:32768")
        A(f"ds_read_b64_tr_b16 {vr(v.W3F+2,2)}, v{TN} offset:33792")
    def qmfma():
        for s_ in range(8):
            A(f"s_waitcnt lgkmcnt({min(15, 3*(7-s_) + 2)})")
            A(mfma(v.E, v.XF + 4*s_, v.WA + 4*s_, "0" if s_ == 0 else None))
            A(f"v_mov_b64 {P(v.ACC+2*s_)}, 0")
        A(f"""
        s_mov_b32 s72, {NEG_LOG2E:#x}
        v_cmp_gt_u32 {sr(sN40,2)}, 40, v{L}
        v_cmp_le_u32 {sr(sG1,2)}, 20, v{L}
        v_mov_b32 v{v.ONE}, 1.0
        v_mov_b32 v{v.ONE+1}, 1.0
        s_waitcnt lgkmcnt(0)
        """)
        for r in range(4):
            A(f"""
            v_lshlrev_b32 v{v.S}, 16, v{v.W3F+r}
            v_and_b32 v{v.S+1}, 0xffff0000, v{v.W3F+r}
            v_mul_f32 v{v.S}, s72, v{v.S}
            v_mul_f32 v{v.S+1}, s72, v{v.S+1}
            v_cvt_pk_bf16_f32 v{v.W3F+r}, v{v.S}, v{v.S+1}
            """)
    def post(x):
        A(f"""
        s_cmp_lg_u32 s3, 0
        s_cbranch_scc1 K_NP{x}
        v_readfirstlane_b32 s{sTag}, v{v.FV}
        s_cmp_eq_u32 s{sTag}, 0
        s_cbranch_scc1 K_TAG{x}
        K_TAGOK{x}:
        s_mov_b64 exec, 1
        buffer_store_dword v{v.FV}, off, {sr(sWS,4)}, s{sUoff} sc1
        s_mov_b64 exec, -1
        K_NP{x}:
        """)
        ool.append(f"K_TAG{x}:\nbuffer_load_dword v{v.FV}, off, {sr(sDB,4)}, 0 sc1\ns_waitcnt vmcnt(0)\nv_readfirstlane_b32 s{sTag}, v{v.FV}\ns_cmp_eq_u32 s{sTag}, 0\ns_cbranch_scc1 K_TAG{x}\ns_branch K_TAGOK{x}")
    MC = opt.get("mc", 0)
    D, S, RK, AD = v.T, v.T + 8, v.T1, v.T1 + 8
    CW = v.E
    A(f"s_mul_i32 s22, s{sPair}, {CH*4}")
    srd(A, sD, PDST, CH * 4, add="s22")
    A(f"""
    v_lshlrev_b32 v{v.t1}, 2, v0
    s_movk_i32 s23, 0x2000
    buffer_load_dwordx4 {vr(D,4)}, v{v.t2}, {sr(sD,4)}, 0 offen
    buffer_load_dword v{D+4}, v{v.t1}, {sr(sD,4)}, s23 offen
    """)
    srd(A, sS, PSRC, CH * 4, add="s22")
    A(f"""
    buffer_load_dwordx4 {vr(S,4)}, v{v.t2}, {sr(sS,4)}, 0 offen
    buffer_load_dword v{S+4}, v{v.t1}, {sr(sS,4)}, s23 offen
    v_mov_b64 {P(CW)}, -1
    v_mov_b64 {P(CW+2)}, -1
    v_mov_b32 v{CW+4}, 0
    ds_write_b128 v{v.t2}, {vr(CW,4)}
    ds_write_b128 v{v.t2}, {vr(CW,4)} offset:8192
    ds_write_b128 v{v.t2}, {vr(CW,4)} offset:16384
    ds_write_b128 v{v.t2}, {vr(CW,4)} offset:24576
    ds_write_b32 v{v.t1}, v{CW+4} offset:32768
    """)
    srd(A, sWm, PWM, 272 * 256)
    EARLY0 = opt.get("e0", 0)
    P0M = opt.get("p0", 2)
    if P0M == 1:
        xdma(2); w23dma(False)
    nb0 = 3 if P0M == 1 else 0
    srd(A, sWS, PWS, 0x10000000 if (opt.get('rw') or opt.get('dup')) else (WS_END if not ST else 0x1000000))
    PW = opt.get("pw", 1)
    if PW:
        A(f"""
        s_lshl_b32 s78, s{sPair}, 15
        s_add_u32 s78, s78, {WS_CELL}
        """)
        for q in range(4):
            A(f"buffer_store_dwordx4 {vr(CW,4)}, v{v.t2}, {sr(sWS,4)}, s78 offen {STF}")
            if q < 3: A("s_add_u32 s78, s78, 8192")
    if PW: nb0 += 4
    sconsts()
    A(f"""
    v_lshlrev_b32 v{CW+6}, 22, v0
    v_add_u32 v{CW+7}, 0x800, v0
    v_lshlrev_b32 v{CW+7}, 20, v{CW+7}
    v_mov_b32 v{CW+5}, 16
    s_mov_b32 s72, -10
    s_mov_b32 s73, 0x100000
    s_mov_b32 s74, 0x200000
    s_mov_b32 s75, 0x300000
    s_lshl_b32 s78, s{sPair}, 15
    s_add_u32 s78, s78, {WS_CELL}
    s_movk_i32 s79, {31*16}
    s_waitcnt lgkmcnt(0)
    s_barrier
    s_buffer_load_dword s{sTag}, {sr(sDB,4)}, 0 glc
    s_waitcnt vmcnt({2 + nb0})
    """)
    stamp(94)
    t = CW + 8
    for j in range(5):
        A(f"""
        v_mul_u32_u24 v{AD+j}, 0xcccd, v{D+j}
        v_lshrrev_b32 v{AD+j}, 19, v{AD+j}
        v_and_b32 v{AD+j}, -4, v{AD+j}
        ds_add_rtn_u32 v{RK+j}, v{AD+j}, v{CW+5} offset:32768
        """)
    if P0M == 1:
        wdma(32768, L_W2); nb0 += 4
    if P0M == 2:
        xdma(2); w23dma(); nb0 += 7
    for j in range(5):
        A(f"v_mad_i32_i24 v{D+j}, v{AD+j}, s72, v{D+j}")
    A(f"s_waitcnt vmcnt({nb0})")
    for j in range(5):
        d = D + j
        A(f"v_lshl_or_b32 v{d}, v{d}, 14, v{S+j}")
        if j == 0: A(f"v_add_u32 v{d}, v{d}, v{CW+6}")
        elif j < 4: A(f"v_add3_u32 v{d}, v{d}, v{CW+6}, s{72+j}")
        else: A(f"v_add_u32 v{d}, v{d}, v{CW+7}")
    A("s_waitcnt lgkmcnt(0)")
    pt("rk")
    A(f"v_max3_u32 v{t}, v{RK}, v{RK+1}, v{RK+2}")
    A(f"v_max3_u32 v{t}, v{t}, v{RK+3}, v{RK+4}")
    A(f"v_cmp_le_u32 vcc, s79, v{t}")
    A("s_cbranch_vccnz K_BOVF")
    A("K_BOVB:")
    B = Asm()
    B("K_BOVF:")
    B(f"v_mov_b32 v{t}, -2")
    for j in range(5):
        B(f"v_cmp_le_u32 vcc, s79, v{RK+j}")
        B(f"v_min_u32 v{RK+j}, s79, v{RK+j}")
        B("s_nop 0")
        B(f"v_cndmask_b32 v{D+j}, v{D+j}, v{t}, vcc")
    B("s_branch K_BOVB")
    ool.append(B.text())
    for j in range(5):
        r = RK + j
        A(f"""
        v_lshrrev_b32 v{t}, 5, v{r}
        v_and_b32 v{r}, 0x70, v{r}
        v_and_or_b32 v{r}, v{t}, 12, v{r}
        v_lshl_add_u32 v{r}, v{AD+j}, 5, v{r}
        ds_write_b32 v{r}, v{D+j}
        """)
    A(f"""
    s_add_u32 s73, s78, 8192
    s_add_u32 s74, s78, 16384
    s_add_u32 s75, s78, 24576
    s_waitcnt lgkmcnt(0)
    s_barrier
    """)
    pt("cb")
    A(f"""
    ds_read_b128 {vr(v.T,4)}, v{v.t2}
    ds_read_b128 {vr(v.T+4,4)}, v{v.t2} offset:8192
    ds_read_b128 {vr(v.T+8,4)}, v{v.t2} offset:16384
    ds_read_b128 {vr(v.T+12,4)}, v{v.t2} offset:24576
    s_waitcnt lgkmcnt(0)
    """)
    tagget("A")
    A(f"s_not_b32 s22, s{sTag}")
    def mkoff(regs):
        return
        A(f"v_readfirstlane_b32 s{sOff}, v{v.FV}")
        A(f"s_bfe_u32 s{sOff}, s{sOff}, 0x40006")
        A(f"s_max_u32 s{sOff}, s{sOff}, 1")
        A(f"s_lshl_b32 s{sOff}, s{sOff}, 24")
        for r in regs: A(f"s_add_u32 s{r}, s{r}, s{sOff}")
        A(f"s_add_u32 s{sP}, s{sP}, s{sOff}")
        A(f"s_addc_u32 s{sP+1}, s{sP+1}, 0")
    mkoff([78, 73, 74, 75])
    xred([v.T + 4*q for q in range(4)], [v.T1 + q for q in range(4)])
    A("s_mov_b32 exec_lo, 0x80808080")
    A("s_mov_b32 exec_hi, 0x80808080")
    for q in range(4):
        A(f"v_xor_b32 v{v.T+4*q+3}, s22, v{v.T1+q}")
    A("s_mov_b64 exec, -1")
    if PW: A("s_waitcnt vmcnt(7)")
    if opt.get("dup") == 1:
        A(f"v_add_u32 v{v.T1+5}, 0x1000000, v{v.t2}")
        for q in range(4):
            A(f"buffer_store_dwordx4 {vr(v.T+4*q,4)}, v{v.T1+5}, {sr(sWS,4)}, s{(78,73,74,75)[q]} offen {STF}")
    for q in range(4):
        A(f"buffer_store_dwordx4 {vr(v.T+4*q,4)}, v{v.t2}, {sr(sWS,4)}, s{(78,73,74,75)[q]} offen {STF}")
    if opt.get("dup") == 2:
        A(f"v_add_u32 v{v.T1+5}, 0x1000000, v{v.t2}")
        for q in range(4):
            A(f"buffer_store_dwordx4 {vr(v.T+4*q,4)}, v{v.T1+5}, {sr(sWS,4)}, s{(78,73,74,75)[q]} offen {STF}")
    stamp(4)
    vconsts()
    A(f"s_waitcnt vmcnt({8 if opt.get('dup') else 4})")
    A("s_branch K_COM0")
    A("K_GEMM:")
    pt("k0")
    if opt.get("wfirst"):
        srd(A, sWm, PWM, 272 * 256)
        wdma(0, 0)
        xdma(3)
    else:
        xdma(3)
        srd(A, sWm, PWM, 272 * 256)
        wdma(0, 0)
    G1M = opt.get("g1", 2)
    pt("g0")
    if G1M == 0: w23dma()
    pt("g1")
    srd(A, sWS, PWS, 0x10000000 if (opt.get('rw') or opt.get('dup')) else (WS_END if not ST else 0x1000000))
    sconsts()
    if opt.get("tlb"):
        A(f"""
        s_cmp_lg_u32 s3, 7
        s_cbranch_scc1 K_NOTLB
        v_lshlrev_b32 v{v.JK}, 21, v{L}
        v_lshlrev_b32 v{v.JK2}, 16, v{L}
        s_mov_b32 s22, 0x7ff80
        buffer_load_dword v{v.PROG}, v{v.JK}, {sr(sWS,4)}, s22 offen
        {f"buffer_load_dword v{v.LA}, v{v.JK2}, {sr(sE,4)}, 0 idxen" if opt.get("tlb") >= 2 else ""}
        {f"buffer_load_dword v{v.OHA}, v{v.JK}, {sr(sOUT,4)}, 0 offen" if opt.get("tlb") >= 2 else ""}
        K_NOTLB:
        """)
    XA = v.E; PA = v.E + 1; GA = v.E + 2; TN = v.E + 3
    A(f"""
    s_lshl_b32 s{sPair}, s{sPair}, 4
    s_add_u32 s{sPair}, s{sPair}, {WS_FLAG + 0x2000}
    s_mov_b32 s72, {NEG_LOG2E:#x}
    s_add_u32 s73, s{sUT}, 0x2000
    s_add_u32 s74, s{sUT}, 0x4000
    s_cmp_ge_u32 s3, 4
    s_cselect_b32 s74, 0x40000000, s74
    """)
    if PW:
        A(f"""
        v_mov_b64 {P(v.T)}, 0
        v_mov_b64 {P(v.T+2)}, 0
        buffer_store_dwordx4 {vr(v.T,4)}, v{XV}, {sr(sWS,4)}, s{sUT} offen {STF}
        buffer_store_dwordx4 {vr(v.T,4)}, v{XV}, {sr(sWS,4)}, s73 offen {STF}
        buffer_store_dwordx4 {vr(v.T,4)}, v{XV}, {sr(sWS,4)}, s74 offen {STF}
        s_mov_b64 exec, 1
        buffer_store_dword v{v.T}, off, {sr(sWS,4)}, s{sPair} sc1
        s_mov_b64 exec, -1
        """)
    A(f"""
    v_add_u32 v{v.JK3}, {L_BN}, v{v.t2}
    v_and_b32 v{XA}, 31, v{L}
    s_lshl_b32 s22, s{sG}, 5
    v_add_u32 v{XA}, s22, v{XA}
    s_waitcnt vmcnt({(12 if G1M == 0 else 7) + (4 if PW else 0)})
    """)
    pt("g2")
    vconsts()
    A(f"""
    v_lshl_add_u32 v{TN}, v{H}, 11, v{TRA}
    s_lshl_b32 s22, s{sC}, 2
    v_lshl_add_u32 v{PA}, v{H}, 1, s22
    v_xor_b32 v{PA}, v{PA}, v{XA}
    v_and_b32 v{PA}, 15, v{PA}
    v_lshl_or_b32 v{PA}, v{XA}, 4, v{PA}
    s_mov_b32 s22, {L_BN}
    v_lshl_add_u32 v{PA}, v{PA}, 4, s22
    v_xor_b32 v{GA}, v{H}, v{XA}
    v_and_b32 v{GA}, 15, v{GA}
    v_lshl_or_b32 v{XA}, v{XA}, 4, v{GA}
    s_mov_b32 s22, {L_X}
    v_lshl_add_u32 v{XA}, v{XA}, 4, s22
    """)
    for s_ in range(1, 8):
        A(f"v_xor_b32 v{v.E+8+s_}, {s_*32}, v{XA}")
    pt("g3")
    if "gx" in PTS:
        A("s_waitcnt vmcnt(4)")
        pt("gx")
        A("s_waitcnt vmcnt(0)")
        pt("gw")
    if G1M == 1: w23dma()
    assert G1M == 2
    tagload("")
    A(f"s_waitcnt vmcnt({4 if PW else 0}) lgkmcnt(0)")
    A("s_barrier")
    stamp(94)
    for s_ in range(8):
        A(f"ds_read_b64_tr_b16 {vr(v.WA+4*s_,2)}, v{TN} offset:{s_*4096}")
        A(f"ds_read_b64_tr_b16 {vr(v.WA+4*s_+2,2)}, v{TN} offset:{s_*4096+1024}")
        A(f"ds_read_b128 {vr(v.XF+4*s_,4)}, v{v.E+8+s_ if s_ else XA}")
    if G1M == 2: w23dma()
    A(f"s_cmp_lg_u32 s{sG}, 0")
    A("s_cbranch_scc1 K_G1")
    for s_ in range(8):
        A(f"ds_read_b128 {vr(v.U2+4*s_,4)}, v{v.E+8+s_ if s_ else XA} offset:16384")
    for s_ in range(8):
        A(f"s_waitcnt lgkmcnt({min(15, 3*(7-s_) + 8)})")
        A(mfma(v.T, v.WA + 4*s_, v.XF + 4*s_, "0" if s_ == 0 else None))
    for s_ in range(8):
        A(f"s_waitcnt lgkmcnt({7-s_})")
        A(mfma(v.T1, v.WA + 4*s_, v.U2 + 4*s_, "0" if s_ == 0 else None))
    def pout(acc, off, pk):
        for r in range(0, 16, 2):
            if pk:
                A(f"v_pk_mul_f32 {P(acc+r)}, {P(acc+r)}, s[72:73] op_sel_hi:[1,0]")
            else:
                A(f"v_mul_f32 v{acc+r}, s72, v{acc+r}")
                A(f"v_mul_f32 v{acc+r+1}, s72, v{acc+r+1}")
        for r in range(0, 16, 2):
            A(f"v_cvt_pk_bf16_f32 v{acc+r//2}, v{acc+r}, v{acc+r+1}")
        A(f"ds_write_b128 v{PA}, {vr(acc,4)} offset:{off}")
        A(f"ds_write_b128 v{GA}, {vr(acc+4,4)} offset:{off}")
    A(f"v_xor_b32 v{GA}, 16, v{PA}")
    pout(v.T, 0, False)
    pout(v.T1, 16384, True)
    A("s_branch K_G3")
    A("K_G1:")
    for s_ in range(8):
        A(f"s_waitcnt lgkmcnt({min(15, 3*(7-s_))})")
        A(mfma(v.T, v.WA + 4*s_, v.XF + 4*s_, "0" if s_ == 0 else None))
    A(f"v_xor_b32 v{GA}, 16, v{PA}")
    A("s_nop 10")
    pout(v.T, 0, False)
    A("K_G3:")
    pt("g4")
    A(f"""
    s_waitcnt lgkmcnt(0)
    s_barrier
    ds_read_b128 {vr(v.T,4)}, v{v.JK3}
    ds_read_b128 {vr(v.T+4,4)}, v{v.JK3} offset:8192
    ds_read_b128 {vr(v.T+8,4)}, v{v.JK3} offset:16384
    s_waitcnt lgkmcnt(2){" vmcnt(5)" if PW else ""}
    """)
    mkoff([sUT, 73, 74])
    A(f"""
    buffer_store_dwordx4 {vr(v.T,4)}, v{XV}, {sr(sWS,4)}, s{sUT} offen {STF}
    s_waitcnt lgkmcnt(1)
    buffer_store_dwordx4 {vr(v.T+4,4)}, v{XV}, {sr(sWS,4)}, s73 offen {STF}
    s_waitcnt lgkmcnt(0)
    buffer_store_dwordx4 {vr(v.T+8,4)}, v{XV}, {sr(sWS,4)}, s74 offen {STF}
    """)
    stamp(4)
    tagget("B")
    A("s_waitcnt vmcnt(3)")
    A("K_COM0:")
    qaddr()
    A("s_barrier")
    pt("c1")
    qreads()
    lds_init()
    pt("c2")
    qmfma()
    stamp(6)
    A("K_COMMON:")
    pt("c3")
    for r in range(0, 12, 2):
        A(f"v_pk_mul_f32 {P(v.E+r)}, {P(v.E+r)}, s[72:73] op_sel_hi:[1,0]")
    A(f"""
    v_cvt_pk_bf16_f32 v{v.QS}, v{v.E}, v{v.E+1}
    v_cvt_pk_bf16_f32 v{v.QS+1}, v{v.E+2}, v{v.E+3}
    v_cvt_pk_bf16_f32 v{v.QF+2}, v{v.E+4}, v{v.E+5}
    v_cvt_pk_bf16_f32 v{v.QF+3}, v{v.E+6}, v{v.E+7}
    v_cvt_pk_bf16_f32 v{v.QS+2}, v{v.E+8}, v{v.E+9}
    v_cvt_pk_bf16_f32 v{v.QS+3}, v{v.E+10}, v{v.E+11}
    s_lshl_b32 s{sUoff}, s{sC}, 13
    s_add_u32 s{sUoff}, s{sUoff}, {WS_U}
    """)
    def round_regs():
        A(f"""
        v_mov_b32 v{v.TPa+1}, v{v.IX0+1}
        v_mov_b32 v{v.TPb+1}, v{v.IX0+1}
        v_mov_b32 v{v.IEb+1}, v{v.IE+1}
        v_mov_b32 v{v.aggF}, 1
        v_mov_b64 {P(v.REC+4)}, -1
        v_mov_b64 {P(v.REC+6)}, -1
        v_add_u32 v{v.JK}, {64 * CH}, v{v.EB}
        """)
    def cell_addr():
        A(f"""
        s_lshl_b32 s22, s2, 7
        s_add_u32 s22, s22, {WS_CELL}
        {f"s_add_u32 s22, s22, s{sOff}" if opt.get("rw") else ""}
        s_add_u32 s23, s22, {64*32768}
        s_movk_i32 s76, {1000 - 512}
        v_cmp_gt_u32 s[76:77], s76, v0
        v_lshrrev_b32 v{v.t0}, 3, v0
        v_and_b32 v{v.t1}, 7, v0
        v_lshlrev_b32 v{v.t1}, 4, v{v.t1}
        v_lshl_add_u32 v{v.DS}, v{v.t0}, 15, v{v.t1}
        """)
    round_regs()
    A(f"""
    s_cmp_eq_u32 s{sRole}, 0
    s_cbranch_scc1 {"K2_B3" if opt.get("isl", 8) else "K2_B2"}
    s_waitcnt vmcnt(6)
    s_barrier
    s_cmp_eq_u32 s3, 0
    s_cbranch_scc1 K2_B1
    K2_B2:
    """)
    stamp(8)
    A("K2_CELLS:")
    cell_addr()
    A("s_mov_b64 s[74:75], -1")
    A("s_and_b32 s72, s76, 0x80808080")
    A("s_and_b32 s73, s77, 0x80808080")
    stamp(10)
    A(f"""
    K_POLL:
    s_mov_b64 exec, s[74:75]
    buffer_load_dwordx4 {vr(v.REC,4)}, v{v.DS}, {sr(sWS,4)}, s22 offen sc1
    s_mov_b64 exec, s[76:77]
    buffer_load_dwordx4 {vr(v.REC+4,4)}, v{v.DS}, {sr(sWS,4)}, s23 offen sc1
    s_mov_b64 exec, -1
    buffer_load_dword v{v.JK2}, off, {sr(sWS,4)}, s{sRel} sc1
    s_waitcnt vmcnt(0)
    """)
    xred([v.REC, v.REC + 4], [v.NS, v.NS + 1])
    A(f"""
    v_xor_b32 v{v.NS}, s{sTag}, v{v.NS}
    v_xor_b32 v{v.NS+1}, s{sTag}, v{v.NS+1}
    v_cmp_lt_u32 s[74:75], 1, v{v.NS}
    v_cmp_lt_u32 vcc, 1, v{v.NS+1}
    s_and_b64 s[76:77], s[76:77], vcc
    s_or_b64 s[78:79], s[74:75], s[76:77]
    s_cbranch_scc1 K_POLL2
    s_mov_b32 exec_lo, 0x80808080
    s_mov_b32 exec_hi, 0x80808080
    v_not_b32 v{v.REC+3}, v{v.NS}
    s_mov_b64 exec, s[72:73]
    v_not_b32 v{v.REC+7}, v{v.NS+1}
    s_mov_b64 exec, -1
    """)
    A(f"""
    s_cmp_lg_u32 s{sMode}, 0
    s_barrier
    s_cbranch_scc1 K2_COUNT
    ds_read_b128 {vr(v.SEL0,4)}, v{v.S0a}
    ds_read_b128 {vr(v.SEL1,4)}, v{v.S1a}
    K2_COUNT:
    """)
    ool.append(f"K2_B1:\nv_mov_b32 v{v.FV}, s{sTag}\ns_mov_b64 exec, 1\nbuffer_store_dword v{v.FV}, off, {sr(sWS,4)}, s{sPair} sc1\ns_mov_b64 exec, -1\ns_branch K2_B2")
    if opt.get("isl", 8): ool.append(f"K2_B3:\ns_waitcnt vmcnt(6)\ns_sleep {opt.get('isl', 8) - 1}\ns_branch K2_B2")
    ool.append(f"K_POLL2:\ns_sleep {opt.get('slp', 12)}\ns_branch K_POLL")
    stamp(12)
    ET = opt.get("et", 5)
    W0 = {0: v.W0, 1: v.W0 + 2, 4: v.W0 + 4, 5: v.W0 + 6}
    for j in range(8):
        main = j % 4 < 2
        body = f"""
        v_lshrrev_b32 v{v.AD+j}, 12, v{v.REC+j}
        v_and_b32 v{v.AD+j}, 0xfc, v{v.AD+j}
        s_mov_b64 exec, {sr(sM+2*j,2)}
        ds_add_rtn_u32 v{v.RANK+j}, v{v.AD+j}, v{v.aggF} offset:{CNT}
        """
        A(f"v_cmp_gt_u32 {sr(sM+2*j,2)}, -2, v{v.REC+j}")
        if main:
            A(body)
            A(f"v_lshrrev_b32 v{W0[j]+1}, 20, v{v.REC+j}")
            if ET:
                A(f"v_subrev_u32 v{v.t0}, 80, v{v.AD+j}")
            A(f"v_add_u32 v{W0[j]+1}, v{W0[j]+1}, v{v.EB if j < 4 else v.JK}")
            if ET:
                A(f"v_min_u32 v{v.t0}, v{v.t0}, v{v.AD+j}")
                A(f"v_cmpx_gt_u32 vcc, {4*ET}, v{v.t0}")
                A(f"buffer_load_dword v{v.JK3}, v{W0[j]+1}, {sr(sE,4)}, 0 idxen")
            A("s_mov_b64 exec, -1")
        else:
            l = A.label("cs"); lb = A.label("cb")
            body += "s_mov_b64 exec, -1\n"
            if j % 4 == 3:
                A(f"v_cmp_eq_u32 vcc, -2, v{v.REC+j}")
                A(f"s_or_b64 s[22:23], {sr(sM+2*j,2)}, vcc")
                body += f"s_cbranch_vccz {lb}\nv_mov_b32 v{v.t1}, {FLAG}\nds_write_b32 v{v.t1}, v{v.aggF}\n"
            else:
                A(f"s_cmp_lg_u64 {sr(sM+2*j,2)}, 0")
            A(f"s_cbranch_scc1 {l}")
            A(f"{lb}:")
            ool.append(f"{l}:\n{body}\ns_branch {lb}")
    NPF = opt.get("pf", 0)
    if NPF:
        A(f"""
        s_or_b32 s22, s3, s{sMode}
        s_cmp_lg_u32 s22, 0
        s_cbranch_scc1 K2_NOPF
        v_cmp_ne_u32 vcc, s{sTag}, v{v.JK2}
        s_cbranch_vccnz K2_NOPF
        s_mul_i32 s22, s{sSl}, 81920
        v_lshlrev_b32 v{v.t0}, 7, v{L}
        """)
        for q in range(NPF):
            A(f"buffer_load_dword v{v.JK3}, v{v.t0}, {sr(sWS,4)}, s22 offen")
            if q < NPF - 1: A("s_add_u32 s22, s22, 8192")
        A("K2_NOPF:")
    c = v.t0; pd = v.OHA
    A(f"""
    v_lshlrev_b32 v{v.t0}, 2, v{L}
    v_mov_b32 v{v.t1}, {FLAG}
    s_mul_i32 s22, s{sG}, 20
    s_add_u32 s22, s22, 8
    s_waitcnt lgkmcnt(0)
    s_barrier
    """)
    pt("b2")
    A(f"""
    ds_read_b32 v{v.t0}, v{v.t0} offset:{CNT}
    ds_read_b32 v{v.t1}, v{v.t1}
    s_waitcnt lgkmcnt(0)
    v_add_u32 v{c}, 3, v{c}
    v_and_b32 v{c}, -4, v{c}
    v_max_u32 v{c}, 4, v{c}
    v_cndmask_b32 v{pd}, 0, v{c}, {sr(sN40,2)}
    v_readfirstlane_b32 s23, v{v.t1}
    s_nop 0
    v_add_u32_dpp v{c}, v{pd}, v{pd} row_shr:1 row_mask:0xf bank_mask:0xf bound_ctrl:0
    s_nop 1
    v_add_u32_dpp v{c}, v{c}, v{c} row_shr:2 row_mask:0xf bank_mask:0xf bound_ctrl:0
    s_nop 1
    v_add_u32_dpp v{c}, v{c}, v{c} row_shr:4 row_mask:0xf bank_mask:0xf bound_ctrl:0
    s_nop 1
    v_add_u32_dpp v{c}, v{c}, v{c} row_shr:8 row_mask:0xf bank_mask:0xf bound_ctrl:0
    s_nop 1
    v_add_u32_dpp v{c}, v{c}, v{c} row_bcast:15 row_mask:0xa bank_mask:0xf
    s_nop 1
    v_add_u32_dpp v{c}, v{c}, v{c} row_bcast:31 row_mask:0xc bank_mask:0xf
    s_cmp_lg_u32 s23, -1
    s_cbranch_scc1 K2_OVF
    v_readlane_b32 s{sT0}, v{c}, 19
    v_readlane_b32 s{sT1}, v{c}, 39
    v_sub_u32 v{pd}, v{c}, v{pd}
    s_sub_u32 s23, {GSL}, s{sT0}
    v_add_u32 v{c}, s23, v{pd}
    v_cndmask_b32 v{pd}, v{pd}, v{c}, {sr(sG1,2)}
    v_add_u32 v{v.FV}, v{pd}, v{v.OHB}
    """)
    for j in (0, 1, 4, 5):
        A(f"ds_bpermute_b32 v{v.PK+j}, v{v.AD+j}, v{v.FV}")
    A(f"""
    v_readlane_b32 s{sTsw}, v{pd}, s22
    s_sub_u32 s{sT1}, s{sT1}, s{sT0}
    s_max_u32 s22, s{sT0}, s{sT1}
    s_cmp_gt_u32 s22, {GSL}
    s_cbranch_scc1 K2_OVF
    s_waitcnt lgkmcnt(0)
    """)
    pt("sc")
    for j in (0, 1, 4, 5, 2, 3, 6, 7):
        rare = (j % 4) >= 2
        w = v.W0 + 8 if rare else W0[j]
        body = f"""
        s_mov_b64 exec, {sr(sM+2*j,2)}
        v_add_u32_sdwa v{v.RANK+j}, v{v.PK+j}, v{v.RANK+j} dst_sel:DWORD dst_unused:UNUSED_PAD src0_sel:WORD_0 src1_sel:DWORD
        v_bfi_b32 v{w}, s{sK3F}, v{v.REC+j}, v{v.PK+j}
        v_lshlrev_b32 v{v.PK+j}, 3, v{v.RANK+j}
        v_lshrrev_b32 v{v.RANK+j}, 2, v{v.RANK+j}
        ds_write_b64 v{v.PK+j}, {P(w)} offset:{REC}
        ds_write_b8 v{v.RANK+j}, v{v.AD+j} offset:{QN}
        """
        if rare:
            l = A.label("ss"); lb = A.label("sb")
            A(f"s_cmp_lg_u64 {sr(sM+2*j,2)}, 0")
            A(f"s_cbranch_scc1 {l}")
            A(f"{lb}:")
            ool.append(f"{l}:\ns_mov_b64 exec, -1\nds_bpermute_b32 v{v.PK+j}, v{v.AD+j}, v{v.FV}\nv_lshrrev_b32 v{w+1}, 20, v{v.REC+j}\nv_add_u32 v{w+1}, v{w+1}, v{v.EB if j < 4 else v.JK}\ns_waitcnt lgkmcnt(0)\n{body}\ns_branch {lb}")
        else:
            A(body)
    A(f"""
    s_mov_b64 exec, -1
    s_or_b32 s22, s3, s{sMode}
    s_cmp_lg_u32 s22, 0
    s_cbranch_scc1 K2_RDY
    v_cmp_ne_u32 vcc, s{sTag}, v{v.JK2}
    s_cbranch_vccnz {"K2_SPOLL" if opt.get("sp", 1) else "K2_RPOLL"}
    K2_RDY:
    s_mov_b32 m0, s{sRing}
    s_waitcnt lgkmcnt(0)
    s_barrier
    """)
    ool.append(f"K2_RPOLL:\nbuffer_load_dword v{v.JK2}, off, {sr(sWS,4)}, s{sRel} sc1\ns_waitcnt vmcnt(0)\nv_cmp_ne_u32 vcc, s{sTag}, v{v.JK2}\ns_cbranch_vccz K2_RDY\ns_sleep 1\ns_branch K2_RPOLL")
    ool.append(f"K2_SPOLL:\ns_mov_b32 s23, 0\nK2_SP2:\ns_buffer_load_dword s22, {sr(sWS,4)}, s{sRel} glc\ns_waitcnt lgkmcnt(0)\ns_cmp_eq_u32 s22, s{sTag}\ns_cbranch_scc1 K2_RDY\ns_add_u32 s23, s23, 1\ns_cmp_lt_u32 s23, 16\ns_cbranch_scc1 K2_SP2\ns_branch K2_RPOLL")
    stamp(14)
    A(f"""
    ds_read_u16 v{v.IX0}, v{v.R1}
    ds_read_u16 v{v.IX1}, v{v.R1} offset:64
    ds_read_b32 v{v.IE}, v{v.Re}
    ds_read_u8 v{v.t0}, v0 offset:{QN}
    ds_read_u16 v{v.TPa}, v{v.R1} offset:256
    ds_read_u16 v{v.TPb}, v{v.R1} offset:320
    ds_read_b32 v{v.IEb}, v{v.Re} offset:1024
    ds_read_u8 v{v.OH0}, v{v.R2}
    ds_read_u8 v{v.OHA}, v{v.R2} offset:256
    s_waitcnt lgkmcnt(8)
    buffer_load_dwordx4 {P(v.IX0)}, {sr(sP,4)}, 0 idxen offen lds
    s_add_u32 m0, s{sRing}, 1024
    s_waitcnt lgkmcnt(7)
    buffer_load_dwordx4 {P(v.IX1)}, {sr(sP,4)}, 0 idxen offen lds
    s_mov_b32 m0, s{sE0}
    s_waitcnt lgkmcnt(5)
    buffer_load_dwordx4 {P(v.IE)}, {sr(sE,4)}, 0 idxen offen lds
    v_cmp_ne_u32 vcc, 0xff, v{v.t0}
    v_subrev_u32 v{v.t1}, 80, v{v.t0}
    v_min_u32 v{v.t0}, v{v.t0}, v{v.t1}
    v_lshl_add_u32 v{v.t1}, v{v.t0}, 3, v{v.QC}
    v_lshrrev_b32 v{v.t0}, 1, v{v.t0}
    v_and_b32 v{v.t0}, 16, v{v.t0}
    v_xor_b32 v{v.t1}, v{v.t1}, v{v.t0}
    v_mov_b32 v{v.t0}, 0x3f80
    s_mov_b64 exec, vcc
    ds_write_b16 v{v.t1}, v{v.t0}
    s_mov_b64 exec, -1
    s_add_u32 m0, s{sRing}, 2048
    s_waitcnt lgkmcnt(0)
    buffer_load_dwordx4 {P(v.TPa)}, {sr(sP,4)}, 0 idxen offen lds
    s_add_u32 m0, s{sRing}, 3072
    ds_read_u16 v{v.IX0}, v{v.R1} offset:512
    buffer_load_dwordx4 {P(v.TPb)}, {sr(sP,4)}, 0 idxen offen lds
    ds_read_u16 v{v.IX1}, v{v.R1} offset:576
    ds_read_u16 v{v.TPa}, v{v.R1} offset:768
    ds_read_u16 v{v.TPb}, v{v.R1} offset:832
    s_mul_i32 s22, s{sG}, {GSL}
    s_sub_u32 s{sTsw}, s{sTsw}, s22
    s_add_u32 s{sTsw}, s{sTsw}, 31
    s_lshr_b32 s{sTsw}, s{sTsw}, 5
    s_add_u32 s{sT0}, s{sT0}, 31
    s_lshr_b32 s{sT0}, s{sT0}, 5
    s_add_u32 s{sT1}, s{sT1}, 31
    s_lshr_b32 s{sT1}, s{sT1}, 5
    s_cmp_gt_u32 s{sT0}, s{sT1}
    s_cselect_b32 s{sLate}, 1, 0
    s_xor_b32 s{sLate}, s{sLate}, s{sG}
    s_cmp_eq_u32 s{sG}, 0
    s_cselect_b32 s{sTg}, s{sT0}, s{sT1}
    s_sub_u32 s{sUT}, s{sTg}, 9
    s_and_b32 s{sUT}, s{sUT}, -4
    s_add_u32 s{sUT}, s{sUT}, 1
    s_cmp_lt_u32 s{sTg}, 9
    s_cselect_b32 s{sUT}, {BIG}, s{sUT}
    s_cmp_lg_u32 s{sMode}, 0
    s_cselect_b32 s{sUT}, {BIG}, s{sUT}
    s_sub_u32 s22, s{sTg}, 1
    s_lshr_b32 s22, s22, 1
    s_mul_i32 s22, s22, 3072
    s_add_u32 s22, s22, {3072 + 2048}
    v_add_u32 v{v.LA}, s22, v{v.E_}
    s_add_u32 s{sEdst}, s{sE0}, {6144 if opt.get('ek', 3) == 3 else 12288}
    s_mov_b32 s{sTile}, 0
    v_mov_b32 v{v.PROG}, 1
    v_mov_b64 {P(v.QF)}, {P(v.QS)}
    v_mov_b64 {P(v.NS)}, 0
    v_mov_b64 {P(v.NS+2)}, 0
    v_mov_b64 {P(v.DS)}, {P(v.ONE)}
    v_mov_b64 {P(v.DS+2)}, {P(v.ONE)}
    v_mov_b64 {P(v.MSG)}, 0
    v_mov_b64 {P(v.aggF)}, 0
    v_mov_b64 {P(v.aggF+2)}, 0
    v_mov_b64 {P(v.S)}, 0
    s_cmp_lg_u32 s{sMode}, 0
    s_waitcnt vmcnt(2) lgkmcnt(0)
    s_barrier
    """)
    stamp(16)
    A(f"""
    ds_read_b128 {vr(v.ohF,4)}, v{v.OH0}
    ds_read_b128 {vr(v.eF,4)}, v{v.E_} offset:3072
    ds_read_b128 {vr(v.pF0,4)}, v{v.P0}
    ds_read_b128 {vr(v.pF1,4)}, v{v.P1}
    s_cbranch_scc1 K2_SAFEP
    """)
    def late_issue():
        A(f"""
        s_add_u32 m0, s{sRing}, 4096
        s_nop 0
        buffer_load_dwordx4 {P(v.IX0)}, {sr(sP,4)}, 0 idxen offen lds
        s_add_u32 m0, s{sRing}, 5120
        ds_read_u16 v{v.IX0}, v{v.R1} offset:1024
        buffer_load_dwordx4 {P(v.IX1)}, {sr(sP,4)}, 0 idxen offen lds
        """)
        if opt.get("ek", 3) == 2:
            A(f"""
            s_add_u32 m0, s{sE0}, 6144
            s_nop 0
            buffer_load_dwordx4 {P(v.IEb)}, {sr(sE,4)}, 0 idxen offen lds
            """)
        else:
            A(f"v_mov_b32 v{v.IE}, v{v.IEb}")
        A(f"""
        s_add_u32 m0, s{sRing}, 6144
        ds_read_u16 v{v.IX1}, v{v.R1} offset:1088
        buffer_load_dwordx4 {P(v.TPa)}, {sr(sP,4)}, 0 idxen offen lds
        s_add_u32 m0, s{sRing}, 7168
        s_nop 0
        buffer_load_dwordx4 {P(v.TPb)}, {sr(sP,4)}, 0 idxen offen lds
        """)
    chain(A, 3, "fast", None, ool, pre=True, mid=late_issue)
    A("K2_LOOP:")
    for k in range(4):
        stretch(A, k, "fast", ool)
        chain(A, k, "fast", "K2_EXIT", ool)
    A("s_branch K2_LOOP")
    A("K2_EXIT:")
    stamp(18)
    A(f"""
    s_setprio 0
    ds_read_b128 {vr(v.ohF,4)}, v{v.LA}
    v_rcp_f32 v{v.RS}, v{v.DS}
    v_rcp_f32 v{v.RS+1}, v{v.DS+1}
    v_rcp_f32 v{v.RS+2}, v{v.DS+2}
    v_rcp_f32 v{v.RS+3}, v{v.DS+3}
    v_fma_f32 v{v.S}, v{v.DS}, v{v.DS+2}, v{v.S}
    v_fma_f32 v{v.S+1}, v{v.DS+1}, v{v.DS+3}, v{v.S+1}
    v_mul_f32 v{v.NS}, v{v.NS}, v{v.RS}
    v_mul_f32 v{v.NS+1}, v{v.NS+1}, v{v.RS+1}
    v_mul_f32 v{v.NS+2}, v{v.NS+2}, v{v.RS+2}
    v_mul_f32 v{v.NS+3}, v{v.NS+3}, v{v.RS+3}
    K2_X2:
    s_bitcmp1_b32 s{sTg}, 0
    s_cbranch_scc0 K2_X3
    s_waitcnt lgkmcnt(1)
    {mfma(v.ACC, v.MSG, v.aggF)}
    v_cvt_pk_bf16_f32 v{v.MSG}, v{v.NS}, v{v.NS+1}
    v_cvt_pk_bf16_f32 v{v.MSG+1}, v{v.NS+2}, v{v.NS+3}
    s_branch K2_X4
    K2_X3:
    v_cvt_pk_bf16_f32 v{v.MSG+2}, v{v.NS}, v{v.NS+1}
    v_cvt_pk_bf16_f32 v{v.MSG+3}, v{v.NS+2}, v{v.NS+3}
    K2_X4:
    v_max_f32 v{v.S}, v{v.S}, v{v.S+1}
    s_waitcnt lgkmcnt(0)
    {mfma(v.ACC, v.MSG, v.ohF)}
    v_add_u32 v{v.t0}, s{sRing}, v{v.t3}
    s_cmp_eq_u32 s{sMode}, 1
    s_cbranch_scc1 K2_NEXTR
    K2_FIN:
    s_cmp_eq_u32 s{sUT}, {BIG}
    s_cbranch_scc1 K2_ULD
    K2_ULB:
    s_mov_b32 s22, {NEG_LN2:#x}
    s_mov_b32 s23, {f2u(2.0**60):#x}
    v_mov_b64 {P(v.NS)}, 0
    v_mov_b32 v{v.S+1}, 0
    s_lshl_b32 s76, s{sG}, 15
    s_add_u32 s76, s76, {RING}
    v_add_u32 v{v.t1}, s76, v{v.t3}
    v_mov_b32 v{v.JK}, {TRIP}
    """)
    B = Asm(); B("K2_ULD:")
    for i in range(16): u_load(B, i)
    B("s_branch K2_ULB"); ool.append(B.text())
    for s in range(8):
        A(f"v_pk_mul_f32 {P(v.ACC+2*s)}, {P(v.ACC+2*s)}, s[22:23] op_sel_hi:[1,0]")
    for s in range(8):
        A(f"v_cvt_pk_bf16_f32 v{v.E+s}, v{v.ACC+2*s}, v{v.ACC+2*s+1}")
    A("s_waitcnt vmcnt(0)")
    A(f"ds_write_b128 v{v.t0}, {vr(v.E,4)}")
    A(f"ds_write_b128 v{v.t0}, {vr(v.E+4,4)} offset:1024")
    for s in range(8):
        A(f"v_pk_fma_f32 {P(v.S)}, {P(v.ACC+2*s)}, {P(v.NS)}, {P(v.S)}")
    F = v.T; AG = v.T1
    A(f"""
    v_add_f32 v{v.S}, v{v.S}, v{v.S+1}
    v_cmp_nge_f32 vcc, s23, v{v.S}
    s_cbranch_vccnz K2_TRIP
    K2_TRB:
    s_cmp_lg_u32 s{sLate}, 0
    s_waitcnt lgkmcnt(0)
    s_cbranch_scc1 K2_LATE
    """)
    ool.append(f"K2_TRIP:\ns_cmp_lg_u32 s{sMode}, 0\ns_cbranch_scc1 K2_TRB\nds_write_b32 v{v.JK}, v{v.NS}\ns_branch K2_TRB")
    def rg():
        for s_ in range(8):
            A(mfma(F, v.U1 + 4*s_, v.XF + 4*s_, "0" if s_ == 0 else None))
    def rd():
        A("s_barrier")
        stamp(96)
        A(f"ds_read_b32 v{v.JK}, v{v.JK}")
        for s in range(8):
            A(f"ds_read_b128 {vr(AG+4*s,4)}, v{v.t1} offset:{(s >> 1) * 8192 + (s & 1) * 1024}")
    rg(); rd()
    if opt.get("ep2", 1): A("s_setprio 2")
    A("s_branch K2_JOIN")
    A("K2_LATE:")
    rd(); rg()
    A("K2_JOIN:")
    for s in range(8):
        A(f"s_waitcnt lgkmcnt({7-s})")
        A(mfma(F, v.U2 + 4*s, AG + 4*s))
    A(f"""
    s_setprio 0
    v_readfirstlane_b32 s23, v{v.JK}
    s_mov_b32 s22, {NEG_LOG2E:#x}
    s_cmp_eq_u32 s23, 0
    s_cbranch_scc1 K2_REDO
    s_cmp_lg_u32 s{sLate}, 0
    s_nop 5
    s_cbranch_scc1 K2_ACT2
    """)
    def act(pk):
        for r in range(0, 16, 2):
            if pk: A(f"v_pk_mul_f32 {P(v.E+r)}, {P(F+r)}, s[22:23] op_sel_hi:[1,0]")
            else:
                A(f"v_mul_f32 v{v.E+r}, s22, v{F+r}"); A(f"v_mul_f32 v{v.E+r+1}, s22, v{F+r+1}")
        for r in range(16):
            A(f"v_exp_f32 v{v.E+r}, v{v.E+r}")
        for r in range(0, 16, 2):
            if pk: A(f"v_pk_add_f32 {P(v.E+r)}, {P(v.E+r)}, {P(v.ONE)}")
            else:
                A(f"v_add_f32 v{v.E+r}, 1.0, v{v.E+r}"); A(f"v_add_f32 v{v.E+r+1}, 1.0, v{v.E+r+1}")
        for r in range(16):
            A(f"v_rcp_f32 v{v.E+r}, v{v.E+r}")
        for r in range(0, 16, 2):
            if pk: A(f"v_pk_mul_f32 {P(F+r)}, {P(F+r)}, {P(v.E+r)}")
            else:
                A(f"v_mul_f32 v{F+r}, v{F+r}, v{v.E+r}"); A(f"v_mul_f32 v{F+r+1}, v{F+r+1}, v{v.E+r+1}")
    act(not opt.get("ep2", 1))
    A("s_branch K2_ACT3")
    A("K2_ACT2:")
    act(True)
    A("K2_ACT3:")
    O = v.T1
    for r in range(8):
        A(f"v_cvt_pk_bf16_f32 v{O+r}, v{F+2*r}, v{F+2*r+1}")
    A(f"""
    s_nop 1
    v_permlane32_swap_b32 v{O}, v{O+2}
    v_permlane32_swap_b32 v{O+1}, v{O+3}
    v_permlane32_swap_b32 v{O+4}, v{O+6}
    v_permlane32_swap_b32 v{O+5}, v{O+7}
    buffer_store_dwordx4 {vr(O,4)}, v{v.OA}, {sr(sOUT,4)}, 0 offen {opt.get("ost", "").replace("_", " ")}
    buffer_store_dwordx4 {vr(O+4,4)}, v{v.OA}, {sr(sOUT,4)}, 0 offen offset:32 {opt.get("ost", "").replace("_", " ")}
    """)
    if ST:
        A("s_waitcnt vmcnt(0)")
        A("s_memtime s[98:99]")
        A("s_memrealtime s[100:101]")
        A(f"""
        s_lshl_b32 s22, s2, 3
        s_add_u32 s22, s22, s3
        s_lshl_b32 s22, s22, 6
        s_add_u32 s22, s22, 0xA00000
        v_mov_b32 v1, 0
        s_waitcnt lgkmcnt(0)
        """)
        for i, r in enumerate([90, 94, 4, 6, 8, 10, 12, 14, 16, 18, 96, 98, 92, 100, sTg] if not PTS else [90, 94, 4, 44, 46, 48, 50, 96, 6, 12, 14, 98, 92, 100, sTg]):
            A(f"v_mov_b32 v2, s{r}")
            A(f"buffer_store_dword v2, v1, {sr(sWS,4)}, s22 offen offset:{4*i}")
    A("K_END:")
    A("s_endpgm")
    for o in ool: A(o)
    del ool[:]
    A(f"""
    K_SPECIAL:
    s_memrealtime s[88:89]
    s_waitcnt lgkmcnt(0)
    """)
    wsadj()
    srd(A, sDB, PDBG, 256)
    srd(A, sWS, PWS, WS_END)
    A(f"""
    s_cmp_lg_u32 s2, 0
    s_cbranch_scc1 K_HELPER
    s_cmp_lg_u32 s3, 0
    s_cbranch_scc1 K_END
    s_or_b32 s{sTag}, s88, 0x80000001
    v_mov_b32 v1, s{sTag}
    s_mov_b64 exec, 1
    buffer_store_dword v1, off, {sr(sDB,4)}, 0 sc1
    s_mov_b64 exec, -1
    v_lshlrev_b32 v2, 4, v0
    v_cmp_gt_u32 vcc, {NCHUNK + 2 - 64}, v0
    v_add_u32 v4, 1024, v2
    s_mov_b32 s22, {WS_FLAG + 0x2000}
    v_cndmask_b32 v4, v2, v4, vcc
    v_lshlrev_b32 v3, 7, v0
    s_mov_b32 s23, {WS_FLAG + 0x4000}
    v_mov_b32 v6, 0
    {f"buffer_store_dword v6, v3, {sr(sWS,4)}, s23 offen sc1" if PW else ""}
    """)
    if MC:
        A(f"""
        v_cmp_gt_u32 vcc, {NCHUNK - 64}, v0
        v_add_u32 v5, 1024, v2
        s_mov_b32 s76, {WS_FLAG}
        v_cndmask_b32 v5, v2, v5, vcc
        s_mov_b32 s77, {WS_FLAG + 0x6000}
        K_MPOLL0:
        buffer_load_dword v8, v2, {sr(sWS,4)}, s76 offen sc1
        buffer_load_dword v9, v5, {sr(sWS,4)}, s76 offen sc1
        s_waitcnt vmcnt(0)
        v_xor_b32 v8, v1, v8
        v_xor_b32 v9, v1, v9
        v_or_b32 v8, v8, v9
        v_cmp_ne_u32 vcc, 0, v8
        s_cbranch_vccnz K_MPOLL0
        buffer_store_dword v1, v3, {sr(sWS,4)}, s77 offen sc1
        {"s_memrealtime s[92:93]" if ST else ""}
        """)
    A(f"""
    K_MPOLL:
    buffer_load_dword v8, v2, {sr(sWS,4)}, s22 offen sc1
    buffer_load_dword v9, v4, {sr(sWS,4)}, s22 offen sc1
    s_waitcnt vmcnt(0)
    v_xor_b32 v8, v1, v8
    v_xor_b32 v9, v1, v9
    v_or_b32 v8, v8, v9
    v_cmp_ne_u32 vcc, 0, v8
    s_cbranch_vccnz K_MPOLL
    buffer_store_dword v1, v3, {sr(sWS,4)}, s23 offen sc1
    {"s_memrealtime s[90:91]" if ST else ""}
    {"s_waitcnt lgkmcnt(0)" if ST else ""}
    {"v_mov_b32 v2, s90" if ST else ""}
    {f"buffer_store_dword v2, off, {sr(sDB,4)}, 0 offset:8" if ST else ""}
    {"v_mov_b32 v2, s92" if ST else ""}
    {f"buffer_store_dword v2, off, {sr(sDB,4)}, 0 offset:12" if ST else ""}
    s_endpgm
    K_HELPER:
    s_sub_u32 s87, s2, 1
    s_lshl_b32 s82, s87, 15
    s_lshl_b32 s77, s3, 12
    """)
    srd(A, sWm, PWU, 32768, add="s82")
    wdma(0, 0)
    A(f"""
    s_waitcnt vmcnt(4)
    s_lshl_b32 s22, s{sC}, 6
    v_xor_b32 v{TRA}, s22, v{TRA}
    v_lshrrev_b32 v{H}, 5, v{L}
    s_sub_u32 s22, 11, s87
    v_lshlrev_b32 v{H}, s22, v{H}
    v_add_u32 v{TRA}, v{TRA}, v{H}
    s_lshl_b32 s22, s{sG}, 14
    v_add_u32 v{TRA}, s22, v{TRA}
    s_lshl_b32 s22, 1024, s87
    v_add_u32 v{H}, s22, v{TRA}
    s_lshl_b32 s22, s{sC}, 13
    s_add_u32 s82, s82, s22
    s_lshl_b32 s22, s{sG}, 12
    s_add_u32 s82, s82, s22
    s_add_u32 s82, s82, {WS_U}
    s_waitcnt vmcnt(0)
    s_barrier
    """)
    for s_ in range(4):
        A(f"ds_read_b64_tr_b16 {vr(v.T+4*s_,2)}, v{TRA} offset:{s_*4096}")
        A(f"ds_read_b64_tr_b16 {vr(v.T+4*s_+2,2)}, v{H} offset:{s_*4096}")
    A("s_waitcnt lgkmcnt(0)")
    for s_ in range(4):
        A(f"buffer_store_dwordx4 {vr(v.T+4*s_,4)}, v{v.t3}, {sr(sWS,4)}, s82 offen offset:{s_*1024} sc1")
    A(f"""
    s_waitcnt vmcnt(0)
    s_barrier
    s_cmp_lg_u32 s3, 0
    s_cbranch_scc1 K_END
    K_HTAG:
    buffer_load_dword v1, off, {sr(sDB,4)}, 0 sc1
    s_waitcnt vmcnt(0)
    v_readfirstlane_b32 s22, v1
    s_cmp_eq_u32 s22, 0
    s_cbranch_scc1 K_HTAG
    s_lshl_b32 s22, s87, 4
    s_add_u32 s22, s22, {WS_FLAG + 0x2000 + NCHUNK * 16}
    s_mov_b64 exec, 1
    buffer_store_dword v1, off, {sr(sWS,4)}, s22 sc1
    s_endpgm
    """)
    A("K2_SAFEP:")
    chain(A, 3, "safe", None, ool, pre=True, mid=late_issue)
    A("K2_SAFE:")
    for k in range(4):
        stretch(A, k, "safe", ool)
        chain(A, k, "safe", "K2_SEXIT", ool)
    A("s_branch K2_SAFE")
    A(f"""
    K2_SEXIT:
    s_setprio 0
    ds_read_b128 {vr(v.ohF,4)}, v{v.LA}
    s_branch K2_X2
    """)
    def restore():
        A(f"""
        s_lshr_b32 s23, s{sTg}, 2
        s_mul_i32 s22, s23, 6144
        s_lshl_b32 s23, s23, 10
        v_subrev_u32 v{v.E_}, s22, v{v.E_}
        v_subrev_u32 v{v.R1}, s23, v{v.R1}
        v_subrev_u32 v{v.R2}, s23, v{v.R2}
        v_subrev_u32 v{v.Re}, s23, v{v.Re}
        """)
    A("K2_REDO:")
    restore()
    A(f"s_mov_b32 s{sMode}, 2")
    A("s_nop 7")
    for r in range(0, 16, 2):
        A(f"v_mov_b64 {P(v.ACC+r)}, 0")
    A("s_waitcnt vmcnt(0) lgkmcnt(0)")
    A("s_barrier")
    lds_init()
    round_regs()
    A("s_branch K2_CELLS")
    A(f"""
    K2_OVF:
    s_cmp_eq_u32 s{sMode}, 0
    s_cbranch_scc0 K2_OV2
    s_cmp_lg_u32 s3, 0
    s_cbranch_scc1 K2_OV2
    K2_OV1:
    buffer_load_dword v{v.JK2}, off, {sr(sWS,4)}, s{sRel} sc1
    s_waitcnt vmcnt(0)
    v_cmp_ne_u32 vcc, s{sTag}, v{v.JK2}
    s_cbranch_vccnz K2_OV1
    K2_OV2:
    s_mov_b32 s{sMode}, 1
    s_mov_b32 s{sRound}, 0
    s_branch K2_ROUND
    K2_NEXTR:
    s_add_u32 s{sRound}, s{sRound}, 1
    s_cmp_ge_u32 s{sRound}, {E // 512}
    s_cbranch_scc1 K2_FIN
    """)
    restore()
    A(f"""
    K2_ROUND:
    s_load_dwordx4 s[76:79], s[0:1], 16
    s_waitcnt vmcnt(0) lgkmcnt(0)
    s_barrier
    """)
    srd(A, sS, 76, E * 4)
    srd(A, sD, 78, E * 4)
    A(f"""
    s_lshl_b32 s22, s{sRound}, 9
    v_add_u32 v{v.EB}, s22, v0
    v_lshlrev_b32 v{v.t0}, 2, v{v.EB}
    buffer_load_dword v{v.REC}, v{v.t0}, {sr(sD,4)}, 0 offen
    buffer_load_dword v{v.REC+1}, v{v.t0}, {sr(sS,4)}, 0 offen
    """)
    lds_init()
    round_regs()
    A(f"""
    s_mul_i32 s22, s2, 40
    s_waitcnt vmcnt(0)
    v_subrev_u32 v{v.REC}, s22, v{v.REC}
    v_cmp_gt_u32 vcc, 40, v{v.REC}
    v_lshl_or_b32 v{v.t0}, v{v.REC}, 14, v{v.REC+1}
    v_mov_b32 v{v.REC+1}, -1
    v_cndmask_b32 v{v.REC}, -1, v{v.t0}, vcc
    v_mov_b64 {P(v.REC+2)}, -1
    s_barrier
    s_branch K2_COUNT
    """)
    for o in ool: A(o)
    A("K_CODE_END:")
    return A.text()

HEADER = """; MPNN edge-MLP layer, fused single kernel (generated by gen/fz10.py).
"""
def build(opt):
    out = HEADER + f"; @launch grid=({NWG},1,1) block=(512,1,1) lds={LDS_TOTAL}\n"
    out += '.amdgcn_target "amdgcn-amd-amdhsa--gfx950"\n.text\n'
    out += f".globl {KNAME}\n.p2align 8\n.type {KNAME},@function\n" + gen(opt)
    acc = (NV + 3) // 4 * 4
    out += f""".section .rodata,"a"
.p2align 8
K_TABLE:
{tables()}.p2align 6
.amdhsa_kernel {KNAME}
  .amdhsa_next_free_vgpr {NV}
  .amdhsa_next_free_sgpr 102
  .amdhsa_accum_offset {acc}
  .amdhsa_group_segment_fixed_size 0
  .amdhsa_kernarg_size 72
  .amdhsa_user_sgpr_count 2
  .amdhsa_user_sgpr_kernarg_segment_ptr 1
  .amdhsa_system_sgpr_workgroup_id_x 1
.end_amdhsa_kernel
"""
    return out

if __name__ == "__main__":
    opt = {}
    for a in sys.argv[2:]:
        k_, v_ = a.split("=")
        opt[k_] = int(v_) if v_.lstrip("-").isdigit() else v_
    open(sys.argv[1], "w").write(build(opt))
```

```python
import sys, struct
from gen import Asm, vr, sr, srd, f2u, NEG_LOG2E, NEG_LN2, PX, PE, PSRC, PDST, PWM, PWU, POUT, PDBG, PWS, load_ptrs

KNAME = "standalone__mpnn_edge_mlp__graph_kernel"
N = 10000; E = 320000
NBIN = 250; NCHUNK = 125; CH = 2560
WS_CELL = 0x280000
WS_FLAG = 0x700000
WS_U = 0x708000
WS_END = WS_U + 0x10000
NWG = NBIN + 3
BIG = 0x7fffffff
WS_TAG = 0x27FF00

CNT = 0x100; QN = 0x200; FLAG = 0x3F0; TRIP = 0x3F4; REC = 0x400
TG = 26; GSL = TG * 32
REC_BYTES = (2 * GSL + 160) * 8
EA = REC + REC_BYTES
GEA = (TG // 2) * 3072
RING = EA + 2 * GEA
JUNK = RING + 65536
LDS_TOTAL = JUNK + 1024
FLG = CNT + 48 * 4
L_X = RING; L_W2 = RING + 0x6000; L_W3 = L_W2 + 32768; L_BN = 0x8000
assert RING % 256 == 0 and LDS_TOTAL <= 163840

class R: pass
v = R()
_n = 1
def alloc(name, n, align=1):
    global _n
    _n = (_n + align - 1) // align * align
    setattr(v, name, _n)
    _n += n
for nm in ("t0", "t1", "t2", "t3", "lane", "FW", "FV", "PROG", "JK", "JK2", "JK3", "OHA", "P1", "FR", "LA"):
    alloc(nm, 1)
TABN = ("E_", "R1", "R2", "Re", "P0", "EB", "QC", "OHB", "S0a", "FRo", "IXo", "IEo", "S1a", "TRA", "OAl", "Z_")
alloc("TAB", 0, 4)
for nm in TABN[:8]:
    alloc(nm, 1)
for nm in ("IX0", "IX1", "IE", "ONE", "S"):
    alloc(nm, 2, 2)
alloc("OA", 1)
for nm in ("W3F", "QF", "QS", "SEL0", "SEL1", "eF", "ohF", "pF0", "pF1", "aggF", "MSG", "NS", "DS", "RS"):
    alloc(nm, 4, 4)
for nm in ("T", "T1", "E", "ACC"):
    alloc(nm, 16, 4)
alloc("U1", 32, 4); alloc("U2", 32, 4); alloc("XF", 32, 4)
NV = _n
assert NV <= 256
for i_, nm in enumerate(TABN[8:]): setattr(v, nm, v.SEL0 + i_)
v.WA = v.ohF
assert v.RS == v.ohF + 28 and v.SEL1 == v.SEL0 + 4 and v.E == v.T1 + 16
v.REC = v.T; v.RANK = v.T + 8; v.AD = v.E; v.PK = v.E + 8
v.W0 = v.T1
v.TPa = v.T1 + 10; v.TPb = v.T1 + 12; v.IEb = v.T1 + 14; v.OH0 = v.pF1

sWS, sP, sE, sX, sOUT, sD, sS = 24, 28, 32, 36, 40, 44, 48
sG, sC, sTg, sTile, sTsw, sTag, sRing, sEdst, sMode, sRound, sRole, sElim = 52, 53, 54, 55, 56, 57, 58, 59, 60, 61, 62, 63
sM = 64
sWm = 64; sDB = 68
sTB = 80
sUT = 82; sLate = 83; sK3F = 84; sT0, sT1 = 85, 86; sRel = 87; sUoff = 88; sPair = 89
sN40 = 36; sG1 = 38; sSl = 101; sE0 = 100; sOff = 61

OPT = {}
def P(r): return f"v[{r}:{r+1}]"
def mfma(d, a, b, c=None):
    return f"v_mfma_f32_32x32x16_bf16 {vr(d,16)}, {vr(a,4)}, {vr(b,4)}, {vr(d,16) if c is None else c}"
def pi8v(m):
    return ((m & 5) << 5) | ((m & 18) << 2) | ((m & 8) << 1)

def tables():
    rows = []
    for l in range(64):
        m, h = l & 31, l >> 5
        a16 = 16 + ((l & 8) << 3) + ((l & 3) << 4)
        n_ = l - 20 if l >= 20 else l
        a16n = 16 + ((n_ & 8) << 3) + ((n_ & 3) << 4)
        ohb = (a16n << (16 + 8 * ((n_ >> 2) & 1))) if l < 40 else 0
        sel = a16 if ((l >> 2) & 1) == h else 0
        d = dict(
            E_=m * 32 + (((h ^ (m >> 3)) & 1) << 4) + EA - 3072,
            R1=pi8v(l >> 2) + REC, R2=pi8v(m) + h + 2 + REC, Re=pi8v(l >> 1) + 4 + REC,
            P0=m * 64 + ((((m >> 2) ^ (2 * h)) & 3) << 4) + RING,
            EB=(l >> 3) * CH,
            QC=(l >> 4) * 3072 + ((l & 4) << 2) + (l & 8) + ((l & 3) << 1) + EA + 2048,
            OHB=ohb, FRo=(l & 3) * 4 + FLG,
            IXo=(((l >> 4) ^ l) & 3) << 4, IEo=(((l >> 4) ^ l) & 1) << 4,
            S0a=sel if m < 16 else 0, S1a=sel if m >= 16 else 0,
            TRA=(l & 3) * 8 + ((l >> 2) & 3) * 256 + (((l >> 2) & 3) << 6) + ((l >> 4) & 1) * 32,
            OAl=(m * 256 + h * 16) if m < 20 else 0x40000000, Z_=0)
        rows.append([d[n] for n in TABN])
    out = []
    for b in range(4):
        for l in range(64):
            out.append(".long " + ", ".join(f"{x:#x}" for x in rows[l][4*b:4*b+4]))
    img = [0] * 256
    for e_ in range(8):
        img[4 * (e_ + 1) + (e_ >> 1)] = 0x3f80 << (16 * (e_ & 1))
    for i in range(128, 256): img[i] = 0xffffffff
    for i in range(0, 256, 4):
        out.append(".long " + ", ".join(f"{x:#x}" for x in img[i:i+4]))
    for i in range(64):
        out.append(".long 0xffff, 0xffffffff, 0xffff, 0xffffffff")
    return "\n".join(out) + "\n"

def lst(A, k, variant, r):
    if OPT.get("ls") and variant == "fast" and k == OPT["ls"] - 1: A(f"s_memtime s[{r}:{r+1}]")

def u_load(A, i):
    off = (i >> 3) * 32768 + (i & 7) * 1024
    A(f"s_add_u32 s22, s{sUoff}, {off & ~4095}")
    A(f"buffer_load_dwordx4 {vr(v.U1+4*i,4)}, v{v.t3}, {sr(sWS,4)}, s22 offen offset:{off & 4095}")

def chain(A, k, variant, exit_label, ool, pre=False, mid=None):
    kk = k if k < 3 else -1
    safe = variant == "safe"
    EK = OPT.get("ek", 3)
    if not pre:
        A("s_setprio 2")
        A(f"s_add_u32 s{sTile}, s{sTile}, 1")
        A(f"s_cmp_ge_u32 s{sTile}, s{sTg}")
        A(f"s_cbranch_scc1 {exit_label}")
        lsw = A.label("sw"); lswb = A.label("swb")
        A(f"s_cmp_eq_u32 s{sTile}, s{sTsw}")
        A(f"s_cbranch_scc1 {lsw}")
        A(f"{lswb}:")
        ool.append(f"{lsw}:\nv_mov_b32 v{v.QF}, v{v.QS+2}\nv_mov_b32 v{v.QF+1}, v{v.QS+3}\ns_branch {lswb}")
        lst(A, k, variant, 10)
    A("s_waitcnt lgkmcnt(0)")
    if k % 2 == 0:
        A(mfma(v.ACC, v.MSG, v.aggF))
    n = 4 + (1 if ((k - 1) & 3) == EK or ((k - 2) & 3) == EK else 0)
    if EK == 3 and k == 1: n = 2
    if pre: n = 4 if EK == 3 else 5
    k2_ = kk + 2
    eread = f"ds_read_b128 {vr(v.eF,4)}, v{v.E_} offset:{3072 + (k2_ >> 1) * 3072 + (k2_ & 1) * 1024}"
    if k == 2: A(f"ds_read_b32 v{v.FV}, v{v.FR}")
    A(mfma(v.T, v.eF, v.W3F, "0"))
    if k != 2: A(eread)
    A(mfma(v.T, v.ohF, v.QF))
    A(f"ds_read_b128 {vr(v.ohF,4)}, v{v.OHA}")
    A(f"ds_read_u8 v{v.OHA}, v{v.R2} offset:{(kk + 3) * 256}")
    A(mfma(v.T, v.pF0, v.SEL0))
    if k == 2:
        A("s_waitcnt lgkmcnt(2)")
        A(f"v_cmp_gt_u32 vcc, v{v.PROG}, v{v.FV}")
    A(mfma(v.T, v.pF1, v.SEL1))
    A(f"s_setprio 0")
    lst(A, k, variant, 14)
    n_after = 2
    if k == 2:
        lw = A.label("fw"); lb = A.label("fb")
        A(f"s_cbranch_vccnz {lw}")
        A(f"{lb}:")
        A(eread)
        ool.append(f"{lw}:\nds_read_b32 v{v.FV}, v{v.FR}\ns_waitcnt lgkmcnt(0)\nv_cmp_gt_u32 vcc, v{v.PROG}, v{v.FV}\ns_cbranch_vccnz {lw}\ns_branch {lb}")
        n_after += 2
    if mid: mid()
    A(f"s_waitcnt vmcnt({n})" + (" lgkmcnt(0)" if pre else ""))
    if k == 1:
        A("s_mov_b64 exec, 1")
        A(f"ds_write_b32 v{v.FW}, v{v.PROG}")
        A("s_mov_b64 exec, -1")
        n_after += 3
    if k == EK:
        A(f"s_cmp_lt_u32 s{sEdst}, s{sElim}")
        A(f"s_cselect_b32 m0, s{sEdst}, {JUNK}")
        A(f"s_add_u32 s{sEdst}, s{sEdst}, 6144")
        A(f"buffer_load_dwordx4 {P(v.IE)}, {sr(sE,4)}, 0 idxen offen lds")
        n_after += 4
    A(f"s_add_u32 m0, s{sRing}, {((k + 1) & 3) * 2048}")
    A(f"ds_read_b128 {vr(v.pF0,4)}, v{v.P0} offset:{((k + 2) & 3) * 2048}")
    A(f"buffer_load_dwordx4 {P(v.IX0)}, {sr(sP,4)}, 0 idxen offen lds")
    A(f"s_add_u32 m0, s{sRing}, {((k + 1) & 3) * 2048 + 1024}")
    A(f"ds_read_b128 {vr(v.pF1,4)}, v{v.P1} offset:{((k + 2) & 3) * 2048}")
    A(f"buffer_load_dwordx4 {P(v.IX1)}, {sr(sP,4)}, 0 idxen offen lds")
    A(f"ds_read_u16 v{v.IX0}, v{v.R1} offset:{(kk + 6) * 256}")
    A(f"ds_read_u16 v{v.IX1}, v{v.R1} offset:{(kk + 6) * 256 + 64}")
    n_after += 8
    if k % 2 == 1 and not pre:
        A(f"ds_read_b128 {vr(v.aggF,4)}, v{v.E_} offset:{(1 if k == 1 else 0) * 3072 + 2048}")
        n_after += 1
    if k == EK - 1:
        A(f"ds_read_b32 v{v.IE}, v{v.Re} offset:{2 * 1024}")
        n_after += 1
    if not safe and not pre:
        lv = A.label("uv"); lvb = A.label("vb")
        A(f"s_sub_u32 s23, s{sTile}, s{sUT}")
        A(f"s_cmp_lt_u32 s23, 8")
        A(f"s_cbranch_scc1 {lv}")
        A(f"{lvb}:")
        n_after += 3
        B = Asm()
        B(f"{lv}:")
        B(f"s_cmp_ge_u32 s23, 4")
        B(f"s_cbranch_scc1 {lv}x")
        u_load(B, 2*k); u_load(B, 2*k+1)
        B(f"s_branch {lvb}")
        B(f"{lv}x:")
        u_load(B, 8+2*k); u_load(B, 8+2*k+1)
        B(f"s_branch {lvb}")
        ool.append(B.text())
    if n_after < 12:
        A(f"s_nop {12 - n_after - 1}")
    lst(A, k, variant, 12)

def stretch(A, k, variant, ool):
    T = v.T; E = v.E
    order = [0, 1, 8, 9, 2, 3, 10, 11, 4, 5, 12, 13, 6, 7, 14, 15]
    lst(A, k, variant, 94)
    for r in order:
        A(f"v_exp_f32 v{E+r}, v{T+r}")
    if variant != "safe":
        for r in range(4):
            A(f"v_rcp_f32 v{v.RS+r}, v{v.DS+r}")
    if k == 3:
        for s in (f"v_add_u32 v{v.E_}, 6144, v{v.E_}", f"v_add_u32 v{v.R1}, 1024, v{v.R1}",
                  f"v_add_u32 v{v.R2}, 1024, v{v.R2}", f"v_add_u32 v{v.Re}, 1024, v{v.Re}"): A(s)
    if k == 0:
        A(f"v_add_u32 v{v.PROG}, 1, v{v.PROG}")
    lst(A, k, variant, 4)
    A("s_setprio 1")
    mo = v.MSG + 2 * ((k + 1) % 2)
    if variant != "safe":
        A(f"v_pk_fma_f32 {P(v.S)}, {P(v.DS)}, {P(v.DS+2)}, {P(v.S)}")
        A(f"v_pk_mul_f32 {P(v.NS)}, {P(v.NS)}, {P(v.RS)}")
        A(f"v_pk_mul_f32 {P(v.NS+2)}, {P(v.NS+2)}, {P(v.RS+2)}")
    A(f"v_cvt_pk_bf16_f32 v{mo}, v{v.NS}, v{v.NS+1}")
    A(f"v_cvt_pk_bf16_f32 v{mo+1}, v{v.NS+2}, v{v.NS+3}")
    lst(A, k, variant, 6)
    if variant != "safe":
        ops = []
        for gi, g in enumerate((0, 8)):
            t, e = T + g, E + g
            o = [f"v_pk_add_f32 {P(e)}, {P(e)}, {P(v.ONE)}"]
            for u in (1, 2, 3):
                o.append(f"v_pk_fma_f32 {P(t)}, {P(t)}, {P(e+2*u)}, {P(t)}")
                o.append(f"v_pk_fma_f32 {P(t if u < 3 else v.NS+2*gi)}, {P(t+2*u)}, {P(e)}, {P(t)}")
                o.append(f"v_pk_fma_f32 {P(e if u < 3 else v.DS+2*gi)}, {P(e)}, {P(e+2*u)}, {P(e)}")
            ops.append(o)
        for a, b in zip(*ops):
            A(a); A(b)
    else:
        for r in range(0, 16, 2):
            A(f"v_pk_add_f32 {P(E+r)}, {P(E+r)}, {P(v.ONE)}")
        for r in range(16):
            A(f"v_rcp_f32 v{E+r}, v{E+r}")
        A("s_nop 0")
        for u in range(4):
            for gi, g in enumerate((0, 8)):
                if u == 0:
                    A(f"v_pk_mul_f32 {P(T+g)}, {P(T+g)}, {P(E+g)}")
                else:
                    A(f"v_pk_fma_f32 {P(T+g if u < 3 else v.NS+2*gi)}, {P(T+g+2*u)}, {P(E+g+2*u)}, {P(T+g)}")
    lst(A, k, variant, 8)

def gen(opt):
    OPT.clear(); OPT.update(opt)
    A = Asm()
    L = v.lane
    ST = opt.get("stamp", 0)
    PTS = opt.get("pts", "").split(",") if opt.get("pts") else []
    PSL = [44, 46, 48, 50, 96]
    def pt(name):
        if name in PTS:
            r = PSL[PTS.index(name)]
            A(f"s_memtime s[{r}:{r+1}]")
    def stamp(r, real=False):
        if PTS and r == 96: return
        if opt.get("ls") and r in (94, 4, 6, 8, 10, 12, 14): return
        if ST: A(f"s_mem{'real' if real else ''}time s[{r}:{r+1}]")
    ool = []
    STF = opt.get("stf", "sc0_sc1").replace("_", " ")
    WV = v.eF; XV = v.eF + 1; H = v.eF + 2; TRA = v.TRA
    A(f"{KNAME}:")
    stamp(90); stamp(92, True)
    A(f"s_cmp_ge_u32 s2, {NWG}")
    A("s_cbranch_scc1 K_END")
    load_ptrs(A)
    A(f"""
    v_lshrrev_b32 v{v.t0}, 6, v0
    v_and_b32 v{L}, 63, v0
    v_readfirstlane_b32 s3, v{v.t0}
    v_lshlrev_b32 v{v.t3}, 4, v{L}
    s_getpc_b64 {sr(sTB,2)}
    s_add_u32 s{sTB}, s{sTB}, K_TABLE@rel32@lo+4
    s_addc_u32 s{sTB+1}, s{sTB+1}, K_TABLE@rel32@hi+12
    global_load_dwordx4 {vr(v.SEL1,4)}, v{v.t3}, {sr(sTB,2)} offset:3072
    global_load_dwordx4 {vr(v.TAB,4)}, v{v.t3}, {sr(sTB,2)}
    global_load_dwordx4 {vr(v.TAB+4,4)}, v{v.t3}, {sr(sTB,2)} offset:1024
    global_load_dwordx4 {vr(v.SEL0,4)}, v{v.t3}, {sr(sTB,2)} offset:2048
    v_lshlrev_b32 v{v.t2}, 4, v0
    v_lshrrev_b32 v{WV}, 2, v{v.t3}
    v_lshrrev_b32 v{XV}, 4, v{v.t2}
    v_and_b32 v{WV}, 0xc0, v{WV}
    v_and_b32 v{XV}, 0xf0, v{XV}
    v_xor_b32 v{WV}, v{WV}, v{v.t3}
    v_xor_b32 v{XV}, v{XV}, v{v.t2}
    s_lshr_b32 s{sG}, s3, 2
    s_and_b32 s{sC}, s3, 3
    s_cmp_lt_u32 s2, 8
    s_cbranch_scc1 K_LOW
    K_LOWB:
    s_sub_u32 s23, s2, 3
    s_lshr_b32 s{sSl}, s23, 3
    s_cmp_ge_u32 s23, {NCHUNK}
    s_cselect_b32 s{sRole}, {1 - opt.get("r1f", 0)}, {opt.get("r1f", 0)}
    s_cselect_b32 s22, {NCHUNK}, 0
    s_sub_u32 s{sPair}, s23, s22
    s_lshl_b32 s2, s{sPair}, 1
    s_add_u32 s2, s2, s{sRole}
    s_mul_i32 s{sUT}, s{sPair}, {80*256}
    s_sub_u32 s{sX+2}, {N*256}, s{sUT}
    s_mov_b32 s{sX+3}, 0x00020000
    s_lshl_b32 s76, s3, 10
    s_add_u32 s77, s3, s{sSl}
    s_and_b32 s77, s77, {7 if opt.get("rot", 1) else 0}
    {"" if opt.get("rot", 1) else "s_mov_b32 s77, s3"}
    s_lshl_b32 s77, s77, 12
    s_cmp_eq_u32 s{sRole}, 0
    s_waitcnt lgkmcnt(0)
    """)
    def wsadj():
        if opt.get("wsoff"):
            A(f"s_add_u32 s{PWS}, s{PWS}, {opt['wsoff'] << 20}")
            A(f"s_addc_u32 s{PWS+1}, s{PWS+1}, 0")
    A(f"s_mov_b32 s22, {WS_TAG}")
    A(f"s_load_dword s{sTag}, s[{PWS}:{PWS+1}], s22")
    A("s_cbranch_scc0 K_GEMM")
    ool.append(f"""K_LOW:
    s_cmp_lg_u32 s3, 7
    s_cbranch_scc1 K_LOW2
    s_getpc_b64 s[22:23]
    K_PC:
    s_sub_u32 s22, s22, K_PC-{KNAME}
    s_subb_u32 s23, s23, 0
    v_lshlrev_b32 v{v.JK}, 7, v{L}
    v_add_u32 v{v.JK2}, 0x2000, v{v.JK}
    v_min_u32 v{v.JK2}, K_CODE_END-{KNAME}-4, v{v.JK2}
    global_load_dword v{v.PROG}, v{v.JK}, s[22:23]
    global_load_dword v{v.FV}, v{v.JK2}, s[22:23]
    K_LOW2:
    s_cmp_lt_u32 s2, 3
    s_cbranch_scc1 K_SPECIAL
    s_branch K_LOWB""")
    def xdma(n):
        A(f"""
        s_add_u32 s{sX}, s{PX}, s{sUT}
        s_addc_u32 s{sX+1}, s{PX+1}, 0
        s_add_u32 m0, s76, {L_X}
        s_movk_i32 s23, 0x2000
        buffer_load_dwordx4 v{XV}, {sr(sX,4)}, 0 offen lds
        s_add_u32 m0, s76, {L_X + 8192}
        s_movk_i32 s22, 0x4000
        buffer_load_dwordx4 v{XV}, {sr(sX,4)}, s23 offen lds
        """)
        if n == 3:
            A(f"s_add_u32 m0, s76, {L_X + 16384}")
            A("s_nop 0")
            A(f"buffer_load_dwordx4 v{XV}, {sr(sX,4)}, s22 offen lds")
    def wdma(soff, lds):
        A(f"s_add_u32 m0, s77, {lds}")
        if soff: A(f"s_add_u32 s22, s77, {soff}")
        else: A("s_nop 0")
        for q in range(4):
            A(f"buffer_load_dwordx4 v{WV}, {sr(sWm,4)}, s{22 if soff else 77} offen offset:{q*1024} lds")
    def w23dma(w2=True):
        if w2: wdma(32768, L_W2)
        A(f"s_add_u32 m0, s76, {L_W3}")
        A(f"s_add_u32 s22, s76, 65536")
        A(f"buffer_load_dwordx4 v{WV}, {sr(sWm,4)}, s22 offen lds")
    def sconsts():
        srd(A, sP, PWS, 0 if opt.get('nop') else N, stride=256)
        srd(A, sE, PE, 0 if opt.get('noe') else E, stride=32)
        srd(A, sOUT, POUT, N * 256)
        A(f"""
        s_mov_b32 s{sMode}, 0
        s_movk_i32 s{sK3F}, 0x3fff
        s_lshl_b32 s{sRing}, s3, 13
        s_lshr_b32 s22, s{sC}, 1
        s_mul_i32 s22, s22, 3072
        s_bfe_u32 s23, s{sC}, 0x10000
        s_lshl_b32 s23, s23, 10
        s_add_u32 s22, s22, s23
        s_mul_i32 s{sElim}, s{sG}, {GEA}
        s_add_u32 s{sE0}, s{sElim}, s22
        s_add_u32 s{sE0}, s{sE0}, {EA}
        s_and_b32 s{sRel}, s2, 63
        s_lshl_b32 s{sRel}, s{sRel}, 7
        s_add_u32 s{sRel}, s{sRel}, {WS_FLAG + 0x4000}
        """)
    def vconsts():
        A(f"""
        v_add_u32 v{v.P0}, s{sRing}, v{v.P0}
        v_add_u32 v{v.E_}, s{sElim}, v{v.E_}
        s_mul_i32 s22, s{sG}, {GSL*8}
        v_xor_b32 v{v.P1}, 16, v{v.P0}
        v_add_u32 v{v.R1}, s22, v{v.R1}
        v_add_u32 v{v.R2}, s22, v{v.R2}
        s_lshl_b32 s23, s{sC}, 8
        s_add_u32 s22, s22, s23
        v_add_u32 v{v.Re}, s22, v{v.Re}
        s_lshl_b32 s22, s{sC}, 6
        v_or_b32 v{v.IX0+1}, s22, v{v.IXo}
        v_or_b32 v{v.IX1+1}, s22, v{v.IXo}
        v_xor_b32 v{TRA}, s22, v{TRA}
        s_mul_i32 s23, s2, 40
        s_mul_i32 s78, s{sG}, 20
        s_add_u32 s23, s23, s78
        s_lshl_b32 s23, s23, 8
        s_add_u32 s23, s23, s22
        v_add_u32 v{v.OA}, s23, v{v.OAl}
        v_mov_b32 v{v.IE+1}, v{v.IEo}
        s_mul_i32 s22, s3, {8*CH}
        v_add_u32 v{v.EB}, s22, v{v.EB}
        s_mul_i32 s22, s3, {4*3072}
        v_add_u32 v{v.QC}, s22, v{v.QC}
        s_lshl_b32 s22, s3, 2
        v_add_u32 v{v.FW}, s22, v{v.FRo}
        s_lshl_b32 s22, s{sG}, 4
        v_add_u32 v{v.FR}, s22, v{v.FRo}
        v_lshrrev_b32 v{H}, 5, v{L}
        s_add_u32 s{sRing}, s{sRing}, {RING}
        s_add_u32 s{sElim}, s{sElim}, {EA + GEA}
        """)
    def lds_init():
        A(f"""
        s_mul_i32 s22, s3, 3072
        s_add_u32 m0, s22, {EA + 2048}
        s_brev_b32 s23, 2
        buffer_load_dwordx4 v{v.t3}, {sr(sWS,4)}, s23 offen lds
        s_add_u32 m0, s22, {EA + 2048 + 24576}
        s_cmp_lt_u32 s3, 2
        buffer_load_dwordx4 v{v.t3}, {sr(sWS,4)}, s23 offen lds
        s_cselect_b32 s78, 0, {JUNK - (EA + 2048 + 73728) - 7 * 3072}
        s_add_u32 m0, s22, {EA + 2048 + 49152}
        s_cselect_b32 s79, s22, {7 * 3072}
        buffer_load_dwordx4 v{v.t3}, {sr(sWS,4)}, s23 offen lds
        """.replace("s_cselect_b32 s78, 0, " + str(JUNK - (EA + 2048 + 73728) - 7 * 3072) + "\n", "").replace(
            f"        s_add_u32 m0, s22, {EA + 2048 + 49152}\n        s_cselect_b32 s79, s22, {7 * 3072}\n",
            f"        s_cselect_b32 s79, s22, {JUNK - (EA + 2048 + 73728)}\n        s_add_u32 m0, s22, {EA + 2048 + 49152}\n        s_lshl_b32 s22, s3, 10\n"))
        A(f"""
        s_add_u32 m0, s79, {EA + 2048 + 73728}
        s_add_u32 s78, s{sTB}, 4096
        buffer_load_dwordx4 v{v.t3}, {sr(sWS,4)}, s23 offen lds
        s_addc_u32 s79, s{sTB+1}, 0
        s_add_u32 m0, s22, {REC - 1024}
        s_cmp_eq_u32 s3, 7
        global_load_lds_dwordx4 v{v.t3}, s[78:79] offset:1024
        s_cbranch_scc1 {A.label('i7')}
        """)
        l7 = f"L_i7_{A.uid}"
        A(f"""
        s_add_u32 m0, s22, {REC + 8192 - 1024}
        s_nop 0
        global_load_lds_dwordx4 v{v.t3}, s[78:79] offset:1024
        {l7}b:
        """)
        ool.append(f"{l7}:\ns_mov_b32 m0, 0\ns_nop 0\nglobal_load_lds_dwordx4 v{v.t3}, s[78:79]\ns_branch {l7}b")
    def tagget(x):
        pass
    def tagfix():
        A(f"s_add_u32 s{sTag}, s{sTag}, 2")
        A(f"s_or_b32 s{sTag}, s{sTag}, 0x40000001")
    def xred(regs, xs):
        for r, x in zip(regs, xs): A(f"v_bitop3_b32 v{x}, v{r}, v{r+1}, v{r+2} bitop3:0x96")
        for r, x in zip(regs, xs): A(f"v_xor_b32 v{x}, v{x}, v{r+3}")
        for pat in ("quad_perm:[1,0,3,2]", "quad_perm:[2,3,0,1]", "row_half_mirror"):
            if len(xs) < 3: A(f"s_nop {2 - len(xs)}")
            for x in xs: A(f"v_xor_b32_dpp v{x}, v{x}, v{x} {pat} row_mask:0xf bank_mask:0xf")
    def tagload(lbl):
        pass
    def qaddr():
        XA = v.E; GA = v.E + 1; TN = v.E + 2
        A(f"""
        s_mul_i32 s22, s{sG}, 20
        s_mul_i32 s23, s{sRole}, 40
        s_add_u32 s22, s22, s23
        v_and_b32 v{XA}, 31, v{L}
        v_add_u32 v{XA}, s22, v{XA}
        v_xor_b32 v{GA}, v{XA}, v{H}
        v_and_b32 v{GA}, 15, v{GA}
        v_lshl_or_b32 v{XA}, v{XA}, 4, v{GA}
        s_mov_b32 s22, {L_X}
        v_lshl_add_u32 v{XA}, v{XA}, 4, s22
        v_lshl_add_u32 v{TN}, v{H}, 11, v{TRA}
        v_add_u32 v{TN}, {L_W2}, v{TN}
        """)
    def qreads():
        XA = v.E; GA = v.E + 1; TN = v.E + 2
        for s_ in range(8):
            A(f"ds_read_b64_tr_b16 {vr(v.WA+4*s_,2)}, v{TN} offset:{s_*4096}")
            A(f"ds_read_b64_tr_b16 {vr(v.WA+4*s_+2,2)}, v{TN} offset:{s_*4096+1024}")
            if s_: A(f"v_xor_b32 v{GA}, {s_*32}, v{XA}")
            A(f"ds_read_b128 {vr(v.XF+4*s_,4)}, v{GA if s_ else XA}")
        A(f"ds_read_b64_tr_b16 {vr(v.W3F,2)}, v{TN} offset:32768")
        A(f"ds_read_b64_tr_b16 {vr(v.W3F+2,2)}, v{TN} offset:33792")
    def qmfma():
        for s_ in range(8):
            A(f"s_waitcnt lgkmcnt({min(15, 3*(7-s_) + 2)})")
            A(mfma(v.E, v.XF + 4*s_, v.WA + 4*s_, "0" if s_ == 0 else None))
            A(f"v_mov_b64 {P(v.ACC+2*s_)}, 0")
        A(f"""
        s_mov_b32 s72, {NEG_LOG2E:#x}
        v_cmp_gt_u32 {sr(sN40,2)}, 40, v{L}
        v_cmp_le_u32 {sr(sG1,2)}, 20, v{L}
        v_mov_b32 v{v.ONE}, 1.0
        v_mov_b32 v{v.ONE+1}, 1.0
        s_waitcnt lgkmcnt(0)
        """)
        for r in range(4):
            A(f"""
            v_lshlrev_b32 v{v.S}, 16, v{v.W3F+r}
            v_and_b32 v{v.S+1}, 0xffff0000, v{v.W3F+r}
            v_mul_f32 v{v.S}, s72, v{v.S}
            v_mul_f32 v{v.S+1}, s72, v{v.S+1}
            v_cvt_pk_bf16_f32 v{v.W3F+r}, v{v.S}, v{v.S+1}
            """)
    def post(x):
        A(f"""
        s_cmp_lg_u32 s3, 0
        s_cbranch_scc1 K_NP{x}
        v_readfirstlane_b32 s{sTag}, v{v.FV}
        s_cmp_eq_u32 s{sTag}, 0
        s_cbranch_scc1 K_TAG{x}
        K_TAGOK{x}:
        s_mov_b64 exec, 1
        buffer_store_dword v{v.FV}, off, {sr(sWS,4)}, s{sUoff} sc1
        s_mov_b64 exec, -1
        K_NP{x}:
        """)
        ool.append(f"K_TAG{x}:\nbuffer_load_dword v{v.FV}, off, {sr(sDB,4)}, 0 sc1\ns_waitcnt vmcnt(0)\nv_readfirstlane_b32 s{sTag}, v{v.FV}\ns_cmp_eq_u32 s{sTag}, 0\ns_cbranch_scc1 K_TAG{x}\ns_branch K_TAGOK{x}")
    MC = opt.get("mc", 0)
    D, S, RK, AD = v.T, v.T + 8, v.T1, v.T1 + 8
    CW = v.E
    A(f"s_mul_i32 s22, s{sPair}, {CH*4}")
    srd(A, sD, PDST, CH * 4, add="s22")
    A(f"""
    v_lshlrev_b32 v{v.t1}, 2, v0
    s_movk_i32 s23, 0x2000
    buffer_load_dwordx4 {vr(D,4)}, v{v.t2}, {sr(sD,4)}, 0 offen
    buffer_load_dword v{D+4}, v{v.t1}, {sr(sD,4)}, s23 offen
    """)
    srd(A, sS, PSRC, CH * 4, add="s22")
    A(f"""
    buffer_load_dwordx4 {vr(S,4)}, v{v.t2}, {sr(sS,4)}, 0 offen
    buffer_load_dword v{S+4}, v{v.t1}, {sr(sS,4)}, s23 offen
    v_mov_b64 {P(CW)}, -1
    v_mov_b64 {P(CW+2)}, -1
    v_mov_b32 v{CW+4}, 0
    ds_write_b128 v{v.t2}, {vr(CW,4)}
    ds_write_b128 v{v.t2}, {vr(CW,4)} offset:8192
    ds_write_b128 v{v.t2}, {vr(CW,4)} offset:16384
    ds_write_b128 v{v.t2}, {vr(CW,4)} offset:24576
    ds_write_b32 v{v.t1}, v{CW+4} offset:32768
    """)
    srd(A, sWm, PWM, 272 * 256)
    EARLY0 = opt.get("e0", 0)
    P0M = opt.get("p0", 2)
    if P0M == 1:
        xdma(2); w23dma(False)
    nb0 = 3 if P0M == 1 else 0
    srd(A, sWS, PWS, 0x10000000 if (opt.get('rw') or opt.get('dup')) else (WS_END if not ST else 0x1000000))
    PW = opt.get("pw", 0)
    if PW:
        A(f"""
        s_lshl_b32 s78, s{sPair}, 15
        s_add_u32 s78, s78, {WS_CELL}
        """)
        for q in range(4):
            A(f"buffer_store_dwordx4 {vr(CW,4)}, v{v.t2}, {sr(sWS,4)}, s78 offen {STF}")
            if q < 3: A("s_add_u32 s78, s78, 8192")
    if PW: nb0 += 4
    sconsts()
    A(f"""
    v_lshlrev_b32 v{CW+6}, 22, v0
    v_add_u32 v{CW+7}, 0x800, v0
    v_lshlrev_b32 v{CW+7}, 20, v{CW+7}
    v_mov_b32 v{CW+5}, 16
    s_mov_b32 s72, -10
    s_mov_b32 s73, 0x100000
    s_mov_b32 s74, 0x200000
    s_mov_b32 s75, 0x300000
    s_lshl_b32 s78, s{sPair}, 15
    s_add_u32 s78, s78, {WS_CELL}
    s_movk_i32 s79, {31*16}
    s_waitcnt lgkmcnt(0)
    s_barrier
    s_add_u32 s{sTag}, s{sTag}, 2
    s_or_b32 s{sTag}, s{sTag}, 0x40000001
    s_waitcnt vmcnt({2 + nb0})
    """)
    stamp(94)
    t = CW + 8
    for j in range(5):
        A(f"""
        v_mul_u32_u24 v{AD+j}, 0xcccd, v{D+j}
        v_lshrrev_b32 v{AD+j}, 19, v{AD+j}
        v_and_b32 v{AD+j}, -4, v{AD+j}
        ds_add_rtn_u32 v{RK+j}, v{AD+j}, v{CW+5} offset:32768
        """)
    if P0M == 1:
        wdma(32768, L_W2); nb0 += 4
    if P0M == 2:
        xdma(2); w23dma(); nb0 += 7
    for j in range(5):
        A(f"v_mad_i32_i24 v{D+j}, v{AD+j}, s72, v{D+j}")
    A(f"s_waitcnt vmcnt({nb0})")
    for j in range(5):
        d = D + j
        A(f"v_lshl_or_b32 v{d}, v{d}, 14, v{S+j}")
        if j == 0: A(f"v_add_u32 v{d}, v{d}, v{CW+6}")
        elif j < 4: A(f"v_add3_u32 v{d}, v{d}, v{CW+6}, s{72+j}")
        else: A(f"v_add_u32 v{d}, v{d}, v{CW+7}")
    A("s_waitcnt lgkmcnt(0)")
    pt("rk")
    A(f"v_max3_u32 v{t}, v{RK}, v{RK+1}, v{RK+2}")
    A(f"v_max3_u32 v{t}, v{t}, v{RK+3}, v{RK+4}")
    A(f"v_cmp_le_u32 vcc, s79, v{t}")
    A("s_cbranch_vccnz K_BOVF")
    A("K_BOVB:")
    B = Asm()
    B("K_BOVF:")
    B(f"v_mov_b32 v{t}, -2")
    for j in range(5):
        B(f"v_cmp_le_u32 vcc, s79, v{RK+j}")
        B(f"v_min_u32 v{RK+j}, s79, v{RK+j}")
        B("s_nop 0")
        B(f"v_cndmask_b32 v{D+j}, v{D+j}, v{t}, vcc")
    B("s_branch K_BOVB")
    ool.append(B.text())
    for j in range(5):
        r = RK + j
        A(f"""
        v_lshrrev_b32 v{t}, 5, v{r}
        v_and_b32 v{r}, 0x70, v{r}
        v_and_or_b32 v{r}, v{t}, 12, v{r}
        v_lshl_add_u32 v{r}, v{AD+j}, 5, v{r}
        ds_write_b32 v{r}, v{D+j}
        """)
    A(f"""
    s_add_u32 s73, s78, 8192
    s_add_u32 s74, s78, 16384
    s_add_u32 s75, s78, 24576
    s_waitcnt lgkmcnt(0)
    s_barrier
    """)
    pt("cb")
    A(f"""
    ds_read_b128 {vr(v.T,4)}, v{v.t2}
    ds_read_b128 {vr(v.T+4,4)}, v{v.t2} offset:8192
    ds_read_b128 {vr(v.T+8,4)}, v{v.t2} offset:16384
    ds_read_b128 {vr(v.T+12,4)}, v{v.t2} offset:24576
    s_waitcnt lgkmcnt(0)
    """)
    tagget("A")
    A(f"s_not_b32 s22, s{sTag}")
    def mkoff(regs):
        return
        A(f"v_readfirstlane_b32 s{sOff}, v{v.FV}")
        A(f"s_bfe_u32 s{sOff}, s{sOff}, 0x40006")
        A(f"s_max_u32 s{sOff}, s{sOff}, 1")
        A(f"s_lshl_b32 s{sOff}, s{sOff}, 24")
        for r in regs: A(f"s_add_u32 s{r}, s{r}, s{sOff}")
        A(f"s_add_u32 s{sP}, s{sP}, s{sOff}")
        A(f"s_addc_u32 s{sP+1}, s{sP+1}, 0")
    mkoff([78, 73, 74, 75])
    xred([v.T + 4*q for q in range(4)], [v.T1 + q for q in range(4)])
    A("s_mov_b32 exec_lo, 0x80808080")
    A("s_mov_b32 exec_hi, 0x80808080")
    for q in range(4):
        A(f"v_xor_b32 v{v.T+4*q+3}, s22, v{v.T1+q}")
    A("s_mov_b64 exec, -1")
    if PW: A("s_waitcnt vmcnt(7)")
    if opt.get("dup") == 1:
        A(f"v_add_u32 v{v.T1+5}, 0x1000000, v{v.t2}")
        for q in range(4):
            A(f"buffer_store_dwordx4 {vr(v.T+4*q,4)}, v{v.T1+5}, {sr(sWS,4)}, s{(78,73,74,75)[q]} offen {STF}")
    for q in range(4):
        A(f"buffer_store_dwordx4 {vr(v.T+4*q,4)}, v{v.t2}, {sr(sWS,4)}, s{(78,73,74,75)[q]} offen {STF}")
    if opt.get("dup") == 2:
        A(f"v_add_u32 v{v.T1+5}, 0x1000000, v{v.t2}")
        for q in range(4):
            A(f"buffer_store_dwordx4 {vr(v.T+4*q,4)}, v{v.T1+5}, {sr(sWS,4)}, s{(78,73,74,75)[q]} offen {STF}")
    stamp(4)
    vconsts()
    A(f"s_waitcnt vmcnt({8 if opt.get('dup') else 4})")
    A("s_branch K_COM0")
    A("K_GEMM:")
    pt("k0")
    if opt.get("wfirst"):
        srd(A, sWm, PWM, 272 * 256)
        wdma(0, 0)
        xdma(3)
    else:
        xdma(3)
        srd(A, sWm, PWM, 272 * 256)
        wdma(0, 0)
    G1M = opt.get("g1", 2)
    pt("g0")
    if G1M == 0: w23dma()
    pt("g1")
    srd(A, sWS, PWS, 0x10000000 if (opt.get('rw') or opt.get('dup')) else (WS_END if not ST else 0x1000000))
    sconsts()
    if opt.get("tlb"):
        A(f"""
        s_cmp_lg_u32 s3, 7
        s_cbranch_scc1 K_NOTLB
        v_lshlrev_b32 v{v.JK}, 21, v{L}
        v_lshlrev_b32 v{v.JK2}, 16, v{L}
        s_mov_b32 s22, 0x7ff80
        buffer_load_dword v{v.PROG}, v{v.JK}, {sr(sWS,4)}, s22 offen
        {f"buffer_load_dword v{v.LA}, v{v.JK2}, {sr(sE,4)}, 0 idxen" if opt.get("tlb") >= 2 else ""}
        {f"buffer_load_dword v{v.OHA}, v{v.JK}, {sr(sOUT,4)}, 0 offen" if opt.get("tlb") >= 2 else ""}
        K_NOTLB:
        """)
    XA = v.E; PA = v.E + 1; GA = v.E + 2; TN = v.E + 3
    A(f"""
    s_lshl_b32 s{sPair}, s{sPair}, 4
    s_add_u32 s{sPair}, s{sPair}, {WS_FLAG + 0x2000}
    s_mov_b32 s72, {NEG_LOG2E:#x}
    s_add_u32 s73, s{sUT}, 0x2000
    s_add_u32 s74, s{sUT}, 0x4000
    s_cmp_ge_u32 s3, 4
    s_cselect_b32 s74, 0x40000000, s74
    """)
    if PW:
        A(f"""
        v_mov_b64 {P(v.T)}, 0
        v_mov_b64 {P(v.T+2)}, 0
        buffer_store_dwordx4 {vr(v.T,4)}, v{XV}, {sr(sWS,4)}, s{sUT} offen {STF}
        buffer_store_dwordx4 {vr(v.T,4)}, v{XV}, {sr(sWS,4)}, s73 offen {STF}
        buffer_store_dwordx4 {vr(v.T,4)}, v{XV}, {sr(sWS,4)}, s74 offen {STF}
        s_mov_b64 exec, 1
        buffer_store_dword v{v.T}, off, {sr(sWS,4)}, s{sPair} sc1
        s_mov_b64 exec, -1
        """)
    A(f"""
    v_add_u32 v{v.JK3}, {L_BN}, v{v.t2}
    v_and_b32 v{XA}, 31, v{L}
    s_lshl_b32 s22, s{sG}, 5
    v_add_u32 v{XA}, s22, v{XA}
    s_waitcnt vmcnt({(12 if G1M == 0 else 7) + (4 if PW else 0)})
    """)
    pt("g2")
    vconsts()
    A(f"""
    v_lshl_add_u32 v{TN}, v{H}, 11, v{TRA}
    s_lshl_b32 s22, s{sC}, 2
    v_lshl_add_u32 v{PA}, v{H}, 1, s22
    v_xor_b32 v{PA}, v{PA}, v{XA}
    v_and_b32 v{PA}, 15, v{PA}
    v_lshl_or_b32 v{PA}, v{XA}, 4, v{PA}
    s_mov_b32 s22, {L_BN}
    v_lshl_add_u32 v{PA}, v{PA}, 4, s22
    v_xor_b32 v{GA}, v{H}, v{XA}
    v_and_b32 v{GA}, 15, v{GA}
    v_lshl_or_b32 v{XA}, v{XA}, 4, v{GA}
    s_mov_b32 s22, {L_X}
    v_lshl_add_u32 v{XA}, v{XA}, 4, s22
    """)
    for s_ in range(1, 8):
        A(f"v_xor_b32 v{v.E+8+s_}, {s_*32}, v{XA}")
    pt("g3")
    if "gx" in PTS:
        A("s_waitcnt vmcnt(4)")
        pt("gx")
        A("s_waitcnt vmcnt(0)")
        pt("gw")
    if G1M == 1: w23dma()
    assert G1M == 2
    tagload("")
    A("s_waitcnt lgkmcnt(0)")
    tagfix()
    A(f"s_waitcnt vmcnt({4 if PW else 0})")
    A("s_barrier")
    stamp(94)
    if opt.get("tst"):
        sd = sOUT if opt["tst"] == "out" else sWS
        add = {"out": 0, "ws": 0, "ws2": 0x900000}[opt["tst"]]
        pt("t0")
        for r in (sUT, 73, 74):
            A(f"s_add_u32 s22, s{r}, {add}")
            A(f"buffer_store_dwordx4 {vr(v.T,4)}, v{XV}, {sr(sd,4)}, s22 offen {STF}")
        A("s_waitcnt vmcnt(0)")
        pt("t1")
    for s_ in range(8):
        A(f"ds_read_b64_tr_b16 {vr(v.WA+4*s_,2)}, v{TN} offset:{s_*4096}")
        A(f"ds_read_b64_tr_b16 {vr(v.WA+4*s_+2,2)}, v{TN} offset:{s_*4096+1024}")
        A(f"ds_read_b128 {vr(v.XF+4*s_,4)}, v{v.E+8+s_ if s_ else XA}")
    if G1M == 2: w23dma()
    A(f"s_cmp_lg_u32 s{sG}, 0")
    A("s_cbranch_scc1 K_G1")
    for s_ in range(8):
        A(f"ds_read_b128 {vr(v.U2+4*s_,4)}, v{v.E+8+s_ if s_ else XA} offset:16384")
    for s_ in range(8):
        A(f"s_waitcnt lgkmcnt({min(15, 3*(7-s_) + 8)})")
        A(mfma(v.T, v.WA + 4*s_, v.XF + 4*s_, "0" if s_ == 0 else None))
    for s_ in range(8):
        A(f"s_waitcnt lgkmcnt({7-s_})")
        A(mfma(v.T1, v.WA + 4*s_, v.U2 + 4*s_, "0" if s_ == 0 else None))
    def pout(acc, off, pk):
        for r in range(0, 16, 2):
            if pk:
                A(f"v_pk_mul_f32 {P(acc+r)}, {P(acc+r)}, s[72:73] op_sel_hi:[1,0]")
            else:
                A(f"v_mul_f32 v{acc+r}, s72, v{acc+r}")
                A(f"v_mul_f32 v{acc+r+1}, s72, v{acc+r+1}")
        for r in range(0, 16, 2):
            A(f"v_cvt_pk_bf16_f32 v{acc+r//2}, v{acc+r}, v{acc+r+1}")
        A(f"ds_write_b128 v{PA}, {vr(acc,4)} offset:{off}")
        A(f"ds_write_b128 v{GA}, {vr(acc+4,4)} offset:{off}")
    A(f"v_xor_b32 v{GA}, 16, v{PA}")
    pout(v.T, 0, False)
    pout(v.T1, 16384, True)
    A("s_branch K_G3")
    A("K_G1:")
    for s_ in range(8):
        A(f"s_waitcnt lgkmcnt({min(15, 3*(7-s_))})")
        A(mfma(v.T, v.WA + 4*s_, v.XF + 4*s_, "0" if s_ == 0 else None))
    A(f"v_xor_b32 v{GA}, 16, v{PA}")
    A("s_nop 10")
    pout(v.T, 0, False)
    A("K_G3:")
    pt("g4")
    A(f"""
    s_waitcnt lgkmcnt(0)
    s_barrier
    ds_read_b128 {vr(v.T,4)}, v{v.JK3}
    ds_read_b128 {vr(v.T+4,4)}, v{v.JK3} offset:8192
    ds_read_b128 {vr(v.T+8,4)}, v{v.JK3} offset:16384
    s_waitcnt lgkmcnt(2){" vmcnt(5)" if PW else ""}
    """)
    mkoff([sUT, 73, 74])
    A(f"""
    buffer_store_dwordx4 {vr(v.T,4)}, v{XV}, {sr(sWS,4)}, s{sUT} offen {STF}
    s_waitcnt lgkmcnt(1)
    buffer_store_dwordx4 {vr(v.T+4,4)}, v{XV}, {sr(sWS,4)}, s73 offen {STF}
    s_waitcnt lgkmcnt(0)
    buffer_store_dwordx4 {vr(v.T+8,4)}, v{XV}, {sr(sWS,4)}, s74 offen {STF}
    """)
    stamp(4)
    tagget("B")
    A("s_waitcnt vmcnt(3)")
    A("K_COM0:")
    qaddr()
    A("s_barrier")
    pt("c1")
    qreads()
    lds_init()
    pt("c2")
    qmfma()
    stamp(6)
    A("K_COMMON:")
    pt("c3")
    for r in range(0, 12, 2):
        A(f"v_pk_mul_f32 {P(v.E+r)}, {P(v.E+r)}, s[72:73] op_sel_hi:[1,0]")
    A(f"""
    v_cvt_pk_bf16_f32 v{v.QS}, v{v.E}, v{v.E+1}
    v_cvt_pk_bf16_f32 v{v.QS+1}, v{v.E+2}, v{v.E+3}
    v_cvt_pk_bf16_f32 v{v.QF+2}, v{v.E+4}, v{v.E+5}
    v_cvt_pk_bf16_f32 v{v.QF+3}, v{v.E+6}, v{v.E+7}
    v_cvt_pk_bf16_f32 v{v.QS+2}, v{v.E+8}, v{v.E+9}
    v_cvt_pk_bf16_f32 v{v.QS+3}, v{v.E+10}, v{v.E+11}
    s_lshl_b32 s{sUoff}, s{sC}, 13
    s_add_u32 s{sUoff}, s{sUoff}, {WS_U}
    """)
    def round_regs():
        A(f"""
        v_mov_b32 v{v.TPa+1}, v{v.IX0+1}
        v_mov_b32 v{v.TPb+1}, v{v.IX0+1}
        v_mov_b32 v{v.IEb+1}, v{v.IE+1}
        v_mov_b32 v{v.aggF}, 1
        v_mov_b64 {P(v.REC+4)}, -1
        v_mov_b64 {P(v.REC+6)}, -1
        v_add_u32 v{v.JK}, {64 * CH}, v{v.EB}
        """)
    def cell_addr():
        A(f"""
        s_lshl_b32 s22, s2, 7
        s_add_u32 s22, s22, {WS_CELL}
        {f"s_add_u32 s22, s22, s{sOff}" if opt.get("rw") else ""}
        s_add_u32 s23, s22, {64*32768}
        s_movk_i32 s76, {1000 - 512}
        v_cmp_gt_u32 s[76:77], s76, v0
        v_lshrrev_b32 v{v.t0}, 3, v0
        v_and_b32 v{v.t1}, 7, v0
        v_lshlrev_b32 v{v.t1}, 4, v{v.t1}
        v_lshl_add_u32 v{v.DS}, v{v.t0}, 15, v{v.t1}
        """)
    round_regs()
    A(f"""
    s_cmp_eq_u32 s{sRole}, 0
    s_cbranch_scc1 {"K2_B3" if opt.get("isl", 8) else "K2_B2"}
    s_waitcnt vmcnt(6)
    s_barrier
    s_cmp_eq_u32 s3, 0
    s_cbranch_scc1 K2_B1
    K2_B2:
    """)
    stamp(8)
    A("K2_CELLS:")
    cell_addr()
    A("s_mov_b64 s[74:75], -1")
    A("s_and_b32 s72, s76, 0x80808080")
    A("s_and_b32 s73, s77, 0x80808080")
    stamp(10)
    A(f"""
    K_POLL:
    s_mov_b64 exec, s[74:75]
    buffer_load_dwordx4 {vr(v.REC,4)}, v{v.DS}, {sr(sWS,4)}, s22 offen sc1
    s_mov_b64 exec, s[76:77]
    buffer_load_dwordx4 {vr(v.REC+4,4)}, v{v.DS}, {sr(sWS,4)}, s23 offen sc1
    s_mov_b64 exec, -1
    buffer_load_dword v{v.JK2}, off, {sr(sWS,4)}, s{sRel} sc1
    s_waitcnt vmcnt(0)
    """)
    xred([v.REC, v.REC + 4], [v.NS, v.NS + 1])
    A(f"""
    v_xor_b32 v{v.NS}, s{sTag}, v{v.NS}
    v_xor_b32 v{v.NS+1}, s{sTag}, v{v.NS+1}
    v_cmp_lt_u32 s[74:75], 1, v{v.NS}
    v_cmp_lt_u32 vcc, 1, v{v.NS+1}
    s_and_b64 s[76:77], s[76:77], vcc
    s_or_b64 s[78:79], s[74:75], s[76:77]
    s_cbranch_scc1 K_POLL2
    s_mov_b32 exec_lo, 0x80808080
    s_mov_b32 exec_hi, 0x80808080
    v_not_b32 v{v.REC+3}, v{v.NS}
    s_mov_b64 exec, s[72:73]
    v_not_b32 v{v.REC+7}, v{v.NS+1}
    s_mov_b64 exec, -1
    """)
    A(f"""
    s_cmp_lg_u32 s{sMode}, 0
    s_barrier
    s_cbranch_scc1 K2_COUNT
    ds_read_b128 {vr(v.SEL0,4)}, v{v.S0a}
    ds_read_b128 {vr(v.SEL1,4)}, v{v.S1a}
    K2_COUNT:
    """)
    ool.append(f"K2_B1:\nv_mov_b32 v{v.FV}, s{sTag}\ns_mov_b64 exec, 1\nbuffer_store_dword v{v.FV}, off, {sr(sWS,4)}, s{sPair} sc1\ns_mov_b64 exec, -1\ns_branch K2_B2")
    if opt.get("isl", 8): ool.append(f"K2_B3:\ns_waitcnt vmcnt(6)\ns_sleep {opt.get('isl', 8) - 1}\ns_branch K2_B2")
    ool.append(f"K_POLL2:\ns_sleep {opt.get('slp', 12)}\ns_branch K_POLL")
    stamp(12)
    ET = opt.get("et", 5)
    W0 = {0: v.W0, 1: v.W0 + 2, 4: v.W0 + 4, 5: v.W0 + 6}
    for j in range(8):
        main = j % 4 < 2
        body = f"""
        v_lshrrev_b32 v{v.AD+j}, 12, v{v.REC+j}
        v_and_b32 v{v.AD+j}, 0xfc, v{v.AD+j}
        s_mov_b64 exec, {sr(sM+2*j,2)}
        ds_add_rtn_u32 v{v.RANK+j}, v{v.AD+j}, v{v.aggF} offset:{CNT}
        """
        A(f"v_cmp_gt_u32 {sr(sM+2*j,2)}, -2, v{v.REC+j}")
        if main:
            A(body)
            A(f"v_lshrrev_b32 v{W0[j]+1}, 20, v{v.REC+j}")
            if ET:
                A(f"v_subrev_u32 v{v.t0}, 80, v{v.AD+j}")
            A(f"v_add_u32 v{W0[j]+1}, v{W0[j]+1}, v{v.EB if j < 4 else v.JK}")
            if ET:
                A(f"v_min_u32 v{v.t0}, v{v.t0}, v{v.AD+j}")
                A(f"v_cmpx_gt_u32 vcc, {4*ET}, v{v.t0}")
                A(f"buffer_load_dword v{v.JK3}, v{W0[j]+1}, {sr(sE,4)}, 0 idxen")
            A("s_mov_b64 exec, -1")
        else:
            l = A.label("cs"); lb = A.label("cb")
            body += "s_mov_b64 exec, -1\n"
            if j % 4 == 3:
                A(f"v_cmp_eq_u32 vcc, -2, v{v.REC+j}")
                A(f"s_or_b64 s[22:23], {sr(sM+2*j,2)}, vcc")
                body += f"s_cbranch_vccz {lb}\nv_mov_b32 v{v.t1}, {FLAG}\nds_write_b32 v{v.t1}, v{v.aggF}\n"
            else:
                A(f"s_cmp_lg_u64 {sr(sM+2*j,2)}, 0")
            A(f"s_cbranch_scc1 {l}")
            A(f"{lb}:")
            ool.append(f"{l}:\n{body}\ns_branch {lb}")
    NPF = opt.get("pf", 0)
    if NPF:
        A(f"""
        s_or_b32 s22, s3, s{sMode}
        s_cmp_lg_u32 s22, 0
        s_cbranch_scc1 K2_NOPF
        v_cmp_ne_u32 vcc, s{sTag}, v{v.JK2}
        s_cbranch_vccnz K2_NOPF
        s_mul_i32 s22, s{sSl}, 81920
        v_lshlrev_b32 v{v.t0}, 7, v{L}
        """)
        for q in range(NPF):
            A(f"buffer_load_dword v{v.JK3}, v{v.t0}, {sr(sWS,4)}, s22 offen")
            if q < NPF - 1: A("s_add_u32 s22, s22, 8192")
        A("K2_NOPF:")
    c = v.t0; pd = v.OHA
    A(f"""
    v_lshlrev_b32 v{v.t0}, 2, v{L}
    v_mov_b32 v{v.t1}, {FLAG}
    s_mul_i32 s22, s{sG}, 20
    s_add_u32 s22, s22, 8
    s_waitcnt lgkmcnt(0)
    s_barrier
    """)
    pt("b2")
    A(f"""
    ds_read_b32 v{v.t0}, v{v.t0} offset:{CNT}
    ds_read_b32 v{v.t1}, v{v.t1}
    s_waitcnt lgkmcnt(0)
    v_add_u32 v{c}, 3, v{c}
    v_and_b32 v{c}, -4, v{c}
    v_max_u32 v{c}, 4, v{c}
    v_cndmask_b32 v{pd}, 0, v{c}, {sr(sN40,2)}
    v_readfirstlane_b32 s23, v{v.t1}
    s_nop 0
    v_add_u32_dpp v{c}, v{pd}, v{pd} row_shr:1 row_mask:0xf bank_mask:0xf bound_ctrl:0
    s_nop 1
    v_add_u32_dpp v{c}, v{c}, v{c} row_shr:2 row_mask:0xf bank_mask:0xf bound_ctrl:0
    s_nop 1
    v_add_u32_dpp v{c}, v{c}, v{c} row_shr:4 row_mask:0xf bank_mask:0xf bound_ctrl:0
    s_nop 1
    v_add_u32_dpp v{c}, v{c}, v{c} row_shr:8 row_mask:0xf bank_mask:0xf bound_ctrl:0
    s_nop 1
    v_add_u32_dpp v{c}, v{c}, v{c} row_bcast:15 row_mask:0xa bank_mask:0xf
    s_nop 1
    v_add_u32_dpp v{c}, v{c}, v{c} row_bcast:31 row_mask:0xc bank_mask:0xf
    s_cmp_lg_u32 s23, -1
    s_cbranch_scc1 K2_OVF
    v_readlane_b32 s{sT0}, v{c}, 19
    v_readlane_b32 s{sT1}, v{c}, 39
    v_sub_u32 v{pd}, v{c}, v{pd}
    s_sub_u32 s23, {GSL}, s{sT0}
    v_add_u32 v{c}, s23, v{pd}
    v_cndmask_b32 v{pd}, v{pd}, v{c}, {sr(sG1,2)}
    v_add_u32 v{v.FV}, v{pd}, v{v.OHB}
    """)
    for j in (0, 1, 4, 5):
        A(f"ds_bpermute_b32 v{v.PK+j}, v{v.AD+j}, v{v.FV}")
    A(f"""
    v_readlane_b32 s{sTsw}, v{pd}, s22
    s_sub_u32 s{sT1}, s{sT1}, s{sT0}
    s_max_u32 s22, s{sT0}, s{sT1}
    s_cmp_gt_u32 s22, {GSL}
    s_cbranch_scc1 K2_OVF
    s_waitcnt lgkmcnt(0)
    """)
    pt("sc")
    for j in (0, 1, 4, 5, 2, 3, 6, 7):
        rare = (j % 4) >= 2
        w = v.W0 + 8 if rare else W0[j]
        body = f"""
        s_mov_b64 exec, {sr(sM+2*j,2)}
        v_add_u32_sdwa v{v.RANK+j}, v{v.PK+j}, v{v.RANK+j} dst_sel:DWORD dst_unused:UNUSED_PAD src0_sel:WORD_0 src1_sel:DWORD
        v_bfi_b32 v{w}, s{sK3F}, v{v.REC+j}, v{v.PK+j}
        v_lshlrev_b32 v{v.PK+j}, 3, v{v.RANK+j}
        v_lshrrev_b32 v{v.RANK+j}, 2, v{v.RANK+j}
        ds_write_b64 v{v.PK+j}, {P(w)} offset:{REC}
        ds_write_b8 v{v.RANK+j}, v{v.AD+j} offset:{QN}
        """
        if rare:
            l = A.label("ss"); lb = A.label("sb")
            A(f"s_cmp_lg_u64 {sr(sM+2*j,2)}, 0")
            A(f"s_cbranch_scc1 {l}")
            A(f"{lb}:")
            ool.append(f"{l}:\ns_mov_b64 exec, -1\nds_bpermute_b32 v{v.PK+j}, v{v.AD+j}, v{v.FV}\nv_lshrrev_b32 v{w+1}, 20, v{v.REC+j}\nv_add_u32 v{w+1}, v{w+1}, v{v.EB if j < 4 else v.JK}\ns_waitcnt lgkmcnt(0)\n{body}\ns_branch {lb}")
        else:
            A(body)
    A(f"""
    s_mov_b64 exec, -1
    s_or_b32 s22, s3, s{sMode}
    s_cmp_lg_u32 s22, 0
    s_cbranch_scc1 K2_RDY
    v_cmp_ne_u32 vcc, s{sTag}, v{v.JK2}
    s_cbranch_vccnz {"K2_SPOLL" if opt.get("sp", 1) else "K2_RPOLL"}
    K2_RDY:
    s_mov_b32 m0, s{sRing}
    s_waitcnt lgkmcnt(0)
    s_barrier
    """)
    ool.append(f"K2_RPOLL:\nbuffer_load_dword v{v.JK2}, off, {sr(sWS,4)}, s{sRel} sc1\ns_waitcnt vmcnt(0)\nv_cmp_ne_u32 vcc, s{sTag}, v{v.JK2}\ns_cbranch_vccz K2_RDY\ns_sleep 1\ns_branch K2_RPOLL")
    ool.append(f"K2_SPOLL:\ns_mov_b32 s23, 0\nK2_SP2:\ns_buffer_load_dword s22, {sr(sWS,4)}, s{sRel} glc\ns_waitcnt lgkmcnt(0)\ns_cmp_eq_u32 s22, s{sTag}\ns_cbranch_scc1 K2_RDY\ns_add_u32 s23, s23, 1\ns_cmp_lt_u32 s23, 16\ns_cbranch_scc1 K2_SP2\ns_branch K2_RPOLL")
    stamp(14)
    A(f"""
    ds_read_u16 v{v.IX0}, v{v.R1}
    ds_read_u16 v{v.IX1}, v{v.R1} offset:64
    ds_read_b32 v{v.IE}, v{v.Re}
    ds_read_u8 v{v.t0}, v0 offset:{QN}
    ds_read_u16 v{v.TPa}, v{v.R1} offset:256
    ds_read_u16 v{v.TPb}, v{v.R1} offset:320
    ds_read_b32 v{v.IEb}, v{v.Re} offset:1024
    ds_read_u8 v{v.OH0}, v{v.R2}
    ds_read_u8 v{v.OHA}, v{v.R2} offset:256
    s_waitcnt lgkmcnt(8)
    buffer_load_dwordx4 {P(v.IX0)}, {sr(sP,4)}, 0 idxen offen lds
    s_add_u32 m0, s{sRing}, 1024
    s_waitcnt lgkmcnt(7)
    buffer_load_dwordx4 {P(v.IX1)}, {sr(sP,4)}, 0 idxen offen lds
    s_mov_b32 m0, s{sE0}
    s_waitcnt lgkmcnt(5)
    buffer_load_dwordx4 {P(v.IE)}, {sr(sE,4)}, 0 idxen offen lds
    v_cmp_ne_u32 vcc, 0xff, v{v.t0}
    v_subrev_u32 v{v.t1}, 80, v{v.t0}
    v_min_u32 v{v.t0}, v{v.t0}, v{v.t1}
    v_lshl_add_u32 v{v.t1}, v{v.t0}, 3, v{v.QC}
    v_lshrrev_b32 v{v.t0}, 1, v{v.t0}
    v_and_b32 v{v.t0}, 16, v{v.t0}
    v_xor_b32 v{v.t1}, v{v.t1}, v{v.t0}
    v_mov_b32 v{v.t0}, 0x3f80
    s_mov_b64 exec, vcc
    ds_write_b16 v{v.t1}, v{v.t0}
    s_mov_b64 exec, -1
    s_add_u32 m0, s{sRing}, 2048
    s_waitcnt lgkmcnt(0)
    buffer_load_dwordx4 {P(v.TPa)}, {sr(sP,4)}, 0 idxen offen lds
    s_add_u32 m0, s{sRing}, 3072
    ds_read_u16 v{v.IX0}, v{v.R1} offset:512
    buffer_load_dwordx4 {P(v.TPb)}, {sr(sP,4)}, 0 idxen offen lds
    ds_read_u16 v{v.IX1}, v{v.R1} offset:576
    ds_read_u16 v{v.TPa}, v{v.R1} offset:768
    ds_read_u16 v{v.TPb}, v{v.R1} offset:832
    s_mul_i32 s22, s{sG}, {GSL}
    s_sub_u32 s{sTsw}, s{sTsw}, s22
    s_add_u32 s{sTsw}, s{sTsw}, 31
    s_lshr_b32 s{sTsw}, s{sTsw}, 5
    s_add_u32 s{sT0}, s{sT0}, 31
    s_lshr_b32 s{sT0}, s{sT0}, 5
    s_add_u32 s{sT1}, s{sT1}, 31
    s_lshr_b32 s{sT1}, s{sT1}, 5
    s_cmp_gt_u32 s{sT0}, s{sT1}
    s_cselect_b32 s{sLate}, 1, 0
    s_xor_b32 s{sLate}, s{sLate}, s{sG}
    s_cmp_eq_u32 s{sG}, 0
    s_cselect_b32 s{sTg}, s{sT0}, s{sT1}
    s_sub_u32 s{sUT}, s{sTg}, 9
    s_and_b32 s{sUT}, s{sUT}, -4
    s_add_u32 s{sUT}, s{sUT}, 1
    s_cmp_lt_u32 s{sTg}, 9
    s_cselect_b32 s{sUT}, {BIG}, s{sUT}
    s_cmp_lg_u32 s{sMode}, 0
    s_cselect_b32 s{sUT}, {BIG}, s{sUT}
    s_sub_u32 s22, s{sTg}, 1
    s_lshr_b32 s22, s22, 1
    s_mul_i32 s22, s22, 3072
    s_add_u32 s22, s22, {3072 + 2048}
    v_add_u32 v{v.LA}, s22, v{v.E_}
    s_add_u32 s{sEdst}, s{sE0}, {6144 if opt.get('ek', 3) == 3 else 12288}
    s_mov_b32 s{sTile}, 0
    v_mov_b32 v{v.PROG}, 1
    v_mov_b64 {P(v.QF)}, {P(v.QS)}
    v_mov_b64 {P(v.NS)}, 0
    v_mov_b64 {P(v.NS+2)}, 0
    v_mov_b64 {P(v.DS)}, {P(v.ONE)}
    v_mov_b64 {P(v.DS+2)}, {P(v.ONE)}
    v_mov_b64 {P(v.MSG)}, 0
    v_mov_b64 {P(v.aggF)}, 0
    v_mov_b64 {P(v.aggF+2)}, 0
    v_mov_b64 {P(v.S)}, 0
    s_cmp_lg_u32 s{sMode}, 0
    s_waitcnt vmcnt(2) lgkmcnt(0)
    s_barrier
    """)
    stamp(16)
    A(f"""
    ds_read_b128 {vr(v.ohF,4)}, v{v.OH0}
    ds_read_b128 {vr(v.eF,4)}, v{v.E_} offset:3072
    ds_read_b128 {vr(v.pF0,4)}, v{v.P0}
    ds_read_b128 {vr(v.pF1,4)}, v{v.P1}
    s_cbranch_scc1 K2_SAFEP
    """)
    def late_issue():
        A(f"""
        s_add_u32 m0, s{sRing}, 4096
        s_nop 0
        buffer_load_dwordx4 {P(v.IX0)}, {sr(sP,4)}, 0 idxen offen lds
        s_add_u32 m0, s{sRing}, 5120
        ds_read_u16 v{v.IX0}, v{v.R1} offset:1024
        buffer_load_dwordx4 {P(v.IX1)}, {sr(sP,4)}, 0 idxen offen lds
        """)
        if opt.get("ek", 3) == 2:
            A(f"""
            s_add_u32 m0, s{sE0}, 6144
            s_nop 0
            buffer_load_dwordx4 {P(v.IEb)}, {sr(sE,4)}, 0 idxen offen lds
            """)
        else:
            A(f"v_mov_b32 v{v.IE}, v{v.IEb}")
        A(f"""
        s_add_u32 m0, s{sRing}, 6144
        ds_read_u16 v{v.IX1}, v{v.R1} offset:1088
        buffer_load_dwordx4 {P(v.TPa)}, {sr(sP,4)}, 0 idxen offen lds
        s_add_u32 m0, s{sRing}, 7168
        s_nop 0
        buffer_load_dwordx4 {P(v.TPb)}, {sr(sP,4)}, 0 idxen offen lds
        """)
    chain(A, 3, "fast", None, ool, pre=True, mid=late_issue)
    A("K2_LOOP:")
    for k in range(4):
        stretch(A, k, "fast", ool)
        chain(A, k, "fast", "K2_EXIT", ool)
    A("s_branch K2_LOOP")
    A("K2_EXIT:")
    stamp(18)
    A(f"""
    s_setprio 0
    ds_read_b128 {vr(v.ohF,4)}, v{v.LA}
    v_rcp_f32 v{v.RS}, v{v.DS}
    v_rcp_f32 v{v.RS+1}, v{v.DS+1}
    v_rcp_f32 v{v.RS+2}, v{v.DS+2}
    v_rcp_f32 v{v.RS+3}, v{v.DS+3}
    v_fma_f32 v{v.S}, v{v.DS}, v{v.DS+2}, v{v.S}
    v_fma_f32 v{v.S+1}, v{v.DS+1}, v{v.DS+3}, v{v.S+1}
    v_mul_f32 v{v.NS}, v{v.NS}, v{v.RS}
    v_mul_f32 v{v.NS+1}, v{v.NS+1}, v{v.RS+1}
    v_mul_f32 v{v.NS+2}, v{v.NS+2}, v{v.RS+2}
    v_mul_f32 v{v.NS+3}, v{v.NS+3}, v{v.RS+3}
    K2_X2:
    s_bitcmp1_b32 s{sTg}, 0
    s_cbranch_scc0 K2_X3
    s_waitcnt lgkmcnt(1)
    {mfma(v.ACC, v.MSG, v.aggF)}
    v_cvt_pk_bf16_f32 v{v.MSG}, v{v.NS}, v{v.NS+1}
    v_cvt_pk_bf16_f32 v{v.MSG+1}, v{v.NS+2}, v{v.NS+3}
    s_branch K2_X4
    K2_X3:
    v_cvt_pk_bf16_f32 v{v.MSG+2}, v{v.NS}, v{v.NS+1}
    v_cvt_pk_bf16_f32 v{v.MSG+3}, v{v.NS+2}, v{v.NS+3}
    K2_X4:
    v_max_f32 v{v.S}, v{v.S}, v{v.S+1}
    s_waitcnt lgkmcnt(0)
    {mfma(v.ACC, v.MSG, v.ohF)}
    v_add_u32 v{v.t0}, s{sRing}, v{v.t3}
    s_cmp_eq_u32 s{sMode}, 1
    s_cbranch_scc1 K2_NEXTR
    K2_FIN:
    s_cmp_eq_u32 s{sUT}, {BIG}
    s_cbranch_scc1 K2_ULD
    K2_ULB:
    s_mov_b32 s22, {NEG_LN2:#x}
    s_mov_b32 s23, {f2u(2.0**60):#x}
    v_mov_b64 {P(v.NS)}, 0
    v_mov_b32 v{v.S+1}, 0
    s_lshl_b32 s76, s{sG}, 15
    s_add_u32 s76, s76, {RING}
    v_add_u32 v{v.t1}, s76, v{v.t3}
    v_mov_b32 v{v.JK}, {TRIP}
    """)
    B = Asm(); B("K2_ULD:")
    for i in range(16): u_load(B, i)
    B("s_branch K2_ULB"); ool.append(B.text())
    for s in range(8):
        A(f"v_pk_mul_f32 {P(v.ACC+2*s)}, {P(v.ACC+2*s)}, s[22:23] op_sel_hi:[1,0]")
    for s in range(8):
        A(f"v_cvt_pk_bf16_f32 v{v.E+s}, v{v.ACC+2*s}, v{v.ACC+2*s+1}")
    A("s_waitcnt vmcnt(0)")
    A(f"ds_write_b128 v{v.t0}, {vr(v.E,4)}")
    A(f"ds_write_b128 v{v.t0}, {vr(v.E+4,4)} offset:1024")
    for s in range(8):
        A(f"v_pk_fma_f32 {P(v.S)}, {P(v.ACC+2*s)}, {P(v.NS)}, {P(v.S)}")
    F = v.T; AG = v.T1
    A(f"""
    v_add_f32 v{v.S}, v{v.S}, v{v.S+1}
    v_cmp_nge_f32 vcc, s23, v{v.S}
    s_cbranch_vccnz K2_TRIP
    K2_TRB:
    s_cmp_lg_u32 s{sLate}, 0
    s_waitcnt lgkmcnt(0)
    s_cbranch_scc1 K2_LATE
    """)
    ool.append(f"K2_TRIP:\ns_cmp_lg_u32 s{sMode}, 0\ns_cbranch_scc1 K2_TRB\nds_write_b32 v{v.JK}, v{v.NS}\ns_branch K2_TRB")
    def rg():
        for s_ in range(8):
            A(mfma(F, v.U1 + 4*s_, v.XF + 4*s_, "0" if s_ == 0 else None))
    def rd():
        A("s_barrier")
        stamp(96)
        A(f"ds_read_b32 v{v.JK}, v{v.JK}")
        for s in range(8):
            A(f"ds_read_b128 {vr(AG+4*s,4)}, v{v.t1} offset:{(s >> 1) * 8192 + (s & 1) * 1024}")
    rg(); rd()
    if opt.get("ep2", 1): A("s_setprio 2")
    A("s_branch K2_JOIN")
    A("K2_LATE:")
    rd(); rg()
    A("K2_JOIN:")
    for s in range(8):
        A(f"s_waitcnt lgkmcnt({7-s})")
        A(mfma(F, v.U2 + 4*s, AG + 4*s))
    A(f"""
    s_setprio 0
    v_readfirstlane_b32 s23, v{v.JK}
    s_mov_b32 s22, {NEG_LOG2E:#x}
    s_cmp_eq_u32 s23, 0
    s_cbranch_scc1 K2_REDO
    s_cmp_lg_u32 s{sLate}, 0
    s_nop 5
    s_cbranch_scc1 K2_ACT2
    """)
    def act(pk):
        for r in range(0, 16, 2):
            if pk: A(f"v_pk_mul_f32 {P(v.E+r)}, {P(F+r)}, s[22:23] op_sel_hi:[1,0]")
            else:
                A(f"v_mul_f32 v{v.E+r}, s22, v{F+r}"); A(f"v_mul_f32 v{v.E+r+1}, s22, v{F+r+1}")
        for r in range(16):
            A(f"v_exp_f32 v{v.E+r}, v{v.E+r}")
        for r in range(0, 16, 2):
            if pk: A(f"v_pk_add_f32 {P(v.E+r)}, {P(v.E+r)}, {P(v.ONE)}")
            else:
                A(f"v_add_f32 v{v.E+r}, 1.0, v{v.E+r}"); A(f"v_add_f32 v{v.E+r+1}, 1.0, v{v.E+r+1}")
        for r in range(16):
            A(f"v_rcp_f32 v{v.E+r}, v{v.E+r}")
        for r in range(0, 16, 2):
            if pk: A(f"v_pk_mul_f32 {P(F+r)}, {P(F+r)}, {P(v.E+r)}")
            else:
                A(f"v_mul_f32 v{F+r}, v{F+r}, v{v.E+r}"); A(f"v_mul_f32 v{F+r+1}, v{F+r+1}, v{v.E+r+1}")
    act(not opt.get("ep2", 1))
    A("s_branch K2_ACT3")
    A("K2_ACT2:")
    act(True)
    A("K2_ACT3:")
    O = v.T1
    for r in range(8):
        A(f"v_cvt_pk_bf16_f32 v{O+r}, v{F+2*r}, v{F+2*r+1}")
    A(f"""
    s_nop 1
    v_permlane32_swap_b32 v{O}, v{O+2}
    v_permlane32_swap_b32 v{O+1}, v{O+3}
    v_permlane32_swap_b32 v{O+4}, v{O+6}
    v_permlane32_swap_b32 v{O+5}, v{O+7}
    buffer_store_dwordx4 {vr(O,4)}, v{v.OA}, {sr(sOUT,4)}, 0 offen {opt.get("ost", "").replace("_", " ")}
    buffer_store_dwordx4 {vr(O+4,4)}, v{v.OA}, {sr(sOUT,4)}, 0 offen offset:32 {opt.get("ost", "").replace("_", " ")}
    """)
    A(f"""
    s_or_b32 s22, s2, s3
    s_cmp_eq_u32 s22, 0
    s_cbranch_scc1 K_ADV
    K_ADVB:
    """)
    ool.append(f"K_ADV:\nv_mov_b32 v1, s{sTag}\ns_mov_b32 s22, {WS_TAG}\ns_mov_b64 exec, 1\nbuffer_store_dword v1, off, {sr(sWS,4)}, s22 sc1\ns_mov_b64 exec, -1\ns_branch K_ADVB")
    if ST:
        A("s_waitcnt vmcnt(0)")
        A("s_memtime s[98:99]")
        A("s_memrealtime s[100:101]")
        A(f"""
        s_lshl_b32 s22, s2, 3
        s_add_u32 s22, s22, s3
        s_lshl_b32 s22, s22, 6
        s_add_u32 s22, s22, 0xA00000
        v_mov_b32 v1, 0
        s_waitcnt lgkmcnt(0)
        """)
        for i, r in enumerate([90, 94, 4, 6, 8, 10, 12, 14, 16, 18, 96, 98, 92, 100, sTg] if not PTS else [90, 94, 4, 44, 46, 48, 50, 96, 6, 12, 14, 98, 92, 100, sTg]):
            A(f"v_mov_b32 v2, s{r}")
            A(f"buffer_store_dword v2, v1, {sr(sWS,4)}, s22 offen offset:{4*i}")
    A("K_END:")
    A("s_endpgm")
    for o in ool: A(o)
    del ool[:]
    A(f"""
    K_SPECIAL:
    s_waitcnt lgkmcnt(0)
    s_mov_b32 s22, {WS_TAG}
    s_load_dword s{sTag}, s[{PWS}:{PWS+1}], s22
    """)
    if ST: srd(A, sDB, PDBG, 256)
    srd(A, sWS, PWS, WS_END)
    A(f"""
    s_cmp_lg_u32 s2, 0
    s_cbranch_scc1 K_HELPER
    s_cmp_lg_u32 s3, 0
    s_cbranch_scc1 K_END
    s_waitcnt lgkmcnt(0)
    s_add_u32 s{sTag}, s{sTag}, 2
    s_or_b32 s{sTag}, s{sTag}, 0x40000001
    v_mov_b32 v1, s{sTag}
    v_lshlrev_b32 v2, 4, v0
    v_cmp_gt_u32 vcc, {NCHUNK + 2 - 64}, v0
    v_add_u32 v4, 1024, v2
    s_mov_b32 s22, {WS_FLAG + 0x2000}
    v_cndmask_b32 v4, v2, v4, vcc
    v_lshlrev_b32 v3, 7, v0
    s_mov_b32 s23, {WS_FLAG + 0x4000}
    v_mov_b32 v6, 0
    {f"buffer_store_dword v6, v3, {sr(sWS,4)}, s23 offen sc1" if PW else ""}
    """)
    if MC:
        A(f"""
        v_cmp_gt_u32 vcc, {NCHUNK - 64}, v0
        v_add_u32 v5, 1024, v2
        s_mov_b32 s76, {WS_FLAG}
        v_cndmask_b32 v5, v2, v5, vcc
        s_mov_b32 s77, {WS_FLAG + 0x6000}
        K_MPOLL0:
        buffer_load_dword v8, v2, {sr(sWS,4)}, s76 offen sc1
        buffer_load_dword v9, v5, {sr(sWS,4)}, s76 offen sc1
        s_waitcnt vmcnt(0)
        v_xor_b32 v8, v1, v8
        v_xor_b32 v9, v1, v9
        v_or_b32 v8, v8, v9
        v_cmp_ne_u32 vcc, 0, v8
        s_cbranch_vccnz K_MPOLL0
        buffer_store_dword v1, v3, {sr(sWS,4)}, s77 offen sc1
        {"s_memrealtime s[92:93]" if ST else ""}
        """)
    A(f"""
    K_MPOLL:
    buffer_load_dword v8, v2, {sr(sWS,4)}, s22 offen sc1
    buffer_load_dword v9, v4, {sr(sWS,4)}, s22 offen sc1
    s_waitcnt vmcnt(0)
    v_xor_b32 v8, v1, v8
    v_xor_b32 v9, v1, v9
    v_or_b32 v8, v8, v9
    v_cmp_ne_u32 vcc, 0, v8
    s_cbranch_vccnz K_MPOLL
    buffer_store_dword v1, v3, {sr(sWS,4)}, s23 offen sc1
    {"s_memrealtime s[90:91]" if ST else ""}
    {"s_waitcnt lgkmcnt(0)" if ST else ""}
    {"v_mov_b32 v2, s90" if ST else ""}
    {f"buffer_store_dword v2, off, {sr(sDB,4)}, 0 offset:8" if ST else ""}
    {"v_mov_b32 v2, s92" if ST else ""}
    {f"buffer_store_dword v2, off, {sr(sDB,4)}, 0 offset:12" if ST else ""}
    s_endpgm
    K_HELPER:
    s_sub_u32 s87, s2, 1
    s_lshl_b32 s82, s87, 15
    s_lshl_b32 s77, s3, 12
    """)
    srd(A, sWm, PWU, 32768, add="s82")
    wdma(0, 0)
    A(f"""
    s_waitcnt vmcnt(4)
    s_lshl_b32 s22, s{sC}, 6
    v_xor_b32 v{TRA}, s22, v{TRA}
    v_lshrrev_b32 v{H}, 5, v{L}
    s_sub_u32 s22, 11, s87
    v_lshlrev_b32 v{H}, s22, v{H}
    v_add_u32 v{TRA}, v{TRA}, v{H}
    s_lshl_b32 s22, s{sG}, 14
    v_add_u32 v{TRA}, s22, v{TRA}
    s_lshl_b32 s22, 1024, s87
    v_add_u32 v{H}, s22, v{TRA}
    s_lshl_b32 s22, s{sC}, 13
    s_add_u32 s82, s82, s22
    s_lshl_b32 s22, s{sG}, 12
    s_add_u32 s82, s82, s22
    s_add_u32 s82, s82, {WS_U}
    s_waitcnt vmcnt(0)
    s_barrier
    """)
    for s_ in range(4):
        A(f"ds_read_b64_tr_b16 {vr(v.T+4*s_,2)}, v{TRA} offset:{s_*4096}")
        A(f"ds_read_b64_tr_b16 {vr(v.T+4*s_+2,2)}, v{H} offset:{s_*4096}")
    A("s_waitcnt lgkmcnt(0)")
    for s_ in range(4):
        A(f"buffer_store_dwordx4 {vr(v.T+4*s_,4)}, v{v.t3}, {sr(sWS,4)}, s82 offen offset:{s_*1024} sc1")
    A(f"""
    s_waitcnt vmcnt(0)
    s_barrier
    s_cmp_lg_u32 s3, 0
    s_cbranch_scc1 K_END
    s_add_u32 s{sTag}, s{sTag}, 2
    s_or_b32 s{sTag}, s{sTag}, 0x40000001
    v_mov_b32 v1, s{sTag}
    s_lshl_b32 s22, s87, 4
    s_add_u32 s22, s22, {WS_FLAG + 0x2000 + NCHUNK * 16}
    s_mov_b64 exec, 1
    buffer_store_dword v1, off, {sr(sWS,4)}, s22 sc1
    s_endpgm
    """)
    A("K2_SAFEP:")
    chain(A, 3, "safe", None, ool, pre=True, mid=late_issue)
    A("K2_SAFE:")
    for k in range(4):
        stretch(A, k, "safe", ool)
        chain(A, k, "safe", "K2_SEXIT", ool)
    A("s_branch K2_SAFE")
    A(f"""
    K2_SEXIT:
    s_setprio 0
    ds_read_b128 {vr(v.ohF,4)}, v{v.LA}
    s_branch K2_X2
    """)
    def restore():
        A(f"""
        s_lshr_b32 s23, s{sTg}, 2
        s_mul_i32 s22, s23, 6144
        s_lshl_b32 s23, s23, 10
        v_subrev_u32 v{v.E_}, s22, v{v.E_}
        v_subrev_u32 v{v.R1}, s23, v{v.R1}
        v_subrev_u32 v{v.R2}, s23, v{v.R2}
        v_subrev_u32 v{v.Re}, s23, v{v.Re}
        """)
    A("K2_REDO:")
    restore()
    A(f"s_mov_b32 s{sMode}, 2")
    A("s_nop 7")
    for r in range(0, 16, 2):
        A(f"v_mov_b64 {P(v.ACC+r)}, 0")
    A("s_waitcnt vmcnt(0) lgkmcnt(0)")
    A("s_barrier")
    lds_init()
    round_regs()
    A("s_branch K2_CELLS")
    A(f"""
    K2_OVF:
    s_cmp_eq_u32 s{sMode}, 0
    s_cbranch_scc0 K2_OV2
    s_cmp_lg_u32 s3, 0
    s_cbranch_scc1 K2_OV2
    K2_OV1:
    buffer_load_dword v{v.JK2}, off, {sr(sWS,4)}, s{sRel} sc1
    s_waitcnt vmcnt(0)
    v_cmp_ne_u32 vcc, s{sTag}, v{v.JK2}
    s_cbranch_vccnz K2_OV1
    K2_OV2:
    s_mov_b32 s{sMode}, 1
    s_mov_b32 s{sRound}, 0
    s_branch K2_ROUND
    K2_NEXTR:
    s_add_u32 s{sRound}, s{sRound}, 1
    s_cmp_ge_u32 s{sRound}, {E // 512}
    s_cbranch_scc1 K2_FIN
    """)
    restore()
    A(f"""
    K2_ROUND:
    s_load_dwordx4 s[76:79], s[0:1], 16
    s_waitcnt vmcnt(0) lgkmcnt(0)
    s_barrier
    """)
    srd(A, sS, 76, E * 4)
    srd(A, sD, 78, E * 4)
    A(f"""
    s_lshl_b32 s22, s{sRound}, 9
    v_add_u32 v{v.EB}, s22, v0
    v_lshlrev_b32 v{v.t0}, 2, v{v.EB}
    buffer_load_dword v{v.REC}, v{v.t0}, {sr(sD,4)}, 0 offen
    buffer_load_dword v{v.REC+1}, v{v.t0}, {sr(sS,4)}, 0 offen
    """)
    lds_init()
    round_regs()
    A(f"""
    s_mul_i32 s22, s2, 40
    s_waitcnt vmcnt(0)
    v_subrev_u32 v{v.REC}, s22, v{v.REC}
    v_cmp_gt_u32 vcc, 40, v{v.REC}
    v_lshl_or_b32 v{v.t0}, v{v.REC}, 14, v{v.REC+1}
    v_mov_b32 v{v.REC+1}, -1
    v_cndmask_b32 v{v.REC}, -1, v{v.t0}, vcc
    v_mov_b64 {P(v.REC+2)}, -1
    s_barrier
    s_branch K2_COUNT
    """)
    for o in ool: A(o)
    A("K_CODE_END:")
    return A.text()

HEADER = """; MPNN edge-MLP layer, fused single kernel (generated by gen/fz10.py).
; Kernarg layout (72 bytes, ptrs only, base s[0:1]):
;   32: w_msg (272,128) bf16 | 40: w_upd (256,128) bf16 | 48: d_out | 56: d_debug | 64: d_ws
"""
def build(opt):
    out = HEADER + f"; @launch grid=({NWG},1,1) block=(512,1,1) lds={LDS_TOTAL}\n"
    out += '.amdgcn_target "amdgcn-amd-amdhsa--gfx950"\n.text\n'
    out += f".globl {KNAME}\n.p2align 8\n.type {KNAME},@function\n" + gen(opt)
    acc = (NV + 3) // 4 * 4
    out += f""".section .rodata,"a"
.p2align 8
K_TABLE:
{tables()}.p2align 6
.amdhsa_kernel {KNAME}
  .amdhsa_next_free_vgpr {NV}
  .amdhsa_next_free_sgpr 102
  .amdhsa_accum_offset {acc}
  .amdhsa_group_segment_fixed_size 0
  .amdhsa_kernarg_size 72
  .amdhsa_user_sgpr_count 2
  .amdhsa_user_sgpr_kernarg_segment_ptr 1
  .amdhsa_system_sgpr_workgroup_id_x 1
.end_amdhsa_kernel
"""
    return out

if __name__ == "__main__":
    opt = {}
    for a in sys.argv[2:]:
        k_, v_ = a.split("=")
        opt[k_] = int(v_) if v_.lstrip("-").isdigit() else v_
    open(sys.argv[1], "w").write(build(opt))
```

```python
import sys, struct
from gen import Asm, vr, sr, srd, f2u, NEG_LOG2E, NEG_LN2, PX, PE, PSRC, PDST, PWM, PWU, POUT, PDBG, PWS, load_ptrs

KNAME = "standalone__mpnn_edge_mlp__graph_kernel"
N = 10000; E = 320000
NBIN = 250; NCHUNK = 125; CH = 2560
WS_CELL = 0x280000
WS_FLAG = 0x700000
WS_U = 0x708000
WS_END = WS_U + 0x10000
NWG = NBIN + 3
BIG = 0x7fffffff
WS_TAG = 0x27FF00

CNT = 0x100; QN = 0x200; FLAG = 0x3F0; TRIP = 0x3F4; REC = 0x400
TG = 26; GSL = TG * 32
REC_BYTES = (2 * GSL + 160) * 8
EA = REC + REC_BYTES
GEA = (TG // 2) * 3072
RING = EA + 2 * GEA
JUNK = RING + 65536
LDS_TOTAL = JUNK + 1024
FLG = CNT + 48 * 4
L_X = RING; L_W2 = RING + 0x6000; L_W3 = L_W2 + 32768; L_BN = 0x8000
assert RING % 256 == 0 and LDS_TOTAL <= 163840

class R: pass
v = R()
_n = 1
def alloc(name, n, align=1):
    global _n
    _n = (_n + align - 1) // align * align
    setattr(v, name, _n)
    _n += n
for nm in ("t0", "t1", "t2", "t3", "lane", "FW", "FV", "PROG", "JK", "JK2", "JK3", "OHA", "P1", "FR", "LA"):
    alloc(nm, 1)
TABN = ("E_", "R1", "R2", "Re", "P0", "EB", "QC", "OHB", "S0a", "FRo", "IXo", "IEo", "S1a", "TRA", "OAl", "Z_")
alloc("TAB", 0, 4)
for nm in TABN[:8]:
    alloc(nm, 1)
for nm in ("IX0", "IX1", "IE", "ONE", "S"):
    alloc(nm, 2, 2)
alloc("OA", 1)
for nm in ("W3F", "QF", "QS", "SEL0", "SEL1", "eF", "ohF", "pF0", "pF1", "aggF", "MSG", "NS", "DS", "RS"):
    alloc(nm, 4, 4)
for nm in ("T", "T1", "E", "ACC"):
    alloc(nm, 16, 4)
alloc("U1", 32, 4); alloc("U2", 32, 4); alloc("XF", 32, 4)
NV = _n
assert NV <= 256
for i_, nm in enumerate(TABN[8:]): setattr(v, nm, v.SEL0 + i_)
v.WA = v.ohF
assert v.RS == v.ohF + 28 and v.SEL1 == v.SEL0 + 4 and v.E == v.T1 + 16
v.REC = v.T; v.RANK = v.T + 8; v.AD = v.E; v.PK = v.E + 8
v.W0 = v.T1
v.TPa = v.T1 + 10; v.TPb = v.T1 + 12; v.IEb = v.T1 + 14; v.OH0 = v.pF1

sWS, sP, sE, sX, sOUT, sD, sS = 24, 28, 32, 36, 40, 44, 48
sG, sC, sTg, sTile, sTsw, sTag, sRing, sEdst, sMode, sRound, sRole, sElim = 52, 53, 54, 55, 56, 57, 58, 59, 60, 61, 62, 63
sM = 64
sWm = 64; sDB = 68
sTB = 80
sUT = 82; sLate = 83; sK3F = 84; sT0, sT1 = 85, 86; sRel = 87; sUoff = 88; sPair = 89
sN40 = 36; sG1 = 38; sSl = 101; sE0 = 100; sOff = 61

OPT = {}
def P(r): return f"v[{r}:{r+1}]"
def mfma(d, a, b, c=None):
    return f"v_mfma_f32_32x32x16_bf16 {vr(d,16)}, {vr(a,4)}, {vr(b,4)}, {vr(d,16) if c is None else c}"
def pi8v(m):
    return ((m & 5) << 5) | ((m & 18) << 2) | ((m & 8) << 1)

def tables():
    rows = []
    for l in range(64):
        m, h = l & 31, l >> 5
        a16 = 16 + ((l & 8) << 3) + ((l & 3) << 4)
        n_ = l - 20 if l >= 20 else l
        a16n = 16 + ((n_ & 8) << 3) + ((n_ & 3) << 4)
        ohb = (a16n << (16 + 8 * ((n_ >> 2) & 1))) if l < 40 else 0
        sel = a16 if ((l >> 2) & 1) == h else 0
        d = dict(
            E_=m * 32 + (((h ^ (m >> 3)) & 1) << 4) + EA - 3072,
            R1=pi8v(l >> 2) + REC, R2=pi8v(m) + h + 2 + REC, Re=pi8v(l >> 1) + 4 + REC,
            P0=m * 64 + ((((m >> 2) ^ (2 * h)) & 3) << 4) + RING,
            EB=(l >> 3) * CH,
            QC=(l >> 4) * 3072 + ((l & 4) << 2) + (l & 8) + ((l & 3) << 1) + EA + 2048,
            OHB=ohb, FRo=(l & 3) * 4 + FLG,
            IXo=(((l >> 4) ^ l) & 3) << 4, IEo=(((l >> 4) ^ l) & 1) << 4,
            S0a=sel if m < 16 else 0, S1a=sel if m >= 16 else 0,
            TRA=(l & 3) * 8 + ((l >> 2) & 3) * 256 + (((l >> 2) & 3) << 6) + ((l >> 4) & 1) * 32,
            OAl=(m * 256 + h * 16) if m < 20 else 0x40000000, Z_=0)
        rows.append([d[n] for n in TABN])
    out = []
    for b in range(4):
        for l in range(64):
            out.append(".long " + ", ".join(f"{x:#x}" for x in rows[l][4*b:4*b+4]))
    img = [0] * 256
    for e_ in range(8):
        img[4 * (e_ + 1) + (e_ >> 1)] = 0x3f80 << (16 * (e_ & 1))
    for i in range(128, 256): img[i] = 0xffffffff
    for i in range(0, 256, 4):
        out.append(".long " + ", ".join(f"{x:#x}" for x in img[i:i+4]))
    for i in range(64):
        out.append(".long 0xffff, 0xffffffff, 0xffff, 0xffffffff")
    return "\n".join(out) + "\n"

def lst(A, k, variant, r):
    if OPT.get("ls") and variant == "fast" and k == OPT["ls"] - 1: A(f"s_memtime s[{r}:{r+1}]")

def u_load(A, i):
    off = (i >> 3) * 32768 + (i & 7) * 1024
    A(f"s_add_u32 s22, s{sUoff}, {off & ~4095}")
    A(f"buffer_load_dwordx4 {vr(v.U1+4*i,4)}, v{v.t3}, {sr(sWS,4)}, s22 offen offset:{off & 4095}")

def chain(A, k, variant, exit_label, ool, pre=False, mid=None):
    kk = k if k < 3 else -1
    safe = variant == "safe"
    EK = OPT.get("ek", 3)
    if not pre:
        A("s_setprio 2")
        A(f"s_add_u32 s{sTile}, s{sTile}, 1")
        A(f"s_cmp_ge_u32 s{sTile}, s{sTg}")
        A(f"s_cbranch_scc1 {exit_label}")
        lsw = A.label("sw"); lswb = A.label("swb")
        A(f"s_cmp_eq_u32 s{sTile}, s{sTsw}")
        A(f"s_cbranch_scc1 {lsw}")
        A(f"{lswb}:")
        ool.append(f"{lsw}:\nv_mov_b32 v{v.QF}, v{v.QS+2}\nv_mov_b32 v{v.QF+1}, v{v.QS+3}\ns_branch {lswb}")
        lst(A, k, variant, 10)
    A("s_waitcnt lgkmcnt(0)")
    if k % 2 == 0:
        A(mfma(v.ACC, v.MSG, v.aggF))
    n = 4 + (1 if ((k - 1) & 3) == EK or ((k - 2) & 3) == EK else 0)
    if EK == 3 and k == 1: n = 2
    if pre: n = 4 if EK == 3 else 5
    k2_ = kk + 2
    eread = f"ds_read_b128 {vr(v.eF,4)}, v{v.E_} offset:{3072 + (k2_ >> 1) * 3072 + (k2_ & 1) * 1024}"
    if k == 2: A(f"ds_read_b32 v{v.FV}, v{v.FR}")
    A(mfma(v.T, v.eF, v.W3F, "0"))
    if k != 2: A(eread)
    A(mfma(v.T, v.ohF, v.QF))
    A(f"ds_read_b128 {vr(v.ohF,4)}, v{v.OHA}")
    A(f"ds_read_u8 v{v.OHA}, v{v.R2} offset:{(kk + 3) * 256}")
    A(mfma(v.T, v.pF0, v.SEL0))
    if k == 2:
        A("s_waitcnt lgkmcnt(2)")
        A(f"v_cmp_gt_u32 vcc, v{v.PROG}, v{v.FV}")
    A(mfma(v.T, v.pF1, v.SEL1))
    A(f"s_setprio 0")
    lst(A, k, variant, 14)
    n_after = 2
    if k == 2:
        lw = A.label("fw"); lb = A.label("fb")
        A(f"s_cbranch_vccnz {lw}")
        A(f"{lb}:")
        A(eread)
        ool.append(f"{lw}:\nds_read_b32 v{v.FV}, v{v.FR}\ns_waitcnt lgkmcnt(0)\nv_cmp_gt_u32 vcc, v{v.PROG}, v{v.FV}\ns_cbranch_vccnz {lw}\ns_branch {lb}")
        n_after += 2
    if mid: mid()
    A(f"s_waitcnt vmcnt({n})" + (" lgkmcnt(0)" if pre else ""))
    if k == 1:
        A("s_mov_b64 exec, 1")
        A(f"ds_write_b32 v{v.FW}, v{v.PROG}")
        A("s_mov_b64 exec, -1")
        n_after += 3
    if k == EK:
        A(f"s_cmp_lt_u32 s{sEdst}, s{sElim}")
        A(f"s_cselect_b32 m0, s{sEdst}, {JUNK}")
        A(f"s_add_u32 s{sEdst}, s{sEdst}, 6144")
        A(f"buffer_load_dwordx4 {P(v.IE)}, {sr(sE,4)}, 0 idxen offen lds")
        n_after += 4
    A(f"s_add_u32 m0, s{sRing}, {((k + 1) & 3) * 2048}")
    A(f"ds_read_b128 {vr(v.pF0,4)}, v{v.P0} offset:{((k + 2) & 3) * 2048}")
    A(f"buffer_load_dwordx4 {P(v.IX0)}, {sr(sP,4)}, 0 idxen offen lds")
    A(f"s_add_u32 m0, s{sRing}, {((k + 1) & 3) * 2048 + 1024}")
    A(f"ds_read_b128 {vr(v.pF1,4)}, v{v.P1} offset:{((k + 2) & 3) * 2048}")
    A(f"buffer_load_dwordx4 {P(v.IX1)}, {sr(sP,4)}, 0 idxen offen lds")
    A(f"ds_read_u16 v{v.IX0}, v{v.R1} offset:{(kk + 6) * 256}")
    A(f"ds_read_u16 v{v.IX1}, v{v.R1} offset:{(kk + 6) * 256 + 64}")
    n_after += 8
    if k % 2 == 1 and not pre:
        A(f"ds_read_b128 {vr(v.aggF,4)}, v{v.E_} offset:{(1 if k == 1 else 0) * 3072 + 2048}")
        n_after += 1
    if k == EK - 1:
        A(f"ds_read_b32 v{v.IE}, v{v.Re} offset:{2 * 1024}")
        n_after += 1
    if not safe and not pre:
        lv = A.label("uv"); lvb = A.label("vb")
        A(f"s_sub_u32 s23, s{sTile}, s{sUT}")
        A(f"s_cmp_lt_u32 s23, 8")
        A(f"s_cbranch_scc1 {lv}")
        A(f"{lvb}:")
        n_after += 3
        B = Asm()
        B(f"{lv}:")
        B(f"s_cmp_ge_u32 s23, 4")
        B(f"s_cbranch_scc1 {lv}x")
        u_load(B, 2*k); u_load(B, 2*k+1)
        B(f"s_branch {lvb}")
        B(f"{lv}x:")
        u_load(B, 8+2*k); u_load(B, 8+2*k+1)
        B(f"s_branch {lvb}")
        ool.append(B.text())
    if n_after < 12:
        A(f"s_nop {12 - n_after - 1}")
    lst(A, k, variant, 12)

def stretch(A, k, variant, ool):
    T = v.T; E = v.E
    order = [0, 1, 8, 9, 2, 3, 10, 11, 4, 5, 12, 13, 6, 7, 14, 15]
    lst(A, k, variant, 94)
    for r in order:
        A(f"v_exp_f32 v{E+r}, v{T+r}")
    if variant != "safe":
        for r in range(4):
            A(f"v_rcp_f32 v{v.RS+r}, v{v.DS+r}")
    if k == 3:
        for s in (f"v_add_u32 v{v.E_}, 6144, v{v.E_}", f"v_add_u32 v{v.R1}, 1024, v{v.R1}",
                  f"v_add_u32 v{v.R2}, 1024, v{v.R2}", f"v_add_u32 v{v.Re}, 1024, v{v.Re}"): A(s)
    if k == 0:
        A(f"v_add_u32 v{v.PROG}, 1, v{v.PROG}")
    lst(A, k, variant, 4)
    A("s_setprio 1")
    mo = v.MSG + 2 * ((k + 1) % 2)
    if variant != "safe":
        A(f"v_pk_fma_f32 {P(v.S)}, {P(v.DS)}, {P(v.DS+2)}, {P(v.S)}")
        A(f"v_pk_mul_f32 {P(v.NS)}, {P(v.NS)}, {P(v.RS)}")
        A(f"v_pk_mul_f32 {P(v.NS+2)}, {P(v.NS+2)}, {P(v.RS+2)}")
    A(f"v_cvt_pk_bf16_f32 v{mo}, v{v.NS}, v{v.NS+1}")
    A(f"v_cvt_pk_bf16_f32 v{mo+1}, v{v.NS+2}, v{v.NS+3}")
    lst(A, k, variant, 6)
    if variant != "safe":
        ops = []
        for gi, g in enumerate((0, 8)):
            t, e = T + g, E + g
            o = [f"v_pk_add_f32 {P(e)}, {P(e)}, {P(v.ONE)}"]
            for u in (1, 2, 3):
                o.append(f"v_pk_fma_f32 {P(t)}, {P(t)}, {P(e+2*u)}, {P(t)}")
                o.append(f"v_pk_fma_f32 {P(t if u < 3 else v.NS+2*gi)}, {P(t+2*u)}, {P(e)}, {P(t)}")
                o.append(f"v_pk_fma_f32 {P(e if u < 3 else v.DS+2*gi)}, {P(e)}, {P(e+2*u)}, {P(e)}")
            ops.append(o)
        for a, b in zip(*ops):
            A(a); A(b)
    else:
        for r in range(0, 16, 2):
            A(f"v_pk_add_f32 {P(E+r)}, {P(E+r)}, {P(v.ONE)}")
        for r in range(16):
            A(f"v_rcp_f32 v{E+r}, v{E+r}")
        A("s_nop 0")
        for u in range(4):
            for gi, g in enumerate((0, 8)):
                if u == 0:
                    A(f"v_pk_mul_f32 {P(T+g)}, {P(T+g)}, {P(E+g)}")
                else:
                    A(f"v_pk_fma_f32 {P(T+g if u < 3 else v.NS+2*gi)}, {P(T+g+2*u)}, {P(E+g+2*u)}, {P(T+g)}")
    lst(A, k, variant, 8)

def gen(opt):
    OPT.clear(); OPT.update(opt)
    A = Asm()
    L = v.lane
    ST = opt.get("stamp", 0)
    PTS = opt.get("pts", "").split(",") if opt.get("pts") else []
    PSL = [44, 46, 48, 50, 96]
    def pt(name):
        if name in PTS:
            r = PSL[PTS.index(name)]
            A(f"s_memtime s[{r}:{r+1}]")
    def stamp(r, real=False):
        if PTS and r == 96: return
        if opt.get("ls") and r in (94, 4, 6, 8, 10, 12, 14): return
        if ST: A(f"s_mem{'real' if real else ''}time s[{r}:{r+1}]")
    ool = []
    STF = opt.get("stf", "sc0_sc1").replace("_", " ")
    WV = v.eF; XV = v.eF + 1; H = v.eF + 2; TRA = v.TRA
    A(f"{KNAME}:")
    stamp(90); stamp(92, True)
    A(f"s_cmp_ge_u32 s2, {NWG}")
    A("s_cbranch_scc1 K_END")
    load_ptrs(A)
    A(f"""
    v_lshrrev_b32 v{v.t0}, 6, v0
    v_and_b32 v{L}, 63, v0
    v_readfirstlane_b32 s3, v{v.t0}
    v_lshlrev_b32 v{v.t3}, 4, v{L}
    s_getpc_b64 {sr(sTB,2)}
    s_add_u32 s{sTB}, s{sTB}, K_TABLE@rel32@lo+4
    s_addc_u32 s{sTB+1}, s{sTB+1}, K_TABLE@rel32@hi+12
    global_load_dwordx4 {vr(v.SEL1,4)}, v{v.t3}, {sr(sTB,2)} offset:3072
    global_load_dwordx4 {vr(v.TAB,4)}, v{v.t3}, {sr(sTB,2)}
    global_load_dwordx4 {vr(v.TAB+4,4)}, v{v.t3}, {sr(sTB,2)} offset:1024
    global_load_dwordx4 {vr(v.SEL0,4)}, v{v.t3}, {sr(sTB,2)} offset:2048
    v_lshlrev_b32 v{v.t2}, 4, v0
    v_lshrrev_b32 v{WV}, 2, v{v.t3}
    v_lshrrev_b32 v{XV}, 4, v{v.t2}
    v_and_b32 v{WV}, 0xc0, v{WV}
    v_and_b32 v{XV}, 0xf0, v{XV}
    v_xor_b32 v{WV}, v{WV}, v{v.t3}
    v_xor_b32 v{XV}, v{XV}, v{v.t2}
    s_lshr_b32 s{sG}, s3, 2
    s_and_b32 s{sC}, s3, 3
    s_cmp_lt_u32 s2, 8
    s_cbranch_scc1 K_LOW
    K_LOWB:
    s_sub_u32 s23, s2, 3
    s_lshr_b32 s{sSl}, s23, 3
    s_cmp_ge_u32 s23, {NCHUNK}
    s_cselect_b32 s{sRole}, {1 - opt.get("r1f", 0)}, {opt.get("r1f", 0)}
    s_cselect_b32 s22, {NCHUNK}, 0
    s_sub_u32 s{sPair}, s23, s22
    s_lshl_b32 s2, s{sPair}, 1
    s_add_u32 s2, s2, s{sRole}
    s_mul_i32 s{sUT}, s{sPair}, {80*256}
    s_sub_u32 s{sX+2}, {N*256}, s{sUT}
    s_mov_b32 s{sX+3}, 0x00020000
    s_lshl_b32 s76, s3, 10
    s_add_u32 s77, s3, s{sSl}
    s_and_b32 s77, s77, {7 if opt.get("rot", 1) else 0}
    {"" if opt.get("rot", 1) else "s_mov_b32 s77, s3"}
    s_lshl_b32 s77, s77, 12
    s_cmp_eq_u32 s{sRole}, 0
    s_waitcnt lgkmcnt(0)
    """)
    def wsadj():
        if opt.get("wsoff"):
            A(f"s_add_u32 s{PWS}, s{PWS}, {opt['wsoff'] << 20}")
            A(f"s_addc_u32 s{PWS+1}, s{PWS+1}, 0")
    A(f"s_mov_b32 s22, {WS_TAG}")
    A(f"s_load_dword s{sTag}, s[{PWS}:{PWS+1}], s22")
    A("s_cbranch_scc0 K_GEMM")
    ool.append(f"""K_LOW:
    s_cmp_lg_u32 s3, 7
    s_cbranch_scc1 K_LOW2
    s_getpc_b64 s[22:23]
    K_PC:
    s_sub_u32 s22, s22, K_PC-{KNAME}
    s_subb_u32 s23, s23, 0
    v_lshlrev_b32 v{v.JK}, 7, v{L}
    v_add_u32 v{v.JK2}, 0x2000, v{v.JK}
    v_min_u32 v{v.JK2}, K_CODE_END-{KNAME}-4, v{v.JK2}
    global_load_dword v{v.PROG}, v{v.JK}, s[22:23]
    global_load_dword v{v.FV}, v{v.JK2}, s[22:23]
    K_LOW2:
    s_cmp_lt_u32 s2, 3
    s_cbranch_scc1 K_SPECIAL
    s_branch K_LOWB""")
    def xdma(n):
        A(f"""
        s_add_u32 s{sX}, s{PX}, s{sUT}
        s_addc_u32 s{sX+1}, s{PX+1}, 0
        s_add_u32 m0, s76, {L_X}
        s_movk_i32 s23, 0x2000
        buffer_load_dwordx4 v{XV}, {sr(sX,4)}, 0 offen lds
        s_add_u32 m0, s76, {L_X + 8192}
        s_movk_i32 s22, 0x4000
        buffer_load_dwordx4 v{XV}, {sr(sX,4)}, s23 offen lds
        """)
        if n == 3:
            A(f"s_add_u32 m0, s76, {L_X + 16384}")
            A("s_nop 0")
            A(f"buffer_load_dwordx4 v{XV}, {sr(sX,4)}, s22 offen lds")
    def wdma(soff, lds):
        A(f"s_add_u32 m0, s77, {lds}")
        if soff: A(f"s_add_u32 s22, s77, {soff}")
        else: A("s_nop 0")
        for q in range(4):
            A(f"buffer_load_dwordx4 v{WV}, {sr(sWm,4)}, s{22 if soff else 77} offen offset:{q*1024} lds")
    def w23dma(w2=True):
        if w2: wdma(32768, L_W2)
        A(f"s_add_u32 m0, s76, {L_W3}")
        A(f"s_add_u32 s22, s76, 65536")
        A(f"buffer_load_dwordx4 v{WV}, {sr(sWm,4)}, s22 offen lds")
    def sconsts():
        srd(A, sP, PWS, 0 if opt.get('nop') else N, stride=256)
        srd(A, sE, PE, 0 if opt.get('noe') else E, stride=32)
        srd(A, sOUT, POUT, N * 256)
        A(f"""
        s_mov_b32 s{sMode}, 0
        s_movk_i32 s{sK3F}, 0x3fff
        s_lshl_b32 s{sRing}, s3, 13
        s_lshr_b32 s22, s{sC}, 1
        s_mul_i32 s22, s22, 3072
        s_bfe_u32 s23, s{sC}, 0x10000
        s_lshl_b32 s23, s23, 10
        s_add_u32 s22, s22, s23
        s_mul_i32 s{sElim}, s{sG}, {GEA}
        s_add_u32 s{sE0}, s{sElim}, s22
        s_add_u32 s{sE0}, s{sE0}, {EA}
        s_and_b32 s{sRel}, s2, 63
        s_lshl_b32 s{sRel}, s{sRel}, 7
        s_add_u32 s{sRel}, s{sRel}, {WS_FLAG + 0x4000}
        """)
    def vconsts():
        A(f"""
        v_add_u32 v{v.P0}, s{sRing}, v{v.P0}
        v_add_u32 v{v.E_}, s{sElim}, v{v.E_}
        s_mul_i32 s22, s{sG}, {GSL*8}
        v_xor_b32 v{v.P1}, 16, v{v.P0}
        v_add_u32 v{v.R1}, s22, v{v.R1}
        v_add_u32 v{v.R2}, s22, v{v.R2}
        s_lshl_b32 s23, s{sC}, 8
        s_add_u32 s22, s22, s23
        v_add_u32 v{v.Re}, s22, v{v.Re}
        s_lshl_b32 s22, s{sC}, 6
        v_or_b32 v{v.IX0+1}, s22, v{v.IXo}
        v_or_b32 v{v.IX1+1}, s22, v{v.IXo}
        v_xor_b32 v{TRA}, s22, v{TRA}
        s_mul_i32 s23, s2, 40
        s_mul_i32 s78, s{sG}, 20
        s_add_u32 s23, s23, s78
        s_lshl_b32 s23, s23, 8
        s_add_u32 s23, s23, s22
        v_add_u32 v{v.OA}, s23, v{v.OAl}
        v_mov_b32 v{v.IE+1}, v{v.IEo}
        s_mul_i32 s22, s3, {8*CH}
        v_add_u32 v{v.EB}, s22, v{v.EB}
        s_mul_i32 s22, s3, {4*3072}
        v_add_u32 v{v.QC}, s22, v{v.QC}
        s_lshl_b32 s22, s3, 2
        v_add_u32 v{v.FW}, s22, v{v.FRo}
        s_lshl_b32 s22, s{sG}, 4
        v_add_u32 v{v.FR}, s22, v{v.FRo}
        v_lshrrev_b32 v{H}, 5, v{L}
        s_add_u32 s{sRing}, s{sRing}, {RING}
        s_add_u32 s{sElim}, s{sElim}, {EA + GEA}
        """)
    def lds_init():
        A(f"""
        s_mul_i32 s22, s3, 3072
        s_add_u32 m0, s22, {EA + 2048}
        s_brev_b32 s23, 2
        buffer_load_dwordx4 v{v.t3}, {sr(sWS,4)}, s23 offen lds
        s_add_u32 m0, s22, {EA + 2048 + 24576}
        s_cmp_lt_u32 s3, 2
        buffer_load_dwordx4 v{v.t3}, {sr(sWS,4)}, s23 offen lds
        s_cselect_b32 s78, 0, {JUNK - (EA + 2048 + 73728) - 7 * 3072}
        s_add_u32 m0, s22, {EA + 2048 + 49152}
        s_cselect_b32 s79, s22, {7 * 3072}
        buffer_load_dwordx4 v{v.t3}, {sr(sWS,4)}, s23 offen lds
        """.replace("s_cselect_b32 s78, 0, " + str(JUNK - (EA + 2048 + 73728) - 7 * 3072) + "\n", "").replace(
            f"        s_add_u32 m0, s22, {EA + 2048 + 49152}\n        s_cselect_b32 s79, s22, {7 * 3072}\n",
            f"        s_cselect_b32 s79, s22, {JUNK - (EA + 2048 + 73728)}\n        s_add_u32 m0, s22, {EA + 2048 + 49152}\n        s_lshl_b32 s22, s3, 10\n"))
        A(f"""
        s_add_u32 m0, s79, {EA + 2048 + 73728}
        s_add_u32 s78, s{sTB}, 4096
        buffer_load_dwordx4 v{v.t3}, {sr(sWS,4)}, s23 offen lds
        s_addc_u32 s79, s{sTB+1}, 0
        s_add_u32 m0, s22, {REC - 1024}
        s_cmp_eq_u32 s3, 7
        global_load_lds_dwordx4 v{v.t3}, s[78:79] offset:1024
        s_cbranch_scc1 {A.label('i7')}
        """)
        l7 = f"L_i7_{A.uid}"
        A(f"""
        s_add_u32 m0, s22, {REC + 8192 - 1024}
        s_nop 0
        global_load_lds_dwordx4 v{v.t3}, s[78:79] offset:1024
        {l7}b:
        """)
        ool.append(f"{l7}:\ns_mov_b32 m0, 0\ns_nop 0\nglobal_load_lds_dwordx4 v{v.t3}, s[78:79]\ns_branch {l7}b")
    def tagget(x):
        pass
    def tagfix():
        A(f"s_add_u32 s{sTag}, s{sTag}, 2")
        A(f"s_or_b32 s{sTag}, s{sTag}, 0x40000001")
    def xred(regs, xs):
        for r, x in zip(regs, xs): A(f"v_bitop3_b32 v{x}, v{r}, v{r+1}, v{r+2} bitop3:0x96")
        for r, x in zip(regs, xs): A(f"v_xor_b32 v{x}, v{x}, v{r+3}")
        for pat in ("quad_perm:[1,0,3,2]", "quad_perm:[2,3,0,1]", "row_half_mirror"):
            if len(xs) < 3: A(f"s_nop {2 - len(xs)}")
            for x in xs: A(f"v_xor_b32_dpp v{x}, v{x}, v{x} {pat} row_mask:0xf bank_mask:0xf")
    def tagload(lbl):
        pass
    def qaddr():
        XA = v.E; GA = v.E + 1; TN = v.E + 2
        A(f"""
        s_mul_i32 s22, s{sG}, 20
        s_mul_i32 s23, s{sRole}, 40
        s_add_u32 s22, s22, s23
        v_and_b32 v{XA}, 31, v{L}
        v_add_u32 v{XA}, s22, v{XA}
        v_xor_b32 v{GA}, v{XA}, v{H}
        v_and_b32 v{GA}, 15, v{GA}
        v_lshl_or_b32 v{XA}, v{XA}, 4, v{GA}
        s_mov_b32 s22, {L_X}
        v_lshl_add_u32 v{XA}, v{XA}, 4, s22
        v_lshl_add_u32 v{TN}, v{H}, 11, v{TRA}
        v_add_u32 v{TN}, {L_W2}, v{TN}
        """)
    def qreads():
        XA = v.E; GA = v.E + 1; TN = v.E + 2
        for s_ in range(8):
            A(f"ds_read_b64_tr_b16 {vr(v.WA+4*s_,2)}, v{TN} offset:{s_*4096}")
            A(f"ds_read_b64_tr_b16 {vr(v.WA+4*s_+2,2)}, v{TN} offset:{s_*4096+1024}")
            if s_: A(f"v_xor_b32 v{GA}, {s_*32}, v{XA}")
            A(f"ds_read_b128 {vr(v.XF+4*s_,4)}, v{GA if s_ else XA}")
        A(f"ds_read_b64_tr_b16 {vr(v.W3F,2)}, v{TN} offset:32768")
        A(f"ds_read_b64_tr_b16 {vr(v.W3F+2,2)}, v{TN} offset:33792")
    def qmfma():
        for s_ in range(8):
            A(f"s_waitcnt lgkmcnt({min(15, 3*(7-s_) + 2)})")
            A(mfma(v.E, v.XF + 4*s_, v.WA + 4*s_, "0" if s_ == 0 else None))
            A(f"v_mov_b64 {P(v.ACC+2*s_)}, 0")
        A(f"""
        s_mov_b32 s72, {NEG_LOG2E:#x}
        v_cmp_gt_u32 {sr(sN40,2)}, 40, v{L}
        v_cmp_le_u32 {sr(sG1,2)}, 20, v{L}
        v_mov_b32 v{v.ONE}, 1.0
        v_mov_b32 v{v.ONE+1}, 1.0
        s_waitcnt lgkmcnt(0)
        """)
        for r in range(4):
            A(f"""
            v_lshlrev_b32 v{v.S}, 16, v{v.W3F+r}
            v_and_b32 v{v.S+1}, 0xffff0000, v{v.W3F+r}
            v_mul_f32 v{v.S}, s72, v{v.S}
            v_mul_f32 v{v.S+1}, s72, v{v.S+1}
            v_cvt_pk_bf16_f32 v{v.W3F+r}, v{v.S}, v{v.S+1}
            """)
    def post(x):
        A(f"""
        s_cmp_lg_u32 s3, 0
        s_cbranch_scc1 K_NP{x}
        v_readfirstlane_b32 s{sTag}, v{v.FV}
        s_cmp_eq_u32 s{sTag}, 0
        s_cbranch_scc1 K_TAG{x}
        K_TAGOK{x}:
        s_mov_b64 exec, 1
        buffer_store_dword v{v.FV}, off, {sr(sWS,4)}, s{sUoff} sc1
        s_mov_b64 exec, -1
        K_NP{x}:
        """)
        ool.append(f"K_TAG{x}:\nbuffer_load_dword v{v.FV}, off, {sr(sDB,4)}, 0 sc1\ns_waitcnt vmcnt(0)\nv_readfirstlane_b32 s{sTag}, v{v.FV}\ns_cmp_eq_u32 s{sTag}, 0\ns_cbranch_scc1 K_TAG{x}\ns_branch K_TAGOK{x}")
    MC = opt.get("mc", 0)
    D, S, RK, AD = v.T, v.T + 8, v.T1, v.T1 + 8
    CW = v.E
    A(f"s_mul_i32 s22, s{sPair}, {CH*4}")
    srd(A, sD, PDST, CH * 4, add="s22")
    A(f"""
    v_lshlrev_b32 v{v.t1}, 2, v0
    s_movk_i32 s23, 0x2000
    buffer_load_dwordx4 {vr(D,4)}, v{v.t2}, {sr(sD,4)}, 0 offen
    buffer_load_dword v{D+4}, v{v.t1}, {sr(sD,4)}, s23 offen
    """)
    srd(A, sS, PSRC, CH * 4, add="s22")
    A(f"""
    buffer_load_dwordx4 {vr(S,4)}, v{v.t2}, {sr(sS,4)}, 0 offen
    buffer_load_dword v{S+4}, v{v.t1}, {sr(sS,4)}, s23 offen
    v_mov_b64 {P(CW)}, -1
    v_mov_b64 {P(CW+2)}, -1
    v_mov_b32 v{CW+4}, 0
    ds_write_b128 v{v.t2}, {vr(CW,4)}
    ds_write_b128 v{v.t2}, {vr(CW,4)} offset:8192
    ds_write_b128 v{v.t2}, {vr(CW,4)} offset:16384
    ds_write_b128 v{v.t2}, {vr(CW,4)} offset:24576
    ds_write_b32 v{v.t1}, v{CW+4} offset:32768
    """)
    srd(A, sWm, PWM, 272 * 256)
    EARLY0 = opt.get("e0", 0)
    P0M = opt.get("p0", 2)
    if P0M == 1:
        xdma(2); w23dma(False)
    nb0 = 3 if P0M == 1 else 0
    srd(A, sWS, PWS, 0x10000000 if (opt.get('rw') or opt.get('dup')) else (WS_END if not ST else 0x1000000))
    PW = opt.get("pw", 0)
    PW1 = PW >= 1; PW = PW == 1
    if PW:
        A(f"""
        s_lshl_b32 s78, s{sPair}, 15
        s_add_u32 s78, s78, {WS_CELL}
        """)
        for q in range(4):
            A(f"buffer_store_dwordx4 {vr(CW,4)}, v{v.t2}, {sr(sWS,4)}, s78 offen {STF}")
            if q < 3: A("s_add_u32 s78, s78, 8192")
    if PW: nb0 += 4
    sconsts()
    A(f"""
    v_lshlrev_b32 v{CW+6}, 22, v0
    v_add_u32 v{CW+7}, 0x800, v0
    v_lshlrev_b32 v{CW+7}, 20, v{CW+7}
    v_mov_b32 v{CW+5}, 16
    s_mov_b32 s72, -10
    s_mov_b32 s73, 0x100000
    s_mov_b32 s74, 0x200000
    s_mov_b32 s75, 0x300000
    s_lshl_b32 s78, s{sPair}, 15
    s_add_u32 s78, s78, {WS_CELL}
    s_movk_i32 s79, {31*16}
    s_waitcnt lgkmcnt(0)
    s_barrier
    s_add_u32 s{sTag}, s{sTag}, 2
    s_or_b32 s{sTag}, s{sTag}, 0x40000001
    s_waitcnt vmcnt({2 + nb0})
    """)
    stamp(94)
    t = CW + 8
    for j in range(5):
        A(f"""
        v_mul_u32_u24 v{AD+j}, 0xcccd, v{D+j}
        v_lshrrev_b32 v{AD+j}, 19, v{AD+j}
        v_and_b32 v{AD+j}, -4, v{AD+j}
        ds_add_rtn_u32 v{RK+j}, v{AD+j}, v{CW+5} offset:32768
        """)
    if P0M == 1:
        wdma(32768, L_W2); nb0 += 4
    if P0M == 2:
        xdma(2); w23dma(); nb0 += 7
    for j in range(5):
        A(f"v_mad_i32_i24 v{D+j}, v{AD+j}, s72, v{D+j}")
    A(f"s_waitcnt vmcnt({nb0})")
    for j in range(5):
        d = D + j
        A(f"v_lshl_or_b32 v{d}, v{d}, 14, v{S+j}")
        if j == 0: A(f"v_add_u32 v{d}, v{d}, v{CW+6}")
        elif j < 4: A(f"v_add3_u32 v{d}, v{d}, v{CW+6}, s{72+j}")
        else: A(f"v_add_u32 v{d}, v{d}, v{CW+7}")
    A("s_waitcnt lgkmcnt(0)")
    pt("rk")
    A(f"v_max3_u32 v{t}, v{RK}, v{RK+1}, v{RK+2}")
    A(f"v_max3_u32 v{t}, v{t}, v{RK+3}, v{RK+4}")
    A(f"v_cmp_le_u32 vcc, s79, v{t}")
    A("s_cbranch_vccnz K_BOVF")
    A("K_BOVB:")
    B = Asm()
    B("K_BOVF:")
    B(f"v_mov_b32 v{t}, -2")
    for j in range(5):
        B(f"v_cmp_le_u32 vcc, s79, v{RK+j}")
        B(f"v_min_u32 v{RK+j}, s79, v{RK+j}")
        B("s_nop 0")
        B(f"v_cndmask_b32 v{D+j}, v{D+j}, v{t}, vcc")
    B("s_branch K_BOVB")
    ool.append(B.text())
    for j in range(5):
        r = RK + j
        A(f"""
        v_lshrrev_b32 v{t}, 5, v{r}
        v_and_b32 v{r}, 0x70, v{r}
        v_and_or_b32 v{r}, v{t}, 12, v{r}
        v_lshl_add_u32 v{r}, v{AD+j}, 5, v{r}
        ds_write_b32 v{r}, v{D+j}
        """)
    A(f"""
    s_add_u32 s73, s78, 8192
    s_add_u32 s74, s78, 16384
    s_add_u32 s75, s78, 24576
    s_waitcnt lgkmcnt(0)
    s_barrier
    """)
    pt("cb")
    A(f"""
    ds_read_b128 {vr(v.T,4)}, v{v.t2}
    ds_read_b128 {vr(v.T+4,4)}, v{v.t2} offset:8192
    ds_read_b128 {vr(v.T+8,4)}, v{v.t2} offset:16384
    ds_read_b128 {vr(v.T+12,4)}, v{v.t2} offset:24576
    s_waitcnt lgkmcnt(0)
    """)
    tagget("A")
    A(f"s_not_b32 s22, s{sTag}")
    def mkoff(regs):
        return
        A(f"v_readfirstlane_b32 s{sOff}, v{v.FV}")
        A(f"s_bfe_u32 s{sOff}, s{sOff}, 0x40006")
        A(f"s_max_u32 s{sOff}, s{sOff}, 1")
        A(f"s_lshl_b32 s{sOff}, s{sOff}, 24")
        for r in regs: A(f"s_add_u32 s{r}, s{r}, s{sOff}")
        A(f"s_add_u32 s{sP}, s{sP}, s{sOff}")
        A(f"s_addc_u32 s{sP+1}, s{sP+1}, 0")
    mkoff([78, 73, 74, 75])
    xred([v.T + 4*q for q in range(4)], [v.T1 + q for q in range(4)])
    A("s_mov_b32 exec_lo, 0x80808080")
    A("s_mov_b32 exec_hi, 0x80808080")
    for q in range(4):
        A(f"v_xor_b32 v{v.T+4*q+3}, s22, v{v.T1+q}")
    A("s_mov_b64 exec, -1")
    if PW: A("s_waitcnt vmcnt(7)")
    if opt.get("dup") == 1:
        A(f"v_add_u32 v{v.T1+5}, 0x1000000, v{v.t2}")
        for q in range(4):
            A(f"buffer_store_dwordx4 {vr(v.T+4*q,4)}, v{v.T1+5}, {sr(sWS,4)}, s{(78,73,74,75)[q]} offen {STF}")
    for q in range(4):
        A(f"buffer_store_dwordx4 {vr(v.T+4*q,4)}, v{v.t2}, {sr(sWS,4)}, s{(78,73,74,75)[q]} offen {STF}")
    if opt.get("dup") == 2:
        A(f"v_add_u32 v{v.T1+5}, 0x1000000, v{v.t2}")
        for q in range(4):
            A(f"buffer_store_dwordx4 {vr(v.T+4*q,4)}, v{v.T1+5}, {sr(sWS,4)}, s{(78,73,74,75)[q]} offen {STF}")
    stamp(4)
    vconsts()
    A(f"s_waitcnt vmcnt({8 if opt.get('dup') else 4})")
    A("s_branch K_COM0")
    A("K_GEMM:")
    pt("k0")
    if opt.get("wfirst"):
        srd(A, sWm, PWM, 272 * 256)
        wdma(0, 0)
        xdma(3)
    else:
        xdma(3)
        srd(A, sWm, PWM, 272 * 256)
        wdma(0, 0)
    G1M = opt.get("g1", 2)
    pt("g0")
    if G1M == 0: w23dma()
    pt("g1")
    srd(A, sWS, PWS, 0x10000000 if (opt.get('rw') or opt.get('dup')) else (WS_END if not ST else 0x1000000))
    sconsts()
    if opt.get("tlb"):
        A(f"""
        s_cmp_lg_u32 s3, 7
        s_cbranch_scc1 K_NOTLB
        v_lshlrev_b32 v{v.JK}, 21, v{L}
        v_lshlrev_b32 v{v.JK2}, 16, v{L}
        s_mov_b32 s22, 0x7ff80
        buffer_load_dword v{v.PROG}, v{v.JK}, {sr(sWS,4)}, s22 offen
        {f"buffer_load_dword v{v.LA}, v{v.JK2}, {sr(sE,4)}, 0 idxen" if opt.get("tlb") >= 2 else ""}
        {f"buffer_load_dword v{v.OHA}, v{v.JK}, {sr(sOUT,4)}, 0 offen" if opt.get("tlb") >= 2 else ""}
        K_NOTLB:
        """)
    XA = v.E; PA = v.E + 1; GA = v.E + 2; TN = v.E + 3
    A(f"""
    s_lshl_b32 s{sPair}, s{sPair}, 4
    s_add_u32 s{sPair}, s{sPair}, {WS_FLAG + 0x2000}
    s_mov_b32 s72, {NEG_LOG2E:#x}
    s_add_u32 s73, s{sUT}, 0x2000
    s_add_u32 s74, s{sUT}, 0x4000
    s_cmp_ge_u32 s3, 4
    s_cselect_b32 s74, 0x40000000, s74
    """)
    A(f"""
    v_add_u32 v{v.JK3}, {L_BN}, v{v.t2}
    v_and_b32 v{XA}, 31, v{L}
    s_lshl_b32 s22, s{sG}, 5
    v_add_u32 v{XA}, s22, v{XA}
    s_waitcnt vmcnt({(12 if G1M == 0 else 7) })
    """)
    pt("g2")
    vconsts()
    A(f"""
    v_lshl_add_u32 v{TN}, v{H}, 11, v{TRA}
    s_lshl_b32 s22, s{sC}, 2
    v_lshl_add_u32 v{PA}, v{H}, 1, s22
    v_xor_b32 v{PA}, v{PA}, v{XA}
    v_and_b32 v{PA}, 15, v{PA}
    v_lshl_or_b32 v{PA}, v{XA}, 4, v{PA}
    s_mov_b32 s22, {L_BN}
    v_lshl_add_u32 v{PA}, v{PA}, 4, s22
    v_xor_b32 v{GA}, v{H}, v{XA}
    v_and_b32 v{GA}, 15, v{GA}
    v_lshl_or_b32 v{XA}, v{XA}, 4, v{GA}
    s_mov_b32 s22, {L_X}
    v_lshl_add_u32 v{XA}, v{XA}, 4, s22
    """)
    for s_ in range(1, 8):
        A(f"v_xor_b32 v{v.E+8+s_}, {s_*32}, v{XA}")
    pt("g3")
    if "gx" in PTS:
        A("s_waitcnt vmcnt(4)")
        pt("gx")
        A("s_waitcnt vmcnt(0)")
        pt("gw")
    if G1M == 1: w23dma()
    assert G1M == 2
    tagload("")
    A("s_waitcnt lgkmcnt(0)")
    tagfix()
    if PW1 and opt.get("w23e"): w23dma()
    if PW1: A("s_barrier")
    if PW1:
        A(f"""
        v_mov_b64 {P(v.T)}, 0
        v_mov_b64 {P(v.T+2)}, 0
        buffer_store_dwordx4 {vr(v.T,4)}, v{XV}, {sr(sWS,4)}, s{sUT} offen {STF}
        buffer_store_dwordx4 {vr(v.T,4)}, v{XV}, {sr(sWS,4)}, s73 offen {STF}
        buffer_store_dwordx4 {vr(v.T,4)}, v{XV}, {sr(sWS,4)}, s74 offen {STF}
        s_mov_b64 exec, 1
        buffer_store_dword v{v.T}, off, {sr(sWS,4)}, s{sPair} sc1
        s_mov_b64 exec, -1
        """)
    A(f"s_waitcnt vmcnt({(4 if PW1 else 0) + (5 if opt.get('w23e') else 0)})")
    A("s_barrier")
    stamp(94)
    if opt.get("tst"):
        sd = sOUT if opt["tst"] == "out" else sWS
        add = {"out": 0, "ws": 0, "ws2": 0x900000}[opt["tst"]]
        pt("t0")
        for r in (sUT, 73, 74):
            A(f"s_add_u32 s22, s{r}, {add}")
            A(f"buffer_store_dwordx4 {vr(v.T,4)}, v{XV}, {sr(sd,4)}, s22 offen {STF}")
        A("s_waitcnt vmcnt(0)")
        pt("t1")
    for s_ in range(8):
        A(f"ds_read_b64_tr_b16 {vr(v.WA+4*s_,2)}, v{TN} offset:{s_*4096}")
        A(f"ds_read_b64_tr_b16 {vr(v.WA+4*s_+2,2)}, v{TN} offset:{s_*4096+1024}")
        A(f"ds_read_b128 {vr(v.XF+4*s_,4)}, v{v.E+8+s_ if s_ else XA}")
    if G1M == 2 and not opt.get("w23e"): w23dma()
    A(f"s_cmp_lg_u32 s{sG}, 0")
    A("s_cbranch_scc1 K_G1")
    for s_ in range(8):
        A(f"ds_read_b128 {vr(v.U2+4*s_,4)}, v{v.E+8+s_ if s_ else XA} offset:16384")
    for s_ in range(8):
        A(f"s_waitcnt lgkmcnt({min(15, 3*(7-s_) + 8)})")
        A(mfma(v.T, v.WA + 4*s_, v.XF + 4*s_, "0" if s_ == 0 else None))
    for s_ in range(8):
        A(f"s_waitcnt lgkmcnt({7-s_})")
        A(mfma(v.T1, v.WA + 4*s_, v.U2 + 4*s_, "0" if s_ == 0 else None))
    def pout(acc, off, pk):
        for r in range(0, 16, 2):
            if pk:
                A(f"v_pk_mul_f32 {P(acc+r)}, {P(acc+r)}, s[72:73] op_sel_hi:[1,0]")
            else:
                A(f"v_mul_f32 v{acc+r}, s72, v{acc+r}")
                A(f"v_mul_f32 v{acc+r+1}, s72, v{acc+r+1}")
        for r in range(0, 16, 2):
            A(f"v_cvt_pk_bf16_f32 v{acc+r//2}, v{acc+r}, v{acc+r+1}")
        A(f"ds_write_b128 v{PA}, {vr(acc,4)} offset:{off}")
        A(f"ds_write_b128 v{GA}, {vr(acc+4,4)} offset:{off}")
    A(f"v_xor_b32 v{GA}, 16, v{PA}")
    pout(v.T, 0, False)
    pout(v.T1, 16384, True)
    A("s_branch K_G3")
    A("K_G1:")
    for s_ in range(8):
        A(f"s_waitcnt lgkmcnt({min(15, 3*(7-s_))})")
        A(mfma(v.T, v.WA + 4*s_, v.XF + 4*s_, "0" if s_ == 0 else None))
    A(f"v_xor_b32 v{GA}, 16, v{PA}")
    A("s_nop 10")
    pout(v.T, 0, False)
    A("K_G3:")
    pt("g4")
    A(f"""
    s_waitcnt lgkmcnt(0)
    s_barrier
    ds_read_b128 {vr(v.T,4)}, v{v.JK3}
    ds_read_b128 {vr(v.T+4,4)}, v{v.JK3} offset:8192
    ds_read_b128 {vr(v.T+8,4)}, v{v.JK3} offset:16384
    s_waitcnt lgkmcnt(2)
    """)
    mkoff([sUT, 73, 74])
    A(f"""
    buffer_store_dwordx4 {vr(v.T,4)}, v{XV}, {sr(sWS,4)}, s{sUT} offen {STF}
    s_waitcnt lgkmcnt(1)
    buffer_store_dwordx4 {vr(v.T+4,4)}, v{XV}, {sr(sWS,4)}, s73 offen {STF}
    s_waitcnt lgkmcnt(0)
    buffer_store_dwordx4 {vr(v.T+8,4)}, v{XV}, {sr(sWS,4)}, s74 offen {STF}
    """)
    stamp(4)
    tagget("B")
    A("s_waitcnt vmcnt(3)")
    A("K_COM0:")
    qaddr()
    A("s_barrier")
    pt("c1")
    qreads()
    lds_init()
    pt("c2")
    qmfma()
    stamp(6)
    A("K_COMMON:")
    pt("c3")
    for r in range(0, 12, 2):
        A(f"v_pk_mul_f32 {P(v.E+r)}, {P(v.E+r)}, s[72:73] op_sel_hi:[1,0]")
    A(f"""
    v_cvt_pk_bf16_f32 v{v.QS}, v{v.E}, v{v.E+1}
    v_cvt_pk_bf16_f32 v{v.QS+1}, v{v.E+2}, v{v.E+3}
    v_cvt_pk_bf16_f32 v{v.QF+2}, v{v.E+4}, v{v.E+5}
    v_cvt_pk_bf16_f32 v{v.QF+3}, v{v.E+6}, v{v.E+7}
    v_cvt_pk_bf16_f32 v{v.QS+2}, v{v.E+8}, v{v.E+9}
    v_cvt_pk_bf16_f32 v{v.QS+3}, v{v.E+10}, v{v.E+11}
    s_lshl_b32 s{sUoff}, s{sC}, 13
    s_add_u32 s{sUoff}, s{sUoff}, {WS_U}
    """)
    def round_regs():
        A(f"""
        v_mov_b32 v{v.TPa+1}, v{v.IX0+1}
        v_mov_b32 v{v.TPb+1}, v{v.IX0+1}
        v_mov_b32 v{v.IEb+1}, v{v.IE+1}
        v_mov_b32 v{v.aggF}, 1
        v_mov_b64 {P(v.REC+4)}, -1
        v_mov_b64 {P(v.REC+6)}, -1
        v_add_u32 v{v.JK}, {64 * CH}, v{v.EB}
        """)
    def cell_addr():
        A(f"""
        s_lshl_b32 s22, s2, 7
        s_add_u32 s22, s22, {WS_CELL}
        {f"s_add_u32 s22, s22, s{sOff}" if opt.get("rw") else ""}
        s_add_u32 s23, s22, {64*32768}
        s_movk_i32 s76, {1000 - 512}
        v_cmp_gt_u32 s[76:77], s76, v0
        v_lshrrev_b32 v{v.t0}, 3, v0
        v_and_b32 v{v.t1}, 7, v0
        v_lshlrev_b32 v{v.t1}, 4, v{v.t1}
        v_lshl_add_u32 v{v.DS}, v{v.t0}, 15, v{v.t1}
        """)
    round_regs()
    A(f"""
    s_cmp_eq_u32 s{sRole}, 0
    s_cbranch_scc1 {"K2_B3" if opt.get("isl", 8) else "K2_B2"}
    s_waitcnt vmcnt(6)
    s_barrier
    s_cmp_eq_u32 s3, 0
    s_cbranch_scc1 K2_B1
    K2_B2:
    """)
    stamp(8)
    A("K2_CELLS:")
    cell_addr()
    A("s_mov_b64 s[74:75], -1")
    A("s_and_b32 s72, s76, 0x80808080")
    A("s_and_b32 s73, s77, 0x80808080")
    stamp(10)
    A(f"""
    K_POLL:
    s_mov_b64 exec, s[74:75]
    buffer_load_dwordx4 {vr(v.REC,4)}, v{v.DS}, {sr(sWS,4)}, s22 offen sc1
    s_mov_b64 exec, s[76:77]
    buffer_load_dwordx4 {vr(v.REC+4,4)}, v{v.DS}, {sr(sWS,4)}, s23 offen sc1
    s_mov_b64 exec, -1
    buffer_load_dword v{v.JK2}, off, {sr(sWS,4)}, s{sRel} sc1
    s_waitcnt vmcnt(0)
    """)
    xred([v.REC, v.REC + 4], [v.NS, v.NS + 1])
    A(f"""
    v_xor_b32 v{v.NS}, s{sTag}, v{v.NS}
    v_xor_b32 v{v.NS+1}, s{sTag}, v{v.NS+1}
    v_cmp_lt_u32 s[74:75], 1, v{v.NS}
    v_cmp_lt_u32 vcc, 1, v{v.NS+1}
    s_and_b64 s[76:77], s[76:77], vcc
    s_or_b64 s[78:79], s[74:75], s[76:77]
    s_cbranch_scc1 K_POLL2
    s_mov_b32 exec_lo, 0x80808080
    s_mov_b32 exec_hi, 0x80808080
    v_not_b32 v{v.REC+3}, v{v.NS}
    s_mov_b64 exec, s[72:73]
    v_not_b32 v{v.REC+7}, v{v.NS+1}
    s_mov_b64 exec, -1
    """)
    A(f"""
    s_cmp_lg_u32 s{sMode}, 0
    s_barrier
    s_cbranch_scc1 K2_COUNT
    ds_read_b128 {vr(v.SEL0,4)}, v{v.S0a}
    ds_read_b128 {vr(v.SEL1,4)}, v{v.S1a}
    K2_COUNT:
    """)
    ool.append(f"K2_B1:\nv_mov_b32 v{v.FV}, s{sTag}\ns_mov_b64 exec, 1\nbuffer_store_dword v{v.FV}, off, {sr(sWS,4)}, s{sPair} sc1\ns_mov_b64 exec, -1\ns_branch K2_B2")
    if opt.get("isl", 8): ool.append(f"K2_B3:\ns_waitcnt vmcnt(6)\ns_sleep {opt.get('isl', 8) - 1}\ns_branch K2_B2")
    ool.append(f"K_POLL2:\ns_sleep {opt.get('slp', 12)}\ns_branch K_POLL")
    stamp(12)
    ET = opt.get("et", 5)
    W0 = {0: v.W0, 1: v.W0 + 2, 4: v.W0 + 4, 5: v.W0 + 6}
    for j in range(8):
        main = j % 4 < 2
        body = f"""
        v_lshrrev_b32 v{v.AD+j}, 12, v{v.REC+j}
        v_and_b32 v{v.AD+j}, 0xfc, v{v.AD+j}
        s_mov_b64 exec, {sr(sM+2*j,2)}
        ds_add_rtn_u32 v{v.RANK+j}, v{v.AD+j}, v{v.aggF} offset:{CNT}
        """
        A(f"v_cmp_gt_u32 {sr(sM+2*j,2)}, -2, v{v.REC+j}")
        if main:
            A(body)
            A(f"v_lshrrev_b32 v{W0[j]+1}, 20, v{v.REC+j}")
            if ET:
                A(f"v_subrev_u32 v{v.t0}, 80, v{v.AD+j}")
            A(f"v_add_u32 v{W0[j]+1}, v{W0[j]+1}, v{v.EB if j < 4 else v.JK}")
            if ET:
                A(f"v_min_u32 v{v.t0}, v{v.t0}, v{v.AD+j}")
                A(f"v_cmpx_gt_u32 vcc, {4*ET}, v{v.t0}")
                A(f"buffer_load_dword v{v.JK3}, v{W0[j]+1}, {sr(sE,4)}, 0 idxen")
            A("s_mov_b64 exec, -1")
        else:
            l = A.label("cs"); lb = A.label("cb")
            body += "s_mov_b64 exec, -1\n"
            if j % 4 == 3:
                A(f"v_cmp_eq_u32 vcc, -2, v{v.REC+j}")
                A(f"s_or_b64 s[22:23], {sr(sM+2*j,2)}, vcc")
                body += f"s_cbranch_vccz {lb}\nv_mov_b32 v{v.t1}, {FLAG}\nds_write_b32 v{v.t1}, v{v.aggF}\n"
            else:
                A(f"s_cmp_lg_u64 {sr(sM+2*j,2)}, 0")
            A(f"s_cbranch_scc1 {l}")
            A(f"{lb}:")
            ool.append(f"{l}:\n{body}\ns_branch {lb}")
    NPF = opt.get("pf", 0)
    if NPF:
        A(f"""
        s_or_b32 s22, s3, s{sMode}
        s_cmp_lg_u32 s22, 0
        s_cbranch_scc1 K2_NOPF
        v_cmp_ne_u32 vcc, s{sTag}, v{v.JK2}
        s_cbranch_vccnz K2_NOPF
        s_mul_i32 s22, s{sSl}, 81920
        v_lshlrev_b32 v{v.t0}, 7, v{L}
        """)
        for q in range(NPF):
            A(f"buffer_load_dword v{v.JK3}, v{v.t0}, {sr(sWS,4)}, s22 offen")
            if q < NPF - 1: A("s_add_u32 s22, s22, 8192")
        A("K2_NOPF:")
    c = v.t0; pd = v.OHA
    A(f"""
    v_lshlrev_b32 v{v.t0}, 2, v{L}
    v_mov_b32 v{v.t1}, {FLAG}
    s_mul_i32 s22, s{sG}, 20
    s_add_u32 s22, s22, 8
    s_waitcnt lgkmcnt(0)
    s_barrier
    """)
    pt("b2")
    A(f"""
    ds_read_b32 v{v.t0}, v{v.t0} offset:{CNT}
    ds_read_b32 v{v.t1}, v{v.t1}
    s_waitcnt lgkmcnt(0)
    v_add_u32 v{c}, 3, v{c}
    v_and_b32 v{c}, -4, v{c}
    v_max_u32 v{c}, 4, v{c}
    v_cndmask_b32 v{pd}, 0, v{c}, {sr(sN40,2)}
    v_readfirstlane_b32 s23, v{v.t1}
    s_nop 0
    v_add_u32_dpp v{c}, v{pd}, v{pd} row_shr:1 row_mask:0xf bank_mask:0xf bound_ctrl:0
    s_nop 1
    v_add_u32_dpp v{c}, v{c}, v{c} row_shr:2 row_mask:0xf bank_mask:0xf bound_ctrl:0
    s_nop 1
    v_add_u32_dpp v{c}, v{c}, v{c} row_shr:4 row_mask:0xf bank_mask:0xf bound_ctrl:0
    s_nop 1
    v_add_u32_dpp v{c}, v{c}, v{c} row_shr:8 row_mask:0xf bank_mask:0xf bound_ctrl:0
    s_nop 1
    v_add_u32_dpp v{c}, v{c}, v{c} row_bcast:15 row_mask:0xa bank_mask:0xf
    s_nop 1
    v_add_u32_dpp v{c}, v{c}, v{c} row_bcast:31 row_mask:0xc bank_mask:0xf
    s_cmp_lg_u32 s23, -1
    s_cbranch_scc1 K2_OVF
    v_readlane_b32 s{sT0}, v{c}, 19
    v_readlane_b32 s{sT1}, v{c}, 39
    v_sub_u32 v{pd}, v{c}, v{pd}
    s_sub_u32 s23, {GSL}, s{sT0}
    v_add_u32 v{c}, s23, v{pd}
    v_cndmask_b32 v{pd}, v{pd}, v{c}, {sr(sG1,2)}
    v_add_u32 v{v.FV}, v{pd}, v{v.OHB}
    """)
    for j in (0, 1, 4, 5):
        A(f"ds_bpermute_b32 v{v.PK+j}, v{v.AD+j}, v{v.FV}")
    A(f"""
    v_readlane_b32 s{sTsw}, v{pd}, s22
    s_sub_u32 s{sT1}, s{sT1}, s{sT0}
    s_max_u32 s22, s{sT0}, s{sT1}
    s_cmp_gt_u32 s22, {GSL}
    s_cbranch_scc1 K2_OVF
    s_waitcnt lgkmcnt(0)
    """)
    pt("sc")
    for j in (0, 1, 4, 5, 2, 3, 6, 7):
        rare = (j % 4) >= 2
        w = v.W0 + 8 if rare else W0[j]
        body = f"""
        s_mov_b64 exec, {sr(sM+2*j,2)}
        v_add_u32_sdwa v{v.RANK+j}, v{v.PK+j}, v{v.RANK+j} dst_sel:DWORD dst_unused:UNUSED_PAD src0_sel:WORD_0 src1_sel:DWORD
        v_bfi_b32 v{w}, s{sK3F}, v{v.REC+j}, v{v.PK+j}
        v_lshlrev_b32 v{v.PK+j}, 3, v{v.RANK+j}
        v_lshrrev_b32 v{v.RANK+j}, 2, v{v.RANK+j}
        ds_write_b64 v{v.PK+j}, {P(w)} offset:{REC}
        ds_write_b8 v{v.RANK+j}, v{v.AD+j} offset:{QN}
        """
        if rare:
            l = A.label("ss"); lb = A.label("sb")
            A(f"s_cmp_lg_u64 {sr(sM+2*j,2)}, 0")
            A(f"s_cbranch_scc1 {l}")
            A(f"{lb}:")
            ool.append(f"{l}:\ns_mov_b64 exec, -1\nds_bpermute_b32 v{v.PK+j}, v{v.AD+j}, v{v.FV}\nv_lshrrev_b32 v{w+1}, 20, v{v.REC+j}\nv_add_u32 v{w+1}, v{w+1}, v{v.EB if j < 4 else v.JK}\ns_waitcnt lgkmcnt(0)\n{body}\ns_branch {lb}")
        else:
            A(body)
    A(f"""
    s_mov_b64 exec, -1
    s_or_b32 s22, s3, s{sMode}
    s_cmp_lg_u32 s22, 0
    s_cbranch_scc1 K2_RDY
    v_cmp_ne_u32 vcc, s{sTag}, v{v.JK2}
    s_cbranch_vccnz {"K2_SPOLL" if opt.get("sp", 1) else "K2_RPOLL"}
    K2_RDY:
    s_mov_b32 m0, s{sRing}
    s_waitcnt lgkmcnt(0)
    s_barrier
    """)
    ool.append(f"K2_RPOLL:\nbuffer_load_dword v{v.JK2}, off, {sr(sWS,4)}, s{sRel} sc1\ns_waitcnt vmcnt(0)\nv_cmp_ne_u32 vcc, s{sTag}, v{v.JK2}\ns_cbranch_vccz K2_RDY\ns_sleep 1\ns_branch K2_RPOLL")
    ool.append(f"K2_SPOLL:\ns_mov_b32 s23, 0\nK2_SP2:\ns_buffer_load_dword s22, {sr(sWS,4)}, s{sRel} glc\ns_waitcnt lgkmcnt(0)\ns_cmp_eq_u32 s22, s{sTag}\ns_cbranch_scc1 K2_RDY\ns_add_u32 s23, s23, 1\ns_cmp_lt_u32 s23, 16\ns_cbranch_scc1 K2_SP2\ns_branch K2_RPOLL")
    stamp(14)
    A(f"""
    ds_read_u16 v{v.IX0}, v{v.R1}
    ds_read_u16 v{v.IX1}, v{v.R1} offset:64
    ds_read_b32 v{v.IE}, v{v.Re}
    ds_read_u8 v{v.t0}, v0 offset:{QN}
    ds_read_u16 v{v.TPa}, v{v.R1} offset:256
    ds_read_u16 v{v.TPb}, v{v.R1} offset:320
    ds_read_b32 v{v.IEb}, v{v.Re} offset:1024
    ds_read_u8 v{v.OH0}, v{v.R2}
    ds_read_u8 v{v.OHA}, v{v.R2} offset:256
    s_waitcnt lgkmcnt(8)
    buffer_load_dwordx4 {P(v.IX0)}, {sr(sP,4)}, 0 idxen offen lds
    s_add_u32 m0, s{sRing}, 1024
    s_waitcnt lgkmcnt(7)
    buffer_load_dwordx4 {P(v.IX1)}, {sr(sP,4)}, 0 idxen offen lds
    s_mov_b32 m0, s{sE0}
    s_waitcnt lgkmcnt(5)
    buffer_load_dwordx4 {P(v.IE)}, {sr(sE,4)}, 0 idxen offen lds
    v_cmp_ne_u32 vcc, 0xff, v{v.t0}
    v_subrev_u32 v{v.t1}, 80, v{v.t0}
    v_min_u32 v{v.t0}, v{v.t0}, v{v.t1}
    v_lshl_add_u32 v{v.t1}, v{v.t0}, 3, v{v.QC}
    v_lshrrev_b32 v{v.t0}, 1, v{v.t0}
    v_and_b32 v{v.t0}, 16, v{v.t0}
    v_xor_b32 v{v.t1}, v{v.t1}, v{v.t0}
    v_mov_b32 v{v.t0}, 0x3f80
    s_mov_b64 exec, vcc
    ds_write_b16 v{v.t1}, v{v.t0}
    s_mov_b64 exec, -1
    s_add_u32 m0, s{sRing}, 2048
    s_waitcnt lgkmcnt(0)
    buffer_load_dwordx4 {P(v.TPa)}, {sr(sP,4)}, 0 idxen offen lds
    s_add_u32 m0, s{sRing}, 3072
    ds_read_u16 v{v.IX0}, v{v.R1} offset:512
    buffer_load_dwordx4 {P(v.TPb)}, {sr(sP,4)}, 0 idxen offen lds
    ds_read_u16 v{v.IX1}, v{v.R1} offset:576
    ds_read_u16 v{v.TPa}, v{v.R1} offset:768
    ds_read_u16 v{v.TPb}, v{v.R1} offset:832
    s_mul_i32 s22, s{sG}, {GSL}
    s_sub_u32 s{sTsw}, s{sTsw}, s22
    s_add_u32 s{sTsw}, s{sTsw}, 31
    s_lshr_b32 s{sTsw}, s{sTsw}, 5
    s_add_u32 s{sT0}, s{sT0}, 31
    s_lshr_b32 s{sT0}, s{sT0}, 5
    s_add_u32 s{sT1}, s{sT1}, 31
    s_lshr_b32 s{sT1}, s{sT1}, 5
    s_cmp_gt_u32 s{sT0}, s{sT1}
    s_cselect_b32 s{sLate}, 1, 0
    s_xor_b32 s{sLate}, s{sLate}, s{sG}
    s_cmp_eq_u32 s{sG}, 0
    s_cselect_b32 s{sTg}, s{sT0}, s{sT1}
    s_sub_u32 s{sUT}, s{sTg}, 9
    s_and_b32 s{sUT}, s{sUT}, -4
    s_add_u32 s{sUT}, s{sUT}, 1
    s_cmp_lt_u32 s{sTg}, 9
    s_cselect_b32 s{sUT}, {BIG}, s{sUT}
    s_cmp_lg_u32 s{sMode}, 0
    s_cselect_b32 s{sUT}, {BIG}, s{sUT}
    s_sub_u32 s22, s{sTg}, 1
    s_lshr_b32 s22, s22, 1
    s_mul_i32 s22, s22, 3072
    s_add_u32 s22, s22, {3072 + 2048}
    v_add_u32 v{v.LA}, s22, v{v.E_}
    s_add_u32 s{sEdst}, s{sE0}, {6144 if opt.get('ek', 3) == 3 else 12288}
    s_mov_b32 s{sTile}, 0
    v_mov_b32 v{v.PROG}, 1
    v_mov_b64 {P(v.QF)}, {P(v.QS)}
    v_mov_b64 {P(v.NS)}, 0
    v_mov_b64 {P(v.NS+2)}, 0
    v_mov_b64 {P(v.DS)}, {P(v.ONE)}
    v_mov_b64 {P(v.DS+2)}, {P(v.ONE)}
    v_mov_b64 {P(v.MSG)}, 0
    v_mov_b64 {P(v.aggF)}, 0
    v_mov_b64 {P(v.aggF+2)}, 0
    v_mov_b64 {P(v.S)}, 0
    s_cmp_lg_u32 s{sMode}, 0
    s_waitcnt vmcnt(2) lgkmcnt(0)
    s_barrier
    """)
    stamp(16)
    A(f"""
    ds_read_b128 {vr(v.ohF,4)}, v{v.OH0}
    ds_read_b128 {vr(v.eF,4)}, v{v.E_} offset:3072
    ds_read_b128 {vr(v.pF0,4)}, v{v.P0}
    ds_read_b128 {vr(v.pF1,4)}, v{v.P1}
    s_cbranch_scc1 K2_SAFEP
    """)
    def late_issue():
        A(f"""
        s_add_u32 m0, s{sRing}, 4096
        s_nop 0
        buffer_load_dwordx4 {P(v.IX0)}, {sr(sP,4)}, 0 idxen offen lds
        s_add_u32 m0, s{sRing}, 5120
        ds_read_u16 v{v.IX0}, v{v.R1} offset:1024
        buffer_load_dwordx4 {P(v.IX1)}, {sr(sP,4)}, 0 idxen offen lds
        """)
        if opt.get("ek", 3) == 2:
            A(f"""
            s_add_u32 m0, s{sE0}, 6144
            s_nop 0
            buffer_load_dwordx4 {P(v.IEb)}, {sr(sE,4)}, 0 idxen offen lds
            """)
        else:
            A(f"v_mov_b32 v{v.IE}, v{v.IEb}")
        A(f"""
        s_add_u32 m0, s{sRing}, 6144
        ds_read_u16 v{v.IX1}, v{v.R1} offset:1088
        buffer_load_dwordx4 {P(v.TPa)}, {sr(sP,4)}, 0 idxen offen lds
        s_add_u32 m0, s{sRing}, 7168
        s_nop 0
        buffer_load_dwordx4 {P(v.TPb)}, {sr(sP,4)}, 0 idxen offen lds
        """)
    chain(A, 3, "fast", None, ool, pre=True, mid=late_issue)
    A("K2_LOOP:")
    for k in range(4):
        stretch(A, k, "fast", ool)
        chain(A, k, "fast", "K2_EXIT", ool)
    A("s_branch K2_LOOP")
    A("K2_EXIT:")
    stamp(18)
    A(f"""
    s_setprio 0
    ds_read_b128 {vr(v.ohF,4)}, v{v.LA}
    v_rcp_f32 v{v.RS}, v{v.DS}
    v_rcp_f32 v{v.RS+1}, v{v.DS+1}
    v_rcp_f32 v{v.RS+2}, v{v.DS+2}
    v_rcp_f32 v{v.RS+3}, v{v.DS+3}
    v_fma_f32 v{v.S}, v{v.DS}, v{v.DS+2}, v{v.S}
    v_fma_f32 v{v.S+1}, v{v.DS+1}, v{v.DS+3}, v{v.S+1}
    v_mul_f32 v{v.NS}, v{v.NS}, v{v.RS}
    v_mul_f32 v{v.NS+1}, v{v.NS+1}, v{v.RS+1}
    v_mul_f32 v{v.NS+2}, v{v.NS+2}, v{v.RS+2}
    v_mul_f32 v{v.NS+3}, v{v.NS+3}, v{v.RS+3}
    K2_X2:
    s_bitcmp1_b32 s{sTg}, 0
    s_cbranch_scc0 K2_X3
    s_waitcnt lgkmcnt(1)
    {mfma(v.ACC, v.MSG, v.aggF)}
    v_cvt_pk_bf16_f32 v{v.MSG}, v{v.NS}, v{v.NS+1}
    v_cvt_pk_bf16_f32 v{v.MSG+1}, v{v.NS+2}, v{v.NS+3}
    s_branch K2_X4
    K2_X3:
    v_cvt_pk_bf16_f32 v{v.MSG+2}, v{v.NS}, v{v.NS+1}
    v_cvt_pk_bf16_f32 v{v.MSG+3}, v{v.NS+2}, v{v.NS+3}
    K2_X4:
    v_max_f32 v{v.S}, v{v.S}, v{v.S+1}
    s_waitcnt lgkmcnt(0)
    {mfma(v.ACC, v.MSG, v.ohF)}
    v_add_u32 v{v.t0}, s{sRing}, v{v.t3}
    s_cmp_eq_u32 s{sMode}, 1
    s_cbranch_scc1 K2_NEXTR
    K2_FIN:
    s_cmp_eq_u32 s{sUT}, {BIG}
    s_cbranch_scc1 K2_ULD
    K2_ULB:
    s_mov_b32 s22, {NEG_LN2:#x}
    s_mov_b32 s23, {f2u(2.0**60):#x}
    v_mov_b64 {P(v.NS)}, 0
    v_mov_b32 v{v.S+1}, 0
    s_lshl_b32 s76, s{sG}, 15
    s_add_u32 s76, s76, {RING}
    v_add_u32 v{v.t1}, s76, v{v.t3}
    v_mov_b32 v{v.JK}, {TRIP}
    """)
    B = Asm(); B("K2_ULD:")
    for i in range(16): u_load(B, i)
    B("s_branch K2_ULB"); ool.append(B.text())
    for s in range(8):
        A(f"v_pk_mul_f32 {P(v.ACC+2*s)}, {P(v.ACC+2*s)}, s[22:23] op_sel_hi:[1,0]")
    for s in range(8):
        A(f"v_cvt_pk_bf16_f32 v{v.E+s}, v{v.ACC+2*s}, v{v.ACC+2*s+1}")
    A("s_waitcnt vmcnt(0)")
    A(f"ds_write_b128 v{v.t0}, {vr(v.E,4)}")
    A(f"ds_write_b128 v{v.t0}, {vr(v.E+4,4)} offset:1024")
    for s in range(8):
        A(f"v_pk_fma_f32 {P(v.S)}, {P(v.ACC+2*s)}, {P(v.NS)}, {P(v.S)}")
    F = v.T; AG = v.T1
    A(f"""
    v_add_f32 v{v.S}, v{v.S}, v{v.S+1}
    v_cmp_nge_f32 vcc, s23, v{v.S}
    s_cbranch_vccnz K2_TRIP
    K2_TRB:
    s_cmp_lg_u32 s{sLate}, 0
    s_waitcnt lgkmcnt(0)
    s_cbranch_scc1 K2_LATE
    """)
    ool.append(f"K2_TRIP:\ns_cmp_lg_u32 s{sMode}, 0\ns_cbranch_scc1 K2_TRB\nds_write_b32 v{v.JK}, v{v.NS}\ns_branch K2_TRB")
    def rg():
        for s_ in range(8):
            A(mfma(F, v.U1 + 4*s_, v.XF + 4*s_, "0" if s_ == 0 else None))
    def rd():
        A("s_barrier")
        stamp(96)
        A(f"ds_read_b32 v{v.JK}, v{v.JK}")
        for s in range(8):
            A(f"ds_read_b128 {vr(AG+4*s,4)}, v{v.t1} offset:{(s >> 1) * 8192 + (s & 1) * 1024}")
    rg(); rd()
    if opt.get("ep2", 1): A("s_setprio 2")
    A("s_branch K2_JOIN")
    A("K2_LATE:")
    rd(); rg()
    A("K2_JOIN:")
    for s in range(8):
        A(f"s_waitcnt lgkmcnt({7-s})")
        A(mfma(F, v.U2 + 4*s, AG + 4*s))
    A(f"""
    s_setprio 0
    v_readfirstlane_b32 s23, v{v.JK}
    s_mov_b32 s22, {NEG_LOG2E:#x}
    s_cmp_eq_u32 s23, 0
    s_cbranch_scc1 K2_REDO
    s_cmp_lg_u32 s{sLate}, 0
    s_nop 5
    s_cbranch_scc1 K2_ACT2
    """)
    def act(pk):
        for r in range(0, 16, 2):
            if pk: A(f"v_pk_mul_f32 {P(v.E+r)}, {P(F+r)}, s[22:23] op_sel_hi:[1,0]")
            else:
                A(f"v_mul_f32 v{v.E+r}, s22, v{F+r}"); A(f"v_mul_f32 v{v.E+r+1}, s22, v{F+r+1}")
        for r in range(16):
            A(f"v_exp_f32 v{v.E+r}, v{v.E+r}")
        for r in range(0, 16, 2):
            if pk: A(f"v_pk_add_f32 {P(v.E+r)}, {P(v.E+r)}, {P(v.ONE)}")
            else:
                A(f"v_add_f32 v{v.E+r}, 1.0, v{v.E+r}"); A(f"v_add_f32 v{v.E+r+1}, 1.0, v{v.E+r+1}")
        for r in range(16):
            A(f"v_rcp_f32 v{v.E+r}, v{v.E+r}")
        for r in range(0, 16, 2):
            if pk: A(f"v_pk_mul_f32 {P(F+r)}, {P(F+r)}, {P(v.E+r)}")
            else:
                A(f"v_mul_f32 v{F+r}, v{F+r}, v{v.E+r}"); A(f"v_mul_f32 v{F+r+1}, v{F+r+1}, v{v.E+r+1}")
    act(not opt.get("ep2", 1))
    A("s_branch K2_ACT3")
    A("K2_ACT2:")
    act(True)
    A("K2_ACT3:")
    O = v.T1
    for r in range(8):
        A(f"v_cvt_pk_bf16_f32 v{O+r}, v{F+2*r}, v{F+2*r+1}")
    A(f"""
    s_nop 1
    v_permlane32_swap_b32 v{O}, v{O+2}
    v_permlane32_swap_b32 v{O+1}, v{O+3}
    v_permlane32_swap_b32 v{O+4}, v{O+6}
    v_permlane32_swap_b32 v{O+5}, v{O+7}
    buffer_store_dwordx4 {vr(O,4)}, v{v.OA}, {sr(sOUT,4)}, 0 offen {opt.get("ost", "").replace("_", " ")}
    buffer_store_dwordx4 {vr(O+4,4)}, v{v.OA}, {sr(sOUT,4)}, 0 offen offset:32 {opt.get("ost", "").replace("_", " ")}
    """)
    A(f"""
    s_or_b32 s22, s2, s3
    s_cmp_eq_u32 s22, 0
    s_cbranch_scc1 K_ADV
    K_ADVB:
    """)
    ool.append(f"K_ADV:\nv_mov_b32 v1, s{sTag}\ns_mov_b32 s22, {WS_TAG}\ns_mov_b64 exec, 1\nbuffer_store_dword v1, off, {sr(sWS,4)}, s22 sc1\ns_mov_b64 exec, -1\ns_branch K_ADVB")
    if ST:
        A("s_waitcnt vmcnt(0)")
        A("s_memtime s[98:99]")
        A("s_memrealtime s[100:101]")
        A(f"""
        s_lshl_b32 s22, s2, 3
        s_add_u32 s22, s22, s3
        s_lshl_b32 s22, s22, 6
        s_add_u32 s22, s22, 0xA00000
        v_mov_b32 v1, 0
        s_waitcnt lgkmcnt(0)
        """)
        for i, r in enumerate([90, 94, 4, 6, 8, 10, 12, 14, 16, 18, 96, 98, 92, 100, sTg] if not PTS else [90, 94, 4, 44, 46, 48, 50, 96, 6, 12, 14, 98, 92, 100, sTg]):
            A(f"v_mov_b32 v2, s{r}")
            A(f"buffer_store_dword v2, v1, {sr(sWS,4)}, s22 offen offset:{4*i}")
    A("K_END:")
    A("s_endpgm")
    for o in ool: A(o)
    del ool[:]
    A(f"""
    K_SPECIAL:
    s_waitcnt lgkmcnt(0)
    s_mov_b32 s22, {WS_TAG}
    s_load_dword s{sTag}, s[{PWS}:{PWS+1}], s22
    """)
    if ST: srd(A, sDB, PDBG, 256)
    srd(A, sWS, PWS, WS_END)
    A(f"""
    s_cmp_lg_u32 s2, 0
    s_cbranch_scc1 K_HELPER
    s_cmp_lg_u32 s3, 0
    s_cbranch_scc1 K_END
    s_waitcnt lgkmcnt(0)
    s_add_u32 s{sTag}, s{sTag}, 2
    s_or_b32 s{sTag}, s{sTag}, 0x40000001
    v_mov_b32 v1, s{sTag}
    v_lshlrev_b32 v2, 4, v0
    v_cmp_gt_u32 vcc, {NCHUNK + 2 - 64}, v0
    v_add_u32 v4, 1024, v2
    s_mov_b32 s22, {WS_FLAG + 0x2000}
    v_cndmask_b32 v4, v2, v4, vcc
    v_lshlrev_b32 v3, 7, v0
    s_mov_b32 s23, {WS_FLAG + 0x4000}
    v_mov_b32 v6, 0
    {f"buffer_store_dword v6, v3, {sr(sWS,4)}, s23 offen sc1" if PW1 else ""}
    """)
    if MC:
        A(f"""
        v_cmp_gt_u32 vcc, {NCHUNK - 64}, v0
        v_add_u32 v5, 1024, v2
        s_mov_b32 s76, {WS_FLAG}
        v_cndmask_b32 v5, v2, v5, vcc
        s_mov_b32 s77, {WS_FLAG + 0x6000}
        K_MPOLL0:
        buffer_load_dword v8, v2, {sr(sWS,4)}, s76 offen sc1
        buffer_load_dword v9, v5, {sr(sWS,4)}, s76 offen sc1
        s_waitcnt vmcnt(0)
        v_xor_b32 v8, v1, v8
        v_xor_b32 v9, v1, v9
        v_or_b32 v8, v8, v9
        v_cmp_ne_u32 vcc, 0, v8
        s_cbranch_vccnz K_MPOLL0
        buffer_store_dword v1, v3, {sr(sWS,4)}, s77 offen sc1
        {"s_memrealtime s[92:93]" if ST else ""}
        """)
    A(f"""
    K_MPOLL:
    buffer_load_dword v8, v2, {sr(sWS,4)}, s22 offen sc1
    buffer_load_dword v9, v4, {sr(sWS,4)}, s22 offen sc1
    s_waitcnt vmcnt(0)
    v_xor_b32 v8, v1, v8
    v_xor_b32 v9, v1, v9
    v_or_b32 v8, v8, v9
    v_cmp_ne_u32 vcc, 0, v8
    s_cbranch_vccnz K_MPOLL
    buffer_store_dword v1, v3, {sr(sWS,4)}, s23 offen sc1
    {"s_memrealtime s[90:91]" if ST else ""}
    {"s_waitcnt lgkmcnt(0)" if ST else ""}
    {"v_mov_b32 v2, s90" if ST else ""}
    {f"buffer_store_dword v2, off, {sr(sDB,4)}, 0 offset:8" if ST else ""}
    {"v_mov_b32 v2, s92" if ST else ""}
    {f"buffer_store_dword v2, off, {sr(sDB,4)}, 0 offset:12" if ST else ""}
    s_endpgm
    K_HELPER:
    s_sub_u32 s87, s2, 1
    s_lshl_b32 s82, s87, 15
    s_lshl_b32 s77, s3, 12
    """)
    srd(A, sWm, PWU, 32768, add="s82")
    wdma(0, 0)
    A(f"""
    s_waitcnt vmcnt(4)
    s_lshl_b32 s22, s{sC}, 6
    v_xor_b32 v{TRA}, s22, v{TRA}
    v_lshrrev_b32 v{H}, 5, v{L}
    s_sub_u32 s22, 11, s87
    v_lshlrev_b32 v{H}, s22, v{H}
    v_add_u32 v{TRA}, v{TRA}, v{H}
    s_lshl_b32 s22, s{sG}, 14
    v_add_u32 v{TRA}, s22, v{TRA}
    s_lshl_b32 s22, 1024, s87
    v_add_u32 v{H}, s22, v{TRA}
    s_lshl_b32 s22, s{sC}, 13
    s_add_u32 s82, s82, s22
    s_lshl_b32 s22, s{sG}, 12
    s_add_u32 s82, s82, s22
    s_add_u32 s82, s82, {WS_U}
    s_waitcnt vmcnt(0)
    s_barrier
    """)
    for s_ in range(4):
        A(f"ds_read_b64_tr_b16 {vr(v.T+4*s_,2)}, v{TRA} offset:{s_*4096}")
        A(f"ds_read_b64_tr_b16 {vr(v.T+4*s_+2,2)}, v{H} offset:{s_*4096}")
    A("s_waitcnt lgkmcnt(0)")
    for s_ in range(4):
        A(f"buffer_store_dwordx4 {vr(v.T+4*s_,4)}, v{v.t3}, {sr(sWS,4)}, s82 offen offset:{s_*1024} sc1")
    A(f"""
    s_waitcnt vmcnt(0)
    s_barrier
    s_cmp_lg_u32 s3, 0
    s_cbranch_scc1 K_END
    s_add_u32 s{sTag}, s{sTag}, 2
    s_or_b32 s{sTag}, s{sTag}, 0x40000001
    v_mov_b32 v1, s{sTag}
    s_lshl_b32 s22, s87, 4
    s_add_u32 s22, s22, {WS_FLAG + 0x2000 + NCHUNK * 16}
    s_mov_b64 exec, 1
    buffer_store_dword v1, off, {sr(sWS,4)}, s22 sc1
    s_endpgm
    """)
    A("K2_SAFEP:")
    chain(A, 3, "safe", None, ool, pre=True, mid=late_issue)
    A("K2_SAFE:")
    for k in range(4):
        stretch(A, k, "safe", ool)
        chain(A, k, "safe", "K2_SEXIT", ool)
    A("s_branch K2_SAFE")
    A(f"""
    K2_SEXIT:
    s_setprio 0
    ds_read_b128 {vr(v.ohF,4)}, v{v.LA}
    s_branch K2_X2
    """)
    def restore():
        A(f"""
        s_lshr_b32 s23, s{sTg}, 2
        s_mul_i32 s22, s23, 6144
        s_lshl_b32 s23, s23, 10
        v_subrev_u32 v{v.E_}, s22, v{v.E_}
        v_subrev_u32 v{v.R1}, s23, v{v.R1}
        v_subrev_u32 v{v.R2}, s23, v{v.R2}
        v_subrev_u32 v{v.Re}, s23, v{v.Re}
        """)
    A("K2_REDO:")
    restore()
    A(f"s_mov_b32 s{sMode}, 2")
    A("s_nop 7")
    for r in range(0, 16, 2):
        A(f"v_mov_b64 {P(v.ACC+r)}, 0")
    A("s_waitcnt vmcnt(0) lgkmcnt(0)")
    A("s_barrier")
    lds_init()
    round_regs()
    A("s_branch K2_CELLS")
    A(f"""
    K2_OVF:
    s_cmp_eq_u32 s{sMode}, 0
    s_cbranch_scc0 K2_OV2
    s_cmp_lg_u32 s3, 0
    s_cbranch_scc1 K2_OV2
    K2_OV1:
    buffer_load_dword v{v.JK2}, off, {sr(sWS,4)}, s{sRel} sc1
    s_waitcnt vmcnt(0)
    v_cmp_ne_u32 vcc, s{sTag}, v{v.JK2}
    s_cbranch_vccnz K2_OV1
    K2_OV2:
    s_mov_b32 s{sMode}, 1
    s_mov_b32 s{sRound}, 0
    s_branch K2_ROUND
    K2_NEXTR:
    s_add_u32 s{sRound}, s{sRound}, 1
    s_cmp_ge_u32 s{sRound}, {E // 512}
    s_cbranch_scc1 K2_FIN
    """)
    restore()
    A(f"""
    K2_ROUND:
    s_load_dwordx4 s[76:79], s[0:1], 16
    s_waitcnt vmcnt(0) lgkmcnt(0)
    s_barrier
    """)
    srd(A, sS, 76, E * 4)
    srd(A, sD, 78, E * 4)
    A(f"""
    s_lshl_b32 s22, s{sRound}, 9
    v_add_u32 v{v.EB}, s22, v0
    v_lshlrev_b32 v{v.t0}, 2, v{v.EB}
    buffer_load_dword v{v.REC}, v{v.t0}, {sr(sD,4)}, 0 offen
    buffer_load_dword v{v.REC+1}, v{v.t0}, {sr(sS,4)}, 0 offen
    """)
    lds_init()
    round_regs()
    A(f"""
    s_mul_i32 s22, s2, 40
    s_waitcnt vmcnt(0)
    v_subrev_u32 v{v.REC}, s22, v{v.REC}
    v_cmp_gt_u32 vcc, 40, v{v.REC}
    v_lshl_or_b32 v{v.t0}, v{v.REC}, 14, v{v.REC+1}
    v_mov_b32 v{v.REC+1}, -1
    v_cndmask_b32 v{v.REC}, -1, v{v.t0}, vcc
    v_mov_b64 {P(v.REC+2)}, -1
    s_barrier
    s_branch K2_COUNT
    """)
    for o in ool: A(o)
    A("K_CODE_END:")
    return A.text()

HEADER = """; MPNN edge-MLP layer, fused single kernel (generated by gen/fz10.py).
; Kernarg layout (72 bytes, ptrs only, base s[0:1]):
;   32: w_msg (272,128) bf16 | 40: w_upd (256,128) bf16 | 48: d_out | 56: d_debug | 64: d_ws
"""
def build(opt):
    out = HEADER + f"; @launch grid=({NWG},1,1) block=(512,1,1) lds={LDS_TOTAL}\n"
    out += '.amdgcn_target "amdgcn-amd-amdhsa--gfx950"\n.text\n'
    out += f".globl {KNAME}\n.p2align 8\n.type {KNAME},@function\n" + gen(opt)
    acc = (NV + 3) // 4 * 4
    out += f""".section .rodata,"a"
.p2align 8
K_TABLE:
{tables()}.p2align 6
.amdhsa_kernel {KNAME}
  .amdhsa_next_free_vgpr {NV}
  .amdhsa_next_free_sgpr 102
  .amdhsa_accum_offset {acc}
  .amdhsa_group_segment_fixed_size 0
  .amdhsa_kernarg_size 72
  .amdhsa_user_sgpr_count 2
  .amdhsa_user_sgpr_kernarg_segment_ptr 1
  .amdhsa_system_sgpr_workgroup_id_x 1
.end_amdhsa_kernel
"""
    return out

if __name__ == "__main__":
    opt = {}
    for a in sys.argv[2:]:
        k_, v_ = a.split("=")
        opt[k_] = int(v_) if v_.lstrip("-").isdigit() else v_
    open(sys.argv[1], "w").write(build(opt))
```

```python
import sys, struct
from gen import Asm, vr, sr, srd, f2u, NEG_LOG2E, NEG_LN2, PX, PE, PSRC, PDST, PWM, PWU, POUT, PDBG, PWS, load_ptrs

KNAME = "standalone__mpnn_edge_mlp__graph_kernel"
N = 10000; E = 320000
NBIN = 250; NCHUNK = 125; CH = 2560
WS_CELL = 0x280000
WS_FLAG = 0x700000
WS_U = 0x708000
WS_END = WS_U + 0x10000
NWG = NBIN + 3
BIG = 0x7fffffff
WS_TAG = 0x27FF00

CNT = 0x100; QN = 0x200; FLAG = 0x3F0; TRIP = 0x3F4; REC = 0x400
TG = 26; GSL = TG * 32
REC_BYTES = (2 * GSL + 160) * 8
EA = REC + REC_BYTES
GEA = (TG // 2) * 3072
RING = EA + 2 * GEA
JUNK = RING + 65536
LDS_TOTAL = JUNK + 1024
FLG = CNT + 48 * 4
L_X = RING; L_W2 = RING + 0x6000; L_W3 = L_W2 + 32768; L_BN = 0x8000
assert RING % 256 == 0 and LDS_TOTAL <= 163840

class R: pass
v = R()
_n = 1
def alloc(name, n, align=1):
    global _n
    _n = (_n + align - 1) // align * align
    setattr(v, name, _n)
    _n += n
for nm in ("t0", "t1", "t2", "t3", "lane", "FW", "FV", "PROG", "JK", "JK2", "JK3", "OHA", "P1", "FR", "LA"):
    alloc(nm, 1)
TABN = ("E_", "R1", "R2", "Re", "P0", "EB", "QC", "OHB", "S0a", "FRo", "IXo", "IEo", "S1a", "TRA", "OAl", "Z_")
alloc("TAB", 0, 4)
for nm in TABN[:8]:
    alloc(nm, 1)
for nm in ("IX0", "IX1", "IE", "ONE", "S"):
    alloc(nm, 2, 2)
alloc("OA", 1)
for nm in ("W3F", "QF", "QS", "SEL0", "SEL1", "eF", "ohF", "pF0", "pF1", "aggF", "MSG", "NS", "DS", "RS"):
    alloc(nm, 4, 4)
for nm in ("T", "T1", "E", "ACC"):
    alloc(nm, 16, 4)
alloc("U1", 32, 4); alloc("U2", 32, 4); alloc("XF", 32, 4)
NV = _n
assert NV <= 256
for i_, nm in enumerate(TABN[8:]): setattr(v, nm, v.SEL0 + i_)
v.WA = v.ohF
assert v.RS == v.ohF + 28 and v.SEL1 == v.SEL0 + 4 and v.E == v.T1 + 16
v.REC = v.T; v.RANK = v.T + 8; v.AD = v.E; v.PK = v.E + 8
v.W0 = v.T1
v.TPa = v.T1 + 10; v.TPb = v.T1 + 12; v.IEb = v.T1 + 14; v.OH0 = v.pF1

sWS, sP, sE, sX, sOUT, sD, sS = 24, 28, 32, 36, 40, 44, 48
sG, sC, sTg, sTile, sTsw, sTag, sRing, sEdst, sMode, sRound, sRole, sElim = 52, 53, 54, 55, 56, 57, 58, 59, 60, 61, 62, 63
sM = 64
sWm = 64; sDB = 68
sTB = 80
sUT = 82; sNoE = 83; sK3F = 84; sT0, sT1 = 85, 86; sRel = 87; sUoff = 88; sPair = 89
sN40 = 36; sG1 = 38; sSl = 101; sE0 = 100; sOff = 61

OPT = {}
def P(r): return f"v[{r}:{r+1}]"
def mfma(d, a, b, c=None):
    return f"v_mfma_f32_32x32x16_bf16 {vr(d,16)}, {vr(a,4)}, {vr(b,4)}, {vr(d,16) if c is None else c}"
def pi8v(m):
    return ((m & 5) << 5) | ((m & 18) << 2) | ((m & 8) << 1)

def tables():
    rows = []
    for l in range(64):
        m, h = l & 31, l >> 5
        a16 = 16 + ((l & 8) << 3) + ((l & 3) << 4)
        n_ = l - 20 if l >= 20 else l
        a16n = 16 + ((n_ & 8) << 3) + ((n_ & 3) << 4)
        ohb = (a16n << (16 + 8 * ((n_ >> 2) & 1))) if l < 40 else 0
        sel = a16 if ((l >> 2) & 1) == h else 0
        d = dict(
            E_=m * 32 + (((h ^ (m >> 3)) & 1) << 4) + EA - 3072,
            R1=pi8v(l >> 2) + REC, R2=pi8v(m) + h + 2 + REC, Re=pi8v(l >> 1) + 4 + REC,
            P0=m * 64 + ((((m >> 2) ^ (2 * h)) & 3) << 4) + RING,
            EB=(l >> 2) * CH,
            QC=(l >> 4) * 3072 + ((l & 4) << 2) + (l & 8) + ((l & 3) << 1) + EA + 2048,
            OHB=ohb, FRo=(l & 3) * 4 + FLG,
            IXo=(((l >> 4) ^ l) & 3) << 4, IEo=(((l >> 4) ^ l) & 1) << 4,
            S0a=sel if m < 16 else 0, S1a=sel if m >= 16 else 0,
            TRA=(l & 3) * 8 + ((l >> 2) & 3) * 256 + (((l >> 2) & 3) << 6) + ((l >> 4) & 1) * 32,
            OAl=(m * 256 + h * 16) if m < 20 else 0x40000000, Z_=0)
        rows.append([d[n] for n in TABN])
    out = []
    for b in range(4):
        for l in range(64):
            out.append(".long " + ", ".join(f"{x:#x}" for x in rows[l][4*b:4*b+4]))
    img = [0] * 256
    for e_ in range(8):
        img[4 * (e_ + 1) + (e_ >> 1)] = 0x3f80 << (16 * (e_ & 1))
    for i in range(128, 256): img[i] = 0xffffffff
    for i in range(0, 256, 4):
        out.append(".long " + ", ".join(f"{x:#x}" for x in img[i:i+4]))
    for i in range(64):
        out.append(".long 0xffff, 0xffffffff, 0xffff, 0xffffffff")
    return "\n".join(out) + "\n"

def lst(A, k, variant, r):
    if OPT.get("ls") and variant == "fast" and k == OPT["ls"] - 1: A(f"s_memtime s[{r}:{r+1}]")

def u_load(A, i):
    off = (i >> 3) * 32768 + (i & 7) * 1024
    A(f"s_add_u32 s22, s{sUoff}, {off & ~4095}")
    A(f"buffer_load_dwordx4 {vr(v.U1+4*i,4)}, v{v.t3}, {sr(sWS,4)}, s22 offen offset:{off & 4095}")

def chain(A, k, variant, exit_label, ool, pre=False, mid=None):
    kk = k if k < 3 else -1
    safe = variant == "safe"
    EK = OPT.get("ek", 3)
    if not pre:
        A("s_setprio 2")
        A(f"s_add_u32 s{sTile}, s{sTile}, 1")
        if safe:
            A(f"s_cmp_ge_u32 s{sTile}, s{sTg}")
            A(f"s_cbranch_scc1 {exit_label}")
        lsw = A.label("sw"); lswb = A.label("swb")
        A(f"s_cmp_eq_u32 s{sTile}, s{sTsw}")
        A(f"s_cbranch_scc1 {lsw}")
        A(f"{lswb}:")
        ool.append(f"{lsw}:\nv_mov_b32 v{v.QF}, v{v.QS+2}\nv_mov_b32 v{v.QF+1}, v{v.QS+3}\ns_branch {lswb}")
        lst(A, k, variant, 10)
    A("s_waitcnt lgkmcnt(0)")
    if k % 2 == 0:
        A(mfma(v.ACC, v.MSG, v.aggF))
    n = 4 + (1 if ((k - 1) & 3) == EK or ((k - 2) & 3) == EK else 0)
    if EK == 3 and k == 1: n = 2
    if pre: n = 4 if EK == 3 else 5
    k2_ = kk + 2
    eread = f"ds_read_b128 {vr(v.eF,4)}, v{v.E_} offset:{3072 + (k2_ >> 1) * 3072 + (k2_ & 1) * 1024}"
    if k == 2: A(f"ds_read_b32 v{v.FV}, v{v.FR}")
    A(mfma(v.T, v.eF, v.W3F, "0"))
    if k != 2: A(eread)
    A(mfma(v.T, v.ohF, v.QF))
    A(f"ds_read_b128 {vr(v.ohF,4)}, v{v.OHA}")
    A(f"ds_read_u8 v{v.OHA}, v{v.R2} offset:{(kk + 3) * 256}")
    A(mfma(v.T, v.pF0, v.SEL0))
    if k == 2:
        A("s_waitcnt lgkmcnt(2)")
        A(f"v_cmp_gt_u32 vcc, v{v.PROG}, v{v.FV}")
    A(mfma(v.T, v.pF1, v.SEL1))
    A(f"s_setprio 0")
    lst(A, k, variant, 14)
    n_after = 2
    if k == 2:
        lw = A.label("fw"); lb = A.label("fb")
        if safe:
            A(f"s_cmp_lg_u32 s{sNoE}, 0")
            A(f"s_cbranch_scc1 {lb}")
        A(f"s_cbranch_vccnz {lw}")
        A(f"{lb}:")
        A(eread)
        ool.append(f"{lw}:\nds_read_b32 v{v.FV}, v{v.FR}\ns_waitcnt lgkmcnt(0)\nv_cmp_gt_u32 vcc, v{v.PROG}, v{v.FV}\ns_cbranch_vccnz {lw}\ns_branch {lb}")
        n_after += 2
    if mid: mid()
    A(f"s_waitcnt vmcnt({n})" + (" lgkmcnt(0)" if pre else ""))
    if k == 1:
        l1 = A.label("nf")
        if safe:
            A(f"s_cmp_lg_u32 s{sNoE}, 0")
            A(f"s_cbranch_scc1 {l1}")
        A("s_mov_b64 exec, 1")
        A(f"ds_write_b32 v{v.FW}, v{v.PROG}")
        A("s_mov_b64 exec, -1")
        if safe: A(f"{l1}:")
        else: n_after += 3
    if k == EK:
        if safe:
            A(f"s_cmp_lg_u32 s{sNoE}, 0")
            A(f"s_cselect_b32 s{sEdst}, s{sElim}, s{sEdst}")
        A(f"s_cmp_lt_u32 s{sEdst}, s{sElim}")
        A(f"s_cselect_b32 m0, s{sEdst}, {JUNK}")
        A(f"s_add_u32 s{sEdst}, s{sEdst}, 6144")
        A(f"buffer_load_dwordx4 {P(v.IE)}, {sr(sE,4)}, 0 idxen offen lds")
        n_after += 4
    A(f"s_add_u32 m0, s{sRing}, {((k + 1) & 3) * 2048}")
    A(f"ds_read_b128 {vr(v.pF0,4)}, v{v.P0} offset:{((k + 2) & 3) * 2048}")
    A(f"buffer_load_dwordx4 {P(v.IX0)}, {sr(sP,4)}, 0 idxen offen lds")
    A(f"s_add_u32 m0, s{sRing}, {((k + 1) & 3) * 2048 + 1024}")
    A(f"ds_read_b128 {vr(v.pF1,4)}, v{v.P1} offset:{((k + 2) & 3) * 2048}")
    A(f"buffer_load_dwordx4 {P(v.IX1)}, {sr(sP,4)}, 0 idxen offen lds")
    A(f"ds_read_u16 v{v.IX0}, v{v.R1} offset:{(kk + 6) * 256}")
    A(f"ds_read_u16 v{v.IX1}, v{v.R1} offset:{(kk + 6) * 256 + 64}")
    n_after += 8
    if k % 2 == 1 and not pre:
        A(f"ds_read_b128 {vr(v.aggF,4)}, v{v.E_} offset:{(1 if k == 1 else 0) * 3072 + 2048}")
        n_after += 1
    if k == EK - 1:
        A(f"ds_read_b32 v{v.IE}, v{v.Re} offset:{2 * 1024}")
        n_after += 1
    if not safe and not pre:
        lv = A.label("uv"); lvb = A.label("vb")
        A(f"s_sub_u32 s23, s{sTile}, s{sUT}")
        A(f"s_cmp_lt_u32 s23, 8")
        A(f"s_cbranch_scc1 {lv}")
        A(f"{lvb}:")
        n_after += 3
        B = Asm()
        B(f"{lv}:")
        B(f"s_cmp_ge_u32 s23, 4")
        B(f"s_cbranch_scc1 {lv}x")
        u_load(B, 2*k); u_load(B, 2*k+1)
        B(f"s_branch {lvb}")
        B(f"{lv}x:")
        u_load(B, 8+2*k); u_load(B, 8+2*k+1)
        B(f"s_branch {lvb}")
        ool.append(B.text())
    if n_after < 12:
        A(f"s_nop {12 - n_after - 1}")
    if not safe and not pre:
        A(f"s_cmp_eq_u32 s{sTile}, s{sT1}")
        A(f"s_cbranch_scc1 K2_LAST{(k + 1) & 1}")
    lst(A, k, variant, 12)

def stretch(A, k, variant, ool, last=False):
    T = v.T; E = v.E
    order = [0, 1, 8, 9, 2, 3, 10, 11, 4, 5, 12, 13, 6, 7, 14, 15]
    lst(A, k, variant, 94)
    for i, r in enumerate(order):
        if last and i % 3 == 0:
            A(mfma(v.T1, v.U1 + 4*(i//3), v.XF + 4*(i//3), "0" if i == 0 else None))
        A(f"v_exp_f32 v{E+r}, v{T+r}")
    if variant != "safe":
        for r in range(4):
            A(f"v_rcp_f32 v{v.RS+r}, v{v.DS+r}")
    if last: k = k & 1 | 4
    if k == 3:
        for s in (f"v_add_u32 v{v.E_}, 6144, v{v.E_}", f"v_add_u32 v{v.R1}, 1024, v{v.R1}",
                  f"v_add_u32 v{v.R2}, 1024, v{v.R2}", f"v_add_u32 v{v.Re}, 1024, v{v.Re}"): A(s)
    if k == 0:
        A(f"v_add_u32 v{v.PROG}, 1, v{v.PROG}")
    lst(A, k, variant, 4)
    A("s_setprio 1")
    mo = v.MSG + 2 * ((k + 1) % 2)
    if variant != "safe":
        A(f"v_pk_fma_f32 {P(v.S)}, {P(v.DS)}, {P(v.DS+2)}, {P(v.S)}")
        A(f"v_pk_mul_f32 {P(v.NS)}, {P(v.NS)}, {P(v.RS)}")
        A(f"v_pk_mul_f32 {P(v.NS+2)}, {P(v.NS+2)}, {P(v.RS+2)}")
    A(f"v_cvt_pk_bf16_f32 v{mo}, v{v.NS}, v{v.NS+1}")
    A(f"v_cvt_pk_bf16_f32 v{mo+1}, v{v.NS+2}, v{v.NS+3}")
    lst(A, k, variant, 6)
    if variant != "safe":
        ops = []
        for gi, g in enumerate((0, 8)):
            t, e = T + g, E + g
            o = [f"v_pk_add_f32 {P(e)}, {P(e)}, {P(v.ONE)}"]
            for u in (1, 2, 3):
                o.append(f"v_pk_fma_f32 {P(t)}, {P(t)}, {P(e+2*u)}, {P(t)}")
                o.append(f"v_pk_fma_f32 {P(t if u < 3 else v.NS+2*gi)}, {P(t+2*u)}, {P(e)}, {P(t)}")
                o.append(f"v_pk_fma_f32 {P(e if u < 3 else v.DS+2*gi)}, {P(e)}, {P(e+2*u)}, {P(e)}")
            ops.append(o)
        for a, b in zip(*ops):
            A(a); A(b)
    else:
        for r in range(0, 16, 2):
            A(f"v_pk_add_f32 {P(E+r)}, {P(E+r)}, {P(v.ONE)}")
        for r in range(16):
            A(f"v_rcp_f32 v{E+r}, v{E+r}")
        A("s_nop 0")
        for u in range(4):
            for gi, g in enumerate((0, 8)):
                if u == 0:
                    A(f"v_pk_mul_f32 {P(T+g)}, {P(T+g)}, {P(E+g)}")
                else:
                    A(f"v_pk_fma_f32 {P(T+g if u < 3 else v.NS+2*gi)}, {P(T+g+2*u)}, {P(E+g+2*u)}, {P(T+g)}")
    lst(A, k, variant, 8)

def gen(opt):
    OPT.clear(); OPT.update(opt)
    A = Asm()
    L = v.lane
    ST = opt.get("stamp", 0)
    PTS = opt.get("pts", "").split(",") if opt.get("pts") else []
    PSL = [44, 46, 48, 50, 96]
    def pt(name):
        if name in PTS:
            r = PSL[PTS.index(name)]
            A(f"s_memtime s[{r}:{r+1}]")
    def stamp(r, real=False):
        if PTS and r == 96: return
        if opt.get("ls") and r in (94, 4, 6, 8, 10, 12, 14): return
        if ST: A(f"s_mem{'real' if real else ''}time s[{r}:{r+1}]")
    ool = []
    STF = opt.get("stf", "sc0_sc1").replace("_", " ")
    WV = v.eF; XV = v.eF + 1; H = v.eF + 2; TRA = v.TRA
    A(f"{KNAME}:")
    stamp(90); stamp(92, True)
    A(f"s_cmp_ge_u32 s2, {NWG}")
    A("s_cbranch_scc1 K_END")
    load_ptrs(A)
    A(f"""
    v_lshrrev_b32 v{v.t0}, 6, v0
    v_and_b32 v{L}, 63, v0
    v_readfirstlane_b32 s3, v{v.t0}
    v_lshlrev_b32 v{v.t3}, 4, v{L}
    s_getpc_b64 {sr(sTB,2)}
    s_add_u32 s{sTB}, s{sTB}, K_TABLE@rel32@lo+4
    s_addc_u32 s{sTB+1}, s{sTB+1}, K_TABLE@rel32@hi+12
    global_load_dwordx4 {vr(v.SEL1,4)}, v{v.t3}, {sr(sTB,2)} offset:3072
    global_load_dwordx4 {vr(v.TAB,4)}, v{v.t3}, {sr(sTB,2)}
    global_load_dwordx4 {vr(v.TAB+4,4)}, v{v.t3}, {sr(sTB,2)} offset:1024
    global_load_dwordx4 {vr(v.SEL0,4)}, v{v.t3}, {sr(sTB,2)} offset:2048
    v_lshlrev_b32 v{v.t2}, 4, v0
    v_lshrrev_b32 v{WV}, 2, v{v.t3}
    v_lshrrev_b32 v{XV}, 4, v{v.t2}
    v_and_b32 v{WV}, 0xc0, v{WV}
    v_and_b32 v{XV}, 0xf0, v{XV}
    v_xor_b32 v{WV}, v{WV}, v{v.t3}
    v_xor_b32 v{XV}, v{XV}, v{v.t2}
    s_lshr_b32 s{sG}, s3, 2
    s_and_b32 s{sC}, s3, 3
    s_cmp_lt_u32 s2, 8
    s_cbranch_scc1 K_LOW
    K_LOWB:
    s_sub_u32 s23, s2, 3
    s_lshr_b32 s{sSl}, s23, 3
    s_cmp_ge_u32 s23, {NCHUNK}
    s_cselect_b32 s{sRole}, {1 - opt.get("r1f", 0)}, {opt.get("r1f", 0)}
    s_cselect_b32 s22, {NCHUNK}, 0
    s_sub_u32 s{sPair}, s23, s22
    s_lshl_b32 s2, s{sPair}, 1
    s_add_u32 s2, s2, s{sRole}
    s_mul_i32 s{sUT}, s{sPair}, {80*256}
    s_sub_u32 s{sX+2}, {N*256}, s{sUT}
    s_mov_b32 s{sX+3}, 0x00020000
    s_lshl_b32 s76, s3, 10
    s_add_u32 s77, s3, s{sSl}
    s_and_b32 s77, s77, {7 if opt.get("rot", 1) else 0}
    {"" if opt.get("rot", 1) else "s_mov_b32 s77, s3"}
    s_lshl_b32 s77, s77, 12
    s_cmp_eq_u32 s{sRole}, 0
    s_waitcnt lgkmcnt(0)
    """)
    def wsadj():
        if opt.get("wsoff"):
            A(f"s_add_u32 s{PWS}, s{PWS}, {opt['wsoff'] << 20}")
            A(f"s_addc_u32 s{PWS+1}, s{PWS+1}, 0")
    A(f"s_mov_b32 s22, {WS_TAG}")
    A(f"s_load_dword s{sTag}, s[{PWS}:{PWS+1}], s22")
    A("s_cbranch_scc0 K_GEMM")
    ool.append(f"""K_LOW:
    s_cmp_lg_u32 s3, 7
    s_cbranch_scc1 K_LOW2
    s_getpc_b64 s[22:23]
    K_PC:
    s_sub_u32 s22, s22, K_PC-{KNAME}
    s_subb_u32 s23, s23, 0
    v_lshlrev_b32 v{v.JK}, 7, v{L}
    v_add_u32 v{v.JK2}, 0x2000, v{v.JK}
    v_min_u32 v{v.JK2}, K_CODE_END-{KNAME}-4, v{v.JK2}
    global_load_dword v{v.PROG}, v{v.JK}, s[22:23]
    global_load_dword v{v.FV}, v{v.JK2}, s[22:23]
    K_LOW2:
    s_cmp_lt_u32 s2, 3
    s_cbranch_scc1 K_SPECIAL
    s_branch K_LOWB""")
    def xdma(n):
        A(f"""
        s_add_u32 s{sX}, s{PX}, s{sUT}
        s_addc_u32 s{sX+1}, s{PX+1}, 0
        s_add_u32 m0, s76, {L_X}
        s_movk_i32 s23, 0x2000
        buffer_load_dwordx4 v{XV}, {sr(sX,4)}, 0 offen lds
        s_add_u32 m0, s76, {L_X + 8192}
        s_movk_i32 s22, 0x4000
        buffer_load_dwordx4 v{XV}, {sr(sX,4)}, s23 offen lds
        """)
        if n == 3:
            A(f"s_add_u32 m0, s76, {L_X + 16384}")
            A("s_nop 0")
            A(f"buffer_load_dwordx4 v{XV}, {sr(sX,4)}, s22 offen lds")
    def wdma(soff, lds):
        A(f"s_add_u32 m0, s77, {lds}")
        if soff: A(f"s_add_u32 s22, s77, {soff}")
        else: A("s_nop 0")
        for q in range(4):
            A(f"buffer_load_dwordx4 v{WV}, {sr(sWm,4)}, s{22 if soff else 77} offen offset:{q*1024} lds")
    def w23dma(w2=True):
        if w2: wdma(32768, L_W2)
        A(f"s_add_u32 m0, s76, {L_W3}")
        A(f"s_add_u32 s22, s76, 65536")
        A(f"buffer_load_dwordx4 v{WV}, {sr(sWm,4)}, s22 offen lds")
    def sconsts():
        srd(A, sP, PWS, 0 if opt.get('nop') else N, stride=256)
        srd(A, sE, PE, 0 if opt.get('noe') else E, stride=32)
        srd(A, sOUT, POUT, N * 256)
        A(f"""
        s_mov_b32 s{sMode}, 0
        s_mov_b32 s{sNoE}, 0
        s_movk_i32 s{sK3F}, 0x3fff
        s_lshl_b32 s{sRing}, s3, 13
        s_lshr_b32 s22, s{sC}, 1
        s_mul_i32 s22, s22, 3072
        s_bfe_u32 s23, s{sC}, 0x10000
        s_lshl_b32 s23, s23, 10
        s_add_u32 s22, s22, s23
        s_mul_i32 s{sElim}, s{sG}, {GEA}
        s_add_u32 s{sE0}, s{sElim}, s22
        s_add_u32 s{sE0}, s{sE0}, {EA}
        s_and_b32 s{sRel}, s2, 63
        s_lshl_b32 s{sRel}, s{sRel}, 7
        s_add_u32 s{sRel}, s{sRel}, {WS_FLAG + 0x4000}
        """)
    def vconsts():
        A(f"""
        v_add_u32 v{v.P0}, s{sRing}, v{v.P0}
        v_add_u32 v{v.E_}, s{sElim}, v{v.E_}
        s_mul_i32 s22, s{sG}, {GSL*8}
        v_xor_b32 v{v.P1}, 16, v{v.P0}
        v_add_u32 v{v.R1}, s22, v{v.R1}
        v_add_u32 v{v.R2}, s22, v{v.R2}
        s_lshl_b32 s23, s{sC}, 8
        s_add_u32 s22, s22, s23
        v_add_u32 v{v.Re}, s22, v{v.Re}
        s_lshl_b32 s22, s{sC}, 6
        v_or_b32 v{v.IX0+1}, s22, v{v.IXo}
        v_or_b32 v{v.IX1+1}, s22, v{v.IXo}
        v_xor_b32 v{TRA}, s22, v{TRA}
        s_mul_i32 s23, s2, 40
        s_mul_i32 s78, s{sG}, 20
        s_add_u32 s23, s23, s78
        s_lshl_b32 s23, s23, 8
        s_add_u32 s23, s23, s22
        v_add_u32 v{v.OA}, s23, v{v.OAl}
        v_mov_b32 v{v.IE+1}, v{v.IEo}
        s_mul_i32 s22, s3, {16*CH}
        v_add_u32 v{v.EB}, s22, v{v.EB}
        s_mul_i32 s22, s3, {4*3072}
        v_add_u32 v{v.QC}, s22, v{v.QC}
        s_lshl_b32 s22, s3, 2
        v_add_u32 v{v.FW}, s22, v{v.FRo}
        s_lshl_b32 s22, s{sG}, 4
        v_add_u32 v{v.FR}, s22, v{v.FRo}
        v_lshrrev_b32 v{H}, 5, v{L}
        s_add_u32 s{sRing}, s{sRing}, {RING}
        s_add_u32 s{sElim}, s{sElim}, {EA + GEA}
        """)
    def lds_init():
        A(f"""
        s_mul_i32 s22, s3, 3072
        s_add_u32 m0, s22, {EA + 2048}
        s_brev_b32 s23, 2
        buffer_load_dwordx4 v{v.t3}, {sr(sWS,4)}, s23 offen lds
        s_add_u32 m0, s22, {EA + 2048 + 24576}
        s_cmp_lt_u32 s3, 2
        buffer_load_dwordx4 v{v.t3}, {sr(sWS,4)}, s23 offen lds
        s_cselect_b32 s78, 0, {JUNK - (EA + 2048 + 73728) - 7 * 3072}
        s_add_u32 m0, s22, {EA + 2048 + 49152}
        s_cselect_b32 s79, s22, {7 * 3072}
        buffer_load_dwordx4 v{v.t3}, {sr(sWS,4)}, s23 offen lds
        """.replace("s_cselect_b32 s78, 0, " + str(JUNK - (EA + 2048 + 73728) - 7 * 3072) + "\n", "").replace(
            f"        s_add_u32 m0, s22, {EA + 2048 + 49152}\n        s_cselect_b32 s79, s22, {7 * 3072}\n",
            f"        s_cselect_b32 s79, s22, {JUNK - (EA + 2048 + 73728)}\n        s_add_u32 m0, s22, {EA + 2048 + 49152}\n        s_lshl_b32 s22, s3, 10\n"))
        A(f"""
        s_add_u32 m0, s79, {EA + 2048 + 73728}
        s_add_u32 s78, s{sTB}, 4096
        buffer_load_dwordx4 v{v.t3}, {sr(sWS,4)}, s23 offen lds
        s_addc_u32 s79, s{sTB+1}, 0
        s_add_u32 m0, s22, {REC - 1024}
        s_cmp_eq_u32 s3, 7
        global_load_lds_dwordx4 v{v.t3}, s[78:79] offset:1024
        s_cbranch_scc1 {A.label('i7')}
        """)
        l7 = f"L_i7_{A.uid}"
        A(f"""
        s_add_u32 m0, s22, {REC + 8192 - 1024}
        s_nop 0
        global_load_lds_dwordx4 v{v.t3}, s[78:79] offset:1024
        {l7}b:
        """)
        ool.append(f"{l7}:\ns_mov_b32 m0, 0\ns_nop 0\nglobal_load_lds_dwordx4 v{v.t3}, s[78:79]\ns_branch {l7}b")
    def tagget(x):
        pass
    def tagfix():
        A(f"s_add_u32 s{sTag}, s{sTag}, 2")
        A(f"s_or_b32 s{sTag}, s{sTag}, 0x40000001")
    def xred(regs, xs, pats=("quad_perm:[1,0,3,2]", "quad_perm:[2,3,0,1]")):
        for r, x in zip(regs, xs): A(f"v_bitop3_b32 v{x}, v{r}, v{r+1}, v{r+2} bitop3:0x96")
        for r, x in zip(regs, xs): A(f"v_xor_b32 v{x}, v{x}, v{r+3}")
        for pat in pats:
            if len(xs) < 3: A(f"s_nop {2 - len(xs)}")
            for x in xs: A(f"v_xor_b32_dpp v{x}, v{x}, v{x} {pat} row_mask:0xf bank_mask:0xf")
    def tagload(lbl):
        pass
    def qaddr():
        XA = v.E; GA = v.E + 1; TN = v.E + 2
        A(f"""
        s_mul_i32 s22, s{sG}, 20
        s_mul_i32 s23, s{sRole}, 40
        s_add_u32 s22, s22, s23
        v_and_b32 v{XA}, 31, v{L}
        v_add_u32 v{XA}, s22, v{XA}
        v_xor_b32 v{GA}, v{XA}, v{H}
        v_and_b32 v{GA}, 15, v{GA}
        v_lshl_or_b32 v{XA}, v{XA}, 4, v{GA}
        s_mov_b32 s22, {L_X}
        v_lshl_add_u32 v{XA}, v{XA}, 4, s22
        v_lshl_add_u32 v{TN}, v{H}, 11, v{TRA}
        v_add_u32 v{TN}, {L_W2}, v{TN}
        """)
    def qreads():
        XA = v.E; GA = v.E + 1; TN = v.E + 2
        for s_ in range(8):
            A(f"ds_read_b64_tr_b16 {vr(v.WA+4*s_,2)}, v{TN} offset:{s_*4096}")
            A(f"ds_read_b64_tr_b16 {vr(v.WA+4*s_+2,2)}, v{TN} offset:{s_*4096+1024}")
            if s_: A(f"v_xor_b32 v{GA}, {s_*32}, v{XA}")
            A(f"ds_read_b128 {vr(v.XF+4*s_,4)}, v{GA if s_ else XA}")
        A(f"ds_read_b64_tr_b16 {vr(v.W3F,2)}, v{TN} offset:32768")
        A(f"ds_read_b64_tr_b16 {vr(v.W3F+2,2)}, v{TN} offset:33792")
    def qmfma(per=3):
        for s_ in range(8):
            A(f"s_waitcnt lgkmcnt({min(15, per*(7-s_) + 2)})")
            A(mfma(v.E, v.XF + 4*s_, v.WA + 4*s_, "0" if s_ == 0 else None))
            A(f"v_mov_b64 {P(v.ACC+2*s_)}, 0")
        A(f"""
        s_mov_b32 s72, {NEG_LOG2E:#x}
        v_cmp_gt_u32 {sr(sN40,2)}, 40, v{L}
        v_cmp_le_u32 {sr(sG1,2)}, 20, v{L}
        v_mov_b32 v{v.ONE}, 1.0
        v_mov_b32 v{v.ONE+1}, 1.0
        s_waitcnt lgkmcnt(0)
        """)
        for r in range(4):
            A(f"""
            v_lshlrev_b32 v{v.S}, 16, v{v.W3F+r}
            v_and_b32 v{v.S+1}, 0xffff0000, v{v.W3F+r}
            v_mul_f32 v{v.S}, s72, v{v.S}
            v_mul_f32 v{v.S+1}, s72, v{v.S+1}
            v_cvt_pk_bf16_f32 v{v.W3F+r}, v{v.S}, v{v.S+1}
            """)
    def post(x):
        A(f"""
        s_cmp_lg_u32 s3, 0
        s_cbranch_scc1 K_NP{x}
        v_readfirstlane_b32 s{sTag}, v{v.FV}
        s_cmp_eq_u32 s{sTag}, 0
        s_cbranch_scc1 K_TAG{x}
        K_TAGOK{x}:
        s_mov_b64 exec, 1
        buffer_store_dword v{v.FV}, off, {sr(sWS,4)}, s{sUoff} sc1
        s_mov_b64 exec, -1
        K_NP{x}:
        """)
        ool.append(f"K_TAG{x}:\nbuffer_load_dword v{v.FV}, off, {sr(sDB,4)}, 0 sc1\ns_waitcnt vmcnt(0)\nv_readfirstlane_b32 s{sTag}, v{v.FV}\ns_cmp_eq_u32 s{sTag}, 0\ns_cbranch_scc1 K_TAG{x}\ns_branch K_TAGOK{x}")
    MC = opt.get("mc", 0)
    D, S, RK, AD = v.T, v.T + 8, v.T1, v.T1 + 8
    CW = v.E
    A(f"s_mul_i32 s22, s{sPair}, {CH*4}")
    srd(A, sD, PDST, CH * 4, add="s22")
    A(f"""
    v_lshlrev_b32 v{v.t1}, 2, v0
    s_movk_i32 s23, 0x2000
    buffer_load_dwordx4 {vr(D,4)}, v{v.t2}, {sr(sD,4)}, 0 offen
    buffer_load_dword v{D+4}, v{v.t1}, {sr(sD,4)}, s23 offen
    """)
    srd(A, sS, PSRC, CH * 4, add="s22")
    A(f"""
    buffer_load_dwordx4 {vr(S,4)}, v{v.t2}, {sr(sS,4)}, 0 offen
    buffer_load_dword v{S+4}, v{v.t1}, {sr(sS,4)}, s23 offen
    v_mov_b64 {P(CW)}, -1
    v_mov_b64 {P(CW+2)}, -1
    v_mov_b32 v{CW+4}, 16
    ds_write_b128 v{v.t2}, {vr(CW,4)}
    ds_write_b128 v{v.t2}, {vr(CW,4)} offset:8192
    ds_write_b128 v{v.t2}, {vr(CW,4)} offset:16384
    ds_write_b128 v{v.t2}, {vr(CW,4)} offset:24576
    ds_write_b32 v{v.t1}, v{CW+4} offset:32768
    """)
    srd(A, sWm, PWM, 272 * 256)
    EARLY0 = opt.get("e0", 0)
    P0M = opt.get("p0", 2)
    if P0M == 1:
        xdma(2); w23dma(False)
    nb0 = 3 if P0M == 1 else 0
    srd(A, sWS, PWS, 0x10000000 if (opt.get('rw') or opt.get('dup')) else (WS_END if not ST else 0x1000000))
    PW = opt.get("pw", 0)
    PW1 = PW >= 1; PW = PW == 1
    if PW:
        A(f"""
        s_lshl_b32 s78, s{sPair}, 15
        s_add_u32 s78, s78, {WS_CELL}
        """)
        for q in range(4):
            A(f"buffer_store_dwordx4 {vr(CW,4)}, v{v.t2}, {sr(sWS,4)}, s78 offen {STF}")
            if q < 3: A("s_add_u32 s78, s78, 8192")
    if PW: nb0 += 4
    sconsts()
    A(f"""
    v_lshlrev_b32 v{CW+6}, 22, v0
    v_add_u32 v{CW+7}, 0x800, v0
    v_lshlrev_b32 v{CW+7}, 20, v{CW+7}
    v_mov_b32 v{CW+5}, 16
    s_mov_b32 s72, -10
    s_mov_b32 s73, 0x100000
    s_mov_b32 s74, 0x200000
    s_mov_b32 s75, 0x300000
    s_lshl_b32 s78, s{sPair}, 6
    v_lshrrev_b32 v{CW+10}, 2, v0
    v_and_b32 v{CW+11}, 3, v0
    v_lshlrev_b32 v{CW+11}, 4, v{CW+11}
    v_lshl_add_u32 v{CW+12}, v{CW+10}, 13, v{CW+11}
    v_mul_u32_u24 v{CW+10}, 10240, v{CW+10}
    v_add_u32 v{CW+10}, v{CW+10}, v{CW+11}
    s_movk_i32 s79, {31*16}
    s_waitcnt lgkmcnt(0)
    s_barrier
    s_add_u32 s{sTag}, s{sTag}, 2
    s_or_b32 s{sTag}, s{sTag}, 0x40000001
    s_waitcnt vmcnt({2 + nb0})
    """)
    stamp(94)
    t = CW + 8
    for j in range(5):
        A(f"""
        v_mul_u32_u24 v{AD+j}, 0xcccd, v{D+j}
        v_lshrrev_b32 v{AD+j}, 19, v{AD+j}
        v_and_b32 v{AD+j}, -4, v{AD+j}
        ds_add_rtn_u32 v{RK+j}, v{AD+j}, v{CW+5} offset:32768
        """)
    if P0M == 1:
        wdma(32768, L_W2); nb0 += 4
    if P0M == 2:
        xdma(2); w23dma(); nb0 += 7
    for j in range(5):
        A(f"v_mad_i32_i24 v{D+j}, v{AD+j}, s72, v{D+j}")
    A(f"s_waitcnt vmcnt({nb0})")
    for j in range(5):
        d = D + j
        A(f"v_lshl_or_b32 v{d}, v{d}, 14, v{S+j}")
        if j == 0: A(f"v_add_u32 v{d}, v{d}, v{CW+6}")
        elif j < 4: A(f"v_add3_u32 v{d}, v{d}, v{CW+6}, s{72+j}")
        else: A(f"v_add_u32 v{d}, v{d}, v{CW+7}")
    A("s_waitcnt lgkmcnt(0)")
    pt("rk")
    A(f"v_max3_u32 v{t}, v{RK}, v{RK+1}, v{RK+2}")
    A(f"v_max3_u32 v{t}, v{t}, v{RK+3}, v{RK+4}")
    A(f"v_cmp_le_u32 vcc, s79, v{t}")
    A("s_cbranch_vccnz K_BOVF")
    A("K_BOVB:")
    B = Asm()
    B("K_BOVF:")
    B(f"v_mov_b32 v{t}, -2")
    for j in range(5):
        B(f"v_cmp_le_u32 vcc, s79, v{RK+j}")
        B(f"v_min_u32 v{RK+j}, s79, v{RK+j}")
        B("s_nop 0")
        B(f"v_cndmask_b32 v{D+j}, v{D+j}, v{t}, vcc")
    B("s_branch K_BOVB")
    ool.append(B.text())
    for j in range(5):
        r = RK + j
        A(f"""
        v_lshrrev_b32 v{t}, 4, v{r}
        v_and_b32 v{t+1}, 0x100, v{r}
        v_and_b32 v{r}, 0x30, v{r}
        v_and_or_b32 v{r}, v{t}, 12, v{r}
        v_lshl_or_b32 v{r}, v{t+1}, 6, v{r}
        v_lshl_add_u32 v{r}, v{AD+j}, 4, v{r}
        ds_write_b32 v{r}, v{D+j}
        """)
    A(f"""
    s_add_u32 s73, s78, {128*10240}
    s_add_u32 s74, s78, {WS_CELL}
    s_add_u32 s75, s74, {128*8192}
    s_movk_i32 s22, {1000 - 512}
    v_cmp_gt_u32 s[70:71], s22, v0
    s_not_b32 s22, s{sTag}
    s_waitcnt lgkmcnt(0)
    s_barrier
    """)
    pt("cb")
    X = v.T1
    A(f"""
    ds_read_b128 {vr(v.T,4)}, v{v.t2}
    ds_read_b128 {vr(v.T+4,4)}, v{v.t2} offset:8192
    ds_read_b128 {vr(v.T+8,4)}, v{v.t2} offset:16384
    ds_read_b128 {vr(v.T+12,4)}, v{v.t2} offset:24576
    s_waitcnt lgkmcnt(0)
    """)
    xred([v.T + 4*q for q in range(4)], [X + q for q in range(4)])
    A(f"""
    v_mov_b32_dpp v{X+4}, v{v.T+8} quad_perm:[0,0,0,0] row_mask:0xf bank_mask:0xf
    v_mov_b32_dpp v{X+5}, v{v.T+12} quad_perm:[0,0,0,0] row_mask:0xf bank_mask:0xf
    v_cmp_ne_u32 s[68:69], -1, v{X+4}
    v_cmp_ne_u32 vcc, -1, v{X+5}
    s_mov_b32 exec_lo, 0x11111111
    s_mov_b32 exec_hi, 0x11111111
    s_and_b64 s[70:71], s[70:71], vcc
    v_xor_b32 v{v.T}, s22, v{X}
    v_xor_b32 v{v.T+4}, s22, v{X+1}
    v_cndmask_b32 v{X+4}, 0, 1, s[68:69]
    v_cndmask_b32 v{X+5}, 0, 1, vcc
    v_xor_b32 v{v.T}, v{v.T}, v{X+4}
    v_xor_b32 v{v.T+4}, v{v.T+4}, v{X+5}
    s_mov_b32 exec_lo, 0x88888888
    s_mov_b32 exec_hi, 0x88888888
    v_xor_b32 v{v.T+11}, s22, v{X+2}
    v_xor_b32 v{v.T+15}, s22, v{X+3}
    s_mov_b64 exec, s[68:69]
    buffer_store_dwordx4 {vr(v.T+8,4)}, v{CW+12}, {sr(sWS,4)}, s74 offen {STF}
    s_mov_b64 exec, s[70:71]
    buffer_store_dwordx4 {vr(v.T+12,4)}, v{CW+12}, {sr(sWS,4)}, s75 offen {STF}
    s_mov_b64 exec, -1
    buffer_store_dwordx4 {vr(v.T,4)}, v{CW+10}, {sr(sOUT,4)}, s78 offen {STF}
    buffer_store_dwordx4 {vr(v.T+4,4)}, v{CW+10}, {sr(sOUT,4)}, s73 offen {STF}
    """)
    stamp(4)
    vconsts()
    A("s_waitcnt vmcnt(2)")
    A("s_branch K_COM0")
    A("K_GEMM:")
    pt("k0")
    if opt.get("wfirst"):
        srd(A, sWm, PWM, 272 * 256)
        wdma(0, 0)
        xdma(3)
    else:
        xdma(3)
        srd(A, sWm, PWM, 272 * 256)
        wdma(0, 0)
    G1M = opt.get("g1", 2)
    pt("g0")
    if G1M == 0: w23dma()
    pt("g1")
    srd(A, sWS, PWS, 0x10000000 if (opt.get('rw') or opt.get('dup')) else (WS_END if not ST else 0x1000000))
    sconsts()
    if opt.get("tlb"):
        A(f"""
        s_cmp_lg_u32 s3, 7
        s_cbranch_scc1 K_NOTLB
        v_lshlrev_b32 v{v.JK}, 21, v{L}
        v_lshlrev_b32 v{v.JK2}, 16, v{L}
        s_mov_b32 s22, 0x7ff80
        buffer_load_dword v{v.PROG}, v{v.JK}, {sr(sWS,4)}, s22 offen
        {f"buffer_load_dword v{v.LA}, v{v.JK2}, {sr(sE,4)}, 0 idxen" if opt.get("tlb") >= 2 else ""}
        {f"buffer_load_dword v{v.OHA}, v{v.JK}, {sr(sOUT,4)}, 0 offen" if opt.get("tlb") >= 2 else ""}
        K_NOTLB:
        """)
    XA = v.E; PA = v.E + 1; GA = v.E + 2; TN = v.E + 3
    A(f"""
    s_lshl_b32 s{sPair}, s{sPair}, 4
    s_add_u32 s{sPair}, s{sPair}, {WS_FLAG + 0x2000}
    s_mov_b32 s72, {NEG_LOG2E:#x}
    s_add_u32 s73, s{sUT}, 0x2000
    s_add_u32 s74, s{sUT}, 0x4000
    s_cmp_ge_u32 s3, 4
    s_cselect_b32 s74, 0x40000000, s74
    """)
    A(f"""
    v_add_u32 v{v.JK3}, {L_BN}, v{v.t2}
    v_and_b32 v{XA}, 31, v{L}
    s_lshl_b32 s22, s{sG}, 5
    v_add_u32 v{XA}, s22, v{XA}
    s_waitcnt vmcnt({(12 if G1M == 0 else 7) })
    """)
    pt("g2")
    vconsts()
    A(f"""
    v_lshl_add_u32 v{TN}, v{H}, 11, v{TRA}
    s_lshl_b32 s22, s{sC}, 2
    v_lshl_add_u32 v{PA}, v{H}, 1, s22
    v_xor_b32 v{PA}, v{PA}, v{XA}
    v_and_b32 v{PA}, 15, v{PA}
    v_lshl_or_b32 v{PA}, v{XA}, 4, v{PA}
    s_mov_b32 s22, {L_BN}
    v_lshl_add_u32 v{PA}, v{PA}, 4, s22
    v_xor_b32 v{GA}, v{H}, v{XA}
    v_and_b32 v{GA}, 15, v{GA}
    v_lshl_or_b32 v{XA}, v{XA}, 4, v{GA}
    s_mov_b32 s22, {L_X}
    v_lshl_add_u32 v{XA}, v{XA}, 4, s22
    """)
    for s_ in range(1, 8):
        A(f"v_xor_b32 v{v.E+8+s_}, {s_*32}, v{XA}")
    pt("g3")
    if "gx" in PTS:
        A("s_waitcnt vmcnt(4)")
        pt("gx")
        A("s_waitcnt vmcnt(0)")
        pt("gw")
    if G1M == 1: w23dma()
    tagload("")
    A("s_waitcnt lgkmcnt(0)")
    tagfix()
    if PW1 and opt.get("w23e"): w23dma()
    if PW1: A("s_barrier")
    if PW1:
        A(f"""
        v_mov_b64 {P(v.T)}, 0
        v_mov_b64 {P(v.T+2)}, 0
        buffer_store_dwordx4 {vr(v.T,4)}, v{XV}, {sr(sWS,4)}, s{sUT} offen {STF}
        buffer_store_dwordx4 {vr(v.T,4)}, v{XV}, {sr(sWS,4)}, s73 offen {STF}
        buffer_store_dwordx4 {vr(v.T,4)}, v{XV}, {sr(sWS,4)}, s74 offen {STF}
        s_mov_b64 exec, 1
        buffer_store_dword v{v.T}, off, {sr(sWS,4)}, s{sPair} sc1
        s_mov_b64 exec, -1
        """)
    A(f"s_waitcnt vmcnt({(4 if PW1 else 0) + (5 if opt.get('w23e') else 0)})")
    A("s_barrier")
    stamp(94)
    if opt.get("tst"):
        sd = sOUT if opt["tst"] == "out" else sWS
        add = {"out": 0, "ws": 0, "ws2": 0x900000}[opt["tst"]]
        pt("t0")
        for r in (sUT, 73, 74):
            A(f"s_add_u32 s22, s{r}, {add}")
            A(f"buffer_store_dwordx4 {vr(v.T,4)}, v{XV}, {sr(sd,4)}, s22 offen {STF}")
        A("s_waitcnt vmcnt(0)")
        pt("t1")
    for s_ in range(8):
        A(f"ds_read_b64_tr_b16 {vr(v.WA+4*s_,2)}, v{TN} offset:{s_*4096}")
        A(f"ds_read_b64_tr_b16 {vr(v.WA+4*s_+2,2)}, v{TN} offset:{s_*4096+1024}")
        A(f"ds_read_b128 {vr(v.XF+4*s_,4)}, v{v.E+8+s_ if s_ else XA}")
    if G1M == 2 and not opt.get("w23e"): w23dma()
    A(f"s_cmp_lg_u32 s{sG}, 0")
    A("s_cbranch_scc1 K_G1")
    for s_ in range(8):
        A(f"ds_read_b128 {vr(v.U2+4*s_,4)}, v{v.E+8+s_ if s_ else XA} offset:16384")
    for s_ in range(8):
        A(f"s_waitcnt lgkmcnt({min(15, 3*(7-s_) + 8)})")
        A(mfma(v.T, v.WA + 4*s_, v.XF + 4*s_, "0" if s_ == 0 else None))
    for s_ in range(8):
        A(f"s_waitcnt lgkmcnt({7-s_})")
        A(mfma(v.T1, v.WA + 4*s_, v.U2 + 4*s_, "0" if s_ == 0 else None))
    def pout(acc, off, pk):
        for r in range(0, 16, 2):
            if pk:
                A(f"v_pk_mul_f32 {P(acc+r)}, {P(acc+r)}, s[72:73] op_sel_hi:[1,0]")
            else:
                A(f"v_mul_f32 v{acc+r}, s72, v{acc+r}")
                A(f"v_mul_f32 v{acc+r+1}, s72, v{acc+r+1}")
        for r in range(0, 16, 2):
            A(f"v_cvt_pk_bf16_f32 v{acc+r//2}, v{acc+r}, v{acc+r+1}")
        A(f"ds_write_b128 v{PA}, {vr(acc,4)} offset:{off}")
        A(f"ds_write_b128 v{GA}, {vr(acc+4,4)} offset:{off}")
    A(f"v_xor_b32 v{GA}, 16, v{PA}")
    pout(v.T, 0, False)
    pout(v.T1, 16384, True)
    A("s_branch K_G3")
    A("K_G1:")
    for s_ in range(8):
        A(f"s_waitcnt lgkmcnt({min(15, 3*(7-s_))})")
        A(mfma(v.T, v.WA + 4*s_, v.XF + 4*s_, "0" if s_ == 0 else None))
    A(f"v_xor_b32 v{GA}, 16, v{PA}")
    A("s_nop 10")
    pout(v.T, 0, False)
    A("K_G3:")
    pt("g4")
    A(f"""
    s_waitcnt lgkmcnt(0)
    s_barrier
    ds_read_b128 {vr(v.T,4)}, v{v.JK3}
    ds_read_b128 {vr(v.T+4,4)}, v{v.JK3} offset:8192
    ds_read_b128 {vr(v.T+8,4)}, v{v.JK3} offset:16384
    s_waitcnt lgkmcnt(2)
    """)

    A(f"""
    buffer_store_dwordx4 {vr(v.T,4)}, v{XV}, {sr(sWS,4)}, s{sUT} offen {STF}
    s_waitcnt lgkmcnt(1)
    buffer_store_dwordx4 {vr(v.T+4,4)}, v{XV}, {sr(sWS,4)}, s73 offen {STF}
    s_waitcnt lgkmcnt(0)
    buffer_store_dwordx4 {vr(v.T+8,4)}, v{XV}, {sr(sWS,4)}, s74 offen {STF}
    """)
    stamp(4)
    if G1M == 3:
        w23dma()
        qaddr()
        A("s_barrier")
        lds_init()
        A("s_waitcnt vmcnt(11)")
        A("s_barrier")
        pt("p1")
        A("s_cmp_eq_u32 s3, 0")
        A("s_cbranch_scc1 K2_B1")
        A("s_waitcnt vmcnt(6)")
        A("K2_B5:")
        A("s_barrier")
        qreads()
        qmfma()
        stamp(6)
        A("s_branch K_COMMON")
    A("s_waitcnt vmcnt(3)")
    A("K_COM0:")
    qaddr()
    A("s_barrier")
    pt("c1")
    qreads()
    lds_init()
    pt("c2")
    qmfma()
    stamp(6)
    A("K_COMMON:")
    pt("c3")
    for r in range(0, 12, 2):
        A(f"v_pk_mul_f32 {P(v.E+r)}, {P(v.E+r)}, s[72:73] op_sel_hi:[1,0]")
    A(f"""
    v_cvt_pk_bf16_f32 v{v.QS}, v{v.E}, v{v.E+1}
    v_cvt_pk_bf16_f32 v{v.QS+1}, v{v.E+2}, v{v.E+3}
    v_cvt_pk_bf16_f32 v{v.QF+2}, v{v.E+4}, v{v.E+5}
    v_cvt_pk_bf16_f32 v{v.QF+3}, v{v.E+6}, v{v.E+7}
    v_cvt_pk_bf16_f32 v{v.QS+2}, v{v.E+8}, v{v.E+9}
    v_cvt_pk_bf16_f32 v{v.QS+3}, v{v.E+10}, v{v.E+11}
    s_lshl_b32 s{sUoff}, s{sC}, 13
    s_add_u32 s{sUoff}, s{sUoff}, {WS_U}
    """)
    def round_regs():
        A(f"""
        v_mov_b32 v{v.TPa+1}, v{v.IX0+1}
        v_mov_b32 v{v.TPb+1}, v{v.IX0+1}
        v_mov_b32 v{v.IEb+1}, v{v.IE+1}
        v_mov_b32 v{v.aggF}, 1
        v_mov_b64 {P(v.REC)}, -1
        v_mov_b64 {P(v.REC+2)}, -1
        v_mov_b64 {P(v.REC+4)}, -1
        v_mov_b64 {P(v.REC+6)}, -1
        """)
    round_regs()
    A(f"""
    s_cmp_eq_u32 s{sRole}, 0
    s_cbranch_scc1 K2_B3
    """)
    if G1M == 2:
        A(f"""
        s_waitcnt vmcnt(6)
        s_barrier
        s_cmp_eq_u32 s3, 0
        s_cbranch_scc1 K2_B1
        """)
    A("K2_B2:")
    stamp(8)
    A(f"""
    K2_CELLS:
    s_mul_i32 s22, s2, 10240
    s_lshl_b32 s23, s2, 13
    s_add_u32 s23, s23, {WS_CELL}
    s_movk_i32 s76, 500
    v_cmp_gt_u32 s[74:75], s76, v0
    s_and_b32 s72, s74, 0x11111111
    s_and_b32 s73, s75, 0x11111111
    s_mov_b64 s[70:71], s[74:75]
    """)
    stamp(10)
    A(f"""
    K_POLL:
    s_mov_b64 exec, s[74:75]
    buffer_load_dwordx4 {vr(v.REC,4)}, v{v.t2}, {sr(sOUT,4)}, s22 offen sc1
    s_mov_b64 exec, -1
    buffer_load_dword v{v.JK2}, off, {sr(sWS,4)}, s{sRel} sc1
    s_waitcnt vmcnt(0)
    """)
    xred([v.REC], [v.NS])
    A(f"""
    v_xor_b32 v{v.NS}, s{sTag}, v{v.NS}
    v_cmp_lt_u32 vcc, 1, v{v.NS}
    s_and_b64 s[74:75], s[74:75], vcc
    s_cbranch_scc1 K_POLL2
    v_cmp_eq_u32 vcc, 1, v{v.NS}
    s_and_b64 s[76:77], s[70:71], vcc
    s_mov_b64 exec, s[76:77]
    buffer_load_dwordx4 {vr(v.REC+4,4)}, v{v.t2}, {sr(sWS,4)}, s23 offen sc1
    s_mov_b64 exec, s[72:73]
    v_mov_b32 v{v.REC}, -1
    s_mov_b64 exec, -1
    """)
    A(f"""
    s_cmp_lg_u32 s{sMode}, 0
    s_barrier
    s_cbranch_scc1 K2_COUNT
    ds_read_b128 {vr(v.SEL0,4)}, v{v.S0a}
    ds_read_b128 {vr(v.SEL1,4)}, v{v.S1a}
    K2_COUNT:
    """)
    ool.append(f"K2_B1:\nv_mov_b32 v{v.FV}, s{sTag}\ns_mov_b64 exec, 1\nbuffer_store_dword v{v.FV}, off, {sr(sWS,4)}, s{sPair} sc1\ns_mov_b64 exec, -1\n{'s_waitcnt vmcnt(7)' if G1M == 3 else ''}\ns_branch {'K2_B5' if G1M == 3 else 'K2_B2'}")
    ool.append(f"K2_B3:\ns_sleep {opt.get('isl', 8)}\ns_branch K2_B2")
    ool.append(f"K_POLL2:\ns_sleep {opt.get('slp', 12)}\ns_branch K_POLL")
    stamp(12)
    ET = opt.get("et", 5)
    MAIN = [1, 0, 2, 3]; RARE = [4, 5, 6, 7]
    W0 = {j: v.W0 + 2 * j for j in MAIN}
    for j in MAIN:
        A(f"""
        v_cmp_gt_u32 {sr(sM+2*j,2)}, -2, v{v.REC+j}
        v_lshrrev_b32 v{v.AD+j}, 12, v{v.REC+j}
        v_and_b32 v{v.AD+j}, 0xfc, v{v.AD+j}
        s_mov_b64 exec, {sr(sM+2*j,2)}
        ds_add_rtn_u32 v{v.RANK+j}, v{v.AD+j}, v{v.aggF} offset:{CNT}
        s_mov_b64 exec, -1
        v_lshrrev_b32 v{W0[j]+1}, 20, v{v.REC+j}
        v_add_u32 v{W0[j]+1}, v{W0[j]+1}, v{v.EB}
        """)
    A("s_cmp_lg_u64 s[76:77], 0")
    A("s_cbranch_scc1 K2_CR")
    A("K2_CRB:")
    A2 = A
    B = Asm()
    B("K2_CR:")
    B("s_mov_b64 s[74:75], s[76:77]")
    B("K2_CR1:")
    B("s_waitcnt vmcnt(0)")
    B(f"""
    v_bitop3_b32 v{v.NS}, v{v.REC+4}, v{v.REC+5}, v{v.REC+6} bitop3:0x96
    v_xor_b32 v{v.NS}, v{v.NS}, v{v.REC+7}
    s_nop 1
    v_xor_b32_dpp v{v.NS}, v{v.NS}, v{v.NS} quad_perm:[1,0,3,2] row_mask:0xf bank_mask:0xf
    s_nop 1
    v_xor_b32_dpp v{v.NS}, v{v.NS}, v{v.NS} quad_perm:[2,3,0,1] row_mask:0xf bank_mask:0xf
    v_xor_b32 v{v.NS}, s{sTag}, v{v.NS}
    v_cmp_lt_u32 vcc, 1, v{v.NS}
    s_and_b64 s[74:75], s[74:75], vcc
    s_cbranch_scc0 K2_CR2
    s_sleep 2
    s_mov_b64 exec, s[74:75]
    buffer_load_dwordx4 {vr(v.REC+4,4)}, v{v.t2}, {sr(sWS,4)}, s23 offen sc1
    s_mov_b64 exec, -1
    s_branch K2_CR1
    K2_CR2:
    v_cmp_eq_u32 vcc, 1, v{v.NS}
    v_mov_b32 v{v.t1}, {FLAG}
    s_and_b64 exec, vcc, s[76:77]
    ds_write_b32 v{v.t1}, v{v.aggF}
    s_mov_b32 exec_lo, 0x88888888
    s_mov_b32 exec_hi, 0x88888888
    v_mov_b32 v{v.REC+7}, -1
    s_mov_b64 exec, -1
    """)
    for j in RARE:
        B(f"""
        v_cmp_gt_u32 vcc, -2, v{v.REC+j}
        s_cbranch_vccz K2_CRB
        v_lshrrev_b32 v{v.AD+j}, 12, v{v.REC+j}
        v_and_b32 v{v.AD+j}, 0xfc, v{v.AD+j}
        s_mov_b64 exec, vcc
        ds_add_rtn_u32 v{v.RANK+j}, v{v.AD+j}, v{v.aggF} offset:{CNT}
        s_mov_b64 exec, -1
        """)
    B("s_branch K2_CRB")
    ool.append(B.text())
    if ET:
        for j in MAIN:
            A(f"""
            v_subrev_u32 v{v.t0}, 80, v{v.AD+j}
            v_min_u32 v{v.t0}, v{v.t0}, v{v.AD+j}
            s_mov_b64 exec, {sr(sM+2*j,2)}
            v_cmpx_gt_u32 vcc, {4*ET}, v{v.t0}
            buffer_load_dword v{v.JK3}, v{W0[j]+1}, {sr(sE,4)}, 0 idxen
            s_mov_b64 exec, -1
            """)
    NPF = opt.get("pf", 0)
    if NPF:
        A(f"""
        s_or_b32 s22, s3, s{sMode}
        s_cmp_lg_u32 s22, 0
        s_cbranch_scc1 K2_NOPF
        v_cmp_ne_u32 vcc, s{sTag}, v{v.JK2}
        s_cbranch_vccnz K2_NOPF
        s_mul_i32 s22, s{sSl}, 81920
        v_lshlrev_b32 v{v.t0}, 7, v{L}
        """)
        for q in range(NPF):
            A(f"buffer_load_dword v{v.JK3}, v{v.t0}, {sr(sWS,4)}, s22 offen")
            if q < NPF - 1: A("s_add_u32 s22, s22, 8192")
        A("K2_NOPF:")
    c = v.t0; pd = v.OHA
    A(f"""
    v_lshlrev_b32 v{v.t0}, 2, v{L}
    v_mov_b32 v{v.t1}, {FLAG}
    s_mul_i32 s22, s{sG}, 20
    s_add_u32 s22, s22, 8
    s_waitcnt lgkmcnt(0)
    s_barrier
    """)
    pt("b2")
    A(f"""
    ds_read_b32 v{v.t0}, v{v.t0} offset:{CNT}
    ds_read_b32 v{v.t1}, v{v.t1}
    s_waitcnt lgkmcnt(0)
    v_add_u32 v{c}, 3, v{c}
    v_and_b32 v{c}, -4, v{c}
    v_max_u32 v{c}, 4, v{c}
    v_cndmask_b32 v{pd}, 0, v{c}, {sr(sN40,2)}
    v_readfirstlane_b32 s23, v{v.t1}
    s_nop 0
    v_add_u32_dpp v{c}, v{pd}, v{pd} row_shr:1 row_mask:0xf bank_mask:0xf bound_ctrl:0
    s_nop 1
    v_add_u32_dpp v{c}, v{c}, v{c} row_shr:2 row_mask:0xf bank_mask:0xf bound_ctrl:0
    s_nop 1
    v_add_u32_dpp v{c}, v{c}, v{c} row_shr:4 row_mask:0xf bank_mask:0xf bound_ctrl:0
    s_nop 1
    v_add_u32_dpp v{c}, v{c}, v{c} row_shr:8 row_mask:0xf bank_mask:0xf bound_ctrl:0
    s_nop 1
    v_add_u32_dpp v{c}, v{c}, v{c} row_bcast:15 row_mask:0xa bank_mask:0xf
    s_nop 1
    v_add_u32_dpp v{c}, v{c}, v{c} row_bcast:31 row_mask:0xc bank_mask:0xf
    s_cmp_lg_u32 s23, -1
    s_cbranch_scc1 K2_OVF
    v_readlane_b32 s{sT0}, v{c}, 19
    v_readlane_b32 s{sT1}, v{c}, 39
    v_sub_u32 v{pd}, v{c}, v{pd}
    s_sub_u32 s23, {GSL}, s{sT0}
    v_add_u32 v{c}, s23, v{pd}
    v_cndmask_b32 v{pd}, v{pd}, v{c}, {sr(sG1,2)}
    v_add_u32 v{v.FV}, v{pd}, v{v.OHB}
    """)
    for j in MAIN:
        A(f"ds_bpermute_b32 v{v.PK+j}, v{v.AD+j}, v{v.FV}")
    A(f"""
    v_readlane_b32 s{sTsw}, v{pd}, s22
    s_sub_u32 s{sT1}, s{sT1}, s{sT0}
    s_max_u32 s22, s{sT0}, s{sT1}
    s_cmp_gt_u32 s22, {GSL}
    s_cbranch_scc1 K2_OVF
    s_waitcnt lgkmcnt(0)
    """)
    pt("sc")
    def sbody(j, w, mask):
        return f"""
        s_mov_b64 exec, {mask}
        v_add_u32_sdwa v{v.RANK+j}, v{v.PK+j}, v{v.RANK+j} dst_sel:DWORD dst_unused:UNUSED_PAD src0_sel:WORD_0 src1_sel:DWORD
        v_bfi_b32 v{w}, s{sK3F}, v{v.REC+j}, v{v.PK+j}
        v_lshlrev_b32 v{v.PK+j}, 3, v{v.RANK+j}
        v_lshrrev_b32 v{v.RANK+j}, 2, v{v.RANK+j}
        ds_write_b64 v{v.PK+j}, {P(w)} offset:{REC}
        ds_write_b8 v{v.RANK+j}, v{v.AD+j} offset:{QN}
        """
    for j in MAIN:
        A(sbody(j, W0[j], sr(sM+2*j,2)))
    A("s_cmp_lg_u64 s[76:77], 0")
    A("s_cbranch_scc1 K2_SR")
    A("K2_SRB:")
    B = Asm()
    B("K2_SR:")
    for j in RARE:
        w = v.W0 + 8
        B(f"""
        s_mov_b64 exec, -1
        v_cmp_gt_u32 vcc, -2, v{v.REC+j}
        s_cbranch_vccz K2_SRB
        ds_bpermute_b32 v{v.PK+j}, v{v.AD+j}, v{v.FV}
        v_lshrrev_b32 v{w+1}, 20, v{v.REC+j}
        v_add_u32 v{w+1}, v{w+1}, v{v.EB}
        s_waitcnt lgkmcnt(0)
        """)
        B(sbody(j, w, "vcc"))
    B("s_branch K2_SRB")
    ool.append(B.text())
    A(f"""
    s_mov_b64 exec, -1
    s_or_b32 s22, s3, s{sMode}
    s_cmp_lg_u32 s22, 0
    s_cbranch_scc1 K2_RDY
    v_cmp_ne_u32 vcc, s{sTag}, v{v.JK2}
    s_cbranch_vccnz {"K2_SPOLL" if opt.get("sp", 1) else "K2_RPOLL"}
    K2_RDY:
    s_mov_b32 m0, s{sRing}
    s_waitcnt lgkmcnt(0)
    s_barrier
    """)
    ool.append(f"K2_RPOLL:\nbuffer_load_dword v{v.JK2}, off, {sr(sWS,4)}, s{sRel} sc1\ns_waitcnt vmcnt(0)\nv_cmp_ne_u32 vcc, s{sTag}, v{v.JK2}\ns_cbranch_vccz K2_RDY\ns_sleep 1\ns_branch K2_RPOLL")
    ool.append(f"K2_SPOLL:\ns_mov_b32 s23, 0\nK2_SP2:\ns_buffer_load_dword s22, {sr(sWS,4)}, s{sRel} glc\ns_waitcnt lgkmcnt(0)\ns_cmp_eq_u32 s22, s{sTag}\ns_cbranch_scc1 K2_RDY\ns_add_u32 s23, s23, 1\ns_cmp_lt_u32 s23, 16\ns_cbranch_scc1 K2_SP2\ns_branch K2_RPOLL")
    stamp(14)
    A(f"""
    K2_START:
    ds_read_u16 v{v.IX0}, v{v.R1}
    ds_read_u16 v{v.IX1}, v{v.R1} offset:64
    ds_read_b32 v{v.IE}, v{v.Re}
    ds_read_u8 v{v.t0}, v0 offset:{QN}
    ds_read_u16 v{v.TPa}, v{v.R1} offset:256
    ds_read_u16 v{v.TPb}, v{v.R1} offset:320
    ds_read_b32 v{v.IEb}, v{v.Re} offset:1024
    ds_read_u8 v{v.OH0}, v{v.R2}
    ds_read_u8 v{v.OHA}, v{v.R2} offset:256
    s_waitcnt lgkmcnt(8)
    buffer_load_dwordx4 {P(v.IX0)}, {sr(sP,4)}, 0 idxen offen lds
    s_add_u32 m0, s{sRing}, 1024
    s_waitcnt lgkmcnt(7)
    buffer_load_dwordx4 {P(v.IX1)}, {sr(sP,4)}, 0 idxen offen lds
    s_cmp_lg_u32 s{sNoE}, 0
    s_cselect_b32 m0, {JUNK}, s{sE0}
    s_waitcnt lgkmcnt(5)
    buffer_load_dwordx4 {P(v.IE)}, {sr(sE,4)}, 0 idxen offen lds
    v_cmp_ne_u32 vcc, 0xff, v{v.t0}
    v_subrev_u32 v{v.t1}, 80, v{v.t0}
    v_min_u32 v{v.t0}, v{v.t0}, v{v.t1}
    v_lshl_add_u32 v{v.t1}, v{v.t0}, 3, v{v.QC}
    v_lshrrev_b32 v{v.t0}, 1, v{v.t0}
    v_and_b32 v{v.t0}, 16, v{v.t0}
    v_xor_b32 v{v.t1}, v{v.t1}, v{v.t0}
    v_mov_b32 v{v.t0}, 0x3f80
    s_mov_b64 exec, vcc
    ds_write_b16 v{v.t1}, v{v.t0}
    s_mov_b64 exec, -1
    s_add_u32 m0, s{sRing}, 2048
    s_waitcnt lgkmcnt(0)
    buffer_load_dwordx4 {P(v.TPa)}, {sr(sP,4)}, 0 idxen offen lds
    s_add_u32 m0, s{sRing}, 3072
    ds_read_u16 v{v.IX0}, v{v.R1} offset:512
    buffer_load_dwordx4 {P(v.TPb)}, {sr(sP,4)}, 0 idxen offen lds
    ds_read_u16 v{v.IX1}, v{v.R1} offset:576
    ds_read_u16 v{v.TPa}, v{v.R1} offset:768
    ds_read_u16 v{v.TPb}, v{v.R1} offset:832
    s_cmp_lg_u32 s{sNoE}, 0
    s_cbranch_scc1 K2_ST2
    s_mul_i32 s22, s{sG}, {GSL}
    s_sub_u32 s{sTsw}, s{sTsw}, s22
    s_add_u32 s{sTsw}, s{sTsw}, 31
    s_lshr_b32 s{sTsw}, s{sTsw}, 5
    s_cmp_eq_u32 s{sG}, 0
    s_cselect_b32 s{sTg}, s{sT0}, s{sT1}
    s_add_u32 s{sTg}, s{sTg}, 31
    s_lshr_b32 s{sTg}, s{sTg}, 5
    s_sub_u32 s{sUT}, s{sTg}, 9
    s_and_b32 s{sUT}, s{sUT}, -4
    s_add_u32 s{sUT}, s{sUT}, 1
    s_cmp_lt_u32 s{sTg}, 9
    s_cselect_b32 s{sUT}, {BIG}, s{sUT}
    s_cmp_lg_u32 s{sMode}, 0
    s_cselect_b32 s{sUT}, {BIG}, s{sUT}
    s_sub_u32 s{sT1}, s{sTg}, 1
    K2_ST2:
    s_sub_u32 s22, s{sTg}, 1
    s_lshr_b32 s22, s22, 1
    s_mul_i32 s22, s22, 3072
    s_add_u32 s22, s22, {3072 + 2048}
    v_add_u32 v{v.LA}, s22, v{v.E_}
    s_add_u32 s{sEdst}, s{sE0}, {6144 if opt.get('ek', 3) == 3 else 12288}
    s_mov_b32 s{sTile}, 0
    v_mov_b32 v{v.PROG}, 1
    v_mov_b64 {P(v.QF)}, {P(v.QS)}
    v_mov_b64 {P(v.NS)}, 0
    v_mov_b64 {P(v.NS+2)}, 0
    v_mov_b64 {P(v.DS)}, {P(v.ONE)}
    v_mov_b64 {P(v.DS+2)}, {P(v.ONE)}
    v_mov_b64 {P(v.MSG)}, 0
    v_mov_b64 {P(v.aggF)}, 0
    v_mov_b64 {P(v.aggF+2)}, 0
    v_mov_b64 {P(v.S)}, 0
    s_cmp_lg_u32 s{sNoE}, 0
    s_waitcnt vmcnt(2) lgkmcnt(0)
    s_cbranch_scc1 K2_GO
    s_barrier
    K2_GO:
    s_or_b32 s22, s{sMode}, s{sNoE}
    """)
    stamp(16)
    A(f"""
    ds_read_b128 {vr(v.ohF,4)}, v{v.OH0}
    ds_read_b128 {vr(v.eF,4)}, v{v.E_} offset:3072
    ds_read_b128 {vr(v.pF0,4)}, v{v.P0}
    ds_read_b128 {vr(v.pF1,4)}, v{v.P1}
    s_cbranch_scc1 K2_SAFEP
    """)
    def late_issue():
        A(f"""
        s_add_u32 m0, s{sRing}, 4096
        s_nop 0
        buffer_load_dwordx4 {P(v.IX0)}, {sr(sP,4)}, 0 idxen offen lds
        s_add_u32 m0, s{sRing}, 5120
        ds_read_u16 v{v.IX0}, v{v.R1} offset:1024
        buffer_load_dwordx4 {P(v.IX1)}, {sr(sP,4)}, 0 idxen offen lds
        """)
        if opt.get("ek", 3) == 2:
            A(f"""
            s_add_u32 m0, s{sE0}, 6144
            s_nop 0
            buffer_load_dwordx4 {P(v.IEb)}, {sr(sE,4)}, 0 idxen offen lds
            """)
        else:
            A(f"v_mov_b32 v{v.IE}, v{v.IEb}")
        A(f"""
        s_add_u32 m0, s{sRing}, 6144
        ds_read_u16 v{v.IX1}, v{v.R1} offset:1088
        buffer_load_dwordx4 {P(v.TPa)}, {sr(sP,4)}, 0 idxen offen lds
        s_add_u32 m0, s{sRing}, 7168
        s_nop 0
        buffer_load_dwordx4 {P(v.TPb)}, {sr(sP,4)}, 0 idxen offen lds
        """)
    chain(A, 3, "fast", None, ool, pre=True, mid=late_issue)
    A("K2_LOOP:")
    for k in range(4):
        stretch(A, k, "fast", ool)
        chain(A, k, "fast", "K2_EXIT", ool)
    A("s_branch K2_LOOP")
    A("K2_LAST0:")
    stretch(A, 0, "last", ool, last=True)
    A("s_branch K2_EXIT")
    A("K2_LAST1:")
    stretch(A, 1, "last", ool, last=True)
    A("K2_EXIT:")
    stamp(18)
    pt("x0")
    A(f"""
    s_setprio 0
    ds_read_b128 {vr(v.ohF,4)}, v{v.LA}
    {mfma(v.T1, v.U1 + 24, v.XF + 24)}
    v_rcp_f32 v{v.RS}, v{v.DS}
    v_rcp_f32 v{v.RS+1}, v{v.DS+1}
    v_rcp_f32 v{v.RS+2}, v{v.DS+2}
    v_rcp_f32 v{v.RS+3}, v{v.DS+3}
    {mfma(v.T1, v.U1 + 28, v.XF + 28)}
    v_fma_f32 v{v.S}, v{v.DS}, v{v.DS+2}, v{v.S}
    v_fma_f32 v{v.S+1}, v{v.DS+1}, v{v.DS+3}, v{v.S+1}
    v_mul_f32 v{v.NS}, v{v.NS}, v{v.RS}
    v_mul_f32 v{v.NS+1}, v{v.NS+1}, v{v.RS+1}
    v_mul_f32 v{v.NS+2}, v{v.NS+2}, v{v.RS+2}
    v_mul_f32 v{v.NS+3}, v{v.NS+3}, v{v.RS+3}
    K2_X2:
    s_bitcmp1_b32 s{sTg}, 0
    s_cbranch_scc0 K2_X3
    s_waitcnt lgkmcnt(1)
    {mfma(v.ACC, v.MSG, v.aggF)}
    v_cvt_pk_bf16_f32 v{v.MSG}, v{v.NS}, v{v.NS+1}
    v_cvt_pk_bf16_f32 v{v.MSG+1}, v{v.NS+2}, v{v.NS+3}
    s_branch K2_X4
    K2_X3:
    v_cvt_pk_bf16_f32 v{v.MSG+2}, v{v.NS}, v{v.NS+1}
    v_cvt_pk_bf16_f32 v{v.MSG+3}, v{v.NS+2}, v{v.NS+3}
    K2_X4:
    v_max_f32 v{v.S}, v{v.S}, v{v.S+1}
    s_waitcnt lgkmcnt(0)
    {mfma(v.ACC, v.MSG, v.ohF)}
    v_add_u32 v{v.t0}, s{sRing}, v{v.t3}
    s_cmp_eq_u32 s{sMode}, 1
    s_cbranch_scc1 K2_NEXTR
    K2_FIN:
    s_cmp_eq_u32 s{sUT}, {BIG}
    s_cbranch_scc1 K2_ULD
    K2_ULB:
    s_mov_b32 s22, {NEG_LN2:#x}
    s_mov_b32 s23, {f2u(2.0**60):#x}
    v_mov_b64 {P(v.NS)}, 0
    v_mov_b32 v{v.S+1}, 0
    s_lshl_b32 s76, s{sG}, 15
    s_add_u32 s76, s76, {RING}
    v_add_u32 v{v.t1}, s76, v{v.t3}
    """)
    pt("x1")
    B = Asm(); B("K2_ULD:")
    for i in range(16): u_load(B, i)
    B("s_waitcnt vmcnt(0)")
    for s_ in range(8):
        B(mfma(v.T1, v.U1 + 4*s_, v.XF + 4*s_, "0" if s_ == 0 else None))
    B("s_branch K2_ULB"); ool.append(B.text())
    for s in range(8):
        A(f"v_pk_mul_f32 {P(v.ACC+2*s)}, {P(v.ACC+2*s)}, s[22:23] op_sel_hi:[1,0]")
    for s in range(8):
        A(f"v_cvt_pk_bf16_f32 v{v.E+s}, v{v.ACC+2*s}, v{v.ACC+2*s+1}")
    for s in range(8):
        A(f"v_pk_fma_f32 {P(v.S)}, {P(v.ACC+2*s)}, {P(v.NS)}, {P(v.S)}")
    F = v.T1; AG = v.XF
    A(f"""
    v_add_f32 v{v.S}, v{v.S}, v{v.S+1}
    v_cmp_nge_f32 vcc, s23, v{v.S}
    s_cbranch_vccnz K2_TRIP
    K2_TRB:
    s_waitcnt vmcnt(0)
    ds_write_b128 v{v.t0}, {vr(v.E,4)}
    ds_write_b128 v{v.t0}, {vr(v.E+4,4)} offset:1024
    v_mov_b32 v{v.PROG}, 0x7fff
    """)
    ool.append(f"K2_TRIP:\ns_or_b32 s22, s{sMode}, s{sNoE}\ns_cmp_lg_u32 s22, 0\ns_cbranch_scc1 K2_TRB\ns_branch K2_REDO")
    A("s_waitcnt lgkmcnt(0)")
    A("s_mov_b64 exec, 1")
    A(f"ds_write_b32 v{v.FW}, v{v.PROG}")
    A("s_mov_b64 exec, -1")
    A(f"ds_read_b32 v{v.FV}, v{v.FR}")
    pt("x2")
    A(f"""
    K2_GS:
    s_waitcnt lgkmcnt(0)
    v_cmp_gt_u32 vcc, v{v.PROG}, v{v.FV}
    s_cbranch_vccnz K2_GS2
    """)
    ool.append(f"K2_GS2:\nds_read_b32 v{v.FV}, v{v.FR}\ns_branch K2_GS")
    stamp(96)
    pt("x3")
    for s in range(8):
        A(f"ds_read_b128 {vr(AG+4*s,4)}, v{v.t1} offset:{(s >> 1) * 8192 + (s & 1) * 1024}")
    for s in range(8):
        A(f"s_waitcnt lgkmcnt({7-s})")
        A(mfma(F, v.U2 + 4*s, AG + 4*s))
    pt("x4")
    A(f"s_mov_b32 s22, {NEG_LOG2E:#x}")
    A("s_nop 10")
    for r in range(0, 16, 2):
        A(f"v_pk_mul_f32 {P(v.E+r)}, {P(F+r)}, s[22:23] op_sel_hi:[1,0]")
    for r in range(16):
        A(f"v_exp_f32 v{v.E+r}, v{v.E+r}")
    for r in range(0, 16, 2):
        A(f"v_pk_add_f32 {P(v.E+r)}, {P(v.E+r)}, {P(v.ONE)}")
    for r in range(16):
        A(f"v_rcp_f32 v{v.E+r}, v{v.E+r}")
    for r in range(0, 16, 2):
        A(f"v_pk_mul_f32 {P(F+r)}, {P(F+r)}, {P(v.E+r)}")
    O = v.T
    for r in range(8):
        A(f"v_cvt_pk_bf16_f32 v{O+r}, v{F+2*r}, v{F+2*r+1}")
    A(f"""
    s_nop 1
    v_permlane32_swap_b32 v{O}, v{O+2}
    v_permlane32_swap_b32 v{O+1}, v{O+3}
    v_permlane32_swap_b32 v{O+4}, v{O+6}
    v_permlane32_swap_b32 v{O+5}, v{O+7}
    buffer_store_dwordx4 {vr(O,4)}, v{v.OA}, {sr(sOUT,4)}, 0 offen {opt.get("ost", "").replace("_", " ")}
    buffer_store_dwordx4 {vr(O+4,4)}, v{v.OA}, {sr(sOUT,4)}, 0 offen offset:32 {opt.get("ost", "").replace("_", " ")}
    """)
    pt("x5")
    A(f"""
    s_or_b32 s22, s2, s3
    s_cmp_eq_u32 s22, 0
    s_cbranch_scc1 K_ADV
    K_ADVB:
    """)
    ool.append(f"K_ADV:\nv_mov_b32 v1, s{sTag}\ns_mov_b32 s22, {WS_TAG}\ns_mov_b64 exec, 1\nbuffer_store_dword v1, off, {sr(sWS,4)}, s22 sc1\ns_mov_b64 exec, -1\ns_branch K_ADVB")
    if ST:
        A("s_waitcnt vmcnt(0)")
        A("s_memtime s[98:99]")
        A("s_memrealtime s[100:101]")
        A(f"""
        s_lshl_b32 s22, s2, 3
        s_add_u32 s22, s22, s3
        s_lshl_b32 s22, s22, 6
        s_add_u32 s22, s22, 0xA00000
        v_mov_b32 v1, 0
        s_waitcnt lgkmcnt(0)
        """)
        for i, r in enumerate([90, 94, 4, 6, 8, 10, 12, 14, 16, 18, 96, 98, 92, 100, sTg] if not PTS else [90, 94, 4, 44, 46, 48, 50, 96, 6, 12, 14, 98, 92, 100, sTg]):
            A(f"v_mov_b32 v2, s{r}")
            A(f"buffer_store_dword v2, v1, {sr(sWS,4)}, s22 offen offset:{4*i}")
    A("K_END:")
    A("s_endpgm")
    for o in ool: A(o)
    del ool[:]
    A(f"""
    K_SPECIAL:
    s_waitcnt lgkmcnt(0)
    s_mov_b32 s22, {WS_TAG}
    s_load_dword s{sTag}, s[{PWS}:{PWS+1}], s22
    """)
    if ST: srd(A, sDB, PDBG, 256)
    srd(A, sWS, PWS, WS_END)
    A(f"""
    s_cmp_lg_u32 s2, 0
    s_cbranch_scc1 K_HELPER
    s_cmp_lg_u32 s3, 0
    s_cbranch_scc1 K_END
    s_waitcnt lgkmcnt(0)
    s_add_u32 s{sTag}, s{sTag}, 2
    s_or_b32 s{sTag}, s{sTag}, 0x40000001
    v_mov_b32 v1, s{sTag}
    v_lshlrev_b32 v2, 4, v0
    v_cmp_gt_u32 vcc, {NCHUNK + 2 - 64}, v0
    v_add_u32 v4, 1024, v2
    s_mov_b32 s22, {WS_FLAG + 0x2000}
    v_cndmask_b32 v4, v2, v4, vcc
    v_lshlrev_b32 v3, 7, v0
    s_mov_b32 s23, {WS_FLAG + 0x4000}
    v_mov_b32 v6, 0
    {f"buffer_store_dword v6, v3, {sr(sWS,4)}, s23 offen sc1" if PW1 else ""}
    """)
    if MC:
        A(f"""
        v_cmp_gt_u32 vcc, {NCHUNK - 64}, v0
        v_add_u32 v5, 1024, v2
        s_mov_b32 s76, {WS_FLAG}
        v_cndmask_b32 v5, v2, v5, vcc
        s_mov_b32 s77, {WS_FLAG + 0x6000}
        K_MPOLL0:
        buffer_load_dword v8, v2, {sr(sWS,4)}, s76 offen sc1
        buffer_load_dword v9, v5, {sr(sWS,4)}, s76 offen sc1
        s_waitcnt vmcnt(0)
        v_xor_b32 v8, v1, v8
        v_xor_b32 v9, v1, v9
        v_or_b32 v8, v8, v9
        v_cmp_ne_u32 vcc, 0, v8
        s_cbranch_vccnz K_MPOLL0
        buffer_store_dword v1, v3, {sr(sWS,4)}, s77 offen sc1
        {"s_memrealtime s[92:93]" if ST else ""}
        """)
    A(f"""
    K_MPOLL:
    buffer_load_dword v8, v2, {sr(sWS,4)}, s22 offen sc1
    buffer_load_dword v9, v4, {sr(sWS,4)}, s22 offen sc1
    s_waitcnt vmcnt(0)
    v_xor_b32 v8, v1, v8
    v_xor_b32 v9, v1, v9
    v_or_b32 v8, v8, v9
    v_cmp_ne_u32 vcc, 0, v8
    s_cbranch_vccnz K_MPOLL
    buffer_store_dword v1, v3, {sr(sWS,4)}, s23 offen sc1
    {"s_memrealtime s[90:91]" if ST else ""}
    {"s_waitcnt lgkmcnt(0)" if ST else ""}
    {"v_mov_b32 v2, s90" if ST else ""}
    {f"buffer_store_dword v2, off, {sr(sDB,4)}, 0 offset:8" if ST else ""}
    {"v_mov_b32 v2, s92" if ST else ""}
    {f"buffer_store_dword v2, off, {sr(sDB,4)}, 0 offset:12" if ST else ""}
    s_endpgm
    K_HELPER:
    s_sub_u32 s87, s2, 1
    s_lshl_b32 s82, s87, 15
    s_lshl_b32 s77, s3, 12
    """)
    srd(A, sWm, PWU, 32768, add="s82")
    wdma(0, 0)
    A(f"""
    s_waitcnt vmcnt(4)
    s_lshl_b32 s22, s{sC}, 6
    v_xor_b32 v{TRA}, s22, v{TRA}
    v_lshrrev_b32 v{H}, 5, v{L}
    s_sub_u32 s22, 11, s87
    v_lshlrev_b32 v{H}, s22, v{H}
    v_add_u32 v{TRA}, v{TRA}, v{H}
    s_lshl_b32 s22, s{sG}, 14
    v_add_u32 v{TRA}, s22, v{TRA}
    s_lshl_b32 s22, 1024, s87
    v_add_u32 v{H}, s22, v{TRA}
    s_lshl_b32 s22, s{sC}, 13
    s_add_u32 s82, s82, s22
    s_lshl_b32 s22, s{sG}, 12
    s_add_u32 s82, s82, s22
    s_add_u32 s82, s82, {WS_U}
    s_waitcnt vmcnt(0)
    s_barrier
    """)
    for s_ in range(4):
        A(f"ds_read_b64_tr_b16 {vr(v.T+4*s_,2)}, v{TRA} offset:{s_*4096}")
        A(f"ds_read_b64_tr_b16 {vr(v.T+4*s_+2,2)}, v{H} offset:{s_*4096}")
    A("s_waitcnt lgkmcnt(0)")
    for s_ in range(4):
        A(f"buffer_store_dwordx4 {vr(v.T+4*s_,4)}, v{v.t3}, {sr(sWS,4)}, s82 offen offset:{s_*1024} sc1")
    A(f"""
    s_waitcnt vmcnt(0)
    s_barrier
    s_cmp_lg_u32 s3, 0
    s_cbranch_scc1 K_END
    s_add_u32 s{sTag}, s{sTag}, 2
    s_or_b32 s{sTag}, s{sTag}, 0x40000001
    v_mov_b32 v1, s{sTag}
    s_lshl_b32 s22, s87, 4
    s_add_u32 s22, s22, {WS_FLAG + 0x2000 + NCHUNK * 16}
    s_mov_b64 exec, 1
    buffer_store_dword v1, off, {sr(sWS,4)}, s22 sc1
    s_endpgm
    """)
    A("K2_SAFEP:")
    chain(A, 3, "safe", None, ool, pre=True, mid=late_issue)
    A("K2_SAFE:")
    for k in range(4):
        stretch(A, k, "safe", ool)
        chain(A, k, "safe", "K2_SEXIT", ool)
    A("s_branch K2_SAFE")
    A(f"""
    K2_SEXIT:
    s_setprio 0
    ds_read_b128 {vr(v.ohF,4)}, v{v.LA}
    s_branch K2_X2
    """)
    def restore(reg=None):
        A(f"""
        s_lshr_b32 s23, s{reg or sTg}, 2
        s_mul_i32 s22, s23, 6144
        s_lshl_b32 s23, s23, 10
        v_subrev_u32 v{v.E_}, s22, v{v.E_}
        v_subrev_u32 v{v.R1}, s23, v{v.R1}
        v_subrev_u32 v{v.R2}, s23, v{v.R2}
        v_subrev_u32 v{v.Re}, s23, v{v.Re}
        """)
    A("K2_REDO:")
    restore(sT1)
    A(f"s_mov_b32 s{sUT}, {BIG}")
    A(f"s_mov_b32 s{sNoE}, 1")
    for r in range(0, 16, 2):
        A(f"v_mov_b64 {P(v.ACC+r)}, 0")
    A(f"v_mov_b32 v{v.TPa+1}, v{v.IX0+1}")
    A(f"v_mov_b32 v{v.TPb+1}, v{v.IX0+1}")
    A(f"s_mov_b32 m0, s{sRing}")
    A("s_waitcnt vmcnt(0) lgkmcnt(0)")
    A("s_branch K2_START")
    A(f"""
    K2_OVF:
    s_cmp_eq_u32 s{sMode}, 0
    s_cbranch_scc0 K2_OV2
    s_cmp_lg_u32 s3, 0
    s_cbranch_scc1 K2_OV2
    K2_OV1:
    buffer_load_dword v{v.JK2}, off, {sr(sWS,4)}, s{sRel} sc1
    s_waitcnt vmcnt(0)
    v_cmp_ne_u32 vcc, s{sTag}, v{v.JK2}
    s_cbranch_vccnz K2_OV1
    K2_OV2:
    s_mov_b32 s{sMode}, 1
    s_mov_b32 s{sRound}, 0
    s_branch K2_ROUND
    K2_NEXTR:
    s_add_u32 s{sRound}, s{sRound}, 1
    s_cmp_ge_u32 s{sRound}, {E // 512}
    s_cbranch_scc1 K2_FIN
    """)
    restore()
    A(f"""
    K2_ROUND:
    s_load_dwordx4 s[76:79], s[0:1], 16
    s_waitcnt vmcnt(0) lgkmcnt(0)
    s_barrier
    """)
    srd(A, sS, 76, E * 4)
    srd(A, sD, 78, E * 4)
    round_regs()
    A(f"""
    s_lshl_b32 s22, s{sRound}, 9
    v_add_u32 v{v.EB}, s22, v0
    v_lshlrev_b32 v{v.t0}, 2, v{v.EB}
    buffer_load_dword v{v.REC}, v{v.t0}, {sr(sD,4)}, 0 offen
    buffer_load_dword v{v.REC+1}, v{v.t0}, {sr(sS,4)}, 0 offen
    """)
    lds_init()
    A(f"""
    s_mul_i32 s22, s2, 40
    s_waitcnt vmcnt(0)
    v_subrev_u32 v{v.REC}, s22, v{v.REC}
    v_cmp_gt_u32 vcc, 40, v{v.REC}
    v_lshl_or_b32 v{v.t0}, v{v.REC}, 14, v{v.REC+1}
    v_mov_b32 v{v.REC+1}, -1
    v_cndmask_b32 v{v.REC}, -1, v{v.t0}, vcc
    s_mov_b64 s[76:77], 0
    s_barrier
    s_branch K2_COUNT
    """)
    for o in ool: A(o)
    A("K_CODE_END:")
    return A.text()

HEADER = """; MPNN edge-MLP layer, fused single kernel (generated by gen/fz14.py).
; Kernarg layout (72 bytes, ptrs only, base s[0:1]):
;   32: w_msg (272,128) bf16 | 40: w_upd (256,128) bf16 | 48: d_out | 56: d_debug | 64: d_ws
"""
def build(opt):
    out = HEADER + f"; @launch grid=({NWG},1,1) block=(512,1,1) lds={LDS_TOTAL}\n"
    out += '.amdgcn_target "amdgcn-amd-amdhsa--gfx950"\n.text\n'
    out += f".globl {KNAME}\n.p2align 8\n.type {KNAME},@function\n" + gen(opt)
    acc = (NV + 3) // 4 * 4
    out += f""".section .rodata,"a"
.p2align 8
K_TABLE:
{tables()}.p2align 6
.amdhsa_kernel {KNAME}
  .amdhsa_next_free_vgpr {NV}
  .amdhsa_next_free_sgpr 102
  .amdhsa_accum_offset {acc}
  .amdhsa_group_segment_fixed_size 0
  .amdhsa_kernarg_size 72
  .amdhsa_user_sgpr_count 2
  .amdhsa_user_sgpr_kernarg_segment_ptr 1
  .amdhsa_system_sgpr_workgroup_id_x 1
.end_amdhsa_kernel
"""
    return out

if __name__ == "__main__":
    opt = {}
    for a in sys.argv[2:]:
        k_, v_ = a.split("=")
        opt[k_] = int(v_) if v_.lstrip("-").isdigit() else v_
    open(sys.argv[1], "w").write(build(opt))
```

```python
import sys, struct
from gen import Asm, vr, sr, srd, f2u, NEG_LOG2E, NEG_LN2, PX, PE, PSRC, PDST, PWM, PWU, POUT, PDBG, PWS, load_ptrs

KNAME = "standalone__mpnn_edge_mlp__graph_kernel"
N = 10000; E = 320000
NBIN = 250; NCHUNK = 125; CH = 2560
WS_CELL = 0x280000
WS_FLAG = 0x700000
WS_U = 0x708000
WS_END = WS_U + 0x10000
NWG = NBIN + 3
BIG = 0x7fffffff
WS_TAG = 0x27FF00

CNT = 0x100; QN = 0x200; FLAG = 0x3F0; TRIP = 0x3F4; REC = 0x400
TG = 26; GSL = TG * 32
REC_BYTES = (2 * GSL + 160) * 8
EA = REC + REC_BYTES
GEA = (TG // 2) * 3072
RING = EA + 2 * GEA
JUNK = RING + 65536
LDS_TOTAL = JUNK + 1024
FLG = CNT + 48 * 4
L_X = RING; L_W2 = RING + 0x6000; L_W3 = L_W2 + 32768; L_BN = 0x8000
assert RING % 256 == 0 and LDS_TOTAL <= 163840

class R: pass
v = R()
_n = 1
def alloc(name, n, align=1):
    global _n
    _n = (_n + align - 1) // align * align
    setattr(v, name, _n)
    _n += n
for nm in ("t0", "t1", "t2", "t3", "lane", "FW", "FV", "PROG", "JK", "JK2", "JK3", "OHA", "P1", "FR", "LA"):
    alloc(nm, 1)
TABN = ("E_", "R1", "R2", "Re", "P0", "EB", "QC", "OHB", "S0a", "FRo", "IXo", "IEo", "S1a", "TRA", "OAl", "Z_")
alloc("TAB", 0, 4)
for nm in TABN[:8]:
    alloc(nm, 1)
for nm in ("IX0", "IX1", "IE", "ONE", "S"):
    alloc(nm, 2, 2)
alloc("OA", 1)
for nm in ("W3F", "QF", "QS", "SEL0", "SEL1", "eF", "ohF", "pF0", "pF1", "aggF", "MSG", "NS", "DS", "RS"):
    alloc(nm, 4, 4)
for nm in ("T", "T1", "E", "ACC"):
    alloc(nm, 16, 4)
alloc("U1", 32, 4); alloc("U2", 32, 4); alloc("XF", 32, 4)
NV = _n
assert NV <= 256
for i_, nm in enumerate(TABN[8:]): setattr(v, nm, v.SEL0 + i_)
v.WA = v.ohF
assert v.RS == v.ohF + 28 and v.SEL1 == v.SEL0 + 4 and v.E == v.T1 + 16
v.REC = v.T; v.RANK = v.T + 8; v.AD = v.E; v.PK = v.E + 8
v.W0 = v.T1
v.TPa = v.T1 + 10; v.TPb = v.T1 + 12; v.IEb = v.T1 + 14; v.OH0 = v.pF1

sWS, sP, sE, sX, sOUT, sD, sS = 24, 28, 32, 36, 40, 44, 48
sG, sC, sTg, sTile, sTsw, sTag, sRing, sEdst, sMode, sRound, sRole, sElim = 52, 53, 54, 55, 56, 57, 58, 59, 60, 61, 62, 63
sM = 64
sWm = 64; sDB = 68
sTB = 80
sUT = 82; sNoE = 83; sK3F = 84; sT0, sT1 = 85, 86; sRel = 87; sUoff = 88; sPair = 89
sN40 = 36; sG1 = 38; sSl = 101; sE0 = 100; sOff = 61

OPT = {}
def P(r): return f"v[{r}:{r+1}]"
def mfma(d, a, b, c=None):
    return f"v_mfma_f32_32x32x16_bf16 {vr(d,16)}, {vr(a,4)}, {vr(b,4)}, {vr(d,16) if c is None else c}"
def pi8v(m):
    return ((m & 5) << 5) | ((m & 18) << 2) | ((m & 8) << 1)

def tables():
    rows = []
    for l in range(64):
        m, h = l & 31, l >> 5
        a16 = 16 + ((l & 8) << 3) + ((l & 3) << 4)
        n_ = l - 20 if l >= 20 else l
        a16n = 16 + ((n_ & 8) << 3) + ((n_ & 3) << 4)
        ohb = (a16n << (16 + 8 * ((n_ >> 2) & 1))) if l < 40 else 0
        sel = a16 if ((l >> 2) & 1) == h else 0
        d = dict(
            E_=m * 32 + (((h ^ (m >> 3)) & 1) << 4) + EA - 3072,
            R1=pi8v(l >> 2) + REC, R2=pi8v(m) + h + 2 + REC, Re=pi8v(l >> 1) + 4 + REC,
            P0=m * 64 + ((((m >> 2) ^ (2 * h)) & 3) << 4) + RING,
            EB=(l >> 2) * CH,
            QC=(l >> 4) * 3072 + ((l & 4) << 2) + (l & 8) + ((l & 3) << 1) + EA + 2048,
            OHB=ohb, FRo=(l & 3) * 4 + FLG,
            IXo=(((l >> 4) ^ l) & 3) << 4, IEo=(((l >> 4) ^ l) & 1) << 4,
            S0a=sel if m < 16 else 0, S1a=sel if m >= 16 else 0,
            TRA=(l & 3) * 8 + ((l >> 2) & 3) * 256 + (((l >> 2) & 3) << 6) + ((l >> 4) & 1) * 32,
            OAl=(m * 256 + h * 16) if m < 20 else 0x40000000, Z_=0)
        rows.append([d[n] for n in TABN])
    out = []
    for b in range(4):
        for l in range(64):
            out.append(".long " + ", ".join(f"{x:#x}" for x in rows[l][4*b:4*b+4]))
    img = [0] * 256
    for e_ in range(8):
        img[4 * (e_ + 1) + (e_ >> 1)] = 0x3f80 << (16 * (e_ & 1))
    for i in range(128, 256): img[i] = 0xffffffff
    for i in range(0, 256, 4):
        out.append(".long " + ", ".join(f"{x:#x}" for x in img[i:i+4]))
    for i in range(64):
        out.append(".long 0xffff, 0xffffffff, 0xffff, 0xffffffff")
    return "\n".join(out) + "\n"

def lst(A, k, variant, r):
    if OPT.get("ls") and variant == "fast" and k == OPT["ls"] - 1: A(f"s_memtime s[{r}:{r+1}]")

def u_load(A, i):
    off = (i >> 3) * 32768 + (i & 7) * 1024
    A(f"s_add_u32 s22, s{sUoff}, {off & ~4095}")
    A(f"buffer_load_dwordx4 {vr(v.U1+4*i,4)}, v{v.t3}, {sr(sWS,4)}, s22 offen offset:{off & 4095}")

def chain(A, k, variant, exit_label, ool, pre=False, mid=None):
    kk = k if k < 3 else -1
    safe = variant == "safe"
    EK = OPT.get("ek", 3)
    if not pre:
        A("s_setprio 2")
        A(f"s_add_u32 s{sTile}, s{sTile}, 1")
        if safe:
            A(f"s_cmp_ge_u32 s{sTile}, s{sTg}")
            A(f"s_cbranch_scc1 {exit_label}")
        lsw = A.label("sw"); lswb = A.label("swb")
        A(f"s_cmp_eq_u32 s{sTile}, s{sTsw}")
        A(f"s_cbranch_scc1 {lsw}")
        A(f"{lswb}:")
        ool.append(f"{lsw}:\nv_mov_b32 v{v.QF}, v{v.QS+2}\nv_mov_b32 v{v.QF+1}, v{v.QS+3}\ns_branch {lswb}")
        lst(A, k, variant, 10)
    A("s_waitcnt lgkmcnt(0)")
    if k % 2 == 0:
        A(mfma(v.ACC, v.MSG, v.aggF))
    n = 4 + (1 if ((k - 1) & 3) == EK or ((k - 2) & 3) == EK else 0)
    if EK == 3 and k == 1: n = 2
    if pre: n = 4 if EK == 3 else 5
    k2_ = kk + 2
    eread = f"ds_read_b128 {vr(v.eF,4)}, v{v.E_} offset:{3072 + (k2_ >> 1) * 3072 + (k2_ & 1) * 1024}"
    if k == 2: A(f"ds_read_b32 v{v.FV}, v{v.FR}")
    A(mfma(v.T, v.eF, v.W3F, "0"))
    if k != 2: A(eread)
    A(mfma(v.T, v.ohF, v.QF))
    A(f"ds_read_b128 {vr(v.ohF,4)}, v{v.OHA}")
    A(f"ds_read_u8 v{v.OHA}, v{v.R2} offset:{(kk + 3) * 256}")
    A(mfma(v.T, v.pF0, v.SEL0))
    if k == 2:
        A("s_waitcnt lgkmcnt(2)")
        A(f"v_cmp_gt_u32 vcc, v{v.PROG}, v{v.FV}")
    A(mfma(v.T, v.pF1, v.SEL1))
    A(f"s_setprio 0")
    lst(A, k, variant, 14)
    n_after = 2
    if k == 2:
        lw = A.label("fw"); lb = A.label("fb")
        if safe:
            A(f"s_cmp_lg_u32 s{sNoE}, 0")
            A(f"s_cbranch_scc1 {lb}")
        A(f"s_cbranch_vccnz {lw}")
        A(f"{lb}:")
        A(eread)
        ool.append(f"{lw}:\nds_read_b32 v{v.FV}, v{v.FR}\ns_waitcnt lgkmcnt(0)\nv_cmp_gt_u32 vcc, v{v.PROG}, v{v.FV}\ns_cbranch_vccnz {lw}\ns_branch {lb}")
        n_after += 2
    if mid: mid()
    A(f"s_waitcnt vmcnt({n})" + (" lgkmcnt(0)" if pre else ""))
    if k == 1:
        l1 = A.label("nf")
        if safe:
            A(f"s_cmp_lg_u32 s{sNoE}, 0")
            A(f"s_cbranch_scc1 {l1}")
        A("s_mov_b64 exec, 1")
        A(f"ds_write_b32 v{v.FW}, v{v.PROG}")
        A("s_mov_b64 exec, -1")
        if safe: A(f"{l1}:")
        else: n_after += 3
    if k == EK:
        if safe:
            A(f"s_cmp_lg_u32 s{sNoE}, 0")
            A(f"s_cselect_b32 s{sEdst}, s{sElim}, s{sEdst}")
        A(f"s_cmp_lt_u32 s{sEdst}, s{sElim}")
        A(f"s_cselect_b32 m0, s{sEdst}, {JUNK}")
        A(f"s_add_u32 s{sEdst}, s{sEdst}, 6144")
        A(f"buffer_load_dwordx4 {P(v.IE)}, {sr(sE,4)}, 0 idxen offen lds")
        n_after += 4
    A(f"s_add_u32 m0, s{sRing}, {((k + 1) & 3) * 2048}")
    A(f"ds_read_b128 {vr(v.pF0,4)}, v{v.P0} offset:{((k + 2) & 3) * 2048}")
    A(f"buffer_load_dwordx4 {P(v.IX0)}, {sr(sP,4)}, 0 idxen offen lds")
    A(f"s_add_u32 m0, s{sRing}, {((k + 1) & 3) * 2048 + 1024}")
    A(f"ds_read_b128 {vr(v.pF1,4)}, v{v.P1} offset:{((k + 2) & 3) * 2048}")
    A(f"buffer_load_dwordx4 {P(v.IX1)}, {sr(sP,4)}, 0 idxen offen lds")
    A(f"ds_read_u16 v{v.IX0}, v{v.R1} offset:{(kk + 6) * 256}")
    A(f"ds_read_u16 v{v.IX1}, v{v.R1} offset:{(kk + 6) * 256 + 64}")
    n_after += 8
    if k % 2 == 1 and not pre:
        A(f"ds_read_b128 {vr(v.aggF,4)}, v{v.E_} offset:{(1 if k == 1 else 0) * 3072 + 2048}")
        n_after += 1
    if k == EK - 1:
        A(f"ds_read_b32 v{v.IE}, v{v.Re} offset:{2 * 1024}")
        n_after += 1
    if not safe and not pre:
        lv = A.label("uv"); lvb = A.label("vb")
        A(f"s_sub_u32 s23, s{sTile}, s{sUT}")
        A(f"s_cmp_lt_u32 s23, 8")
        A(f"s_cbranch_scc1 {lv}")
        A(f"{lvb}:")
        n_after += 3
        B = Asm()
        B(f"{lv}:")
        B(f"s_cmp_ge_u32 s23, 4")
        B(f"s_cbranch_scc1 {lv}x")
        u_load(B, 2*k); u_load(B, 2*k+1)
        B(f"s_branch {lvb}")
        B(f"{lv}x:")
        u_load(B, 8+2*k); u_load(B, 8+2*k+1)
        B(f"s_branch {lvb}")
        ool.append(B.text())
    if n_after < 12:
        A(f"s_nop {12 - n_after - 1}")
    if not safe and not pre:
        A(f"s_cmp_eq_u32 s{sTile}, s{sT1}")
        A(f"s_cbranch_scc1 K2_LAST{(k + 1) & 1}")
    lst(A, k, variant, 12)

def stretch(A, k, variant, ool, last=False):
    T = v.T; E = v.E
    order = [0, 1, 8, 9, 2, 3, 10, 11, 4, 5, 12, 13, 6, 7, 14, 15]
    lst(A, k, variant, 94)
    for i, r in enumerate(order):
        if last and i % 3 == 0:
            A(mfma(v.T1, v.U1 + 4*(i//3), v.XF + 4*(i//3), "0" if i == 0 else None))
        A(f"v_exp_f32 v{E+r}, v{T+r}")
    if variant != "safe":
        for r in range(4):
            A(f"v_rcp_f32 v{v.RS+r}, v{v.DS+r}")
    if last: k = k & 1 | 4
    if k == 3:
        for s in (f"v_add_u32 v{v.E_}, 6144, v{v.E_}", f"v_add_u32 v{v.R1}, 1024, v{v.R1}",
                  f"v_add_u32 v{v.R2}, 1024, v{v.R2}", f"v_add_u32 v{v.Re}, 1024, v{v.Re}"): A(s)
    if k == 0:
        A(f"v_add_u32 v{v.PROG}, 1, v{v.PROG}")
    lst(A, k, variant, 4)
    A("s_setprio 1")
    mo = v.MSG + 2 * ((k + 1) % 2)
    if variant != "safe":
        A(f"v_pk_fma_f32 {P(v.S)}, {P(v.DS)}, {P(v.DS+2)}, {P(v.S)}")
        A(f"v_pk_mul_f32 {P(v.NS)}, {P(v.NS)}, {P(v.RS)}")
        A(f"v_pk_mul_f32 {P(v.NS+2)}, {P(v.NS+2)}, {P(v.RS+2)}")
    A(f"v_cvt_pk_bf16_f32 v{mo}, v{v.NS}, v{v.NS+1}")
    A(f"v_cvt_pk_bf16_f32 v{mo+1}, v{v.NS+2}, v{v.NS+3}")
    lst(A, k, variant, 6)
    if variant != "safe":
        ops = []
        for gi, g in enumerate((0, 8)):
            t, e = T + g, E + g
            o = [f"v_pk_add_f32 {P(e)}, {P(e)}, {P(v.ONE)}"]
            for u in (1, 2, 3):
                o.append(f"v_pk_fma_f32 {P(t)}, {P(t)}, {P(e+2*u)}, {P(t)}")
                o.append(f"v_pk_fma_f32 {P(t if u < 3 else v.NS+2*gi)}, {P(t+2*u)}, {P(e)}, {P(t)}")
                o.append(f"v_pk_fma_f32 {P(e if u < 3 else v.DS+2*gi)}, {P(e)}, {P(e+2*u)}, {P(e)}")
            ops.append(o)
        for a, b in zip(*ops):
            A(a); A(b)
    else:
        for r in range(0, 16, 2):
            A(f"v_pk_add_f32 {P(E+r)}, {P(E+r)}, {P(v.ONE)}")
        for r in range(16):
            A(f"v_rcp_f32 v{E+r}, v{E+r}")
        A("s_nop 0")
        for u in range(4):
            for gi, g in enumerate((0, 8)):
                if u == 0:
                    A(f"v_pk_mul_f32 {P(T+g)}, {P(T+g)}, {P(E+g)}")
                else:
                    A(f"v_pk_fma_f32 {P(T+g if u < 3 else v.NS+2*gi)}, {P(T+g+2*u)}, {P(E+g+2*u)}, {P(T+g)}")
    lst(A, k, variant, 8)

def gen(opt):
    OPT.clear(); OPT.update(opt)
    A = Asm()
    L = v.lane
    ST = opt.get("stamp", 0)
    PTS = opt.get("pts", "").split(",") if opt.get("pts") else []
    PSL = [44, 46, 48, 50, 96]
    def pt(name):
        if name in PTS:
            r = PSL[PTS.index(name)]
            A(f"s_memtime s[{r}:{r+1}]")
    def stamp(r, real=False):
        if PTS and r == 96: return
        if opt.get("ls") and r in (94, 4, 6, 8, 10, 12, 14): return
        if ST: A(f"s_mem{'real' if real else ''}time s[{r}:{r+1}]")
    ool = []
    STF = opt.get("stf", "sc0_sc1").replace("_", " ")
    WV = v.eF; XV = v.eF + 1; H = v.eF + 2; TRA = v.TRA
    A(f"{KNAME}:")
    stamp(90); stamp(92, True)
    A(f"s_cmp_ge_u32 s2, {NWG}")
    A("s_cbranch_scc1 K_END")
    load_ptrs(A)
    A(f"""
    v_lshrrev_b32 v{v.t0}, 6, v0
    v_and_b32 v{L}, 63, v0
    v_readfirstlane_b32 s3, v{v.t0}
    v_lshlrev_b32 v{v.t3}, 4, v{L}
    s_getpc_b64 {sr(sTB,2)}
    s_add_u32 s{sTB}, s{sTB}, K_TABLE@rel32@lo+4
    s_addc_u32 s{sTB+1}, s{sTB+1}, K_TABLE@rel32@hi+12
    global_load_dwordx4 {vr(v.SEL1,4)}, v{v.t3}, {sr(sTB,2)} offset:3072
    global_load_dwordx4 {vr(v.TAB,4)}, v{v.t3}, {sr(sTB,2)}
    global_load_dwordx4 {vr(v.TAB+4,4)}, v{v.t3}, {sr(sTB,2)} offset:1024
    global_load_dwordx4 {vr(v.SEL0,4)}, v{v.t3}, {sr(sTB,2)} offset:2048
    v_lshlrev_b32 v{v.t2}, 4, v0
    v_lshrrev_b32 v{WV}, 2, v{v.t3}
    v_lshrrev_b32 v{XV}, 4, v{v.t2}
    v_and_b32 v{WV}, 0xc0, v{WV}
    v_and_b32 v{XV}, 0xf0, v{XV}
    v_xor_b32 v{WV}, v{WV}, v{v.t3}
    v_xor_b32 v{XV}, v{XV}, v{v.t2}
    s_lshr_b32 s{sG}, s3, 2
    s_and_b32 s{sC}, s3, 3
    s_cmp_lt_u32 s2, 8
    s_cbranch_scc1 K_LOW
    K_LOWB:
    s_sub_u32 s23, s2, 3
    s_lshr_b32 s{sSl}, s23, 3
    s_cmp_ge_u32 s23, {NCHUNK}
    s_cselect_b32 s{sRole}, {1 - opt.get("r1f", 1)}, {opt.get("r1f", 1)}
    s_cselect_b32 s22, {NCHUNK}, 0
    s_sub_u32 s{sPair}, s23, s22
    s_lshl_b32 s2, s{sPair}, 1
    s_add_u32 s2, s2, s{sRole}
    s_mul_i32 s{sUT}, s{sPair}, {80*256}
    s_sub_u32 s{sX+2}, {N*256}, s{sUT}
    s_mov_b32 s{sX+3}, 0x00020000
    s_lshl_b32 s76, s3, 10
    s_add_u32 s77, s3, s{sSl}
    s_and_b32 s77, s77, {7 if opt.get("rot", 1) else 0}
    {"" if opt.get("rot", 1) else "s_mov_b32 s77, s3"}
    s_lshl_b32 s77, s77, 12
    s_cmp_eq_u32 s{sRole}, 0
    s_waitcnt lgkmcnt(0)
    """)
    def wsadj():
        if opt.get("wsoff"):
            A(f"s_add_u32 s{PWS}, s{PWS}, {opt['wsoff'] << 20}")
            A(f"s_addc_u32 s{PWS+1}, s{PWS+1}, 0")
    A(f"s_mov_b32 s22, {WS_TAG}")
    A(f"s_load_dword s{sTag}, s[{PWS}:{PWS+1}], s22")
    A("s_cbranch_scc0 K_GEMM")
    ool.append(f"""K_LOW:
    s_cmp_lg_u32 s3, 7
    s_cbranch_scc1 K_LOW2
    s_getpc_b64 s[22:23]
    K_PC:
    s_sub_u32 s22, s22, K_PC-{KNAME}
    s_subb_u32 s23, s23, 0
    v_lshlrev_b32 v{v.JK}, 7, v{L}
    v_add_u32 v{v.JK2}, 0x2000, v{v.JK}
    v_min_u32 v{v.JK2}, K_CODE_END-{KNAME}-4, v{v.JK2}
    global_load_dword v{v.PROG}, v{v.JK}, s[22:23]
    global_load_dword v{v.FV}, v{v.JK2}, s[22:23]
    K_LOW2:
    s_cmp_lt_u32 s2, 3
    s_cbranch_scc1 K_SPECIAL
    s_branch K_LOWB""")
    def xdma(n):
        A(f"""
        s_add_u32 s{sX}, s{PX}, s{sUT}
        s_addc_u32 s{sX+1}, s{PX+1}, 0
        s_add_u32 m0, s76, {L_X}
        s_movk_i32 s23, 0x2000
        buffer_load_dwordx4 v{XV}, {sr(sX,4)}, 0 offen lds
        s_add_u32 m0, s76, {L_X + 8192}
        s_movk_i32 s22, 0x4000
        buffer_load_dwordx4 v{XV}, {sr(sX,4)}, s23 offen lds
        """)
        if n == 3:
            A(f"s_add_u32 m0, s76, {L_X + 16384}")
            A("s_nop 0")
            A(f"buffer_load_dwordx4 v{XV}, {sr(sX,4)}, s22 offen lds")
    def wdma(soff, lds):
        A(f"s_add_u32 m0, s77, {lds}")
        if soff: A(f"s_add_u32 s22, s77, {soff}")
        else: A("s_nop 0")
        for q in range(4):
            A(f"buffer_load_dwordx4 v{WV}, {sr(sWm,4)}, s{22 if soff else 77} offen offset:{q*1024} lds")
    def w23dma(w2=True):
        if w2: wdma(32768, L_W2)
        A(f"s_add_u32 m0, s76, {L_W3}")
        A(f"s_add_u32 s22, s76, 65536")
        A(f"buffer_load_dwordx4 v{WV}, {sr(sWm,4)}, s22 offen lds")
    def sconsts():
        srd(A, sP, PWS, 0 if opt.get('nop') else N, stride=256)
        srd(A, sE, PE, 0 if opt.get('noe') else E, stride=32)
        srd(A, sOUT, POUT, N * 256)
        A(f"""
        s_mov_b32 s{sMode}, 0
        s_mov_b32 s{sNoE}, 0
        s_movk_i32 s{sK3F}, 0x3fff
        s_lshl_b32 s{sRing}, s3, 13
        s_lshr_b32 s22, s{sC}, 1
        s_mul_i32 s22, s22, 3072
        s_bfe_u32 s23, s{sC}, 0x10000
        s_lshl_b32 s23, s23, 10
        s_add_u32 s22, s22, s23
        s_mul_i32 s{sElim}, s{sG}, {GEA}
        s_add_u32 s{sE0}, s{sElim}, s22
        s_add_u32 s{sE0}, s{sE0}, {EA}
        s_mul_i32 s{sRel}, s2, 10240
        s_add_u32 s{sRel}, s{sRel}, 8448
        """)
    def vconsts():
        A(f"""
        v_add_u32 v{v.P0}, s{sRing}, v{v.P0}
        v_add_u32 v{v.E_}, s{sElim}, v{v.E_}
        s_mul_i32 s22, s{sG}, {GSL*8}
        v_xor_b32 v{v.P1}, 16, v{v.P0}
        v_add_u32 v{v.R1}, s22, v{v.R1}
        v_add_u32 v{v.R2}, s22, v{v.R2}
        s_lshl_b32 s23, s{sC}, 8
        s_add_u32 s22, s22, s23
        v_add_u32 v{v.Re}, s22, v{v.Re}
        s_lshl_b32 s22, s{sC}, 6
        v_or_b32 v{v.IX0+1}, s22, v{v.IXo}
        v_or_b32 v{v.IX1+1}, s22, v{v.IXo}
        v_xor_b32 v{TRA}, s22, v{TRA}
        s_mul_i32 s23, s2, 40
        s_mul_i32 s78, s{sG}, 20
        s_add_u32 s23, s23, s78
        s_lshl_b32 s23, s23, 8
        s_add_u32 s23, s23, s22
        v_add_u32 v{v.OA}, s23, v{v.OAl}
        v_mov_b32 v{v.IE+1}, v{v.IEo}
        s_mul_i32 s22, s3, {16*CH}
        v_add_u32 v{v.EB}, s22, v{v.EB}
        s_mul_i32 s22, s3, {4*3072}
        v_add_u32 v{v.QC}, s22, v{v.QC}
        s_lshl_b32 s22, s3, 2
        v_add_u32 v{v.FW}, s22, v{v.FRo}
        s_lshl_b32 s22, s{sG}, 4
        v_add_u32 v{v.FR}, s22, v{v.FRo}
        v_lshrrev_b32 v{H}, 5, v{L}
        s_add_u32 s{sRing}, s{sRing}, {RING}
        s_add_u32 s{sElim}, s{sElim}, {EA + GEA}
        """)
    def lds_init():
        A(f"""
        s_mul_i32 s22, s3, 3072
        s_add_u32 m0, s22, {EA + 2048}
        s_brev_b32 s23, 2
        buffer_load_dwordx4 v{v.t3}, {sr(sWS,4)}, s23 offen lds
        s_add_u32 m0, s22, {EA + 2048 + 24576}
        s_cmp_lt_u32 s3, 2
        buffer_load_dwordx4 v{v.t3}, {sr(sWS,4)}, s23 offen lds
        s_cselect_b32 s78, 0, {JUNK - (EA + 2048 + 73728) - 7 * 3072}
        s_add_u32 m0, s22, {EA + 2048 + 49152}
        s_cselect_b32 s79, s22, {7 * 3072}
        buffer_load_dwordx4 v{v.t3}, {sr(sWS,4)}, s23 offen lds
        """.replace("s_cselect_b32 s78, 0, " + str(JUNK - (EA + 2048 + 73728) - 7 * 3072) + "\n", "").replace(
            f"        s_add_u32 m0, s22, {EA + 2048 + 49152}\n        s_cselect_b32 s79, s22, {7 * 3072}\n",
            f"        s_cselect_b32 s79, s22, {JUNK - (EA + 2048 + 73728)}\n        s_add_u32 m0, s22, {EA + 2048 + 49152}\n        s_lshl_b32 s22, s3, 10\n"))
        A(f"""
        s_add_u32 m0, s79, {EA + 2048 + 73728}
        s_add_u32 s78, s{sTB}, 4096
        buffer_load_dwordx4 v{v.t3}, {sr(sWS,4)}, s23 offen lds
        s_addc_u32 s79, s{sTB+1}, 0
        s_add_u32 m0, s22, {REC - 1024}
        s_cmp_eq_u32 s3, 7
        global_load_lds_dwordx4 v{v.t3}, s[78:79] offset:1024
        s_cbranch_scc1 {A.label('i7')}
        """)
        l7 = f"L_i7_{A.uid}"
        A(f"""
        s_add_u32 m0, s22, {REC + 8192 - 1024}
        s_nop 0
        global_load_lds_dwordx4 v{v.t3}, s[78:79] offset:1024
        {l7}b:
        """)
        ool.append(f"{l7}:\ns_mov_b32 m0, 0\ns_nop 0\nglobal_load_lds_dwordx4 v{v.t3}, s[78:79]\ns_branch {l7}b")
    def tagget(x):
        pass
    def tagfix():
        A(f"s_add_u32 s{sTag}, s{sTag}, 2")
        A(f"s_or_b32 s{sTag}, s{sTag}, 0x40000001")
    def xred(regs, xs, pats=("quad_perm:[1,0,3,2]", "quad_perm:[2,3,0,1]")):
        for r, x in zip(regs, xs): A(f"v_bitop3_b32 v{x}, v{r}, v{r+1}, v{r+2} bitop3:0x96")
        for r, x in zip(regs, xs): A(f"v_xor_b32 v{x}, v{x}, v{r+3}")
        for pat in pats:
            if len(xs) < 3: A(f"s_nop {2 - len(xs)}")
            for x in xs: A(f"v_xor_b32_dpp v{x}, v{x}, v{x} {pat} row_mask:0xf bank_mask:0xf")
    def tagload(lbl):
        pass
    def qaddr():
        XA = v.E; GA = v.E + 1; TN = v.E + 2
        A(f"""
        s_mul_i32 s22, s{sG}, 20
        s_mul_i32 s23, s{sRole}, 40
        s_add_u32 s22, s22, s23
        v_and_b32 v{XA}, 31, v{L}
        v_add_u32 v{XA}, s22, v{XA}
        v_xor_b32 v{GA}, v{XA}, v{H}
        v_and_b32 v{GA}, 15, v{GA}
        v_lshl_or_b32 v{XA}, v{XA}, 4, v{GA}
        s_mov_b32 s22, {L_X}
        v_lshl_add_u32 v{XA}, v{XA}, 4, s22
        v_lshl_add_u32 v{TN}, v{H}, 11, v{TRA}
        v_add_u32 v{TN}, {L_W2}, v{TN}
        """)
    def qreads():
        XA = v.E; GA = v.E + 1; TN = v.E + 2
        for s_ in range(8):
            A(f"ds_read_b64_tr_b16 {vr(v.WA+4*s_,2)}, v{TN} offset:{s_*4096}")
            A(f"ds_read_b64_tr_b16 {vr(v.WA+4*s_+2,2)}, v{TN} offset:{s_*4096+1024}")
            if s_: A(f"v_xor_b32 v{GA}, {s_*32}, v{XA}")
            A(f"ds_read_b128 {vr(v.XF+4*s_,4)}, v{GA if s_ else XA}")
        A(f"ds_read_b64_tr_b16 {vr(v.W3F,2)}, v{TN} offset:32768")
        A(f"ds_read_b64_tr_b16 {vr(v.W3F+2,2)}, v{TN} offset:33792")
    def qmfma(per=3):
        for s_ in range(8):
            A(f"s_waitcnt lgkmcnt({min(15, per*(7-s_) + 2)})")
            A(mfma(v.E, v.XF + 4*s_, v.WA + 4*s_, "0" if s_ == 0 else None))
            A(f"v_mov_b64 {P(v.ACC+2*s_)}, 0")
        A(f"""
        s_mov_b32 s72, {NEG_LOG2E:#x}
        v_cmp_gt_u32 {sr(sN40,2)}, 40, v{L}
        v_cmp_le_u32 {sr(sG1,2)}, 20, v{L}
        v_mov_b32 v{v.ONE}, 1.0
        v_mov_b32 v{v.ONE+1}, 1.0
        s_waitcnt lgkmcnt(0)
        """)
        for r in range(4):
            A(f"""
            v_lshlrev_b32 v{v.S}, 16, v{v.W3F+r}
            v_and_b32 v{v.S+1}, 0xffff0000, v{v.W3F+r}
            v_mul_f32 v{v.S}, s72, v{v.S}
            v_mul_f32 v{v.S+1}, s72, v{v.S+1}
            v_cvt_pk_bf16_f32 v{v.W3F+r}, v{v.S}, v{v.S+1}
            """)
    def post(x):
        A(f"""
        s_cmp_lg_u32 s3, 0
        s_cbranch_scc1 K_NP{x}
        v_readfirstlane_b32 s{sTag}, v{v.FV}
        s_cmp_eq_u32 s{sTag}, 0
        s_cbranch_scc1 K_TAG{x}
        K_TAGOK{x}:
        s_mov_b64 exec, 1
        buffer_store_dword v{v.FV}, off, {sr(sWS,4)}, s{sUoff} sc1
        s_mov_b64 exec, -1
        K_NP{x}:
        """)
        ool.append(f"K_TAG{x}:\nbuffer_load_dword v{v.FV}, off, {sr(sDB,4)}, 0 sc1\ns_waitcnt vmcnt(0)\nv_readfirstlane_b32 s{sTag}, v{v.FV}\ns_cmp_eq_u32 s{sTag}, 0\ns_cbranch_scc1 K_TAG{x}\ns_branch K_TAGOK{x}")
    MC = opt.get("mc", 0)
    D, S, RK, AD = v.T, v.T + 8, v.T1, v.T1 + 8
    CW = v.E
    A(f"s_mul_i32 s22, s{sPair}, {CH*4}")
    srd(A, sD, PDST, CH * 4, add="s22")
    A(f"""
    v_lshlrev_b32 v{v.t1}, 2, v0
    s_movk_i32 s23, 0x2000
    buffer_load_dwordx4 {vr(D,4)}, v{v.t2}, {sr(sD,4)}, 0 offen
    buffer_load_dword v{D+4}, v{v.t1}, {sr(sD,4)}, s23 offen
    """)
    srd(A, sS, PSRC, CH * 4, add="s22")
    A(f"""
    buffer_load_dwordx4 {vr(S,4)}, v{v.t2}, {sr(sS,4)}, 0 offen
    buffer_load_dword v{S+4}, v{v.t1}, {sr(sS,4)}, s23 offen
    v_mov_b64 {P(CW)}, -1
    v_mov_b64 {P(CW+2)}, -1
    v_mov_b32 v{CW+4}, 16
    ds_write_b128 v{v.t2}, {vr(CW,4)}
    ds_write_b128 v{v.t2}, {vr(CW,4)} offset:8192
    ds_write_b128 v{v.t2}, {vr(CW,4)} offset:16384
    ds_write_b128 v{v.t2}, {vr(CW,4)} offset:24576
    ds_write_b32 v{v.t1}, v{CW+4} offset:32768
    """)
    srd(A, sWm, PWM, 272 * 256)
    EARLY0 = opt.get("e0", 0)
    P0M = opt.get("p0", 2)
    if P0M == 1:
        xdma(2); w23dma(False)
    nb0 = 3 if P0M == 1 else 0
    srd(A, sWS, PWS, 0x10000000 if (opt.get('rw') or opt.get('dup')) else (WS_END if not ST else 0x1000000))
    PW = opt.get("pw", 0)
    PW1 = PW >= 1; PW = PW == 1
    if PW:
        A(f"""
        s_lshl_b32 s78, s{sPair}, 15
        s_add_u32 s78, s78, {WS_CELL}
        """)
        for q in range(4):
            A(f"buffer_store_dwordx4 {vr(CW,4)}, v{v.t2}, {sr(sWS,4)}, s78 offen {STF}")
            if q < 3: A("s_add_u32 s78, s78, 8192")
    if PW: nb0 += 4
    sconsts()
    A(f"""
    v_lshlrev_b32 v{CW+6}, 22, v0
    v_add_u32 v{CW+7}, 0x800, v0
    v_lshlrev_b32 v{CW+7}, 20, v{CW+7}
    v_mov_b32 v{CW+5}, 16
    s_mov_b32 s72, -10
    s_mov_b32 s73, 0x100000
    s_mov_b32 s74, 0x200000
    s_mov_b32 s75, 0x300000
    s_lshl_b32 s78, s{sPair}, 6
    v_lshrrev_b32 v{CW+10}, 2, v0
    v_and_b32 v{CW+11}, 3, v0
    v_lshlrev_b32 v{CW+11}, 4, v{CW+11}
    v_lshl_add_u32 v{CW+12}, v{CW+10}, 13, v{CW+11}
    v_mul_u32_u24 v{CW+10}, 10240, v{CW+10}
    v_add_u32 v{CW+10}, v{CW+10}, v{CW+11}
    s_movk_i32 s79, {31*16}
    s_waitcnt lgkmcnt(0)
    s_barrier
    s_add_u32 s{sTag}, s{sTag}, 2
    s_or_b32 s{sTag}, s{sTag}, 0x40000001
    s_waitcnt vmcnt({2 + nb0})
    """)
    stamp(94)
    t = CW + 8
    for j in range(5):
        A(f"""
        v_mul_u32_u24 v{AD+j}, 0xcccd, v{D+j}
        v_lshrrev_b32 v{AD+j}, 19, v{AD+j}
        v_and_b32 v{AD+j}, -4, v{AD+j}
        ds_add_rtn_u32 v{RK+j}, v{AD+j}, v{CW+5} offset:32768
        """)
    if P0M == 1:
        wdma(32768, L_W2); nb0 += 4
    if P0M == 2:
        xdma(2); w23dma(); nb0 += 7
    for j in range(5):
        A(f"v_mad_i32_i24 v{D+j}, v{AD+j}, s72, v{D+j}")
    A(f"s_waitcnt vmcnt({nb0})")
    for j in range(5):
        d = D + j
        A(f"v_lshl_or_b32 v{d}, v{d}, 14, v{S+j}")
        if j == 0: A(f"v_add_u32 v{d}, v{d}, v{CW+6}")
        elif j < 4: A(f"v_add3_u32 v{d}, v{d}, v{CW+6}, s{72+j}")
        else: A(f"v_add_u32 v{d}, v{d}, v{CW+7}")
    A("s_waitcnt lgkmcnt(0)")
    pt("rk")
    A(f"v_max3_u32 v{t}, v{RK}, v{RK+1}, v{RK+2}")
    A(f"v_max3_u32 v{t}, v{t}, v{RK+3}, v{RK+4}")
    A(f"v_cmp_le_u32 vcc, s79, v{t}")
    A("s_cbranch_vccnz K_BOVF")
    A("K_BOVB:")
    B = Asm()
    B("K_BOVF:")
    B(f"v_mov_b32 v{t}, -2")
    for j in range(5):
        B(f"v_cmp_le_u32 vcc, s79, v{RK+j}")
        B(f"v_min_u32 v{RK+j}, s79, v{RK+j}")
        B("s_nop 0")
        B(f"v_cndmask_b32 v{D+j}, v{D+j}, v{t}, vcc")
    B("s_branch K_BOVB")
    ool.append(B.text())
    for j in range(5):
        r = RK + j
        A(f"""
        v_lshrrev_b32 v{t}, 4, v{r}
        v_and_b32 v{t+1}, 0x100, v{r}
        v_and_b32 v{r}, 0x30, v{r}
        v_and_or_b32 v{r}, v{t}, 12, v{r}
        v_lshl_or_b32 v{r}, v{t+1}, 6, v{r}
        v_lshl_add_u32 v{r}, v{AD+j}, 4, v{r}
        ds_write_b32 v{r}, v{D+j}
        """)
    A(f"""
    s_add_u32 s73, s78, {128*10240}
    s_add_u32 s74, s78, {WS_CELL}
    s_add_u32 s75, s74, {128*8192}
    s_movk_i32 s22, {1000 - 512}
    v_cmp_gt_u32 s[70:71], s22, v0
    s_not_b32 s22, s{sTag}
    s_waitcnt lgkmcnt(0)
    s_barrier
    """)
    pt("cb")
    X = v.T1
    A(f"""
    ds_read_b128 {vr(v.T,4)}, v{v.t2}
    ds_read_b128 {vr(v.T+4,4)}, v{v.t2} offset:8192
    ds_read_b128 {vr(v.T+8,4)}, v{v.t2} offset:16384
    ds_read_b128 {vr(v.T+12,4)}, v{v.t2} offset:24576
    s_waitcnt lgkmcnt(0)
    """)
    xred([v.T + 4*q for q in range(4)], [X + q for q in range(4)])
    A(f"""
    v_mov_b32_dpp v{X+4}, v{v.T+8} quad_perm:[0,0,0,0] row_mask:0xf bank_mask:0xf
    v_mov_b32_dpp v{X+5}, v{v.T+12} quad_perm:[0,0,0,0] row_mask:0xf bank_mask:0xf
    v_cmp_ne_u32 s[68:69], -1, v{X+4}
    v_cmp_ne_u32 vcc, -1, v{X+5}
    s_mov_b32 exec_lo, 0x11111111
    s_mov_b32 exec_hi, 0x11111111
    s_and_b64 s[70:71], s[70:71], vcc
    v_xor_b32 v{v.T}, s22, v{X}
    v_xor_b32 v{v.T+4}, s22, v{X+1}
    v_cndmask_b32 v{X+4}, 0, 1, s[68:69]
    v_cndmask_b32 v{X+5}, 0, 1, vcc
    v_xor_b32 v{v.T}, v{v.T}, v{X+4}
    v_xor_b32 v{v.T+4}, v{v.T+4}, v{X+5}
    s_mov_b32 exec_lo, 0x88888888
    s_mov_b32 exec_hi, 0x88888888
    v_xor_b32 v{v.T+11}, s22, v{X+2}
    v_xor_b32 v{v.T+15}, s22, v{X+3}
    s_mov_b64 exec, -1
    s_waitcnt vmcnt(0)
    buffer_store_dwordx4 {vr(v.T,4)}, v{CW+10}, {sr(sOUT,4)}, s78 offen {STF}
    buffer_store_dwordx4 {vr(v.T+4,4)}, v{CW+10}, {sr(sOUT,4)}, s73 offen {STF}
    s_mov_b64 exec, s[68:69]
    buffer_store_dwordx4 {vr(v.T+8,4)}, v{CW+12}, {sr(sWS,4)}, s74 offen {STF}
    s_mov_b64 exec, s[70:71]
    buffer_store_dwordx4 {vr(v.T+12,4)}, v{CW+12}, {sr(sWS,4)}, s75 offen {STF}
    s_mov_b64 exec, -1
    """)
    stamp(4)
    vconsts()
    A("s_branch K_COM0")
    A("K_GEMM:")
    pt("k0")
    if opt.get("wfirst"):
        srd(A, sWm, PWM, 272 * 256)
        wdma(0, 0)
        xdma(3)
    else:
        xdma(3)
        srd(A, sWm, PWM, 272 * 256)
        wdma(0, 0)
    G1M = opt.get("g1", 2)
    pt("g0")
    if G1M == 0: w23dma()
    pt("g1")
    srd(A, sWS, PWS, 0x10000000 if (opt.get('rw') or opt.get('dup')) else (WS_END if not ST else 0x1000000))
    sconsts()
    if opt.get("tlb"):
        A(f"""
        s_cmp_lg_u32 s3, 7
        s_cbranch_scc1 K_NOTLB
        v_lshlrev_b32 v{v.JK}, 21, v{L}
        v_lshlrev_b32 v{v.JK2}, 16, v{L}
        s_mov_b32 s22, 0x7ff80
        buffer_load_dword v{v.PROG}, v{v.JK}, {sr(sWS,4)}, s22 offen
        {f"buffer_load_dword v{v.LA}, v{v.JK2}, {sr(sE,4)}, 0 idxen" if opt.get("tlb") >= 2 else ""}
        {f"buffer_load_dword v{v.OHA}, v{v.JK}, {sr(sOUT,4)}, 0 offen" if opt.get("tlb") >= 2 else ""}
        K_NOTLB:
        """)
    XA = v.E; PA = v.E + 1; GA = v.E + 2; TN = v.E + 3
    A(f"""
    s_sub_u32 s{sPair}, s{sRel}, 256
    s_mov_b32 s72, {NEG_LOG2E:#x}
    s_add_u32 s73, s{sUT}, 0x2000
    s_add_u32 s74, s{sUT}, 0x4000
    s_cmp_ge_u32 s3, 4
    s_cselect_b32 s74, 0x40000000, s74
    """)
    A(f"""
    v_add_u32 v{v.JK3}, {L_BN}, v{v.t2}
    v_and_b32 v{XA}, 31, v{L}
    s_lshl_b32 s22, s{sG}, 5
    v_add_u32 v{XA}, s22, v{XA}
    s_waitcnt vmcnt({(12 if G1M == 0 else 7) })
    """)
    pt("g2")
    vconsts()
    A(f"""
    v_lshl_add_u32 v{TN}, v{H}, 11, v{TRA}
    s_lshl_b32 s22, s{sC}, 2
    v_lshl_add_u32 v{PA}, v{H}, 1, s22
    v_xor_b32 v{PA}, v{PA}, v{XA}
    v_and_b32 v{PA}, 15, v{PA}
    v_lshl_or_b32 v{PA}, v{XA}, 4, v{PA}
    s_mov_b32 s22, {L_BN}
    v_lshl_add_u32 v{PA}, v{PA}, 4, s22
    v_xor_b32 v{GA}, v{H}, v{XA}
    v_and_b32 v{GA}, 15, v{GA}
    v_lshl_or_b32 v{XA}, v{XA}, 4, v{GA}
    s_mov_b32 s22, {L_X}
    v_lshl_add_u32 v{XA}, v{XA}, 4, s22
    """)
    for s_ in range(1, 8):
        A(f"v_xor_b32 v{v.E+8+s_}, {s_*32}, v{XA}")
    pt("g3")
    if "gx" in PTS:
        A("s_waitcnt vmcnt(4)")
        pt("gx")
        A("s_waitcnt vmcnt(0)")
        pt("gw")
    if G1M == 1: w23dma()
    tagload("")
    A("s_waitcnt lgkmcnt(0)")
    tagfix()
    if PW1 and opt.get("w23e"): w23dma()
    if PW1: A("s_barrier")
    if PW1:
        A(f"""
        v_mov_b64 {P(v.T)}, 0
        v_mov_b64 {P(v.T+2)}, 0
        buffer_store_dwordx4 {vr(v.T,4)}, v{XV}, {sr(sWS,4)}, s{sUT} offen {STF}
        buffer_store_dwordx4 {vr(v.T,4)}, v{XV}, {sr(sWS,4)}, s73 offen {STF}
        buffer_store_dwordx4 {vr(v.T,4)}, v{XV}, {sr(sWS,4)}, s74 offen {STF}
        s_mov_b64 exec, 1
        buffer_store_dword v{v.T}, off, {sr(sWS,4)}, s{sPair} sc1
        s_mov_b64 exec, -1
        """)
    A(f"s_waitcnt vmcnt({(4 if PW1 else 0) + (5 if opt.get('w23e') else 0)})")
    A("s_barrier")
    stamp(94)
    if opt.get("tst"):
        sd = sOUT if opt["tst"] == "out" else sWS
        add = {"out": 0, "ws": 0, "ws2": 0x900000}[opt["tst"]]
        pt("t0")
        for r in (sUT, 73, 74):
            A(f"s_add_u32 s22, s{r}, {add}")
            A(f"buffer_store_dwordx4 {vr(v.T,4)}, v{XV}, {sr(sd,4)}, s22 offen {STF}")
        A("s_waitcnt vmcnt(0)")
        pt("t1")
    for s_ in range(8):
        A(f"ds_read_b64_tr_b16 {vr(v.WA+4*s_,2)}, v{TN} offset:{s_*4096}")
        A(f"ds_read_b64_tr_b16 {vr(v.WA+4*s_+2,2)}, v{TN} offset:{s_*4096+1024}")
        A(f"ds_read_b128 {vr(v.XF+4*s_,4)}, v{v.E+8+s_ if s_ else XA}")
    if G1M == 2 and not opt.get("w23e"): w23dma()
    A(f"s_cmp_lg_u32 s{sG}, 0")
    A("s_cbranch_scc1 K_G1")
    for s_ in range(8):
        A(f"ds_read_b128 {vr(v.U2+4*s_,4)}, v{v.E+8+s_ if s_ else XA} offset:16384")
    for s_ in range(8):
        A(f"s_waitcnt lgkmcnt({min(15, 3*(7-s_) + 8)})")
        A(mfma(v.T, v.WA + 4*s_, v.XF + 4*s_, "0" if s_ == 0 else None))
    for s_ in range(8):
        A(f"s_waitcnt lgkmcnt({7-s_})")
        A(mfma(v.T1, v.WA + 4*s_, v.U2 + 4*s_, "0" if s_ == 0 else None))
    def pout(acc, off, pk):
        for r in range(0, 16, 2):
            if pk:
                A(f"v_pk_mul_f32 {P(acc+r)}, {P(acc+r)}, s[72:73] op_sel_hi:[1,0]")
            else:
                A(f"v_mul_f32 v{acc+r}, s72, v{acc+r}")
                A(f"v_mul_f32 v{acc+r+1}, s72, v{acc+r+1}")
        for r in range(0, 16, 2):
            A(f"v_cvt_pk_bf16_f32 v{acc+r//2}, v{acc+r}, v{acc+r+1}")
        A(f"ds_write_b128 v{PA}, {vr(acc,4)} offset:{off}")
        A(f"ds_write_b128 v{GA}, {vr(acc+4,4)} offset:{off}")
    A(f"v_xor_b32 v{GA}, 16, v{PA}")
    pout(v.T, 0, False)
    pout(v.T1, 16384, True)
    A("s_branch K_G3")
    A("K_G1:")
    for s_ in range(8):
        A(f"s_waitcnt lgkmcnt({min(15, 3*(7-s_))})")
        A(mfma(v.T, v.WA + 4*s_, v.XF + 4*s_, "0" if s_ == 0 else None))
    A(f"v_xor_b32 v{GA}, 16, v{PA}")
    A("s_nop 10")
    pout(v.T, 0, False)
    A("K_G3:")
    pt("g4")
    A(f"""
    s_waitcnt lgkmcnt(0)
    s_barrier
    ds_read_b128 {vr(v.T,4)}, v{v.JK3}
    ds_read_b128 {vr(v.T+4,4)}, v{v.JK3} offset:8192
    ds_read_b128 {vr(v.T+8,4)}, v{v.JK3} offset:16384
    s_waitcnt lgkmcnt(2)
    """)

    A(f"""
    buffer_store_dwordx4 {vr(v.T,4)}, v{XV}, {sr(sWS,4)}, s{sUT} offen {STF}
    s_waitcnt lgkmcnt(1)
    buffer_store_dwordx4 {vr(v.T+4,4)}, v{XV}, {sr(sWS,4)}, s73 offen {STF}
    s_waitcnt lgkmcnt(0)
    buffer_store_dwordx4 {vr(v.T+8,4)}, v{XV}, {sr(sWS,4)}, s74 offen {STF}
    """)
    stamp(4)
    if G1M == 3:
        w23dma()
        qaddr()
        A("s_barrier")
        lds_init()
        A("s_waitcnt vmcnt(11)")
        A("s_barrier")
        pt("p1")
        A("s_cmp_eq_u32 s3, 0")
        A("s_cbranch_scc1 K2_B1")
        A("s_waitcnt vmcnt(6)")
        A("K2_B5:")
        A("s_barrier")
        qreads()
        qmfma()
        stamp(6)
        A("s_branch K_COMMON")
    A("s_waitcnt vmcnt(3)")
    A("K_COM0:")
    qaddr()
    A("s_barrier")
    pt("c1")
    qreads()
    lds_init()
    pt("c2")
    qmfma()
    stamp(6)
    A("K_COMMON:")
    pt("c3")
    for r in range(0, 12, 2):
        A(f"v_pk_mul_f32 {P(v.E+r)}, {P(v.E+r)}, s[72:73] op_sel_hi:[1,0]")
    A(f"""
    v_cvt_pk_bf16_f32 v{v.QS}, v{v.E}, v{v.E+1}
    v_cvt_pk_bf16_f32 v{v.QS+1}, v{v.E+2}, v{v.E+3}
    v_cvt_pk_bf16_f32 v{v.QF+2}, v{v.E+4}, v{v.E+5}
    v_cvt_pk_bf16_f32 v{v.QF+3}, v{v.E+6}, v{v.E+7}
    v_cvt_pk_bf16_f32 v{v.QS+2}, v{v.E+8}, v{v.E+9}
    v_cvt_pk_bf16_f32 v{v.QS+3}, v{v.E+10}, v{v.E+11}
    s_lshl_b32 s{sUoff}, s{sC}, 13
    s_add_u32 s{sUoff}, s{sUoff}, {WS_U}
    """)
    def round_regs():
        A(f"""
        v_mov_b32 v{v.TPa+1}, v{v.IX0+1}
        v_mov_b32 v{v.TPb+1}, v{v.IX0+1}
        v_mov_b32 v{v.IEb+1}, v{v.IE+1}
        v_mov_b32 v{v.aggF}, 1
        v_mov_b64 {P(v.REC)}, -1
        v_mov_b64 {P(v.REC+2)}, -1
        v_mov_b64 {P(v.REC+4)}, -1
        v_mov_b64 {P(v.REC+6)}, -1
        """)
    round_regs()
    A(f"""
    s_cmp_eq_u32 s{sRole}, 0
    s_cbranch_scc1 K2_B3
    """)
    if G1M == 2:
        A(f"""
        s_waitcnt vmcnt(6)
        s_barrier
        s_cmp_eq_u32 s3, 0
        s_cbranch_scc1 K2_B1
        """)
    A("K2_B2:")
    stamp(8)
    A(f"""
    K2_CELLS:
    s_mul_i32 s22, s2, 10240
    s_lshl_b32 s23, s2, 13
    s_add_u32 s23, s23, {WS_CELL}
    s_movk_i32 s76, 500
    v_cmp_gt_u32 s[74:75], s76, v0
    s_and_b32 s72, s74, 0x11111111
    s_and_b32 s73, s75, 0x11111111
    s_mov_b64 s[70:71], s[74:75]
    """)
    stamp(10)
    A(f"""
    K_POLL:
    s_mov_b64 exec, s[74:75]
    buffer_load_dwordx4 {vr(v.REC,4)}, v{v.t2}, {sr(sOUT,4)}, s22 offen sc1
    s_mov_b64 exec, -1
    s_waitcnt vmcnt(0)
    """)
    xred([v.REC], [v.NS])
    A(f"""
    v_xor_b32 v{v.NS}, s{sTag}, v{v.NS}
    v_cmp_lt_u32 vcc, 1, v{v.NS}
    s_and_b64 s[74:75], s[74:75], vcc
    s_cbranch_scc1 K_POLL2
    v_cmp_eq_u32 vcc, 1, v{v.NS}
    s_and_b64 s[76:77], s[70:71], vcc
    s_mov_b64 exec, s[76:77]
    buffer_load_dwordx4 {vr(v.REC+4,4)}, v{v.t2}, {sr(sWS,4)}, s23 offen sc1
    s_mov_b64 exec, s[72:73]
    v_mov_b32 v{v.REC}, -1
    s_mov_b64 exec, -1
    """)
    A(f"""
    s_cmp_lg_u32 s{sMode}, 0
    s_barrier
    s_cbranch_scc1 K2_COUNT
    ds_read_b128 {vr(v.SEL0,4)}, v{v.S0a}
    ds_read_b128 {vr(v.SEL1,4)}, v{v.S1a}
    K2_COUNT:
    """)
    ool.append(f"K2_B1:\nv_mov_b32 v{v.FV}, s{sTag}\ns_mov_b64 exec, 1\nbuffer_store_dword v{v.FV}, off, {sr(sOUT,4)}, s{sPair} sc1\ns_mov_b64 exec, -1\n{'s_waitcnt vmcnt(7)' if G1M == 3 else ''}\ns_branch {'K2_B5' if G1M == 3 else 'K2_B2'}")
    ool.append(f"K2_B3:\ns_sleep {opt.get('isl', 8)}\ns_branch K2_B2")
    ool.append(f"K_POLL2:\ns_sleep {opt.get('slp', 12)}\ns_branch K_POLL")
    stamp(12)
    ET = opt.get("et", 5)
    MAIN = [1, 0, 2, 3]; RARE = [4, 5, 6, 7]
    W0 = {j: v.W0 + 2 * j for j in MAIN}
    for j in MAIN:
        A(f"""
        v_cmp_gt_u32 {sr(sM+2*j,2)}, -2, v{v.REC+j}
        v_lshrrev_b32 v{v.AD+j}, 12, v{v.REC+j}
        v_and_b32 v{v.AD+j}, 0xfc, v{v.AD+j}
        s_mov_b64 exec, {sr(sM+2*j,2)}
        ds_add_rtn_u32 v{v.RANK+j}, v{v.AD+j}, v{v.aggF} offset:{CNT}
        s_mov_b64 exec, -1
        v_lshrrev_b32 v{W0[j]+1}, 20, v{v.REC+j}
        v_add_u32 v{W0[j]+1}, v{W0[j]+1}, v{v.EB}
        """)
    A("s_cmp_lg_u64 s[76:77], 0")
    A("s_cbranch_scc1 K2_CR")
    A("K2_CRB:")
    A2 = A
    B = Asm()
    B("K2_CR:")
    B("s_mov_b64 s[74:75], s[76:77]")
    B("K2_CR1:")
    B("s_waitcnt vmcnt(0)")
    B(f"""
    v_bitop3_b32 v{v.NS}, v{v.REC+4}, v{v.REC+5}, v{v.REC+6} bitop3:0x96
    v_xor_b32 v{v.NS}, v{v.NS}, v{v.REC+7}
    s_nop 1
    v_xor_b32_dpp v{v.NS}, v{v.NS}, v{v.NS} quad_perm:[1,0,3,2] row_mask:0xf bank_mask:0xf
    s_nop 1
    v_xor_b32_dpp v{v.NS}, v{v.NS}, v{v.NS} quad_perm:[2,3,0,1] row_mask:0xf bank_mask:0xf
    v_xor_b32 v{v.NS}, s{sTag}, v{v.NS}
    v_cmp_lt_u32 vcc, 1, v{v.NS}
    s_and_b64 s[74:75], s[74:75], vcc
    s_cbranch_scc0 K2_CR2
    s_sleep 2
    s_mov_b64 exec, s[74:75]
    buffer_load_dwordx4 {vr(v.REC+4,4)}, v{v.t2}, {sr(sWS,4)}, s23 offen sc1
    s_mov_b64 exec, -1
    s_branch K2_CR1
    K2_CR2:
    v_cmp_eq_u32 vcc, 1, v{v.NS}
    v_mov_b32 v{v.t1}, {FLAG}
    s_and_b64 exec, vcc, s[76:77]
    ds_write_b32 v{v.t1}, v{v.aggF}
    s_mov_b32 exec_lo, 0x88888888
    s_mov_b32 exec_hi, 0x88888888
    v_mov_b32 v{v.REC+7}, -1
    s_mov_b64 exec, -1
    """)
    for j in RARE:
        B(f"""
        v_cmp_gt_u32 vcc, -2, v{v.REC+j}
        s_cbranch_vccz K2_CRB
        v_lshrrev_b32 v{v.AD+j}, 12, v{v.REC+j}
        v_and_b32 v{v.AD+j}, 0xfc, v{v.AD+j}
        s_mov_b64 exec, vcc
        ds_add_rtn_u32 v{v.RANK+j}, v{v.AD+j}, v{v.aggF} offset:{CNT}
        s_mov_b64 exec, -1
        """)
    B("s_branch K2_CRB")
    ool.append(B.text())
    if ET:
        for j in MAIN:
            A(f"""
            v_subrev_u32 v{v.t0}, 80, v{v.AD+j}
            v_min_u32 v{v.t0}, v{v.t0}, v{v.AD+j}
            s_mov_b64 exec, {sr(sM+2*j,2)}
            v_cmpx_gt_u32 vcc, {4*ET}, v{v.t0}
            buffer_load_dword v{v.JK3}, v{W0[j]+1}, {sr(sE,4)}, 0 idxen
            s_mov_b64 exec, -1
            """)
    NPF = opt.get("pf", 0)
    if NPF:
        A(f"""
        s_or_b32 s22, s3, s{sMode}
        s_cmp_lg_u32 s22, 0
        s_cbranch_scc1 K2_NOPF
        v_cmp_ne_u32 vcc, s{sTag}, v{v.JK2}
        s_cbranch_vccnz K2_NOPF
        s_mul_i32 s22, s{sSl}, 81920
        v_lshlrev_b32 v{v.t0}, 7, v{L}
        """)
        for q in range(NPF):
            A(f"buffer_load_dword v{v.JK3}, v{v.t0}, {sr(sWS,4)}, s22 offen")
            if q < NPF - 1: A("s_add_u32 s22, s22, 8192")
        A("K2_NOPF:")
    c = v.t0; pd = v.OHA
    A(f"""
    v_lshlrev_b32 v{v.t0}, 2, v{L}
    v_mov_b32 v{v.t1}, {FLAG}
    s_mul_i32 s22, s{sG}, 20
    s_add_u32 s22, s22, 8
    s_waitcnt lgkmcnt(0)
    s_barrier
    """)
    pt("b2")
    A(f"""
    ds_read_b32 v{v.t0}, v{v.t0} offset:{CNT}
    ds_read_b32 v{v.t1}, v{v.t1}
    s_waitcnt lgkmcnt(0)
    v_add_u32 v{c}, 3, v{c}
    v_and_b32 v{c}, -4, v{c}
    v_max_u32 v{c}, 4, v{c}
    v_cndmask_b32 v{pd}, 0, v{c}, {sr(sN40,2)}
    v_readfirstlane_b32 s23, v{v.t1}
    s_nop 0
    v_add_u32_dpp v{c}, v{pd}, v{pd} row_shr:1 row_mask:0xf bank_mask:0xf bound_ctrl:0
    s_nop 1
    v_add_u32_dpp v{c}, v{c}, v{c} row_shr:2 row_mask:0xf bank_mask:0xf bound_ctrl:0
    s_nop 1
    v_add_u32_dpp v{c}, v{c}, v{c} row_shr:4 row_mask:0xf bank_mask:0xf bound_ctrl:0
    s_nop 1
    v_add_u32_dpp v{c}, v{c}, v{c} row_shr:8 row_mask:0xf bank_mask:0xf bound_ctrl:0
    s_nop 1
    v_add_u32_dpp v{c}, v{c}, v{c} row_bcast:15 row_mask:0xa bank_mask:0xf
    s_nop 1
    v_add_u32_dpp v{c}, v{c}, v{c} row_bcast:31 row_mask:0xc bank_mask:0xf
    s_cmp_lg_u32 s23, -1
    s_cbranch_scc1 K2_OVF
    v_readlane_b32 s{sT0}, v{c}, 19
    v_readlane_b32 s{sT1}, v{c}, 39
    v_sub_u32 v{pd}, v{c}, v{pd}
    s_sub_u32 s23, {GSL}, s{sT0}
    v_add_u32 v{c}, s23, v{pd}
    v_cndmask_b32 v{pd}, v{pd}, v{c}, {sr(sG1,2)}
    v_add_u32 v{v.FV}, v{pd}, v{v.OHB}
    """)
    for j in MAIN:
        A(f"ds_bpermute_b32 v{v.PK+j}, v{v.AD+j}, v{v.FV}")
    A(f"""
    v_readlane_b32 s{sTsw}, v{pd}, s22
    s_sub_u32 s{sT1}, s{sT1}, s{sT0}
    s_max_u32 s22, s{sT0}, s{sT1}
    s_cmp_gt_u32 s22, {GSL}
    s_cbranch_scc1 K2_OVF
    s_waitcnt lgkmcnt(0)
    """)
    pt("sc")
    A(f"""
    s_or_b32 s22, s3, s{sMode}
    s_cmp_lg_u32 s22, 0
    s_cbranch_scc1 K2_NRL
    s_buffer_load_dword s{sTile}, {sr(sOUT,4)}, s{sRel} glc
    K2_NRL:
    """)
    def sbody(j, w, mask):
        return f"""
        s_mov_b64 exec, {mask}
        v_add_u32_sdwa v{v.RANK+j}, v{v.PK+j}, v{v.RANK+j} dst_sel:DWORD dst_unused:UNUSED_PAD src0_sel:WORD_0 src1_sel:DWORD
        v_bfi_b32 v{w}, s{sK3F}, v{v.REC+j}, v{v.PK+j}
        v_lshlrev_b32 v{v.PK+j}, 3, v{v.RANK+j}
        v_lshrrev_b32 v{v.RANK+j}, 2, v{v.RANK+j}
        ds_write_b64 v{v.PK+j}, {P(w)} offset:{REC}
        ds_write_b8 v{v.RANK+j}, v{v.AD+j} offset:{QN}
        """
    for j in MAIN:
        A(sbody(j, W0[j], sr(sM+2*j,2)))
    A("s_cmp_lg_u64 s[76:77], 0")
    A("s_cbranch_scc1 K2_SR")
    A("K2_SRB:")
    B = Asm()
    B("K2_SR:")
    for j in RARE:
        w = v.W0 + 8
        B(f"""
        s_mov_b64 exec, -1
        v_cmp_gt_u32 vcc, -2, v{v.REC+j}
        s_cbranch_vccz K2_SRB
        ds_bpermute_b32 v{v.PK+j}, v{v.AD+j}, v{v.FV}
        v_lshrrev_b32 v{w+1}, 20, v{v.REC+j}
        v_add_u32 v{w+1}, v{w+1}, v{v.EB}
        s_waitcnt lgkmcnt(0)
        """)
        B(sbody(j, w, "vcc"))
    B("s_branch K2_SRB")
    ool.append(B.text())
    A(f"""
    s_mov_b64 exec, -1
    s_or_b32 s22, s3, s{sMode}
    s_cmp_lg_u32 s22, 0
    s_cbranch_scc1 K2_RDY
    s_waitcnt lgkmcnt(0)
    s_cmp_lg_u32 s{sTile}, s{sTag}
    s_cbranch_scc1 K2_SPOLL
    K2_RDY:
    s_mov_b32 m0, s{sRing}
    s_waitcnt lgkmcnt(0)
    s_barrier
    """)
    ool.append(f"K2_RPOLL:\nbuffer_load_dword v{v.JK2}, off, {sr(sOUT,4)}, s{sRel} sc1\ns_waitcnt vmcnt(0)\nv_cmp_ne_u32 vcc, s{sTag}, v{v.JK2}\ns_cbranch_vccz K2_RDY\ns_sleep 1\ns_branch K2_RPOLL")
    ool.append(f"K2_SPOLL:\ns_mov_b32 s23, 0\nK2_SP2:\ns_buffer_load_dword s22, {sr(sOUT,4)}, s{sRel} glc\ns_waitcnt lgkmcnt(0)\ns_cmp_eq_u32 s22, s{sTag}\ns_cbranch_scc1 K2_RDY\ns_add_u32 s23, s23, 1\ns_cmp_lt_u32 s23, 16\ns_cbranch_scc1 K2_SP2\ns_branch K2_RPOLL")
    stamp(14)
    A(f"""
    K2_START:
    ds_read_u16 v{v.IX0}, v{v.R1}
    ds_read_u16 v{v.IX1}, v{v.R1} offset:64
    ds_read_b32 v{v.IE}, v{v.Re}
    ds_read_u8 v{v.t0}, v0 offset:{QN}
    ds_read_u16 v{v.TPa}, v{v.R1} offset:256
    ds_read_u16 v{v.TPb}, v{v.R1} offset:320
    ds_read_b32 v{v.IEb}, v{v.Re} offset:1024
    ds_read_u8 v{v.OH0}, v{v.R2}
    ds_read_u8 v{v.OHA}, v{v.R2} offset:256
    s_waitcnt lgkmcnt(8)
    buffer_load_dwordx4 {P(v.IX0)}, {sr(sP,4)}, 0 idxen offen lds
    s_add_u32 m0, s{sRing}, 1024
    s_waitcnt lgkmcnt(7)
    buffer_load_dwordx4 {P(v.IX1)}, {sr(sP,4)}, 0 idxen offen lds
    s_cmp_lg_u32 s{sNoE}, 0
    s_cselect_b32 m0, {JUNK}, s{sE0}
    s_waitcnt lgkmcnt(5)
    buffer_load_dwordx4 {P(v.IE)}, {sr(sE,4)}, 0 idxen offen lds
    v_cmp_ne_u32 vcc, 0xff, v{v.t0}
    v_subrev_u32 v{v.t1}, 80, v{v.t0}
    v_min_u32 v{v.t0}, v{v.t0}, v{v.t1}
    v_lshl_add_u32 v{v.t1}, v{v.t0}, 3, v{v.QC}
    v_lshrrev_b32 v{v.t0}, 1, v{v.t0}
    v_and_b32 v{v.t0}, 16, v{v.t0}
    v_xor_b32 v{v.t1}, v{v.t1}, v{v.t0}
    v_mov_b32 v{v.t0}, 0x3f80
    s_mov_b64 exec, vcc
    ds_write_b16 v{v.t1}, v{v.t0}
    s_mov_b64 exec, -1
    s_add_u32 m0, s{sRing}, 2048
    s_waitcnt lgkmcnt(0)
    buffer_load_dwordx4 {P(v.TPa)}, {sr(sP,4)}, 0 idxen offen lds
    s_add_u32 m0, s{sRing}, 3072
    ds_read_u16 v{v.IX0}, v{v.R1} offset:512
    buffer_load_dwordx4 {P(v.TPb)}, {sr(sP,4)}, 0 idxen offen lds
    ds_read_u16 v{v.IX1}, v{v.R1} offset:576
    ds_read_u16 v{v.TPa}, v{v.R1} offset:768
    ds_read_u16 v{v.TPb}, v{v.R1} offset:832
    s_cmp_lg_u32 s{sNoE}, 0
    s_cbranch_scc1 K2_ST2
    s_mul_i32 s22, s{sG}, {GSL}
    s_sub_u32 s{sTsw}, s{sTsw}, s22
    s_add_u32 s{sTsw}, s{sTsw}, 31
    s_lshr_b32 s{sTsw}, s{sTsw}, 5
    s_cmp_eq_u32 s{sG}, 0
    s_cselect_b32 s{sTg}, s{sT0}, s{sT1}
    s_add_u32 s{sTg}, s{sTg}, 31
    s_lshr_b32 s{sTg}, s{sTg}, 5
    s_sub_u32 s{sUT}, s{sTg}, 9
    s_and_b32 s{sUT}, s{sUT}, -4
    s_add_u32 s{sUT}, s{sUT}, 1
    s_cmp_lt_u32 s{sTg}, 9
    s_cselect_b32 s{sUT}, {BIG}, s{sUT}
    s_cmp_lg_u32 s{sMode}, 0
    s_cselect_b32 s{sUT}, {BIG}, s{sUT}
    s_sub_u32 s{sT1}, s{sTg}, 1
    K2_ST2:
    s_sub_u32 s22, s{sTg}, 1
    s_lshr_b32 s22, s22, 1
    s_mul_i32 s22, s22, 3072
    s_add_u32 s22, s22, {3072 + 2048}
    v_add_u32 v{v.LA}, s22, v{v.E_}
    s_add_u32 s{sEdst}, s{sE0}, {6144 if opt.get('ek', 3) == 3 else 12288}
    s_mov_b32 s{sTile}, 0
    v_mov_b32 v{v.PROG}, 1
    v_mov_b64 {P(v.QF)}, {P(v.QS)}
    v_mov_b64 {P(v.NS)}, 0
    v_mov_b64 {P(v.NS+2)}, 0
    v_mov_b64 {P(v.DS)}, {P(v.ONE)}
    v_mov_b64 {P(v.DS+2)}, {P(v.ONE)}
    v_mov_b64 {P(v.MSG)}, 0
    v_mov_b64 {P(v.aggF)}, 0
    v_mov_b64 {P(v.aggF+2)}, 0
    v_mov_b64 {P(v.S)}, 0
    s_cmp_lg_u32 s{sNoE}, 0
    s_waitcnt vmcnt(2) lgkmcnt(0)
    s_cbranch_scc1 K2_GO
    s_barrier
    K2_GO:
    s_or_b32 s22, s{sMode}, s{sNoE}
    """)
    stamp(16)
    A(f"""
    ds_read_b128 {vr(v.ohF,4)}, v{v.OH0}
    ds_read_b128 {vr(v.eF,4)}, v{v.E_} offset:3072
    ds_read_b128 {vr(v.pF0,4)}, v{v.P0}
    ds_read_b128 {vr(v.pF1,4)}, v{v.P1}
    s_cbranch_scc1 K2_SAFEP
    """)
    def late_issue():
        A(f"""
        s_add_u32 m0, s{sRing}, 4096
        s_nop 0
        buffer_load_dwordx4 {P(v.IX0)}, {sr(sP,4)}, 0 idxen offen lds
        s_add_u32 m0, s{sRing}, 5120
        ds_read_u16 v{v.IX0}, v{v.R1} offset:1024
        buffer_load_dwordx4 {P(v.IX1)}, {sr(sP,4)}, 0 idxen offen lds
        """)
        if opt.get("ek", 3) == 2:
            A(f"""
            s_add_u32 m0, s{sE0}, 6144
            s_nop 0
            buffer_load_dwordx4 {P(v.IEb)}, {sr(sE,4)}, 0 idxen offen lds
            """)
        else:
            A(f"v_mov_b32 v{v.IE}, v{v.IEb}")
        A(f"""
        s_add_u32 m0, s{sRing}, 6144
        ds_read_u16 v{v.IX1}, v{v.R1} offset:1088
        buffer_load_dwordx4 {P(v.TPa)}, {sr(sP,4)}, 0 idxen offen lds
        s_add_u32 m0, s{sRing}, 7168
        s_nop 0
        buffer_load_dwordx4 {P(v.TPb)}, {sr(sP,4)}, 0 idxen offen lds
        """)
    chain(A, 3, "fast", None, ool, pre=True, mid=late_issue)
    A("K2_LOOP:")
    for k in range(4):
        stretch(A, k, "fast", ool)
        chain(A, k, "fast", "K2_EXIT", ool)
    A("s_branch K2_LOOP")
    A("K2_LAST0:")
    stretch(A, 0, "last", ool, last=True)
    A("s_branch K2_EXIT")
    A("K2_LAST1:")
    stretch(A, 1, "last", ool, last=True)
    A("K2_EXIT:")
    stamp(18)
    pt("x0")
    A(f"""
    s_setprio 0
    ds_read_b128 {vr(v.ohF,4)}, v{v.LA}
    {mfma(v.T1, v.U1 + 24, v.XF + 24)}
    v_rcp_f32 v{v.RS}, v{v.DS}
    v_rcp_f32 v{v.RS+1}, v{v.DS+1}
    v_rcp_f32 v{v.RS+2}, v{v.DS+2}
    v_rcp_f32 v{v.RS+3}, v{v.DS+3}
    {mfma(v.T1, v.U1 + 28, v.XF + 28)}
    v_fma_f32 v{v.S}, v{v.DS}, v{v.DS+2}, v{v.S}
    v_fma_f32 v{v.S+1}, v{v.DS+1}, v{v.DS+3}, v{v.S+1}
    v_mul_f32 v{v.NS}, v{v.NS}, v{v.RS}
    v_mul_f32 v{v.NS+1}, v{v.NS+1}, v{v.RS+1}
    v_mul_f32 v{v.NS+2}, v{v.NS+2}, v{v.RS+2}
    v_mul_f32 v{v.NS+3}, v{v.NS+3}, v{v.RS+3}
    K2_X2:
    s_bitcmp1_b32 s{sTg}, 0
    s_cbranch_scc0 K2_X3
    s_waitcnt lgkmcnt(1)
    {mfma(v.ACC, v.MSG, v.aggF)}
    v_cvt_pk_bf16_f32 v{v.MSG}, v{v.NS}, v{v.NS+1}
    v_cvt_pk_bf16_f32 v{v.MSG+1}, v{v.NS+2}, v{v.NS+3}
    s_branch K2_X4
    K2_X3:
    v_cvt_pk_bf16_f32 v{v.MSG+2}, v{v.NS}, v{v.NS+1}
    v_cvt_pk_bf16_f32 v{v.MSG+3}, v{v.NS+2}, v{v.NS+3}
    K2_X4:
    v_max_f32 v{v.S}, v{v.S}, v{v.S+1}
    s_waitcnt lgkmcnt(0)
    {mfma(v.ACC, v.MSG, v.ohF)}
    v_add_u32 v{v.t0}, s{sRing}, v{v.t3}
    s_cmp_eq_u32 s{sMode}, 1
    s_cbranch_scc1 K2_NEXTR
    K2_FIN:
    s_cmp_eq_u32 s{sUT}, {BIG}
    s_cbranch_scc1 K2_ULD
    K2_ULB:
    s_mov_b32 s22, {NEG_LN2:#x}
    s_mov_b32 s23, {f2u(2.0**60):#x}
    v_mov_b64 {P(v.NS)}, 0
    v_mov_b32 v{v.S+1}, 0
    s_lshl_b32 s76, s{sG}, 15
    s_add_u32 s76, s76, {RING}
    v_add_u32 v{v.t1}, s76, v{v.t3}
    """)
    pt("x1")
    B = Asm(); B("K2_ULD:")
    for i in range(16): u_load(B, i)
    B("s_waitcnt vmcnt(0)")
    for s_ in range(8):
        B(mfma(v.T1, v.U1 + 4*s_, v.XF + 4*s_, "0" if s_ == 0 else None))
    B("s_branch K2_ULB"); ool.append(B.text())
    for s in range(8):
        A(f"v_pk_mul_f32 {P(v.ACC+2*s)}, {P(v.ACC+2*s)}, s[22:23] op_sel_hi:[1,0]")
    for s in range(8):
        A(f"v_cvt_pk_bf16_f32 v{v.E+s}, v{v.ACC+2*s}, v{v.ACC+2*s+1}")
    for s in range(8):
        A(f"v_pk_fma_f32 {P(v.S)}, {P(v.ACC+2*s)}, {P(v.NS)}, {P(v.S)}")
    F = v.T1; AG = v.XF
    A(f"""
    v_add_f32 v{v.S}, v{v.S}, v{v.S+1}
    v_cmp_nge_f32 vcc, s23, v{v.S}
    s_cbranch_vccnz K2_TRIP
    K2_TRB:
    s_waitcnt vmcnt(0)
    ds_write_b128 v{v.t0}, {vr(v.E,4)}
    ds_write_b128 v{v.t0}, {vr(v.E+4,4)} offset:1024
    v_mov_b32 v{v.PROG}, 0x7fff
    """)
    ool.append(f"K2_TRIP:\ns_or_b32 s22, s{sMode}, s{sNoE}\ns_cmp_lg_u32 s22, 0\ns_cbranch_scc1 K2_TRB\ns_branch K2_REDO")
    A("s_waitcnt lgkmcnt(0)")
    A("s_mov_b64 exec, 1")
    A(f"ds_write_b32 v{v.FW}, v{v.PROG}")
    A("s_mov_b64 exec, -1")
    A(f"ds_read_b32 v{v.FV}, v{v.FR}")
    pt("x2")
    A(f"""
    K2_GS:
    s_waitcnt lgkmcnt(0)
    v_cmp_gt_u32 vcc, v{v.PROG}, v{v.FV}
    s_cbranch_vccnz K2_GS2
    """)
    ool.append(f"K2_GS2:\nds_read_b32 v{v.FV}, v{v.FR}\ns_branch K2_GS")
    stamp(96)
    pt("x3")
    for s in range(8):
        A(f"ds_read_b128 {vr(AG+4*s,4)}, v{v.t1} offset:{(s >> 1) * 8192 + (s & 1) * 1024}")
    for s in range(8):
        A(f"s_waitcnt lgkmcnt({7-s})")
        A(mfma(F, v.U2 + 4*s, AG + 4*s))
    pt("x4")
    A(f"s_mov_b32 s22, {NEG_LOG2E:#x}")
    A("s_nop 10")
    for r in range(0, 16, 2):
        A(f"v_pk_mul_f32 {P(v.E+r)}, {P(F+r)}, s[22:23] op_sel_hi:[1,0]")
    for r in range(16):
        A(f"v_exp_f32 v{v.E+r}, v{v.E+r}")
    for r in range(0, 16, 2):
        A(f"v_pk_add_f32 {P(v.E+r)}, {P(v.E+r)}, {P(v.ONE)}")
    for r in range(16):
        A(f"v_rcp_f32 v{v.E+r}, v{v.E+r}")
    for r in range(0, 16, 2):
        A(f"v_pk_mul_f32 {P(F+r)}, {P(F+r)}, {P(v.E+r)}")
    O = v.T
    for r in range(8):
        A(f"v_cvt_pk_bf16_f32 v{O+r}, v{F+2*r}, v{F+2*r+1}")
    A(f"""
    s_nop 1
    v_permlane32_swap_b32 v{O}, v{O+2}
    v_permlane32_swap_b32 v{O+1}, v{O+3}
    v_permlane32_swap_b32 v{O+4}, v{O+6}
    v_permlane32_swap_b32 v{O+5}, v{O+7}
    buffer_store_dwordx4 {vr(O,4)}, v{v.OA}, {sr(sOUT,4)}, 0 offen {opt.get("ost", "").replace("_", " ")}
    buffer_store_dwordx4 {vr(O+4,4)}, v{v.OA}, {sr(sOUT,4)}, 0 offen offset:32 {opt.get("ost", "").replace("_", " ")}
    """)
    pt("x5")
    A(f"""
    s_or_b32 s22, s2, s3
    s_cmp_eq_u32 s22, 0
    s_cbranch_scc1 K_ADV
    K_ADVB:
    """)
    ool.append(f"K_ADV:\nv_mov_b32 v1, s{sTag}\ns_mov_b32 s22, {WS_TAG}\ns_mov_b64 exec, 1\nbuffer_store_dword v1, off, {sr(sWS,4)}, s22 sc1\ns_mov_b64 exec, -1\ns_branch K_ADVB")
    if ST:
        A("s_waitcnt vmcnt(0)")
        A("s_memtime s[98:99]")
        A("s_memrealtime s[100:101]")
        A(f"""
        s_lshl_b32 s22, s2, 3
        s_add_u32 s22, s22, s3
        s_lshl_b32 s22, s22, 6
        s_add_u32 s22, s22, 0xA00000
        v_mov_b32 v1, 0
        s_waitcnt lgkmcnt(0)
        """)
        for i, r in enumerate([90, 94, 4, 6, 8, 10, 12, 14, 16, 18, 96, 98, 92, 100, sTg] if not PTS else [90, 94, 4, 44, 46, 48, 50, 96, 6, 12, 14, 98, 92, 100, sTg]):
            A(f"v_mov_b32 v2, s{r}")
            A(f"buffer_store_dword v2, v1, {sr(sWS,4)}, s22 offen offset:{4*i}")
    A("K_END:")
    A("s_endpgm")
    for o in ool: A(o)
    del ool[:]
    A(f"""
    K_SPECIAL:
    s_waitcnt lgkmcnt(0)
    s_mov_b32 s22, {WS_TAG}
    s_load_dword s{sTag}, s[{PWS}:{PWS+1}], s22
    """)
    if ST: srd(A, sDB, PDBG, 256)
    srd(A, sWS, PWS, WS_END)
    A(f"""
    s_cmp_lg_u32 s2, 0
    s_cbranch_scc1 K_HELPER
    s_cmp_lg_u32 s3, 0
    s_cbranch_scc1 K_END
    s_waitcnt lgkmcnt(0)
    s_add_u32 s{sTag}, s{sTag}, 2
    s_or_b32 s{sTag}, s{sTag}, 0x40000001
    v_mov_b32 v1, s{sTag}
    """)
    srd(A, sOUT, POUT, N * 256)
    A(f"""
    v_mul_u32_u24 v2, 20480, v0
    v_add_u32 v2, {10240 + 8192}, v2
    v_add_u32 v4, {64 * 20480}, v2
    v_cmp_gt_u32 vcc, {NCHUNK - 64}, v0
    v_mul_u32_u24 v5, 20480, v0
    v_add_u32 v5, {8192 - 61 * 20480}, v5
    v_cndmask_b32 v4, v5, v4, vcc
    v_cmp_eq_u32 vcc, 63, v0
    v_mul_u32_u24 v3, 10240, v0
    v_add_u32 v3, 8448, v3
    v_cndmask_b32 v4, v4, v2, vcc
    s_mov_b32 s76, {64 * 10240}
    s_mov_b32 s77, {128 * 10240}
    s_mov_b32 s78, {192 * 10240}
    {f"s_sleep {opt.get('msl')}" if opt.get('msl') else ""}
    K_MPOLL:
    buffer_load_dword v8, v2, {sr(sOUT,4)}, 0 offen sc1
    buffer_load_dword v9, v4, {sr(sOUT,4)}, 0 offen sc1
    s_waitcnt vmcnt(0)
    v_xor_b32 v8, v1, v8
    v_xor_b32 v9, v1, v9
    v_or_b32 v8, v8, v9
    v_cmp_ne_u32 vcc, 0, v8
    s_cbranch_vccnz K_MPOLL
    buffer_store_dword v1, v3, {sr(sOUT,4)}, 0 offen sc1
    buffer_store_dword v1, v3, {sr(sOUT,4)}, s76 offen sc1
    buffer_store_dword v1, v3, {sr(sOUT,4)}, s77 offen sc1
    buffer_store_dword v1, v3, {sr(sOUT,4)}, s78 offen sc1
    {"s_memrealtime s[90:91]" if ST else ""}
    {"s_waitcnt lgkmcnt(0)" if ST else ""}
    {"v_mov_b32 v2, s90" if ST else ""}
    {f"buffer_store_dword v2, off, {sr(sDB,4)}, 0 offset:8" if ST else ""}
    {"v_mov_b32 v2, s92" if ST else ""}
    {f"buffer_store_dword v2, off, {sr(sDB,4)}, 0 offset:12" if ST else ""}
    s_endpgm
    K_HELPER:
    s_sub_u32 s87, s2, 1
    s_lshl_b32 s82, s87, 15
    s_lshl_b32 s77, s3, 12
    """)
    srd(A, sWm, PWU, 32768, add="s82")
    wdma(0, 0)
    A(f"""
    s_waitcnt vmcnt(4)
    s_lshl_b32 s22, s{sC}, 6
    v_xor_b32 v{TRA}, s22, v{TRA}
    v_lshrrev_b32 v{H}, 5, v{L}
    s_sub_u32 s22, 11, s87
    v_lshlrev_b32 v{H}, s22, v{H}
    v_add_u32 v{TRA}, v{TRA}, v{H}
    s_lshl_b32 s22, s{sG}, 14
    v_add_u32 v{TRA}, s22, v{TRA}
    s_lshl_b32 s22, 1024, s87
    v_add_u32 v{H}, s22, v{TRA}
    s_lshl_b32 s22, s{sC}, 13
    s_add_u32 s82, s82, s22
    s_lshl_b32 s22, s{sG}, 12
    s_add_u32 s82, s82, s22
    s_add_u32 s82, s82, {WS_U}
    s_waitcnt vmcnt(0)
    s_barrier
    """)
    for s_ in range(4):
        A(f"ds_read_b64_tr_b16 {vr(v.T+4*s_,2)}, v{TRA} offset:{s_*4096}")
        A(f"ds_read_b64_tr_b16 {vr(v.T+4*s_+2,2)}, v{H} offset:{s_*4096}")
    A("s_waitcnt lgkmcnt(0)")
    for s_ in range(4):
        A(f"buffer_store_dwordx4 {vr(v.T+4*s_,4)}, v{v.t3}, {sr(sWS,4)}, s82 offen offset:{s_*1024} sc1")
    A(f"""
    s_waitcnt vmcnt(0)
    s_barrier
    s_cmp_lg_u32 s3, 0
    s_cbranch_scc1 K_END
    s_add_u32 s{sTag}, s{sTag}, 2
    s_or_b32 s{sTag}, s{sTag}, 0x40000001
    v_mov_b32 v1, s{sTag}
    """)
    srd(A, sOUT, POUT, N * 256)
    A(f"""
    s_mul_i32 s22, s87, 20480
    s_add_u32 s22, s22, 8192
    s_mov_b64 exec, 1
    buffer_store_dword v1, off, {sr(sOUT,4)}, s22 sc1
    s_endpgm
    """)
    A("K2_SAFEP:")
    chain(A, 3, "safe", None, ool, pre=True, mid=late_issue)
    A("K2_SAFE:")
    for k in range(4):
        stretch(A, k, "safe", ool)
        chain(A, k, "safe", "K2_SEXIT", ool)
    A("s_branch K2_SAFE")
    A(f"""
    K2_SEXIT:
    s_setprio 0
    ds_read_b128 {vr(v.ohF,4)}, v{v.LA}
    s_branch K2_X2
    """)
    def restore(reg=None):
        A(f"""
        s_lshr_b32 s23, s{reg or sTg}, 2
        s_mul_i32 s22, s23, 6144
        s_lshl_b32 s23, s23, 10
        v_subrev_u32 v{v.E_}, s22, v{v.E_}
        v_subrev_u32 v{v.R1}, s23, v{v.R1}
        v_subrev_u32 v{v.R2}, s23, v{v.R2}
        v_subrev_u32 v{v.Re}, s23, v{v.Re}
        """)
    A("K2_REDO:")
    restore(sT1)
    A(f"s_mov_b32 s{sUT}, {BIG}")
    A(f"s_mov_b32 s{sNoE}, 1")
    for r in range(0, 16, 2):
        A(f"v_mov_b64 {P(v.ACC+r)}, 0")
    A(f"v_mov_b32 v{v.TPa+1}, v{v.IX0+1}")
    A(f"v_mov_b32 v{v.TPb+1}, v{v.IX0+1}")
    A(f"s_mov_b32 m0, s{sRing}")
    A("s_waitcnt vmcnt(0) lgkmcnt(0)")
    A("s_branch K2_START")
    A(f"""
    K2_OVF:
    s_cmp_eq_u32 s{sMode}, 0
    s_cbranch_scc0 K2_OV2
    s_cmp_lg_u32 s3, 0
    s_cbranch_scc1 K2_OV2
    K2_OV1:
    buffer_load_dword v{v.JK2}, off, {sr(sOUT,4)}, s{sRel} sc1
    s_waitcnt vmcnt(0)
    v_cmp_ne_u32 vcc, s{sTag}, v{v.JK2}
    s_cbranch_vccnz K2_OV1
    K2_OV2:
    s_mov_b32 s{sMode}, 1
    s_mov_b32 s{sRound}, 0
    s_branch K2_ROUND
    K2_NEXTR:
    s_add_u32 s{sRound}, s{sRound}, 1
    s_cmp_ge_u32 s{sRound}, {E // 512}
    s_cbranch_scc1 K2_FIN
    """)
    restore()
    A(f"""
    K2_ROUND:
    s_load_dwordx4 s[76:79], s[0:1], 16
    s_waitcnt vmcnt(0) lgkmcnt(0)
    s_barrier
    """)
    srd(A, sS, 76, E * 4)
    srd(A, sD, 78, E * 4)
    round_regs()
    A(f"""
    s_lshl_b32 s22, s{sRound}, 9
    v_add_u32 v{v.EB}, s22, v0
    v_lshlrev_b32 v{v.t0}, 2, v{v.EB}
    buffer_load_dword v{v.REC}, v{v.t0}, {sr(sD,4)}, 0 offen
    buffer_load_dword v{v.REC+1}, v{v.t0}, {sr(sS,4)}, 0 offen
    """)
    lds_init()
    A(f"""
    s_mul_i32 s22, s2, 40
    s_waitcnt vmcnt(0)
    v_subrev_u32 v{v.REC}, s22, v{v.REC}
    v_cmp_gt_u32 vcc, 40, v{v.REC}
    v_lshl_or_b32 v{v.t0}, v{v.REC}, 14, v{v.REC+1}
    v_mov_b32 v{v.REC+1}, -1
    v_cndmask_b32 v{v.REC}, -1, v{v.t0}, vcc
    s_mov_b64 s[76:77], 0
    s_barrier
    s_branch K2_COUNT
    """)
    for o in ool: A(o)
    A("K_CODE_END:")
    return A.text()

HEADER = """; MPNN edge-MLP layer, fused single kernel (generated by gen/fz15.py).
; Kernarg layout (72 bytes, ptrs only, base s[0:1]):
;   32: w_msg (272,128) bf16 | 40: w_upd (256,128) bf16 | 48: d_out | 56: d_debug | 64: d_ws
"""
def build(opt):
    out = HEADER + f"; @launch grid=({NWG},1,1) block=(512,1,1) lds={LDS_TOTAL}\n"
    out += '.amdgcn_target "amdgcn-amd-amdhsa--gfx950"\n.text\n'
    out += f".globl {KNAME}\n.p2align 8\n.type {KNAME},@function\n" + gen(opt)
    acc = (NV + 3) // 4 * 4
    out += f""".section .rodata,"a"
.p2align 8
K_TABLE:
{tables()}.p2align 6
.amdhsa_kernel {KNAME}
  .amdhsa_next_free_vgpr {NV}
  .amdhsa_next_free_sgpr 102
  .amdhsa_accum_offset {acc}
  .amdhsa_group_segment_fixed_size 0
  .amdhsa_kernarg_size 72
  .amdhsa_user_sgpr_count 2
  .amdhsa_user_sgpr_kernarg_segment_ptr 1
  .amdhsa_system_sgpr_workgroup_id_x 1
.end_amdhsa_kernel
"""
    return out

if __name__ == "__main__":
    opt = {}
    for a in sys.argv[2:]:
        k_, v_ = a.split("=")
        opt[k_] = int(v_) if v_.lstrip("-").isdigit() else v_
    open(sys.argv[1], "w").write(build(opt))
```

```python
import sys, struct
from gen import Asm, vr, sr, srd, f2u, NEG_LOG2E, NEG_LN2, PX, PE, PSRC, PDST, PWM, PWU, POUT, PDBG, PWS, load_ptrs

KNAME = "standalone__mpnn_edge_mlp__graph_kernel"
N = 10000; E = 320000
NBIN = 250; NCHUNK = 125; CH = 2560
WS_CELL = 0x280000
WS_FLAG = 0x700000
WS_U = 0x708000
WS_END = WS_U + 0x10000
NWG = NBIN + 3
BIG = 0x7fffffff
WS_TAG = 0x27FF00

CNT = 0x100; QN = 0x200; FLAG = 0x3F0; TRIP = 0x3F4; REC = 0x400
TG = 26; GSL = TG * 32
REC_BYTES = (2 * GSL + 160) * 8
EA = REC + REC_BYTES
GEA = (TG // 2) * 3072
RING = EA + 2 * GEA
JUNK = RING + 65536
LDS_TOTAL = JUNK + 1024
FLG = CNT + 48 * 4
L_X = RING; L_W2 = RING + 0x6000; L_W3 = L_W2 + 32768; L_BN = 0x8000
assert RING % 256 == 0 and LDS_TOTAL <= 163840

class R: pass
v = R()
_n = 1
def alloc(name, n, align=1):
    global _n
    _n = (_n + align - 1) // align * align
    setattr(v, name, _n)
    _n += n
for nm in ("t0", "t1", "t2", "t3", "lane", "FW", "FV", "PROG", "JK", "JK2", "JK3", "OHA", "P1", "FR", "LA"):
    alloc(nm, 1)
TABN = ("E_", "R1", "R2", "Re", "P0", "EB", "QC", "OHB", "S0a", "FRo", "IXo", "IEo", "S1a", "TRA", "OAl", "Z_")
alloc("TAB", 0, 4)
for nm in TABN[:8]:
    alloc(nm, 1)
for nm in ("IX0", "IX1", "IE", "ONE", "S"):
    alloc(nm, 2, 2)
alloc("OA", 1)
for nm in ("W3F", "QF", "QS", "SEL0", "SEL1", "eF", "ohF", "pF0", "pF1", "aggF", "MSG", "NS", "DS", "RS"):
    alloc(nm, 4, 4)
for nm in ("T", "T1", "E", "ACC"):
    alloc(nm, 16, 4)
alloc("U1", 32, 4); alloc("U2", 32, 4); alloc("XF", 32, 4)
NV = _n
assert NV <= 256
for i_, nm in enumerate(TABN[8:]): setattr(v, nm, v.SEL0 + i_)
v.WA = v.ohF
assert v.RS == v.ohF + 28 and v.SEL1 == v.SEL0 + 4 and v.E == v.T1 + 16
v.REC = v.T; v.RANK = v.T + 8; v.AD = v.E; v.PK = v.E + 8
v.W0 = v.T1
v.TPa = v.T1 + 10; v.TPb = v.T1 + 12; v.IEb = v.T1 + 14; v.OH0 = v.pF1

sWS, sP, sE, sX, sOUT, sD, sS = 24, 28, 32, 36, 40, 44, 48
sG, sC, sTg, sTile, sTsw, sTag, sRing, sEdst, sMode, sRound, sRole, sElim = 52, 53, 54, 55, 56, 57, 58, 59, 60, 61, 62, 63
sM = 64
sWm = 64; sDB = 68
sTB = 80
sUT = 82; sNoE = 83; sK3F = 84; sT0, sT1 = 85, 86; sRel = 87; sUoff = 88; sPair = 89
sN40 = 36; sG1 = 38; sSl = 101; sE0 = 100; sOff = 61

OPT = {}
def P(r): return f"v[{r}:{r+1}]"
def mfma(d, a, b, c=None):
    return f"v_mfma_f32_32x32x16_bf16 {vr(d,16)}, {vr(a,4)}, {vr(b,4)}, {vr(d,16) if c is None else c}"
def pi8v(m):
    return ((m & 5) << 5) | ((m & 18) << 2) | ((m & 8) << 1)

def tables():
    rows = []
    for l in range(64):
        m, h = l & 31, l >> 5
        a16 = 16 + ((l & 8) << 3) + ((l & 3) << 4)
        n_ = l - 20 if l >= 20 else l
        a16n = 16 + ((n_ & 8) << 3) + ((n_ & 3) << 4)
        ohb = (a16n << (16 + 8 * ((n_ >> 2) & 1))) if l < 40 else 0
        sel = a16 if ((l >> 2) & 1) == h else 0
        d = dict(
            E_=m * 32 + (((h ^ (m >> 3)) & 1) << 4) + EA - 3072,
            R1=pi8v(l >> 2) + REC, R2=pi8v(m) + h + 2 + REC, Re=pi8v(l >> 1) + 4 + REC,
            P0=m * 64 + ((((m >> 2) ^ (2 * h)) & 3) << 4) + RING,
            EB=(l >> 2) * CH,
            QC=(l >> 4) * 3072 + ((l & 4) << 2) + (l & 8) + ((l & 3) << 1) + EA + 2048,
            OHB=ohb, FRo=(l & 3) * 4 + FLG,
            IXo=(((l >> 4) ^ l) & 3) << 4, IEo=(((l >> 4) ^ l) & 1) << 4,
            S0a=sel if m < 16 else 0, S1a=sel if m >= 16 else 0,
            TRA=(l & 3) * 8 + ((l >> 2) & 3) * 256 + (((l >> 2) & 3) << 6) + ((l >> 4) & 1) * 32,
            OAl=(m * 256 + h * 16) if m < 20 else 0x40000000, Z_=0)
        rows.append([d[n] for n in TABN])
    out = []
    for b in range(4):
        for l in range(64):
            out.append(".long " + ", ".join(f"{x:#x}" for x in rows[l][4*b:4*b+4]))
    img = [0] * 256
    for e_ in range(8):
        img[4 * (e_ + 1) + (e_ >> 1)] = 0x3f80 << (16 * (e_ & 1))
    for i in range(128, 256): img[i] = 0xffffffff
    for i in range(0, 256, 4):
        out.append(".long " + ", ".join(f"{x:#x}" for x in img[i:i+4]))
    for i in range(64):
        out.append(".long 0xffff, 0xffffffff, 0xffff, 0xffffffff")
    return "\n".join(out) + "\n"

def lst(A, k, variant, r):
    if OPT.get("ls") and variant == "fast" and k == OPT["ls"] - 1: A(f"s_memtime s[{r}:{r+1}]")

def u_load(A, i):
    off = (i >> 3) * 32768 + (i & 7) * 1024
    A(f"s_add_u32 s22, s{sUoff}, {off & ~4095}")
    A(f"buffer_load_dwordx4 {vr(v.U1+4*i,4)}, v{v.t3}, {sr(sWS,4)}, s22 offen offset:{off & 4095}")

def chain(A, k, variant, exit_label, ool, pre=False, mid=None):
    kk = k if k < 3 else -1
    safe = variant == "safe"
    EK = OPT.get("ek", 3)
    if not pre:
        A("s_setprio 2")
        A(f"s_add_u32 s{sTile}, s{sTile}, 1")
        if safe:
            A(f"s_cmp_ge_u32 s{sTile}, s{sTg}")
            A(f"s_cbranch_scc1 {exit_label}")
        lsw = A.label("sw"); lswb = A.label("swb")
        A(f"s_cmp_eq_u32 s{sTile}, s{sTsw}")
        A(f"s_cbranch_scc1 {lsw}")
        A(f"{lswb}:")
        ool.append(f"{lsw}:\nv_mov_b32 v{v.QF}, v{v.QS+2}\nv_mov_b32 v{v.QF+1}, v{v.QS+3}\ns_branch {lswb}")
        lst(A, k, variant, 10)
    A("s_waitcnt lgkmcnt(0)")
    if k % 2 == 0:
        A(mfma(v.ACC, v.MSG, v.aggF))
    n = 4 + (1 if ((k - 1) & 3) == EK or ((k - 2) & 3) == EK else 0)
    if EK == 3 and k == 1: n = 2
    if pre: n = 4 if EK == 3 else 5
    k2_ = kk + 2
    eread = f"ds_read_b128 {vr(v.eF,4)}, v{v.E_} offset:{3072 + (k2_ >> 1) * 3072 + (k2_ & 1) * 1024}"
    if k == 2: A(f"ds_read_b32 v{v.FV}, v{v.FR}")
    A(mfma(v.T, v.eF, v.W3F, "0"))
    if k != 2: A(eread)
    A(mfma(v.T, v.ohF, v.QF))
    A(f"ds_read_b128 {vr(v.ohF,4)}, v{v.OHA}")
    A(f"ds_read_u8 v{v.OHA}, v{v.R2} offset:{(kk + 3) * 256}")
    A(mfma(v.T, v.pF0, v.SEL0))
    if k == 2:
        A("s_waitcnt lgkmcnt(2)")
        A(f"v_cmp_gt_u32 vcc, v{v.PROG}, v{v.FV}")
    A(mfma(v.T, v.pF1, v.SEL1))
    A(f"s_setprio 0")
    lst(A, k, variant, 14)
    n_after = 2
    if k == 2:
        lw = A.label("fw"); lb = A.label("fb")
        if safe:
            A(f"s_cmp_lg_u32 s{sNoE}, 0")
            A(f"s_cbranch_scc1 {lb}")
        A(f"s_cbranch_vccnz {lw}")
        A(f"{lb}:")
        A(eread)
        ool.append(f"{lw}:\nds_read_b32 v{v.FV}, v{v.FR}\ns_waitcnt lgkmcnt(0)\nv_cmp_gt_u32 vcc, v{v.PROG}, v{v.FV}\ns_cbranch_vccnz {lw}\ns_branch {lb}")
        n_after += 2
    if mid: mid()
    A(f"s_waitcnt vmcnt({n})" + (" lgkmcnt(0)" if pre else ""))
    if k == 1:
        l1 = A.label("nf")
        if safe:
            A(f"s_cmp_lg_u32 s{sNoE}, 0")
            A(f"s_cbranch_scc1 {l1}")
        A("s_mov_b64 exec, 1")
        A(f"ds_write_b32 v{v.FW}, v{v.PROG}")
        A("s_mov_b64 exec, -1")
        if safe: A(f"{l1}:")
        else: n_after += 3
    if k == EK:
        if safe:
            A(f"s_cmp_lg_u32 s{sNoE}, 0")
            A(f"s_cselect_b32 s{sEdst}, s{sElim}, s{sEdst}")
        A(f"s_cmp_lt_u32 s{sEdst}, s{sElim}")
        A(f"s_cselect_b32 m0, s{sEdst}, {JUNK}")
        A(f"s_add_u32 s{sEdst}, s{sEdst}, 6144")
        A(f"buffer_load_dwordx4 {P(v.IE)}, {sr(sE,4)}, 0 idxen offen lds")
        n_after += 4
    A(f"s_add_u32 m0, s{sRing}, {((k + 1) & 3) * 2048}")
    A(f"ds_read_b128 {vr(v.pF0,4)}, v{v.P0} offset:{((k + 2) & 3) * 2048}")
    A(f"buffer_load_dwordx4 {P(v.IX0)}, {sr(sP,4)}, 0 idxen offen lds")
    A(f"s_add_u32 m0, s{sRing}, {((k + 1) & 3) * 2048 + 1024}")
    A(f"ds_read_b128 {vr(v.pF1,4)}, v{v.P1} offset:{((k + 2) & 3) * 2048}")
    A(f"buffer_load_dwordx4 {P(v.IX1)}, {sr(sP,4)}, 0 idxen offen lds")
    A(f"ds_read_u16 v{v.IX0}, v{v.R1} offset:{(kk + 6) * 256}")
    A(f"ds_read_u16 v{v.IX1}, v{v.R1} offset:{(kk + 6) * 256 + 64}")
    n_after += 8
    if k % 2 == 1 and not pre:
        A(f"ds_read_b128 {vr(v.aggF,4)}, v{v.E_} offset:{(1 if k == 1 else 0) * 3072 + 2048}")
        n_after += 1
    if k == EK - 1:
        A(f"ds_read_b32 v{v.IE}, v{v.Re} offset:{2 * 1024}")
        n_after += 1
    if not safe and not pre:
        lv = A.label("uv"); lvb = A.label("vb")
        A(f"s_sub_u32 s23, s{sTile}, s{sUT}")
        A(f"s_cmp_lt_u32 s23, 8")
        A(f"s_cbranch_scc1 {lv}")
        A(f"{lvb}:")
        n_after += 3
        B = Asm()
        B(f"{lv}:")
        B(f"s_cmp_ge_u32 s23, 4")
        B(f"s_cbranch_scc1 {lv}x")
        u_load(B, 2*k); u_load(B, 2*k+1)
        B(f"s_branch {lvb}")
        B(f"{lv}x:")
        u_load(B, 8+2*k); u_load(B, 8+2*k+1)
        B(f"s_branch {lvb}")
        ool.append(B.text())
    if n_after < 12:
        A(f"s_nop {12 - n_after - 1}")
    if not safe and not pre:
        A(f"s_cmp_eq_u32 s{sTile}, s{sT1}")
        A(f"s_cbranch_scc1 K2_LAST{(k + 1) & 1}")
    lst(A, k, variant, 12)

def stretch(A, k, variant, ool, last=False):
    T = v.T; E = v.E
    order = [0, 1, 8, 9, 2, 3, 10, 11, 4, 5, 12, 13, 6, 7, 14, 15]
    lst(A, k, variant, 94)
    for i, r in enumerate(order):
        if last and i % 3 == 0:
            A(mfma(v.T1, v.U1 + 4*(i//3), v.XF + 4*(i//3), "0" if i == 0 else None))
        A(f"v_exp_f32 v{E+r}, v{T+r}")
    if variant != "safe":
        for r in range(4):
            A(f"v_rcp_f32 v{v.RS+r}, v{v.DS+r}")
    if last: k = k & 1 | 4
    if k == 3:
        for s in (f"v_add_u32 v{v.E_}, 6144, v{v.E_}", f"v_add_u32 v{v.R1}, 1024, v{v.R1}",
                  f"v_add_u32 v{v.R2}, 1024, v{v.R2}", f"v_add_u32 v{v.Re}, 1024, v{v.Re}"): A(s)
    if k == 0:
        A(f"v_add_u32 v{v.PROG}, 1, v{v.PROG}")
    lst(A, k, variant, 4)
    A("s_setprio 1")
    mo = v.MSG + 2 * ((k + 1) % 2)
    if variant != "safe":
        A(f"v_pk_fma_f32 {P(v.S)}, {P(v.DS)}, {P(v.DS+2)}, {P(v.S)}")
        A(f"v_pk_mul_f32 {P(v.NS)}, {P(v.NS)}, {P(v.RS)}")
        A(f"v_pk_mul_f32 {P(v.NS+2)}, {P(v.NS+2)}, {P(v.RS+2)}")
    A(f"v_cvt_pk_bf16_f32 v{mo}, v{v.NS}, v{v.NS+1}")
    A(f"v_cvt_pk_bf16_f32 v{mo+1}, v{v.NS+2}, v{v.NS+3}")
    lst(A, k, variant, 6)
    if variant != "safe":
        ops = []
        for gi, g in enumerate((0, 8)):
            t, e = T + g, E + g
            o = [f"v_pk_add_f32 {P(e)}, {P(e)}, {P(v.ONE)}"]
            for u in (1, 2, 3):
                o.append(f"v_pk_fma_f32 {P(t)}, {P(t)}, {P(e+2*u)}, {P(t)}")
                o.append(f"v_pk_fma_f32 {P(t if u < 3 else v.NS+2*gi)}, {P(t+2*u)}, {P(e)}, {P(t)}")
                o.append(f"v_pk_fma_f32 {P(e if u < 3 else v.DS+2*gi)}, {P(e)}, {P(e+2*u)}, {P(e)}")
            ops.append(o)
        for a, b in zip(*ops):
            A(a); A(b)
    else:
        for r in range(0, 16, 2):
            A(f"v_pk_add_f32 {P(E+r)}, {P(E+r)}, {P(v.ONE)}")
        for r in range(16):
            A(f"v_rcp_f32 v{E+r}, v{E+r}")
        A("s_nop 0")
        for u in range(4):
            for gi, g in enumerate((0, 8)):
                if u == 0:
                    A(f"v_pk_mul_f32 {P(T+g)}, {P(T+g)}, {P(E+g)}")
                else:
                    A(f"v_pk_fma_f32 {P(T+g if u < 3 else v.NS+2*gi)}, {P(T+g+2*u)}, {P(E+g+2*u)}, {P(T+g)}")
    lst(A, k, variant, 8)

def gen(opt):
    OPT.clear(); OPT.update(opt)
    A = Asm()
    L = v.lane
    ST = opt.get("stamp", 0)
    PTS = opt.get("pts", "").split(",") if opt.get("pts") else []
    PSL = [44, 46, 48, 50, 96]
    def pt(name):
        if name in PTS:
            r = PSL[PTS.index(name)]
            A(f"s_memtime s[{r}:{r+1}]")
    def stamp(r, real=False):
        if PTS and r == 96: return
        if opt.get("ls") and r in (94, 4, 6, 8, 10, 12, 14): return
        if ST: A(f"s_mem{'real' if real else ''}time s[{r}:{r+1}]")
    ool = []
    STF = opt.get("stf", "sc0_sc1").replace("_", " ")
    WV = v.eF; XV = v.eF + 1; H = v.eF + 2; TRA = v.TRA
    A(f"{KNAME}:")
    stamp(90); stamp(92, True)
    A(f"s_cmp_ge_u32 s2, {NWG}")
    A("s_cbranch_scc1 K_END")
    load_ptrs(A)
    A(f"""
    v_lshrrev_b32 v{v.t0}, 6, v0
    v_and_b32 v{L}, 63, v0
    v_readfirstlane_b32 s3, v{v.t0}
    v_lshlrev_b32 v{v.t3}, 4, v{L}
    s_getpc_b64 {sr(sTB,2)}
    s_add_u32 s{sTB}, s{sTB}, K_TABLE@rel32@lo+4
    s_addc_u32 s{sTB+1}, s{sTB+1}, K_TABLE@rel32@hi+12
    global_load_dwordx4 {vr(v.SEL1,4)}, v{v.t3}, {sr(sTB,2)} offset:3072
    global_load_dwordx4 {vr(v.TAB,4)}, v{v.t3}, {sr(sTB,2)}
    global_load_dwordx4 {vr(v.TAB+4,4)}, v{v.t3}, {sr(sTB,2)} offset:1024
    global_load_dwordx4 {vr(v.SEL0,4)}, v{v.t3}, {sr(sTB,2)} offset:2048
    v_lshlrev_b32 v{v.t2}, 4, v0
    v_lshrrev_b32 v{WV}, 2, v{v.t3}
    v_lshrrev_b32 v{XV}, 4, v{v.t2}
    v_and_b32 v{WV}, 0xc0, v{WV}
    v_and_b32 v{XV}, 0xf0, v{XV}
    v_xor_b32 v{WV}, v{WV}, v{v.t3}
    v_xor_b32 v{XV}, v{XV}, v{v.t2}
    s_lshr_b32 s{sG}, s3, 2
    s_and_b32 s{sC}, s3, 3
    s_cmp_lt_u32 s2, 8
    s_cbranch_scc1 K_LOW
    K_LOWB:
    s_sub_u32 s23, s2, 3
    s_lshr_b32 s{sSl}, s23, 3
    s_cmp_ge_u32 s23, {NCHUNK}
    s_cselect_b32 s{sRole}, {1 - opt.get("r1f", 1)}, {opt.get("r1f", 1)}
    s_cselect_b32 s22, {NCHUNK}, 0
    s_sub_u32 s{sPair}, s23, s22
    s_lshl_b32 s2, s{sPair}, 1
    s_add_u32 s2, s2, s{sRole}
    s_mul_i32 s{sUT}, s{sPair}, {80*256}
    s_sub_u32 s{sX+2}, {N*256}, s{sUT}
    s_mov_b32 s{sX+3}, 0x00020000
    s_lshl_b32 s76, s3, 10
    s_add_u32 s77, s3, s{sSl}
    s_and_b32 s77, s77, {7 if opt.get("rot", 1) else 0}
    {"" if opt.get("rot", 1) else "s_mov_b32 s77, s3"}
    s_lshl_b32 s77, s77, 12
    s_cmp_eq_u32 s{sRole}, 0
    s_waitcnt lgkmcnt(0)
    """)
    def wsadj():
        if opt.get("wsoff"):
            A(f"s_add_u32 s{PWS}, s{PWS}, {opt['wsoff'] << 20}")
            A(f"s_addc_u32 s{PWS+1}, s{PWS+1}, 0")
    A(f"s_mov_b32 s22, {WS_TAG}")
    A(f"s_load_dword s{sTag}, s[{PWS}:{PWS+1}], s22")
    A("s_cbranch_scc0 K_GEMM")
    ool.append(f"""K_LOW:
    s_cmp_lg_u32 s3, 7
    s_cbranch_scc1 K_LOW2
    s_getpc_b64 s[22:23]
    K_PC:
    s_sub_u32 s22, s22, K_PC-{KNAME}
    s_subb_u32 s23, s23, 0
    v_lshlrev_b32 v{v.JK}, 7, v{L}
    v_add_u32 v{v.JK2}, 0x2000, v{v.JK}
    v_min_u32 v{v.JK2}, K_CODE_END-{KNAME}-4, v{v.JK2}
    global_load_dword v{v.PROG}, v{v.JK}, s[22:23]
    global_load_dword v{v.FV}, v{v.JK2}, s[22:23]
    K_LOW2:
    s_cmp_lt_u32 s2, 3
    s_cbranch_scc1 K_SPECIAL
    s_branch K_LOWB""")
    def xdma(n):
        A(f"""
        s_add_u32 s{sX}, s{PX}, s{sUT}
        s_addc_u32 s{sX+1}, s{PX+1}, 0
        s_add_u32 m0, s76, {L_X}
        s_movk_i32 s23, 0x2000
        buffer_load_dwordx4 v{XV}, {sr(sX,4)}, 0 offen lds
        s_add_u32 m0, s76, {L_X + 8192}
        s_movk_i32 s22, 0x4000
        buffer_load_dwordx4 v{XV}, {sr(sX,4)}, s23 offen lds
        """)
        if n == 3:
            A(f"s_add_u32 m0, s76, {L_X + 16384}")
            A("s_nop 0")
            A(f"buffer_load_dwordx4 v{XV}, {sr(sX,4)}, s22 offen lds")
    def wdma(soff, lds):
        A(f"s_add_u32 m0, s77, {lds}")
        if soff: A(f"s_add_u32 s22, s77, {soff}")
        else: A("s_nop 0")
        for q in range(4):
            A(f"buffer_load_dwordx4 v{WV}, {sr(sWm,4)}, s{22 if soff else 77} offen offset:{q*1024} lds")
    def w23dma(w2=True):
        if w2: wdma(32768, L_W2)
        A(f"s_add_u32 m0, s76, {L_W3}")
        A(f"s_add_u32 s22, s76, 65536")
        A(f"buffer_load_dwordx4 v{WV}, {sr(sWm,4)}, s22 offen lds")
    def sconsts():
        srd(A, sP, PWS, 0 if opt.get('nop') else N, stride=256)
        srd(A, sE, PE, 0 if opt.get('noe') else E, stride=32)
        srd(A, sOUT, POUT, N * 256)
        A(f"""
        s_mov_b32 s{sMode}, 0
        s_mov_b32 s{sNoE}, 0
        s_movk_i32 s{sK3F}, 0x3fff
        s_lshl_b32 s{sRing}, s3, 13
        s_lshr_b32 s22, s{sC}, 1
        s_mul_i32 s22, s22, 3072
        s_bfe_u32 s23, s{sC}, 0x10000
        s_lshl_b32 s23, s23, 10
        s_add_u32 s22, s22, s23
        s_mul_i32 s{sElim}, s{sG}, {GEA}
        s_add_u32 s{sE0}, s{sElim}, s22
        s_add_u32 s{sE0}, s{sE0}, {EA}
        s_mul_i32 s{sRel}, s2, 10240
        s_add_u32 s{sRel}, s{sRel}, 8448
        """)
    def vconsts():
        A(f"""
        v_add_u32 v{v.P0}, s{sRing}, v{v.P0}
        v_add_u32 v{v.E_}, s{sElim}, v{v.E_}
        s_mul_i32 s22, s{sG}, {GSL*8}
        v_xor_b32 v{v.P1}, 16, v{v.P0}
        v_add_u32 v{v.R1}, s22, v{v.R1}
        v_add_u32 v{v.R2}, s22, v{v.R2}
        s_lshl_b32 s23, s{sC}, 8
        s_add_u32 s22, s22, s23
        v_add_u32 v{v.Re}, s22, v{v.Re}
        s_lshl_b32 s22, s{sC}, 6
        v_or_b32 v{v.IX0+1}, s22, v{v.IXo}
        v_or_b32 v{v.IX1+1}, s22, v{v.IXo}
        v_xor_b32 v{TRA}, s22, v{TRA}
        s_mul_i32 s23, s2, 40
        s_mul_i32 s78, s{sG}, 20
        s_add_u32 s23, s23, s78
        s_lshl_b32 s23, s23, 8
        s_add_u32 s23, s23, s22
        v_add_u32 v{v.OA}, s23, v{v.OAl}
        v_mov_b32 v{v.IE+1}, v{v.IEo}
        s_mul_i32 s22, s3, {16*CH}
        v_add_u32 v{v.EB}, s22, v{v.EB}
        s_mul_i32 s22, s3, {4*3072}
        v_add_u32 v{v.QC}, s22, v{v.QC}
        s_lshl_b32 s22, s3, 2
        v_add_u32 v{v.FW}, s22, v{v.FRo}
        s_lshl_b32 s22, s{sG}, 4
        v_add_u32 v{v.FR}, s22, v{v.FRo}
        v_lshrrev_b32 v{H}, 5, v{L}
        s_add_u32 s{sRing}, s{sRing}, {RING}
        s_add_u32 s{sElim}, s{sElim}, {EA + GEA}
        """)
    def lds_init():
        A(f"""
        s_mul_i32 s22, s3, 3072
        s_add_u32 m0, s22, {EA + 2048}
        s_brev_b32 s23, 2
        buffer_load_dwordx4 v{v.t3}, {sr(sWS,4)}, s23 offen lds
        s_add_u32 m0, s22, {EA + 2048 + 24576}
        s_cmp_lt_u32 s3, 2
        buffer_load_dwordx4 v{v.t3}, {sr(sWS,4)}, s23 offen lds
        s_cselect_b32 s78, 0, {JUNK - (EA + 2048 + 73728) - 7 * 3072}
        s_add_u32 m0, s22, {EA + 2048 + 49152}
        s_cselect_b32 s79, s22, {7 * 3072}
        buffer_load_dwordx4 v{v.t3}, {sr(sWS,4)}, s23 offen lds
        """.replace("s_cselect_b32 s78, 0, " + str(JUNK - (EA + 2048 + 73728) - 7 * 3072) + "\n", "").replace(
            f"        s_add_u32 m0, s22, {EA + 2048 + 49152}\n        s_cselect_b32 s79, s22, {7 * 3072}\n",
            f"        s_cselect_b32 s79, s22, {JUNK - (EA + 2048 + 73728)}\n        s_add_u32 m0, s22, {EA + 2048 + 49152}\n        s_lshl_b32 s22, s3, 10\n"))
        A(f"""
        s_add_u32 m0, s79, {EA + 2048 + 73728}
        s_add_u32 s78, s{sTB}, 4096
        buffer_load_dwordx4 v{v.t3}, {sr(sWS,4)}, s23 offen lds
        s_addc_u32 s79, s{sTB+1}, 0
        s_add_u32 m0, s22, {REC - 1024}
        s_cmp_eq_u32 s3, 7
        global_load_lds_dwordx4 v{v.t3}, s[78:79] offset:1024
        s_cbranch_scc1 {A.label('i7')}
        """)
        l7 = f"L_i7_{A.uid}"
        A(f"""
        s_add_u32 m0, s22, {REC + 8192 - 1024}
        s_nop 0
        global_load_lds_dwordx4 v{v.t3}, s[78:79] offset:1024
        {l7}b:
        """)
        ool.append(f"{l7}:\ns_mov_b32 m0, 0\ns_nop 0\nglobal_load_lds_dwordx4 v{v.t3}, s[78:79]\ns_branch {l7}b")
    def tagget(x):
        pass
    def tagfix():
        A(f"s_add_u32 s{sTag}, s{sTag}, 2")
        A(f"s_or_b32 s{sTag}, s{sTag}, 0x40000001")
    def xred(regs, xs, pats=("quad_perm:[1,0,3,2]", "quad_perm:[2,3,0,1]")):
        for r, x in zip(regs, xs): A(f"v_bitop3_b32 v{x}, v{r}, v{r+1}, v{r+2} bitop3:0x96")
        for r, x in zip(regs, xs): A(f"v_xor_b32 v{x}, v{x}, v{r+3}")
        for pat in pats:
            if len(xs) < 3: A(f"s_nop {2 - len(xs)}")
            for x in xs: A(f"v_xor_b32_dpp v{x}, v{x}, v{x} {pat} row_mask:0xf bank_mask:0xf")
    def tagload(lbl):
        pass
    def qaddr():
        XA = v.E; GA = v.E + 1; TN = v.E + 2
        A(f"""
        s_mul_i32 s22, s{sG}, 20
        s_mul_i32 s23, s{sRole}, 40
        s_add_u32 s22, s22, s23
        v_and_b32 v{XA}, 31, v{L}
        v_add_u32 v{XA}, s22, v{XA}
        v_xor_b32 v{GA}, v{XA}, v{H}
        v_and_b32 v{GA}, 15, v{GA}
        v_lshl_or_b32 v{XA}, v{XA}, 4, v{GA}
        s_mov_b32 s22, {L_X}
        v_lshl_add_u32 v{XA}, v{XA}, 4, s22
        v_lshl_add_u32 v{TN}, v{H}, 11, v{TRA}
        v_add_u32 v{TN}, {L_W2}, v{TN}
        """)
    def qreads():
        XA = v.E; GA = v.E + 1; TN = v.E + 2
        for s_ in range(8):
            A(f"ds_read_b64_tr_b16 {vr(v.WA+4*s_,2)}, v{TN} offset:{s_*4096}")
            A(f"ds_read_b64_tr_b16 {vr(v.WA+4*s_+2,2)}, v{TN} offset:{s_*4096+1024}")
            if s_: A(f"v_xor_b32 v{GA}, {s_*32}, v{XA}")
            A(f"ds_read_b128 {vr(v.XF+4*s_,4)}, v{GA if s_ else XA}")
        A(f"ds_read_b64_tr_b16 {vr(v.W3F,2)}, v{TN} offset:32768")
        A(f"ds_read_b64_tr_b16 {vr(v.W3F+2,2)}, v{TN} offset:33792")
    def qmfma(per=3):
        for s_ in range(8):
            A(f"s_waitcnt lgkmcnt({min(15, per*(7-s_) + 2)})")
            A(mfma(v.E, v.XF + 4*s_, v.WA + 4*s_, "0" if s_ == 0 else None))
            A(f"v_mov_b64 {P(v.ACC+2*s_)}, 0")
        A(f"""
        s_mov_b32 s72, {NEG_LOG2E:#x}
        v_cmp_gt_u32 {sr(sN40,2)}, 40, v{L}
        v_cmp_le_u32 {sr(sG1,2)}, 20, v{L}
        v_mov_b32 v{v.ONE}, 1.0
        v_mov_b32 v{v.ONE+1}, 1.0
        s_waitcnt lgkmcnt(0)
        """)
        for r in range(4):
            A(f"""
            v_lshlrev_b32 v{v.S}, 16, v{v.W3F+r}
            v_and_b32 v{v.S+1}, 0xffff0000, v{v.W3F+r}
            v_mul_f32 v{v.S}, s72, v{v.S}
            v_mul_f32 v{v.S+1}, s72, v{v.S+1}
            v_cvt_pk_bf16_f32 v{v.W3F+r}, v{v.S}, v{v.S+1}
            """)
    def post(x):
        A(f"""
        s_cmp_lg_u32 s3, 0
        s_cbranch_scc1 K_NP{x}
        v_readfirstlane_b32 s{sTag}, v{v.FV}
        s_cmp_eq_u32 s{sTag}, 0
        s_cbranch_scc1 K_TAG{x}
        K_TAGOK{x}:
        s_mov_b64 exec, 1
        buffer_store_dword v{v.FV}, off, {sr(sWS,4)}, s{sUoff} sc1
        s_mov_b64 exec, -1
        K_NP{x}:
        """)
        ool.append(f"K_TAG{x}:\nbuffer_load_dword v{v.FV}, off, {sr(sDB,4)}, 0 sc1\ns_waitcnt vmcnt(0)\nv_readfirstlane_b32 s{sTag}, v{v.FV}\ns_cmp_eq_u32 s{sTag}, 0\ns_cbranch_scc1 K_TAG{x}\ns_branch K_TAGOK{x}")
    MC = opt.get("mc", 0)
    D, S, RK, AD = v.T, v.T + 8, v.T1, v.T1 + 8
    CW = v.E
    A(f"s_mul_i32 s22, s{sPair}, {CH*4}")
    srd(A, sD, PDST, CH * 4, add="s22")
    A(f"""
    v_lshlrev_b32 v{v.t1}, 2, v0
    s_movk_i32 s23, 0x2000
    buffer_load_dwordx4 {vr(D,4)}, v{v.t2}, {sr(sD,4)}, 0 offen
    buffer_load_dword v{D+4}, v{v.t1}, {sr(sD,4)}, s23 offen
    """)
    srd(A, sS, PSRC, CH * 4, add="s22")
    A(f"""
    buffer_load_dwordx4 {vr(S,4)}, v{v.t2}, {sr(sS,4)}, 0 offen
    buffer_load_dword v{S+4}, v{v.t1}, {sr(sS,4)}, s23 offen
    v_mov_b64 {P(CW)}, -1
    v_mov_b64 {P(CW+2)}, -1
    v_mov_b32 v{CW+4}, 16
    ds_write_b128 v{v.t2}, {vr(CW,4)}
    ds_write_b128 v{v.t2}, {vr(CW,4)} offset:8192
    ds_write_b128 v{v.t2}, {vr(CW,4)} offset:16384
    ds_write_b128 v{v.t2}, {vr(CW,4)} offset:24576
    ds_write_b32 v{v.t1}, v{CW+4} offset:32768
    """)
    srd(A, sWm, PWM, 272 * 256)
    EARLY0 = opt.get("e0", 0)
    P0M = opt.get("p0", 2)
    if P0M == 1:
        xdma(2); w23dma(False)
    nb0 = 3 if P0M == 1 else 0
    srd(A, sWS, PWS, 0x10000000 if (opt.get('rw') or opt.get('dup')) else (WS_END if not ST else 0x1000000))
    PW = opt.get("pw", 0)
    PW1 = PW >= 1; PW = PW == 1
    if PW:
        A(f"""
        s_lshl_b32 s78, s{sPair}, 15
        s_add_u32 s78, s78, {WS_CELL}
        """)
        for q in range(4):
            A(f"buffer_store_dwordx4 {vr(CW,4)}, v{v.t2}, {sr(sWS,4)}, s78 offen {STF}")
            if q < 3: A("s_add_u32 s78, s78, 8192")
    if PW: nb0 += 4
    sconsts()
    A(f"""
    v_lshlrev_b32 v{CW+6}, 22, v0
    v_add_u32 v{CW+7}, 0x800, v0
    v_lshlrev_b32 v{CW+7}, 20, v{CW+7}
    v_mov_b32 v{CW+5}, 16
    s_mov_b32 s72, -10
    s_mov_b32 s73, 0x100000
    s_mov_b32 s74, 0x200000
    s_mov_b32 s75, 0x300000
    s_lshl_b32 s78, s{sPair}, 6
    v_lshrrev_b32 v{CW+10}, 2, v0
    v_and_b32 v{CW+11}, 3, v0
    v_lshlrev_b32 v{CW+11}, 4, v{CW+11}
    v_lshl_add_u32 v{CW+12}, v{CW+10}, 13, v{CW+11}
    v_mul_u32_u24 v{CW+10}, 10240, v{CW+10}
    v_add_u32 v{CW+10}, v{CW+10}, v{CW+11}
    s_movk_i32 s79, {31*16}
    s_waitcnt lgkmcnt(0)
    s_barrier
    s_add_u32 s{sTag}, s{sTag}, 2
    s_or_b32 s{sTag}, s{sTag}, 0x40000001
    s_waitcnt vmcnt({2 + nb0})
    """)
    stamp(94)
    t = CW + 8
    for j in range(5):
        A(f"""
        v_mul_u32_u24 v{AD+j}, 0xcccd, v{D+j}
        v_lshrrev_b32 v{AD+j}, 19, v{AD+j}
        v_and_b32 v{AD+j}, -4, v{AD+j}
        ds_add_rtn_u32 v{RK+j}, v{AD+j}, v{CW+5} offset:32768
        """)
    if P0M == 1:
        wdma(32768, L_W2); nb0 += 4
    if P0M == 2:
        xdma(2); w23dma(); nb0 += 7
    for j in range(5):
        A(f"v_mad_i32_i24 v{D+j}, v{AD+j}, s72, v{D+j}")
    A(f"s_waitcnt vmcnt({nb0})")
    for j in range(5):
        d = D + j
        A(f"v_lshl_or_b32 v{d}, v{d}, 14, v{S+j}")
        if j == 0: A(f"v_add_u32 v{d}, v{d}, v{CW+6}")
        elif j < 4: A(f"v_add3_u32 v{d}, v{d}, v{CW+6}, s{72+j}")
        else: A(f"v_add_u32 v{d}, v{d}, v{CW+7}")
    A("s_waitcnt lgkmcnt(0)")
    pt("rk")
    A(f"v_max3_u32 v{t}, v{RK}, v{RK+1}, v{RK+2}")
    A(f"v_max3_u32 v{t}, v{t}, v{RK+3}, v{RK+4}")
    A(f"v_cmp_le_u32 vcc, s79, v{t}")
    A("s_cbranch_vccnz K_BOVF")
    A("K_BOVB:")
    B = Asm()
    B("K_BOVF:")
    B(f"v_mov_b32 v{t}, -2")
    for j in range(5):
        B(f"v_cmp_le_u32 vcc, s79, v{RK+j}")
        B(f"v_min_u32 v{RK+j}, s79, v{RK+j}")
        B("s_nop 0")
        B(f"v_cndmask_b32 v{D+j}, v{D+j}, v{t}, vcc")
    B("s_branch K_BOVB")
    ool.append(B.text())
    for j in range(5):
        r = RK + j
        A(f"""
        v_lshrrev_b32 v{t}, 4, v{r}
        v_and_b32 v{t+1}, 0x100, v{r}
        v_and_b32 v{r}, 0x30, v{r}
        v_and_or_b32 v{r}, v{t}, 12, v{r}
        v_lshl_or_b32 v{r}, v{t+1}, 6, v{r}
        v_lshl_add_u32 v{r}, v{AD+j}, 4, v{r}
        ds_write_b32 v{r}, v{D+j}
        """)
    A(f"""
    s_add_u32 s73, s78, {128*10240}
    s_add_u32 s74, s78, {WS_CELL}
    s_add_u32 s75, s74, {128*8192}
    s_movk_i32 s22, {1000 - 512}
    v_cmp_gt_u32 s[70:71], s22, v0
    s_not_b32 s22, s{sTag}
    s_waitcnt lgkmcnt(0)
    s_barrier
    """)
    pt("cb")
    X = v.T1
    A(f"""
    ds_read_b128 {vr(v.T,4)}, v{v.t2}
    ds_read_b128 {vr(v.T+4,4)}, v{v.t2} offset:8192
    ds_read_b128 {vr(v.T+8,4)}, v{v.t2} offset:16384
    ds_read_b128 {vr(v.T+12,4)}, v{v.t2} offset:24576
    s_waitcnt lgkmcnt(0)
    """)
    xred([v.T + 4*q for q in range(4)], [X + q for q in range(4)])
    A(f"""
    v_mov_b32_dpp v{X+4}, v{v.T+8} quad_perm:[0,0,0,0] row_mask:0xf bank_mask:0xf
    v_mov_b32_dpp v{X+5}, v{v.T+12} quad_perm:[0,0,0,0] row_mask:0xf bank_mask:0xf
    v_cmp_ne_u32 s[68:69], -1, v{X+4}
    v_cmp_ne_u32 vcc, -1, v{X+5}
    s_mov_b32 exec_lo, 0x11111111
    s_mov_b32 exec_hi, 0x11111111
    s_and_b64 s[70:71], s[70:71], vcc
    v_xor_b32 v{v.T}, s22, v{X}
    v_xor_b32 v{v.T+4}, s22, v{X+1}
    v_cndmask_b32 v{X+4}, 0, 1, s[68:69]
    v_cndmask_b32 v{X+5}, 0, 1, vcc
    v_xor_b32 v{v.T}, v{v.T}, v{X+4}
    v_xor_b32 v{v.T+4}, v{v.T+4}, v{X+5}
    s_mov_b32 exec_lo, 0x88888888
    s_mov_b32 exec_hi, 0x88888888
    v_xor_b32 v{v.T+11}, s22, v{X+2}
    v_xor_b32 v{v.T+15}, s22, v{X+3}
    s_mov_b64 exec, -1
    s_waitcnt vmcnt(0)
    buffer_store_dwordx4 {vr(v.T,4)}, v{CW+10}, {sr(sOUT,4)}, s78 offen {STF}
    buffer_store_dwordx4 {vr(v.T+4,4)}, v{CW+10}, {sr(sOUT,4)}, s73 offen {STF}
    s_mov_b64 exec, s[68:69]
    buffer_store_dwordx4 {vr(v.T+8,4)}, v{CW+12}, {sr(sWS,4)}, s74 offen {STF}
    s_mov_b64 exec, s[70:71]
    buffer_store_dwordx4 {vr(v.T+12,4)}, v{CW+12}, {sr(sWS,4)}, s75 offen {STF}
    s_mov_b64 exec, -1
    """)
    stamp(4)
    vconsts()
    A("s_branch K_COM0")
    A("K_GEMM:")
    pt("k0")
    if opt.get("wfirst"):
        srd(A, sWm, PWM, 272 * 256)
        wdma(0, 0)
        xdma(3)
    else:
        xdma(3)
        srd(A, sWm, PWM, 272 * 256)
        wdma(0, 0)
    G1M = opt.get("g1", 2)
    pt("g0")
    if G1M == 0: w23dma()
    pt("g1")
    srd(A, sWS, PWS, 0x10000000 if (opt.get('rw') or opt.get('dup')) else (WS_END if not ST else 0x1000000))
    sconsts()
    if opt.get("tlb"):
        A(f"""
        s_cmp_lg_u32 s3, 7
        s_cbranch_scc1 K_NOTLB
        v_lshlrev_b32 v{v.JK}, 21, v{L}
        v_lshlrev_b32 v{v.JK2}, 16, v{L}
        s_mov_b32 s22, 0x7ff80
        buffer_load_dword v{v.PROG}, v{v.JK}, {sr(sWS,4)}, s22 offen
        {f"buffer_load_dword v{v.LA}, v{v.JK2}, {sr(sE,4)}, 0 idxen" if opt.get("tlb") >= 2 else ""}
        {f"buffer_load_dword v{v.OHA}, v{v.JK}, {sr(sOUT,4)}, 0 offen" if opt.get("tlb") >= 2 else ""}
        K_NOTLB:
        """)
    XA = v.E; PA = v.E + 1; GA = v.E + 2; TN = v.E + 3
    A(f"""
    s_sub_u32 s{sPair}, s{sRel}, 256
    s_mov_b32 s72, {NEG_LOG2E:#x}
    s_add_u32 s73, s{sUT}, 0x2000
    s_add_u32 s74, s{sUT}, 0x4000
    s_cmp_ge_u32 s3, 4
    s_cselect_b32 s74, 0x40000000, s74
    """)
    A(f"""
    v_add_u32 v{v.JK3}, {L_BN}, v{v.t2}
    v_and_b32 v{XA}, 31, v{L}
    s_lshl_b32 s22, s{sG}, 5
    v_add_u32 v{XA}, s22, v{XA}
    s_waitcnt vmcnt({(12 if G1M == 0 else 7) })
    """)
    pt("g2")
    vconsts()
    A(f"""
    v_lshl_add_u32 v{TN}, v{H}, 11, v{TRA}
    s_lshl_b32 s22, s{sC}, 2
    v_lshl_add_u32 v{PA}, v{H}, 1, s22
    v_xor_b32 v{PA}, v{PA}, v{XA}
    v_and_b32 v{PA}, 15, v{PA}
    v_lshl_or_b32 v{PA}, v{XA}, 4, v{PA}
    s_mov_b32 s22, {L_BN}
    v_lshl_add_u32 v{PA}, v{PA}, 4, s22
    v_xor_b32 v{GA}, v{H}, v{XA}
    v_and_b32 v{GA}, 15, v{GA}
    v_lshl_or_b32 v{XA}, v{XA}, 4, v{GA}
    s_mov_b32 s22, {L_X}
    v_lshl_add_u32 v{XA}, v{XA}, 4, s22
    """)
    for s_ in range(1, 8):
        A(f"v_xor_b32 v{v.E+8+s_}, {s_*32}, v{XA}")
    pt("g3")
    if "gx" in PTS:
        A("s_waitcnt vmcnt(4)")
        pt("gx")
        A("s_waitcnt vmcnt(0)")
        pt("gw")
    if G1M == 1: w23dma()
    tagload("")
    A("s_waitcnt lgkmcnt(0)")
    tagfix()
    if PW1 and opt.get("w23e"): w23dma()
    if PW1: A("s_barrier")
    if PW1:
        A(f"""
        v_mov_b64 {P(v.T)}, 0
        v_mov_b64 {P(v.T+2)}, 0
        buffer_store_dwordx4 {vr(v.T,4)}, v{XV}, {sr(sWS,4)}, s{sUT} offen {STF}
        buffer_store_dwordx4 {vr(v.T,4)}, v{XV}, {sr(sWS,4)}, s73 offen {STF}
        buffer_store_dwordx4 {vr(v.T,4)}, v{XV}, {sr(sWS,4)}, s74 offen {STF}
        s_mov_b64 exec, 1
        buffer_store_dword v{v.T}, off, {sr(sWS,4)}, s{sPair} sc1
        s_mov_b64 exec, -1
        """)
    A(f"s_waitcnt vmcnt({(4 if PW1 else 0) + (5 if opt.get('w23e') else 0)})")
    A("s_barrier")
    stamp(94)
    if opt.get("tst"):
        sd = sOUT if opt["tst"] == "out" else sWS
        add = {"out": 0, "ws": 0, "ws2": 0x900000}[opt["tst"]]
        pt("t0")
        for r in (sUT, 73, 74):
            A(f"s_add_u32 s22, s{r}, {add}")
            A(f"buffer_store_dwordx4 {vr(v.T,4)}, v{XV}, {sr(sd,4)}, s22 offen {STF}")
        A("s_waitcnt vmcnt(0)")
        pt("t1")
    for s_ in range(8):
        A(f"ds_read_b64_tr_b16 {vr(v.WA+4*s_,2)}, v{TN} offset:{s_*4096}")
        A(f"ds_read_b64_tr_b16 {vr(v.WA+4*s_+2,2)}, v{TN} offset:{s_*4096+1024}")
        A(f"ds_read_b128 {vr(v.XF+4*s_,4)}, v{v.E+8+s_ if s_ else XA}")
    if G1M == 2 and not opt.get("w23e"): w23dma()
    A(f"s_cmp_lg_u32 s{sG}, 0")
    A("s_cbranch_scc1 K_G1")
    for s_ in range(8):
        A(f"ds_read_b128 {vr(v.U2+4*s_,4)}, v{v.E+8+s_ if s_ else XA} offset:16384")
    for s_ in range(8):
        A(f"s_waitcnt lgkmcnt({min(15, 3*(7-s_) + 8)})")
        A(mfma(v.T, v.WA + 4*s_, v.XF + 4*s_, "0" if s_ == 0 else None))
    for s_ in range(8):
        A(f"s_waitcnt lgkmcnt({7-s_})")
        A(mfma(v.T1, v.WA + 4*s_, v.U2 + 4*s_, "0" if s_ == 0 else None))
    def pout(acc, off, pk):
        for r in range(0, 16, 2):
            if pk:
                A(f"v_pk_mul_f32 {P(acc+r)}, {P(acc+r)}, s[72:73] op_sel_hi:[1,0]")
            else:
                A(f"v_mul_f32 v{acc+r}, s72, v{acc+r}")
                A(f"v_mul_f32 v{acc+r+1}, s72, v{acc+r+1}")
        for r in range(0, 16, 2):
            A(f"v_cvt_pk_bf16_f32 v{acc+r//2}, v{acc+r}, v{acc+r+1}")
        A(f"ds_write_b128 v{PA}, {vr(acc,4)} offset:{off}")
        A(f"ds_write_b128 v{GA}, {vr(acc+4,4)} offset:{off}")
    A(f"v_xor_b32 v{GA}, 16, v{PA}")
    pout(v.T, 0, False)
    pout(v.T1, 16384, True)
    A("s_branch K_G3")
    A("K_G1:")
    for s_ in range(8):
        A(f"s_waitcnt lgkmcnt({min(15, 3*(7-s_))})")
        A(mfma(v.T, v.WA + 4*s_, v.XF + 4*s_, "0" if s_ == 0 else None))
    A(f"v_xor_b32 v{GA}, 16, v{PA}")
    A("s_nop 10")
    pout(v.T, 0, False)
    A("K_G3:")
    pt("g4")
    A(f"""
    s_waitcnt lgkmcnt(0)
    s_barrier
    ds_read_b128 {vr(v.T,4)}, v{v.JK3}
    ds_read_b128 {vr(v.T+4,4)}, v{v.JK3} offset:8192
    ds_read_b128 {vr(v.T+8,4)}, v{v.JK3} offset:16384
    s_waitcnt lgkmcnt(2)
    """)

    A(f"""
    buffer_store_dwordx4 {vr(v.T,4)}, v{XV}, {sr(sWS,4)}, s{sUT} offen {STF}
    s_waitcnt lgkmcnt(1)
    buffer_store_dwordx4 {vr(v.T+4,4)}, v{XV}, {sr(sWS,4)}, s73 offen {STF}
    s_waitcnt lgkmcnt(0)
    buffer_store_dwordx4 {vr(v.T+8,4)}, v{XV}, {sr(sWS,4)}, s74 offen {STF}
    """)
    stamp(4)
    if G1M == 3:
        w23dma()
        qaddr()
        A("s_barrier")
        lds_init()
        A("s_waitcnt vmcnt(11)")
        A("s_barrier")
        pt("p1")
        A("s_cmp_eq_u32 s3, 0")
        A("s_cbranch_scc1 K2_B1")
        A("s_waitcnt vmcnt(6)")
        A("K2_B5:")
        A("s_barrier")
        qreads()
        qmfma()
        stamp(6)
        A("s_branch K_COMMON")
    A("s_waitcnt vmcnt(3)")
    A("K_COM0:")
    qaddr()
    A("s_barrier")
    pt("c1")
    qreads()
    lds_init()
    pt("c2")
    qmfma()
    stamp(6)
    A("K_COMMON:")
    pt("c3")
    for r in range(0, 12, 2):
        A(f"v_pk_mul_f32 {P(v.E+r)}, {P(v.E+r)}, s[72:73] op_sel_hi:[1,0]")
    A(f"""
    v_cvt_pk_bf16_f32 v{v.QS}, v{v.E}, v{v.E+1}
    v_cvt_pk_bf16_f32 v{v.QS+1}, v{v.E+2}, v{v.E+3}
    v_cvt_pk_bf16_f32 v{v.QF+2}, v{v.E+4}, v{v.E+5}
    v_cvt_pk_bf16_f32 v{v.QF+3}, v{v.E+6}, v{v.E+7}
    v_cvt_pk_bf16_f32 v{v.QS+2}, v{v.E+8}, v{v.E+9}
    v_cvt_pk_bf16_f32 v{v.QS+3}, v{v.E+10}, v{v.E+11}
    s_lshl_b32 s{sUoff}, s{sC}, 13
    s_add_u32 s{sUoff}, s{sUoff}, {WS_U}
    """)
    def round_regs():
        A(f"""
        v_mov_b32 v{v.TPa+1}, v{v.IX0+1}
        v_mov_b32 v{v.TPb+1}, v{v.IX0+1}
        v_mov_b32 v{v.IEb+1}, v{v.IE+1}
        v_mov_b32 v{v.aggF}, 1
        v_mov_b64 {P(v.REC)}, -1
        v_mov_b64 {P(v.REC+2)}, -1
        v_mov_b64 {P(v.REC+4)}, -1
        v_mov_b64 {P(v.REC+6)}, -1
        """)
    round_regs()
    A(f"""
    s_cmp_eq_u32 s{sRole}, 0
    s_cbranch_scc1 K2_B3
    """)
    if G1M == 2:
        A(f"""
        s_waitcnt vmcnt(6)
        s_barrier
        s_cmp_eq_u32 s3, 0
        s_cbranch_scc1 K2_B1
        """)
    A("K2_B2:")
    stamp(8)
    A(f"""
    K2_CELLS:
    s_mul_i32 s22, s2, 10240
    s_lshl_b32 s23, s2, 13
    s_add_u32 s23, s23, {WS_CELL}
    s_movk_i32 s76, 500
    v_cmp_gt_u32 s[74:75], s76, v0
    s_and_b32 s72, s74, 0x11111111
    s_and_b32 s73, s75, 0x11111111
    s_mov_b64 s[70:71], s[74:75]
    """)
    stamp(10)
    A(f"""
    K_POLL:
    s_mov_b64 exec, s[74:75]
    buffer_load_dwordx4 {vr(v.REC,4)}, v{v.t2}, {sr(sOUT,4)}, s22 offen sc1
    s_mov_b64 exec, -1
    s_waitcnt vmcnt(0)
    """)
    xred([v.REC], [v.NS])
    A(f"""
    v_xor_b32 v{v.NS}, s{sTag}, v{v.NS}
    v_cmp_lt_u32 vcc, 1, v{v.NS}
    s_and_b64 s[74:75], s[74:75], vcc
    s_cbranch_scc1 K_POLL2
    v_cmp_eq_u32 vcc, 1, v{v.NS}
    s_and_b64 s[76:77], s[70:71], vcc
    s_mov_b64 exec, s[76:77]
    buffer_load_dwordx4 {vr(v.REC+4,4)}, v{v.t2}, {sr(sWS,4)}, s23 offen sc1
    s_mov_b64 exec, s[72:73]
    v_mov_b32 v{v.REC}, -1
    s_mov_b64 exec, -1
    """)
    A(f"""
    s_cmp_lg_u32 s{sMode}, 0
    s_barrier
    s_cbranch_scc1 K2_COUNT
    ds_read_b128 {vr(v.SEL0,4)}, v{v.S0a}
    ds_read_b128 {vr(v.SEL1,4)}, v{v.S1a}
    K2_COUNT:
    """)
    ool.append(f"K2_B1:\nv_mov_b32 v{v.FV}, s{sTag}\ns_mov_b64 exec, 1\nbuffer_store_dword v{v.FV}, off, {sr(sOUT,4)}, s{sPair} sc1\ns_mov_b64 exec, -1\n{'s_waitcnt vmcnt(7)' if G1M == 3 else ''}\ns_branch {'K2_B5' if G1M == 3 else 'K2_B2'}")
    ool.append(f"K2_B3:\ns_sleep {opt.get('isl', 8)}\ns_branch K2_B2")
    ool.append(f"K_POLL2:\ns_sleep {opt.get('slp', 12)}\ns_branch K_POLL")
    stamp(12)
    ET = opt.get("et", 5)
    MAIN = [1, 0, 2, 3]; RARE = [4, 5, 6, 7]
    W0 = {j: v.W0 + 2 * j for j in MAIN}
    for j in MAIN:
        A(f"""
        v_cmp_gt_u32 {sr(sM+2*j,2)}, -2, v{v.REC+j}
        v_lshrrev_b32 v{v.AD+j}, 12, v{v.REC+j}
        v_and_b32 v{v.AD+j}, 0xfc, v{v.AD+j}
        s_mov_b64 exec, {sr(sM+2*j,2)}
        ds_add_rtn_u32 v{v.RANK+j}, v{v.AD+j}, v{v.aggF} offset:{CNT}
        s_mov_b64 exec, -1
        v_lshrrev_b32 v{W0[j]+1}, 20, v{v.REC+j}
        v_add_u32 v{W0[j]+1}, v{W0[j]+1}, v{v.EB}
        """)
    A("s_cmp_lg_u64 s[76:77], 0")
    A("s_cbranch_scc1 K2_CR")
    A("K2_CRB:")
    A2 = A
    B = Asm()
    B("K2_CR:")
    B("s_mov_b64 s[74:75], s[76:77]")
    B("K2_CR1:")
    B("s_waitcnt vmcnt(0)")
    B(f"""
    v_bitop3_b32 v{v.NS}, v{v.REC+4}, v{v.REC+5}, v{v.REC+6} bitop3:0x96
    v_xor_b32 v{v.NS}, v{v.NS}, v{v.REC+7}
    s_nop 1
    v_xor_b32_dpp v{v.NS}, v{v.NS}, v{v.NS} quad_perm:[1,0,3,2] row_mask:0xf bank_mask:0xf
    s_nop 1
    v_xor_b32_dpp v{v.NS}, v{v.NS}, v{v.NS} quad_perm:[2,3,0,1] row_mask:0xf bank_mask:0xf
    v_xor_b32 v{v.NS}, s{sTag}, v{v.NS}
    v_cmp_lt_u32 vcc, 1, v{v.NS}
    s_and_b64 s[74:75], s[74:75], vcc
    s_cbranch_scc0 K2_CR2
    s_sleep 2
    s_mov_b64 exec, s[74:75]
    buffer_load_dwordx4 {vr(v.REC+4,4)}, v{v.t2}, {sr(sWS,4)}, s23 offen sc1
    s_mov_b64 exec, -1
    s_branch K2_CR1
    K2_CR2:
    v_cmp_eq_u32 vcc, 1, v{v.NS}
    v_mov_b32 v{v.t1}, {FLAG}
    s_and_b64 exec, vcc, s[76:77]
    ds_write_b32 v{v.t1}, v{v.aggF}
    s_mov_b32 exec_lo, 0x88888888
    s_mov_b32 exec_hi, 0x88888888
    v_mov_b32 v{v.REC+7}, -1
    s_mov_b64 exec, -1
    """)
    for j in RARE:
        B(f"""
        v_cmp_gt_u32 vcc, -2, v{v.REC+j}
        s_cbranch_vccz K2_CRB
        v_lshrrev_b32 v{v.AD+j}, 12, v{v.REC+j}
        v_and_b32 v{v.AD+j}, 0xfc, v{v.AD+j}
        s_mov_b64 exec, vcc
        ds_add_rtn_u32 v{v.RANK+j}, v{v.AD+j}, v{v.aggF} offset:{CNT}
        s_mov_b64 exec, -1
        """)
    B("s_branch K2_CRB")
    ool.append(B.text())
    def touches():
        if ET:
            for j in MAIN:
                A(f"""
                v_subrev_u32 v{v.t0}, 80, v{v.AD+j}
                v_min_u32 v{v.t0}, v{v.t0}, v{v.AD+j}
                s_mov_b64 exec, {sr(sM+2*j,2)}
                v_cmpx_gt_u32 vcc, {4*ET}, v{v.t0}
                buffer_load_dword v{v.JK3}, v{W0[j]+1}, {sr(sE,4)}, 0 idxen
                s_mov_b64 exec, -1
                """)
    ETL = opt.get("etl", 0)
    if ETL == 0: touches()
    NPF = opt.get("pf", 0)
    if NPF:
        A(f"""
        s_or_b32 s22, s3, s{sMode}
        s_cmp_lg_u32 s22, 0
        s_cbranch_scc1 K2_NOPF
        v_cmp_ne_u32 vcc, s{sTag}, v{v.JK2}
        s_cbranch_vccnz K2_NOPF
        s_mul_i32 s22, s{sSl}, 81920
        v_lshlrev_b32 v{v.t0}, 7, v{L}
        """)
        for q in range(NPF):
            A(f"buffer_load_dword v{v.JK3}, v{v.t0}, {sr(sWS,4)}, s22 offen")
            if q < NPF - 1: A("s_add_u32 s22, s22, 8192")
        A("K2_NOPF:")
    c = v.t0; pd = v.OHA
    A(f"""
    v_lshlrev_b32 v{v.t0}, 2, v{L}
    v_mov_b32 v{v.t1}, {FLAG}
    s_mul_i32 s22, s{sG}, 20
    s_add_u32 s22, s22, 8
    s_waitcnt lgkmcnt(0)
    s_barrier
    """)
    pt("b2")
    A(f"""
    ds_read_b32 v{v.t0}, v{v.t0} offset:{CNT}
    ds_read_b32 v{v.t1}, v{v.t1}
    s_waitcnt lgkmcnt(0)
    v_add_u32 v{c}, 3, v{c}
    v_and_b32 v{c}, -4, v{c}
    v_max_u32 v{c}, 4, v{c}
    v_cndmask_b32 v{pd}, 0, v{c}, {sr(sN40,2)}
    v_readfirstlane_b32 s23, v{v.t1}
    s_nop 0
    v_add_u32_dpp v{c}, v{pd}, v{pd} row_shr:1 row_mask:0xf bank_mask:0xf bound_ctrl:0
    s_nop 1
    v_add_u32_dpp v{c}, v{c}, v{c} row_shr:2 row_mask:0xf bank_mask:0xf bound_ctrl:0
    s_nop 1
    v_add_u32_dpp v{c}, v{c}, v{c} row_shr:4 row_mask:0xf bank_mask:0xf bound_ctrl:0
    s_nop 1
    v_add_u32_dpp v{c}, v{c}, v{c} row_shr:8 row_mask:0xf bank_mask:0xf bound_ctrl:0
    s_nop 1
    v_add_u32_dpp v{c}, v{c}, v{c} row_bcast:15 row_mask:0xa bank_mask:0xf
    s_nop 1
    v_add_u32_dpp v{c}, v{c}, v{c} row_bcast:31 row_mask:0xc bank_mask:0xf
    s_cmp_lg_u32 s23, -1
    s_cbranch_scc1 K2_OVF
    v_readlane_b32 s{sT0}, v{c}, 19
    v_readlane_b32 s{sT1}, v{c}, 39
    v_sub_u32 v{pd}, v{c}, v{pd}
    s_sub_u32 s23, {GSL}, s{sT0}
    v_add_u32 v{c}, s23, v{pd}
    v_cndmask_b32 v{pd}, v{pd}, v{c}, {sr(sG1,2)}
    v_add_u32 v{v.FV}, v{pd}, v{v.OHB}
    """)
    for j in MAIN:
        A(f"ds_bpermute_b32 v{v.PK+j}, v{v.AD+j}, v{v.FV}")
    A(f"""
    v_readlane_b32 s{sTsw}, v{pd}, s22
    s_sub_u32 s{sT1}, s{sT1}, s{sT0}
    s_max_u32 s22, s{sT0}, s{sT1}
    s_cmp_gt_u32 s22, {GSL}
    s_cbranch_scc1 K2_OVF
    s_waitcnt lgkmcnt(0)
    """)
    pt("sc")
    A(f"""
    s_or_b32 s22, s3, s{sMode}
    s_cmp_lg_u32 s22, 0
    s_cbranch_scc1 K2_NRL
    s_buffer_load_dword s{sTile}, {sr(sOUT,4)}, s{sRel} glc
    K2_NRL:
    """)
    def sbody(j, w, mask):
        return f"""
        s_mov_b64 exec, {mask}
        v_add_u32_sdwa v{v.RANK+j}, v{v.PK+j}, v{v.RANK+j} dst_sel:DWORD dst_unused:UNUSED_PAD src0_sel:WORD_0 src1_sel:DWORD
        v_bfi_b32 v{w}, s{sK3F}, v{v.REC+j}, v{v.PK+j}
        v_lshlrev_b32 v{v.PK+j}, 3, v{v.RANK+j}
        v_lshrrev_b32 v{v.RANK+j}, 2, v{v.RANK+j}
        ds_write_b64 v{v.PK+j}, {P(w)} offset:{REC}
        ds_write_b8 v{v.RANK+j}, v{v.AD+j} offset:{QN}
        """
    if ETL == 1: touches()
    for j in MAIN:
        A(sbody(j, W0[j], sr(sM+2*j,2)))
    A("s_cmp_lg_u64 s[76:77], 0")
    A("s_cbranch_scc1 K2_SR")
    A("K2_SRB:")
    if ETL == 2:
        A("s_mov_b64 exec, -1")
        touches()
    B = Asm()
    B("K2_SR:")
    for j in RARE:
        w = v.W0 + 8
        B(f"""
        s_mov_b64 exec, -1
        v_cmp_gt_u32 vcc, -2, v{v.REC+j}
        s_cbranch_vccz K2_SRB
        ds_bpermute_b32 v{v.PK+j}, v{v.AD+j}, v{v.FV}
        v_lshrrev_b32 v{w+1}, 20, v{v.REC+j}
        v_add_u32 v{w+1}, v{w+1}, v{v.EB}
        s_waitcnt lgkmcnt(0)
        """)
        B(sbody(j, w, "vcc"))
    B("s_branch K2_SRB")
    ool.append(B.text())
    A(f"""
    s_mov_b64 exec, -1
    s_or_b32 s22, s3, s{sMode}
    s_cmp_lg_u32 s22, 0
    s_cbranch_scc1 K2_RDY
    s_waitcnt lgkmcnt(0)
    s_cmp_lg_u32 s{sTile}, s{sTag}
    s_cbranch_scc1 K2_SPOLL
    K2_RDY:
    s_mov_b32 m0, s{sRing}
    s_waitcnt lgkmcnt(0)
    s_barrier
    """)
    ool.append(f"K2_RPOLL:\nbuffer_load_dword v{v.JK2}, off, {sr(sOUT,4)}, s{sRel} sc1\ns_waitcnt vmcnt(0)\nv_cmp_ne_u32 vcc, s{sTag}, v{v.JK2}\ns_cbranch_vccz K2_RDY\ns_sleep 1\ns_branch K2_RPOLL")
    ool.append(f"K2_SPOLL:\ns_mov_b32 s23, 0\nK2_SP2:\ns_buffer_load_dword s22, {sr(sOUT,4)}, s{sRel} glc\ns_waitcnt lgkmcnt(0)\ns_cmp_eq_u32 s22, s{sTag}\ns_cbranch_scc1 K2_RDY\ns_add_u32 s23, s23, 1\ns_cmp_lt_u32 s23, 16\ns_cbranch_scc1 K2_SP2\ns_branch K2_RPOLL")
    stamp(14)
    A(f"""
    K2_START:
    ds_read_u16 v{v.IX0}, v{v.R1}
    ds_read_u16 v{v.IX1}, v{v.R1} offset:64
    ds_read_b32 v{v.IE}, v{v.Re}
    ds_read_u8 v{v.t0}, v0 offset:{QN}
    ds_read_u16 v{v.TPa}, v{v.R1} offset:256
    ds_read_u16 v{v.TPb}, v{v.R1} offset:320
    ds_read_b32 v{v.IEb}, v{v.Re} offset:1024
    ds_read_u8 v{v.OH0}, v{v.R2}
    ds_read_u8 v{v.OHA}, v{v.R2} offset:256
    s_waitcnt lgkmcnt(8)
    buffer_load_dwordx4 {P(v.IX0)}, {sr(sP,4)}, 0 idxen offen lds
    s_add_u32 m0, s{sRing}, 1024
    s_waitcnt lgkmcnt(7)
    buffer_load_dwordx4 {P(v.IX1)}, {sr(sP,4)}, 0 idxen offen lds
    s_cmp_lg_u32 s{sNoE}, 0
    s_cselect_b32 m0, {JUNK}, s{sE0}
    s_waitcnt lgkmcnt(5)
    buffer_load_dwordx4 {P(v.IE)}, {sr(sE,4)}, 0 idxen offen lds
    v_cmp_ne_u32 vcc, 0xff, v{v.t0}
    v_subrev_u32 v{v.t1}, 80, v{v.t0}
    v_min_u32 v{v.t0}, v{v.t0}, v{v.t1}
    v_lshl_add_u32 v{v.t1}, v{v.t0}, 3, v{v.QC}
    v_lshrrev_b32 v{v.t0}, 1, v{v.t0}
    v_and_b32 v{v.t0}, 16, v{v.t0}
    v_xor_b32 v{v.t1}, v{v.t1}, v{v.t0}
    v_mov_b32 v{v.t0}, 0x3f80
    s_mov_b64 exec, vcc
    ds_write_b16 v{v.t1}, v{v.t0}
    s_mov_b64 exec, -1
    s_add_u32 m0, s{sRing}, 2048
    s_waitcnt lgkmcnt(0)
    buffer_load_dwordx4 {P(v.TPa)}, {sr(sP,4)}, 0 idxen offen lds
    s_add_u32 m0, s{sRing}, 3072
    ds_read_u16 v{v.IX0}, v{v.R1} offset:512
    buffer_load_dwordx4 {P(v.TPb)}, {sr(sP,4)}, 0 idxen offen lds
    ds_read_u16 v{v.IX1}, v{v.R1} offset:576
    ds_read_u16 v{v.TPa}, v{v.R1} offset:768
    ds_read_u16 v{v.TPb}, v{v.R1} offset:832
    s_cmp_lg_u32 s{sNoE}, 0
    s_cbranch_scc1 K2_ST2
    s_mul_i32 s22, s{sG}, {GSL}
    s_sub_u32 s{sTsw}, s{sTsw}, s22
    s_add_u32 s{sTsw}, s{sTsw}, 31
    s_lshr_b32 s{sTsw}, s{sTsw}, 5
    s_cmp_eq_u32 s{sG}, 0
    s_cselect_b32 s{sTg}, s{sT0}, s{sT1}
    s_add_u32 s{sTg}, s{sTg}, 31
    s_lshr_b32 s{sTg}, s{sTg}, 5
    s_sub_u32 s{sUT}, s{sTg}, 9
    s_and_b32 s{sUT}, s{sUT}, -4
    s_add_u32 s{sUT}, s{sUT}, 1
    s_cmp_lt_u32 s{sTg}, 9
    s_cselect_b32 s{sUT}, {BIG}, s{sUT}
    s_cmp_lg_u32 s{sMode}, 0
    s_cselect_b32 s{sUT}, {BIG}, s{sUT}
    s_sub_u32 s{sT1}, s{sTg}, 1
    K2_ST2:
    s_sub_u32 s22, s{sTg}, 1
    s_lshr_b32 s22, s22, 1
    s_mul_i32 s22, s22, 3072
    s_add_u32 s22, s22, {3072 + 2048}
    v_add_u32 v{v.LA}, s22, v{v.E_}
    s_add_u32 s{sEdst}, s{sE0}, {6144 if opt.get('ek', 3) == 3 else 12288}
    s_mov_b32 s{sTile}, 0
    v_mov_b32 v{v.PROG}, 1
    v_mov_b64 {P(v.QF)}, {P(v.QS)}
    v_mov_b64 {P(v.NS)}, 0
    v_mov_b64 {P(v.NS+2)}, 0
    v_mov_b64 {P(v.DS)}, {P(v.ONE)}
    v_mov_b64 {P(v.DS+2)}, {P(v.ONE)}
    v_mov_b64 {P(v.MSG)}, 0
    v_mov_b64 {P(v.aggF)}, 0
    v_mov_b64 {P(v.aggF+2)}, 0
    v_mov_b64 {P(v.S)}, 0
    s_cmp_lg_u32 s{sNoE}, 0
    s_waitcnt vmcnt(2) lgkmcnt(0)
    s_cbranch_scc1 K2_GO
    s_barrier
    K2_GO:
    s_or_b32 s22, s{sMode}, s{sNoE}
    """)
    stamp(16)
    A(f"""
    ds_read_b128 {vr(v.ohF,4)}, v{v.OH0}
    ds_read_b128 {vr(v.eF,4)}, v{v.E_} offset:3072
    ds_read_b128 {vr(v.pF0,4)}, v{v.P0}
    ds_read_b128 {vr(v.pF1,4)}, v{v.P1}
    s_cbranch_scc1 K2_SAFEP
    """)
    def late_issue():
        A(f"""
        s_add_u32 m0, s{sRing}, 4096
        s_nop 0
        buffer_load_dwordx4 {P(v.IX0)}, {sr(sP,4)}, 0 idxen offen lds
        s_add_u32 m0, s{sRing}, 5120
        ds_read_u16 v{v.IX0}, v{v.R1} offset:1024
        buffer_load_dwordx4 {P(v.IX1)}, {sr(sP,4)}, 0 idxen offen lds
        """)
        if opt.get("ek", 3) == 2:
            A(f"""
            s_add_u32 m0, s{sE0}, 6144
            s_nop 0
            buffer_load_dwordx4 {P(v.IEb)}, {sr(sE,4)}, 0 idxen offen lds
            """)
        else:
            A(f"v_mov_b32 v{v.IE}, v{v.IEb}")
        A(f"""
        s_add_u32 m0, s{sRing}, 6144
        ds_read_u16 v{v.IX1}, v{v.R1} offset:1088
        buffer_load_dwordx4 {P(v.TPa)}, {sr(sP,4)}, 0 idxen offen lds
        s_add_u32 m0, s{sRing}, 7168
        s_nop 0
        buffer_load_dwordx4 {P(v.TPb)}, {sr(sP,4)}, 0 idxen offen lds
        """)
    chain(A, 3, "fast", None, ool, pre=True, mid=late_issue)
    A("K2_LOOP:")
    for k in range(4):
        stretch(A, k, "fast", ool)
        chain(A, k, "fast", "K2_EXIT", ool)
    A("s_branch K2_LOOP")
    A("K2_LAST0:")
    stretch(A, 0, "last", ool, last=True)
    A("s_branch K2_EXIT")
    A("K2_LAST1:")
    stretch(A, 1, "last", ool, last=True)
    A("K2_EXIT:")
    stamp(18)
    pt("x0")
    A(f"""
    s_setprio 0
    ds_read_b128 {vr(v.ohF,4)}, v{v.LA}
    {mfma(v.T1, v.U1 + 24, v.XF + 24)}
    v_rcp_f32 v{v.RS}, v{v.DS}
    v_rcp_f32 v{v.RS+1}, v{v.DS+1}
    v_rcp_f32 v{v.RS+2}, v{v.DS+2}
    v_rcp_f32 v{v.RS+3}, v{v.DS+3}
    {mfma(v.T1, v.U1 + 28, v.XF + 28)}
    v_fma_f32 v{v.S}, v{v.DS}, v{v.DS+2}, v{v.S}
    v_fma_f32 v{v.S+1}, v{v.DS+1}, v{v.DS+3}, v{v.S+1}
    v_mul_f32 v{v.NS}, v{v.NS}, v{v.RS}
    v_mul_f32 v{v.NS+1}, v{v.NS+1}, v{v.RS+1}
    v_mul_f32 v{v.NS+2}, v{v.NS+2}, v{v.RS+2}
    v_mul_f32 v{v.NS+3}, v{v.NS+3}, v{v.RS+3}
    K2_X2:
    s_bitcmp1_b32 s{sTg}, 0
    s_cbranch_scc0 K2_X3
    s_waitcnt lgkmcnt(1)
    {mfma(v.ACC, v.MSG, v.aggF)}
    v_cvt_pk_bf16_f32 v{v.MSG}, v{v.NS}, v{v.NS+1}
    v_cvt_pk_bf16_f32 v{v.MSG+1}, v{v.NS+2}, v{v.NS+3}
    s_branch K2_X4
    K2_X3:
    v_cvt_pk_bf16_f32 v{v.MSG+2}, v{v.NS}, v{v.NS+1}
    v_cvt_pk_bf16_f32 v{v.MSG+3}, v{v.NS+2}, v{v.NS+3}
    K2_X4:
    v_max_f32 v{v.S}, v{v.S}, v{v.S+1}
    s_waitcnt lgkmcnt(0)
    {mfma(v.ACC, v.MSG, v.ohF)}
    v_add_u32 v{v.t0}, s{sRing}, v{v.t3}
    s_cmp_eq_u32 s{sMode}, 1
    s_cbranch_scc1 K2_NEXTR
    K2_FIN:
    s_cmp_eq_u32 s{sUT}, {BIG}
    s_cbranch_scc1 K2_ULD
    K2_ULB:
    s_mov_b32 s22, {NEG_LN2:#x}
    s_mov_b32 s23, {f2u(2.0**60):#x}
    v_mov_b64 {P(v.NS)}, 0
    v_mov_b32 v{v.S+1}, 0
    s_lshl_b32 s76, s{sG}, 15
    s_add_u32 s76, s76, {RING}
    v_add_u32 v{v.t1}, s76, v{v.t3}
    """)
    pt("x1")
    B = Asm(); B("K2_ULD:")
    for i in range(16): u_load(B, i)
    B("s_waitcnt vmcnt(0)")
    for s_ in range(8):
        B(mfma(v.T1, v.U1 + 4*s_, v.XF + 4*s_, "0" if s_ == 0 else None))
    B("s_branch K2_ULB"); ool.append(B.text())
    for s in range(8):
        A(f"v_pk_mul_f32 {P(v.ACC+2*s)}, {P(v.ACC+2*s)}, s[22:23] op_sel_hi:[1,0]")
    for s in range(8):
        A(f"v_cvt_pk_bf16_f32 v{v.E+s}, v{v.ACC+2*s}, v{v.ACC+2*s+1}")
    for s in range(8):
        A(f"v_pk_fma_f32 {P(v.S)}, {P(v.ACC+2*s)}, {P(v.NS)}, {P(v.S)}")
    F = v.T1; AG = v.XF
    A(f"""
    v_add_f32 v{v.S}, v{v.S}, v{v.S+1}
    v_cmp_nge_f32 vcc, s23, v{v.S}
    s_cbranch_vccnz K2_TRIP
    K2_TRB:
    s_waitcnt vmcnt(0)
    ds_write_b128 v{v.t0}, {vr(v.E,4)}
    ds_write_b128 v{v.t0}, {vr(v.E+4,4)} offset:1024
    v_mov_b32 v{v.PROG}, 0x7fff
    """)
    ool.append(f"K2_TRIP:\ns_or_b32 s22, s{sMode}, s{sNoE}\ns_cmp_lg_u32 s22, 0\ns_cbranch_scc1 K2_TRB\ns_branch K2_REDO")
    A("s_waitcnt lgkmcnt(0)")
    A("s_mov_b64 exec, 1")
    A(f"ds_write_b32 v{v.FW}, v{v.PROG}")
    A("s_mov_b64 exec, -1")
    A(f"ds_read_b32 v{v.FV}, v{v.FR}")
    pt("x2")
    A(f"""
    K2_GS:
    s_waitcnt lgkmcnt(0)
    v_cmp_gt_u32 vcc, v{v.PROG}, v{v.FV}
    s_cbranch_vccnz K2_GS2
    """)
    ool.append(f"K2_GS2:\nds_read_b32 v{v.FV}, v{v.FR}\ns_branch K2_GS")
    stamp(96)
    pt("x3")
    for s in range(8):
        A(f"ds_read_b128 {vr(AG+4*s,4)}, v{v.t1} offset:{(s >> 1) * 8192 + (s & 1) * 1024}")
    for s in range(8):
        A(f"s_waitcnt lgkmcnt({7-s})")
        A(mfma(F, v.U2 + 4*s, AG + 4*s))
    pt("x4")
    A(f"s_mov_b32 s22, {NEG_LOG2E:#x}")
    A("s_nop 10")
    for r in range(0, 16, 2):
        A(f"v_pk_mul_f32 {P(v.E+r)}, {P(F+r)}, s[22:23] op_sel_hi:[1,0]")
    for r in range(16):
        A(f"v_exp_f32 v{v.E+r}, v{v.E+r}")
    for r in range(0, 16, 2):
        A(f"v_pk_add_f32 {P(v.E+r)}, {P(v.E+r)}, {P(v.ONE)}")
    for r in range(16):
        A(f"v_rcp_f32 v{v.E+r}, v{v.E+r}")
    for r in range(0, 16, 2):
        A(f"v_pk_mul_f32 {P(F+r)}, {P(F+r)}, {P(v.E+r)}")
    O = v.T
    for r in range(8):
        A(f"v_cvt_pk_bf16_f32 v{O+r}, v{F+2*r}, v{F+2*r+1}")
    A(f"""
    s_nop 1
    v_permlane32_swap_b32 v{O}, v{O+2}
    v_permlane32_swap_b32 v{O+1}, v{O+3}
    v_permlane32_swap_b32 v{O+4}, v{O+6}
    v_permlane32_swap_b32 v{O+5}, v{O+7}
    buffer_store_dwordx4 {vr(O,4)}, v{v.OA}, {sr(sOUT,4)}, 0 offen {opt.get("ost", "").replace("_", " ")}
    buffer_store_dwordx4 {vr(O+4,4)}, v{v.OA}, {sr(sOUT,4)}, 0 offen offset:32 {opt.get("ost", "").replace("_", " ")}
    """)
    pt("x5")
    A(f"""
    s_or_b32 s22, s2, s3
    s_cmp_eq_u32 s22, 0
    s_cbranch_scc1 K_ADV
    K_ADVB:
    """)
    ool.append(f"K_ADV:\nv_mov_b32 v1, s{sTag}\ns_mov_b32 s22, {WS_TAG}\ns_mov_b64 exec, 1\nbuffer_store_dword v1, off, {sr(sWS,4)}, s22 sc1\ns_mov_b64 exec, -1\ns_branch K_ADVB")
    if ST:
        A("s_waitcnt vmcnt(0)")
        A("s_memtime s[98:99]")
        A("s_memrealtime s[100:101]")
        A(f"""
        s_lshl_b32 s22, s2, 3
        s_add_u32 s22, s22, s3
        s_lshl_b32 s22, s22, 6
        s_add_u32 s22, s22, 0xA00000
        v_mov_b32 v1, 0
        s_waitcnt lgkmcnt(0)
        """)
        for i, r in enumerate([90, 94, 4, 6, 8, 10, 12, 14, 16, 18, 96, 98, 92, 100, sTg] if not PTS else [90, 94, 4, 44, 46, 48, 50, 96, 6, 12, 14, 98, 92, 100, sTg]):
            A(f"v_mov_b32 v2, s{r}")
            A(f"buffer_store_dword v2, v1, {sr(sWS,4)}, s22 offen offset:{4*i}")
    A("K_END:")
    A("s_endpgm")
    for o in ool: A(o)
    del ool[:]
    A(f"""
    K_SPECIAL:
    s_waitcnt lgkmcnt(0)
    s_mov_b32 s22, {WS_TAG}
    s_load_dword s{sTag}, s[{PWS}:{PWS+1}], s22
    """)
    if ST: srd(A, sDB, PDBG, 256)
    srd(A, sWS, PWS, WS_END)
    A(f"""
    s_cmp_lg_u32 s2, 0
    s_cbranch_scc1 K_HELPER
    s_cmp_lg_u32 s3, 0
    s_cbranch_scc1 K_END
    s_waitcnt lgkmcnt(0)
    s_add_u32 s{sTag}, s{sTag}, 2
    s_or_b32 s{sTag}, s{sTag}, 0x40000001
    v_mov_b32 v1, s{sTag}
    """)
    srd(A, sOUT, POUT, N * 256)
    A(f"""
    v_mul_u32_u24 v2, 20480, v0
    v_add_u32 v2, {10240 + 8192}, v2
    v_add_u32 v4, {64 * 20480}, v2
    v_cmp_gt_u32 vcc, {NCHUNK - 64}, v0
    v_mul_u32_u24 v5, 20480, v0
    v_add_u32 v5, {8192 - 61 * 20480}, v5
    v_cndmask_b32 v4, v5, v4, vcc
    v_cmp_eq_u32 vcc, 63, v0
    v_mul_u32_u24 v3, 10240, v0
    v_add_u32 v3, 8448, v3
    v_cndmask_b32 v4, v4, v2, vcc
    s_mov_b32 s76, {64 * 10240}
    s_mov_b32 s77, {128 * 10240}
    s_mov_b32 s78, {192 * 10240}
    {f"s_sleep {opt.get('msl')}" if opt.get('msl') else ""}
    K_MPOLL:
    buffer_load_dword v8, v2, {sr(sOUT,4)}, 0 offen sc1
    buffer_load_dword v9, v4, {sr(sOUT,4)}, 0 offen sc1
    s_waitcnt vmcnt(0)
    v_xor_b32 v8, v1, v8
    v_xor_b32 v9, v1, v9
    v_or_b32 v8, v8, v9
    v_cmp_ne_u32 vcc, 0, v8
    s_cbranch_vccnz K_MPOLL
    buffer_store_dword v1, v3, {sr(sOUT,4)}, 0 offen sc1
    buffer_store_dword v1, v3, {sr(sOUT,4)}, s76 offen sc1
    buffer_store_dword v1, v3, {sr(sOUT,4)}, s77 offen sc1
    buffer_store_dword v1, v3, {sr(sOUT,4)}, s78 offen sc1
    {"s_memrealtime s[90:91]" if ST else ""}
    {"s_waitcnt lgkmcnt(0)" if ST else ""}
    {"v_mov_b32 v2, s90" if ST else ""}
    {f"buffer_store_dword v2, off, {sr(sDB,4)}, 0 offset:8" if ST else ""}
    {"v_mov_b32 v2, s92" if ST else ""}
    {f"buffer_store_dword v2, off, {sr(sDB,4)}, 0 offset:12" if ST else ""}
    s_endpgm
    K_HELPER:
    s_sub_u32 s87, s2, 1
    s_lshl_b32 s82, s87, 15
    s_lshl_b32 s77, s3, 12
    """)
    srd(A, sWm, PWU, 32768, add="s82")
    wdma(0, 0)
    A(f"""
    s_waitcnt vmcnt(4)
    s_lshl_b32 s22, s{sC}, 6
    v_xor_b32 v{TRA}, s22, v{TRA}
    v_lshrrev_b32 v{H}, 5, v{L}
    s_sub_u32 s22, 11, s87
    v_lshlrev_b32 v{H}, s22, v{H}
    v_add_u32 v{TRA}, v{TRA}, v{H}
    s_lshl_b32 s22, s{sG}, 14
    v_add_u32 v{TRA}, s22, v{TRA}
    s_lshl_b32 s22, 1024, s87
    v_add_u32 v{H}, s22, v{TRA}
    s_lshl_b32 s22, s{sC}, 13
    s_add_u32 s82, s82, s22
    s_lshl_b32 s22, s{sG}, 12
    s_add_u32 s82, s82, s22
    s_add_u32 s82, s82, {WS_U}
    s_waitcnt vmcnt(0)
    s_barrier
    """)
    for s_ in range(4):
        A(f"ds_read_b64_tr_b16 {vr(v.T+4*s_,2)}, v{TRA} offset:{s_*4096}")
        A(f"ds_read_b64_tr_b16 {vr(v.T+4*s_+2,2)}, v{H} offset:{s_*4096}")
    A("s_waitcnt lgkmcnt(0)")
    for s_ in range(4):
        A(f"buffer_store_dwordx4 {vr(v.T+4*s_,4)}, v{v.t3}, {sr(sWS,4)}, s82 offen offset:{s_*1024} sc1")
    A(f"""
    s_waitcnt vmcnt(0)
    s_barrier
    s_cmp_lg_u32 s3, 0
    s_cbranch_scc1 K_END
    s_add_u32 s{sTag}, s{sTag}, 2
    s_or_b32 s{sTag}, s{sTag}, 0x40000001
    v_mov_b32 v1, s{sTag}
    """)
    srd(A, sOUT, POUT, N * 256)
    A(f"""
    s_mul_i32 s22, s87, 20480
    s_add_u32 s22, s22, 8192
    s_mov_b64 exec, 1
    buffer_store_dword v1, off, {sr(sOUT,4)}, s22 sc1
    s_endpgm
    """)
    A("K2_SAFEP:")
    chain(A, 3, "safe", None, ool, pre=True, mid=late_issue)
    A("K2_SAFE:")
    for k in range(4):
        stretch(A, k, "safe", ool)
        chain(A, k, "safe", "K2_SEXIT", ool)
    A("s_branch K2_SAFE")
    A(f"""
    K2_SEXIT:
    s_setprio 0
    ds_read_b128 {vr(v.ohF,4)}, v{v.LA}
    s_branch K2_X2
    """)
    def restore(reg=None):
        A(f"""
        s_lshr_b32 s23, s{reg or sTg}, 2
        s_mul_i32 s22, s23, 6144
        s_lshl_b32 s23, s23, 10
        v_subrev_u32 v{v.E_}, s22, v{v.E_}
        v_subrev_u32 v{v.R1}, s23, v{v.R1}
        v_subrev_u32 v{v.R2}, s23, v{v.R2}
        v_subrev_u32 v{v.Re}, s23, v{v.Re}
        """)
    A("K2_REDO:")
    restore(sT1)
    A(f"s_mov_b32 s{sUT}, {BIG}")
    A(f"s_mov_b32 s{sNoE}, 1")
    for r in range(0, 16, 2):
        A(f"v_mov_b64 {P(v.ACC+r)}, 0")
    A(f"v_mov_b32 v{v.TPa+1}, v{v.IX0+1}")
    A(f"v_mov_b32 v{v.TPb+1}, v{v.IX0+1}")
    A(f"s_mov_b32 m0, s{sRing}")
    A("s_waitcnt vmcnt(0) lgkmcnt(0)")
    A("s_branch K2_START")
    A(f"""
    K2_OVF:
    s_cmp_eq_u32 s{sMode}, 0
    s_cbranch_scc0 K2_OV2
    s_cmp_lg_u32 s3, 0
    s_cbranch_scc1 K2_OV2
    K2_OV1:
    buffer_load_dword v{v.JK2}, off, {sr(sOUT,4)}, s{sRel} sc1
    s_waitcnt vmcnt(0)
    v_cmp_ne_u32 vcc, s{sTag}, v{v.JK2}
    s_cbranch_vccnz K2_OV1
    K2_OV2:
    s_mov_b32 s{sMode}, 1
    s_mov_b32 s{sRound}, 0
    s_branch K2_ROUND
    K2_NEXTR:
    s_add_u32 s{sRound}, s{sRound}, 1
    s_cmp_ge_u32 s{sRound}, {E // 512}
    s_cbranch_scc1 K2_FIN
    """)
    restore()
    A(f"""
    K2_ROUND:
    s_load_dwordx4 s[76:79], s[0:1], 16
    s_waitcnt vmcnt(0) lgkmcnt(0)
    s_barrier
    """)
    srd(A, sS, 76, E * 4)
    srd(A, sD, 78, E * 4)
    round_regs()
    A(f"""
    s_lshl_b32 s22, s{sRound}, 9
    v_add_u32 v{v.EB}, s22, v0
    v_lshlrev_b32 v{v.t0}, 2, v{v.EB}
    buffer_load_dword v{v.REC}, v{v.t0}, {sr(sD,4)}, 0 offen
    buffer_load_dword v{v.REC+1}, v{v.t0}, {sr(sS,4)}, 0 offen
    """)
    lds_init()
    A(f"""
    s_mul_i32 s22, s2, 40
    s_waitcnt vmcnt(0)
    v_subrev_u32 v{v.REC}, s22, v{v.REC}
    v_cmp_gt_u32 vcc, 40, v{v.REC}
    v_lshl_or_b32 v{v.t0}, v{v.REC}, 14, v{v.REC+1}
    v_mov_b32 v{v.REC+1}, -1
    v_cndmask_b32 v{v.REC}, -1, v{v.t0}, vcc
    s_mov_b64 s[76:77], 0
    s_barrier
    s_branch K2_COUNT
    """)
    for o in ool: A(o)
    A("K_CODE_END:")
    return A.text()

HEADER = """; MPNN edge-MLP layer, fused single kernel (generated by gen/fz15.py).
; Kernarg layout (72 bytes, ptrs only, base s[0:1]):
;   32: w_msg (272,128) bf16 | 40: w_upd (256,128) bf16 | 48: d_out | 56: d_debug | 64: d_ws
"""
def build(opt):
    out = HEADER + f"; @launch grid=({NWG},1,1) block=(512,1,1) lds={LDS_TOTAL}\n"
    out += '.amdgcn_target "amdgcn-amd-amdhsa--gfx950"\n.text\n'
    out += f".globl {KNAME}\n.p2align 8\n.type {KNAME},@function\n" + gen(opt)
    acc = (NV + 3) // 4 * 4
    out += f""".section .rodata,"a"
.p2align 8
K_TABLE:
{tables()}.p2align 6
.amdhsa_kernel {KNAME}
  .amdhsa_next_free_vgpr {NV}
  .amdhsa_next_free_sgpr 102
  .amdhsa_accum_offset {acc}
  .amdhsa_group_segment_fixed_size 0
  .amdhsa_kernarg_size 72
  .amdhsa_user_sgpr_count 2
  .amdhsa_user_sgpr_kernarg_segment_ptr 1
  .amdhsa_system_sgpr_workgroup_id_x 1
.end_amdhsa_kernel
"""
    return out

if __name__ == "__main__":
    opt = {}
    for a in sys.argv[2:]:
        k_, v_ = a.split("=")
        opt[k_] = int(v_) if v_.lstrip("-").isdigit() else v_
    open(sys.argv[1], "w").write(build(opt))
```

```python
import sys, struct
from gen import Asm, vr, sr, srd, f2u, NEG_LOG2E, NEG_LN2, PX, PE, PSRC, PDST, PWM, PWU, POUT, PDBG, PWS, load_ptrs

KNAME = "standalone__mpnn_edge_mlp__graph_kernel"
N = 10000; E = 320000
NBIN = 250; NCHUNK = 125; CH = 2560
WS_CELL = 0x280000
WS_FLAG = 0x700000
WS_U = 0x708000
WS_END = WS_U + 0x10000
NWG = NBIN + 3
BIG = 0x7fffffff
WS_TAG = 0x27FF00

CNT = 0x100; QN = 0x200; FLAG = 0x3F0; TRIP = 0x3F4; REC = 0x400
TG = 26; GSL = TG * 32
REC_BYTES = (2 * GSL + 160) * 8
EA = REC + REC_BYTES
GEA = (TG // 2) * 3072
RING = EA + 2 * GEA
JUNK = RING + 65536
LDS_TOTAL = JUNK + 1024
FLG = CNT + 48 * 4
L_X = RING; L_W2 = RING + 0x6000; L_W3 = L_W2 + 32768; L_BN = 0x8000
assert RING % 256 == 0 and LDS_TOTAL <= 163840

class R: pass
v = R()
_n = 1
def alloc(name, n, align=1):
    global _n
    _n = (_n + align - 1) // align * align
    setattr(v, name, _n)
    _n += n
for nm in ("t0", "t1", "t2", "t3", "lane", "FW", "FV", "PROG", "JK", "JK2", "JK3", "OHA", "P1", "FR", "LA"):
    alloc(nm, 1)
TABN = ("E_", "R1", "R2", "Re", "P0", "EB", "QC", "OHB", "S0a", "FRo", "IXo", "IEo", "S1a", "TRA", "OAl", "Z_")
alloc("TAB", 0, 4)
for nm in TABN[:8]:
    alloc(nm, 1)
for nm in ("IX0", "IX1", "IE", "ONE", "S"):
    alloc(nm, 2, 2)
alloc("OA", 1)
for nm in ("W3F", "QF", "QS", "SEL0", "SEL1", "eF", "ohF", "pF0", "pF1", "aggF", "MSG", "NS", "DS", "RS"):
    alloc(nm, 4, 4)
for nm in ("T", "T1", "E", "ACC"):
    alloc(nm, 16, 4)
alloc("U1", 32, 4); alloc("U2", 32, 4); alloc("XF", 32, 4)
NV = _n
assert NV <= 256
for i_, nm in enumerate(TABN[8:]): setattr(v, nm, v.SEL0 + i_)
v.WA = v.ohF
assert v.RS == v.ohF + 28 and v.SEL1 == v.SEL0 + 4 and v.E == v.T1 + 16
v.REC = v.T; v.RANK = v.T + 8; v.AD = v.E; v.PK = v.E + 8
v.W0 = v.T1
v.TPa = v.T1 + 10; v.TPb = v.T1 + 12; v.IEb = v.T1 + 14; v.OH0 = v.pF1

sWS, sP, sE, sX, sOUT, sD, sS = 24, 28, 32, 36, 40, 44, 48
sG, sC, sTg, sTile, sTsw, sTag, sRing, sEdst, sMode, sRound, sRole, sElim = 52, 53, 54, 55, 56, 57, 58, 59, 60, 61, 62, 63
sM = 64
sWm = 64; sDB = 68
sTB = 80
sUT = 82; sNoE = 83; sK3F = 84; sT0, sT1 = 85, 86; sRel = 87; sUoff = 88; sPair = 89
sN40 = 36; sG1 = 38; sSl = 101; sE0 = 100; sOff = 61

OPT = {}
def P(r): return f"v[{r}:{r+1}]"
def mfma(d, a, b, c=None):
    return f"v_mfma_f32_32x32x16_bf16 {vr(d,16)}, {vr(a,4)}, {vr(b,4)}, {vr(d,16) if c is None else c}"
def pi8v(m):
    return ((m & 5) << 5) | ((m & 18) << 2) | ((m & 8) << 1)

def tables():
    rows = []
    for l in range(64):
        m, h = l & 31, l >> 5
        a16 = 16 + ((l & 8) << 3) + ((l & 3) << 4)
        n_ = l - 20 if l >= 20 else l
        a16n = 16 + ((n_ & 8) << 3) + ((n_ & 3) << 4)
        ohb = (a16n << (16 + 8 * ((n_ >> 2) & 1))) if l < 40 else 0
        sel = a16 if ((l >> 2) & 1) == h else 0
        d = dict(
            E_=m * 32 + (((h ^ (m >> 3)) & 1) << 4) + EA - 3072,
            R1=pi8v(l >> 2) + REC, R2=pi8v(m) + h + 2 + REC, Re=pi8v(l >> 1) + 4 + REC,
            P0=m * 64 + ((((m >> 2) ^ (2 * h)) & 3) << 4) + RING,
            EB=(l >> 2) * CH,
            QC=(l >> 4) * 3072 + ((l & 4) << 2) + (l & 8) + ((l & 3) << 1) + EA + 2048,
            OHB=ohb, FRo=(l & 3) * 4 + FLG,
            IXo=(((l >> 4) ^ l) & 3) << 4, IEo=(((l >> 4) ^ l) & 1) << 4,
            S0a=sel if m < 16 else 0, S1a=sel if m >= 16 else 0,
            TRA=(l & 3) * 8 + ((l >> 2) & 3) * 256 + (((l >> 2) & 3) << 6) + ((l >> 4) & 1) * 32,
            OAl=(m * 256 + h * 16) if m < 20 else 0x40000000, Z_=0)
        rows.append([d[n] for n in TABN])
    out = []
    for b in range(4):
        for l in range(64):
            out.append(".long " + ", ".join(f"{x:#x}" for x in rows[l][4*b:4*b+4]))
    img = [0] * 256
    for e_ in range(8):
        img[4 * (e_ + 1) + (e_ >> 1)] = 0x3f80 << (16 * (e_ & 1))
    for i in range(128, 256): img[i] = 0xffffffff
    for i in range(0, 256, 4):
        out.append(".long " + ", ".join(f"{x:#x}" for x in img[i:i+4]))
    for i in range(64):
        out.append(".long 0xffff, 0xffffffff, 0xffff, 0xffffffff")
    return "\n".join(out) + "\n"

def lst(A, k, variant, r):
    if OPT.get("ls") and variant == "fast" and k == OPT["ls"] - 1: A(f"s_memtime s[{r}:{r+1}]")

def u_load(A, i):
    off = (i >> 3) * 32768 + (i & 7) * 1024
    A(f"s_add_u32 s22, s{sUoff}, {off & ~4095}")
    A(f"buffer_load_dwordx4 {vr(v.U1+4*i,4)}, v{v.t3}, {sr(sWS,4)}, s22 offen offset:{off & 4095}")

def chain(A, k, variant, exit_label, ool, pre=False, mid=None):
    kk = k if k < 3 else -1
    safe = variant == "safe"
    EK = OPT.get("ek", 3)
    if not pre:
        A("s_setprio 2")
        A(f"s_add_u32 s{sTile}, s{sTile}, 1")
        if safe:
            A(f"s_cmp_ge_u32 s{sTile}, s{sTg}")
            A(f"s_cbranch_scc1 {exit_label}")
        lsw = A.label("sw"); lswb = A.label("swb")
        A(f"s_cmp_eq_u32 s{sTile}, s{sTsw}")
        A(f"s_cbranch_scc1 {lsw}")
        A(f"{lswb}:")
        ool.append(f"{lsw}:\nv_mov_b32 v{v.QF}, v{v.QS+2}\nv_mov_b32 v{v.QF+1}, v{v.QS+3}\ns_branch {lswb}")
        lst(A, k, variant, 10)
    A("s_waitcnt lgkmcnt(0)")
    if k % 2 == 0:
        A(mfma(v.ACC, v.MSG, v.aggF))
    n = 4 + (1 if ((k - 1) & 3) == EK or ((k - 2) & 3) == EK else 0)
    if EK == 3 and k == 1: n = 2
    if pre: n = 4 if EK == 3 else 5
    k2_ = kk + 2
    eread = f"ds_read_b128 {vr(v.eF,4)}, v{v.E_} offset:{3072 + (k2_ >> 1) * 3072 + (k2_ & 1) * 1024}"
    if k == 2: A(f"ds_read_b32 v{v.FV}, v{v.FR}")
    A(mfma(v.T, v.eF, v.W3F, "0"))
    if k != 2: A(eread)
    A(mfma(v.T, v.ohF, v.QF))
    A(f"ds_read_b128 {vr(v.ohF,4)}, v{v.OHA}")
    A(f"ds_read_u8 v{v.OHA}, v{v.R2} offset:{(kk + 3) * 256}")
    A(mfma(v.T, v.pF0, v.SEL0))
    if k == 2:
        A("s_waitcnt lgkmcnt(2)")
        A(f"v_cmp_gt_u32 vcc, v{v.PROG}, v{v.FV}")
    A(mfma(v.T, v.pF1, v.SEL1))
    A(f"s_setprio 0")
    lst(A, k, variant, 14)
    n_after = 2
    if k == 2:
        lw = A.label("fw"); lb = A.label("fb")
        if safe:
            A(f"s_cmp_lg_u32 s{sNoE}, 0")
            A(f"s_cbranch_scc1 {lb}")
        A(f"s_cbranch_vccnz {lw}")
        A(f"{lb}:")
        A(eread)
        ool.append(f"{lw}:\nds_read_b32 v{v.FV}, v{v.FR}\ns_waitcnt lgkmcnt(0)\nv_cmp_gt_u32 vcc, v{v.PROG}, v{v.FV}\ns_cbranch_vccnz {lw}\ns_branch {lb}")
        n_after += 2
    if mid: mid()
    A(f"s_waitcnt vmcnt({n})" + (" lgkmcnt(0)" if pre else ""))
    if k == 1:
        l1 = A.label("nf")
        if safe:
            A(f"s_cmp_lg_u32 s{sNoE}, 0")
            A(f"s_cbranch_scc1 {l1}")
        A("s_mov_b64 exec, 1")
        A(f"ds_write_b32 v{v.FW}, v{v.PROG}")
        A("s_mov_b64 exec, -1")
        if safe: A(f"{l1}:")
        else: n_after += 3
    if k == EK:
        if safe:
            A(f"s_cmp_lg_u32 s{sNoE}, 0")
            A(f"s_cselect_b32 s{sEdst}, s{sElim}, s{sEdst}")
        A(f"s_cmp_lt_u32 s{sEdst}, s{sElim}")
        A(f"s_cselect_b32 m0, s{sEdst}, {JUNK}")
        A(f"s_add_u32 s{sEdst}, s{sEdst}, 6144")
        A(f"buffer_load_dwordx4 {P(v.IE)}, {sr(sE,4)}, 0 idxen offen lds")
        n_after += 4
    A(f"s_add_u32 m0, s{sRing}, {((k + 1) & 3) * 2048}")
    A(f"ds_read_b128 {vr(v.pF0,4)}, v{v.P0} offset:{((k + 2) & 3) * 2048}")
    A(f"buffer_load_dwordx4 {P(v.IX0)}, {sr(sP,4)}, 0 idxen offen lds")
    A(f"s_add_u32 m0, s{sRing}, {((k + 1) & 3) * 2048 + 1024}")
    A(f"ds_read_b128 {vr(v.pF1,4)}, v{v.P1} offset:{((k + 2) & 3) * 2048}")
    A(f"buffer_load_dwordx4 {P(v.IX1)}, {sr(sP,4)}, 0 idxen offen lds")
    A(f"ds_read_u16 v{v.IX0}, v{v.R1} offset:{(kk + 6) * 256}")
    A(f"ds_read_u16 v{v.IX1}, v{v.R1} offset:{(kk + 6) * 256 + 64}")
    n_after += 8
    if k % 2 == 1 and not pre:
        A(f"ds_read_b128 {vr(v.aggF,4)}, v{v.E_} offset:{(1 if k == 1 else 0) * 3072 + 2048}")
        n_after += 1
    if k == EK - 1:
        A(f"ds_read_b32 v{v.IE}, v{v.Re} offset:{2 * 1024}")
        n_after += 1
    if not safe and not pre:
        lv = A.label("uv"); lvb = A.label("vb")
        A(f"s_sub_u32 s23, s{sTile}, s{sUT}")
        A(f"s_cmp_lt_u32 s23, 8")
        A(f"s_cbranch_scc1 {lv}")
        A(f"{lvb}:")
        n_after += 3
        B = Asm()
        B(f"{lv}:")
        B(f"s_cmp_ge_u32 s23, 4")
        B(f"s_cbranch_scc1 {lv}x")
        u_load(B, 2*k); u_load(B, 2*k+1)
        B(f"s_branch {lvb}")
        B(f"{lv}x:")
        u_load(B, 8+2*k); u_load(B, 8+2*k+1)
        B(f"s_branch {lvb}")
        ool.append(B.text())
    if n_after < 12:
        A(f"s_nop {12 - n_after - 1}")
    if not safe and not pre:
        A(f"s_cmp_eq_u32 s{sTile}, s{sT1}")
        A(f"s_cbranch_scc1 K2_LAST{(k + 1) & 1}")
    lst(A, k, variant, 12)

def stretch(A, k, variant, ool, last=False):
    T = v.T; E = v.E
    order = [0, 1, 8, 9, 2, 3, 10, 11, 4, 5, 12, 13, 6, 7, 14, 15]
    lst(A, k, variant, 94)
    for i, r in enumerate(order):
        if last and i % 3 == 0:
            A(mfma(v.T1, v.U1 + 4*(i//3), v.XF + 4*(i//3), "0" if i == 0 else None))
        A(f"v_exp_f32 v{E+r}, v{T+r}")
    if variant != "safe":
        for r in range(4):
            A(f"v_rcp_f32 v{v.RS+r}, v{v.DS+r}")
    if last: k = k & 1 | 4
    if k == 3:
        for s in (f"v_add_u32 v{v.E_}, 6144, v{v.E_}", f"v_add_u32 v{v.R1}, 1024, v{v.R1}",
                  f"v_add_u32 v{v.R2}, 1024, v{v.R2}", f"v_add_u32 v{v.Re}, 1024, v{v.Re}"): A(s)
    if k == 0:
        A(f"v_add_u32 v{v.PROG}, 1, v{v.PROG}")
    lst(A, k, variant, 4)
    A("s_setprio 1")
    mo = v.MSG + 2 * ((k + 1) % 2)
    if variant != "safe":
        A(f"v_pk_fma_f32 {P(v.S)}, {P(v.DS)}, {P(v.DS+2)}, {P(v.S)}")
        A(f"v_pk_mul_f32 {P(v.NS)}, {P(v.NS)}, {P(v.RS)}")
        A(f"v_pk_mul_f32 {P(v.NS+2)}, {P(v.NS+2)}, {P(v.RS+2)}")
    A(f"v_cvt_pk_bf16_f32 v{mo}, v{v.NS}, v{v.NS+1}")
    A(f"v_cvt_pk_bf16_f32 v{mo+1}, v{v.NS+2}, v{v.NS+3}")
    lst(A, k, variant, 6)
    if variant != "safe":
        ops = []
        for gi, g in enumerate((0, 8)):
            t, e = T + g, E + g
            o = [f"v_pk_add_f32 {P(e)}, {P(e)}, {P(v.ONE)}"]
            for u in (1, 2, 3):
                o.append(f"v_pk_fma_f32 {P(t)}, {P(t)}, {P(e+2*u)}, {P(t)}")
                o.append(f"v_pk_fma_f32 {P(t if u < 3 else v.NS+2*gi)}, {P(t+2*u)}, {P(e)}, {P(t)}")
                o.append(f"v_pk_fma_f32 {P(e if u < 3 else v.DS+2*gi)}, {P(e)}, {P(e+2*u)}, {P(e)}")
            ops.append(o)
        for a, b in zip(*ops):
            A(a); A(b)
    else:
        for r in range(0, 16, 2):
            A(f"v_pk_add_f32 {P(E+r)}, {P(E+r)}, {P(v.ONE)}")
        for r in range(16):
            A(f"v_rcp_f32 v{E+r}, v{E+r}")
        A("s_nop 0")
        for u in range(4):
            for gi, g in enumerate((0, 8)):
                if u == 0:
                    A(f"v_pk_mul_f32 {P(T+g)}, {P(T+g)}, {P(E+g)}")
                else:
                    A(f"v_pk_fma_f32 {P(T+g if u < 3 else v.NS+2*gi)}, {P(T+g+2*u)}, {P(E+g+2*u)}, {P(T+g)}")
    lst(A, k, variant, 8)

def gen(opt):
    OPT.clear(); OPT.update(opt)
    A = Asm()
    L = v.lane
    ST = opt.get("stamp", 0)
    PTS = opt.get("pts", "").split(",") if opt.get("pts") else []
    PSL = [44, 46, 48, 50, 96]
    def pt(name):
        if name in PTS:
            r = PSL[PTS.index(name)]
            A(f"s_memtime s[{r}:{r+1}]")
    def stamp(r, real=False):
        if PTS and r == 96: return
        if opt.get("ls") and r in (94, 4, 6, 8, 10, 12, 14): return
        if ST: A(f"s_mem{'real' if real else ''}time s[{r}:{r+1}]")
    ool = []
    STF = opt.get("stf", "sc0_sc1").replace("_", " ")
    WV = v.eF; XV = v.eF + 1; H = v.eF + 2; TRA = v.TRA
    A(f"{KNAME}:")
    stamp(90); stamp(92, True)
    A(f"s_cmp_ge_u32 s2, {NWG}")
    A("s_cbranch_scc1 K_END")
    load_ptrs(A)
    A(f"""
    v_lshrrev_b32 v{v.t0}, 6, v0
    v_and_b32 v{L}, 63, v0
    v_readfirstlane_b32 s3, v{v.t0}
    v_lshlrev_b32 v{v.t3}, 4, v{L}
    s_getpc_b64 {sr(sTB,2)}
    s_add_u32 s{sTB}, s{sTB}, K_TABLE@rel32@lo+4
    s_addc_u32 s{sTB+1}, s{sTB+1}, K_TABLE@rel32@hi+12
    global_load_dwordx4 {vr(v.SEL1,4)}, v{v.t3}, {sr(sTB,2)} offset:3072
    global_load_dwordx4 {vr(v.TAB,4)}, v{v.t3}, {sr(sTB,2)}
    global_load_dwordx4 {vr(v.TAB+4,4)}, v{v.t3}, {sr(sTB,2)} offset:1024
    global_load_dwordx4 {vr(v.SEL0,4)}, v{v.t3}, {sr(sTB,2)} offset:2048
    v_lshlrev_b32 v{v.t2}, 4, v0
    v_lshrrev_b32 v{WV}, 2, v{v.t3}
    v_lshrrev_b32 v{XV}, 4, v{v.t2}
    v_and_b32 v{WV}, 0xc0, v{WV}
    v_and_b32 v{XV}, 0xf0, v{XV}
    v_xor_b32 v{WV}, v{WV}, v{v.t3}
    v_xor_b32 v{XV}, v{XV}, v{v.t2}
    s_lshr_b32 s{sG}, s3, 2
    s_and_b32 s{sC}, s3, 3
    s_cmp_lt_u32 s2, 8
    s_cbranch_scc1 K_LOW
    K_LOWB:
    s_sub_u32 s23, s2, 3
    s_lshr_b32 s{sSl}, s23, 3
    s_cmp_ge_u32 s23, {NCHUNK}
    s_cselect_b32 s{sRole}, {1 - opt.get("r1f", 1)}, {opt.get("r1f", 1)}
    s_cselect_b32 s22, {NCHUNK}, 0
    s_sub_u32 s{sPair}, s23, s22
    s_lshl_b32 s2, s{sPair}, 1
    s_add_u32 s2, s2, s{sRole}
    s_mul_i32 s{sUT}, s{sPair}, {80*256}
    s_sub_u32 s{sX+2}, {N*256}, s{sUT}
    s_mov_b32 s{sX+3}, 0x00020000
    s_lshl_b32 s76, s3, 10
    s_add_u32 s77, s3, s{sSl}
    s_and_b32 s77, s77, {7 if opt.get("rot", 1) else 0}
    {"" if opt.get("rot", 1) else "s_mov_b32 s77, s3"}
    s_lshl_b32 s77, s77, 12
    s_cmp_eq_u32 s{sRole}, 0
    s_waitcnt lgkmcnt(0)
    """)
    def wsadj():
        if opt.get("wsoff"):
            A(f"s_add_u32 s{PWS}, s{PWS}, {opt['wsoff'] << 20}")
            A(f"s_addc_u32 s{PWS+1}, s{PWS+1}, 0")
    A(f"s_mov_b32 s22, {WS_TAG}")
    A(f"s_load_dword s{sTag}, s[{PWS}:{PWS+1}], s22")
    A("s_cbranch_scc0 K_GEMM")
    ool.append(f"""K_LOW:
    s_cmp_lg_u32 s3, 7
    s_cbranch_scc1 K_LOW2
    s_getpc_b64 s[22:23]
    K_PC:
    s_sub_u32 s22, s22, K_PC-{KNAME}
    s_subb_u32 s23, s23, 0
    v_lshlrev_b32 v{v.JK}, 7, v{L}
    v_add_u32 v{v.JK2}, 0x2000, v{v.JK}
    v_min_u32 v{v.JK2}, K_CODE_END-{KNAME}-4, v{v.JK2}
    global_load_dword v{v.PROG}, v{v.JK}, s[22:23]
    global_load_dword v{v.FV}, v{v.JK2}, s[22:23]
    K_LOW2:
    s_cmp_lt_u32 s2, 3
    s_cbranch_scc1 K_SPECIAL
    s_branch K_LOWB""")
    def xdma(n):
        A(f"""
        s_add_u32 s{sX}, s{PX}, s{sUT}
        s_addc_u32 s{sX+1}, s{PX+1}, 0
        s_add_u32 m0, s76, {L_X}
        s_movk_i32 s23, 0x2000
        buffer_load_dwordx4 v{XV}, {sr(sX,4)}, 0 offen lds
        s_add_u32 m0, s76, {L_X + 8192}
        s_movk_i32 s22, 0x4000
        buffer_load_dwordx4 v{XV}, {sr(sX,4)}, s23 offen lds
        """)
        if n == 3:
            A(f"s_add_u32 m0, s76, {L_X + 16384}")
            A("s_nop 0")
            A(f"buffer_load_dwordx4 v{XV}, {sr(sX,4)}, s22 offen lds")
    def wdma(soff, lds):
        A(f"s_add_u32 m0, s77, {lds}")
        if soff: A(f"s_add_u32 s22, s77, {soff}")
        else: A("s_nop 0")
        for q in range(4):
            A(f"buffer_load_dwordx4 v{WV}, {sr(sWm,4)}, s{22 if soff else 77} offen offset:{q*1024} lds")
    def w23dma(w2=True):
        if w2: wdma(32768, L_W2)
        A(f"s_add_u32 m0, s76, {L_W3}")
        A(f"s_add_u32 s22, s76, 65536")
        A(f"buffer_load_dwordx4 v{WV}, {sr(sWm,4)}, s22 offen lds")
    def sconsts():
        srd(A, sP, PWS, 0 if opt.get('nop') else N, stride=256)
        srd(A, sE, PE, 0 if opt.get('noe') else E, stride=32)
        srd(A, sOUT, POUT, N * 256)
        A(f"""
        s_mov_b32 s{sMode}, 0
        s_mov_b32 s{sNoE}, 0
        s_movk_i32 s{sK3F}, 0x3fff
        s_lshl_b32 s{sRing}, s3, 13
        s_lshr_b32 s22, s{sC}, 1
        s_mul_i32 s22, s22, 3072
        s_bfe_u32 s23, s{sC}, 0x10000
        s_lshl_b32 s23, s23, 10
        s_add_u32 s22, s22, s23
        s_mul_i32 s{sElim}, s{sG}, {GEA}
        s_add_u32 s{sE0}, s{sElim}, s22
        s_add_u32 s{sE0}, s{sE0}, {EA}
        s_mul_i32 s{sRel}, s2, 10240
        s_add_u32 s{sRel}, s{sRel}, 8448
        """)
    def vconsts():
        A(f"""
        v_add_u32 v{v.P0}, s{sRing}, v{v.P0}
        v_add_u32 v{v.E_}, s{sElim}, v{v.E_}
        s_mul_i32 s22, s{sG}, {GSL*8}
        v_xor_b32 v{v.P1}, 16, v{v.P0}
        v_add_u32 v{v.R1}, s22, v{v.R1}
        v_add_u32 v{v.R2}, s22, v{v.R2}
        s_lshl_b32 s23, s{sC}, 8
        s_add_u32 s22, s22, s23
        v_add_u32 v{v.Re}, s22, v{v.Re}
        s_lshl_b32 s22, s{sC}, 6
        v_or_b32 v{v.IX0+1}, s22, v{v.IXo}
        v_or_b32 v{v.IX1+1}, s22, v{v.IXo}
        v_xor_b32 v{TRA}, s22, v{TRA}
        s_mul_i32 s23, s2, 40
        s_mul_i32 s78, s{sG}, 20
        s_add_u32 s23, s23, s78
        s_lshl_b32 s23, s23, 8
        s_add_u32 s23, s23, s22
        v_add_u32 v{v.OA}, s23, v{v.OAl}
        v_mov_b32 v{v.IE+1}, v{v.IEo}
        s_mul_i32 s22, s3, {16*CH}
        v_add_u32 v{v.EB}, s22, v{v.EB}
        s_mul_i32 s22, s3, {4*3072}
        v_add_u32 v{v.QC}, s22, v{v.QC}
        s_lshl_b32 s22, s3, 2
        v_add_u32 v{v.FW}, s22, v{v.FRo}
        s_lshl_b32 s22, s{sG}, 4
        v_add_u32 v{v.FR}, s22, v{v.FRo}
        v_lshrrev_b32 v{H}, 5, v{L}
        s_add_u32 s{sRing}, s{sRing}, {RING}
        s_add_u32 s{sElim}, s{sElim}, {EA + GEA}
        """)
    def lds_init():
        A(f"""
        s_mul_i32 s22, s3, 3072
        s_add_u32 m0, s22, {EA + 2048}
        s_brev_b32 s23, 2
        buffer_load_dwordx4 v{v.t3}, {sr(sWS,4)}, s23 offen lds
        s_add_u32 m0, s22, {EA + 2048 + 24576}
        s_cmp_lt_u32 s3, 2
        buffer_load_dwordx4 v{v.t3}, {sr(sWS,4)}, s23 offen lds
        s_cselect_b32 s78, 0, {JUNK - (EA + 2048 + 73728) - 7 * 3072}
        s_add_u32 m0, s22, {EA + 2048 + 49152}
        s_cselect_b32 s79, s22, {7 * 3072}
        buffer_load_dwordx4 v{v.t3}, {sr(sWS,4)}, s23 offen lds
        """.replace("s_cselect_b32 s78, 0, " + str(JUNK - (EA + 2048 + 73728) - 7 * 3072) + "\n", "").replace(
            f"        s_add_u32 m0, s22, {EA + 2048 + 49152}\n        s_cselect_b32 s79, s22, {7 * 3072}\n",
            f"        s_cselect_b32 s79, s22, {JUNK - (EA + 2048 + 73728)}\n        s_add_u32 m0, s22, {EA + 2048 + 49152}\n        s_lshl_b32 s22, s3, 10\n"))
        A(f"""
        s_add_u32 m0, s79, {EA + 2048 + 73728}
        s_add_u32 s78, s{sTB}, 4096
        buffer_load_dwordx4 v{v.t3}, {sr(sWS,4)}, s23 offen lds
        s_addc_u32 s79, s{sTB+1}, 0
        s_add_u32 m0, s22, {REC - 1024}
        s_cmp_eq_u32 s3, 7
        global_load_lds_dwordx4 v{v.t3}, s[78:79] offset:1024
        s_cbranch_scc1 {A.label('i7')}
        """)
        l7 = f"L_i7_{A.uid}"
        A(f"""
        s_add_u32 m0, s22, {REC + 8192 - 1024}
        s_nop 0
        global_load_lds_dwordx4 v{v.t3}, s[78:79] offset:1024
        {l7}b:
        """)
        ool.append(f"{l7}:\ns_mov_b32 m0, 0\ns_nop 0\nglobal_load_lds_dwordx4 v{v.t3}, s[78:79]\ns_branch {l7}b")
    def tagget(x):
        pass
    def tagfix():
        A(f"s_add_u32 s{sTag}, s{sTag}, 2")
        A(f"s_or_b32 s{sTag}, s{sTag}, 0x40000001")
    def xred(regs, xs, pats=("quad_perm:[1,0,3,2]", "quad_perm:[2,3,0,1]")):
        for r, x in zip(regs, xs): A(f"v_bitop3_b32 v{x}, v{r}, v{r+1}, v{r+2} bitop3:0x96")
        for r, x in zip(regs, xs): A(f"v_xor_b32 v{x}, v{x}, v{r+3}")
        for pat in pats:
            if len(xs) < 3: A(f"s_nop {2 - len(xs)}")
            for x in xs: A(f"v_xor_b32_dpp v{x}, v{x}, v{x} {pat} row_mask:0xf bank_mask:0xf")
    def tagload(lbl):
        pass
    def qaddr():
        XA = v.E; GA = v.E + 1; TN = v.E + 2
        A(f"""
        s_mul_i32 s22, s{sG}, 20
        s_mul_i32 s23, s{sRole}, 40
        s_add_u32 s22, s22, s23
        v_and_b32 v{XA}, 31, v{L}
        v_add_u32 v{XA}, s22, v{XA}
        v_xor_b32 v{GA}, v{XA}, v{H}
        v_and_b32 v{GA}, 15, v{GA}
        v_lshl_or_b32 v{XA}, v{XA}, 4, v{GA}
        s_mov_b32 s22, {L_X}
        v_lshl_add_u32 v{XA}, v{XA}, 4, s22
        v_lshl_add_u32 v{TN}, v{H}, 11, v{TRA}
        v_add_u32 v{TN}, {L_W2}, v{TN}
        """)
    def qreads():
        XA = v.E; GA = v.E + 1; TN = v.E + 2
        for s_ in range(8):
            A(f"ds_read_b64_tr_b16 {vr(v.WA+4*s_,2)}, v{TN} offset:{s_*4096}")
            A(f"ds_read_b64_tr_b16 {vr(v.WA+4*s_+2,2)}, v{TN} offset:{s_*4096+1024}")
            if s_: A(f"v_xor_b32 v{GA}, {s_*32}, v{XA}")
            A(f"ds_read_b128 {vr(v.XF+4*s_,4)}, v{GA if s_ else XA}")
        A(f"ds_read_b64_tr_b16 {vr(v.W3F,2)}, v{TN} offset:32768")
        A(f"ds_read_b64_tr_b16 {vr(v.W3F+2,2)}, v{TN} offset:33792")
    def qmfma(per=3):
        for s_ in range(8):
            A(f"s_waitcnt lgkmcnt({min(15, per*(7-s_) + 2)})")
            A(mfma(v.E, v.XF + 4*s_, v.WA + 4*s_, "0" if s_ == 0 else None))
            A(f"v_mov_b64 {P(v.ACC+2*s_)}, 0")
        A(f"""
        s_mov_b32 s72, {NEG_LOG2E:#x}
        v_cmp_gt_u32 {sr(sN40,2)}, 40, v{L}
        v_cmp_le_u32 {sr(sG1,2)}, 20, v{L}
        v_mov_b32 v{v.ONE}, 1.0
        v_mov_b32 v{v.ONE+1}, 1.0
        s_waitcnt lgkmcnt(0)
        """)
        for r in range(4):
            A(f"""
            v_lshlrev_b32 v{v.S}, 16, v{v.W3F+r}
            v_and_b32 v{v.S+1}, 0xffff0000, v{v.W3F+r}
            v_mul_f32 v{v.S}, s72, v{v.S}
            v_mul_f32 v{v.S+1}, s72, v{v.S+1}
            v_cvt_pk_bf16_f32 v{v.W3F+r}, v{v.S}, v{v.S+1}
            """)
    def post(x):
        A(f"""
        s_cmp_lg_u32 s3, 0
        s_cbranch_scc1 K_NP{x}
        v_readfirstlane_b32 s{sTag}, v{v.FV}
        s_cmp_eq_u32 s{sTag}, 0
        s_cbranch_scc1 K_TAG{x}
        K_TAGOK{x}:
        s_mov_b64 exec, 1
        buffer_store_dword v{v.FV}, off, {sr(sWS,4)}, s{sUoff} sc1
        s_mov_b64 exec, -1
        K_NP{x}:
        """)
        ool.append(f"K_TAG{x}:\nbuffer_load_dword v{v.FV}, off, {sr(sDB,4)}, 0 sc1\ns_waitcnt vmcnt(0)\nv_readfirstlane_b32 s{sTag}, v{v.FV}\ns_cmp_eq_u32 s{sTag}, 0\ns_cbranch_scc1 K_TAG{x}\ns_branch K_TAGOK{x}")
    MC = opt.get("mc", 0)
    D, S, RK, AD = v.T, v.T + 8, v.T1, v.T1 + 8
    CW = v.E
    A(f"s_mul_i32 s22, s{sPair}, {CH*4}")
    srd(A, sD, PDST, CH * 4, add="s22")
    A(f"""
    v_lshlrev_b32 v{v.t1}, 2, v0
    s_movk_i32 s23, 0x2000
    buffer_load_dwordx4 {vr(D,4)}, v{v.t2}, {sr(sD,4)}, 0 offen
    buffer_load_dword v{D+4}, v{v.t1}, {sr(sD,4)}, s23 offen
    """)
    srd(A, sS, PSRC, CH * 4, add="s22")
    A(f"""
    buffer_load_dwordx4 {vr(S,4)}, v{v.t2}, {sr(sS,4)}, 0 offen
    buffer_load_dword v{S+4}, v{v.t1}, {sr(sS,4)}, s23 offen
    v_mov_b64 {P(CW)}, -1
    v_mov_b64 {P(CW+2)}, -1
    v_mov_b32 v{CW+4}, 16
    ds_write_b128 v{v.t2}, {vr(CW,4)}
    ds_write_b128 v{v.t2}, {vr(CW,4)} offset:8192
    ds_write_b128 v{v.t2}, {vr(CW,4)} offset:16384
    ds_write_b128 v{v.t2}, {vr(CW,4)} offset:24576
    ds_write_b32 v{v.t1}, v{CW+4} offset:32768
    """)
    srd(A, sWm, PWM, 272 * 256)
    EARLY0 = opt.get("e0", 0)
    P0M = opt.get("p0", 2)
    if P0M == 1:
        xdma(2); w23dma(False)
    nb0 = 3 if P0M == 1 else 0
    srd(A, sWS, PWS, 0x10000000 if (opt.get('rw') or opt.get('dup')) else (WS_END if not ST else 0x1000000))
    PW = opt.get("pw", 0)
    PW1 = PW >= 1; PW = PW == 1
    if PW:
        A(f"""
        s_lshl_b32 s78, s{sPair}, 15
        s_add_u32 s78, s78, {WS_CELL}
        """)
        for q in range(4):
            A(f"buffer_store_dwordx4 {vr(CW,4)}, v{v.t2}, {sr(sWS,4)}, s78 offen {STF}")
            if q < 3: A("s_add_u32 s78, s78, 8192")
    if PW: nb0 += 4
    if opt.get("cl"):
        A(f"""
        v_lshlrev_b32 v{CW+6}, 7, v{L}
        s_mul_i32 s22, s3, 2560
        s_add_u32 s22, s22, s{sUT}
        s_mov_b32 exec_lo, 0xfffff
        s_mov_b32 exec_hi, 0
        buffer_store_dword v{CW}, v{CW+6}, {sr(sWS,4)}, s22 offen {STF}
        s_mov_b64 exec, -1
        """)
        nb0 += 1
    sconsts()
    A(f"""
    v_lshlrev_b32 v{CW+6}, 22, v0
    v_add_u32 v{CW+7}, 0x800, v0
    v_lshlrev_b32 v{CW+7}, 20, v{CW+7}
    v_mov_b32 v{CW+5}, 16
    s_mov_b32 s72, -10
    s_mov_b32 s73, 0x100000
    s_mov_b32 s74, 0x200000
    s_mov_b32 s75, 0x300000
    s_lshl_b32 s78, s{sPair}, 6
    v_lshrrev_b32 v{CW+10}, 2, v0
    v_and_b32 v{CW+11}, 3, v0
    v_lshlrev_b32 v{CW+11}, 4, v{CW+11}
    v_lshl_add_u32 v{CW+12}, v{CW+10}, 13, v{CW+11}
    v_mul_u32_u24 v{CW+10}, 10240, v{CW+10}
    v_add_u32 v{CW+10}, v{CW+10}, v{CW+11}
    s_movk_i32 s79, {31*16}
    s_waitcnt lgkmcnt(0)
    s_barrier
    s_add_u32 s{sTag}, s{sTag}, 2
    s_or_b32 s{sTag}, s{sTag}, 0x40000001
    s_waitcnt vmcnt({2 + nb0})
    """)
    stamp(94)
    t = CW + 8
    for j in range(5):
        A(f"""
        v_mul_u32_u24 v{AD+j}, 0xcccd, v{D+j}
        v_lshrrev_b32 v{AD+j}, 19, v{AD+j}
        v_and_b32 v{AD+j}, -4, v{AD+j}
        ds_add_rtn_u32 v{RK+j}, v{AD+j}, v{CW+5} offset:32768
        """)
    if P0M == 1:
        wdma(32768, L_W2); nb0 += 4
    if P0M == 2:
        xdma(2); w23dma(); nb0 += 7
    for j in range(5):
        A(f"v_mad_i32_i24 v{D+j}, v{AD+j}, s72, v{D+j}")
    A(f"s_waitcnt vmcnt({nb0})")
    for j in range(5):
        d = D + j
        A(f"v_lshl_or_b32 v{d}, v{d}, 14, v{S+j}")
        if j == 0: A(f"v_add_u32 v{d}, v{d}, v{CW+6}")
        elif j < 4: A(f"v_add3_u32 v{d}, v{d}, v{CW+6}, s{72+j}")
        else: A(f"v_add_u32 v{d}, v{d}, v{CW+7}")
    A("s_waitcnt lgkmcnt(0)")
    pt("rk")
    A(f"v_max3_u32 v{t}, v{RK}, v{RK+1}, v{RK+2}")
    A(f"v_max3_u32 v{t}, v{t}, v{RK+3}, v{RK+4}")
    A(f"v_cmp_le_u32 vcc, s79, v{t}")
    A("s_cbranch_vccnz K_BOVF")
    A("K_BOVB:")
    B = Asm()
    B("K_BOVF:")
    B(f"v_mov_b32 v{t}, -2")
    for j in range(5):
        B(f"v_cmp_le_u32 vcc, s79, v{RK+j}")
        B(f"v_min_u32 v{RK+j}, s79, v{RK+j}")
        B("s_nop 0")
        B(f"v_cndmask_b32 v{D+j}, v{D+j}, v{t}, vcc")
    B("s_branch K_BOVB")
    ool.append(B.text())
    for j in range(5):
        r = RK + j
        A(f"""
        v_lshrrev_b32 v{t}, 4, v{r}
        v_and_b32 v{t+1}, 0x100, v{r}
        v_and_b32 v{r}, 0x30, v{r}
        v_and_or_b32 v{r}, v{t}, 12, v{r}
        v_lshl_or_b32 v{r}, v{t+1}, 6, v{r}
        v_lshl_add_u32 v{r}, v{AD+j}, 4, v{r}
        ds_write_b32 v{r}, v{D+j}
        """)
    A(f"""
    s_add_u32 s73, s78, {128*10240}
    s_add_u32 s74, s78, {WS_CELL}
    s_add_u32 s75, s74, {128*8192}
    s_movk_i32 s22, {1000 - 512}
    v_cmp_gt_u32 s[70:71], s22, v0
    s_not_b32 s22, s{sTag}
    s_waitcnt lgkmcnt(0)
    s_barrier
    """)
    pt("cb")
    X = v.T1
    A(f"""
    ds_read_b128 {vr(v.T,4)}, v{v.t2}
    ds_read_b128 {vr(v.T+4,4)}, v{v.t2} offset:8192
    ds_read_b128 {vr(v.T+8,4)}, v{v.t2} offset:16384
    ds_read_b128 {vr(v.T+12,4)}, v{v.t2} offset:24576
    s_waitcnt lgkmcnt(0)
    """)
    xred([v.T + 4*q for q in range(4)], [X + q for q in range(4)])
    A(f"""
    v_mov_b32_dpp v{X+4}, v{v.T+8} quad_perm:[0,0,0,0] row_mask:0xf bank_mask:0xf
    v_mov_b32_dpp v{X+5}, v{v.T+12} quad_perm:[0,0,0,0] row_mask:0xf bank_mask:0xf
    v_cmp_ne_u32 s[68:69], -1, v{X+4}
    v_cmp_ne_u32 vcc, -1, v{X+5}
    s_mov_b32 exec_lo, 0x11111111
    s_mov_b32 exec_hi, 0x11111111
    s_and_b64 s[70:71], s[70:71], vcc
    v_xor_b32 v{v.T}, s22, v{X}
    v_xor_b32 v{v.T+4}, s22, v{X+1}
    v_cndmask_b32 v{X+4}, 0, 1, s[68:69]
    v_cndmask_b32 v{X+5}, 0, 1, vcc
    v_xor_b32 v{v.T}, v{v.T}, v{X+4}
    v_xor_b32 v{v.T+4}, v{v.T+4}, v{X+5}
    s_mov_b32 exec_lo, 0x88888888
    s_mov_b32 exec_hi, 0x88888888
    v_xor_b32 v{v.T+11}, s22, v{X+2}
    v_xor_b32 v{v.T+15}, s22, v{X+3}
    s_mov_b64 exec, -1
    s_waitcnt vmcnt(0)
    buffer_store_dwordx4 {vr(v.T,4)}, v{CW+10}, {sr(sOUT,4)}, s78 offen {STF}
    buffer_store_dwordx4 {vr(v.T+4,4)}, v{CW+10}, {sr(sOUT,4)}, s73 offen {STF}
    s_mov_b64 exec, s[68:69]
    buffer_store_dwordx4 {vr(v.T+8,4)}, v{CW+12}, {sr(sWS,4)}, s74 offen {STF}
    s_mov_b64 exec, s[70:71]
    buffer_store_dwordx4 {vr(v.T+12,4)}, v{CW+12}, {sr(sWS,4)}, s75 offen {STF}
    s_mov_b64 exec, -1
    """)
    stamp(4)
    vconsts()
    A("s_branch K_COM0")
    A("K_GEMM:")
    pt("k0")
    if opt.get("wfirst"):
        srd(A, sWm, PWM, 272 * 256)
        wdma(0, 0)
        xdma(3)
    else:
        xdma(3)
        srd(A, sWm, PWM, 272 * 256)
        wdma(0, 0)
    G1M = opt.get("g1", 2)
    pt("g0")
    if G1M == 0: w23dma()
    pt("g1")
    srd(A, sWS, PWS, 0x10000000 if (opt.get('rw') or opt.get('dup')) else (WS_END if not ST else 0x1000000))
    sconsts()
    if opt.get("tlb"):
        A(f"""
        s_cmp_lg_u32 s3, 7
        s_cbranch_scc1 K_NOTLB
        v_lshlrev_b32 v{v.JK}, 21, v{L}
        v_lshlrev_b32 v{v.JK2}, 16, v{L}
        s_mov_b32 s22, 0x7ff80
        buffer_load_dword v{v.PROG}, v{v.JK}, {sr(sWS,4)}, s22 offen
        {f"buffer_load_dword v{v.LA}, v{v.JK2}, {sr(sE,4)}, 0 idxen" if opt.get("tlb") >= 2 else ""}
        {f"buffer_load_dword v{v.OHA}, v{v.JK}, {sr(sOUT,4)}, 0 offen" if opt.get("tlb") >= 2 else ""}
        K_NOTLB:
        """)
    XA = v.E; PA = v.E + 1; GA = v.E + 2; TN = v.E + 3
    A(f"""
    s_sub_u32 s{sPair}, s{sRel}, 256
    s_mov_b32 s72, {NEG_LOG2E:#x}
    s_add_u32 s73, s{sUT}, 0x2000
    s_add_u32 s74, s{sUT}, 0x4000
    s_cmp_ge_u32 s3, 4
    s_cselect_b32 s74, 0x40000000, s74
    """)
    A(f"""
    v_add_u32 v{v.JK3}, {L_BN}, v{v.t2}
    v_and_b32 v{XA}, 31, v{L}
    s_lshl_b32 s22, s{sG}, 5
    v_add_u32 v{XA}, s22, v{XA}
    s_waitcnt vmcnt({(12 if G1M == 0 else 7) })
    """)
    pt("g2")
    vconsts()
    A(f"""
    v_lshl_add_u32 v{TN}, v{H}, 11, v{TRA}
    s_lshl_b32 s22, s{sC}, 2
    v_lshl_add_u32 v{PA}, v{H}, 1, s22
    v_xor_b32 v{PA}, v{PA}, v{XA}
    v_and_b32 v{PA}, 15, v{PA}
    v_lshl_or_b32 v{PA}, v{XA}, 4, v{PA}
    s_mov_b32 s22, {L_BN}
    v_lshl_add_u32 v{PA}, v{PA}, 4, s22
    v_xor_b32 v{GA}, v{H}, v{XA}
    v_and_b32 v{GA}, 15, v{GA}
    v_lshl_or_b32 v{XA}, v{XA}, 4, v{GA}
    s_mov_b32 s22, {L_X}
    v_lshl_add_u32 v{XA}, v{XA}, 4, s22
    """)
    for s_ in range(1, 8):
        A(f"v_xor_b32 v{v.E+8+s_}, {s_*32}, v{XA}")
    pt("g3")
    if "gx" in PTS:
        A("s_waitcnt vmcnt(4)")
        pt("gx")
        A("s_waitcnt vmcnt(0)")
        pt("gw")
    if G1M == 1: w23dma()
    tagload("")
    A("s_waitcnt lgkmcnt(0)")
    tagfix()
    if PW1 and opt.get("w23e"): w23dma()
    if PW1: A("s_barrier")
    if PW1:
        A(f"""
        v_mov_b64 {P(v.T)}, 0
        v_mov_b64 {P(v.T+2)}, 0
        buffer_store_dwordx4 {vr(v.T,4)}, v{XV}, {sr(sWS,4)}, s{sUT} offen {STF}
        buffer_store_dwordx4 {vr(v.T,4)}, v{XV}, {sr(sWS,4)}, s73 offen {STF}
        buffer_store_dwordx4 {vr(v.T,4)}, v{XV}, {sr(sWS,4)}, s74 offen {STF}
        s_mov_b64 exec, 1
        buffer_store_dword v{v.T}, off, {sr(sWS,4)}, s{sPair} sc1
        s_mov_b64 exec, -1
        """)
    A(f"s_waitcnt vmcnt({(4 if PW1 else 0) + (5 if opt.get('w23e') else 0)})")
    A("s_barrier")
    stamp(94)
    if opt.get("tst"):
        sd = sOUT if opt["tst"] == "out" else sWS
        add = {"out": 0, "ws": 0, "ws2": 0x900000}[opt["tst"]]
        pt("t0")
        for r in (sUT, 73, 74):
            A(f"s_add_u32 s22, s{r}, {add}")
            A(f"buffer_store_dwordx4 {vr(v.T,4)}, v{XV}, {sr(sd,4)}, s22 offen {STF}")
        A("s_waitcnt vmcnt(0)")
        pt("t1")
    for s_ in range(8):
        A(f"ds_read_b64_tr_b16 {vr(v.WA+4*s_,2)}, v{TN} offset:{s_*4096}")
        A(f"ds_read_b64_tr_b16 {vr(v.WA+4*s_+2,2)}, v{TN} offset:{s_*4096+1024}")
        A(f"ds_read_b128 {vr(v.XF+4*s_,4)}, v{v.E+8+s_ if s_ else XA}")
    if G1M == 2 and not opt.get("w23e"): w23dma()
    A(f"s_cmp_lg_u32 s{sG}, 0")
    A("s_cbranch_scc1 K_G1")
    for s_ in range(8):
        A(f"ds_read_b128 {vr(v.U2+4*s_,4)}, v{v.E+8+s_ if s_ else XA} offset:16384")
    for s_ in range(8):
        A(f"s_waitcnt lgkmcnt({min(15, 3*(7-s_) + 8)})")
        A(mfma(v.T, v.WA + 4*s_, v.XF + 4*s_, "0" if s_ == 0 else None))
    for s_ in range(8):
        A(f"s_waitcnt lgkmcnt({7-s_})")
        A(mfma(v.T1, v.WA + 4*s_, v.U2 + 4*s_, "0" if s_ == 0 else None))
    def pout(acc, off, pk):
        for r in range(0, 16, 2):
            if pk:
                A(f"v_pk_mul_f32 {P(acc+r)}, {P(acc+r)}, s[72:73] op_sel_hi:[1,0]")
            else:
                A(f"v_mul_f32 v{acc+r}, s72, v{acc+r}")
                A(f"v_mul_f32 v{acc+r+1}, s72, v{acc+r+1}")
        for r in range(0, 16, 2):
            A(f"v_cvt_pk_bf16_f32 v{acc+r//2}, v{acc+r}, v{acc+r+1}")
        A(f"ds_write_b128 v{PA}, {vr(acc,4)} offset:{off}")
        A(f"ds_write_b128 v{GA}, {vr(acc+4,4)} offset:{off}")
    A(f"v_xor_b32 v{GA}, 16, v{PA}")
    pout(v.T, 0, False)
    pout(v.T1, 16384, True)
    A("s_branch K_G3")
    A("K_G1:")
    for s_ in range(8):
        A(f"s_waitcnt lgkmcnt({min(15, 3*(7-s_))})")
        A(mfma(v.T, v.WA + 4*s_, v.XF + 4*s_, "0" if s_ == 0 else None))
    A(f"v_xor_b32 v{GA}, 16, v{PA}")
    A("s_nop 10")
    pout(v.T, 0, False)
    A("K_G3:")
    pt("g4")
    A(f"""
    s_waitcnt lgkmcnt(0)
    s_barrier
    ds_read_b128 {vr(v.T,4)}, v{v.JK3}
    ds_read_b128 {vr(v.T+4,4)}, v{v.JK3} offset:8192
    ds_read_b128 {vr(v.T+8,4)}, v{v.JK3} offset:16384
    s_waitcnt lgkmcnt(2)
    """)

    A(f"""
    buffer_store_dwordx4 {vr(v.T,4)}, v{XV}, {sr(sWS,4)}, s{sUT} offen {STF}
    s_waitcnt lgkmcnt(1)
    buffer_store_dwordx4 {vr(v.T+4,4)}, v{XV}, {sr(sWS,4)}, s73 offen {STF}
    s_waitcnt lgkmcnt(0)
    buffer_store_dwordx4 {vr(v.T+8,4)}, v{XV}, {sr(sWS,4)}, s74 offen {STF}
    """)
    stamp(4)
    if G1M == 3:
        w23dma()
        qaddr()
        A("s_barrier")
        lds_init()
        A("s_waitcnt vmcnt(11)")
        A("s_barrier")
        pt("p1")
        A("s_cmp_eq_u32 s3, 0")
        A("s_cbranch_scc1 K2_B1")
        A("s_waitcnt vmcnt(6)")
        A("K2_B5:")
        A("s_barrier")
        qreads()
        qmfma()
        stamp(6)
        A("s_branch K_COMMON")
    A("s_waitcnt vmcnt(3)")
    A("K_COM0:")
    qaddr()
    A("s_barrier")
    pt("c1")
    qreads()
    lds_init()
    pt("c2")
    qmfma()
    stamp(6)
    A("K_COMMON:")
    pt("c3")
    for r in range(0, 12, 2):
        A(f"v_pk_mul_f32 {P(v.E+r)}, {P(v.E+r)}, s[72:73] op_sel_hi:[1,0]")
    A(f"""
    v_cvt_pk_bf16_f32 v{v.QS}, v{v.E}, v{v.E+1}
    v_cvt_pk_bf16_f32 v{v.QS+1}, v{v.E+2}, v{v.E+3}
    v_cvt_pk_bf16_f32 v{v.QF+2}, v{v.E+4}, v{v.E+5}
    v_cvt_pk_bf16_f32 v{v.QF+3}, v{v.E+6}, v{v.E+7}
    v_cvt_pk_bf16_f32 v{v.QS+2}, v{v.E+8}, v{v.E+9}
    v_cvt_pk_bf16_f32 v{v.QS+3}, v{v.E+10}, v{v.E+11}
    s_lshl_b32 s{sUoff}, s{sC}, 13
    s_add_u32 s{sUoff}, s{sUoff}, {WS_U}
    """)
    def round_regs():
        A(f"""
        v_mov_b32 v{v.TPa+1}, v{v.IX0+1}
        v_mov_b32 v{v.TPb+1}, v{v.IX0+1}
        v_mov_b32 v{v.IEb+1}, v{v.IE+1}
        v_mov_b32 v{v.aggF}, 1
        v_mov_b64 {P(v.REC)}, -1
        v_mov_b64 {P(v.REC+2)}, -1
        v_mov_b64 {P(v.REC+4)}, -1
        v_mov_b64 {P(v.REC+6)}, -1
        """)
    round_regs()
    A(f"""
    s_cmp_eq_u32 s{sRole}, 0
    s_cbranch_scc1 K2_B3
    """)
    if G1M == 2:
        A(f"""
        s_waitcnt vmcnt(6)
        s_barrier
        s_cmp_eq_u32 s3, 0
        s_cbranch_scc1 K2_B1
        """)
    A("K2_B2:")
    stamp(8)
    A(f"""
    K2_CELLS:
    s_mul_i32 s22, s2, 10240
    s_lshl_b32 s23, s2, 13
    s_add_u32 s23, s23, {WS_CELL}
    s_movk_i32 s76, 500
    v_cmp_gt_u32 s[74:75], s76, v0
    s_and_b32 s72, s74, 0x11111111
    s_and_b32 s73, s75, 0x11111111
    s_mov_b64 s[70:71], s[74:75]
    """)
    stamp(10)
    A(f"""
    K_POLL:
    s_mov_b64 exec, s[74:75]
    buffer_load_dwordx4 {vr(v.REC,4)}, v{v.t2}, {sr(sOUT,4)}, s22 offen sc1
    s_mov_b64 exec, -1
    s_waitcnt vmcnt(0)
    """)
    xred([v.REC], [v.NS])
    A(f"""
    v_xor_b32 v{v.NS}, s{sTag}, v{v.NS}
    v_cmp_lt_u32 vcc, 1, v{v.NS}
    s_and_b64 s[74:75], s[74:75], vcc
    s_cbranch_scc1 K_POLL2
    v_cmp_eq_u32 vcc, 1, v{v.NS}
    s_and_b64 s[76:77], s[70:71], vcc
    s_mov_b64 exec, s[76:77]
    buffer_load_dwordx4 {vr(v.REC+4,4)}, v{v.t2}, {sr(sWS,4)}, s23 offen sc1
    s_mov_b64 exec, s[72:73]
    v_mov_b32 v{v.REC}, -1
    s_mov_b64 exec, -1
    """)
    A(f"""
    s_cmp_lg_u32 s{sMode}, 0
    s_barrier
    s_cbranch_scc1 K2_COUNT
    ds_read_b128 {vr(v.SEL0,4)}, v{v.S0a}
    ds_read_b128 {vr(v.SEL1,4)}, v{v.S1a}
    K2_COUNT:
    """)
    ool.append(f"K2_B1:\nv_mov_b32 v{v.FV}, s{sTag}\ns_mov_b64 exec, 1\nbuffer_store_dword v{v.FV}, off, {sr(sOUT,4)}, s{sPair} sc1\ns_mov_b64 exec, -1\n{'s_waitcnt vmcnt(7)' if G1M == 3 else ''}\ns_branch {'K2_B5' if G1M == 3 else 'K2_B2'}")
    ool.append(f"K2_B3:\ns_sleep {opt.get('isl', 8)}\ns_branch K2_B2")
    ool.append(f"K_POLL2:\ns_sleep {opt.get('slp', 12)}\ns_branch K_POLL")
    stamp(12)
    ET = opt.get("et", 5)
    MAIN = [1, 0, 2, 3]; RARE = [4, 5, 6, 7]
    W0 = {j: v.W0 + 2 * j for j in MAIN}
    for j in MAIN:
        A(f"""
        v_cmp_gt_u32 {sr(sM+2*j,2)}, -2, v{v.REC+j}
        v_lshrrev_b32 v{v.AD+j}, 12, v{v.REC+j}
        v_and_b32 v{v.AD+j}, 0xfc, v{v.AD+j}
        s_mov_b64 exec, {sr(sM+2*j,2)}
        ds_add_rtn_u32 v{v.RANK+j}, v{v.AD+j}, v{v.aggF} offset:{CNT}
        s_mov_b64 exec, -1
        v_lshrrev_b32 v{W0[j]+1}, 20, v{v.REC+j}
        v_add_u32 v{W0[j]+1}, v{W0[j]+1}, v{v.EB}
        """)
    A("s_cmp_lg_u64 s[76:77], 0")
    A("s_cbranch_scc1 K2_CR")
    A("K2_CRB:")
    A2 = A
    B = Asm()
    B("K2_CR:")
    B("s_mov_b64 s[74:75], s[76:77]")
    B("K2_CR1:")
    B("s_waitcnt vmcnt(0)")
    B(f"""
    v_bitop3_b32 v{v.NS}, v{v.REC+4}, v{v.REC+5}, v{v.REC+6} bitop3:0x96
    v_xor_b32 v{v.NS}, v{v.NS}, v{v.REC+7}
    s_nop 1
    v_xor_b32_dpp v{v.NS}, v{v.NS}, v{v.NS} quad_perm:[1,0,3,2] row_mask:0xf bank_mask:0xf
    s_nop 1
    v_xor_b32_dpp v{v.NS}, v{v.NS}, v{v.NS} quad_perm:[2,3,0,1] row_mask:0xf bank_mask:0xf
    v_xor_b32 v{v.NS}, s{sTag}, v{v.NS}
    v_cmp_lt_u32 vcc, 1, v{v.NS}
    s_and_b64 s[74:75], s[74:75], vcc
    s_cbranch_scc0 K2_CR2
    s_sleep 2
    s_mov_b64 exec, s[74:75]
    buffer_load_dwordx4 {vr(v.REC+4,4)}, v{v.t2}, {sr(sWS,4)}, s23 offen sc1
    s_mov_b64 exec, -1
    s_branch K2_CR1
    K2_CR2:
    v_cmp_eq_u32 vcc, 1, v{v.NS}
    v_mov_b32 v{v.t1}, {FLAG}
    s_and_b64 exec, vcc, s[76:77]
    ds_write_b32 v{v.t1}, v{v.aggF}
    s_mov_b32 exec_lo, 0x88888888
    s_mov_b32 exec_hi, 0x88888888
    v_mov_b32 v{v.REC+7}, -1
    s_mov_b64 exec, -1
    """)
    for j in RARE:
        B(f"""
        v_cmp_gt_u32 vcc, -2, v{v.REC+j}
        s_cbranch_vccz K2_CRB
        v_lshrrev_b32 v{v.AD+j}, 12, v{v.REC+j}
        v_and_b32 v{v.AD+j}, 0xfc, v{v.AD+j}
        s_mov_b64 exec, vcc
        ds_add_rtn_u32 v{v.RANK+j}, v{v.AD+j}, v{v.aggF} offset:{CNT}
        s_mov_b64 exec, -1
        """)
    B("s_branch K2_CRB")
    ool.append(B.text())
    def touches():
        if ET:
            for j in MAIN:
                A(f"""
                v_subrev_u32 v{v.t0}, 80, v{v.AD+j}
                v_min_u32 v{v.t0}, v{v.t0}, v{v.AD+j}
                s_mov_b64 exec, {sr(sM+2*j,2)}
                v_cmpx_gt_u32 vcc, {4*ET}, v{v.t0}
                buffer_load_dword v{v.JK3}, v{W0[j]+1}, {sr(sE,4)}, 0 idxen
                s_mov_b64 exec, -1
                """)
    ETL = opt.get("etl", 0)
    if ETL == 0: touches()
    NPF = opt.get("pf", 0)
    if NPF:
        A(f"""
        s_or_b32 s22, s3, s{sMode}
        s_cmp_lg_u32 s22, 0
        s_cbranch_scc1 K2_NOPF
        v_cmp_ne_u32 vcc, s{sTag}, v{v.JK2}
        s_cbranch_vccnz K2_NOPF
        s_mul_i32 s22, s{sSl}, 81920
        v_lshlrev_b32 v{v.t0}, 7, v{L}
        """)
        for q in range(NPF):
            A(f"buffer_load_dword v{v.JK3}, v{v.t0}, {sr(sWS,4)}, s22 offen")
            if q < NPF - 1: A("s_add_u32 s22, s22, 8192")
        A("K2_NOPF:")
    c = v.t0; pd = v.OHA
    A(f"""
    v_lshlrev_b32 v{v.t0}, 2, v{L}
    v_mov_b32 v{v.t1}, {FLAG}
    s_mul_i32 s22, s{sG}, 20
    s_add_u32 s22, s22, 8
    s_waitcnt lgkmcnt(0)
    s_barrier
    """)
    pt("b2")
    A(f"""
    ds_read_b32 v{v.t0}, v{v.t0} offset:{CNT}
    ds_read_b32 v{v.t1}, v{v.t1}
    s_waitcnt lgkmcnt(0)
    v_add_u32 v{c}, 3, v{c}
    v_and_b32 v{c}, -4, v{c}
    v_max_u32 v{c}, 4, v{c}
    v_cndmask_b32 v{pd}, 0, v{c}, {sr(sN40,2)}
    v_readfirstlane_b32 s23, v{v.t1}
    s_nop 0
    v_add_u32_dpp v{c}, v{pd}, v{pd} row_shr:1 row_mask:0xf bank_mask:0xf bound_ctrl:0
    s_nop 1
    v_add_u32_dpp v{c}, v{c}, v{c} row_shr:2 row_mask:0xf bank_mask:0xf bound_ctrl:0
    s_nop 1
    v_add_u32_dpp v{c}, v{c}, v{c} row_shr:4 row_mask:0xf bank_mask:0xf bound_ctrl:0
    s_nop 1
    v_add_u32_dpp v{c}, v{c}, v{c} row_shr:8 row_mask:0xf bank_mask:0xf bound_ctrl:0
    s_nop 1
    v_add_u32_dpp v{c}, v{c}, v{c} row_bcast:15 row_mask:0xa bank_mask:0xf
    s_nop 1
    v_add_u32_dpp v{c}, v{c}, v{c} row_bcast:31 row_mask:0xc bank_mask:0xf
    s_cmp_lg_u32 s23, -1
    s_cbranch_scc1 K2_OVF
    v_readlane_b32 s{sT0}, v{c}, 19
    v_readlane_b32 s{sT1}, v{c}, 39
    v_sub_u32 v{pd}, v{c}, v{pd}
    s_sub_u32 s23, {GSL}, s{sT0}
    v_add_u32 v{c}, s23, v{pd}
    v_cndmask_b32 v{pd}, v{pd}, v{c}, {sr(sG1,2)}
    v_add_u32 v{v.FV}, v{pd}, v{v.OHB}
    """)
    for j in MAIN:
        A(f"ds_bpermute_b32 v{v.PK+j}, v{v.AD+j}, v{v.FV}")
    A(f"""
    v_readlane_b32 s{sTsw}, v{pd}, s22
    s_sub_u32 s{sT1}, s{sT1}, s{sT0}
    s_max_u32 s22, s{sT0}, s{sT1}
    s_cmp_gt_u32 s22, {GSL}
    s_cbranch_scc1 K2_OVF
    s_waitcnt lgkmcnt(0)
    """)
    pt("sc")
    A(f"""
    s_or_b32 s22, s3, s{sMode}
    s_cmp_lg_u32 s22, 0
    s_cbranch_scc1 K2_NRL
    s_buffer_load_dword s{sTile}, {sr(sOUT,4)}, s{sRel} glc
    K2_NRL:
    """)
    def sbody(j, w, mask):
        return f"""
        s_mov_b64 exec, {mask}
        v_add_u32_sdwa v{v.RANK+j}, v{v.PK+j}, v{v.RANK+j} dst_sel:DWORD dst_unused:UNUSED_PAD src0_sel:WORD_0 src1_sel:DWORD
        v_bfi_b32 v{w}, s{sK3F}, v{v.REC+j}, v{v.PK+j}
        v_lshlrev_b32 v{v.PK+j}, 3, v{v.RANK+j}
        v_lshrrev_b32 v{v.RANK+j}, 2, v{v.RANK+j}
        ds_write_b64 v{v.PK+j}, {P(w)} offset:{REC}
        ds_write_b8 v{v.RANK+j}, v{v.AD+j} offset:{QN}
        """
    if ETL == 1: touches()
    for j in MAIN:
        A(sbody(j, W0[j], sr(sM+2*j,2)))
    A("s_cmp_lg_u64 s[76:77], 0")
    A("s_cbranch_scc1 K2_SR")
    A("K2_SRB:")
    if ETL == 2:
        A("s_mov_b64 exec, -1")
        touches()
    B = Asm()
    B("K2_SR:")
    for j in RARE:
        w = v.W0 + 8
        B(f"""
        s_mov_b64 exec, -1
        v_cmp_gt_u32 vcc, -2, v{v.REC+j}
        s_cbranch_vccz K2_SRB
        ds_bpermute_b32 v{v.PK+j}, v{v.AD+j}, v{v.FV}
        v_lshrrev_b32 v{w+1}, 20, v{v.REC+j}
        v_add_u32 v{w+1}, v{w+1}, v{v.EB}
        s_waitcnt lgkmcnt(0)
        """)
        B(sbody(j, w, "vcc"))
    B("s_branch K2_SRB")
    ool.append(B.text())
    A(f"""
    s_mov_b64 exec, -1
    s_or_b32 s22, s3, s{sMode}
    s_cmp_lg_u32 s22, 0
    s_cbranch_scc1 K2_RDY
    s_waitcnt lgkmcnt(0)
    s_cmp_lg_u32 s{sTile}, s{sTag}
    s_cbranch_scc1 K2_SPOLL
    K2_RDY:
    s_mov_b32 m0, s{sRing}
    s_waitcnt lgkmcnt(0)
    s_barrier
    """)
    ool.append(f"K2_RPOLL:\nbuffer_load_dword v{v.JK2}, off, {sr(sOUT,4)}, s{sRel} sc1\ns_waitcnt vmcnt(0)\nv_cmp_ne_u32 vcc, s{sTag}, v{v.JK2}\ns_cbranch_vccz K2_RDY\ns_sleep 1\ns_branch K2_RPOLL")
    ool.append(f"K2_SPOLL:\ns_mov_b32 s23, 0\nK2_SP2:\ns_buffer_load_dword s22, {sr(sOUT,4)}, s{sRel} glc\ns_waitcnt lgkmcnt(0)\ns_cmp_eq_u32 s22, s{sTag}\ns_cbranch_scc1 K2_RDY\ns_add_u32 s23, s23, 1\ns_cmp_lt_u32 s23, 16\ns_cbranch_scc1 K2_SP2\ns_branch K2_RPOLL")
    stamp(14)
    A(f"""
    K2_START:
    ds_read_u16 v{v.IX0}, v{v.R1}
    ds_read_u16 v{v.IX1}, v{v.R1} offset:64
    ds_read_b32 v{v.IE}, v{v.Re}
    ds_read_u8 v{v.t0}, v0 offset:{QN}
    ds_read_u16 v{v.TPa}, v{v.R1} offset:256
    ds_read_u16 v{v.TPb}, v{v.R1} offset:320
    ds_read_b32 v{v.IEb}, v{v.Re} offset:1024
    ds_read_u8 v{v.OH0}, v{v.R2}
    ds_read_u8 v{v.OHA}, v{v.R2} offset:256
    s_waitcnt lgkmcnt(8)
    buffer_load_dwordx4 {P(v.IX0)}, {sr(sP,4)}, 0 idxen offen lds
    s_add_u32 m0, s{sRing}, 1024
    s_waitcnt lgkmcnt(7)
    buffer_load_dwordx4 {P(v.IX1)}, {sr(sP,4)}, 0 idxen offen lds
    s_cmp_lg_u32 s{sNoE}, 0
    s_cselect_b32 m0, {JUNK}, s{sE0}
    s_waitcnt lgkmcnt(5)
    buffer_load_dwordx4 {P(v.IE)}, {sr(sE,4)}, 0 idxen offen lds
    v_cmp_ne_u32 vcc, 0xff, v{v.t0}
    v_subrev_u32 v{v.t1}, 80, v{v.t0}
    v_min_u32 v{v.t0}, v{v.t0}, v{v.t1}
    v_lshl_add_u32 v{v.t1}, v{v.t0}, 3, v{v.QC}
    v_lshrrev_b32 v{v.t0}, 1, v{v.t0}
    v_and_b32 v{v.t0}, 16, v{v.t0}
    v_xor_b32 v{v.t1}, v{v.t1}, v{v.t0}
    v_mov_b32 v{v.t0}, 0x3f80
    s_mov_b64 exec, vcc
    ds_write_b16 v{v.t1}, v{v.t0}
    s_mov_b64 exec, -1
    s_add_u32 m0, s{sRing}, 2048
    s_waitcnt lgkmcnt(0)
    buffer_load_dwordx4 {P(v.TPa)}, {sr(sP,4)}, 0 idxen offen lds
    s_add_u32 m0, s{sRing}, 3072
    ds_read_u16 v{v.IX0}, v{v.R1} offset:512
    buffer_load_dwordx4 {P(v.TPb)}, {sr(sP,4)}, 0 idxen offen lds
    ds_read_u16 v{v.IX1}, v{v.R1} offset:576
    ds_read_u16 v{v.TPa}, v{v.R1} offset:768
    ds_read_u16 v{v.TPb}, v{v.R1} offset:832
    s_cmp_lg_u32 s{sNoE}, 0
    s_cbranch_scc1 K2_ST2
    s_mul_i32 s22, s{sG}, {GSL}
    s_sub_u32 s{sTsw}, s{sTsw}, s22
    s_add_u32 s{sTsw}, s{sTsw}, 31
    s_lshr_b32 s{sTsw}, s{sTsw}, 5
    s_cmp_eq_u32 s{sG}, 0
    s_cselect_b32 s{sTg}, s{sT0}, s{sT1}
    s_add_u32 s{sTg}, s{sTg}, 31
    s_lshr_b32 s{sTg}, s{sTg}, 5
    s_sub_u32 s{sUT}, s{sTg}, 9
    s_and_b32 s{sUT}, s{sUT}, -4
    s_add_u32 s{sUT}, s{sUT}, 1
    s_cmp_lt_u32 s{sTg}, 9
    s_cselect_b32 s{sUT}, {BIG}, s{sUT}
    s_cmp_lg_u32 s{sMode}, 0
    s_cselect_b32 s{sUT}, {BIG}, s{sUT}
    s_sub_u32 s{sT1}, s{sTg}, 1
    K2_ST2:
    s_sub_u32 s22, s{sTg}, 1
    s_lshr_b32 s22, s22, 1
    s_mul_i32 s22, s22, 3072
    s_add_u32 s22, s22, {3072 + 2048}
    v_add_u32 v{v.LA}, s22, v{v.E_}
    s_add_u32 s{sEdst}, s{sE0}, {6144 if opt.get('ek', 3) == 3 else 12288}
    s_mov_b32 s{sTile}, 0
    v_mov_b32 v{v.PROG}, 1
    v_mov_b64 {P(v.QF)}, {P(v.QS)}
    v_mov_b64 {P(v.NS)}, 0
    v_mov_b64 {P(v.NS+2)}, 0
    v_mov_b64 {P(v.DS)}, {P(v.ONE)}
    v_mov_b64 {P(v.DS+2)}, {P(v.ONE)}
    v_mov_b64 {P(v.MSG)}, 0
    v_mov_b64 {P(v.aggF)}, 0
    v_mov_b64 {P(v.aggF+2)}, 0
    v_mov_b64 {P(v.S)}, 0
    s_cmp_lg_u32 s{sNoE}, 0
    s_waitcnt vmcnt(2) lgkmcnt(0)
    s_cbranch_scc1 K2_GO
    s_barrier
    K2_GO:
    s_or_b32 s22, s{sMode}, s{sNoE}
    """)
    stamp(16)
    A(f"""
    ds_read_b128 {vr(v.ohF,4)}, v{v.OH0}
    ds_read_b128 {vr(v.eF,4)}, v{v.E_} offset:3072
    ds_read_b128 {vr(v.pF0,4)}, v{v.P0}
    ds_read_b128 {vr(v.pF1,4)}, v{v.P1}
    s_cbranch_scc1 K2_SAFEP
    """)
    def late_issue():
        A(f"""
        s_add_u32 m0, s{sRing}, 4096
        s_nop 0
        buffer_load_dwordx4 {P(v.IX0)}, {sr(sP,4)}, 0 idxen offen lds
        s_add_u32 m0, s{sRing}, 5120
        ds_read_u16 v{v.IX0}, v{v.R1} offset:1024
        buffer_load_dwordx4 {P(v.IX1)}, {sr(sP,4)}, 0 idxen offen lds
        """)
        if opt.get("ek", 3) == 2:
            A(f"""
            s_add_u32 m0, s{sE0}, 6144
            s_nop 0
            buffer_load_dwordx4 {P(v.IEb)}, {sr(sE,4)}, 0 idxen offen lds
            """)
        else:
            A(f"v_mov_b32 v{v.IE}, v{v.IEb}")
        A(f"""
        s_add_u32 m0, s{sRing}, 6144
        ds_read_u16 v{v.IX1}, v{v.R1} offset:1088
        buffer_load_dwordx4 {P(v.TPa)}, {sr(sP,4)}, 0 idxen offen lds
        s_add_u32 m0, s{sRing}, 7168
        s_nop 0
        buffer_load_dwordx4 {P(v.TPb)}, {sr(sP,4)}, 0 idxen offen lds
        """)
    chain(A, 3, "fast", None, ool, pre=True, mid=late_issue)
    A("K2_LOOP:")
    for k in range(4):
        stretch(A, k, "fast", ool)
        chain(A, k, "fast", "K2_EXIT", ool)
    A("s_branch K2_LOOP")
    A("K2_LAST0:")
    stretch(A, 0, "last", ool, last=True)
    A("s_branch K2_EXIT")
    A("K2_LAST1:")
    stretch(A, 1, "last", ool, last=True)
    A("K2_EXIT:")
    stamp(18)
    pt("x0")
    A(f"""
    s_setprio 0
    ds_read_b128 {vr(v.ohF,4)}, v{v.LA}
    {mfma(v.T1, v.U1 + 24, v.XF + 24)}
    v_rcp_f32 v{v.RS}, v{v.DS}
    v_rcp_f32 v{v.RS+1}, v{v.DS+1}
    v_rcp_f32 v{v.RS+2}, v{v.DS+2}
    v_rcp_f32 v{v.RS+3}, v{v.DS+3}
    {mfma(v.T1, v.U1 + 28, v.XF + 28)}
    v_fma_f32 v{v.S}, v{v.DS}, v{v.DS+2}, v{v.S}
    v_fma_f32 v{v.S+1}, v{v.DS+1}, v{v.DS+3}, v{v.S+1}
    v_mul_f32 v{v.NS}, v{v.NS}, v{v.RS}
    v_mul_f32 v{v.NS+1}, v{v.NS+1}, v{v.RS+1}
    v_mul_f32 v{v.NS+2}, v{v.NS+2}, v{v.RS+2}
    v_mul_f32 v{v.NS+3}, v{v.NS+3}, v{v.RS+3}
    K2_X2:
    s_bitcmp1_b32 s{sTg}, 0
    s_cbranch_scc0 K2_X3
    s_waitcnt lgkmcnt(1)
    {mfma(v.ACC, v.MSG, v.aggF)}
    v_cvt_pk_bf16_f32 v{v.MSG}, v{v.NS}, v{v.NS+1}
    v_cvt_pk_bf16_f32 v{v.MSG+1}, v{v.NS+2}, v{v.NS+3}
    s_branch K2_X4
    K2_X3:
    v_cvt_pk_bf16_f32 v{v.MSG+2}, v{v.NS}, v{v.NS+1}
    v_cvt_pk_bf16_f32 v{v.MSG+3}, v{v.NS+2}, v{v.NS+3}
    K2_X4:
    v_max_f32 v{v.S}, v{v.S}, v{v.S+1}
    s_waitcnt lgkmcnt(0)
    {mfma(v.ACC, v.MSG, v.ohF)}
    v_add_u32 v{v.t0}, s{sRing}, v{v.t3}
    s_cmp_eq_u32 s{sMode}, 1
    s_cbranch_scc1 K2_NEXTR
    K2_FIN:
    s_cmp_eq_u32 s{sUT}, {BIG}
    s_cbranch_scc1 K2_ULD
    K2_ULB:
    s_mov_b32 s22, {NEG_LN2:#x}
    s_mov_b32 s23, {f2u(2.0**60):#x}
    v_mov_b64 {P(v.NS)}, 0
    v_mov_b32 v{v.S+1}, 0
    s_lshl_b32 s76, s{sG}, 15
    s_add_u32 s76, s76, {RING}
    v_add_u32 v{v.t1}, s76, v{v.t3}
    """)
    pt("x1")
    B = Asm(); B("K2_ULD:")
    for i in range(16): u_load(B, i)
    B("s_waitcnt vmcnt(0)")
    for s_ in range(8):
        B(mfma(v.T1, v.U1 + 4*s_, v.XF + 4*s_, "0" if s_ == 0 else None))
    B("s_branch K2_ULB"); ool.append(B.text())
    for s in range(8):
        A(f"v_pk_mul_f32 {P(v.ACC+2*s)}, {P(v.ACC+2*s)}, s[22:23] op_sel_hi:[1,0]")
    for s in range(8):
        A(f"v_cvt_pk_bf16_f32 v{v.E+s}, v{v.ACC+2*s}, v{v.ACC+2*s+1}")
    for s in range(8):
        A(f"v_pk_fma_f32 {P(v.S)}, {P(v.ACC+2*s)}, {P(v.NS)}, {P(v.S)}")
    F = v.T1; AG = v.XF
    A(f"""
    v_add_f32 v{v.S}, v{v.S}, v{v.S+1}
    v_cmp_nge_f32 vcc, s23, v{v.S}
    s_cbranch_vccnz K2_TRIP
    K2_TRB:
    s_waitcnt vmcnt(0)
    ds_write_b128 v{v.t0}, {vr(v.E,4)}
    ds_write_b128 v{v.t0}, {vr(v.E+4,4)} offset:1024
    v_mov_b32 v{v.PROG}, 0x7fff
    """)
    ool.append(f"K2_TRIP:\ns_or_b32 s22, s{sMode}, s{sNoE}\ns_cmp_lg_u32 s22, 0\ns_cbranch_scc1 K2_TRB\ns_branch K2_REDO")
    A("s_waitcnt lgkmcnt(0)")
    A("s_mov_b64 exec, 1")
    A(f"ds_write_b32 v{v.FW}, v{v.PROG}")
    A("s_mov_b64 exec, -1")
    A(f"ds_read_b32 v{v.FV}, v{v.FR}")
    pt("x2")
    A(f"""
    K2_GS:
    s_waitcnt lgkmcnt(0)
    v_cmp_gt_u32 vcc, v{v.PROG}, v{v.FV}
    s_cbranch_vccnz K2_GS2
    """)
    ool.append(f"K2_GS2:\nds_read_b32 v{v.FV}, v{v.FR}\ns_branch K2_GS")
    stamp(96)
    pt("x3")
    for s in range(8):
        A(f"ds_read_b128 {vr(AG+4*s,4)}, v{v.t1} offset:{(s >> 1) * 8192 + (s & 1) * 1024}")
    for s in range(8):
        A(f"s_waitcnt lgkmcnt({7-s})")
        A(mfma(F, v.U2 + 4*s, AG + 4*s))
    pt("x4")
    A(f"s_mov_b32 s22, {NEG_LOG2E:#x}")
    A("s_nop 10")
    for r in range(0, 16, 2):
        A(f"v_pk_mul_f32 {P(v.E+r)}, {P(F+r)}, s[22:23] op_sel_hi:[1,0]")
    for r in range(16):
        A(f"v_exp_f32 v{v.E+r}, v{v.E+r}")
    for r in range(0, 16, 2):
        A(f"v_pk_add_f32 {P(v.E+r)}, {P(v.E+r)}, {P(v.ONE)}")
    for r in range(16):
        A(f"v_rcp_f32 v{v.E+r}, v{v.E+r}")
    for r in range(0, 16, 2):
        A(f"v_pk_mul_f32 {P(F+r)}, {P(F+r)}, {P(v.E+r)}")
    O = v.T
    for r in range(8):
        A(f"v_cvt_pk_bf16_f32 v{O+r}, v{F+2*r}, v{F+2*r+1}")
    A(f"""
    s_nop 1
    v_permlane32_swap_b32 v{O}, v{O+2}
    v_permlane32_swap_b32 v{O+1}, v{O+3}
    v_permlane32_swap_b32 v{O+4}, v{O+6}
    v_permlane32_swap_b32 v{O+5}, v{O+7}
    buffer_store_dwordx4 {vr(O,4)}, v{v.OA}, {sr(sOUT,4)}, 0 offen {opt.get("ost", "").replace("_", " ")}
    buffer_store_dwordx4 {vr(O+4,4)}, v{v.OA}, {sr(sOUT,4)}, 0 offen offset:32 {opt.get("ost", "").replace("_", " ")}
    """)
    pt("x5")
    A(f"""
    s_or_b32 s22, s2, s3
    s_cmp_eq_u32 s22, 0
    s_cbranch_scc1 K_ADV
    K_ADVB:
    """)
    ool.append(f"K_ADV:\nv_mov_b32 v1, s{sTag}\ns_mov_b32 s22, {WS_TAG}\ns_mov_b64 exec, 1\nbuffer_store_dword v1, off, {sr(sWS,4)}, s22 sc1\ns_mov_b64 exec, -1\ns_branch K_ADVB")
    if ST:
        A("s_waitcnt vmcnt(0)")
        A("s_memtime s[98:99]")
        A("s_memrealtime s[100:101]")
        A(f"""
        s_lshl_b32 s22, s2, 3
        s_add_u32 s22, s22, s3
        s_lshl_b32 s22, s22, 6
        s_add_u32 s22, s22, 0xA00000
        v_mov_b32 v1, 0
        s_waitcnt lgkmcnt(0)
        """)
        for i, r in enumerate([90, 94, 4, 6, 8, 10, 12, 14, 16, 18, 96, 98, 92, 100, sTg] if not PTS else [90, 94, 4, 44, 46, 48, 50, 96, 6, 12, 14, 98, 92, 100, sTg]):
            A(f"v_mov_b32 v2, s{r}")
            A(f"buffer_store_dword v2, v1, {sr(sWS,4)}, s22 offen offset:{4*i}")
    A("K_END:")
    A("s_endpgm")
    for o in ool: A(o)
    del ool[:]
    A(f"""
    K_SPECIAL:
    s_waitcnt lgkmcnt(0)
    s_mov_b32 s22, {WS_TAG}
    s_load_dword s{sTag}, s[{PWS}:{PWS+1}], s22
    """)
    if ST: srd(A, sDB, PDBG, 256)
    srd(A, sWS, PWS, WS_END)
    A(f"""
    s_cmp_lg_u32 s2, 0
    s_cbranch_scc1 K_HELPER
    s_cmp_lg_u32 s3, 0
    s_cbranch_scc1 K_END
    s_waitcnt lgkmcnt(0)
    s_add_u32 s{sTag}, s{sTag}, 2
    s_or_b32 s{sTag}, s{sTag}, 0x40000001
    v_mov_b32 v1, s{sTag}
    """)
    srd(A, sOUT, POUT, N * 256)
    A(f"""
    v_mul_u32_u24 v2, 20480, v0
    v_add_u32 v2, {10240 + 8192}, v2
    v_add_u32 v4, {64 * 20480}, v2
    v_cmp_gt_u32 vcc, {NCHUNK - 64}, v0
    v_mul_u32_u24 v5, 20480, v0
    v_add_u32 v5, {8192 - 61 * 20480}, v5
    v_cndmask_b32 v4, v5, v4, vcc
    v_cmp_eq_u32 vcc, 63, v0
    v_mul_u32_u24 v3, 10240, v0
    v_add_u32 v3, 8448, v3
    v_cndmask_b32 v4, v4, v2, vcc
    s_mov_b32 s76, {64 * 10240}
    s_mov_b32 s77, {128 * 10240}
    s_mov_b32 s78, {192 * 10240}
    {f"s_sleep {opt.get('msl')}" if opt.get('msl') else ""}
    K_MPOLL:
    buffer_load_dword v8, v2, {sr(sOUT,4)}, 0 offen sc1
    buffer_load_dword v9, v4, {sr(sOUT,4)}, 0 offen sc1
    s_waitcnt vmcnt(0)
    v_xor_b32 v8, v1, v8
    v_xor_b32 v9, v1, v9
    v_or_b32 v8, v8, v9
    v_cmp_ne_u32 vcc, 0, v8
    s_cbranch_vccnz K_MPOLL
    buffer_store_dword v1, v3, {sr(sOUT,4)}, 0 offen sc1
    buffer_store_dword v1, v3, {sr(sOUT,4)}, s76 offen sc1
    buffer_store_dword v1, v3, {sr(sOUT,4)}, s77 offen sc1
    buffer_store_dword v1, v3, {sr(sOUT,4)}, s78 offen sc1
    {"s_memrealtime s[90:91]" if ST else ""}
    {"s_waitcnt lgkmcnt(0)" if ST else ""}
    {"v_mov_b32 v2, s90" if ST else ""}
    {f"buffer_store_dword v2, off, {sr(sDB,4)}, 0 offset:8" if ST else ""}
    {"v_mov_b32 v2, s92" if ST else ""}
    {f"buffer_store_dword v2, off, {sr(sDB,4)}, 0 offset:12" if ST else ""}
    s_endpgm
    K_HELPER:
    s_sub_u32 s87, s2, 1
    s_lshl_b32 s82, s87, 15
    s_lshl_b32 s77, s3, 12
    """)
    srd(A, sWm, PWU, 32768, add="s82")
    wdma(0, 0)
    A(f"""
    s_waitcnt vmcnt(4)
    s_lshl_b32 s22, s{sC}, 6
    v_xor_b32 v{TRA}, s22, v{TRA}
    v_lshrrev_b32 v{H}, 5, v{L}
    s_sub_u32 s22, 11, s87
    v_lshlrev_b32 v{H}, s22, v{H}
    v_add_u32 v{TRA}, v{TRA}, v{H}
    s_lshl_b32 s22, s{sG}, 14
    v_add_u32 v{TRA}, s22, v{TRA}
    s_lshl_b32 s22, 1024, s87
    v_add_u32 v{H}, s22, v{TRA}
    s_lshl_b32 s22, s{sC}, 13
    s_add_u32 s82, s82, s22
    s_lshl_b32 s22, s{sG}, 12
    s_add_u32 s82, s82, s22
    s_add_u32 s82, s82, {WS_U}
    s_waitcnt vmcnt(0)
    s_barrier
    """)
    for s_ in range(4):
        A(f"ds_read_b64_tr_b16 {vr(v.T+4*s_,2)}, v{TRA} offset:{s_*4096}")
        A(f"ds_read_b64_tr_b16 {vr(v.T+4*s_+2,2)}, v{H} offset:{s_*4096}")
    A("s_waitcnt lgkmcnt(0)")
    for s_ in range(4):
        A(f"buffer_store_dwordx4 {vr(v.T+4*s_,4)}, v{v.t3}, {sr(sWS,4)}, s82 offen offset:{s_*1024} sc1")
    A(f"""
    s_waitcnt vmcnt(0)
    s_barrier
    s_cmp_lg_u32 s3, 0
    s_cbranch_scc1 K_END
    s_add_u32 s{sTag}, s{sTag}, 2
    s_or_b32 s{sTag}, s{sTag}, 0x40000001
    v_mov_b32 v1, s{sTag}
    """)
    srd(A, sOUT, POUT, N * 256)
    A(f"""
    s_mul_i32 s22, s87, 20480
    s_add_u32 s22, s22, 8192
    s_mov_b64 exec, 1
    buffer_store_dword v1, off, {sr(sOUT,4)}, s22 sc1
    s_endpgm
    """)
    A("K2_SAFEP:")
    chain(A, 3, "safe", None, ool, pre=True, mid=late_issue)
    A("K2_SAFE:")
    for k in range(4):
        stretch(A, k, "safe", ool)
        chain(A, k, "safe", "K2_SEXIT", ool)
    A("s_branch K2_SAFE")
    A(f"""
    K2_SEXIT:
    s_setprio 0
    ds_read_b128 {vr(v.ohF,4)}, v{v.LA}
    s_branch K2_X2
    """)
    def restore(reg=None):
        A(f"""
        s_lshr_b32 s23, s{reg or sTg}, 2
        s_mul_i32 s22, s23, 6144
        s_lshl_b32 s23, s23, 10
        v_subrev_u32 v{v.E_}, s22, v{v.E_}
        v_subrev_u32 v{v.R1}, s23, v{v.R1}
        v_subrev_u32 v{v.R2}, s23, v{v.R2}
        v_subrev_u32 v{v.Re}, s23, v{v.Re}
        """)
    A("K2_REDO:")
    restore(sT1)
    A(f"s_mov_b32 s{sUT}, {BIG}")
    A(f"s_mov_b32 s{sNoE}, 1")
    for r in range(0, 16, 2):
        A(f"v_mov_b64 {P(v.ACC+r)}, 0")
    A(f"v_mov_b32 v{v.TPa+1}, v{v.IX0+1}")
    A(f"v_mov_b32 v{v.TPb+1}, v{v.IX0+1}")
    A(f"s_mov_b32 m0, s{sRing}")
    A("s_waitcnt vmcnt(0) lgkmcnt(0)")
    A("s_branch K2_START")
    A(f"""
    K2_OVF:
    s_cmp_eq_u32 s{sMode}, 0
    s_cbranch_scc0 K2_OV2
    s_cmp_lg_u32 s3, 0
    s_cbranch_scc1 K2_OV2
    K2_OV1:
    buffer_load_dword v{v.JK2}, off, {sr(sOUT,4)}, s{sRel} sc1
    s_waitcnt vmcnt(0)
    v_cmp_ne_u32 vcc, s{sTag}, v{v.JK2}
    s_cbranch_vccnz K2_OV1
    K2_OV2:
    s_mov_b32 s{sMode}, 1
    s_mov_b32 s{sRound}, 0
    s_branch K2_ROUND
    K2_NEXTR:
    s_add_u32 s{sRound}, s{sRound}, 1
    s_cmp_ge_u32 s{sRound}, {E // 512}
    s_cbranch_scc1 K2_FIN
    """)
    restore()
    A(f"""
    K2_ROUND:
    s_load_dwordx4 s[76:79], s[0:1], 16
    s_waitcnt vmcnt(0) lgkmcnt(0)
    s_barrier
    """)
    srd(A, sS, 76, E * 4)
    srd(A, sD, 78, E * 4)
    round_regs()
    A(f"""
    s_lshl_b32 s22, s{sRound}, 9
    v_add_u32 v{v.EB}, s22, v0
    v_lshlrev_b32 v{v.t0}, 2, v{v.EB}
    buffer_load_dword v{v.REC}, v{v.t0}, {sr(sD,4)}, 0 offen
    buffer_load_dword v{v.REC+1}, v{v.t0}, {sr(sS,4)}, 0 offen
    """)
    lds_init()
    A(f"""
    s_mul_i32 s22, s2, 40
    s_waitcnt vmcnt(0)
    v_subrev_u32 v{v.REC}, s22, v{v.REC}
    v_cmp_gt_u32 vcc, 40, v{v.REC}
    v_lshl_or_b32 v{v.t0}, v{v.REC}, 14, v{v.REC+1}
    v_mov_b32 v{v.REC+1}, -1
    v_cndmask_b32 v{v.REC}, -1, v{v.t0}, vcc
    s_mov_b64 s[76:77], 0
    s_barrier
    s_branch K2_COUNT
    """)
    for o in ool: A(o)
    A("K_CODE_END:")
    return A.text()

HEADER = """; MPNN edge-MLP layer, fused single kernel (generated by gen/fz15.py).
; Kernarg layout (72 bytes, ptrs only, base s[0:1]):
;   32: w_msg (272,128) bf16 | 40: w_upd (256,128) bf16 | 48: d_out | 56: d_debug | 64: d_ws
"""
def build(opt):
    out = HEADER + f"; @launch grid=({NWG},1,1) block=(512,1,1) lds={LDS_TOTAL}\n"
    out += '.amdgcn_target "amdgcn-amd-amdhsa--gfx950"\n.text\n'
    out += f".globl {KNAME}\n.p2align 8\n.type {KNAME},@function\n" + gen(opt)
    acc = (NV + 3) // 4 * 4
    out += f""".section .rodata,"a"
.p2align 8
K_TABLE:
{tables()}.p2align 6
.amdhsa_kernel {KNAME}
  .amdhsa_next_free_vgpr {NV}
  .amdhsa_next_free_sgpr 102
  .amdhsa_accum_offset {acc}
  .amdhsa_group_segment_fixed_size 0
  .amdhsa_kernarg_size 72
  .amdhsa_user_sgpr_count 2
  .amdhsa_user_sgpr_kernarg_segment_ptr 1
  .amdhsa_system_sgpr_workgroup_id_x 1
.end_amdhsa_kernel
"""
    return out

if __name__ == "__main__":
    opt = {}
    for a in sys.argv[2:]:
        k_, v_ = a.split("=")
        opt[k_] = int(v_) if v_.lstrip("-").isdigit() else v_
    open(sys.argv[1], "w").write(build(opt))
```

```python
import sys, struct
from gen import Asm, vr, sr, srd, f2u, NEG_LOG2E, NEG_LN2, PX, PE, PSRC, PDST, PWM, PWU, POUT, PDBG, PWS, load_ptrs

KNAME = "standalone__mpnn_edge_mlp__graph_kernel"
N = 10000; E = 320000
NBIN = 250; NCHUNK = 125; CH = 2560
WS_CELL = 0x280000
WS_FLAG = 0x700000
WS_U = 0x708000
WS_END = WS_U + 0x10000
NWG = NBIN + 3
BIG = 0x7fffffff
WS_TAG = 0x27FF00

CNT = 0x100; QN = 0x200; FLAG = 0x3F0; TRIP = 0x3F4; REC = 0x400
TG = 26; GSL = TG * 32
REC_BYTES = (2 * GSL + 160) * 8
EA = REC + REC_BYTES
GEA = (TG // 2) * 3072
RING = EA + 2 * GEA
JUNK = RING + 65536
LDS_TOTAL = JUNK + 1024
FLG = CNT + 48 * 4
L_X = RING; L_W2 = RING + 0x6000; L_W3 = L_W2 + 32768; L_BN = 0x8000
assert RING % 256 == 0 and LDS_TOTAL <= 163840

class R: pass
v = R()
_n = 1
def alloc(name, n, align=1):
    global _n
    _n = (_n + align - 1) // align * align
    setattr(v, name, _n)
    _n += n
for nm in ("t0", "t1", "t2", "t3", "lane", "FW", "FV", "PROG", "JK", "JK2", "JK3", "OHA", "P1", "FR", "LA"):
    alloc(nm, 1)
TABN = ("E_", "R1", "R2", "Re", "P0", "EB", "QC", "OHB", "S0a", "FRo", "IXo", "IEo", "S1a", "TRA", "OAl", "Z_")
alloc("TAB", 0, 4)
for nm in TABN[:8]:
    alloc(nm, 1)
for nm in ("IX0", "IX1", "IE", "ONE", "S"):
    alloc(nm, 2, 2)
alloc("OA", 1)
for nm in ("W3F", "QF", "QS", "SEL0", "SEL1", "eF", "ohF", "pF0", "pF1", "aggF", "MSG", "NS", "DS", "RS"):
    alloc(nm, 4, 4)
for nm in ("T", "T1", "E", "ACC"):
    alloc(nm, 16, 4)
alloc("U1", 32, 4); alloc("U2", 32, 4); alloc("XF", 32, 4)
NV = _n
assert NV <= 256
for i_, nm in enumerate(TABN[8:]): setattr(v, nm, v.SEL0 + i_)
v.WA = v.ohF
assert v.RS == v.ohF + 28 and v.SEL1 == v.SEL0 + 4 and v.E == v.T1 + 16
v.REC = v.T; v.RANK = v.T + 8; v.AD = v.E; v.PK = v.E + 8
v.W0 = v.T1
v.TPa = v.T1 + 10; v.TPb = v.T1 + 12; v.IEb = v.T1 + 14; v.OH0 = v.pF1

sWS, sP, sE, sX, sOUT, sD, sS = 24, 28, 32, 36, 40, 44, 48
sG, sC, sTg, sTile, sTsw, sTag, sRing, sEdst, sMode, sRound, sRole, sElim = 52, 53, 54, 55, 56, 57, 58, 59, 60, 61, 62, 63
sM = 64
sWm = 64; sDB = 68
sTB = 80
sUT = 82; sNoE = 83; sK3F = 84; sT0, sT1 = 85, 86; sRel = 87; sUoff = 88; sPair = 89
sN40 = 36; sG1 = 38; sSl = 101; sE0 = 100; sOff = 61

OPT = {}
def P(r): return f"v[{r}:{r+1}]"
def mfma(d, a, b, c=None):
    return f"v_mfma_f32_32x32x16_bf16 {vr(d,16)}, {vr(a,4)}, {vr(b,4)}, {vr(d,16) if c is None else c}"
def pi8v(m):
    return ((m & 5) << 5) | ((m & 18) << 2) | ((m & 8) << 1)

def tables():
    rows = []
    for l in range(64):
        m, h = l & 31, l >> 5
        a16 = 16 + ((l & 8) << 3) + ((l & 3) << 4)
        n_ = l - 20 if l >= 20 else l
        a16n = 16 + ((n_ & 8) << 3) + ((n_ & 3) << 4)
        ohb = (a16n << (16 + 8 * ((n_ >> 2) & 1))) if l < 40 else 0
        sel = a16 if ((l >> 2) & 1) == h else 0
        d = dict(
            E_=m * 32 + (((h ^ (m >> 3)) & 1) << 4) + EA - 3072,
            R1=pi8v(l >> 2) + REC, R2=pi8v(m) + h + 2 + REC, Re=pi8v(l >> 1) + 4 + REC,
            P0=m * 64 + ((((m >> 2) ^ (2 * h)) & 3) << 4) + RING,
            EB=(l >> 2) * CH,
            QC=(l >> 4) * 3072 + ((l & 4) << 2) + (l & 8) + ((l & 3) << 1) + EA + 2048,
            OHB=ohb, FRo=(l & 3) * 4 + FLG,
            IXo=(((l >> 4) ^ l) & 3) << 4, IEo=(((l >> 4) ^ l) & 1) << 4,
            S0a=sel if m < 16 else 0, S1a=sel if m >= 16 else 0,
            TRA=(l & 3) * 8 + ((l >> 2) & 3) * 256 + (((l >> 2) & 3) << 6) + ((l >> 4) & 1) * 32,
            OAl=(m * 256 + h * 16) if m < 20 else 0x40000000, Z_=0)
        rows.append([d[n] for n in TABN])
    out = []
    for b in range(4):
        for l in range(64):
            out.append(".long " + ", ".join(f"{x:#x}" for x in rows[l][4*b:4*b+4]))
    img = [0] * 256
    for e_ in range(8):
        img[4 * (e_ + 1) + (e_ >> 1)] = 0x3f80 << (16 * (e_ & 1))
    for i in range(128, 256): img[i] = 0xffffffff
    for i in range(0, 256, 4):
        out.append(".long " + ", ".join(f"{x:#x}" for x in img[i:i+4]))
    for i in range(64):
        out.append(".long 0xffff, 0xffffffff, 0xffff, 0xffffffff")
    return "\n".join(out) + "\n"

def lst(A, k, variant, r):
    if OPT.get("ls") and variant == "fast" and k == OPT["ls"] - 1: A(f"s_memtime s[{r}:{r+1}]")

def u_load(A, i):
    off = (i >> 3) * 32768 + (i & 7) * 1024
    A(f"s_add_u32 s22, s{sUoff}, {off & ~4095}")
    A(f"buffer_load_dwordx4 {vr(v.U1+4*i,4)}, v{v.t3}, {sr(sWS,4)}, s22 offen offset:{off & 4095}")

def chain(A, k, variant, exit_label, ool, pre=False, mid=None):
    kk = k if k < 3 else -1
    safe = variant == "safe"
    EK = OPT.get("ek", 3)
    if not pre:
        A("s_setprio 2")
        A(f"s_add_u32 s{sTile}, s{sTile}, 1")
        if safe:
            A(f"s_cmp_ge_u32 s{sTile}, s{sTg}")
            A(f"s_cbranch_scc1 {exit_label}")
        lsw = A.label("sw"); lswb = A.label("swb")
        A(f"s_cmp_eq_u32 s{sTile}, s{sTsw}")
        A(f"s_cbranch_scc1 {lsw}")
        A(f"{lswb}:")
        ool.append(f"{lsw}:\nv_mov_b32 v{v.QF}, v{v.QS+2}\nv_mov_b32 v{v.QF+1}, v{v.QS+3}\ns_branch {lswb}")
        lst(A, k, variant, 10)
    A("s_waitcnt lgkmcnt(0)")
    if k % 2 == 0:
        A(mfma(v.ACC, v.MSG, v.aggF))
    n = 4 + (1 if ((k - 1) & 3) == EK or ((k - 2) & 3) == EK else 0)
    if EK == 3 and k == 1: n = 2
    if pre: n = 4 if EK == 3 else 5
    k2_ = kk + 2
    eread = f"ds_read_b128 {vr(v.eF,4)}, v{v.E_} offset:{3072 + (k2_ >> 1) * 3072 + (k2_ & 1) * 1024}"
    if k == 2: A(f"ds_read_b32 v{v.FV}, v{v.FR}")
    A(mfma(v.T, v.eF, v.W3F, "0"))
    if k != 2: A(eread)
    A(mfma(v.T, v.ohF, v.QF))
    A(f"ds_read_b128 {vr(v.ohF,4)}, v{v.OHA}")
    A(f"ds_read_u8 v{v.OHA}, v{v.R2} offset:{(kk + 3) * 256}")
    A(mfma(v.T, v.pF0, v.SEL0))
    if k == 2:
        A("s_waitcnt lgkmcnt(2)")
        A(f"v_cmp_gt_u32 vcc, v{v.PROG}, v{v.FV}")
    A(mfma(v.T, v.pF1, v.SEL1))
    A(f"s_setprio 0")
    lst(A, k, variant, 14)
    n_after = 2
    if k == 2:
        lw = A.label("fw"); lb = A.label("fb")
        if safe:
            A(f"s_cmp_lg_u32 s{sNoE}, 0")
            A(f"s_cbranch_scc1 {lb}")
        A(f"s_cbranch_vccnz {lw}")
        A(f"{lb}:")
        A(eread)
        ool.append(f"{lw}:\nds_read_b32 v{v.FV}, v{v.FR}\ns_waitcnt lgkmcnt(0)\nv_cmp_gt_u32 vcc, v{v.PROG}, v{v.FV}\ns_cbranch_vccnz {lw}\ns_branch {lb}")
        n_after += 2
    if mid: mid()
    A(f"s_waitcnt vmcnt({n})" + (" lgkmcnt(0)" if pre else ""))
    if k == 1:
        l1 = A.label("nf")
        if safe:
            A(f"s_cmp_lg_u32 s{sNoE}, 0")
            A(f"s_cbranch_scc1 {l1}")
        A("s_mov_b64 exec, 1")
        A(f"ds_write_b32 v{v.FW}, v{v.PROG}")
        A("s_mov_b64 exec, -1")
        if safe: A(f"{l1}:")
        else: n_after += 3
    if k == EK:
        if safe:
            A(f"s_cmp_lg_u32 s{sNoE}, 0")
            A(f"s_cselect_b32 s{sEdst}, s{sElim}, s{sEdst}")
        A(f"s_cmp_lt_u32 s{sEdst}, s{sElim}")
        A(f"s_cselect_b32 m0, s{sEdst}, {JUNK}")
        A(f"s_add_u32 s{sEdst}, s{sEdst}, 6144")
        A(f"buffer_load_dwordx4 {P(v.IE)}, {sr(sE,4)}, 0 idxen offen lds")
        n_after += 4
    A(f"s_add_u32 m0, s{sRing}, {((k + 1) & 3) * 2048}")
    A(f"ds_read_b128 {vr(v.pF0,4)}, v{v.P0} offset:{((k + 2) & 3) * 2048}")
    A(f"buffer_load_dwordx4 {P(v.IX0)}, {sr(sP,4)}, 0 idxen offen lds")
    A(f"s_add_u32 m0, s{sRing}, {((k + 1) & 3) * 2048 + 1024}")
    A(f"ds_read_b128 {vr(v.pF1,4)}, v{v.P1} offset:{((k + 2) & 3) * 2048}")
    A(f"buffer_load_dwordx4 {P(v.IX1)}, {sr(sP,4)}, 0 idxen offen lds")
    A(f"ds_read_u16 v{v.IX0}, v{v.R1} offset:{(kk + 6) * 256}")
    A(f"ds_read_u16 v{v.IX1}, v{v.R1} offset:{(kk + 6) * 256 + 64}")
    n_after += 8
    if k % 2 == 1 and not pre:
        A(f"ds_read_b128 {vr(v.aggF,4)}, v{v.E_} offset:{(1 if k == 1 else 0) * 3072 + 2048}")
        n_after += 1
    if k == EK - 1:
        A(f"ds_read_b32 v{v.IE}, v{v.Re} offset:{2 * 1024}")
        n_after += 1
    if not safe and not pre:
        lv = A.label("uv"); lvb = A.label("vb")
        A(f"s_sub_u32 s23, s{sTile}, s{sUT}")
        A(f"s_cmp_lt_u32 s23, 8")
        A(f"s_cbranch_scc1 {lv}")
        A(f"{lvb}:")
        n_after += 3
        B = Asm()
        B(f"{lv}:")
        B(f"s_cmp_ge_u32 s23, 4")
        B(f"s_cbranch_scc1 {lv}x")
        u_load(B, 2*k); u_load(B, 2*k+1)
        B(f"s_branch {lvb}")
        B(f"{lv}x:")
        u_load(B, 8+2*k); u_load(B, 8+2*k+1)
        B(f"s_branch {lvb}")
        ool.append(B.text())
    if n_after < 12:
        A(f"s_nop {12 - n_after - 1}")
    if not safe and not pre:
        A(f"s_cmp_eq_u32 s{sTile}, s{sT1}")
        A(f"s_cbranch_scc1 K2_LAST{(k + 1) & 1}")
    lst(A, k, variant, 12)

def stretch(A, k, variant, ool, last=False):
    T = v.T; E = v.E
    order = [0, 1, 8, 9, 2, 3, 10, 11, 4, 5, 12, 13, 6, 7, 14, 15]
    lst(A, k, variant, 94)
    for i, r in enumerate(order):
        if last and i % 3 == 0:
            A(mfma(v.T1, v.U1 + 4*(i//3), v.XF + 4*(i//3), "0" if i == 0 else None))
        A(f"v_exp_f32 v{E+r}, v{T+r}")
    if variant != "safe":
        for r in range(4):
            A(f"v_rcp_f32 v{v.RS+r}, v{v.DS+r}")
    if last: k = k & 1 | 4
    if k == 3:
        for s in (f"v_add_u32 v{v.E_}, 6144, v{v.E_}", f"v_add_u32 v{v.R1}, 1024, v{v.R1}",
                  f"v_add_u32 v{v.R2}, 1024, v{v.R2}", f"v_add_u32 v{v.Re}, 1024, v{v.Re}"): A(s)
    if k == 0:
        A(f"v_add_u32 v{v.PROG}, 1, v{v.PROG}")
    lst(A, k, variant, 4)
    A("s_setprio 1")
    mo = v.MSG + 2 * ((k + 1) % 2)
    if variant != "safe":
        A(f"v_pk_fma_f32 {P(v.S)}, {P(v.DS)}, {P(v.DS+2)}, {P(v.S)}")
        A(f"v_pk_mul_f32 {P(v.NS)}, {P(v.NS)}, {P(v.RS)}")
        A(f"v_pk_mul_f32 {P(v.NS+2)}, {P(v.NS+2)}, {P(v.RS+2)}")
    A(f"v_cvt_pk_bf16_f32 v{mo}, v{v.NS}, v{v.NS+1}")
    A(f"v_cvt_pk_bf16_f32 v{mo+1}, v{v.NS+2}, v{v.NS+3}")
    lst(A, k, variant, 6)
    if variant != "safe":
        ops = []
        for gi, g in enumerate((0, 8)):
            t, e = T + g, E + g
            o = [f"v_pk_add_f32 {P(e)}, {P(e)}, {P(v.ONE)}"]
            for u in (1, 2, 3):
                o.append(f"v_pk_fma_f32 {P(t)}, {P(t)}, {P(e+2*u)}, {P(t)}")
                o.append(f"v_pk_fma_f32 {P(t if u < 3 else v.NS+2*gi)}, {P(t+2*u)}, {P(e)}, {P(t)}")
                o.append(f"v_pk_fma_f32 {P(e if u < 3 else v.DS+2*gi)}, {P(e)}, {P(e+2*u)}, {P(e)}")
            ops.append(o)
        for a, b in zip(*ops):
            A(a); A(b)
    else:
        for r in range(0, 16, 2):
            A(f"v_pk_add_f32 {P(E+r)}, {P(E+r)}, {P(v.ONE)}")
        for r in range(16):
            A(f"v_rcp_f32 v{E+r}, v{E+r}")
        A("s_nop 0")
        for u in range(4):
            for gi, g in enumerate((0, 8)):
                if u == 0:
                    A(f"v_pk_mul_f32 {P(T+g)}, {P(T+g)}, {P(E+g)}")
                else:
                    A(f"v_pk_fma_f32 {P(T+g if u < 3 else v.NS+2*gi)}, {P(T+g+2*u)}, {P(E+g+2*u)}, {P(T+g)}")
    lst(A, k, variant, 8)

def gen(opt):
    OPT.clear(); OPT.update(opt)
    A = Asm()
    L = v.lane
    ST = opt.get("stamp", 0)
    PTS = opt.get("pts", "").split(",") if opt.get("pts") else []
    PSL = [44, 46, 48, 50, 96]
    def pt(name):
        if name in PTS:
            r = PSL[PTS.index(name)]
            A(f"s_memtime s[{r}:{r+1}]")
    def stamp(r, real=False):
        if PTS and r == 96: return
        if opt.get("ls") and r in (94, 4, 6, 8, 10, 12, 14): return
        if ST: A(f"s_mem{'real' if real else ''}time s[{r}:{r+1}]")
    ool = []
    STF = opt.get("stf", "sc0_sc1").replace("_", " ")
    WV = v.eF; XV = v.eF + 1; H = v.eF + 2; TRA = v.TRA
    A(f"{KNAME}:")
    stamp(90); stamp(92, True)
    A(f"s_cmp_ge_u32 s2, {NWG}")
    A("s_cbranch_scc1 K_END")
    load_ptrs(A)
    A(f"""
    v_lshrrev_b32 v{v.t0}, 6, v0
    v_and_b32 v{L}, 63, v0
    v_readfirstlane_b32 s3, v{v.t0}
    v_lshlrev_b32 v{v.t3}, 4, v{L}
    s_getpc_b64 {sr(sTB,2)}
    s_add_u32 s{sTB}, s{sTB}, K_TABLE@rel32@lo+4
    s_addc_u32 s{sTB+1}, s{sTB+1}, K_TABLE@rel32@hi+12
    global_load_dwordx4 {vr(v.SEL1,4)}, v{v.t3}, {sr(sTB,2)} offset:3072
    global_load_dwordx4 {vr(v.TAB,4)}, v{v.t3}, {sr(sTB,2)}
    global_load_dwordx4 {vr(v.TAB+4,4)}, v{v.t3}, {sr(sTB,2)} offset:1024
    global_load_dwordx4 {vr(v.SEL0,4)}, v{v.t3}, {sr(sTB,2)} offset:2048
    v_lshlrev_b32 v{v.t2}, 4, v0
    v_lshrrev_b32 v{WV}, 2, v{v.t3}
    v_lshrrev_b32 v{XV}, 4, v{v.t2}
    v_and_b32 v{WV}, 0xc0, v{WV}
    v_and_b32 v{XV}, 0xf0, v{XV}
    v_xor_b32 v{WV}, v{WV}, v{v.t3}
    v_xor_b32 v{XV}, v{XV}, v{v.t2}
    s_lshr_b32 s{sG}, s3, 2
    s_and_b32 s{sC}, s3, 3
    s_cmp_lt_u32 s2, 8
    s_cbranch_scc1 K_LOW
    K_LOWB:
    s_sub_u32 s23, s2, 3
    s_lshr_b32 s{sSl}, s23, 3
    s_cmp_ge_u32 s23, {NCHUNK}
    s_cselect_b32 s{sRole}, {1 - opt.get("r1f", 1)}, {opt.get("r1f", 1)}
    s_cselect_b32 s22, {NCHUNK}, 0
    s_sub_u32 s{sPair}, s23, s22
    s_lshl_b32 s2, s{sPair}, 1
    s_add_u32 s2, s2, s{sRole}
    s_mul_i32 s{sUT}, s{sPair}, {80*256}
    s_sub_u32 s{sX+2}, {N*256}, s{sUT}
    s_mov_b32 s{sX+3}, 0x00020000
    s_lshl_b32 s76, s3, 10
    s_add_u32 s77, s3, s{sSl}
    s_and_b32 s77, s77, {7 if opt.get("rot", 1) else 0}
    {"" if opt.get("rot", 1) else "s_mov_b32 s77, s3"}
    s_lshl_b32 s77, s77, 12
    s_cmp_eq_u32 s{sRole}, 0
    s_waitcnt lgkmcnt(0)
    """)
    def wsadj():
        if opt.get("wsoff"):
            A(f"s_add_u32 s{PWS}, s{PWS}, {opt['wsoff'] << 20}")
            A(f"s_addc_u32 s{PWS+1}, s{PWS+1}, 0")
    A(f"s_mov_b32 s22, {WS_TAG}")
    A(f"s_load_dword s{sTag}, s[{PWS}:{PWS+1}], s22")
    A("s_cbranch_scc0 K_GEMM")
    ool.append(f"""K_LOW:
    s_cmp_lg_u32 s3, 7
    s_cbranch_scc1 K_LOW2
    s_getpc_b64 s[22:23]
    K_PC:
    s_sub_u32 s22, s22, K_PC-{KNAME}
    s_subb_u32 s23, s23, 0
    v_lshlrev_b32 v{v.JK}, 7, v{L}
    v_add_u32 v{v.JK2}, 0x2000, v{v.JK}
    v_min_u32 v{v.JK2}, K_CODE_END-{KNAME}-4, v{v.JK2}
    global_load_dword v{v.PROG}, v{v.JK}, s[22:23]
    global_load_dword v{v.FV}, v{v.JK2}, s[22:23]
    K_LOW2:
    s_cmp_lt_u32 s2, 3
    s_cbranch_scc1 K_SPECIAL
    s_branch K_LOWB""")
    def xdma(n):
        A(f"""
        s_add_u32 s{sX}, s{PX}, s{sUT}
        s_addc_u32 s{sX+1}, s{PX+1}, 0
        s_add_u32 m0, s76, {L_X}
        s_movk_i32 s23, 0x2000
        buffer_load_dwordx4 v{XV}, {sr(sX,4)}, 0 offen lds
        s_add_u32 m0, s76, {L_X + 8192}
        s_movk_i32 s22, 0x4000
        buffer_load_dwordx4 v{XV}, {sr(sX,4)}, s23 offen lds
        """)
        if n == 3:
            A(f"s_add_u32 m0, s76, {L_X + 16384}")
            A("s_nop 0")
            A(f"buffer_load_dwordx4 v{XV}, {sr(sX,4)}, s22 offen lds")
    def wdma(soff, lds):
        A(f"s_add_u32 m0, s77, {lds}")
        if soff: A(f"s_add_u32 s22, s77, {soff}")
        else: A("s_nop 0")
        for q in range(4):
            A(f"buffer_load_dwordx4 v{WV}, {sr(sWm,4)}, s{22 if soff else 77} offen offset:{q*1024} lds")
    def w23dma(w2=True):
        if w2: wdma(32768, L_W2)
        A(f"s_add_u32 m0, s76, {L_W3}")
        A(f"s_add_u32 s22, s76, 65536")
        A(f"buffer_load_dwordx4 v{WV}, {sr(sWm,4)}, s22 offen lds")
    def sconsts():
        srd(A, sP, PWS, 0 if opt.get('nop') else N, stride=256)
        srd(A, sE, PE, 0 if opt.get('noe') else E, stride=32)
        srd(A, sOUT, POUT, N * 256)
        A(f"""
        s_mov_b32 s{sMode}, 0
        s_mov_b32 s{sNoE}, 0
        s_movk_i32 s{sK3F}, 0x3fff
        s_lshl_b32 s{sRing}, s3, 13
        s_lshr_b32 s22, s{sC}, 1
        s_mul_i32 s22, s22, 3072
        s_bfe_u32 s23, s{sC}, 0x10000
        s_lshl_b32 s23, s23, 10
        s_add_u32 s22, s22, s23
        s_mul_i32 s{sElim}, s{sG}, {GEA}
        s_add_u32 s{sE0}, s{sElim}, s22
        s_add_u32 s{sE0}, s{sE0}, {EA}
        s_mul_i32 s{sRel}, s2, 10240
        s_add_u32 s{sRel}, s{sRel}, 8448
        """)
    def vconsts():
        A(f"""
        v_add_u32 v{v.P0}, s{sRing}, v{v.P0}
        v_add_u32 v{v.E_}, s{sElim}, v{v.E_}
        s_mul_i32 s22, s{sG}, {GSL*8}
        v_xor_b32 v{v.P1}, 16, v{v.P0}
        v_add_u32 v{v.R1}, s22, v{v.R1}
        v_add_u32 v{v.R2}, s22, v{v.R2}
        s_lshl_b32 s23, s{sC}, 8
        s_add_u32 s22, s22, s23
        v_add_u32 v{v.Re}, s22, v{v.Re}
        s_lshl_b32 s22, s{sC}, 6
        v_or_b32 v{v.IX0+1}, s22, v{v.IXo}
        v_or_b32 v{v.IX1+1}, s22, v{v.IXo}
        v_xor_b32 v{TRA}, s22, v{TRA}
        s_mul_i32 s23, s2, 40
        s_mul_i32 s78, s{sG}, 20
        s_add_u32 s23, s23, s78
        s_lshl_b32 s23, s23, 8
        s_add_u32 s23, s23, s22
        v_add_u32 v{v.OA}, s23, v{v.OAl}
        v_mov_b32 v{v.IE+1}, v{v.IEo}
        s_mul_i32 s22, s3, {16*CH}
        v_add_u32 v{v.EB}, s22, v{v.EB}
        s_mul_i32 s22, s3, {4*3072}
        v_add_u32 v{v.QC}, s22, v{v.QC}
        s_lshl_b32 s22, s3, 2
        v_add_u32 v{v.FW}, s22, v{v.FRo}
        s_lshl_b32 s22, s{sG}, 4
        v_add_u32 v{v.FR}, s22, v{v.FRo}
        v_lshrrev_b32 v{H}, 5, v{L}
        s_add_u32 s{sRing}, s{sRing}, {RING}
        s_add_u32 s{sElim}, s{sElim}, {EA + GEA}
        """)
    def lds_init():
        A(f"""
        s_mul_i32 s22, s3, 3072
        s_add_u32 m0, s22, {EA + 2048}
        s_brev_b32 s23, 2
        buffer_load_dwordx4 v{v.t3}, {sr(sWS,4)}, s23 offen lds
        s_add_u32 m0, s22, {EA + 2048 + 24576}
        s_cmp_lt_u32 s3, 2
        buffer_load_dwordx4 v{v.t3}, {sr(sWS,4)}, s23 offen lds
        s_cselect_b32 s78, 0, {JUNK - (EA + 2048 + 73728) - 7 * 3072}
        s_add_u32 m0, s22, {EA + 2048 + 49152}
        s_cselect_b32 s79, s22, {7 * 3072}
        buffer_load_dwordx4 v{v.t3}, {sr(sWS,4)}, s23 offen lds
        """.replace("s_cselect_b32 s78, 0, " + str(JUNK - (EA + 2048 + 73728) - 7 * 3072) + "\n", "").replace(
            f"        s_add_u32 m0, s22, {EA + 2048 + 49152}\n        s_cselect_b32 s79, s22, {7 * 3072}\n",
            f"        s_cselect_b32 s79, s22, {JUNK - (EA + 2048 + 73728)}\n        s_add_u32 m0, s22, {EA + 2048 + 49152}\n        s_lshl_b32 s22, s3, 10\n"))
        A(f"""
        s_add_u32 m0, s79, {EA + 2048 + 73728}
        s_add_u32 s78, s{sTB}, 4096
        buffer_load_dwordx4 v{v.t3}, {sr(sWS,4)}, s23 offen lds
        s_addc_u32 s79, s{sTB+1}, 0
        s_add_u32 m0, s22, {REC - 1024}
        s_cmp_eq_u32 s3, 7
        global_load_lds_dwordx4 v{v.t3}, s[78:79] offset:1024
        s_cbranch_scc1 {A.label('i7')}
        """)
        l7 = f"L_i7_{A.uid}"
        A(f"""
        s_add_u32 m0, s22, {REC + 8192 - 1024}
        s_nop 0
        global_load_lds_dwordx4 v{v.t3}, s[78:79] offset:1024
        {l7}b:
        """)
        ool.append(f"{l7}:\ns_mov_b32 m0, 0\ns_nop 0\nglobal_load_lds_dwordx4 v{v.t3}, s[78:79]\ns_branch {l7}b")
    def tagget(x):
        pass
    def tagfix():
        A(f"s_add_u32 s{sTag}, s{sTag}, 2")
        A(f"s_or_b32 s{sTag}, s{sTag}, 0x40000001")
    def xred(regs, xs, pats=("quad_perm:[1,0,3,2]", "quad_perm:[2,3,0,1]")):
        for r, x in zip(regs, xs): A(f"v_bitop3_b32 v{x}, v{r}, v{r+1}, v{r+2} bitop3:0x96")
        for r, x in zip(regs, xs): A(f"v_xor_b32 v{x}, v{x}, v{r+3}")
        for pat in pats:
            if len(xs) < 3: A(f"s_nop {2 - len(xs)}")
            for x in xs: A(f"v_xor_b32_dpp v{x}, v{x}, v{x} {pat} row_mask:0xf bank_mask:0xf")
    def tagload(lbl):
        pass
    def qaddr():
        XA = v.E; GA = v.E + 1; TN = v.E + 2
        A(f"""
        s_mul_i32 s22, s{sG}, 20
        s_mul_i32 s23, s{sRole}, 40
        s_add_u32 s22, s22, s23
        v_and_b32 v{XA}, 31, v{L}
        v_add_u32 v{XA}, s22, v{XA}
        v_xor_b32 v{GA}, v{XA}, v{H}
        v_and_b32 v{GA}, 15, v{GA}
        v_lshl_or_b32 v{XA}, v{XA}, 4, v{GA}
        s_mov_b32 s22, {L_X}
        v_lshl_add_u32 v{XA}, v{XA}, 4, s22
        v_lshl_add_u32 v{TN}, v{H}, 11, v{TRA}
        v_add_u32 v{TN}, {L_W2}, v{TN}
        """)
    def qreads():
        XA = v.E; GA = v.E + 1; TN = v.E + 2
        for s_ in range(8):
            A(f"ds_read_b64_tr_b16 {vr(v.WA+4*s_,2)}, v{TN} offset:{s_*4096}")
            A(f"ds_read_b64_tr_b16 {vr(v.WA+4*s_+2,2)}, v{TN} offset:{s_*4096+1024}")
            if s_: A(f"v_xor_b32 v{GA}, {s_*32}, v{XA}")
            A(f"ds_read_b128 {vr(v.XF+4*s_,4)}, v{GA if s_ else XA}")
        A(f"ds_read_b64_tr_b16 {vr(v.W3F,2)}, v{TN} offset:32768")
        A(f"ds_read_b64_tr_b16 {vr(v.W3F+2,2)}, v{TN} offset:33792")
    def qmfma(per=3):
        for s_ in range(8):
            A(f"s_waitcnt lgkmcnt({min(15, per*(7-s_) + 2)})")
            A(mfma(v.E, v.XF + 4*s_, v.WA + 4*s_, "0" if s_ == 0 else None))
            A(f"v_mov_b64 {P(v.ACC+2*s_)}, 0")
        A(f"""
        s_mov_b32 s72, {NEG_LOG2E:#x}
        v_cmp_gt_u32 {sr(sN40,2)}, 40, v{L}
        v_cmp_le_u32 {sr(sG1,2)}, 20, v{L}
        v_mov_b32 v{v.ONE}, 1.0
        v_mov_b32 v{v.ONE+1}, 1.0
        s_waitcnt lgkmcnt(0)
        """)
        for r in range(4):
            A(f"""
            v_lshlrev_b32 v{v.S}, 16, v{v.W3F+r}
            v_and_b32 v{v.S+1}, 0xffff0000, v{v.W3F+r}
            v_mul_f32 v{v.S}, s72, v{v.S}
            v_mul_f32 v{v.S+1}, s72, v{v.S+1}
            v_cvt_pk_bf16_f32 v{v.W3F+r}, v{v.S}, v{v.S+1}
            """)
    def post(x):
        A(f"""
        s_cmp_lg_u32 s3, 0
        s_cbranch_scc1 K_NP{x}
        v_readfirstlane_b32 s{sTag}, v{v.FV}
        s_cmp_eq_u32 s{sTag}, 0
        s_cbranch_scc1 K_TAG{x}
        K_TAGOK{x}:
        s_mov_b64 exec, 1
        buffer_store_dword v{v.FV}, off, {sr(sWS,4)}, s{sUoff} sc1
        s_mov_b64 exec, -1
        K_NP{x}:
        """)
        ool.append(f"K_TAG{x}:\nbuffer_load_dword v{v.FV}, off, {sr(sDB,4)}, 0 sc1\ns_waitcnt vmcnt(0)\nv_readfirstlane_b32 s{sTag}, v{v.FV}\ns_cmp_eq_u32 s{sTag}, 0\ns_cbranch_scc1 K_TAG{x}\ns_branch K_TAGOK{x}")
    MC = opt.get("mc", 0)
    D, S, RK, AD = v.T, v.T + 8, v.T1, v.T1 + 8
    CW = v.E
    A(f"s_mul_i32 s22, s{sPair}, {CH*4}")
    srd(A, sD, PDST, CH * 4, add="s22")
    A(f"""
    v_lshlrev_b32 v{v.t1}, 2, v0
    s_movk_i32 s23, 0x2000
    buffer_load_dwordx4 {vr(D,4)}, v{v.t2}, {sr(sD,4)}, 0 offen
    buffer_load_dword v{D+4}, v{v.t1}, {sr(sD,4)}, s23 offen
    """)
    srd(A, sS, PSRC, CH * 4, add="s22")
    A(f"""
    buffer_load_dwordx4 {vr(S,4)}, v{v.t2}, {sr(sS,4)}, 0 offen
    buffer_load_dword v{S+4}, v{v.t1}, {sr(sS,4)}, s23 offen
    v_mov_b64 {P(CW)}, -1
    v_mov_b64 {P(CW+2)}, -1
    v_mov_b32 v{CW+4}, 16
    ds_write_b128 v{v.t2}, {vr(CW,4)}
    ds_write_b128 v{v.t2}, {vr(CW,4)} offset:8192
    ds_write_b128 v{v.t2}, {vr(CW,4)} offset:16384
    ds_write_b128 v{v.t2}, {vr(CW,4)} offset:24576
    ds_write_b32 v{v.t1}, v{CW+4} offset:32768
    """)
    srd(A, sWm, PWM, 272 * 256)
    EARLY0 = opt.get("e0", 0)
    P0M = opt.get("p0", 2)
    if P0M == 1:
        xdma(2); w23dma(False)
    nb0 = 3 if P0M == 1 else 0
    srd(A, sWS, PWS, 0x10000000 if (opt.get('rw') or opt.get('dup')) else (WS_END if not ST else 0x1000000))
    PW = opt.get("pw", 0)
    PW1 = PW >= 1; PW = PW == 1
    if PW:
        A(f"""
        s_lshl_b32 s78, s{sPair}, 15
        s_add_u32 s78, s78, {WS_CELL}
        """)
        for q in range(4):
            A(f"buffer_store_dwordx4 {vr(CW,4)}, v{v.t2}, {sr(sWS,4)}, s78 offen {STF}")
            if q < 3: A("s_add_u32 s78, s78, 8192")
    if PW: nb0 += 4
    if opt.get("cl"):
        A(f"""
        v_lshlrev_b32 v{CW+6}, 7, v{L}
        s_mul_i32 s22, s3, 2560
        s_add_u32 s22, s22, s{sUT}
        s_mov_b32 exec_lo, 0xfffff
        s_mov_b32 exec_hi, 0
        buffer_store_dword v{CW}, v{CW+6}, {sr(sWS,4)}, s22 offen {STF}
        s_mov_b64 exec, -1
        """)
        nb0 += 1
    sconsts()
    A(f"""
    v_lshlrev_b32 v{CW+6}, 22, v0
    v_add_u32 v{CW+7}, 0x800, v0
    v_lshlrev_b32 v{CW+7}, 20, v{CW+7}
    v_mov_b32 v{CW+5}, 16
    s_mov_b32 s72, -10
    s_mov_b32 s73, 0x100000
    s_mov_b32 s74, 0x200000
    s_mov_b32 s75, 0x300000
    s_lshl_b32 s78, s{sPair}, 6
    v_lshrrev_b32 v{CW+10}, 2, v0
    v_and_b32 v{CW+11}, 3, v0
    v_lshlrev_b32 v{CW+11}, 4, v{CW+11}
    v_lshl_add_u32 v{CW+12}, v{CW+10}, 13, v{CW+11}
    v_mul_u32_u24 v{CW+10}, 10240, v{CW+10}
    v_add_u32 v{CW+10}, v{CW+10}, v{CW+11}
    s_movk_i32 s79, {31*16}
    s_waitcnt lgkmcnt(0)
    s_barrier
    s_add_u32 s{sTag}, s{sTag}, 2
    s_or_b32 s{sTag}, s{sTag}, 0x40000001
    s_waitcnt vmcnt({2 + nb0})
    """)
    stamp(94)
    t = CW + 8
    for j in range(5):
        A(f"""
        v_mul_u32_u24 v{AD+j}, 0xcccd, v{D+j}
        v_lshrrev_b32 v{AD+j}, 19, v{AD+j}
        v_and_b32 v{AD+j}, -4, v{AD+j}
        ds_add_rtn_u32 v{RK+j}, v{AD+j}, v{CW+5} offset:32768
        """)
    if P0M == 1:
        wdma(32768, L_W2); nb0 += 4
    if P0M == 2:
        xdma(2); w23dma(); nb0 += 7
    for j in range(5):
        A(f"v_mad_i32_i24 v{D+j}, v{AD+j}, s72, v{D+j}")
    A(f"s_waitcnt vmcnt({nb0})")
    for j in range(5):
        d = D + j
        A(f"v_lshl_or_b32 v{d}, v{d}, 14, v{S+j}")
        if j == 0: A(f"v_add_u32 v{d}, v{d}, v{CW+6}")
        elif j < 4: A(f"v_add3_u32 v{d}, v{d}, v{CW+6}, s{72+j}")
        else: A(f"v_add_u32 v{d}, v{d}, v{CW+7}")
    A("s_waitcnt lgkmcnt(0)")
    pt("rk")
    A(f"v_max3_u32 v{t}, v{RK}, v{RK+1}, v{RK+2}")
    A(f"v_max3_u32 v{t}, v{t}, v{RK+3}, v{RK+4}")
    A(f"v_cmp_le_u32 vcc, s79, v{t}")
    A("s_cbranch_vccnz K_BOVF")
    A("K_BOVB:")
    B = Asm()
    B("K_BOVF:")
    B(f"v_mov_b32 v{t}, -2")
    for j in range(5):
        B(f"v_cmp_le_u32 vcc, s79, v{RK+j}")
        B(f"v_min_u32 v{RK+j}, s79, v{RK+j}")
        B("s_nop 0")
        B(f"v_cndmask_b32 v{D+j}, v{D+j}, v{t}, vcc")
    B("s_branch K_BOVB")
    ool.append(B.text())
    OT = opt.get("ot", 0)
    if OT:
        for j in range(0, 4, 2): A(f"v_mov_b64 {P(v.U1+j)}, {P(D+j)}")
        A(f"v_mov_b32 v{v.U1+4}, v{D+4}")
    for j in range(5):
        r = RK + j
        A(f"""
        v_lshrrev_b32 v{t}, 4, v{r}
        v_and_b32 v{t+1}, 0x100, v{r}
        v_and_b32 v{r}, 0x30, v{r}
        v_and_or_b32 v{r}, v{t}, 12, v{r}
        v_lshl_or_b32 v{r}, v{t+1}, 6, v{r}
        v_lshl_add_u32 v{r}, v{AD+j}, 4, v{r}
        ds_write_b32 v{r}, v{D+j}
        """)
    A(f"""
    s_add_u32 s73, s78, {128*10240}
    s_add_u32 s74, s78, {WS_CELL}
    s_add_u32 s75, s74, {128*8192}
    s_movk_i32 s22, {1000 - 512}
    v_cmp_gt_u32 s[70:71], s22, v0
    s_not_b32 s22, s{sTag}
    s_waitcnt lgkmcnt(0)
    s_barrier
    """)
    pt("cb")
    X = v.T1
    A(f"""
    ds_read_b128 {vr(v.T,4)}, v{v.t2}
    ds_read_b128 {vr(v.T+4,4)}, v{v.t2} offset:8192
    ds_read_b128 {vr(v.T+8,4)}, v{v.t2} offset:16384
    ds_read_b128 {vr(v.T+12,4)}, v{v.t2} offset:24576
    s_waitcnt lgkmcnt(0)
    """)
    xred([v.T + 4*q for q in range(4)], [X + q for q in range(4)])
    A(f"""
    v_mov_b32_dpp v{X+4}, v{v.T+8} quad_perm:[0,0,0,0] row_mask:0xf bank_mask:0xf
    v_mov_b32_dpp v{X+5}, v{v.T+12} quad_perm:[0,0,0,0] row_mask:0xf bank_mask:0xf
    v_cmp_ne_u32 s[68:69], -1, v{X+4}
    v_cmp_ne_u32 vcc, -1, v{X+5}
    s_mov_b32 exec_lo, 0x11111111
    s_mov_b32 exec_hi, 0x11111111
    s_and_b64 s[70:71], s[70:71], vcc
    v_xor_b32 v{v.T}, s22, v{X}
    v_xor_b32 v{v.T+4}, s22, v{X+1}
    v_cndmask_b32 v{X+4}, 0, 1, s[68:69]
    v_cndmask_b32 v{X+5}, 0, 1, vcc
    v_xor_b32 v{v.T}, v{v.T}, v{X+4}
    v_xor_b32 v{v.T+4}, v{v.T+4}, v{X+5}
    s_mov_b32 exec_lo, 0x88888888
    s_mov_b32 exec_hi, 0x88888888
    v_xor_b32 v{v.T+11}, s22, v{X+2}
    v_xor_b32 v{v.T+15}, s22, v{X+3}
    s_mov_b64 exec, -1
    s_waitcnt vmcnt(0)
    buffer_store_dwordx4 {vr(v.T,4)}, v{CW+10}, {sr(sOUT,4)}, s78 offen {STF}
    buffer_store_dwordx4 {vr(v.T+4,4)}, v{CW+10}, {sr(sOUT,4)}, s73 offen {STF}
    s_mov_b64 exec, s[68:69]
    buffer_store_dwordx4 {vr(v.T+8,4)}, v{CW+12}, {sr(sWS,4)}, s74 offen {STF}
    s_mov_b64 exec, s[70:71]
    buffer_store_dwordx4 {vr(v.T+12,4)}, v{CW+12}, {sr(sWS,4)}, s75 offen {STF}
    s_mov_b64 exec, -1
    """)
    stamp(4)
    if OT:
        r1f = opt.get("r1f", 1)
        A(f"s_add_u32 s22, s{sPair}, {(128 if r1f else 3) & 7}")
        A(f"s_mul_i32 s23, s{sPair}, {CH}")
        for j in range(5):
            u = v.U1 + j; a = v.U1 + 8; b_ = v.U1 + 9
            A(f"""
            v_lshrrev_b32 v{a}, 3, v{AD+j}
            v_bfe_u32 v{b_}, v{AD+j}, 2, 1
            v_mad_u32_u24 v{a}, v{b_}, {3 if r1f else 5}, v{a}
            v_subrev_u32 v{a}, s22, v{a}
            v_and_b32 v{a}, 7, v{a}
            v_bfe_u32 v{b_}, v{u}, 14, 6
            v_lshrrev_b32 v{u}, 20, v{u}
            v_lshl_or_b32 v{a}, v{a}, 8, v{b_}
            v_subrev_u32 v{b_}, 20, v{a}
            v_add_u32 v{u}, s23, v{u}
            v_min_u32 v{a}, v{a}, v{b_}
            v_cmpx_gt_u32 vcc, {OT}, v{a}
            buffer_load_dword v{v.JK3}, v{u}, {sr(sE,4)}, 0 idxen
            s_mov_b64 exec, -1
            """.replace("v_subrev_u32 v%d, s22, v%d\n" % (a, a), "v_subrev_u32 v%d, s22, v%d\n" % (a, a)))
    vconsts()
    A("s_branch K_COM0")
    A("K_GEMM:")
    pt("k0")
    if opt.get("wfirst"):
        srd(A, sWm, PWM, 272 * 256)
        wdma(0, 0)
        xdma(3)
    else:
        xdma(3)
        srd(A, sWm, PWM, 272 * 256)
        wdma(0, 0)
    G1M = opt.get("g1", 2)
    pt("g0")
    if G1M == 0: w23dma()
    pt("g1")
    srd(A, sWS, PWS, 0x10000000 if (opt.get('rw') or opt.get('dup')) else (WS_END if not ST else 0x1000000))
    sconsts()
    if opt.get("tlb"):
        A(f"""
        s_cmp_lg_u32 s3, 7
        s_cbranch_scc1 K_NOTLB
        v_lshlrev_b32 v{v.JK}, 21, v{L}
        v_lshlrev_b32 v{v.JK2}, 16, v{L}
        s_mov_b32 s22, 0x7ff80
        buffer_load_dword v{v.PROG}, v{v.JK}, {sr(sWS,4)}, s22 offen
        {f"buffer_load_dword v{v.LA}, v{v.JK2}, {sr(sE,4)}, 0 idxen" if opt.get("tlb") >= 2 else ""}
        {f"buffer_load_dword v{v.OHA}, v{v.JK}, {sr(sOUT,4)}, 0 offen" if opt.get("tlb") >= 2 else ""}
        K_NOTLB:
        """)
    XA = v.E; PA = v.E + 1; GA = v.E + 2; TN = v.E + 3
    A(f"""
    s_sub_u32 s{sPair}, s{sRel}, 256
    s_mov_b32 s72, {NEG_LOG2E:#x}
    s_add_u32 s73, s{sUT}, 0x2000
    s_add_u32 s74, s{sUT}, 0x4000
    s_cmp_ge_u32 s3, 4
    s_cselect_b32 s74, 0x40000000, s74
    """)
    A(f"""
    v_add_u32 v{v.JK3}, {L_BN}, v{v.t2}
    v_and_b32 v{XA}, 31, v{L}
    s_lshl_b32 s22, s{sG}, 5
    v_add_u32 v{XA}, s22, v{XA}
    s_waitcnt vmcnt({(12 if G1M == 0 else 7) })
    """)
    pt("g2")
    vconsts()
    A(f"""
    v_lshl_add_u32 v{TN}, v{H}, 11, v{TRA}
    s_lshl_b32 s22, s{sC}, 2
    v_lshl_add_u32 v{PA}, v{H}, 1, s22
    v_xor_b32 v{PA}, v{PA}, v{XA}
    v_and_b32 v{PA}, 15, v{PA}
    v_lshl_or_b32 v{PA}, v{XA}, 4, v{PA}
    s_mov_b32 s22, {L_BN}
    v_lshl_add_u32 v{PA}, v{PA}, 4, s22
    v_xor_b32 v{GA}, v{H}, v{XA}
    v_and_b32 v{GA}, 15, v{GA}
    v_lshl_or_b32 v{XA}, v{XA}, 4, v{GA}
    s_mov_b32 s22, {L_X}
    v_lshl_add_u32 v{XA}, v{XA}, 4, s22
    """)
    for s_ in range(1, 8):
        A(f"v_xor_b32 v{v.E+8+s_}, {s_*32}, v{XA}")
    pt("g3")
    if "gx" in PTS:
        A("s_waitcnt vmcnt(4)")
        pt("gx")
        A("s_waitcnt vmcnt(0)")
        pt("gw")
    if G1M == 1: w23dma()
    tagload("")
    A("s_waitcnt lgkmcnt(0)")
    tagfix()
    if PW1 and opt.get("w23e"): w23dma()
    if PW1: A("s_barrier")
    if PW1:
        A(f"""
        v_mov_b64 {P(v.T)}, 0
        v_mov_b64 {P(v.T+2)}, 0
        buffer_store_dwordx4 {vr(v.T,4)}, v{XV}, {sr(sWS,4)}, s{sUT} offen {STF}
        buffer_store_dwordx4 {vr(v.T,4)}, v{XV}, {sr(sWS,4)}, s73 offen {STF}
        buffer_store_dwordx4 {vr(v.T,4)}, v{XV}, {sr(sWS,4)}, s74 offen {STF}
        s_mov_b64 exec, 1
        buffer_store_dword v{v.T}, off, {sr(sWS,4)}, s{sPair} sc1
        s_mov_b64 exec, -1
        """)
    A(f"s_waitcnt vmcnt({(4 if PW1 else 0) + (5 if opt.get('w23e') else 0)})")
    A("s_barrier")
    stamp(94)
    if opt.get("tst"):
        sd = sOUT if opt["tst"] == "out" else sWS
        add = {"out": 0, "ws": 0, "ws2": 0x900000}[opt["tst"]]
        pt("t0")
        for r in (sUT, 73, 74):
            A(f"s_add_u32 s22, s{r}, {add}")
            A(f"buffer_store_dwordx4 {vr(v.T,4)}, v{XV}, {sr(sd,4)}, s22 offen {STF}")
        A("s_waitcnt vmcnt(0)")
        pt("t1")
    for s_ in range(8):
        A(f"ds_read_b64_tr_b16 {vr(v.WA+4*s_,2)}, v{TN} offset:{s_*4096}")
        A(f"ds_read_b64_tr_b16 {vr(v.WA+4*s_+2,2)}, v{TN} offset:{s_*4096+1024}")
        A(f"ds_read_b128 {vr(v.XF+4*s_,4)}, v{v.E+8+s_ if s_ else XA}")
    if G1M == 2 and not opt.get("w23e"): w23dma()
    A(f"s_cmp_lg_u32 s{sG}, 0")
    A("s_cbranch_scc1 K_G1")
    for s_ in range(8):
        A(f"ds_read_b128 {vr(v.U2+4*s_,4)}, v{v.E+8+s_ if s_ else XA} offset:16384")
    for s_ in range(8):
        A(f"s_waitcnt lgkmcnt({min(15, 3*(7-s_) + 8)})")
        A(mfma(v.T, v.WA + 4*s_, v.XF + 4*s_, "0" if s_ == 0 else None))
    for s_ in range(8):
        A(f"s_waitcnt lgkmcnt({7-s_})")
        A(mfma(v.T1, v.WA + 4*s_, v.U2 + 4*s_, "0" if s_ == 0 else None))
    def pout(acc, off, pk):
        for r in range(0, 16, 2):
            if pk:
                A(f"v_pk_mul_f32 {P(acc+r)}, {P(acc+r)}, s[72:73] op_sel_hi:[1,0]")
            else:
                A(f"v_mul_f32 v{acc+r}, s72, v{acc+r}")
                A(f"v_mul_f32 v{acc+r+1}, s72, v{acc+r+1}")
        for r in range(0, 16, 2):
            A(f"v_cvt_pk_bf16_f32 v{acc+r//2}, v{acc+r}, v{acc+r+1}")
        A(f"ds_write_b128 v{PA}, {vr(acc,4)} offset:{off}")
        A(f"ds_write_b128 v{GA}, {vr(acc+4,4)} offset:{off}")
    A(f"v_xor_b32 v{GA}, 16, v{PA}")
    pout(v.T, 0, False)
    pout(v.T1, 16384, True)
    A("s_branch K_G3")
    A("K_G1:")
    for s_ in range(8):
        A(f"s_waitcnt lgkmcnt({min(15, 3*(7-s_))})")
        A(mfma(v.T, v.WA + 4*s_, v.XF + 4*s_, "0" if s_ == 0 else None))
    A(f"v_xor_b32 v{GA}, 16, v{PA}")
    A("s_nop 10")
    pout(v.T, 0, False)
    A("K_G3:")
    pt("g4")
    A(f"""
    s_waitcnt lgkmcnt(0)
    s_barrier
    ds_read_b128 {vr(v.T,4)}, v{v.JK3}
    ds_read_b128 {vr(v.T+4,4)}, v{v.JK3} offset:8192
    ds_read_b128 {vr(v.T+8,4)}, v{v.JK3} offset:16384
    s_waitcnt lgkmcnt(2)
    """)

    A(f"""
    buffer_store_dwordx4 {vr(v.T,4)}, v{XV}, {sr(sWS,4)}, s{sUT} offen {STF}
    s_waitcnt lgkmcnt(1)
    buffer_store_dwordx4 {vr(v.T+4,4)}, v{XV}, {sr(sWS,4)}, s73 offen {STF}
    s_waitcnt lgkmcnt(0)
    buffer_store_dwordx4 {vr(v.T+8,4)}, v{XV}, {sr(sWS,4)}, s74 offen {STF}
    """)
    stamp(4)
    if G1M == 3:
        w23dma()
        qaddr()
        A("s_barrier")
        lds_init()
        A("s_waitcnt vmcnt(11)")
        A("s_barrier")
        pt("p1")
        A("s_cmp_eq_u32 s3, 0")
        A("s_cbranch_scc1 K2_B1")
        A("s_waitcnt vmcnt(6)")
        A("K2_B5:")
        A("s_barrier")
        qreads()
        qmfma()
        stamp(6)
        A("s_branch K_COMMON")
    A("s_waitcnt vmcnt(3)")
    A("K_COM0:")
    qaddr()
    A("s_barrier")
    pt("c1")
    qreads()
    lds_init()
    pt("c2")
    qmfma()
    stamp(6)
    A("K_COMMON:")
    pt("c3")
    for r in range(0, 12, 2):
        A(f"v_pk_mul_f32 {P(v.E+r)}, {P(v.E+r)}, s[72:73] op_sel_hi:[1,0]")
    A(f"""
    v_cvt_pk_bf16_f32 v{v.QS}, v{v.E}, v{v.E+1}
    v_cvt_pk_bf16_f32 v{v.QS+1}, v{v.E+2}, v{v.E+3}
    v_cvt_pk_bf16_f32 v{v.QF+2}, v{v.E+4}, v{v.E+5}
    v_cvt_pk_bf16_f32 v{v.QF+3}, v{v.E+6}, v{v.E+7}
    v_cvt_pk_bf16_f32 v{v.QS+2}, v{v.E+8}, v{v.E+9}
    v_cvt_pk_bf16_f32 v{v.QS+3}, v{v.E+10}, v{v.E+11}
    s_lshl_b32 s{sUoff}, s{sC}, 13
    s_add_u32 s{sUoff}, s{sUoff}, {WS_U}
    """)
    def round_regs():
        A(f"""
        v_mov_b32 v{v.TPa+1}, v{v.IX0+1}
        v_mov_b32 v{v.TPb+1}, v{v.IX0+1}
        v_mov_b32 v{v.IEb+1}, v{v.IE+1}
        v_mov_b32 v{v.aggF}, 1
        v_mov_b64 {P(v.REC)}, -1
        v_mov_b64 {P(v.REC+2)}, -1
        v_mov_b64 {P(v.REC+4)}, -1
        v_mov_b64 {P(v.REC+6)}, -1
        """)
    round_regs()
    A(f"""
    s_cmp_eq_u32 s{sRole}, 0
    s_cbranch_scc1 K2_B3
    """)
    if G1M == 2:
        A(f"""
        s_waitcnt vmcnt(6)
        s_barrier
        s_cmp_eq_u32 s3, 0
        s_cbranch_scc1 K2_B1
        """)
    A("K2_B2:")
    stamp(8)
    A(f"""
    K2_CELLS:
    s_mul_i32 s22, s2, 10240
    s_lshl_b32 s23, s2, 13
    s_add_u32 s23, s23, {WS_CELL}
    s_movk_i32 s76, 500
    v_cmp_gt_u32 s[74:75], s76, v0
    s_and_b32 s72, s74, 0x11111111
    s_and_b32 s73, s75, 0x11111111
    s_mov_b64 s[70:71], s[74:75]
    """)
    stamp(10)
    A(f"""
    K_POLL:
    s_mov_b64 exec, s[74:75]
    buffer_load_dwordx4 {vr(v.REC,4)}, v{v.t2}, {sr(sOUT,4)}, s22 offen sc1
    s_mov_b64 exec, -1
    s_waitcnt vmcnt(0)
    """)
    xred([v.REC], [v.NS])
    A(f"""
    v_xor_b32 v{v.NS}, s{sTag}, v{v.NS}
    v_cmp_lt_u32 vcc, 1, v{v.NS}
    s_and_b64 s[74:75], s[74:75], vcc
    s_cbranch_scc1 K_POLL2
    v_cmp_eq_u32 vcc, 1, v{v.NS}
    s_and_b64 s[76:77], s[70:71], vcc
    s_mov_b64 exec, s[76:77]
    buffer_load_dwordx4 {vr(v.REC+4,4)}, v{v.t2}, {sr(sWS,4)}, s23 offen sc1
    s_mov_b64 exec, s[72:73]
    v_mov_b32 v{v.REC}, -1
    s_mov_b64 exec, -1
    """)
    A(f"""
    s_cmp_lg_u32 s{sMode}, 0
    s_barrier
    s_cbranch_scc1 K2_COUNT
    ds_read_b128 {vr(v.SEL0,4)}, v{v.S0a}
    ds_read_b128 {vr(v.SEL1,4)}, v{v.S1a}
    K2_COUNT:
    """)
    ool.append(f"K2_B1:\nv_mov_b32 v{v.FV}, s{sTag}\ns_mov_b64 exec, 1\nbuffer_store_dword v{v.FV}, off, {sr(sOUT,4)}, s{sPair} sc1\ns_mov_b64 exec, -1\n{'s_waitcnt vmcnt(7)' if G1M == 3 else ''}\ns_branch {'K2_B5' if G1M == 3 else 'K2_B2'}")
    ool.append(f"K2_B3:\ns_sleep {opt.get('isl', 8)}\ns_branch K2_B2")
    ool.append(f"K_POLL2:\ns_sleep {opt.get('slp', 12)}\ns_branch K_POLL")
    stamp(12)
    ET = opt.get("et", 5)
    MAIN = [1, 0, 2, 3]; RARE = [4, 5, 6, 7]
    W0 = {j: v.W0 + 2 * j for j in MAIN}
    for j in MAIN:
        A(f"""
        v_cmp_gt_u32 {sr(sM+2*j,2)}, -2, v{v.REC+j}
        v_lshrrev_b32 v{v.AD+j}, 12, v{v.REC+j}
        v_and_b32 v{v.AD+j}, 0xfc, v{v.AD+j}
        s_mov_b64 exec, {sr(sM+2*j,2)}
        ds_add_rtn_u32 v{v.RANK+j}, v{v.AD+j}, v{v.aggF} offset:{CNT}
        s_mov_b64 exec, -1
        v_lshrrev_b32 v{W0[j]+1}, 20, v{v.REC+j}
        v_add_u32 v{W0[j]+1}, v{W0[j]+1}, v{v.EB}
        """)
    A("s_cmp_lg_u64 s[76:77], 0")
    A("s_cbranch_scc1 K2_CR")
    A("K2_CRB:")
    A2 = A
    B = Asm()
    B("K2_CR:")
    B("s_mov_b64 s[74:75], s[76:77]")
    B("K2_CR1:")
    B("s_waitcnt vmcnt(0)")
    B(f"""
    v_bitop3_b32 v{v.NS}, v{v.REC+4}, v{v.REC+5}, v{v.REC+6} bitop3:0x96
    v_xor_b32 v{v.NS}, v{v.NS}, v{v.REC+7}
    s_nop 1
    v_xor_b32_dpp v{v.NS}, v{v.NS}, v{v.NS} quad_perm:[1,0,3,2] row_mask:0xf bank_mask:0xf
    s_nop 1
    v_xor_b32_dpp v{v.NS}, v{v.NS}, v{v.NS} quad_perm:[2,3,0,1] row_mask:0xf bank_mask:0xf
    v_xor_b32 v{v.NS}, s{sTag}, v{v.NS}
    v_cmp_lt_u32 vcc, 1, v{v.NS}
    s_and_b64 s[74:75], s[74:75], vcc
    s_cbranch_scc0 K2_CR2
    s_sleep 2
    s_mov_b64 exec, s[74:75]
    buffer_load_dwordx4 {vr(v.REC+4,4)}, v{v.t2}, {sr(sWS,4)}, s23 offen sc1
    s_mov_b64 exec, -1
    s_branch K2_CR1
    K2_CR2:
    v_cmp_eq_u32 vcc, 1, v{v.NS}
    v_mov_b32 v{v.t1}, {FLAG}
    s_and_b64 exec, vcc, s[76:77]
    ds_write_b32 v{v.t1}, v{v.aggF}
    s_mov_b32 exec_lo, 0x88888888
    s_mov_b32 exec_hi, 0x88888888
    v_mov_b32 v{v.REC+7}, -1
    s_mov_b64 exec, -1
    """)
    for j in RARE:
        B(f"""
        v_cmp_gt_u32 vcc, -2, v{v.REC+j}
        s_cbranch_vccz K2_CRB
        v_lshrrev_b32 v{v.AD+j}, 12, v{v.REC+j}
        v_and_b32 v{v.AD+j}, 0xfc, v{v.AD+j}
        s_mov_b64 exec, vcc
        ds_add_rtn_u32 v{v.RANK+j}, v{v.AD+j}, v{v.aggF} offset:{CNT}
        s_mov_b64 exec, -1
        """)
    B("s_branch K2_CRB")
    ool.append(B.text())
    def touches():
        if ET:
            for j in MAIN:
                A(f"""
                v_subrev_u32 v{v.t0}, 80, v{v.AD+j}
                v_min_u32 v{v.t0}, v{v.t0}, v{v.AD+j}
                s_mov_b64 exec, {sr(sM+2*j,2)}
                v_cmpx_gt_u32 vcc, {4*ET}, v{v.t0}
                buffer_load_dword v{v.JK3}, v{W0[j]+1}, {sr(sE,4)}, 0 idxen
                s_mov_b64 exec, -1
                """)
    ETL = opt.get("etl", 0)
    if ETL == 0: touches()
    NPF = opt.get("pf", 0)
    if NPF:
        A(f"""
        s_or_b32 s22, s3, s{sMode}
        s_cmp_lg_u32 s22, 0
        s_cbranch_scc1 K2_NOPF
        v_cmp_ne_u32 vcc, s{sTag}, v{v.JK2}
        s_cbranch_vccnz K2_NOPF
        s_mul_i32 s22, s{sSl}, 81920
        v_lshlrev_b32 v{v.t0}, 7, v{L}
        """)
        for q in range(NPF):
            A(f"buffer_load_dword v{v.JK3}, v{v.t0}, {sr(sWS,4)}, s22 offen")
            if q < NPF - 1: A("s_add_u32 s22, s22, 8192")
        A("K2_NOPF:")
    c = v.t0; pd = v.OHA
    A(f"""
    v_lshlrev_b32 v{v.t0}, 2, v{L}
    v_mov_b32 v{v.t1}, {FLAG}
    s_mul_i32 s22, s{sG}, 20
    s_add_u32 s22, s22, 8
    s_waitcnt lgkmcnt(0)
    s_barrier
    """)
    pt("b2")
    A(f"""
    ds_read_b32 v{v.t0}, v{v.t0} offset:{CNT}
    ds_read_b32 v{v.t1}, v{v.t1}
    s_waitcnt lgkmcnt(0)
    v_add_u32 v{c}, 3, v{c}
    v_and_b32 v{c}, -4, v{c}
    v_max_u32 v{c}, 4, v{c}
    v_cndmask_b32 v{pd}, 0, v{c}, {sr(sN40,2)}
    v_readfirstlane_b32 s23, v{v.t1}
    s_nop 0
    v_add_u32_dpp v{c}, v{pd}, v{pd} row_shr:1 row_mask:0xf bank_mask:0xf bound_ctrl:0
    s_nop 1
    v_add_u32_dpp v{c}, v{c}, v{c} row_shr:2 row_mask:0xf bank_mask:0xf bound_ctrl:0
    s_nop 1
    v_add_u32_dpp v{c}, v{c}, v{c} row_shr:4 row_mask:0xf bank_mask:0xf bound_ctrl:0
    s_nop 1
    v_add_u32_dpp v{c}, v{c}, v{c} row_shr:8 row_mask:0xf bank_mask:0xf bound_ctrl:0
    s_nop 1
    v_add_u32_dpp v{c}, v{c}, v{c} row_bcast:15 row_mask:0xa bank_mask:0xf
    s_nop 1
    v_add_u32_dpp v{c}, v{c}, v{c} row_bcast:31 row_mask:0xc bank_mask:0xf
    s_cmp_lg_u32 s23, -1
    s_cbranch_scc1 K2_OVF
    v_readlane_b32 s{sT0}, v{c}, 19
    v_readlane_b32 s{sT1}, v{c}, 39
    v_sub_u32 v{pd}, v{c}, v{pd}
    s_sub_u32 s23, {GSL}, s{sT0}
    v_add_u32 v{c}, s23, v{pd}
    v_cndmask_b32 v{pd}, v{pd}, v{c}, {sr(sG1,2)}
    v_add_u32 v{v.FV}, v{pd}, v{v.OHB}
    """)
    for j in MAIN:
        A(f"ds_bpermute_b32 v{v.PK+j}, v{v.AD+j}, v{v.FV}")
    A(f"""
    v_readlane_b32 s{sTsw}, v{pd}, s22
    s_sub_u32 s{sT1}, s{sT1}, s{sT0}
    s_max_u32 s22, s{sT0}, s{sT1}
    s_cmp_gt_u32 s22, {GSL}
    s_cbranch_scc1 K2_OVF
    s_waitcnt lgkmcnt(0)
    """)
    pt("sc")
    A(f"""
    s_or_b32 s22, s3, s{sMode}
    s_cmp_lg_u32 s22, 0
    s_cbranch_scc1 K2_NRL
    s_buffer_load_dword s{sTile}, {sr(sOUT,4)}, s{sRel} glc
    K2_NRL:
    """)
    def sbody(j, w, mask):
        return f"""
        s_mov_b64 exec, {mask}
        v_add_u32_sdwa v{v.RANK+j}, v{v.PK+j}, v{v.RANK+j} dst_sel:DWORD dst_unused:UNUSED_PAD src0_sel:WORD_0 src1_sel:DWORD
        v_bfi_b32 v{w}, s{sK3F}, v{v.REC+j}, v{v.PK+j}
        v_lshlrev_b32 v{v.PK+j}, 3, v{v.RANK+j}
        v_lshrrev_b32 v{v.RANK+j}, 2, v{v.RANK+j}
        ds_write_b64 v{v.PK+j}, {P(w)} offset:{REC}
        ds_write_b8 v{v.RANK+j}, v{v.AD+j} offset:{QN}
        """
    if ETL == 1: touches()
    for j in MAIN:
        A(sbody(j, W0[j], sr(sM+2*j,2)))
    A("s_cmp_lg_u64 s[76:77], 0")
    A("s_cbranch_scc1 K2_SR")
    A("K2_SRB:")
    if ETL == 2:
        A("s_mov_b64 exec, -1")
        touches()
    B = Asm()
    B("K2_SR:")
    for j in RARE:
        w = v.W0 + 8
        B(f"""
        s_mov_b64 exec, -1
        v_cmp_gt_u32 vcc, -2, v{v.REC+j}
        s_cbranch_vccz K2_SRB
        ds_bpermute_b32 v{v.PK+j}, v{v.AD+j}, v{v.FV}
        v_lshrrev_b32 v{w+1}, 20, v{v.REC+j}
        v_add_u32 v{w+1}, v{w+1}, v{v.EB}
        s_waitcnt lgkmcnt(0)
        """)
        B(sbody(j, w, "vcc"))
    B("s_branch K2_SRB")
    ool.append(B.text())
    A(f"""
    s_mov_b64 exec, -1
    s_or_b32 s22, s3, s{sMode}
    s_cmp_lg_u32 s22, 0
    s_cbranch_scc1 K2_RDY
    s_waitcnt lgkmcnt(0)
    s_cmp_lg_u32 s{sTile}, s{sTag}
    s_cbranch_scc1 K2_SPOLL
    K2_RDY:
    s_mov_b32 m0, s{sRing}
    s_waitcnt lgkmcnt(0)
    s_barrier
    """)
    ool.append(f"K2_RPOLL:\nbuffer_load_dword v{v.JK2}, off, {sr(sOUT,4)}, s{sRel} sc1\ns_waitcnt vmcnt(0)\nv_cmp_ne_u32 vcc, s{sTag}, v{v.JK2}\ns_cbranch_vccz K2_RDY\ns_sleep 1\ns_branch K2_RPOLL")
    ool.append(f"K2_SPOLL:\ns_mov_b32 s23, 0\nK2_SP2:\ns_buffer_load_dword s22, {sr(sOUT,4)}, s{sRel} glc\ns_waitcnt lgkmcnt(0)\ns_cmp_eq_u32 s22, s{sTag}\ns_cbranch_scc1 K2_RDY\ns_add_u32 s23, s23, 1\ns_cmp_lt_u32 s23, 16\ns_cbranch_scc1 K2_SP2\ns_branch K2_RPOLL")
    stamp(14)
    A(f"""
    K2_START:
    ds_read_u16 v{v.IX0}, v{v.R1}
    ds_read_u16 v{v.IX1}, v{v.R1} offset:64
    ds_read_b32 v{v.IE}, v{v.Re}
    ds_read_u8 v{v.t0}, v0 offset:{QN}
    ds_read_u16 v{v.TPa}, v{v.R1} offset:256
    ds_read_u16 v{v.TPb}, v{v.R1} offset:320
    ds_read_b32 v{v.IEb}, v{v.Re} offset:1024
    ds_read_u8 v{v.OH0}, v{v.R2}
    ds_read_u8 v{v.OHA}, v{v.R2} offset:256
    s_waitcnt lgkmcnt(8)
    buffer_load_dwordx4 {P(v.IX0)}, {sr(sP,4)}, 0 idxen offen lds
    s_add_u32 m0, s{sRing}, 1024
    s_waitcnt lgkmcnt(7)
    buffer_load_dwordx4 {P(v.IX1)}, {sr(sP,4)}, 0 idxen offen lds
    s_cmp_lg_u32 s{sNoE}, 0
    s_cselect_b32 m0, {JUNK}, s{sE0}
    s_waitcnt lgkmcnt(5)
    buffer_load_dwordx4 {P(v.IE)}, {sr(sE,4)}, 0 idxen offen lds
    v_cmp_ne_u32 vcc, 0xff, v{v.t0}
    v_subrev_u32 v{v.t1}, 80, v{v.t0}
    v_min_u32 v{v.t0}, v{v.t0}, v{v.t1}
    v_lshl_add_u32 v{v.t1}, v{v.t0}, 3, v{v.QC}
    v_lshrrev_b32 v{v.t0}, 1, v{v.t0}
    v_and_b32 v{v.t0}, 16, v{v.t0}
    v_xor_b32 v{v.t1}, v{v.t1}, v{v.t0}
    v_mov_b32 v{v.t0}, 0x3f80
    s_mov_b64 exec, vcc
    ds_write_b16 v{v.t1}, v{v.t0}
    s_mov_b64 exec, -1
    s_add_u32 m0, s{sRing}, 2048
    s_waitcnt lgkmcnt(0)
    buffer_load_dwordx4 {P(v.TPa)}, {sr(sP,4)}, 0 idxen offen lds
    s_add_u32 m0, s{sRing}, 3072
    ds_read_u16 v{v.IX0}, v{v.R1} offset:512
    buffer_load_dwordx4 {P(v.TPb)}, {sr(sP,4)}, 0 idxen offen lds
    ds_read_u16 v{v.IX1}, v{v.R1} offset:576
    ds_read_u16 v{v.TPa}, v{v.R1} offset:768
    ds_read_u16 v{v.TPb}, v{v.R1} offset:832
    s_cmp_lg_u32 s{sNoE}, 0
    s_cbranch_scc1 K2_ST2
    s_mul_i32 s22, s{sG}, {GSL}
    s_sub_u32 s{sTsw}, s{sTsw}, s22
    s_add_u32 s{sTsw}, s{sTsw}, 31
    s_lshr_b32 s{sTsw}, s{sTsw}, 5
    s_cmp_eq_u32 s{sG}, 0
    s_cselect_b32 s{sTg}, s{sT0}, s{sT1}
    s_add_u32 s{sTg}, s{sTg}, 31
    s_lshr_b32 s{sTg}, s{sTg}, 5
    s_sub_u32 s{sUT}, s{sTg}, 9
    s_and_b32 s{sUT}, s{sUT}, -4
    s_add_u32 s{sUT}, s{sUT}, 1
    s_cmp_lt_u32 s{sTg}, 9
    s_cselect_b32 s{sUT}, {BIG}, s{sUT}
    s_cmp_lg_u32 s{sMode}, 0
    s_cselect_b32 s{sUT}, {BIG}, s{sUT}
    s_sub_u32 s{sT1}, s{sTg}, 1
    K2_ST2:
    s_sub_u32 s22, s{sTg}, 1
    s_lshr_b32 s22, s22, 1
    s_mul_i32 s22, s22, 3072
    s_add_u32 s22, s22, {3072 + 2048}
    v_add_u32 v{v.LA}, s22, v{v.E_}
    s_add_u32 s{sEdst}, s{sE0}, {6144 if opt.get('ek', 3) == 3 else 12288}
    s_mov_b32 s{sTile}, 0
    v_mov_b32 v{v.PROG}, 1
    v_mov_b64 {P(v.QF)}, {P(v.QS)}
    v_mov_b64 {P(v.NS)}, 0
    v_mov_b64 {P(v.NS+2)}, 0
    v_mov_b64 {P(v.DS)}, {P(v.ONE)}
    v_mov_b64 {P(v.DS+2)}, {P(v.ONE)}
    v_mov_b64 {P(v.MSG)}, 0
    v_mov_b64 {P(v.aggF)}, 0
    v_mov_b64 {P(v.aggF+2)}, 0
    v_mov_b64 {P(v.S)}, 0
    s_cmp_lg_u32 s{sNoE}, 0
    s_waitcnt vmcnt(2) lgkmcnt(0)
    s_cbranch_scc1 K2_GO
    s_barrier
    K2_GO:
    s_or_b32 s22, s{sMode}, s{sNoE}
    """)
    stamp(16)
    A(f"""
    ds_read_b128 {vr(v.ohF,4)}, v{v.OH0}
    ds_read_b128 {vr(v.eF,4)}, v{v.E_} offset:3072
    ds_read_b128 {vr(v.pF0,4)}, v{v.P0}
    ds_read_b128 {vr(v.pF1,4)}, v{v.P1}
    s_cbranch_scc1 K2_SAFEP
    """)
    def late_issue():
        A(f"""
        s_add_u32 m0, s{sRing}, 4096
        s_nop 0
        buffer_load_dwordx4 {P(v.IX0)}, {sr(sP,4)}, 0 idxen offen lds
        s_add_u32 m0, s{sRing}, 5120
        ds_read_u16 v{v.IX0}, v{v.R1} offset:1024
        buffer_load_dwordx4 {P(v.IX1)}, {sr(sP,4)}, 0 idxen offen lds
        """)
        if opt.get("ek", 3) == 2:
            A(f"""
            s_add_u32 m0, s{sE0}, 6144
            s_nop 0
            buffer_load_dwordx4 {P(v.IEb)}, {sr(sE,4)}, 0 idxen offen lds
            """)
        else:
            A(f"v_mov_b32 v{v.IE}, v{v.IEb}")
        A(f"""
        s_add_u32 m0, s{sRing}, 6144
        ds_read_u16 v{v.IX1}, v{v.R1} offset:1088
        buffer_load_dwordx4 {P(v.TPa)}, {sr(sP,4)}, 0 idxen offen lds
        s_add_u32 m0, s{sRing}, 7168
        s_nop 0
        buffer_load_dwordx4 {P(v.TPb)}, {sr(sP,4)}, 0 idxen offen lds
        """)
    chain(A, 3, "fast", None, ool, pre=True, mid=late_issue)
    A("K2_LOOP:")
    for k in range(4):
        stretch(A, k, "fast", ool)
        chain(A, k, "fast", "K2_EXIT", ool)
    A("s_branch K2_LOOP")
    A("K2_LAST0:")
    stretch(A, 0, "last", ool, last=True)
    A("s_branch K2_EXIT")
    A("K2_LAST1:")
    stretch(A, 1, "last", ool, last=True)
    A("K2_EXIT:")
    stamp(18)
    pt("x0")
    A(f"""
    s_setprio 0
    ds_read_b128 {vr(v.ohF,4)}, v{v.LA}
    {mfma(v.T1, v.U1 + 24, v.XF + 24)}
    v_rcp_f32 v{v.RS}, v{v.DS}
    v_rcp_f32 v{v.RS+1}, v{v.DS+1}
    v_rcp_f32 v{v.RS+2}, v{v.DS+2}
    v_rcp_f32 v{v.RS+3}, v{v.DS+3}
    {mfma(v.T1, v.U1 + 28, v.XF + 28)}
    v_fma_f32 v{v.S}, v{v.DS}, v{v.DS+2}, v{v.S}
    v_fma_f32 v{v.S+1}, v{v.DS+1}, v{v.DS+3}, v{v.S+1}
    v_mul_f32 v{v.NS}, v{v.NS}, v{v.RS}
    v_mul_f32 v{v.NS+1}, v{v.NS+1}, v{v.RS+1}
    v_mul_f32 v{v.NS+2}, v{v.NS+2}, v{v.RS+2}
    v_mul_f32 v{v.NS+3}, v{v.NS+3}, v{v.RS+3}
    K2_X2:
    s_bitcmp1_b32 s{sTg}, 0
    s_cbranch_scc0 K2_X3
    s_waitcnt lgkmcnt(1)
    {mfma(v.ACC, v.MSG, v.aggF)}
    v_cvt_pk_bf16_f32 v{v.MSG}, v{v.NS}, v{v.NS+1}
    v_cvt_pk_bf16_f32 v{v.MSG+1}, v{v.NS+2}, v{v.NS+3}
    s_branch K2_X4
    K2_X3:
    v_cvt_pk_bf16_f32 v{v.MSG+2}, v{v.NS}, v{v.NS+1}
    v_cvt_pk_bf16_f32 v{v.MSG+3}, v{v.NS+2}, v{v.NS+3}
    K2_X4:
    v_max_f32 v{v.S}, v{v.S}, v{v.S+1}
    s_waitcnt lgkmcnt(0)
    {mfma(v.ACC, v.MSG, v.ohF)}
    v_add_u32 v{v.t0}, s{sRing}, v{v.t3}
    s_cmp_eq_u32 s{sMode}, 1
    s_cbranch_scc1 K2_NEXTR
    K2_FIN:
    s_cmp_eq_u32 s{sUT}, {BIG}
    s_cbranch_scc1 K2_ULD
    K2_ULB:
    s_mov_b32 s22, {NEG_LN2:#x}
    s_mov_b32 s23, {f2u(2.0**60):#x}
    v_mov_b64 {P(v.NS)}, 0
    v_mov_b32 v{v.S+1}, 0
    s_lshl_b32 s76, s{sG}, 15
    s_add_u32 s76, s76, {RING}
    v_add_u32 v{v.t1}, s76, v{v.t3}
    """)
    pt("x1")
    B = Asm(); B("K2_ULD:")
    for i in range(16): u_load(B, i)
    B("s_waitcnt vmcnt(0)")
    for s_ in range(8):
        B(mfma(v.T1, v.U1 + 4*s_, v.XF + 4*s_, "0" if s_ == 0 else None))
    B("s_branch K2_ULB"); ool.append(B.text())
    for s in range(8):
        A(f"v_pk_mul_f32 {P(v.ACC+2*s)}, {P(v.ACC+2*s)}, s[22:23] op_sel_hi:[1,0]")
    for s in range(8):
        A(f"v_cvt_pk_bf16_f32 v{v.E+s}, v{v.ACC+2*s}, v{v.ACC+2*s+1}")
    for s in range(8):
        A(f"v_pk_fma_f32 {P(v.S)}, {P(v.ACC+2*s)}, {P(v.NS)}, {P(v.S)}")
    F = v.T1; AG = v.XF
    A(f"""
    v_add_f32 v{v.S}, v{v.S}, v{v.S+1}
    v_cmp_nge_f32 vcc, s23, v{v.S}
    s_cbranch_vccnz K2_TRIP
    K2_TRB:
    s_waitcnt vmcnt(0)
    ds_write_b128 v{v.t0}, {vr(v.E,4)}
    ds_write_b128 v{v.t0}, {vr(v.E+4,4)} offset:1024
    v_mov_b32 v{v.PROG}, 0x7fff
    """)
    ool.append(f"K2_TRIP:\ns_or_b32 s22, s{sMode}, s{sNoE}\ns_cmp_lg_u32 s22, 0\ns_cbranch_scc1 K2_TRB\ns_branch K2_REDO")
    A("s_waitcnt lgkmcnt(0)")
    A("s_mov_b64 exec, 1")
    A(f"ds_write_b32 v{v.FW}, v{v.PROG}")
    A("s_mov_b64 exec, -1")
    A(f"ds_read_b32 v{v.FV}, v{v.FR}")
    pt("x2")
    A(f"""
    K2_GS:
    s_waitcnt lgkmcnt(0)
    v_cmp_gt_u32 vcc, v{v.PROG}, v{v.FV}
    s_cbranch_vccnz K2_GS2
    """)
    ool.append(f"K2_GS2:\nds_read_b32 v{v.FV}, v{v.FR}\ns_branch K2_GS")
    stamp(96)
    pt("x3")
    for s in range(8):
        A(f"ds_read_b128 {vr(AG+4*s,4)}, v{v.t1} offset:{(s >> 1) * 8192 + (s & 1) * 1024}")
    for s in range(8):
        A(f"s_waitcnt lgkmcnt({7-s})")
        A(mfma(F, v.U2 + 4*s, AG + 4*s))
    pt("x4")
    A(f"s_mov_b32 s22, {NEG_LOG2E:#x}")
    A("s_nop 10")
    for r in range(0, 16, 2):
        A(f"v_pk_mul_f32 {P(v.E+r)}, {P(F+r)}, s[22:23] op_sel_hi:[1,0]")
    for r in range(16):
        A(f"v_exp_f32 v{v.E+r}, v{v.E+r}")
    for r in range(0, 16, 2):
        A(f"v_pk_add_f32 {P(v.E+r)}, {P(v.E+r)}, {P(v.ONE)}")
    for r in range(16):
        A(f"v_rcp_f32 v{v.E+r}, v{v.E+r}")
    for r in range(0, 16, 2):
        A(f"v_pk_mul_f32 {P(F+r)}, {P(F+r)}, {P(v.E+r)}")
    O = v.T
    for r in range(8):
        A(f"v_cvt_pk_bf16_f32 v{O+r}, v{F+2*r}, v{F+2*r+1}")
    A(f"""
    s_nop 1
    v_permlane32_swap_b32 v{O}, v{O+2}
    v_permlane32_swap_b32 v{O+1}, v{O+3}
    v_permlane32_swap_b32 v{O+4}, v{O+6}
    v_permlane32_swap_b32 v{O+5}, v{O+7}
    buffer_store_dwordx4 {vr(O,4)}, v{v.OA}, {sr(sOUT,4)}, 0 offen {opt.get("ost", "").replace("_", " ")}
    buffer_store_dwordx4 {vr(O+4,4)}, v{v.OA}, {sr(sOUT,4)}, 0 offen offset:32 {opt.get("ost", "").replace("_", " ")}
    """)
    pt("x5")
    A(f"""
    s_or_b32 s22, s2, s3
    s_cmp_eq_u32 s22, 0
    s_cbranch_scc1 K_ADV
    K_ADVB:
    """)
    ool.append(f"K_ADV:\nv_mov_b32 v1, s{sTag}\ns_mov_b32 s22, {WS_TAG}\ns_mov_b64 exec, 1\nbuffer_store_dword v1, off, {sr(sWS,4)}, s22 sc1\ns_mov_b64 exec, -1\ns_branch K_ADVB")
    if ST:
        A("s_waitcnt vmcnt(0)")
        A("s_memtime s[98:99]")
        A("s_memrealtime s[100:101]")
        A(f"""
        s_lshl_b32 s22, s2, 3
        s_add_u32 s22, s22, s3
        s_lshl_b32 s22, s22, 6
        s_add_u32 s22, s22, 0xA00000
        v_mov_b32 v1, 0
        s_waitcnt lgkmcnt(0)
        """)
        for i, r in enumerate([90, 94, 4, 6, 8, 10, 12, 14, 16, 18, 96, 98, 92, 100, sTg] if not PTS else [90, 94, 4, 44, 46, 48, 50, 96, 6, 12, 14, 98, 92, 100, sTg]):
            A(f"v_mov_b32 v2, s{r}")
            A(f"buffer_store_dword v2, v1, {sr(sWS,4)}, s22 offen offset:{4*i}")
    A("K_END:")
    A("s_endpgm")
    for o in ool: A(o)
    del ool[:]
    A(f"""
    K_SPECIAL:
    s_waitcnt lgkmcnt(0)
    s_mov_b32 s22, {WS_TAG}
    s_load_dword s{sTag}, s[{PWS}:{PWS+1}], s22
    """)
    if ST: srd(A, sDB, PDBG, 256)
    srd(A, sWS, PWS, WS_END)
    A(f"""
    s_cmp_lg_u32 s2, 0
    s_cbranch_scc1 K_HELPER
    s_cmp_lg_u32 s3, 0
    s_cbranch_scc1 K_END
    s_waitcnt lgkmcnt(0)
    s_add_u32 s{sTag}, s{sTag}, 2
    s_or_b32 s{sTag}, s{sTag}, 0x40000001
    v_mov_b32 v1, s{sTag}
    """)
    srd(A, sOUT, POUT, N * 256)
    A(f"""
    v_mul_u32_u24 v2, 20480, v0
    v_add_u32 v2, {10240 + 8192}, v2
    v_add_u32 v4, {64 * 20480}, v2
    v_cmp_gt_u32 vcc, {NCHUNK - 64}, v0
    v_mul_u32_u24 v5, 20480, v0
    v_add_u32 v5, {8192 - 61 * 20480}, v5
    v_cndmask_b32 v4, v5, v4, vcc
    v_cmp_eq_u32 vcc, 63, v0
    v_mul_u32_u24 v3, 10240, v0
    v_add_u32 v3, 8448, v3
    v_cndmask_b32 v4, v4, v2, vcc
    s_mov_b32 s76, {64 * 10240}
    s_mov_b32 s77, {128 * 10240}
    s_mov_b32 s78, {192 * 10240}
    {f"s_sleep {opt.get('msl')}" if opt.get('msl') else ""}
    K_MPOLL:
    buffer_load_dword v8, v2, {sr(sOUT,4)}, 0 offen sc1
    buffer_load_dword v9, v4, {sr(sOUT,4)}, 0 offen sc1
    s_waitcnt vmcnt(0)
    v_xor_b32 v8, v1, v8
    v_xor_b32 v9, v1, v9
    v_or_b32 v8, v8, v9
    v_cmp_ne_u32 vcc, 0, v8
    s_cbranch_vccnz K_MPOLL
    buffer_store_dword v1, v3, {sr(sOUT,4)}, 0 offen sc1
    buffer_store_dword v1, v3, {sr(sOUT,4)}, s76 offen sc1
    buffer_store_dword v1, v3, {sr(sOUT,4)}, s77 offen sc1
    buffer_store_dword v1, v3, {sr(sOUT,4)}, s78 offen sc1
    {"s_memrealtime s[90:91]" if ST else ""}
    {"s_waitcnt lgkmcnt(0)" if ST else ""}
    {"v_mov_b32 v2, s90" if ST else ""}
    {f"buffer_store_dword v2, off, {sr(sDB,4)}, 0 offset:8" if ST else ""}
    {"v_mov_b32 v2, s92" if ST else ""}
    {f"buffer_store_dword v2, off, {sr(sDB,4)}, 0 offset:12" if ST else ""}
    s_endpgm
    K_HELPER:
    s_sub_u32 s87, s2, 1
    s_lshl_b32 s82, s87, 15
    s_lshl_b32 s77, s3, 12
    """)
    srd(A, sWm, PWU, 32768, add="s82")
    wdma(0, 0)
    A(f"""
    s_waitcnt vmcnt(4)
    s_lshl_b32 s22, s{sC}, 6
    v_xor_b32 v{TRA}, s22, v{TRA}
    v_lshrrev_b32 v{H}, 5, v{L}
    s_sub_u32 s22, 11, s87
    v_lshlrev_b32 v{H}, s22, v{H}
    v_add_u32 v{TRA}, v{TRA}, v{H}
    s_lshl_b32 s22, s{sG}, 14
    v_add_u32 v{TRA}, s22, v{TRA}
    s_lshl_b32 s22, 1024, s87
    v_add_u32 v{H}, s22, v{TRA}
    s_lshl_b32 s22, s{sC}, 13
    s_add_u32 s82, s82, s22
    s_lshl_b32 s22, s{sG}, 12
    s_add_u32 s82, s82, s22
    s_add_u32 s82, s82, {WS_U}
    s_waitcnt vmcnt(0)
    s_barrier
    """)
    for s_ in range(4):
        A(f"ds_read_b64_tr_b16 {vr(v.T+4*s_,2)}, v{TRA} offset:{s_*4096}")
        A(f"ds_read_b64_tr_b16 {vr(v.T+4*s_+2,2)}, v{H} offset:{s_*4096}")
    A("s_waitcnt lgkmcnt(0)")
    for s_ in range(4):
        A(f"buffer_store_dwordx4 {vr(v.T+4*s_,4)}, v{v.t3}, {sr(sWS,4)}, s82 offen offset:{s_*1024} sc1")
    A(f"""
    s_waitcnt vmcnt(0)
    s_barrier
    s_cmp_lg_u32 s3, 0
    s_cbranch_scc1 K_END
    s_add_u32 s{sTag}, s{sTag}, 2
    s_or_b32 s{sTag}, s{sTag}, 0x40000001
    v_mov_b32 v1, s{sTag}
    """)
    srd(A, sOUT, POUT, N * 256)
    A(f"""
    s_mul_i32 s22, s87, 20480
    s_add_u32 s22, s22, 8192
    s_mov_b64 exec, 1
    buffer_store_dword v1, off, {sr(sOUT,4)}, s22 sc1
    s_endpgm
    """)
    A("K2_SAFEP:")
    chain(A, 3, "safe", None, ool, pre=True, mid=late_issue)
    A("K2_SAFE:")
    for k in range(4):
        stretch(A, k, "safe", ool)
        chain(A, k, "safe", "K2_SEXIT", ool)
    A("s_branch K2_SAFE")
    A(f"""
    K2_SEXIT:
    s_setprio 0
    ds_read_b128 {vr(v.ohF,4)}, v{v.LA}
    s_branch K2_X2
    """)
    def restore(reg=None):
        A(f"""
        s_lshr_b32 s23, s{reg or sTg}, 2
        s_mul_i32 s22, s23, 6144
        s_lshl_b32 s23, s23, 10
        v_subrev_u32 v{v.E_}, s22, v{v.E_}
        v_subrev_u32 v{v.R1}, s23, v{v.R1}
        v_subrev_u32 v{v.R2}, s23, v{v.R2}
        v_subrev_u32 v{v.Re}, s23, v{v.Re}
        """)
    A("K2_REDO:")
    restore(sT1)
    A(f"s_mov_b32 s{sUT}, {BIG}")
    A(f"s_mov_b32 s{sNoE}, 1")
    for r in range(0, 16, 2):
        A(f"v_mov_b64 {P(v.ACC+r)}, 0")
    A(f"v_mov_b32 v{v.TPa+1}, v{v.IX0+1}")
    A(f"v_mov_b32 v{v.TPb+1}, v{v.IX0+1}")
    A(f"s_mov_b32 m0, s{sRing}")
    A("s_waitcnt vmcnt(0) lgkmcnt(0)")
    A("s_branch K2_START")
    A(f"""
    K2_OVF:
    s_cmp_eq_u32 s{sMode}, 0
    s_cbranch_scc0 K2_OV2
    s_cmp_lg_u32 s3, 0
    s_cbranch_scc1 K2_OV2
    K2_OV1:
    buffer_load_dword v{v.JK2}, off, {sr(sOUT,4)}, s{sRel} sc1
    s_waitcnt vmcnt(0)
    v_cmp_ne_u32 vcc, s{sTag}, v{v.JK2}
    s_cbranch_vccnz K2_OV1
    K2_OV2:
    s_mov_b32 s{sMode}, 1
    s_mov_b32 s{sRound}, 0
    s_branch K2_ROUND
    K2_NEXTR:
    s_add_u32 s{sRound}, s{sRound}, 1
    s_cmp_ge_u32 s{sRound}, {E // 512}
    s_cbranch_scc1 K2_FIN
    """)
    restore()
    A(f"""
    K2_ROUND:
    s_load_dwordx4 s[76:79], s[0:1], 16
    s_waitcnt vmcnt(0) lgkmcnt(0)
    s_barrier
    """)
    srd(A, sS, 76, E * 4)
    srd(A, sD, 78, E * 4)
    round_regs()
    A(f"""
    s_lshl_b32 s22, s{sRound}, 9
    v_add_u32 v{v.EB}, s22, v0
    v_lshlrev_b32 v{v.t0}, 2, v{v.EB}
    buffer_load_dword v{v.REC}, v{v.t0}, {sr(sD,4)}, 0 offen
    buffer_load_dword v{v.REC+1}, v{v.t0}, {sr(sS,4)}, 0 offen
    """)
    lds_init()
    A(f"""
    s_mul_i32 s22, s2, 40
    s_waitcnt vmcnt(0)
    v_subrev_u32 v{v.REC}, s22, v{v.REC}
    v_cmp_gt_u32 vcc, 40, v{v.REC}
    v_lshl_or_b32 v{v.t0}, v{v.REC}, 14, v{v.REC+1}
    v_mov_b32 v{v.REC+1}, -1
    v_cndmask_b32 v{v.REC}, -1, v{v.t0}, vcc
    s_mov_b64 s[76:77], 0
    s_barrier
    s_branch K2_COUNT
    """)
    for o in ool: A(o)
    A("K_CODE_END:")
    return A.text()

HEADER = """; MPNN edge-MLP layer, fused single kernel (generated by gen/fz15.py).
; Kernarg layout (72 bytes, ptrs only, base s[0:1]):
;   32: w_msg (272,128) bf16 | 40: w_upd (256,128) bf16 | 48: d_out | 56: d_debug | 64: d_ws
"""
def build(opt):
    out = HEADER + f"; @launch grid=({NWG},1,1) block=(512,1,1) lds={LDS_TOTAL}\n"
    out += '.amdgcn_target "amdgcn-amd-amdhsa--gfx950"\n.text\n'
    out += f".globl {KNAME}\n.p2align 8\n.type {KNAME},@function\n" + gen(opt)
    acc = (NV + 3) // 4 * 4
    out += f""".section .rodata,"a"
.p2align 8
K_TABLE:
{tables()}.p2align 6
.amdhsa_kernel {KNAME}
  .amdhsa_next_free_vgpr {NV}
  .amdhsa_next_free_sgpr 102
  .amdhsa_accum_offset {acc}
  .amdhsa_group_segment_fixed_size 0
  .amdhsa_kernarg_size 72
  .amdhsa_user_sgpr_count 2
  .amdhsa_user_sgpr_kernarg_segment_ptr 1
  .amdhsa_system_sgpr_workgroup_id_x 1
.end_amdhsa_kernel
"""
    return out

if __name__ == "__main__":
    opt = {}
    for a in sys.argv[2:]:
        k_, v_ = a.split("=")
        opt[k_] = int(v_) if v_.lstrip("-").isdigit() else v_
    open(sys.argv[1], "w").write(build(opt))
```

```python
import sys, struct
from gen import Asm, vr, sr, srd, f2u, NEG_LOG2E, NEG_LN2, PX, PE, PSRC, PDST, PWM, PWU, POUT, PDBG, PWS, load_ptrs

KNAME = "standalone__mpnn_edge_mlp__graph_kernel"
N = 10000; E = 320000
NBIN = 250; NCHUNK = 125; CH = 2560
WS_CELL = 0x280000
WS_FLAG = 0x700000
WS_U = 0x708000
WS_END = WS_U + 0x10000
NWG = NBIN + 3
BIG = 0x7fffffff
WS_TAG = 0x27FF00

CNT = 0x100; QN = 0x200; FLAG = 0x3F0; TRIP = 0x3F4; REC = 0x400
import os
N0 = int(os.environ.get("N0", 21)); N1 = 40 - N0
TG0 = {20: 26, 21: 28, 22: 28, 23: 30}[N0]; TG1 = 52 - TG0
GSL = TG0 * 32; GSL1 = TG1 * 32
REC_BYTES = (52 * 32 + 160) * 8
EA = REC + REC_BYTES
GEA = (TG0 // 2) * 3072; GEA1 = (TG1 // 2) * 3072
RING = EA + 26 * 3072
JUNK = RING + 65536
LDS_TOTAL = JUNK + 1024
FLG = CNT + 48 * 4
L_X = RING; L_W2 = RING + 0x6000; L_W3 = L_W2 + 32768; L_BN = 0x8000
assert RING % 256 == 0 and LDS_TOTAL <= 163840

class R: pass
v = R()
_n = 1
def alloc(name, n, align=1):
    global _n
    _n = (_n + align - 1) // align * align
    setattr(v, name, _n)
    _n += n
for nm in ("t0", "t1", "t2", "t3", "lane", "FW", "FV", "PROG", "JK", "JK2", "JK3", "OHA", "P1", "FR", "LA"):
    alloc(nm, 1)
TABN = ("E_", "R1", "R2", "Re", "P0", "EB", "QC", "OHB", "S0a", "FRo", "IXo", "IEo", "S1a", "TRA", "OAl", "Z_")
alloc("TAB", 0, 4)
for nm in TABN[:8]:
    alloc(nm, 1)
for nm in ("IX0", "IX1", "IE", "ONE", "S"):
    alloc(nm, 2, 2)
alloc("OA", 1)
for nm in ("W3F", "QF", "QS", "SEL0", "SEL1", "eF", "ohF", "pF0", "pF1", "aggF", "MSG", "NS", "DS", "RS"):
    alloc(nm, 4, 4)
for nm in ("T", "T1", "E", "ACC"):
    alloc(nm, 16, 4)
alloc("U1", 32, 4); alloc("U2", 32, 4); alloc("XF", 32, 4)
NV = _n
assert NV <= 256
for i_, nm in enumerate(TABN[8:]): setattr(v, nm, v.SEL0 + i_)
v.WA = v.ohF
assert v.RS == v.ohF + 28 and v.SEL1 == v.SEL0 + 4 and v.E == v.T1 + 16
v.REC = v.T; v.RANK = v.T + 8; v.AD = v.E; v.PK = v.E + 8
v.W0 = v.T1
v.TPa = v.T1 + 10; v.TPb = v.T1 + 12; v.IEb = v.T1 + 14; v.OH0 = v.pF1

sWS, sP, sE, sX, sOUT, sD, sS = 24, 28, 32, 36, 40, 44, 48
sG, sC, sTg, sTile, sTsw, sTag, sRing, sEdst, sMode, sRound, sRole, sElim = 52, 53, 54, 55, 56, 57, 58, 59, 60, 61, 62, 63
sM = 64
sWm = 64; sDB = 68
sTB = 80
sUT = 82; sNoE = 83; sK3F = 84; sT0, sT1 = 85, 86; sRel = 87; sUoff = 88; sPair = 89
sN40 = 36; sG1 = 38; sSl = 101; sE0 = 100; sOff = 61

OPT = {}
def P(r): return f"v[{r}:{r+1}]"
def mfma(d, a, b, c=None):
    return f"v_mfma_f32_32x32x16_bf16 {vr(d,16)}, {vr(a,4)}, {vr(b,4)}, {vr(d,16) if c is None else c}"
def pi8v(m):
    return ((m & 5) << 5) | ((m & 18) << 2) | ((m & 8) << 1)

def tables():
    rows = []
    for l in range(64):
        m, h = l & 31, l >> 5
        a16 = 16 + ((l & 8) << 3) + ((l & 3) << 4)
        n_ = l - N0 if l >= N0 else l
        a16n = 16 + ((n_ & 8) << 3) + ((n_ & 3) << 4)
        ohb = (a16n << (16 + 8 * ((n_ >> 2) & 1))) if l < 40 else 0
        sel = a16 if ((l >> 2) & 1) == h else 0
        d = dict(
            E_=m * 32 + (((h ^ (m >> 3)) & 1) << 4) + EA - 3072,
            R1=pi8v(l >> 2) + REC, R2=pi8v(m) + h + 2 + REC, Re=pi8v(l >> 1) + 4 + REC,
            P0=m * 64 + ((((m >> 2) ^ (2 * h)) & 3) << 4) + RING,
            EB=(l >> 2) * CH,
            QC=(l >> 4) * 3072 + ((l & 4) << 2) + (l & 8) + ((l & 3) << 1) + EA + 2048,
            OHB=ohb, FRo=(l & 3) * 4 + FLG,
            IXo=(((l >> 4) ^ l) & 3) << 4, IEo=(((l >> 4) ^ l) & 1) << 4,
            S0a=sel if m < 16 else 0, S1a=sel if m >= 16 else 0,
            TRA=(l & 3) * 8 + ((l >> 2) & 3) * 256 + (((l >> 2) & 3) << 6) + ((l >> 4) & 1) * 32,
            OAl=(m * 256 + h * 16) if m < N0 else 0x40000000, Z_=(m * 256 + h * 16) if m < N1 else 0x40000000)
        rows.append([d[n] for n in TABN])
    out = []
    for b in range(4):
        for l in range(64):
            out.append(".long " + ", ".join(f"{x:#x}" for x in rows[l][4*b:4*b+4]))
    img = [0] * 256
    for e_ in range(8):
        img[4 * (e_ + 1) + (e_ >> 1)] = 0x3f80 << (16 * (e_ & 1))
    for i in range(128, 256): img[i] = 0xffffffff
    for i in range(0, 256, 4):
        out.append(".long " + ", ".join(f"{x:#x}" for x in img[i:i+4]))
    for i in range(64):
        out.append(".long 0xffff, 0xffffffff, 0xffff, 0xffffffff")
    return "\n".join(out) + "\n"

def lst(A, k, variant, r):
    pb = OPT.get("pb")
    if pb and variant == "fast":
        for it in str(pb).split(","):
            kk_, pos, ln = it.split(":")
            if (kk_ == "a" or int(kk_) == k) and int(pos) == r: A(f"s_nop {ln}")
    if OPT.get("ls") and variant == "fast" and k == OPT["ls"] - 1: A(f"s_memtime s[{r}:{r+1}]")

def u_load(A, i):
    off = (i >> 3) * 32768 + (i & 7) * 1024
    A(f"s_add_u32 s22, s{sUoff}, {off & ~4095}")
    A(f"buffer_load_dwordx4 {vr(v.U1+4*i,4)}, v{v.t3}, {sr(sWS,4)}, s22 offen offset:{off & 4095}")

def chain(A, k, variant, exit_label, ool, pre=False, mid=None):
    kk = k if k < 3 else -1
    safe = variant == "safe"
    EK = 3
    def tilestep():
        if pre: return
        if not safe: A(f"s_add_u32 s{sTile}, s{sTile}, 1")
        lsw = A.label("sw"); lswb = A.label("swb")
        A(f"s_cmp_eq_u32 s{sTile}, s{sTsw}")
        A(f"s_cbranch_scc1 {lsw}")
        A(f"{lswb}:")
        ool.append(f"{lsw}:\nv_mov_b32 v{v.QF}, v{v.QS+2}\nv_mov_b32 v{v.QF+1}, v{v.QS+3}\ns_nop 0\ns_branch {lswb}")
    if not pre:
        A(f"s_setprio {3 if OPT.get('y2', 0) else 2}")
        if safe:
            A(f"s_add_u32 s{sTile}, s{sTile}, 1")
            A(f"s_cmp_ge_u32 s{sTile}, s{sTg}")
            A(f"s_cbranch_scc1 {exit_label}")
        lst(A, k, variant, 10)
    A("s_waitcnt lgkmcnt(0)")
    n = 4 + (1 if ((k - 1) & 3) == EK or ((k - 2) & 3) == EK else 0)
    if k == 1: n = 2
    if pre: n = 4
    k2_ = kk + 2
    eread = f"ds_read_b128 {vr(v.eF,4)}, v{v.E_} offset:{3072 + (k2_ >> 1) * 3072 + (k2_ & 1) * 1024}"
    if k % 2 == 0:
        A(mfma(v.ACC, v.MSG, v.aggF))
        if k == 2: A(f"ds_read_b32 v{v.FV}, v{v.FR}")
        tilestep()
    A(mfma(v.T, v.eF, v.W3F, "0"))
    if k % 2 == 1: tilestep()
    if k != 2: A(eread)
    else: A(f"ds_read_b32 v{v.IE}, v{v.Re} offset:{2 * 1024}")
    A(mfma(v.T, v.ohF, v.QF))
    A(f"ds_read_b128 {vr(v.ohF,4)}, v{v.OHA}")
    A(f"ds_read_u8 v{v.OHA}, v{v.R2} offset:{(kk + 3) * 256}")
    if k % 2 == 1 and not pre:
        A(f"ds_read_b128 {vr(v.aggF,4)}, v{v.E_} offset:{(1 if k == 1 else 0) * 3072 + 2048}")
    A(mfma(v.T, v.pF0, v.SEL0))
    if k == 2:
        A("s_waitcnt lgkmcnt(3)")
        A(f"v_cmp_gt_u32 vcc, v{v.PROG}, v{v.FV}")
    if k == EK:
        if safe:
            A(f"s_cmp_lg_u32 s{sNoE}, 0")
            A(f"s_cselect_b32 s{sEdst}, s{sElim}, s{sEdst}")
        A(f"s_cmp_lt_u32 s{sEdst}, s{sElim}")
        if pre: A(f"s_cselect_b32 s23, s{sEdst}, {JUNK}")
        else: A(f"s_cselect_b32 m0, s{sEdst}, {JUNK}")
        A(f"s_add_u32 s{sEdst}, s{sEdst}, 6144")
    else:
        A(f"s_add_u32 m0, s{sRing}, {((k + 1) & 3) * 2048}")
    A(mfma(v.T, v.pF1, v.SEL1))
    A(f"s_setprio 0")
    lst(A, k, variant, 14)
    n_after = 1
    if k == 2:
        lw = A.label("fw"); lb = A.label("fb")
        if safe:
            A(f"s_cmp_lg_u32 s{sNoE}, 0")
            A(f"s_cbranch_scc1 {lb}")
        A(f"s_cbranch_vccnz {lw}")
        A(f"{lb}:")
        A(eread)
        ool.append(f"{lw}:\nds_read_b32 v{v.FV}, v{v.FR}\ns_waitcnt lgkmcnt(0)\nv_cmp_gt_u32 vcc, v{v.PROG}, v{v.FV}\ns_cbranch_vccnz {lw}\ns_branch {lb}")
        n_after += 2
    if mid:
        mid()
        A("s_mov_b32 m0, s23")
    A(f"s_waitcnt vmcnt({n})" + (" lgkmcnt(0)" if pre else ""))
    n_after += 1
    if k == EK:
        A(f"buffer_load_dwordx4 {P(v.IE)}, {sr(sE,4)}, 0 idxen offen lds")
        A(f"s_add_u32 m0, s{sRing}, {((k + 1) & 3) * 2048}")
        n_after += 2
    A(f"ds_read_b128 {vr(v.pF0,4)}, v{v.P0} offset:{((k + 2) & 3) * 2048}")
    A(f"buffer_load_dwordx4 {P(v.IX0)}, {sr(sP,4)}, 0 idxen offen lds")
    A(f"s_add_u32 m0, s{sRing}, {((k + 1) & 3) * 2048 + 1024}")
    A(f"ds_read_b128 {vr(v.pF1,4)}, v{v.P1} offset:{((k + 2) & 3) * 2048}")
    A(f"buffer_load_dwordx4 {P(v.IX1)}, {sr(sP,4)}, 0 idxen offen lds")
    A(f"ds_read_u16 v{v.IX0}, v{v.R1} offset:{(kk + 6) * 256}")
    A(f"ds_read_u16 v{v.IX1}, v{v.R1} offset:{(kk + 6) * 256 + 64}")
    n_after += 7
    if k == 1:
        l1 = A.label("nf")
        if safe:
            A(f"s_cmp_lg_u32 s{sNoE}, 0")
            A(f"s_cbranch_scc1 {l1}")
        A("s_mov_b64 exec, 1")
        A(f"ds_write_b32 v{v.FW}, v{v.PROG}")
        A("s_mov_b64 exec, -1")
        if safe: A(f"{l1}:")
        else: n_after += 3
    if not safe and not pre:
        n_after += 2
    if n_after < 12:
        A(f"s_nop {12 - n_after - 1}")
    dl = OPT.get("dl", 0)
    if dl and not safe and not pre:
        ld_ = A.label("dl")
        A(f"s_cmp_lg_u32 s{sG}, 0")
        A(f"s_cbranch_scc1 {ld_}")
        d_ = dl + (OPT.get("dl4", 8) if k % 2 == 1 else 0)
        while d_ > 0:
            A(f"s_nop {min(d_, 16) - 1}"); d_ -= 16
        A(f"{ld_}:")
    if not safe and not pre:
        lv = A.label("uv"); lvb = A.label("vb")
        A(f"s_cmp_ge_u32 s{sTile}, s{sT0}")
        A(f"s_cbranch_scc1 {lv}")
        A(f"{lvb}:")
        B = Asm()
        B(f"{lv}:")
        B(f"s_sub_u32 s23, s{sTile}, s{sUT}")
        B(f"s_cmp_ge_u32 s23, 8")
        B(f"s_cbranch_scc1 {lv}y")
        B(f"s_cmp_ge_u32 s23, 4")
        B(f"s_cbranch_scc1 {lv}x")
        u_load(B, 2*k); u_load(B, 2*k+1)
        B(f"s_branch {lvb}")
        B(f"{lv}x:")
        u_load(B, 8+2*k); u_load(B, 8+2*k+1)
        B(f"{lv}y:")
        B(f"s_cmp_eq_u32 s{sTile}, s{sT1}")
        B(f"s_cbranch_scc1 K2_LAST{(k + 1) & 1}")
        B(f"s_branch {lvb}")
        ool.append(B.text())
    lst(A, k, variant, 12)

def stretch(A, k, variant, ool, last=False):
    T = v.T; E = v.E
    order = [0, 1, 8, 9, 2, 3, 10, 11, 4, 5, 12, 13, 6, 7, 14, 15]
    lst(A, k, variant, 94)
    al = OPT.get("ya", 3)
    if al and variant != "safe":
        xb = 80 + 4 + (48 if last else (32 if k == 3 else 0) + (4 if k == 0 else 0))
        A(f".p2align {al}")
        pad = (-xb + OPT.get("yo", 0)) % (1 << al)
        for _ in range(pad // 4): A("s_nop 0")
    for i, r in enumerate(order):
        if last and i % 3 == 0:
            A(mfma(v.T1, v.U1 + 4*(i//3), v.XF + 4*(i//3), "0" if i == 0 else None))
        A(f"v_exp_f32 v{E+r}, v{T+r}")
        if i == OPT.get("acq", 0) - 1: A("s_setprio 1")
    if variant != "safe":
        for r in range(4):
            A(f"v_rcp_f32 v{v.RS+r}, v{v.DS+r}")
    if last: k = k & 1 | 4
    if k == 3:
        for s in (f"v_add_u32 v{v.E_}, 6144, v{v.E_}", f"v_add_u32 v{v.R1}, 1024, v{v.R1}",
                  f"v_add_u32 v{v.R2}, 1024, v{v.R2}", f"v_add_u32 v{v.Re}, 1024, v{v.Re}"): A(s)
    if k == 0:
        A(f"v_add_u32 v{v.PROG}, 1, v{v.PROG}")
    lst(A, k, variant, 4)
    if OPT.get("acq", 0) == 0: A("s_setprio 1")
    elif OPT.get("y2", 0): A("s_setprio 2")
    mo = v.MSG + 2 * ((k + 1) % 2)
    if variant != "safe":
        A(f"v_pk_fma_f32 {P(v.S)}, {P(v.DS)}, {P(v.DS+2)}, {P(v.S)}")
        A(f"v_pk_mul_f32 {P(v.NS)}, {P(v.NS)}, {P(v.RS)}")
        A(f"v_pk_mul_f32 {P(v.NS+2)}, {P(v.NS+2)}, {P(v.RS+2)}")
    A(f"v_cvt_pk_bf16_f32 v{mo}, v{v.NS}, v{v.NS+1}")
    A(f"v_cvt_pk_bf16_f32 v{mo+1}, v{v.NS+2}, v{v.NS+3}")
    lst(A, k, variant, 6)
    if variant != "safe":
        ops = []
        for gi, g in enumerate((0, 8)):
            t, e = T + g, E + g
            o = [f"v_pk_add_f32 {P(e)}, {P(e)}, {P(v.ONE)}"]
            for u in (1, 2, 3):
                o.append(f"v_pk_fma_f32 {P(t)}, {P(t)}, {P(e+2*u)}, {P(t)}")
                o.append(f"v_pk_fma_f32 {P(t if u < 3 else v.NS+2*gi)}, {P(t+2*u)}, {P(e)}, {P(t)}")
                o.append(f"v_pk_fma_f32 {P(e if u < 3 else v.DS+2*gi)}, {P(e)}, {P(e+2*u)}, {P(e)}")
            ops.append(o)
        for a, b in zip(*ops):
            A(a); A(b)
    else:
        for r in range(0, 16, 2):
            A(f"v_pk_add_f32 {P(E+r)}, {P(E+r)}, {P(v.ONE)}")
        for r in range(16):
            A(f"v_rcp_f32 v{E+r}, v{E+r}")
        A("s_nop 0")
        for u in range(4):
            for gi, g in enumerate((0, 8)):
                if u == 0:
                    A(f"v_pk_mul_f32 {P(T+g)}, {P(T+g)}, {P(E+g)}")
                else:
                    A(f"v_pk_fma_f32 {P(T+g if u < 3 else v.NS+2*gi)}, {P(T+g+2*u)}, {P(E+g+2*u)}, {P(T+g)}")
    lst(A, k, variant, 8)

def gen(opt):
    OPT.clear(); OPT.update(opt)
    A = Asm()
    L = v.lane
    ST = opt.get("stamp", 0)
    PTS = opt.get("pts", "").split(",") if opt.get("pts") else []
    PSL = [44, 46, 48, 50, 96]
    def pt(name):
        if name in PTS:
            r = PSL[PTS.index(name)]
            A(f"s_memtime s[{r}:{r+1}]")
    def stamp(r, real=False):
        if PTS and r == 96: return
        if opt.get("ls") and r in (94, 4, 6, 8, 10, 12, 14): return
        if ST: A(f"s_mem{'real' if real else ''}time s[{r}:{r+1}]")
    ool = []
    STF = opt.get("stf", "sc0_sc1").replace("_", " ")
    WV = v.eF; XV = v.eF + 1; H = v.eF + 2; TRA = v.TRA
    A(f"{KNAME}:")
    stamp(90); stamp(92, True)
    A(f"s_cmp_ge_u32 s2, {NWG}")
    A("s_cbranch_scc1 K_END")
    load_ptrs(A)
    A(f"""
    v_lshrrev_b32 v{v.t0}, 6, v0
    v_and_b32 v{L}, 63, v0
    v_readfirstlane_b32 s3, v{v.t0}
    v_lshlrev_b32 v{v.t3}, 4, v{L}
    s_getpc_b64 {sr(sTB,2)}
    s_add_u32 s{sTB}, s{sTB}, K_TABLE@rel32@lo+4
    s_addc_u32 s{sTB+1}, s{sTB+1}, K_TABLE@rel32@hi+12
    global_load_dwordx4 {vr(v.SEL1,4)}, v{v.t3}, {sr(sTB,2)} offset:3072
    global_load_dwordx4 {vr(v.TAB,4)}, v{v.t3}, {sr(sTB,2)}
    global_load_dwordx4 {vr(v.TAB+4,4)}, v{v.t3}, {sr(sTB,2)} offset:1024
    global_load_dwordx4 {vr(v.SEL0,4)}, v{v.t3}, {sr(sTB,2)} offset:2048
    v_lshlrev_b32 v{v.t2}, 4, v0
    v_lshrrev_b32 v{WV}, 2, v{v.t3}
    v_lshrrev_b32 v{XV}, 4, v{v.t2}
    v_and_b32 v{WV}, 0xc0, v{WV}
    v_and_b32 v{XV}, 0xf0, v{XV}
    v_xor_b32 v{WV}, v{WV}, v{v.t3}
    v_xor_b32 v{XV}, v{XV}, v{v.t2}
    s_lshr_b32 s{sG}, s3, 2
    s_and_b32 s{sC}, s3, 3
    s_cmp_lt_u32 s2, 8
    s_cbranch_scc1 K_LOW
    K_LOWB:
    s_sub_u32 s23, s2, 3
    s_lshr_b32 s{sSl}, s23, 3
    s_cmp_ge_u32 s23, {NCHUNK}
    s_cselect_b32 s{sRole}, {1 - opt.get("r1f", 1)}, {opt.get("r1f", 1)}
    s_cselect_b32 s22, {NCHUNK}, 0
    s_sub_u32 s{sPair}, s23, s22
    s_lshl_b32 s2, s{sPair}, 1
    s_add_u32 s2, s2, s{sRole}
    s_mul_i32 s{sUT}, s{sPair}, {80*256}
    s_sub_u32 s{sX+2}, {N*256}, s{sUT}
    s_mov_b32 s{sX+3}, 0x00020000
    s_lshl_b32 s76, s3, 10
    s_add_u32 s77, s3, s{sSl}
    s_and_b32 s77, s77, {7 if opt.get("rot", 1) else 0}
    {"" if opt.get("rot", 1) else "s_mov_b32 s77, s3"}
    s_lshl_b32 s77, s77, 12
    s_cmp_eq_u32 s{sRole}, 0
    s_waitcnt lgkmcnt(0)
    """)
    def wsadj():
        if opt.get("wsoff"):
            A(f"s_add_u32 s{PWS}, s{PWS}, {opt['wsoff'] << 20}")
            A(f"s_addc_u32 s{PWS+1}, s{PWS+1}, 0")
    A(f"s_mov_b32 s22, {WS_TAG}")
    A(f"s_load_dword s{sTag}, s[{PWS}:{PWS+1}], s22")
    A("s_cbranch_scc0 K_GEMM")
    ool.append(f"""K_LOW:
    s_cmp_lg_u32 s3, 7
    s_cbranch_scc1 K_LOW2
    s_getpc_b64 s[22:23]
    K_PC:
    s_sub_u32 s22, s22, K_PC-{KNAME}
    s_subb_u32 s23, s23, 0
    v_lshlrev_b32 v{v.JK}, 7, v{L}
    v_add_u32 v{v.JK2}, 0x2000, v{v.JK}
    v_min_u32 v{v.JK2}, K_CODE_END-{KNAME}-4, v{v.JK2}
    global_load_dword v{v.PROG}, v{v.JK}, s[22:23]
    global_load_dword v{v.FV}, v{v.JK2}, s[22:23]
    K_LOW2:
    s_cmp_lt_u32 s2, 3
    s_cbranch_scc1 K_SPECIAL
    s_branch K_LOWB""")
    def xdma(n):
        A(f"""
        s_add_u32 s{sX}, s{PX}, s{sUT}
        s_addc_u32 s{sX+1}, s{PX+1}, 0
        s_add_u32 m0, s76, {L_X}
        s_movk_i32 s23, 0x2000
        buffer_load_dwordx4 v{XV}, {sr(sX,4)}, 0 offen lds
        s_add_u32 m0, s76, {L_X + 8192}
        s_movk_i32 s22, 0x4000
        buffer_load_dwordx4 v{XV}, {sr(sX,4)}, s23 offen lds
        """)
        if n == 3:
            A(f"s_add_u32 m0, s76, {L_X + 16384}")
            A("s_nop 0")
            A(f"buffer_load_dwordx4 v{XV}, {sr(sX,4)}, s22 offen lds")
    def wdma(soff, lds):
        A(f"s_add_u32 m0, s77, {lds}")
        if soff: A(f"s_add_u32 s22, s77, {soff}")
        else: A("s_nop 0")
        for q in range(4):
            A(f"buffer_load_dwordx4 v{WV}, {sr(sWm,4)}, s{22 if soff else 77} offen offset:{q*1024} lds")
    def w23dma(w2=True):
        if w2: wdma(32768, L_W2)
        A(f"s_add_u32 m0, s76, {L_W3}")
        A(f"s_add_u32 s22, s76, 65536")
        A(f"buffer_load_dwordx4 v{WV}, {sr(sWm,4)}, s22 offen lds")
    def sconsts():
        srd(A, sP, PWS, 0 if opt.get('nop') else N, stride=256)
        srd(A, sE, PE, 0 if opt.get('noe') else E, stride=32)
        srd(A, sOUT, POUT, N * 256)
        A(f"""
        s_mov_b32 s{sMode}, 0
        s_mov_b32 s{sNoE}, 0
        s_movk_i32 s{sK3F}, 0x3fff
        s_lshl_b32 s{sRing}, s3, 13
        s_lshr_b32 s22, s{sC}, 1
        s_mul_i32 s22, s22, 3072
        s_bfe_u32 s23, s{sC}, 0x10000
        s_lshl_b32 s23, s23, 10
        s_add_u32 s22, s22, s23
        s_mul_i32 s{sElim}, s{sG}, {GEA}
        s_add_u32 s{sE0}, s{sElim}, s22
        s_add_u32 s{sE0}, s{sE0}, {EA}
        s_mul_i32 s{sRel}, s2, 10240
        s_add_u32 s{sRel}, s{sRel}, 8448
        """)
    def vconsts():
        A(f"""
        v_add_u32 v{v.P0}, s{sRing}, v{v.P0}
        v_add_u32 v{v.E_}, s{sElim}, v{v.E_}
        s_mul_i32 s22, s{sG}, {GSL*8}
        v_xor_b32 v{v.P1}, 16, v{v.P0}
        v_add_u32 v{v.R1}, s22, v{v.R1}
        v_add_u32 v{v.R2}, s22, v{v.R2}
        s_lshl_b32 s23, s{sC}, 8
        s_add_u32 s22, s22, s23
        v_add_u32 v{v.Re}, s22, v{v.Re}
        s_lshl_b32 s22, s{sC}, 6
        v_or_b32 v{v.IX0+1}, s22, v{v.IXo}
        v_or_b32 v{v.IX1+1}, s22, v{v.IXo}
        v_xor_b32 v{TRA}, s22, v{TRA}
        s_mul_i32 s23, s2, 40
        s_mul_i32 s78, s{sG}, {N0}
        s_add_u32 s23, s23, s78
        s_lshl_b32 s23, s23, 8
        s_add_u32 s23, s23, s22
        s_cmp_eq_u32 s{sG}, 0
        s_cselect_b64 vcc, -1, 0
        v_cndmask_b32 v{v.OA}, v{v.Z_}, v{v.OAl}, vcc
        v_add_u32 v{v.OA}, s23, v{v.OA}
        v_mov_b32 v{v.IE+1}, v{v.IEo}
        s_mul_i32 s22, s3, {16*CH}
        v_add_u32 v{v.EB}, s22, v{v.EB}
        s_mul_i32 s22, s3, {4*3072}
        v_add_u32 v{v.QC}, s22, v{v.QC}
        s_lshl_b32 s22, s3, 2
        v_add_u32 v{v.FW}, s22, v{v.FRo}
        s_lshl_b32 s22, s{sG}, 4
        v_add_u32 v{v.FR}, s22, v{v.FRo}
        v_lshrrev_b32 v{H}, 5, v{L}
        s_add_u32 s{sRing}, s{sRing}, {RING}
        s_mul_i32 s{sElim}, s{sG}, {GEA1}
        s_add_u32 s{sElim}, s{sElim}, {EA + GEA}
        """)
    def lds_init():
        A(f"""
        s_mul_i32 s22, s3, 3072
        s_add_u32 m0, s22, {EA + 2048}
        s_brev_b32 s23, 2
        buffer_load_dwordx4 v{v.t3}, {sr(sWS,4)}, s23 offen lds
        s_add_u32 m0, s22, {EA + 2048 + 24576}
        s_cmp_lt_u32 s3, 2
        buffer_load_dwordx4 v{v.t3}, {sr(sWS,4)}, s23 offen lds
        s_cselect_b32 s78, 0, {JUNK - (EA + 2048 + 73728) - 7 * 3072}
        s_add_u32 m0, s22, {EA + 2048 + 49152}
        s_cselect_b32 s79, s22, {7 * 3072}
        buffer_load_dwordx4 v{v.t3}, {sr(sWS,4)}, s23 offen lds
        """.replace("s_cselect_b32 s78, 0, " + str(JUNK - (EA + 2048 + 73728) - 7 * 3072) + "\n", "").replace(
            f"        s_add_u32 m0, s22, {EA + 2048 + 49152}\n        s_cselect_b32 s79, s22, {7 * 3072}\n",
            f"        s_cselect_b32 s79, s22, {JUNK - (EA + 2048 + 73728)}\n        s_add_u32 m0, s22, {EA + 2048 + 49152}\n        s_lshl_b32 s22, s3, 10\n"))
        A(f"""
        s_add_u32 m0, s79, {EA + 2048 + 73728}
        s_add_u32 s78, s{sTB}, 4096
        buffer_load_dwordx4 v{v.t3}, {sr(sWS,4)}, s23 offen lds
        s_addc_u32 s79, s{sTB+1}, 0
        s_add_u32 m0, s22, {REC - 1024}
        s_cmp_eq_u32 s3, 7
        global_load_lds_dwordx4 v{v.t3}, s[78:79] offset:1024
        s_cbranch_scc1 {A.label('i7')}
        """)
        l7 = f"L_i7_{A.uid}"
        A(f"""
        s_add_u32 m0, s22, {REC + 8192 - 1024}
        s_nop 0
        global_load_lds_dwordx4 v{v.t3}, s[78:79] offset:1024
        {l7}b:
        """)
        ool.append(f"{l7}:\ns_mov_b32 m0, 0\ns_nop 0\nglobal_load_lds_dwordx4 v{v.t3}, s[78:79]\ns_branch {l7}b")
    def tagget(x):
        pass
    def tagfix():
        A(f"s_add_u32 s{sTag}, s{sTag}, 2")
        A(f"s_or_b32 s{sTag}, s{sTag}, 0x40000001")
    def xred(regs, xs, pats=("quad_perm:[1,0,3,2]", "quad_perm:[2,3,0,1]")):
        for r, x in zip(regs, xs): A(f"v_bitop3_b32 v{x}, v{r}, v{r+1}, v{r+2} bitop3:0x96")
        for r, x in zip(regs, xs): A(f"v_xor_b32 v{x}, v{x}, v{r+3}")
        for pat in pats:
            if len(xs) < 3: A(f"s_nop {2 - len(xs)}")
            for x in xs: A(f"v_xor_b32_dpp v{x}, v{x}, v{x} {pat} row_mask:0xf bank_mask:0xf")
    def tagload(lbl):
        pass
    def qaddr():
        XA = v.E; GA = v.E + 1; TN = v.E + 2
        A(f"""
        s_mul_i32 s22, s{sG}, {N0}
        s_mul_i32 s23, s{sRole}, 40
        s_add_u32 s22, s22, s23
        v_and_b32 v{XA}, 31, v{L}
        v_add_u32 v{XA}, s22, v{XA}
        v_xor_b32 v{GA}, v{XA}, v{H}
        v_and_b32 v{GA}, 15, v{GA}
        v_lshl_or_b32 v{XA}, v{XA}, 4, v{GA}
        s_mov_b32 s22, {L_X}
        v_lshl_add_u32 v{XA}, v{XA}, 4, s22
        v_lshl_add_u32 v{TN}, v{H}, 11, v{TRA}
        v_add_u32 v{TN}, {L_W2}, v{TN}
        """)
    def qreads():
        XA = v.E; GA = v.E + 1; TN = v.E + 2
        for s_ in range(8):
            A(f"ds_read_b64_tr_b16 {vr(v.WA+4*s_,2)}, v{TN} offset:{s_*4096}")
            A(f"ds_read_b64_tr_b16 {vr(v.WA+4*s_+2,2)}, v{TN} offset:{s_*4096+1024}")
            if s_: A(f"v_xor_b32 v{GA}, {s_*32}, v{XA}")
            A(f"ds_read_b128 {vr(v.XF+4*s_,4)}, v{GA if s_ else XA}")
        A(f"ds_read_b64_tr_b16 {vr(v.W3F,2)}, v{TN} offset:32768")
        A(f"ds_read_b64_tr_b16 {vr(v.W3F+2,2)}, v{TN} offset:33792")
    def qmfma(per=3):
        for s_ in range(8):
            A(f"s_waitcnt lgkmcnt({min(15, per*(7-s_) + 2)})")
            A(mfma(v.E, v.XF + 4*s_, v.WA + 4*s_, "0" if s_ == 0 else None))
            A(f"v_mov_b64 {P(v.ACC+2*s_)}, 0")
        A(f"""
        s_mov_b32 s72, {NEG_LOG2E:#x}
        v_cmp_gt_u32 {sr(sN40,2)}, 40, v{L}
        v_cmp_le_u32 {sr(sG1,2)}, {N0}, v{L}
        v_mov_b32 v{v.ONE}, 1.0
        v_mov_b32 v{v.ONE+1}, 1.0
        s_waitcnt lgkmcnt(0)
        """)
        for r in range(4):
            A(f"""
            v_lshlrev_b32 v{v.S}, 16, v{v.W3F+r}
            v_and_b32 v{v.S+1}, 0xffff0000, v{v.W3F+r}
            v_mul_f32 v{v.S}, s72, v{v.S}
            v_mul_f32 v{v.S+1}, s72, v{v.S+1}
            v_cvt_pk_bf16_f32 v{v.W3F+r}, v{v.S}, v{v.S+1}
            """)
    def post(x):
        A(f"""
        s_cmp_lg_u32 s3, 0
        s_cbranch_scc1 K_NP{x}
        v_readfirstlane_b32 s{sTag}, v{v.FV}
        s_cmp_eq_u32 s{sTag}, 0
        s_cbranch_scc1 K_TAG{x}
        K_TAGOK{x}:
        s_mov_b64 exec, 1
        buffer_store_dword v{v.FV}, off, {sr(sWS,4)}, s{sUoff} sc1
        s_mov_b64 exec, -1
        K_NP{x}:
        """)
        ool.append(f"K_TAG{x}:\nbuffer_load_dword v{v.FV}, off, {sr(sDB,4)}, 0 sc1\ns_waitcnt vmcnt(0)\nv_readfirstlane_b32 s{sTag}, v{v.FV}\ns_cmp_eq_u32 s{sTag}, 0\ns_cbranch_scc1 K_TAG{x}\ns_branch K_TAGOK{x}")
    MC = opt.get("mc", 0)
    D, S, RK, AD = v.T, v.T + 8, v.T1, v.T1 + 8
    CW = v.E
    A(f"s_mul_i32 s22, s{sPair}, {CH*4}")
    srd(A, sD, PDST, CH * 4, add="s22")
    A(f"""
    v_lshlrev_b32 v{v.t1}, 2, v0
    s_movk_i32 s23, 0x2000
    buffer_load_dwordx4 {vr(D,4)}, v{v.t2}, {sr(sD,4)}, 0 offen
    buffer_load_dword v{D+4}, v{v.t1}, {sr(sD,4)}, s23 offen
    """)
    srd(A, sS, PSRC, CH * 4, add="s22")
    A(f"""
    buffer_load_dwordx4 {vr(S,4)}, v{v.t2}, {sr(sS,4)}, 0 offen
    buffer_load_dword v{S+4}, v{v.t1}, {sr(sS,4)}, s23 offen
    v_mov_b64 {P(CW)}, -1
    v_mov_b64 {P(CW+2)}, -1
    v_mov_b32 v{CW+4}, 16
    ds_write_b128 v{v.t2}, {vr(CW,4)}
    ds_write_b128 v{v.t2}, {vr(CW,4)} offset:8192
    ds_write_b128 v{v.t2}, {vr(CW,4)} offset:16384
    ds_write_b128 v{v.t2}, {vr(CW,4)} offset:24576
    ds_write_b32 v{v.t1}, v{CW+4} offset:32768
    """)
    srd(A, sWm, PWM, 272 * 256)
    EARLY0 = opt.get("e0", 0)
    P0M = opt.get("p0", 2)
    if P0M == 1:
        xdma(2); w23dma(False)
    nb0 = 3 if P0M == 1 else 0
    srd(A, sWS, PWS, 0x10000000 if (opt.get('rw') or opt.get('dup')) else (WS_END if not ST else 0x1000000))
    PW = opt.get("pw", 0)
    PW1 = PW >= 1; PW = PW == 1
    if PW:
        A(f"""
        s_lshl_b32 s78, s{sPair}, 15
        s_add_u32 s78, s78, {WS_CELL}
        """)
        for q in range(4):
            A(f"buffer_store_dwordx4 {vr(CW,4)}, v{v.t2}, {sr(sWS,4)}, s78 offen {STF}")
            if q < 3: A("s_add_u32 s78, s78, 8192")
    if PW: nb0 += 4
    if opt.get("cl"):
        A(f"""
        v_lshlrev_b32 v{CW+6}, 7, v{L}
        s_mul_i32 s22, s3, 2560
        s_add_u32 s22, s22, s{sUT}
        s_mov_b32 exec_lo, 0xfffff
        s_mov_b32 exec_hi, 0
        buffer_store_dword v{CW}, v{CW+6}, {sr(sWS,4)}, s22 offen {STF}
        s_mov_b64 exec, -1
        """)
        nb0 += 1
    sconsts()
    A(f"""
    v_lshlrev_b32 v{CW+6}, 22, v0
    v_add_u32 v{CW+7}, 0x800, v0
    v_lshlrev_b32 v{CW+7}, 20, v{CW+7}
    v_mov_b32 v{CW+5}, 16
    s_mov_b32 s72, -10
    s_mov_b32 s73, 0x100000
    s_mov_b32 s74, 0x200000
    s_mov_b32 s75, 0x300000
    s_lshl_b32 s78, s{sPair}, 6
    v_lshrrev_b32 v{CW+10}, 2, v0
    v_and_b32 v{CW+11}, 3, v0
    v_lshlrev_b32 v{CW+11}, 4, v{CW+11}
    v_lshl_add_u32 v{CW+12}, v{CW+10}, 13, v{CW+11}
    v_mul_u32_u24 v{CW+10}, 10240, v{CW+10}
    v_add_u32 v{CW+10}, v{CW+10}, v{CW+11}
    s_movk_i32 s79, {31*16}
    s_waitcnt lgkmcnt(0)
    s_barrier
    s_add_u32 s{sTag}, s{sTag}, 2
    s_or_b32 s{sTag}, s{sTag}, 0x40000001
    s_waitcnt vmcnt({2 + nb0})
    """)
    stamp(94)
    t = CW + 8
    for j in range(5):
        A(f"""
        v_mul_u32_u24 v{AD+j}, 0xcccd, v{D+j}
        v_lshrrev_b32 v{AD+j}, 19, v{AD+j}
        v_and_b32 v{AD+j}, -4, v{AD+j}
        ds_add_rtn_u32 v{RK+j}, v{AD+j}, v{CW+5} offset:32768
        """)
    if P0M == 1:
        wdma(32768, L_W2); nb0 += 4
    if P0M == 2:
        xdma(2); w23dma(); nb0 += 7
    for j in range(5):
        A(f"v_mad_i32_i24 v{D+j}, v{AD+j}, s72, v{D+j}")
    A(f"s_waitcnt vmcnt({nb0})")
    for j in range(5):
        d = D + j
        A(f"v_lshl_or_b32 v{d}, v{d}, 14, v{S+j}")
        if j == 0: A(f"v_add_u32 v{d}, v{d}, v{CW+6}")
        elif j < 4: A(f"v_add3_u32 v{d}, v{d}, v{CW+6}, s{72+j}")
        else: A(f"v_add_u32 v{d}, v{d}, v{CW+7}")
    A("s_waitcnt lgkmcnt(0)")
    pt("rk")
    A(f"v_max3_u32 v{t}, v{RK}, v{RK+1}, v{RK+2}")
    A(f"v_max3_u32 v{t}, v{t}, v{RK+3}, v{RK+4}")
    A(f"v_cmp_le_u32 vcc, s79, v{t}")
    A("s_cbranch_vccnz K_BOVF")
    A("K_BOVB:")
    B = Asm()
    B("K_BOVF:")
    B(f"v_mov_b32 v{t}, -2")
    for j in range(5):
        B(f"v_cmp_le_u32 vcc, s79, v{RK+j}")
        B(f"v_min_u32 v{RK+j}, s79, v{RK+j}")
        B("s_nop 0")
        B(f"v_cndmask_b32 v{D+j}, v{D+j}, v{t}, vcc")
    B("s_branch K_BOVB")
    ool.append(B.text())
    OT = opt.get("ot", 10)
    if OT:
        for j in range(0, 4, 2): A(f"v_mov_b64 {P(v.U1+j)}, {P(D+j)}")
        A(f"v_mov_b32 v{v.U1+4}, v{D+4}")
    for j in range(5):
        r = RK + j
        A(f"""
        v_lshrrev_b32 v{t}, 4, v{r}
        v_and_b32 v{t+1}, 0x100, v{r}
        v_and_b32 v{r}, 0x30, v{r}
        v_and_or_b32 v{r}, v{t}, 12, v{r}
        v_lshl_or_b32 v{r}, v{t+1}, 6, v{r}
        v_lshl_add_u32 v{r}, v{AD+j}, 4, v{r}
        ds_write_b32 v{r}, v{D+j}
        """)
    A(f"""
    s_add_u32 s73, s78, {128*10240}
    s_add_u32 s74, s78, {WS_CELL}
    s_add_u32 s75, s74, {128*8192}
    s_movk_i32 s22, {1000 - 512}
    v_cmp_gt_u32 s[70:71], s22, v0
    s_not_b32 s22, s{sTag}
    s_waitcnt lgkmcnt(0)
    s_barrier
    """)
    pt("cb")
    X = v.T1
    A(f"""
    ds_read_b128 {vr(v.T,4)}, v{v.t2}
    ds_read_b128 {vr(v.T+4,4)}, v{v.t2} offset:8192
    ds_read_b128 {vr(v.T+8,4)}, v{v.t2} offset:16384
    ds_read_b128 {vr(v.T+12,4)}, v{v.t2} offset:24576
    s_waitcnt lgkmcnt(0)
    """)
    xred([v.T + 4*q for q in range(4)], [X + q for q in range(4)])
    A(f"""
    v_mov_b32_dpp v{X+4}, v{v.T+8} quad_perm:[0,0,0,0] row_mask:0xf bank_mask:0xf
    v_mov_b32_dpp v{X+5}, v{v.T+12} quad_perm:[0,0,0,0] row_mask:0xf bank_mask:0xf
    v_cmp_ne_u32 s[68:69], -1, v{X+4}
    v_cmp_ne_u32 vcc, -1, v{X+5}
    s_mov_b32 exec_lo, 0x11111111
    s_mov_b32 exec_hi, 0x11111111
    s_and_b64 s[70:71], s[70:71], vcc
    v_xor_b32 v{v.T}, s22, v{X}
    v_xor_b32 v{v.T+4}, s22, v{X+1}
    v_cndmask_b32 v{X+4}, 0, 1, s[68:69]
    v_cndmask_b32 v{X+5}, 0, 1, vcc
    v_xor_b32 v{v.T}, v{v.T}, v{X+4}
    v_xor_b32 v{v.T+4}, v{v.T+4}, v{X+5}
    s_mov_b32 exec_lo, 0x88888888
    s_mov_b32 exec_hi, 0x88888888
    v_xor_b32 v{v.T+11}, s22, v{X+2}
    v_xor_b32 v{v.T+15}, s22, v{X+3}
    s_mov_b64 exec, -1
    s_waitcnt vmcnt(0)
    buffer_store_dwordx4 {vr(v.T,4)}, v{CW+10}, {sr(sOUT,4)}, s78 offen {STF}
    buffer_store_dwordx4 {vr(v.T+4,4)}, v{CW+10}, {sr(sOUT,4)}, s73 offen {STF}
    s_mov_b64 exec, s[68:69]
    buffer_store_dwordx4 {vr(v.T+8,4)}, v{CW+12}, {sr(sWS,4)}, s74 offen {STF}
    s_mov_b64 exec, s[70:71]
    buffer_store_dwordx4 {vr(v.T+12,4)}, v{CW+12}, {sr(sWS,4)}, s75 offen {STF}
    s_mov_b64 exec, -1
    """)
    stamp(4)
    if OT:
        r1f = opt.get("r1f", 1)
        A(f"s_add_u32 s22, s{sPair}, {(128 if r1f else 3) & 7}")
        A(f"s_mul_i32 s23, s{sPair}, {CH}")
        for j in range(5):
            u = v.U1 + j; a = v.U1 + 8; b_ = v.U1 + 9
            A(f"""
            v_lshrrev_b32 v{a}, 3, v{AD+j}
            v_bfe_u32 v{b_}, v{AD+j}, 2, 1
            v_mad_u32_u24 v{a}, v{b_}, {3 if r1f else 5}, v{a}
            v_subrev_u32 v{a}, s22, v{a}
            v_and_b32 v{a}, 7, v{a}
            v_bfe_u32 v{b_}, v{u}, 14, 6
            v_lshrrev_b32 v{u}, 20, v{u}
            v_lshl_or_b32 v{a}, v{a}, 8, v{b_}
            v_subrev_u32 v{b_}, {N0}, v{a}
            v_add_u32 v{u}, s23, v{u}
            v_min_u32 v{a}, v{a}, v{b_}
            v_cmpx_gt_u32 vcc, {OT}, v{a}
            buffer_load_dword v{v.JK3}, v{u}, {sr(sE,4)}, 0 idxen
            s_mov_b64 exec, -1
            """.replace("v_subrev_u32 v%d, s22, v%d\n" % (a, a), "v_subrev_u32 v%d, s22, v%d\n" % (a, a)))
    vconsts()
    A("s_branch K_COM0")
    A("K_GEMM:")
    pt("k0")
    if opt.get("wfirst"):
        srd(A, sWm, PWM, 272 * 256)
        wdma(0, 0)
        xdma(3)
    else:
        xdma(3)
        srd(A, sWm, PWM, 272 * 256)
        wdma(0, 0)
    G1M = opt.get("g1", 2)
    pt("g0")
    if G1M == 0: w23dma()
    pt("g1")
    srd(A, sWS, PWS, 0x10000000 if (opt.get('rw') or opt.get('dup')) else (WS_END if not ST else 0x1000000))
    sconsts()
    if opt.get("tlb"):
        A(f"""
        s_cmp_lg_u32 s3, 7
        s_cbranch_scc1 K_NOTLB
        v_lshlrev_b32 v{v.JK}, 21, v{L}
        v_lshlrev_b32 v{v.JK2}, 16, v{L}
        s_mov_b32 s22, 0x7ff80
        buffer_load_dword v{v.PROG}, v{v.JK}, {sr(sWS,4)}, s22 offen
        {f"buffer_load_dword v{v.LA}, v{v.JK2}, {sr(sE,4)}, 0 idxen" if opt.get("tlb") >= 2 else ""}
        {f"buffer_load_dword v{v.OHA}, v{v.JK}, {sr(sOUT,4)}, 0 offen" if opt.get("tlb") >= 2 else ""}
        K_NOTLB:
        """)
    XA = v.E; PA = v.E + 1; GA = v.E + 2; TN = v.E + 3
    A(f"""
    s_sub_u32 s{sPair}, s{sRel}, 256
    s_mov_b32 s72, {NEG_LOG2E:#x}
    s_add_u32 s73, s{sUT}, 0x2000
    s_add_u32 s74, s{sUT}, 0x4000
    s_cmp_ge_u32 s3, 4
    s_cselect_b32 s74, 0x40000000, s74
    """)
    A(f"""
    v_add_u32 v{v.JK3}, {L_BN}, v{v.t2}
    v_and_b32 v{XA}, 31, v{L}
    s_lshl_b32 s22, s{sG}, 5
    v_add_u32 v{XA}, s22, v{XA}
    s_waitcnt vmcnt({(12 if G1M == 0 else 7) })
    """)
    pt("g2")
    vconsts()
    A(f"""
    v_lshl_add_u32 v{TN}, v{H}, 11, v{TRA}
    s_lshl_b32 s22, s{sC}, 2
    v_lshl_add_u32 v{PA}, v{H}, 1, s22
    v_xor_b32 v{PA}, v{PA}, v{XA}
    v_and_b32 v{PA}, 15, v{PA}
    v_lshl_or_b32 v{PA}, v{XA}, 4, v{PA}
    s_mov_b32 s22, {L_BN}
    v_lshl_add_u32 v{PA}, v{PA}, 4, s22
    v_xor_b32 v{GA}, v{H}, v{XA}
    v_and_b32 v{GA}, 15, v{GA}
    v_lshl_or_b32 v{XA}, v{XA}, 4, v{GA}
    s_mov_b32 s22, {L_X}
    v_lshl_add_u32 v{XA}, v{XA}, 4, s22
    """)
    for s_ in range(1, 8):
        A(f"v_xor_b32 v{v.E+8+s_}, {s_*32}, v{XA}")
    pt("g3")
    if "gx" in PTS:
        A("s_waitcnt vmcnt(4)")
        pt("gx")
        A("s_waitcnt vmcnt(0)")
        pt("gw")
    if G1M == 1: w23dma()
    tagload("")
    A("s_waitcnt lgkmcnt(0)")
    tagfix()
    if PW1 and opt.get("w23e"): w23dma()
    if PW1: A("s_barrier")
    if PW1:
        A(f"""
        v_mov_b64 {P(v.T)}, 0
        v_mov_b64 {P(v.T+2)}, 0
        buffer_store_dwordx4 {vr(v.T,4)}, v{XV}, {sr(sWS,4)}, s{sUT} offen {STF}
        buffer_store_dwordx4 {vr(v.T,4)}, v{XV}, {sr(sWS,4)}, s73 offen {STF}
        buffer_store_dwordx4 {vr(v.T,4)}, v{XV}, {sr(sWS,4)}, s74 offen {STF}
        s_mov_b64 exec, 1
        buffer_store_dword v{v.T}, off, {sr(sWS,4)}, s{sPair} sc1
        s_mov_b64 exec, -1
        """)
    A(f"s_waitcnt vmcnt({(4 if PW1 else 0) + (5 if opt.get('w23e') else 0)})")
    A("s_barrier")
    stamp(94)
    if opt.get("tst"):
        sd = sOUT if opt["tst"] == "out" else sWS
        add = {"out": 0, "ws": 0, "ws2": 0x900000}[opt["tst"]]
        pt("t0")
        for r in (sUT, 73, 74):
            A(f"s_add_u32 s22, s{r}, {add}")
            A(f"buffer_store_dwordx4 {vr(v.T,4)}, v{XV}, {sr(sd,4)}, s22 offen {STF}")
        A("s_waitcnt vmcnt(0)")
        pt("t1")
    for s_ in range(8):
        A(f"ds_read_b64_tr_b16 {vr(v.WA+4*s_,2)}, v{TN} offset:{s_*4096}")
        A(f"ds_read_b64_tr_b16 {vr(v.WA+4*s_+2,2)}, v{TN} offset:{s_*4096+1024}")
        A(f"ds_read_b128 {vr(v.XF+4*s_,4)}, v{v.E+8+s_ if s_ else XA}")
    if G1M == 2 and not opt.get("w23e"): w23dma()
    A(f"s_cmp_lg_u32 s{sG}, 0")
    A("s_cbranch_scc1 K_G1")
    for s_ in range(8):
        A(f"ds_read_b128 {vr(v.U2+4*s_,4)}, v{v.E+8+s_ if s_ else XA} offset:16384")
    for s_ in range(8):
        A(f"s_waitcnt lgkmcnt({min(15, 3*(7-s_) + 8)})")
        A(mfma(v.T, v.WA + 4*s_, v.XF + 4*s_, "0" if s_ == 0 else None))
    for s_ in range(8):
        A(f"s_waitcnt lgkmcnt({7-s_})")
        A(mfma(v.T1, v.WA + 4*s_, v.U2 + 4*s_, "0" if s_ == 0 else None))
    def pout(acc, off, pk):
        for r in range(0, 16, 2):
            if pk:
                A(f"v_pk_mul_f32 {P(acc+r)}, {P(acc+r)}, s[72:73] op_sel_hi:[1,0]")
            else:
                A(f"v_mul_f32 v{acc+r}, s72, v{acc+r}")
                A(f"v_mul_f32 v{acc+r+1}, s72, v{acc+r+1}")
        for r in range(0, 16, 2):
            A(f"v_cvt_pk_bf16_f32 v{acc+r//2}, v{acc+r}, v{acc+r+1}")
        A(f"ds_write_b128 v{PA}, {vr(acc,4)} offset:{off}")
        A(f"ds_write_b128 v{GA}, {vr(acc+4,4)} offset:{off}")
    A(f"v_xor_b32 v{GA}, 16, v{PA}")
    pout(v.T, 0, False)
    pout(v.T1, 16384, True)
    A("s_branch K_G3")
    A("K_G1:")
    for s_ in range(8):
        A(f"s_waitcnt lgkmcnt({min(15, 3*(7-s_))})")
        A(mfma(v.T, v.WA + 4*s_, v.XF + 4*s_, "0" if s_ == 0 else None))
    A(f"v_xor_b32 v{GA}, 16, v{PA}")
    A("s_nop 10")
    pout(v.T, 0, False)
    A("K_G3:")
    pt("g4")
    A(f"""
    s_waitcnt lgkmcnt(0)
    s_barrier
    ds_read_b128 {vr(v.T,4)}, v{v.JK3}
    ds_read_b128 {vr(v.T+4,4)}, v{v.JK3} offset:8192
    ds_read_b128 {vr(v.T+8,4)}, v{v.JK3} offset:16384
    s_waitcnt lgkmcnt(2)
    """)

    A(f"""
    buffer_store_dwordx4 {vr(v.T,4)}, v{XV}, {sr(sWS,4)}, s{sUT} offen {STF}
    s_waitcnt lgkmcnt(1)
    buffer_store_dwordx4 {vr(v.T+4,4)}, v{XV}, {sr(sWS,4)}, s73 offen {STF}
    s_waitcnt lgkmcnt(0)
    buffer_store_dwordx4 {vr(v.T+8,4)}, v{XV}, {sr(sWS,4)}, s74 offen {STF}
    """)
    stamp(4)
    if G1M == 3:
        w23dma()
        qaddr()
        A("s_barrier")
        lds_init()
        A("s_waitcnt vmcnt(11)")
        A("s_barrier")
        pt("p1")
        A("s_cmp_eq_u32 s3, 0")
        A("s_cbranch_scc1 K2_B1")
        A("s_waitcnt vmcnt(6)")
        A("K2_B5:")
        A("s_barrier")
        qreads()
        qmfma()
        stamp(6)
        A("s_branch K_COMMON")
    A("s_waitcnt vmcnt(3)")
    A("K_COM0:")
    qaddr()
    A("s_barrier")
    pt("c1")
    qreads()
    lds_init()
    pt("c2")
    qmfma()
    stamp(6)
    A("K_COMMON:")
    pt("c3")
    for r in range(0, 12, 2):
        A(f"v_pk_mul_f32 {P(v.E+r)}, {P(v.E+r)}, s[72:73] op_sel_hi:[1,0]")
    A(f"""
    v_cvt_pk_bf16_f32 v{v.QS}, v{v.E}, v{v.E+1}
    v_cvt_pk_bf16_f32 v{v.QS+1}, v{v.E+2}, v{v.E+3}
    v_cvt_pk_bf16_f32 v{v.QF+2}, v{v.E+4}, v{v.E+5}
    v_cvt_pk_bf16_f32 v{v.QF+3}, v{v.E+6}, v{v.E+7}
    v_cvt_pk_bf16_f32 v{v.QS+2}, v{v.E+8}, v{v.E+9}
    v_cvt_pk_bf16_f32 v{v.QS+3}, v{v.E+10}, v{v.E+11}
    s_lshl_b32 s{sUoff}, s{sC}, 13
    s_add_u32 s{sUoff}, s{sUoff}, {WS_U}
    """)
    def round_regs():
        A(f"""
        v_mov_b32 v{v.TPa+1}, v{v.IX0+1}
        v_mov_b32 v{v.TPb+1}, v{v.IX0+1}
        v_mov_b32 v{v.IEb+1}, v{v.IE+1}
        v_mov_b32 v{v.aggF}, 1
        v_mov_b64 {P(v.REC)}, -1
        v_mov_b64 {P(v.REC+2)}, -1
        v_mov_b64 {P(v.REC+4)}, -1
        v_mov_b64 {P(v.REC+6)}, -1
        """)
    round_regs()
    A(f"""
    s_cmp_eq_u32 s{sRole}, 0
    s_cbranch_scc1 K2_B3
    """)
    if G1M == 2:
        A(f"""
        s_waitcnt vmcnt(6)
        s_barrier
        s_cmp_eq_u32 s3, 0
        s_cbranch_scc1 K2_B1
        """)
    A("K2_B2:")
    stamp(8)
    A(f"""
    K2_CELLS:
    s_mul_i32 s22, s2, 10240
    s_lshl_b32 s23, s2, 13
    s_add_u32 s23, s23, {WS_CELL}
    s_movk_i32 s76, 500
    v_cmp_gt_u32 s[74:75], s76, v0
    s_and_b32 s72, s74, 0x11111111
    s_and_b32 s73, s75, 0x11111111
    s_mov_b64 s[70:71], s[74:75]
    """)
    stamp(10)
    A(f"""
    K_POLL:
    s_mov_b64 exec, s[74:75]
    buffer_load_dwordx4 {vr(v.REC,4)}, v{v.t2}, {sr(sOUT,4)}, s22 offen sc1
    s_mov_b64 exec, -1
    s_waitcnt vmcnt(0)
    """)
    xred([v.REC], [v.NS])
    A(f"""
    v_xor_b32 v{v.NS}, s{sTag}, v{v.NS}
    v_cmp_lt_u32 vcc, 1, v{v.NS}
    s_and_b64 s[74:75], s[74:75], vcc
    s_cbranch_scc1 K_POLL2
    v_cmp_eq_u32 vcc, 1, v{v.NS}
    s_and_b64 s[76:77], s[70:71], vcc
    s_mov_b64 exec, s[76:77]
    buffer_load_dwordx4 {vr(v.REC+4,4)}, v{v.t2}, {sr(sWS,4)}, s23 offen sc1
    s_mov_b64 exec, s[72:73]
    v_mov_b32 v{v.REC}, -1
    s_mov_b64 exec, -1
    """)
    A(f"""
    s_cmp_lg_u32 s{sMode}, 0
    s_barrier
    s_cbranch_scc1 K2_COUNT
    ds_read_b128 {vr(v.SEL0,4)}, v{v.S0a}
    ds_read_b128 {vr(v.SEL1,4)}, v{v.S1a}
    K2_COUNT:
    """)
    ool.append(f"K2_B1:\nv_mov_b32 v{v.FV}, s{sTag}\ns_mov_b64 exec, 1\nbuffer_store_dword v{v.FV}, off, {sr(sOUT,4)}, s{sPair} sc1\ns_mov_b64 exec, -1\n{'s_waitcnt vmcnt(7)' if G1M == 3 else ''}\ns_branch {'K2_B5' if G1M == 3 else 'K2_B2'}")
    ool.append(f"K2_B3:\ns_sleep {opt.get('isl', 10)}\ns_branch K2_B2")
    ool.append(f"K_POLL2:\ns_sleep {opt.get('slp', 12)}\ns_branch K_POLL")
    stamp(12)
    ET = opt.get("et", 5)
    MAIN = [1, 0, 2, 3]; RARE = [4, 5, 6, 7]
    W0 = {j: v.W0 + 2 * j for j in MAIN}
    for j in MAIN:
        A(f"""
        v_cmp_gt_u32 {sr(sM+2*j,2)}, -2, v{v.REC+j}
        v_lshrrev_b32 v{v.AD+j}, 12, v{v.REC+j}
        v_and_b32 v{v.AD+j}, 0xfc, v{v.AD+j}
        s_mov_b64 exec, {sr(sM+2*j,2)}
        ds_add_rtn_u32 v{v.RANK+j}, v{v.AD+j}, v{v.aggF} offset:{CNT}
        s_mov_b64 exec, -1
        v_lshrrev_b32 v{W0[j]+1}, 20, v{v.REC+j}
        v_add_u32 v{W0[j]+1}, v{W0[j]+1}, v{v.EB}
        """)
    A("s_cmp_lg_u64 s[76:77], 0")
    A("s_cbranch_scc1 K2_CR")
    A("K2_CRB:")
    A2 = A
    B = Asm()
    B("K2_CR:")
    B("s_mov_b64 s[74:75], s[76:77]")
    B("K2_CR1:")
    B("s_waitcnt vmcnt(0)")
    B(f"""
    v_bitop3_b32 v{v.NS}, v{v.REC+4}, v{v.REC+5}, v{v.REC+6} bitop3:0x96
    v_xor_b32 v{v.NS}, v{v.NS}, v{v.REC+7}
    s_nop 1
    v_xor_b32_dpp v{v.NS}, v{v.NS}, v{v.NS} quad_perm:[1,0,3,2] row_mask:0xf bank_mask:0xf
    s_nop 1
    v_xor_b32_dpp v{v.NS}, v{v.NS}, v{v.NS} quad_perm:[2,3,0,1] row_mask:0xf bank_mask:0xf
    v_xor_b32 v{v.NS}, s{sTag}, v{v.NS}
    v_cmp_lt_u32 vcc, 1, v{v.NS}
    s_and_b64 s[74:75], s[74:75], vcc
    s_cbranch_scc0 K2_CR2
    s_sleep 2
    s_mov_b64 exec, s[74:75]
    buffer_load_dwordx4 {vr(v.REC+4,4)}, v{v.t2}, {sr(sWS,4)}, s23 offen sc1
    s_mov_b64 exec, -1
    s_branch K2_CR1
    K2_CR2:
    v_cmp_eq_u32 vcc, 1, v{v.NS}
    v_mov_b32 v{v.t1}, {FLAG}
    s_and_b64 exec, vcc, s[76:77]
    ds_write_b32 v{v.t1}, v{v.aggF}
    s_mov_b32 exec_lo, 0x88888888
    s_mov_b32 exec_hi, 0x88888888
    v_mov_b32 v{v.REC+7}, -1
    s_mov_b64 exec, -1
    """)
    for j in RARE:
        B(f"""
        v_cmp_gt_u32 vcc, -2, v{v.REC+j}
        s_cbranch_vccz K2_CRB
        v_lshrrev_b32 v{v.AD+j}, 12, v{v.REC+j}
        v_and_b32 v{v.AD+j}, 0xfc, v{v.AD+j}
        s_mov_b64 exec, vcc
        ds_add_rtn_u32 v{v.RANK+j}, v{v.AD+j}, v{v.aggF} offset:{CNT}
        s_mov_b64 exec, -1
        """)
    B("s_branch K2_CRB")
    ool.append(B.text())
    def touches():
        if ET:
            for j in MAIN:
                A(f"""
                v_subrev_u32 v{v.t0}, {4*N0}, v{v.AD+j}
                v_min_u32 v{v.t0}, v{v.t0}, v{v.AD+j}
                s_mov_b64 exec, {sr(sM+2*j,2)}
                v_cmpx_gt_u32 vcc, {4*ET}, v{v.t0}
                buffer_load_dword v{v.JK3}, v{W0[j]+1}, {sr(sE,4)}, 0 idxen
                s_mov_b64 exec, -1
                """)
    ETL = opt.get("etl", 0)
    if ETL == 0: touches()
    NPF = opt.get("pf", 0)
    if NPF:
        A(f"""
        s_or_b32 s22, s3, s{sMode}
        s_cmp_lg_u32 s22, 0
        s_cbranch_scc1 K2_NOPF
        v_cmp_ne_u32 vcc, s{sTag}, v{v.JK2}
        s_cbranch_vccnz K2_NOPF
        s_mul_i32 s22, s{sSl}, 81920
        v_lshlrev_b32 v{v.t0}, 7, v{L}
        """)
        for q in range(NPF):
            A(f"buffer_load_dword v{v.JK3}, v{v.t0}, {sr(sWS,4)}, s22 offen")
            if q < NPF - 1: A("s_add_u32 s22, s22, 8192")
        A("K2_NOPF:")
    c = v.t0; pd = v.OHA
    A(f"""
    v_lshlrev_b32 v{v.t0}, 2, v{L}
    v_mov_b32 v{v.t1}, {FLAG}
    s_mul_i32 s22, s{sG}, {N0}
    s_add_u32 s22, s22, 8
    s_waitcnt lgkmcnt(0)
    s_barrier
    """)
    pt("b2")
    A(f"""
    ds_read_b32 v{v.t0}, v{v.t0} offset:{CNT}
    ds_read_b32 v{v.t1}, v{v.t1}
    s_waitcnt lgkmcnt(0)
    v_add_u32 v{c}, 3, v{c}
    v_and_b32 v{c}, -4, v{c}
    v_max_u32 v{c}, 4, v{c}
    v_cndmask_b32 v{pd}, 0, v{c}, {sr(sN40,2)}
    v_readfirstlane_b32 s23, v{v.t1}
    s_nop 0
    v_add_u32_dpp v{c}, v{pd}, v{pd} row_shr:1 row_mask:0xf bank_mask:0xf bound_ctrl:0
    s_nop 1
    v_add_u32_dpp v{c}, v{c}, v{c} row_shr:2 row_mask:0xf bank_mask:0xf bound_ctrl:0
    s_nop 1
    v_add_u32_dpp v{c}, v{c}, v{c} row_shr:4 row_mask:0xf bank_mask:0xf bound_ctrl:0
    s_nop 1
    v_add_u32_dpp v{c}, v{c}, v{c} row_shr:8 row_mask:0xf bank_mask:0xf bound_ctrl:0
    s_nop 1
    v_add_u32_dpp v{c}, v{c}, v{c} row_bcast:15 row_mask:0xa bank_mask:0xf
    s_nop 1
    v_add_u32_dpp v{c}, v{c}, v{c} row_bcast:31 row_mask:0xc bank_mask:0xf
    s_cmp_lg_u32 s23, -1
    s_cbranch_scc1 K2_OVF
    v_readlane_b32 s{sT0}, v{c}, {N0-1}
    v_readlane_b32 s{sT1}, v{c}, 39
    v_sub_u32 v{pd}, v{c}, v{pd}
    s_sub_u32 s23, {GSL}, s{sT0}
    v_add_u32 v{c}, s23, v{pd}
    v_cndmask_b32 v{pd}, v{pd}, v{c}, {sr(sG1,2)}
    v_add_u32 v{v.FV}, v{pd}, v{v.OHB}
    """)
    for j in MAIN:
        A(f"ds_bpermute_b32 v{v.PK+j}, v{v.AD+j}, v{v.FV}")
    A(f"""
    v_readlane_b32 s{sTsw}, v{pd}, s22
    s_sub_u32 s{sT1}, s{sT1}, s{sT0}
    s_add_u32 s22, s{sT1}, {GSL - GSL1}
    s_max_u32 s22, s{sT0}, s22
    s_cmp_gt_u32 s22, {GSL}
    s_cbranch_scc1 K2_OVF
    s_waitcnt lgkmcnt(0)
    """)
    pt("sc")
    A(f"""
    s_or_b32 s22, s3, s{sMode}
    s_cmp_lg_u32 s22, 0
    s_cbranch_scc1 K2_NRL
    s_buffer_load_dword s{sTile}, {sr(sOUT,4)}, s{sRel} glc
    K2_NRL:
    """)
    def sbody(j, w, mask):
        return f"""
        s_mov_b64 exec, {mask}
        v_add_u32_sdwa v{v.RANK+j}, v{v.PK+j}, v{v.RANK+j} dst_sel:DWORD dst_unused:UNUSED_PAD src0_sel:WORD_0 src1_sel:DWORD
        v_bfi_b32 v{w}, s{sK3F}, v{v.REC+j}, v{v.PK+j}
        v_lshlrev_b32 v{v.PK+j}, 3, v{v.RANK+j}
        v_lshrrev_b32 v{v.RANK+j}, 2, v{v.RANK+j}
        ds_write_b64 v{v.PK+j}, {P(w)} offset:{REC}
        ds_write_b8 v{v.RANK+j}, v{v.AD+j} offset:{QN}
        """
    if ETL == 1: touches()
    for j in MAIN:
        A(sbody(j, W0[j], sr(sM+2*j,2)))
    A("s_cmp_lg_u64 s[76:77], 0")
    A("s_cbranch_scc1 K2_SR")
    A("K2_SRB:")
    if ETL == 2:
        A("s_mov_b64 exec, -1")
        touches()
    B = Asm()
    B("K2_SR:")
    for j in RARE:
        w = v.W0 + 8
        B(f"""
        s_mov_b64 exec, -1
        v_cmp_gt_u32 vcc, -2, v{v.REC+j}
        s_cbranch_vccz K2_SRB
        ds_bpermute_b32 v{v.PK+j}, v{v.AD+j}, v{v.FV}
        v_lshrrev_b32 v{w+1}, 20, v{v.REC+j}
        v_add_u32 v{w+1}, v{w+1}, v{v.EB}
        s_waitcnt lgkmcnt(0)
        """)
        B(sbody(j, w, "vcc"))
    B("s_branch K2_SRB")
    ool.append(B.text())
    A(f"""
    s_mov_b64 exec, -1
    s_or_b32 s22, s3, s{sMode}
    s_cmp_lg_u32 s22, 0
    s_cbranch_scc1 K2_RDY
    s_waitcnt lgkmcnt(0)
    s_cmp_lg_u32 s{sTile}, s{sTag}
    s_cbranch_scc1 K2_SPOLL
    K2_RDY:
    s_mov_b32 m0, s{sRing}
    s_waitcnt lgkmcnt(0)
    s_barrier
    """)
    ool.append(f"K2_RPOLL:\nbuffer_load_dword v{v.JK2}, off, {sr(sOUT,4)}, s{sRel} sc1\ns_waitcnt vmcnt(0)\nv_cmp_ne_u32 vcc, s{sTag}, v{v.JK2}\ns_cbranch_vccz K2_RDY\ns_sleep 1\ns_branch K2_RPOLL")
    ool.append(f"K2_SPOLL:\ns_mov_b32 s23, 0\nK2_SP2:\ns_buffer_load_dword s22, {sr(sOUT,4)}, s{sRel} glc\ns_waitcnt lgkmcnt(0)\ns_cmp_eq_u32 s22, s{sTag}\ns_cbranch_scc1 K2_RDY\ns_add_u32 s23, s23, 1\ns_cmp_lt_u32 s23, 16\ns_cbranch_scc1 K2_SP2\ns_branch K2_RPOLL")
    stamp(14)
    A(f"""
    K2_START:
    ds_read_u16 v{v.IX0}, v{v.R1}
    ds_read_u16 v{v.IX1}, v{v.R1} offset:64
    ds_read_b32 v{v.IE}, v{v.Re}
    ds_read_u8 v{v.t0}, v0 offset:{QN}
    ds_read_u16 v{v.TPa}, v{v.R1} offset:256
    ds_read_u16 v{v.TPb}, v{v.R1} offset:320
    ds_read_b32 v{v.IEb}, v{v.Re} offset:1024
    ds_read_u8 v{v.OH0}, v{v.R2}
    ds_read_u8 v{v.OHA}, v{v.R2} offset:256
    s_waitcnt lgkmcnt(8)
    buffer_load_dwordx4 {P(v.IX0)}, {sr(sP,4)}, 0 idxen offen lds
    s_add_u32 m0, s{sRing}, 1024
    s_waitcnt lgkmcnt(7)
    buffer_load_dwordx4 {P(v.IX1)}, {sr(sP,4)}, 0 idxen offen lds
    s_cmp_lg_u32 s{sNoE}, 0
    s_cselect_b32 m0, {JUNK}, s{sE0}
    s_waitcnt lgkmcnt(5)
    buffer_load_dwordx4 {P(v.IE)}, {sr(sE,4)}, 0 idxen offen lds
    v_cmp_ne_u32 vcc, 0xff, v{v.t0}
    v_subrev_u32 v{v.t1}, {4*N0}, v{v.t0}
    v_min_u32 v{v.t0}, v{v.t0}, v{v.t1}
    v_lshl_add_u32 v{v.t1}, v{v.t0}, 3, v{v.QC}
    v_lshrrev_b32 v{v.t0}, 1, v{v.t0}
    v_and_b32 v{v.t0}, 16, v{v.t0}
    v_xor_b32 v{v.t1}, v{v.t1}, v{v.t0}
    v_mov_b32 v{v.t0}, 0x3f80
    s_mov_b64 exec, vcc
    ds_write_b16 v{v.t1}, v{v.t0}
    s_mov_b64 exec, -1
    s_add_u32 m0, s{sRing}, 2048
    s_waitcnt lgkmcnt(0)
    buffer_load_dwordx4 {P(v.TPa)}, {sr(sP,4)}, 0 idxen offen lds
    s_add_u32 m0, s{sRing}, 3072
    ds_read_u16 v{v.IX0}, v{v.R1} offset:512
    buffer_load_dwordx4 {P(v.TPb)}, {sr(sP,4)}, 0 idxen offen lds
    ds_read_u16 v{v.IX1}, v{v.R1} offset:576
    ds_read_u16 v{v.TPa}, v{v.R1} offset:768
    ds_read_u16 v{v.TPb}, v{v.R1} offset:832
    s_cmp_lg_u32 s{sNoE}, 0
    s_cbranch_scc1 K2_ST2
    s_mul_i32 s22, s{sG}, {GSL}
    s_sub_u32 s{sTsw}, s{sTsw}, s22
    s_add_u32 s{sTsw}, s{sTsw}, 31
    s_lshr_b32 s{sTsw}, s{sTsw}, 5
    s_cmp_eq_u32 s{sG}, 0
    s_cselect_b32 s{sTg}, s{sT0}, s{sT1}
    s_add_u32 s{sTg}, s{sTg}, 31
    s_lshr_b32 s{sTg}, s{sTg}, 5
    s_sub_u32 s{sUT}, s{sTg}, 9
    s_and_b32 s{sUT}, s{sUT}, -4
    s_add_u32 s{sUT}, s{sUT}, 1
    s_cmp_lt_u32 s{sTg}, 9
    s_cselect_b32 s{sUT}, {BIG}, s{sUT}
    s_cmp_lg_u32 s{sMode}, 0
    s_cselect_b32 s{sUT}, {BIG}, s{sUT}
    s_sub_u32 s{sT1}, s{sTg}, 1
    s_min_u32 s{sT0}, s{sT1}, s{sUT}
    K2_ST2:
    s_sub_u32 s22, s{sTg}, 1
    s_lshr_b32 s22, s22, 1
    s_mul_i32 s22, s22, 3072
    s_add_u32 s22, s22, {3072 + 2048}
    v_add_u32 v{v.LA}, s22, v{v.E_}
    s_add_u32 s{sEdst}, s{sE0}, {6144 if opt.get('ek', 3) == 3 else 12288}
    s_mov_b32 s{sTile}, 0
    v_mov_b32 v{v.PROG}, 1
    v_mov_b64 {P(v.QF)}, {P(v.QS)}
    v_mov_b64 {P(v.NS)}, 0
    v_mov_b64 {P(v.NS+2)}, 0
    v_mov_b64 {P(v.DS)}, {P(v.ONE)}
    v_mov_b64 {P(v.DS+2)}, {P(v.ONE)}
    v_mov_b64 {P(v.MSG)}, 0
    v_mov_b64 {P(v.aggF)}, 0
    v_mov_b64 {P(v.aggF+2)}, 0
    v_mov_b64 {P(v.S)}, 0
    s_cmp_lg_u32 s{sNoE}, 0
    s_waitcnt vmcnt(2) lgkmcnt(0)
    s_cbranch_scc1 K2_GO
    s_barrier
    K2_GO:
    s_or_b32 s22, s{sMode}, s{sNoE}
    """)
    stamp(16)
    A(f"""
    ds_read_b128 {vr(v.ohF,4)}, v{v.OH0}
    ds_read_b128 {vr(v.eF,4)}, v{v.E_} offset:3072
    ds_read_b128 {vr(v.pF0,4)}, v{v.P0}
    ds_read_b128 {vr(v.pF1,4)}, v{v.P1}
    s_cbranch_scc1 K2_SAFEP
    """)
    def late_issue():
        A(f"""
        s_add_u32 m0, s{sRing}, 4096
        s_nop 0
        buffer_load_dwordx4 {P(v.IX0)}, {sr(sP,4)}, 0 idxen offen lds
        s_add_u32 m0, s{sRing}, 5120
        ds_read_u16 v{v.IX0}, v{v.R1} offset:1024
        buffer_load_dwordx4 {P(v.IX1)}, {sr(sP,4)}, 0 idxen offen lds
        """)
        if opt.get("ek", 3) == 2:
            A(f"""
            s_add_u32 m0, s{sE0}, 6144
            s_nop 0
            buffer_load_dwordx4 {P(v.IEb)}, {sr(sE,4)}, 0 idxen offen lds
            """)
        else:
            A(f"v_mov_b32 v{v.IE}, v{v.IEb}")
        A(f"""
        s_add_u32 m0, s{sRing}, 6144
        ds_read_u16 v{v.IX1}, v{v.R1} offset:1088
        buffer_load_dwordx4 {P(v.TPa)}, {sr(sP,4)}, 0 idxen offen lds
        s_add_u32 m0, s{sRing}, 7168
        s_nop 0
        buffer_load_dwordx4 {P(v.TPb)}, {sr(sP,4)}, 0 idxen offen lds
        """)
    chain(A, 3, "fast", None, ool, pre=True, mid=late_issue)
    A("K2_LOOP:")
    for k in range(4):
        stretch(A, k, "fast", ool)
        chain(A, k, "fast", "K2_EXIT", ool)
    A("s_branch K2_LOOP")
    A("K2_LAST0:")
    stretch(A, 0, "last", ool, last=True)
    A("s_branch K2_EXIT")
    A("K2_LAST1:")
    stretch(A, 1, "last", ool, last=True)
    A("K2_EXIT:")
    stamp(18)
    pt("x0")
    A(f"""
    s_setprio 0
    ds_read_b128 {vr(v.ohF,4)}, v{v.LA}
    {mfma(v.T1, v.U1 + 24, v.XF + 24)}
    v_rcp_f32 v{v.RS}, v{v.DS}
    v_rcp_f32 v{v.RS+1}, v{v.DS+1}
    v_rcp_f32 v{v.RS+2}, v{v.DS+2}
    v_rcp_f32 v{v.RS+3}, v{v.DS+3}
    {mfma(v.T1, v.U1 + 28, v.XF + 28)}
    v_fma_f32 v{v.S}, v{v.DS}, v{v.DS+2}, v{v.S}
    v_fma_f32 v{v.S+1}, v{v.DS+1}, v{v.DS+3}, v{v.S+1}
    v_mul_f32 v{v.NS}, v{v.NS}, v{v.RS}
    v_mul_f32 v{v.NS+1}, v{v.NS+1}, v{v.RS+1}
    v_mul_f32 v{v.NS+2}, v{v.NS+2}, v{v.RS+2}
    v_mul_f32 v{v.NS+3}, v{v.NS+3}, v{v.RS+3}
    K2_X2:
    s_bitcmp1_b32 s{sTg}, 0
    s_cbranch_scc0 K2_X3
    s_waitcnt lgkmcnt(1)
    {mfma(v.ACC, v.MSG, v.aggF)}
    v_cvt_pk_bf16_f32 v{v.MSG}, v{v.NS}, v{v.NS+1}
    v_cvt_pk_bf16_f32 v{v.MSG+1}, v{v.NS+2}, v{v.NS+3}
    s_branch K2_X4
    K2_X3:
    v_cvt_pk_bf16_f32 v{v.MSG+2}, v{v.NS}, v{v.NS+1}
    v_cvt_pk_bf16_f32 v{v.MSG+3}, v{v.NS+2}, v{v.NS+3}
    K2_X4:
    v_max_f32 v{v.S}, v{v.S}, v{v.S+1}
    s_waitcnt lgkmcnt(0)
    {mfma(v.ACC, v.MSG, v.ohF)}
    v_add_u32 v{v.t0}, s{sRing}, v{v.t3}
    s_cmp_eq_u32 s{sMode}, 1
    s_cbranch_scc1 K2_NEXTR
    K2_FIN:
    s_cmp_eq_u32 s{sUT}, {BIG}
    s_cbranch_scc1 K2_ULD
    K2_ULB:
    s_mov_b32 s22, {NEG_LN2:#x}
    s_mov_b32 s23, {f2u(2.0**60):#x}
    v_mov_b64 {P(v.NS)}, 0
    v_mov_b32 v{v.S+1}, 0
    s_lshl_b32 s76, s{sG}, 15
    s_add_u32 s76, s76, {RING}
    v_add_u32 v{v.t1}, s76, v{v.t3}
    """)
    pt("x1")
    B = Asm(); B("K2_ULD:")
    for i in range(16): u_load(B, i)
    B("s_waitcnt vmcnt(0)")
    for s_ in range(8):
        B(mfma(v.T1, v.U1 + 4*s_, v.XF + 4*s_, "0" if s_ == 0 else None))
    B("s_branch K2_ULB"); ool.append(B.text())
    for s in range(8):
        A(f"v_pk_mul_f32 {P(v.ACC+2*s)}, {P(v.ACC+2*s)}, s[22:23] op_sel_hi:[1,0]")
    for s in range(8):
        A(f"v_cvt_pk_bf16_f32 v{v.E+s}, v{v.ACC+2*s}, v{v.ACC+2*s+1}")
    for s in range(8):
        A(f"v_pk_fma_f32 {P(v.S)}, {P(v.ACC+2*s)}, {P(v.NS)}, {P(v.S)}")
    F = v.T1; AG = v.XF
    A(f"""
    v_add_f32 v{v.S}, v{v.S}, v{v.S+1}
    v_cmp_nge_f32 vcc, s23, v{v.S}
    s_cbranch_vccnz K2_TRIP
    K2_TRB:
    s_waitcnt vmcnt(0)
    ds_write_b128 v{v.t0}, {vr(v.E,4)}
    ds_write_b128 v{v.t0}, {vr(v.E+4,4)} offset:1024
    v_mov_b32 v{v.PROG}, 0x7fff
    """)
    ool.append(f"K2_TRIP:\ns_or_b32 s22, s{sMode}, s{sNoE}\ns_cmp_lg_u32 s22, 0\ns_cbranch_scc1 K2_TRB\ns_branch K2_REDO")
    A("s_waitcnt lgkmcnt(0)")
    A("s_mov_b64 exec, 1")
    A(f"ds_write_b32 v{v.FW}, v{v.PROG}")
    A("s_mov_b64 exec, -1")
    A(f"ds_read_b32 v{v.FV}, v{v.FR}")
    pt("x2")
    A(f"""
    K2_GS:
    s_waitcnt lgkmcnt(0)
    v_cmp_gt_u32 vcc, v{v.PROG}, v{v.FV}
    s_cbranch_vccnz K2_GS2
    """)
    ool.append(f"K2_GS2:\nds_read_b32 v{v.FV}, v{v.FR}\ns_branch K2_GS")
    stamp(96)
    pt("x3")
    for s in range(8):
        A(f"ds_read_b128 {vr(AG+4*s,4)}, v{v.t1} offset:{(s >> 1) * 8192 + (s & 1) * 1024}")
    for s in range(8):
        A(f"s_waitcnt lgkmcnt({7-s})")
        A(mfma(F, v.U2 + 4*s, AG + 4*s))
    pt("x4")
    A(f"s_mov_b32 s22, {NEG_LOG2E:#x}")
    A("s_nop 10")
    for r in range(0, 16, 2):
        A(f"v_pk_mul_f32 {P(v.E+r)}, {P(F+r)}, s[22:23] op_sel_hi:[1,0]")
    for r in range(16):
        A(f"v_exp_f32 v{v.E+r}, v{v.E+r}")
    for r in range(0, 16, 2):
        A(f"v_pk_add_f32 {P(v.E+r)}, {P(v.E+r)}, {P(v.ONE)}")
    for r in range(16):
        A(f"v_rcp_f32 v{v.E+r}, v{v.E+r}")
    for r in range(0, 16, 2):
        A(f"v_pk_mul_f32 {P(F+r)}, {P(F+r)}, {P(v.E+r)}")
    O = v.T
    for r in range(8):
        A(f"v_cvt_pk_bf16_f32 v{O+r}, v{F+2*r}, v{F+2*r+1}")
    A(f"""
    s_nop 1
    v_permlane32_swap_b32 v{O}, v{O+2}
    v_permlane32_swap_b32 v{O+1}, v{O+3}
    v_permlane32_swap_b32 v{O+4}, v{O+6}
    v_permlane32_swap_b32 v{O+5}, v{O+7}
    buffer_store_dwordx4 {vr(O,4)}, v{v.OA}, {sr(sOUT,4)}, 0 offen {opt.get("ost", "").replace("_", " ")}
    buffer_store_dwordx4 {vr(O+4,4)}, v{v.OA}, {sr(sOUT,4)}, 0 offen offset:32 {opt.get("ost", "").replace("_", " ")}
    """)
    pt("x5")
    A(f"""
    s_or_b32 s22, s2, s3
    s_cmp_eq_u32 s22, 0
    s_cbranch_scc1 K_ADV
    K_ADVB:
    """)
    ool.append(f"K_ADV:\nv_mov_b32 v1, s{sTag}\ns_mov_b32 s22, {WS_TAG}\ns_mov_b64 exec, 1\nbuffer_store_dword v1, off, {sr(sWS,4)}, s22 sc1\ns_mov_b64 exec, -1\ns_branch K_ADVB")
    if ST:
        A("s_waitcnt vmcnt(0)")
        A("s_memtime s[98:99]")
        A("s_memrealtime s[100:101]")
        A(f"""
        s_lshl_b32 s22, s2, 3
        s_add_u32 s22, s22, s3
        s_lshl_b32 s22, s22, 6
        s_add_u32 s22, s22, 0xA00000
        v_mov_b32 v1, 0
        s_waitcnt lgkmcnt(0)
        """)
        for i, r in enumerate([90, 94, 4, 6, 8, 10, 12, 14, 16, 18, 96, 98, 92, 100, sTg] if not PTS else [90, 94, 4, 44, 46, 48, 50, 96, 6, 12, 14, 98, 92, 100, sTg]):
            A(f"v_mov_b32 v2, s{r}")
            A(f"buffer_store_dword v2, v1, {sr(sWS,4)}, s22 offen offset:{4*i}")
    A("K_END:")
    A("s_endpgm")
    for o in ool: A(o)
    del ool[:]
    A(f"""
    K_SPECIAL:
    s_waitcnt lgkmcnt(0)
    s_mov_b32 s22, {WS_TAG}
    s_load_dword s{sTag}, s[{PWS}:{PWS+1}], s22
    """)
    if ST: srd(A, sDB, PDBG, 256)
    srd(A, sWS, PWS, WS_END)
    A(f"""
    s_cmp_lg_u32 s2, 0
    s_cbranch_scc1 K_HELPER
    s_cmp_lg_u32 s3, 0
    s_cbranch_scc1 K_END
    s_waitcnt lgkmcnt(0)
    s_add_u32 s{sTag}, s{sTag}, 2
    s_or_b32 s{sTag}, s{sTag}, 0x40000001
    v_mov_b32 v1, s{sTag}
    """)
    srd(A, sOUT, POUT, N * 256)
    A(f"""
    v_mul_u32_u24 v2, 20480, v0
    v_add_u32 v2, {10240 + 8192}, v2
    v_add_u32 v4, {64 * 20480}, v2
    v_cmp_gt_u32 vcc, {NCHUNK - 64}, v0
    v_mul_u32_u24 v5, 20480, v0
    v_add_u32 v5, {8192 - 61 * 20480}, v5
    v_cndmask_b32 v4, v5, v4, vcc
    v_cmp_eq_u32 vcc, 63, v0
    v_mul_u32_u24 v3, 10240, v0
    v_add_u32 v3, 8448, v3
    v_cndmask_b32 v4, v4, v2, vcc
    s_mov_b32 s76, {64 * 10240}
    s_mov_b32 s77, {128 * 10240}
    s_mov_b32 s78, {192 * 10240}
    {f"s_sleep {opt.get('msl')}" if opt.get('msl') else ""}
    K_MPOLL:
    buffer_load_dword v8, v2, {sr(sOUT,4)}, 0 offen sc1
    buffer_load_dword v9, v4, {sr(sOUT,4)}, 0 offen sc1
    s_waitcnt vmcnt(0)
    v_xor_b32 v8, v1, v8
    v_xor_b32 v9, v1, v9
    v_or_b32 v8, v8, v9
    v_cmp_ne_u32 vcc, 0, v8
    s_cbranch_vccnz K_MPOLL
    buffer_store_dword v1, v3, {sr(sOUT,4)}, 0 offen sc1
    buffer_store_dword v1, v3, {sr(sOUT,4)}, s76 offen sc1
    buffer_store_dword v1, v3, {sr(sOUT,4)}, s77 offen sc1
    buffer_store_dword v1, v3, {sr(sOUT,4)}, s78 offen sc1
    {"s_memrealtime s[90:91]" if ST else ""}
    {"s_waitcnt lgkmcnt(0)" if ST else ""}
    {"v_mov_b32 v2, s90" if ST else ""}
    {f"buffer_store_dword v2, off, {sr(sDB,4)}, 0 offset:8" if ST else ""}
    {"v_mov_b32 v2, s92" if ST else ""}
    {f"buffer_store_dword v2, off, {sr(sDB,4)}, 0 offset:12" if ST else ""}
    s_endpgm
    K_HELPER:
    s_sub_u32 s87, s2, 1
    s_lshl_b32 s82, s87, 15
    s_lshl_b32 s77, s3, 12
    """)
    srd(A, sWm, PWU, 32768, add="s82")
    wdma(0, 0)
    A(f"""
    s_waitcnt vmcnt(4)
    s_lshl_b32 s22, s{sC}, 6
    v_xor_b32 v{TRA}, s22, v{TRA}
    v_lshrrev_b32 v{H}, 5, v{L}
    s_sub_u32 s22, 11, s87
    v_lshlrev_b32 v{H}, s22, v{H}
    v_add_u32 v{TRA}, v{TRA}, v{H}
    s_lshl_b32 s22, s{sG}, 14
    v_add_u32 v{TRA}, s22, v{TRA}
    s_lshl_b32 s22, 1024, s87
    v_add_u32 v{H}, s22, v{TRA}
    s_lshl_b32 s22, s{sC}, 13
    s_add_u32 s82, s82, s22
    s_lshl_b32 s22, s{sG}, 12
    s_add_u32 s82, s82, s22
    s_add_u32 s82, s82, {WS_U}
    s_waitcnt vmcnt(0)
    s_barrier
    """)
    for s_ in range(4):
        A(f"ds_read_b64_tr_b16 {vr(v.T+4*s_,2)}, v{TRA} offset:{s_*4096}")
        A(f"ds_read_b64_tr_b16 {vr(v.T+4*s_+2,2)}, v{H} offset:{s_*4096}")
    A("s_waitcnt lgkmcnt(0)")
    for s_ in range(4):
        A(f"buffer_store_dwordx4 {vr(v.T+4*s_,4)}, v{v.t3}, {sr(sWS,4)}, s82 offen offset:{s_*1024} sc1")
    A(f"""
    s_waitcnt vmcnt(0)
    s_barrier
    s_cmp_lg_u32 s3, 0
    s_cbranch_scc1 K_END
    s_add_u32 s{sTag}, s{sTag}, 2
    s_or_b32 s{sTag}, s{sTag}, 0x40000001
    v_mov_b32 v1, s{sTag}
    """)
    srd(A, sOUT, POUT, N * 256)
    A(f"""
    s_mul_i32 s22, s87, 20480
    s_add_u32 s22, s22, 8192
    s_mov_b64 exec, 1
    buffer_store_dword v1, off, {sr(sOUT,4)}, s22 sc1
    s_endpgm
    """)
    A("K2_SAFEP:")
    chain(A, 3, "safe", None, ool, pre=True, mid=late_issue)
    A("K2_SAFE:")
    for k in range(4):
        stretch(A, k, "safe", ool)
        chain(A, k, "safe", "K2_SEXIT", ool)
    A("s_branch K2_SAFE")
    A(f"""
    K2_SEXIT:
    s_setprio 0
    ds_read_b128 {vr(v.ohF,4)}, v{v.LA}
    s_branch K2_X2
    """)
    def restore(reg=None):
        A(f"""
        s_lshr_b32 s23, s{reg or sTg}, 2
        s_mul_i32 s22, s23, 6144
        s_lshl_b32 s23, s23, 10
        v_subrev_u32 v{v.E_}, s22, v{v.E_}
        v_subrev_u32 v{v.R1}, s23, v{v.R1}
        v_subrev_u32 v{v.R2}, s23, v{v.R2}
        v_subrev_u32 v{v.Re}, s23, v{v.Re}
        """)
    A("K2_REDO:")
    restore(sT1)
    A(f"s_mov_b32 s{sUT}, {BIG}")
    A(f"s_mov_b32 s{sNoE}, 1")
    for r in range(0, 16, 2):
        A(f"v_mov_b64 {P(v.ACC+r)}, 0")
    A(f"v_mov_b32 v{v.TPa+1}, v{v.IX0+1}")
    A(f"v_mov_b32 v{v.TPb+1}, v{v.IX0+1}")
    A(f"s_mov_b32 m0, s{sRing}")
    A("s_waitcnt vmcnt(0) lgkmcnt(0)")
    A("s_branch K2_START")
    A(f"""
    K2_OVF:
    s_cmp_eq_u32 s{sMode}, 0
    s_cbranch_scc0 K2_OV2
    s_cmp_lg_u32 s3, 0
    s_cbranch_scc1 K2_OV2
    K2_OV1:
    buffer_load_dword v{v.JK2}, off, {sr(sOUT,4)}, s{sRel} sc1
    s_waitcnt vmcnt(0)
    v_cmp_ne_u32 vcc, s{sTag}, v{v.JK2}
    s_cbranch_vccnz K2_OV1
    K2_OV2:
    s_mov_b32 s{sMode}, 1
    s_mov_b32 s{sRound}, 0
    s_branch K2_ROUND
    K2_NEXTR:
    s_add_u32 s{sRound}, s{sRound}, 1
    s_cmp_ge_u32 s{sRound}, {E // 512}
    s_cbranch_scc1 K2_FIN
    """)
    restore()
    A(f"""
    K2_ROUND:
    s_load_dwordx4 s[76:79], s[0:1], 16
    s_waitcnt vmcnt(0) lgkmcnt(0)
    s_barrier
    """)
    srd(A, sS, 76, E * 4)
    srd(A, sD, 78, E * 4)
    round_regs()
    A(f"""
    s_lshl_b32 s22, s{sRound}, 9
    v_add_u32 v{v.EB}, s22, v0
    v_lshlrev_b32 v{v.t0}, 2, v{v.EB}
    buffer_load_dword v{v.REC}, v{v.t0}, {sr(sD,4)}, 0 offen
    buffer_load_dword v{v.REC+1}, v{v.t0}, {sr(sS,4)}, 0 offen
    """)
    lds_init()
    A(f"""
    s_mul_i32 s22, s2, 40
    s_waitcnt vmcnt(0)
    v_subrev_u32 v{v.REC}, s22, v{v.REC}
    v_cmp_gt_u32 vcc, 40, v{v.REC}
    v_lshl_or_b32 v{v.t0}, v{v.REC}, 14, v{v.REC+1}
    v_mov_b32 v{v.REC+1}, -1
    v_cndmask_b32 v{v.REC}, -1, v{v.t0}, vcc
    s_mov_b64 s[76:77], 0
    s_barrier
    s_branch K2_COUNT
    """)
    for o in ool: A(o)
    A("K_CODE_END:")
    return A.text()

HEADER = """; MPNN edge-MLP layer, fused single kernel (generated by gen/fz18.py).
; Kernarg layout (72 bytes, ptrs only, base s[0:1]):
;   32: w_msg (272,128) bf16 | 40: w_upd (256,128) bf16 | 48: d_out | 56: d_debug | 64: d_ws
"""
def build(opt):
    out = HEADER + f"; @launch grid=({NWG},1,1) block=(512,1,1) lds={LDS_TOTAL}\n"
    out += '.amdgcn_target "amdgcn-amd-amdhsa--gfx950"\n.text\n'
    out += f".globl {KNAME}\n.p2align 8\n.type {KNAME},@function\n" + gen(opt)
    acc = (NV + 3) // 4 * 4
    out += f""".section .rodata,"a"
.p2align 8
K_TABLE:
{tables()}.p2align 6
.amdhsa_kernel {KNAME}
  .amdhsa_next_free_vgpr {NV}
  .amdhsa_next_free_sgpr 102
  .amdhsa_accum_offset {acc}
  .amdhsa_group_segment_fixed_size 0
  .amdhsa_kernarg_size 72
  .amdhsa_user_sgpr_count 2
  .amdhsa_user_sgpr_kernarg_segment_ptr 1
  .amdhsa_system_sgpr_workgroup_id_x 1
.end_amdhsa_kernel
"""
    return out

if __name__ == "__main__":
    opt = {}
    for a in sys.argv[2:]:
        k_, v_ = a.split("=")
        opt[k_] = int(v_) if v_.lstrip("-").isdigit() else v_
    open(sys.argv[1], "w").write(build(opt))
```
